```python
import torch

def _softmax(x, axis=-1):
    return torch.softmax(x, dim=axis)
def _gelu(x):
    return torch.nn.functional.gelu(x, approximate="tanh")
def _silu(x):
    return torch.nn.functional.silu(x)
def _sigmoid(x):
    return torch.sigmoid(x)
def _layernorm(x, axis=-1, eps=1e-5):
    m = x.mean(dim=axis, keepdim=True)
    v = x.var(dim=axis, keepdim=True, unbiased=False)
    return (x - m) / torch.sqrt(v + eps)
def _scatter_add(tgt, idx, src, axis=0):
    return tgt.clone().index_add_(axis, idx, src)
def _segment_sum(src, seg, n):
    out = torch.zeros((n,) + src.shape[1:], dtype=src.dtype)
    return out.index_add_(0, seg, src)
def _pad(x, pw):
    flat = tuple(v for pair in reversed(pw) for v in pair)
    return torch.nn.functional.pad(x, flat)

kernel_name = 'gated_mix__sliding_block__dense_activation_gelu__prompt'

def setup_inputs():

    _w = (lambda a: (lambda t: t.to(torch.bfloat16) if t.is_floating_point() else t)(torch.as_tensor(a)))
    def _A_setup():
        B, S, D = 1, 2048, 448
        return {
            "x": _w((lambda *s: torch.randn(*s, dtype=torch.bfloat16) * 0.05)(B, S, D)),
            "wqkv": _w((lambda *s: torch.randn(*s, dtype=torch.bfloat16) * 0.8)(D, 3 * D)),
            "wo": _w((lambda *s: torch.randn(*s, dtype=torch.bfloat16) * 0.05)(D, D)),
        }
    _A_in = _A_setup()

    def _B_setup():
        B, S, D, F = 1, 2048, 448, 1792
        return {
            "x": _w((lambda *s: torch.randn(*s, dtype=torch.bfloat16) * 0.05)(B, S, D)),
            "w1": _w((lambda *s: torch.randn(*s, dtype=torch.bfloat16) * 12.8)(D, F) * (D ** -0.5)),
            "b1": _w((lambda *s: torch.randn(*s, dtype=torch.bfloat16) * 12.8)(F) * 0.01),
            "w2": _w((lambda *s: torch.randn(*s, dtype=torch.bfloat16) * 0.8)(F, D) * (F ** -0.5)),
            "b2": _w((lambda *s: torch.randn(*s, dtype=torch.bfloat16) * 6.4)(D) * 0.01),
        }
    _B_in = _B_setup()

    return {
        "A_x": _A_in["x"],
        "A_wqkv": _A_in["wqkv"],
        "A_wo": _A_in["wo"],
        "B_x": _B_in["x"],
        "B_w1": _B_in["w1"],
        "B_b1": _B_in["b1"],
        "B_w2": _B_in["w2"],
        "B_b2": _B_in["b2"],
        "gate_w": _w((lambda *s: torch.randn(*s, dtype=torch.bfloat16) * 0.05)(448) * 16.0),
    }

def reference(A_x, A_wqkv, A_wo, B_x, B_w1, B_b1, B_w2, B_b2, gate_w):
    def _A_ref(x, wqkv, wo):
        B, S, D = x.shape
        H = 16; Dh = D // H; W = 256
        qkv = (lambda x, *d: x.permute(*d))((x @ wqkv).reshape(B, S, 3, H, Dh), 2, 0, 3, 1, 4)
        q, k, v = qkv[0], qkv[1], qkv[2]
        scores = torch.einsum("bhqd,bhkd->bhqk", q, k) * (Dh ** -0.5)
        idx = torch.arange(S)
        mask = (idx[:, None] - idx[None, :] >= 0) & (idx[:, None] - idx[None, :] < W)
        scores = torch.where(mask[None, None], scores, -1e9)
        p = _softmax(scores, axis=-1)
        o = torch.einsum("bhqk,bhkd->bhqd", p, v)
        return (lambda x, *d: x.permute(*d))(o, 0, 2, 1, 3).reshape(B, S, D) @ wo

    def _B_ref(x, w1, b1, w2, b2):
        h = torch.einsum("bsd,df->bsf", x, w1) + b1
        h = _gelu(h)
        return torch.einsum("bsf,fd->bsd", h, w2) + b2

    x = A_x
    g = _sigmoid((x * gate_w).sum(-1, keepdims=True))
    a = _A_ref(x, A_wqkv, A_wo)
    b = _B_ref(x, B_w1, B_b1, B_w2, B_b2)
    return g * a + (1 - g) * b
```

```python
import re

REG_RE = re.compile(r"^(-|abs\()?([vas])(\d+|\[(\d+):(\d+)\])\)?$")
TRANS = ("v_exp_f32", "v_log_f32", "v_rcp_f32", "v_rsq_f32", "v_sqrt_f32", "v_sin_f32", "v_cos_f32")


def regs_of(op):
    op = op.strip()
    if op == "vcc":
        return {"vcc"}
    if op in ("exec", "m0"):
        return {op}
    m = REG_RE.match(op)
    if not m:
        return set()
    k = m.group(2)
    if m.group(4) is not None:
        return {f"{k}{i}" for i in range(int(m.group(4)), int(m.group(5)) + 1)}
    return {f"{k}{int(m.group(3))}"}


class Ins:
    __slots__ = ("text", "mn", "kind", "w", "r", "a", "b", "c", "states", "skippable", "wide", "note")

    def __init__(self, text):
        self.text = text
        self.skippable = False
        self.note = ""
        t = text.split(";")[0].strip()
        self.w, self.r = set(), set()
        self.a = self.b = self.c = set()
        self.states = 1
        self.wide = False
        if t.endswith(":"):
            self.mn, self.kind, self.states = t, "label", 0
            return
        if t.startswith("."):
            self.mn, self.kind, self.states = t, "dir", 0
            return
        parts = t.split(None, 1)
        mn = parts[0]
        self.mn = mn
        rest = parts[1] if len(parts) > 1 else ""
        ops = [o.strip() for o in rest.split(",")] if rest else []
        mods = ""
        if ops:
            sp = ops[-1].split(None, 1)
            ops[-1] = sp[0]
            mods = sp[1] if len(sp) > 1 else ""
        R = [regs_of(o) for o in ops]
        base = re.sub(r"_e(32|64)$", "", mn)
        if mn.startswith("v_mfma"):
            self.kind = "mfma"
            self.w = R[0]
            self.a, self.b, self.c = R[1], R[2], R[3]
            self.r = R[1] | R[2] | R[3]
        elif mn.startswith("v_cmp"):
            self.kind = "valu"
            self.w = R[0]
            self.r = set().union(*R[1:])
        elif base in ("v_readfirstlane_b32", "v_readlane_b32"):
            self.kind = "valu"
            self.w = R[0]
            self.r = set().union(*R[1:])
        elif base.startswith("v_permlane"):
            self.kind = "valu"
            self.w = R[0] | R[1]
            self.r = R[0] | R[1]
        elif mn.startswith("v_"):
            self.kind = "trans" if base in TRANS else "valu"
            if base == "v_nop":
                return
            self.w = set(R[0])
            self.r = set().union(*R[1:]) if len(R) > 1 else set()
            if base.startswith(("v_fmac", "v_pk_fmac", "v_dot2c")):
                self.r |= R[0]
            if base in ("v_add_co_u32", "v_sub_co_u32", "v_addc_co_u32"):
                self.w |= R[1]
        elif mn.startswith("buffer_load"):
            if re.search(r"\blds\b", mods):
                self.kind = "dma"
                self.r = R[0] | R[1] | R[2] | {"m0"}
            else:
                self.kind = "vload"
                self.w = R[0]
                self.r = R[1] | R[2] | R[3]
        elif mn.startswith("buffer_store"):
            self.kind = "vstore"
            self.r = R[0] | R[1] | R[2] | R[3]
            self.a = R[0]
            self.wide = mn.endswith(("x3", "x4"))
        elif mn.startswith("ds_read"):
            self.kind = "dsread"
            self.w = R[0]
            self.r = R[1]
        elif mn.startswith("ds_write"):
            self.kind = "dswrite"
            self.r = set().union(*R)
        elif mn == "s_waitcnt":
            self.kind = "wait"
        elif mn == "s_nop":
            self.kind = "nop"
            self.states = int(ops[0]) + 1
        elif mn == "s_barrier":
            self.kind = "barrier"
        elif mn.startswith(("s_branch", "s_cbranch")):
            self.kind = "branch"
            if "vcc" in mn:
                self.r = {"vcc"}
        elif mn in ("s_endpgm", "s_sleep", "s_setprio"):
            self.kind = "salu"
        elif mn.startswith(("s_load", "s_memtime", "s_memrealtime")):
            self.kind = "smem"
            self.w = R[0]
            self.r = set().union(*R[1:]) if len(R) > 1 else set()
        elif mn.startswith(("s_cmp", "s_bitcmp")):
            self.kind = "salu"
            self.r = set().union(*R)
        elif mn.startswith("s_"):
            self.kind = "salu"
            self.w = R[0]
            self.r = set().union(*R[1:]) if len(R) > 1 else set()
        else:
            raise ValueError("unknown instruction: " + text)


def _isv(s):
    return {x for x in s if x[0] in "va" and x != "vcc"}


def _iss(s):
    return {x for x in s if x == "vcc" or (x[0] == "s")}


def hazard(p, c):
    need = 0
    pv = p.kind in ("valu", "trans")
    cv = c.kind in ("valu", "trans")
    cmem = c.kind in ("vload", "vstore", "dma", "dsread", "dswrite")
    if pv:
        wv, ws = _isv(p.w), _iss(p.w)
        if c.kind == "mfma" and wv & c.r:
            need = max(need, 2)
        if cv and c.mn.startswith(("v_readfirstlane", "v_readlane")) and wv & c.r:
            need = max(need, 1)
        if cv and c.mn.startswith("v_permlane") and wv & c.r:
            need = max(need, 2)
        if p.kind == "trans" and (c.kind == "valu" or cmem) and wv & c.r:
            need = max(need, 1)
        if ws:
            if c.kind in ("vload", "vstore", "dma") and ws & c.r:
                need = max(need, 5)
            if cv and ws & c.r:
                need = max(need, 2)
            if c.kind in ("salu", "branch") and ws & c.r:
                need = max(need, 1)
    if p.kind == "mfma":
        if c.kind == "mfma":
            if p.w & (c.a | c.b):
                need = max(need, 12)
            if p.w & c.c and p.w != c.c:
                need = max(need, 10)
            if p.w & c.w and not (p.w == c.w and c.c == c.w):
                need = max(need, 10)
        elif cv or cmem:
            if p.w & (c.r | c.w):
                need = max(need, 12)
            if p.c & c.w:
                need = max(need, 7)
    if p.kind == "salu" and "m0" in p.w and c.kind == "dma":
        need = max(need, 1)
    if p.kind == "vstore" and p.wide and p.a & c.w:
        need = max(need, 2)
    return need


class Asm:
    def __init__(self):
        self.ins = []
        self.vm = []
        self.lg = []
        self.ntok = 0
        self.skip = False
        self.stats = {"vmwait": 0, "lgwait": 0}

    def _push(self, i):
        i.skippable = self.skip
        self.ins.append(i)

    def _wait(self, vm=None, lg=None):
        parts = []
        if vm is not None:
            vm = min(vm, 63)
            if vm < len(self.vm):
                self.vm = self.vm[len(self.vm) - vm:] if vm else []
                parts.append(f"vmcnt({vm})")
                self.stats["vmwait"] += 1
        if lg is not None:
            lg = min(lg, 15)
            if lg < len(self.lg):
                self.lg = self.lg[len(self.lg) - lg:] if lg else []
                parts.append(f"lgkmcnt({lg})")
                self.stats["lgwait"] += 1
        if parts:
            assert not self.skip, "wait inside a skippable region"
            last = self.ins[-1] if self.ins else None
            if last is not None and last.kind == "wait" and last.note == "auto":
                old = dict(re.findall(r"(vmcnt|lgkmcnt)\((\d+)\)", last.text))
                for k, v in re.findall(r"(vmcnt|lgkmcnt)\((\d+)\)", " ".join(parts)):
                    old[k] = min(int(v), int(old.get(k, 99)))
                last.text = "s_waitcnt " + " ".join(f"{k}({v})" for k, v in old.items())
                return
            w = Ins("s_waitcnt " + " ".join(parts))
            w.note = "auto"
            self._push(w)

    def _after(self, q, pred):
        for n, e in enumerate(reversed(q)):
            if pred(e):
                return n
        return None

    def e(self, text):
        i = Ins(text)
        touch = i.r | i.w
        if touch and i.kind != "smem":
            self._wait(self._after(self.vm, lambda e: e[1] & touch), self._after(self.lg, lambda e: e[1] & touch))
        self._push(i)
        tok = None
        if i.kind in ("vload", "vstore", "dma"):
            assert not self.skip
            self.ntok += 1
            tok = self.ntok
            self.vm.append((tok, set(i.w)))
            assert len(self.vm) <= 63, "more than 63 vector-memory ops outstanding"
        elif i.kind in ("dsread", "dswrite"):
            assert not self.skip
            self.ntok += 1
            tok = self.ntok
            self.lg.append((tok, set(i.w)))
        elif i.kind == "wait":
            m = re.search(r"vmcnt\((\d+)\)", text)
            if m:
                n = int(m.group(1))
                self.vm = self.vm[max(0, len(self.vm) - n):] if n else []
            m = re.search(r"lgkmcnt\((\d+)\)", text)
            if m:
                n = int(m.group(1))
                self.lg = self.lg[max(0, len(self.lg) - n):] if n else []
        return tok

    def need(self, *toks):
        s = {t for t in toks if t is not None}
        self._wait(self._after(self.vm, lambda e: e[0] in s), self._after(self.lg, lambda e: e[0] in s))

    def label(self, name):
        self._push(Ins(name + ":"))

    def comment(self, t):
        i = Ins(".p2align 0")
        i.text = "; " + t
        self._push(i)

    def finalize(self):
        out = []
        nops = 0
        for c in self.ins:
            if c.kind in ("label", "dir"):
                out.append(c)
                continue
            need = 0
            for view in (0, 1):
                dist = 0
                for p in reversed(out):
                    if dist >= 20:
                        break
                    if view == 1 and p.skippable and not c.skippable:
                        continue
                    h = hazard(p, c) if p.kind not in ("label", "dir") else 0
                    if h > dist:
                        need = max(need, h - dist)
                    dist += p.states
            while need > 0:
                n = min(need, 16)
                np_ = Ins(f"s_nop {n-1}")
                np_.skippable = c.skippable
                np_.note = "haz"
                out.append(np_)
                nops += n
                need -= n
            out.append(c)
        self.stats["nop_states"] = nops
        self.ins = out
        return out

    def text(self):
        return "\n".join(("" if i.kind == "label" else "    ") + i.text for i in self.ins)


def v(a, n=1):
    return f"v{a}" if n == 1 else f"v[{a}:{a+n-1}]"


def a_(a, n=1):
    return f"a{a}" if n == 1 else f"a[{a}:{a+n-1}]"


def s(a, n=1):
    return f"s{a}" if n == 1 else f"s[{a}:{a+n-1}]"
```

```python
import math, struct, sys
from collections import deque
sys.path.insert(0, "tools")
from asmlib import Asm, Ins, v, a_, s

NAME = "gated_mix__sliding_block__dense_activation_gelu__prompt"
OPT = dict(stamps=0, stop=99)
for arg in sys.argv[2:]:
    k, val = arg.split("=")
    OPT[k] = int(val)


def fbits(x):
    return struct.unpack("<I", struct.pack("<f", x))[0]


QKV_BASE, H_BASE, O_BASE, G_BASE = 0, 0x600000, 0xD00000, 0xF00000
F_BASE, E_OFF, ST_BASE, WS_SIZE = 0xF10000, 0xF80000, 0xFA0000, 0x1000000
OOB = 0x40000000
TAG_STEP = 0x6B43A9B7
R_A, R_Q, R_B, RING = 0, 57344, 57344, 114688
KV = 0
TB1, DUMMY, TB2, RED = 163328, 147456, 57344, 58368
LDS_SIZE = 163840
S_CODE, S_X, S_WQ, S_W1, S_WS, S_W2, S_WO, S_OUT, S_B1, S_B2, S_GW = 4, 8, 12, 16, 20, 24, 28, 32, 36, 40, 44
sW, sR, sC, sLIGHT, sUA, sUB, sJ, sRA, sRB0, sCT, sROT2, sLOC = range(48, 60)
sT0, sT1, sT2, sT3 = 60, 61, 62, 63
sHI = 64
sM = 66
sG = 68
sRB = 75
sMQ, sMA, sMB, sRING = 76, 77, 78, 79
sBOFF, sBEND, sAOFF, sAEND, sFIRST, sSPIN = 80, 81, 82, 83, 84, 85
sM2, sM3 = 86, 88
sK2 = 90
sST = 92
STREGS = list(range(92, 102)) + [4, 5, 6, 7, 0, 1]
vL = 0
vLIN = 1
vT = 2
vL0 = 3
vK1 = 4
vTRQ, vTRF0, vTRF1 = 6, 7, 8
vW1A0, vW1A1 = 9, 10
vPV = 11
vBD = 12
vBT0, vBT1 = 16, 17
vXA0, vXA1 = 18, 19
vWQ = 20
vTBL = 23
vTMP = 24
vWR = 40
vACC = 64
vX = 144
vF1A, vF23A, vPOLL, vGA = 18, 19, 20, 21
vGATE = 22

C_GELU = -2.0 * math.sqrt(2.0 / math.pi) * math.log2(math.e)
K1, K2 = fbits(C_GELU), fbits(C_GELU * 0.044715)
QSCALE = fbits(math.log2(math.e) / math.sqrt(28.0))
NINF = 0xFF800000


class Gen:
    def __init__(self):
        self.a = Asm()
        self.q = deque()
        self.tail = []
        self.nst = 0
        self.nlab = 0

    def e(self, t):
        return self.a.e(t)

    def push(self, fn, cost=4):
        self.q.append((fn, cost))

    def pe(self, t, cost=None):
        if cost is None:
            cost = 8 if Ins(t).kind == "trans" else 4
        if t.startswith("s_cselect"):
            fn, c = self.q.pop()
            assert getattr(fn, "scc", False), "s_cselect must follow its s_cmp directly: " + t
            g = lambda fn=fn, t=t: (fn(), self.e(t))
            g.scc = True
            self.q.append((g, c + cost))
            return
        f = lambda t=t: self.e(t)
        f.scc = t.startswith("s_cmp")
        self.q.append((f, cost))

    def fill(self, budget):
        while self.q and budget >= min(self.q[0][1], 8):
            fn, c = self.q.popleft()
            fn()
            budget -= c

    def drain(self):
        while self.q:
            self.q.popleft()[0]()

    def stamp(self):
        if OPT["stamps"] and self.nst < len(STREGS):
            self.e(f"s_memtime s[{sM3}:{sM3+1}]")
            self.e("s_waitcnt lgkmcnt(0)")
            self.e(f"s_mov_b32 s{STREGS[self.nst]}, s{sM3}")
            self.nst += 1

    def poll_issue(self, addr, soff):
        self.tPoll = self.e(f"buffer_load_dword {v(vPOLL)}, {v(addr)}, {s(S_WS,4)}, {soff} offen sc1")

    def poll_check(self, addr, soff):
        self.nlab += 1
        n = self.nlab
        self.e(f"v_cmp_ne_u32 vcc, {v(vT)}, {v(vPOLL)}")
        self.e(f"s_cbranch_vccnz L_slow{n}")
        self.a.label(f"L_back{n}")
        self.tail += [f"L_slow{n}:", f"s_mov_b32 s{sSPIN}, 0", f"L_spin{n}:",
                      f"buffer_load_dword {v(vPOLL)}, {v(addr)}, {s(S_WS,4)}, {soff} offen sc1",
                      f"s_add_u32 s{sSPIN}, s{sSPIN}, 1",
                      "s_waitcnt vmcnt(0)",
                      f"v_cmp_ne_u32 vcc, {v(vT)}, {v(vPOLL)}",
                      f"s_cmp_gt_u32 s{sSPIN}, 0x20000",
                      f"s_cbranch_scc1 L_back{n}",
                      f"s_cbranch_vccnz L_spin{n}",
                      f"s_branch L_back{n}"]

    def publish(self, soff):
        return self.e(f"buffer_store_dword {v(vT)}, {v(vL0)}, {s(S_WS,4)}, {soff} offen sc1")

    def prologue(self):
        e = self.e
        e("s_cmp_ge_u32 s2, 256")
        e("s_cbranch_scc1 L_end")
        for srd, off in ((S_X, 0), (S_WQ, 8), (S_WS, 88), (S_GW, 64), (S_B1, 40), (S_W1, 32), (S_W2, 48), (S_WO, 16), (S_B2, 56), (S_OUT, 72)):
            e(f"s_load_dwordx2 {s(srd,2)}, s[0:1], {off}")
        e(f"s_getpc_b64 {s(S_CODE,2)}")
        self.a.label("L_pc")
        e(f"s_lshr_b32 s{sLOC}, s2, 3")
        e(f"v_lshrrev_b32 v1, 6, v0")
        e(f"v_and_b32 v{vL}, 63, v0")
        e(f"s_and_b32 s{sT0}, s{sLOC}, 7")
        e(f"v_readfirstlane_b32 s{sW}, v1")
        e(f"s_mov_b32 s{S_CODE+2}, L_code_end-L_pc")
        e(f"s_mov_b32 s{S_CODE+3}, 0x20000")
        e(f"v_and_b32 v24, 7, v{vL}")
        e(f"v_lshl_add_u32 v24, v1, 3, v24")
        e(f"v_lshlrev_b32 v24, 7, v24")
        e(f"s_lshl_b32 s{sT1}, s{sT0}, 12")
        e(f"buffer_load_dword v25, v24, {s(S_CODE,4)}, s{sT1} offen")
        e(f"s_lshr_b32 s{sT1}, s{sLOC}, 3")
        e(f"s_bfe_u32 s{sR}, s2, 0x20001")
        e(f"s_lshl_b32 s{sR}, s{sR}, 2")
        e(f"s_add_u32 s{sR}, s{sR}, s{sT1}")
        e(f"s_and_b32 s{sC}, s2, 1")
        e(f"s_lshl_b32 s{sC}, s{sC}, 3")
        e(f"s_add_u32 s{sC}, s{sC}, s{sT0}")
        e(f"s_lshl_b32 s{sT1}, s{sT1}, 1")
        e(f"s_add_u32 s{sT0}, s{sT0}, s{sT1}")
        e(f"s_sub_u32 s{sT1}, s{sT0}, 7")
        e(f"s_cmp_ge_u32 s{sT0}, 7")
        e(f"s_cselect_b32 s{sG}, s{sT1}, s{sT0}")
        e(f"s_lshl_b32 s{sRB}, s{sR}, 2")
        e(f"s_add_u32 s{sRB}, s{sRB}, s{sW}")
        for srd, size in ((S_X, 2048 * 896), (S_WQ, 448 * 2688)):
            e(f"s_mov_b32 s{srd+2}, {size}")
            e(f"s_mov_b32 s{srd+3}, 0x20000")
        e(f"v_and_b32 v24, 15, v{vL}")
        e(f"s_lshl_b32 s{sT0}, s{sRB}, 5")
        e(f"v_add_u32 v24, s{sT0}, v24")
        e(f"v_mul_u32_u24 v24, 896, v24")
        e(f"v_bfe_u32 v26, v{vL}, 4, 1")
        e(f"v_lshrrev_b32 v27, 5, v{vL}")
        e(f"v_lshl_add_u32 v26, v26, 1, v27")
        e(f"v_lshl_add_u32 v{vXA0}, v26, 4, v24")
        e(f"v_add_u32 v{vXA1}, {16*896}, v{vXA0}")
        e(f"s_mul_i32 s{sT0}, s{sC}, 168")
        e(f"s_and_b32 s{sT0}, s{sT0}, 0xfffffff0")
        e(f"s_mul_i32 s{sT1}, s{sW}, {16*2688}")
        e(f"s_add_u32 s{sT0}, s{sT0}, s{sT1}")
        for i in range(3):
            e(f"v_add_u32 v24, {64*i}, v{vL}")
            e(f"v_mul_u32_u24 v26, 171, v24")
            e(f"v_lshrrev_b32 v26, 11, v26")
            e(f"v_mul_u32_u24 v27, 12, v26")
            e(f"v_sub_u32 v24, v24, v27")
            e(f"v_min_u32 v24, 10, v24")
            e(f"v_mul_u32_u24 v26, 2688, v26")
            e(f"v_lshl_add_u32 v24, v24, 4, v26")
            e(f"v_add_u32 v{vWQ+i}, s{sT0}, v24")
            if i < 2:
                e(f"s_sub_u32 s{sT0}, s{sT0}, 1024")
        e(f"s_mul_i32 s{sMQ}, s{sW}, {16*192}")
        e(f"s_add_u32 s{sMQ}, s{sMQ}, {R_Q}")
        e("s_waitcnt lgkmcnt(0)")
        self.stamp()
        self.ctok = {}
        self.issue_chunk(0, direct=True)
        for i in range(1, 7):
            e(f"s_add_u32 s{sT0}, s{sG+i-1}, 1")
            e(f"s_cmp_eq_u32 s{sT0}, 7")
            e(f"s_cselect_b32 s{sG+i}, 0, s{sT0}")
        self.issue_chunk(1, direct=True)
        for srd, size in ((S_WS, WS_SIZE), (S_GW, 896), (S_B1, 3584), (S_W1, 448 * 3584), (S_B2, 896), (S_OUT, 2048 * 896)):
            e(f"s_mov_b32 s{srd+2}, {size}")
            e(f"s_mov_b32 s{srd+3}, 0x20000")
        e(f"s_lshr_b32 s{sLIGHT}, 0x1248, s{sC}")
        e(f"s_and_b32 s{sLIGHT}, s{sLIGHT}, 1")
        e(f"s_bfm_b32 s{sT0}, s{sC}, 0")
        e(f"s_and_b32 s{sT0}, s{sT0}, 0x1248")
        e(f"s_bcnt1_i32_b32 s{sT0}, s{sT0}")
        e(f"s_lshl_b32 s{sUA}, s{sC}, 1")
        e(f"s_sub_u32 s{sUA}, s{sUA}, s{sT0}")
        e(f"s_add_u32 s{sUB}, s{sUA}, 1")
        e(f"s_sub_u32 s{sUB}, s{sUB}, s{sLIGHT}")
        e(f"v_mov_b32 v24, {E_OFF}")
        self.tE = e(f"buffer_load_dword v{vT}, v24, {s(S_WS,4)}, 0 offen sc1")
        e(f"s_lshl_b32 s{sT0}, s{sW}, 6")
        e(f"v_add_u32 v26, s{sT0}, v{vL}")
        e(f"s_lshl_b32 s{sT1}, s{sG}, 6")
        for h in range(2):
            e(f"v_add_u32 v27, s{sT1}, v26")
            if h:
                e(f"v_add_u32 v27, 256, v27")
            e(f"v_subrev_u32 v28, 448, v27")
            e(f"v_min_u32 v27, v27, v28")
            e(f"v_lshlrev_b32 v27, 1, v27")
            e(f"buffer_load_ushort v{30+h}, v27, {s(S_GW,4)}, 0 offen")
        e(f"s_lshl_b32 s{sT0}, s{sUA}, 7")
        e(f"s_cmp_eq_u32 s{sLIGHT}, 1")
        e(f"s_cselect_b32 s{sT0}, {OOB}, s{sT0}")
        e(f"s_lshl_b32 s{sT1}, s{sUB}, 7")
        e(f"s_sub_u32 s{sT1}, s{sT1}, 128")
        e(f"s_mov_b32 s{sHI}, 0")
        e(f"s_mov_b32 s{sHI+1}, -1")
        e(f"v_mov_b32 v27, s{sT0}")
        e(f"v_mov_b32 v28, s{sT1}")
        e(f"v_cndmask_b32 v27, v27, v28, {s(sHI,2)}")
        e(f"v_lshl_add_u32 v27, v{vL}, 2, v27")
        e(f"s_mov_b32 m0, {TB1}")
        self.tB1 = e(f"buffer_load_dword v27, {s(S_B1,4)}, 0 offen lds")
        self.issue_chunk(2, direct=True)
        e(f"v_lshlrev_b32 v{vLIN}, 4, v{vL}")
        e(f"v_bfe_u32 v24, v{vL}, 2, 2")
        e(f"v_lshrrev_b32 v27, 5, v{vL}")
        e(f"v_bfe_u32 v28, v{vL}, 4, 1")
        e(f"v_and_b32 v29, 3, v{vL}")
        e(f"v_lshlrev_b32 v29, 3, v29")
        e(f"v_lshl_add_u32 v29, v28, 5, v29")
        e(f"v_lshl_add_u32 v32, v27, 3, v24")
        e(f"v_mul_u32_u24 v33, 192, v32")
        e(f"s_and_b32 s{sT0}, s{sC}, 1")
        e(f"s_lshl_b32 s{sT0}, s{sT0}, 3")
        e(f"s_add_u32 s{sT0}, s{sT0}, {R_Q}")
        e(f"v_add3_u32 v{vTRQ}, v33, v29, s{sT0}")
        e(f"v_lshrrev_b32 v33, 1, v24")
        e(f"v_lshl_add_u32 v29, v33, 6, v29")
        e(f"v_lshl_add_u32 v{vTRF0}, v32, 7, v29")
        e(f"v_xor_b32 v{vTRF1}, 64, v{vTRF0}")
        e(f"v_lshl_add_u32 v32, v27, 2, v24")
        e(f"s_mul_i32 s{sRING}, s{sW}, 12288")
        e(f"s_add_u32 s{sRING}, s{sRING}, {RING}")
        e(f"v_lshl_add_u32 v32, v32, 7, v29")
        e(f"v_add_u32 v{vBT0}, s{sRING}, v32")
        e(f"v_xor_b32 v{vBT1}, 64, v{vBT0}")
        e(f"v_lshlrev_b32 v{vTBL}, 3, v27")

    def issue_chunk(self, i, direct=False):
        toks = []
        self.ctok[i] = toks
        def emit(t, tok=False):
            if direct:
                r = self.e(t)
                if tok:
                    toks.append(r)
            elif tok:
                self.push(lambda t=t: toks.append(self.e(t)))
            else:
                self.pe(t)
        emit(f"s_lshl_b32 s{sT2}, s{sG+i}, 7")
        emit(f"s_mul_i32 s{sT3}, s{sG+i}, {64*2688}")
        emit(f"s_add_u32 m0, s{sMQ}, {i*64*192}")
        for kk in range(2):
            for b in range(2):
                f = 4 * i + 2 * kk + b
                emit(f"buffer_load_dwordx4 {v(vX+4*f,4)}, v{vXA0+b}, {s(S_X,4)}, s{sT2} offen offset:{64*kk}", True)
            if kk == 0:
                emit(f"buffer_load_dwordx4 v{vWQ}, {s(S_WQ,4)}, s{sT3} offen lds", True)
        for k in range(1, 3):
            emit(f"buffer_load_dwordx4 v{vWQ+k}, {s(S_WQ,4)}, s{sT3} offen offset:{1024*k} lds", True)

    def issue_w1(self, unit, i):
        toks = []
        self.wtok[(unit, i)] = toks
        self.pe(f"s_mul_i32 s{sT3}, s{sG+i}, {64*3584}")
        if unit == 0:
            self.pe(f"s_add_u32 s{sMA}, s{sMA}, s{sT2}")
            self.pe(f"s_mov_b32 m0, s{sMA}")
        else:
            self.pe(f"s_add_u32 m0, s{sMB}, {i*64*128}")
        for k in range(2):
            t = f"buffer_load_dwordx4 v{vW1A0+k}, {s(S_W1,4)}, s{sT3} offen" + (f" offset:{1024*k}" if k else "") + " lds"
            self.push(lambda t=t: toks.append(self.e(t)))

    def setup_misc(self):
        pe = self.pe
        pe(f"s_cmp_eq_u32 s{sLIGHT}, 1")
        pe(f"s_cselect_b64 {s(sM,2)}, -1, 0")
        pe(f"v_bfe_u32 v27, v26, 1, 1")
        pe(f"v_lshlrev_b32 v28, 7, v26")
        pe(f"v_lshl_add_u32 v28, v27, 6, v28")
        pe(f"v_mov_b32 v29, {DUMMY+4096}")
        pe(f"v_cndmask_b32 v27, v29, v28, {s(sM,2)}")
        pe(f"v_cmp_gt_u32 vcc, 192, v26")
        pe(f"v_add_u32 v28, {256*128}, v28")
        pe(f"s_and_b64 {s(sM,2)}, {s(sM,2)}, vcc")
        pe(f"ds_write_b16 v27, v30")
        pe(f"v_cndmask_b32 v28, v29, v28, {s(sM,2)}")
        pe(f"ds_write_b16 v28, v31")
        pe(f"v_lshrrev_b32 v24, 3, v{vL}")
        pe(f"v_bfe_u32 v27, v{vL}, 4, 1")
        pe(f"v_lshlrev_b32 v27, 2, v27")
        pe(f"v_and_b32 v28, 7, v{vL}")
        pe(f"v_xor_b32 v27, v27, v28")
        pe(f"v_lshlrev_b32 v27, 4, v27")
        pe(f"v_mul_u32_u24 v28, 3584, v24")
        pe(f"s_mul_i32 s{sT0}, s{sW}, {16*3584}")
        pe(f"s_lshl_b32 s{sT1}, s{sUA}, 7")
        pe(f"s_add_u32 s{sT0}, s{sT0}, s{sT1}")
        pe(f"s_cmp_eq_u32 s{sLIGHT}, 1")
        pe(f"s_cselect_b32 s{sT0}, {OOB}, s{sT0}")
        pe(f"v_add3_u32 v{vW1A0}, v28, v27, s{sT0}")
        pe(f"v_add_u32 v{vW1A1}, {8*3584-1024}, v{vW1A0}")
        pe(f"s_lshl_b32 s{sMB}, s{sW}, 11")
        pe(f"s_sub_u32 s{sMA}, s{sMB}, {64*128 - R_A}")
        pe(f"s_add_u32 s{sMB}, s{sMB}, {R_B}")
        pe(f"s_cmp_eq_u32 s{sLIGHT}, 1")
        pe(f"s_cselect_b32 s{sMA}, {DUMMY}, s{sMA}")
        pe(f"s_and_b32 s{sT0}, s2, 7")
        pe(f"s_and_b32 s{sT1}, s{sLOC}, 1")
        pe(f"s_lshl_b32 s{sJ}, s{sT0}, 1")
        pe(f"s_add_u32 s{sJ}, s{sJ}, s{sT1}")
        pe(f"s_lshr_b32 s{sRA}, s{sLOC}, 1")
        pe(f"s_mul_i32 s{sT1}, s{sLOC}, 37")
        pe(f"s_lshr_b32 s{sT1}, s{sT1}, 8")
        pe(f"s_mul_i32 s{sCT}, s{sT1}, 7")
        pe(f"s_sub_u32 s{sCT}, s{sLOC}, s{sCT}")
        pe(f"s_lshl_b32 s{sRB0}, s{sT0}, 2")
        pe(f"s_add_u32 s{sRB0}, s{sRB0}, s{sT1}")
        pe(f"s_lshl_b32 s{sRB0}, s{sRB0}, 1")
        pe(f"s_lshl_b32 s{sT1}, s{sT1}, 2")
        pe(f"s_lshr_b32 s{sT1}, 0xa370, s{sT1}")
        pe(f"s_and_b32 s{sT1}, s{sT1}, 15")
        pe(f"s_lshl_b32 s{sROT2}, s{sCT}, 1")
        pe(f"s_add_u32 s{sROT2}, s{sROT2}, s{sT1}")
        pe(f"s_sub_u32 s{sT1}, s{sROT2}, 14")
        pe(f"s_cmp_ge_u32 s{sROT2}, 14")
        pe(f"s_cselect_b32 s{sROT2}, s{sT1}, s{sROT2}")
        pe(f"s_cmp_lt_u32 s{sLOC}, 28")
        pe(f"s_cselect_b32 s{S_W2+2}, {1792*896}, 0")
        pe(f"s_cselect_b32 s{S_WO+2}, {448*896}, 0")
        pe(f"s_mov_b32 s{S_W2+3}, 0x20000")
        pe(f"s_mov_b32 s{S_WO+3}, 0x20000")
        pe(f"v_mul_u32_u24 v28, 896, v24")
        pe(f"s_lshl_b32 s{sT0}, s{sCT}, 7")
        pe(f"v_add3_u32 v{vBD}, v28, v27, s{sT0}")
        for k in range(1, 4):
            pe(f"v_add_u32 v{vBD+k}, {k*(7168-1024)}, v{vBD}")
        pe(f"s_mul_i32 s{sBEND}, s{sW}, {448*896}")
        pe(f"s_mul_i32 s{sBOFF}, s{sROT2}, {32*896}")
        pe(f"s_add_u32 s{sBOFF}, s{sBOFF}, s{sBEND}")
        pe(f"s_add_u32 s{sBEND}, s{sBEND}, {448*896}")
        pe(f"v_and_b32 v24, 3, v{vL}")
        pe(f"v_lshrrev_b32 v27, 5, v{vL}")
        pe(f"v_lshl_add_u32 v24, v27, 2, v24")
        pe(f"v_bfe_u32 v27, v{vL}, 2, 3")
        pe(f"v_lshl_add_u32 v24, v27, 3, v24")
        pe(f"v_lshlrev_b32 v{vPV}, 4, v24")
        pe(f"v_cmp_eq_u32 vcc, 0, v{vL}")
        pe(f"v_mov_b32 v24, {OOB}")
        pe(f"v_mov_b32 v{vK1}, {K1}")
        pe(f"v_cndmask_b32 v{vL0}, v24, 0, vcc")
        pe(f"v_mov_b32 v{vK1+1}, {K1}")
        pe(f"s_mov_b32 s{sK2}, {K2}")
        pe(f"s_mov_b32 s{sK2+1}, {K2}")

    def bias_init(self, acc, tbl, factor=None):
        for t in range(2):
            for mm in range(2):
                o = (tbl % 2048) // 8 + 8 * t + 4 * mm
                self.pe(f"ds_read2_b64 {v(vTMP+8*t+4*mm,4)}, v{vTBL} offset0:{o} offset1:{o+2}")
        for t in range(2):
            for m in range(4):
                for d in range(2):
                    src = vTMP + 8 * t + 2 * m + d
                    dst = acc + 16 * t + 4 * m + 2 * d
                    self.pe(f"v_lshlrev_b32 v{dst}, 16, v{src}")
                    self.pe(f"v_and_b32 v{dst+1}, 0xffff0000, v{src}")
                    if factor:
                        self.pe(f"v_mul_f32 v{dst}, {factor}, v{dst}")
                        self.pe(f"v_mul_f32 v{dst+1}, {factor}, v{dst+1}")

    def rd_q(self, sidx, t):
        base = vWR + 12 * (sidx & 1) + 4 * t
        o = 56 * t + (sidx % 14) * 3072
        for h in range(2):
            self.e(f"ds_read_b64_tr_b16 {v(base+2*h,2)}, v{vTRQ} offset:{o+768*h}")

    def rd_f(self, sidx, t):
        base = vWR + 8 * (sidx % 3) + 4 * t
        for h in range(2):
            self.e(f"ds_read_b64_tr_b16 {v(base+2*h,2)}, v{vTRF0+t} offset:{sidx*2048+512*h}")

    def open_chunk(self, i):
        self.a.need(*self.ctok[i])
        self.e("s_barrier")
        for p in range(2):
            f = 4 * i + 2 * p
            for r in range(4):
                self.e(f"v_permlane16_swap_b32 v{vX+4*f+r}, v{vX+4*f+4+r}")

    def qkv(self):
        e = self.e
        self.wtok = {}
        self.open_chunk(0)
        self.stamp()
        for t in range(3):
            self.rd_q(0, t)
        for sidx in range(28):
            i = sidx // 4
            if sidx % 4 == 0:
                if i == 0:
                    self.issue_chunk(3)
                    self.setup_misc()
                elif i <= 3:
                    self.issue_chunk(i + 3)
                if i == 1:
                    self.push(lambda: self.a.need(self.tB1), 0)
                    self.pe(f"v_add_u32 v{vTBL}, {TB1 - TB1 % 2048}, v{vTBL}")
                    self.bias_init(vACC + 48, TB1)
                if i == 4:
                    self.pe(f"s_cmp_eq_u32 s{sLIGHT}, 1")
                    self.pe(f"s_cselect_b32 s{sT2}, 0, {64*128}")
                if i >= 4:
                    for k in ((0, 1, 2), (3, 4), (5, 6))[i - 4]:
                        self.issue_w1(0, k)
            for t in range(3):
                acc = v(vACC + 16 * t, 16)
                e(f"v_mfma_f32_32x32x16_bf16 {acc}, {v(vWR+12*(sidx&1)+4*t,4)}, {v(vX+4*sidx,4)}, {acc if sidx else 0}")
                if t == 0 and sidx % 4 == 3:
                    self.drain()
                    if sidx < 27:
                        self.open_chunk(i + 1)
                    else:
                        self.a.need(*self.wtok[(0, 0)])
                        e("s_waitcnt lgkmcnt(0)")
                        e("s_barrier")
                if t == 0 and sidx == 13:
                    e(f"v_add_u32 v{vTRQ}, {14*3072}, v{vTRQ}")
                if sidx < 27:
                    self.rd_q(sidx + 1, t)
                elif t < 2:
                    self.rd_f(0, t)
                self.fill(16)

    def qkv_epilogue(self):
        pe = self.pe
        self.tQKV = []
        for t in range(3):
            acc = vACC + 16 * t
            pe(f"s_mul_i32 s{sT0}, s{sC}, 3")
            pe(f"s_add_u32 s{sT0}, s{sT0}, {t}")
            pe(f"s_cmp_lt_u32 s{sT0}, 16")
            pe(f"s_cselect_b32 s{sT1}, {QSCALE}, 1.0")
            for k in range(16):
                pe(f"v_mul_f32 v{acc+k}, s{sT1}, v{acc+k}")
            pe(f"s_cmp_ge_u32 s{sT0}, 32")
            pe(f"s_cselect_b64 {s(sM,2)}, -1, 0")
            pe(f"s_cselect_b32 s{sT2}, 0x3f80, 0")
            pe(f"s_cselect_b32 s{sT1}, 128, 0")
            pe(f"v_mov_b32 v{vTMP+10}, s{sT2}")
            pe(f"v_cndmask_b32 v{vTMP+8}, v{vLIN}, v{vPV}, {s(sM,2)}")
            pe(f"s_lshl_b32 s{sT0}, s{sT0}, 6")
            pe(f"v_xor_b32 v{vTMP+9}, s{sT1}, v{vTMP+8}")
            pe(f"s_add_u32 s{sT0}, s{sT0}, s{sRB}")
            pe(f"s_lshl_b32 s{sT0}, s{sT0}, 11")
            for k in range(8):
                pe(f"v_cvt_pk_bf16_f32 v{vTMP+k}, v{acc+2*k}, v{acc+2*k+1}")
                if k == 3:
                    tt = f"buffer_store_dwordx4 {v(vTMP,4)}, v{vTMP+8}, {s(S_WS,4)}, s{sT0} offen sc1"
                    self.push(lambda tt=tt: self.tQKV.append(self.e(tt)))
            pe(f"v_cndmask_b32 v{vTMP+6}, v{vTMP+6}, v{vTMP+10}, {s(sHI,2)}")
            pe(f"v_cndmask_b32 v{vTMP+7}, v{vTMP+7}, 0, {s(sHI,2)}")
            tt = f"buffer_store_dwordx4 {v(vTMP+4,4)}, v{vTMP+9}, {s(S_WS,4)}, s{sT0} offen offset:1024 sc1"
            self.push(lambda tt=tt: self.tQKV.append(self.e(tt)))

    def b_dma(self, p):
        toks = []
        self.btok[p] = toks
        srd = S_W2 if p < 14 else S_WO
        if p == 14:
            self.pe(f"s_mul_i32 s{sBOFF}, s{sW}, {112*896}")
        self.pe(f"s_add_u32 m0, s{sRING}, {(p % 3)*4096}")
        for k in range(4):
            t = f"buffer_load_dwordx4 v{vBD+k}, {s(srd,4)}, s{sBOFF} offen" + (f" offset:{1024*k}" if k else "") + " lds"
            self.push(lambda t=t: toks.append(self.e(t)))
        if p < 13:
            self.pe(f"s_add_u32 s{sBOFF}, s{sBOFF}, {32*896}")
            self.pe(f"s_cmp_eq_u32 s{sBOFF}, s{sBEND}")
            self.pe(f"s_cselect_b32 s{sM2}, {448*896}, 0")
            self.pe(f"s_sub_u32 s{sBOFF}, s{sBOFF}, s{sM2}")
        elif p >= 14:
            self.pe(f"s_add_u32 s{sBOFF}, s{sBOFF}, {28*896}")

    def b_read(self, p):
        toks = []
        self.btr[p] = toks
        self.push(lambda: self.a.need(*self.btok[p]), 4)
        for ks in range(2):
            for t in range(2):
                for h in range(2):
                    dst = a_(16 * (p % 16) + 8 * ks + 4 * t + 2 * h, 2)
                    tt = f"ds_read_b64_tr_b16 {dst}, v{vBT0+t} offset:{(p%3)*4096+ks*2048+h*1024}"
                    self.push(lambda tt=tt: toks.append(self.e(tt)))

    def b_step(self):
        p = self.bnext
        if p >= 16:
            return
        self.bnext += 1
        self.b_read(p)
        if p + 3 < 18:
            self.push(lambda: self.a.need(*self.btr[p]), 4)
            self.b_dma(p + 3)

    def gelu_q(self, acc, soff, toks, packed):
        pe = self.pe
        T = vTMP + 8
        for t in range(2):
            for half in range(2):
                for k in range(4):
                    u = acc + 16 * t + 8 * half + 2 * k
                    t0 = T + 2 * (k & 1)
                    if packed:
                        pe(f"v_pk_mul_f32 {v(t0,2)}, {v(u,2)}, {v(u,2)}")
                        pe(f"v_pk_fma_f32 {v(t0,2)}, {v(t0,2)}, {s(sK2,2)}, {v(vK1,2)}")
                        pe(f"v_pk_mul_f32 {v(t0,2)}, {v(t0,2)}, {v(u,2)}")
                        pe(f"v_exp_f32 v{t0}, v{t0}")
                        pe(f"v_exp_f32 v{t0+1}, v{t0+1}")
                        pe("s_nop 0")
                        pe(f"v_pk_add_f32 {v(t0,2)}, {v(t0,2)}, 1.0 op_sel_hi:[1,0]")
                        pe(f"v_rcp_f32 v{t0}, v{t0}")
                        pe(f"v_rcp_f32 v{t0+1}, v{t0+1}")
                        pe("s_nop 0")
                        pe(f"v_pk_mul_f32 {v(t0,2)}, {v(t0,2)}, {v(u,2)}")
                    else:
                        for d in range(2):
                            pe(f"v_mul_f32 v{t0+d}, v{u+d}, v{u+d}")
                        for d in range(2):
                            pe(f"v_fma_f32 v{t0+d}, v{t0+d}, s{sK2}, v{vK1}")
                        for d in range(2):
                            pe(f"v_mul_f32 v{t0+d}, v{t0+d}, v{u+d}")
                        for d in range(2):
                            pe(f"v_exp_f32 v{t0+d}, v{t0+d}")
                        for d in range(2):
                            pe(f"v_add_f32 v{t0+d}, 1.0, v{t0+d}")
                        for d in range(2):
                            pe(f"v_rcp_f32 v{t0+d}, v{t0+d}")
                        for d in range(2):
                            pe(f"v_mul_f32 v{t0+d}, v{t0+d}, v{u+d}")
                    pe(f"v_cvt_pk_bf16_f32 v{vTMP+4*half+k}, v{t0}, v{t0+1}")
                tt = f"buffer_store_dwordx4 {v(vTMP+4*half,4)}, v{vLIN}, {s(S_WS,4)}, s{soff} offen offset:{(2*t+half)*1024} sc1"
                self.push(lambda tt=tt: toks.append(self.e(tt)))
                if not packed or t + half < 2:
                    pass
                self.hook(f"gelu{t}{half}")

    def hook(self, name):
        fn = self.hooks.pop(name, None)
        if fn:
            fn()

    def ffn(self, unit):
        e = self.e
        acc0 = vACC + 48 if unit == 0 else vACC
        for sidx in range(28):
            self.hook(f"ffn{unit}_{sidx}")
            for t in range(2):
                acc = v(acc0 + 16 * t, 16)
                e(f"v_mfma_f32_32x32x16_bf16 {acc}, {v(vWR+8*(sidx%3)+4*t,4)}, {v(vX+4*sidx,4)}, {acc}")
                if t == 0 and sidx % 4 == 3:
                    if sidx < 27:
                        self.a.need(*self.wtok[(unit, sidx // 4 + 1)])
                        e("s_barrier")
                    elif unit == 0:
                        self.drain()
                        self.a.need(*self.wtok[(1, 0)])
                        e("s_waitcnt lgkmcnt(0)")
                        e("s_barrier")
                        e(f"v_add_u32 v{vTRF0}, {R_B-R_A}, v{vTRF0}")
                        e(f"v_add_u32 v{vTRF1}, {R_B-R_A}, v{vTRF1}")
                if sidx < 27:
                    self.rd_f(sidx + 1, t)
                elif unit == 0:
                    self.rd_f(0, t)
                self.fill(12 if unit == 0 else 16)

    def phase1(self):
        e, pe = self.e, self.pe
        self.hooks = {}
        self.btok, self.btr, self.bnext = {}, {}, 0
        self.qkv()
        self.stamp()
        pe(f"s_sub_u32 s{sT0}, s{sUB}, s{sUA}")
        pe(f"s_lshl_b32 s{sT0}, s{sT0}, 7")
        pe(f"s_mul_i32 s{sT1}, s{sW}, {16*3584}")
        pe(f"s_lshl_b32 s{sT2}, s{sUB}, 7")
        pe(f"s_add_u32 s{sT1}, s{sT1}, s{sT2}")
        pe(f"s_sub_u32 s{sT1}, s{sT1}, {OOB}")
        pe(f"s_cmp_eq_u32 s{sLIGHT}, 1")
        pe(f"s_cselect_b32 s{sT0}, s{sT1}, s{sT0}")
        pe(f"v_add_u32 v{vW1A0}, s{sT0}, v{vW1A0}")
        pe(f"v_add_u32 v{vW1A1}, s{sT0}, v{vW1A1}")
        for k in range(7):
            self.issue_w1(1, k)
        self.qkv_epilogue()
        self.bias_init(vACC, TB1 + 128)
        self.b_dma(0)
        self.b_dma(1)
        self.ffn(0)
        self.stamp()
        accA = vACC + 48
        self.b_dma(2)
        pe(f"v_add_u32 v{vT}, {TAG_STEP}, v{vT}")
        pe(f"s_lshl_b32 s{sT0}, s{sRB}, 4")
        pe(f"s_add_u32 s{sT0}, s{sT0}, s{sC}")
        pe(f"s_lshl_b32 s{sT0}, s{sT0}, 7")
        pe(f"s_add_u32 s{sT0}, s{sT0}, {F_BASE}")
        self.push(lambda: self.a.need(*self.tQKV))
        self.push(lambda: self.publish(f"s{sT0}"))
        pe(f"v_mul_f32 v{vGATE}, {fbits(-math.log2(math.e))}, v{accA}")
        pe(f"v_exp_f32 v{vGATE}, v{vGATE}")
        pe(f"v_lshlrev_b32 v{vGA}, 2, v{vL}")
        pe(f"v_add_f32 v{vGATE}, 1.0, v{vGATE}")
        pe(f"v_rcp_f32 v{vGATE}, v{vGATE}")
        pe(f"v_mov_b32 v{vTMP}, {OOB}")
        pe(f"v_cndmask_b32 v{vTMP}, v{vGA}, v{vTMP}, {s(sHI,2)}")
        pe(f"s_lshl_b32 s{sT0}, s{sRB}, 7")
        pe(f"s_add_u32 s{sT0}, s{sT0}, {G_BASE}")
        pe(f"s_cmp_eq_u32 s{sC}, 3")
        pe(f"s_cselect_b32 s{sT0}, s{sT0}, {OOB}")
        self.tH = []
        tt = f"buffer_store_dword v{vGATE}, v{vTMP}, {s(S_WS,4)}, s{sT0} offen sc1"
        self.push(lambda: self.tH.append(self.e(tt)))
        pe(f"s_mul_i32 s{sT1}, s{sRB}, 28")
        pe(f"s_add_u32 s{sT0}, s{sT1}, s{sUA}")
        pe(f"s_lshl_b32 s{sT0}, s{sT0}, 12")
        pe(f"s_add_u32 s{sT0}, s{sT0}, {H_BASE}")
        pe(f"s_cmp_eq_u32 s{sLIGHT}, 1")
        pe(f"s_cselect_b32 s{sMA}, {OOB}, s{sT0}")
        pe(f"s_add_u32 s{sT0}, s{sT1}, s{sUB}")
        pe(f"s_lshl_b32 s{sT0}, s{sT0}, 12")
        pe(f"s_add_u32 s{sMB}, s{sT0}, {H_BASE}")
        self.hooks["gelu00"] = self.b_step
        self.hooks["gelu01"] = lambda: (self.att_addr(), self.b_step())
        self.hooks["gelu10"] = lambda: (self.push(lambda: self.poll_issue(vF1A, 0)), self.b_step())
        self.gelu_q(accA, sMA, self.tH, packed=False)
        self.ffn(1)
        self.drain()
        self.stamp()
        self.att_loads()
        self.hooks["gelu00"] = self.b_step
        self.hooks["gelu01"] = self.b_step
        self.hooks["gelu10"] = self.b_step
        self.gelu_q(vACC, sMB, self.tH, packed=True)
        self.drain()
        self.stamp()

    vQ = 96
    vS = 144
    vCD, vM0, vM8 = 176, 192, 208
    vO = 224
    vP = 240
    vKR = 40
    vVR = 56
    vMX = 248
    vKA, vVA = 6, 7

    def att_addr(self):
        pe = self.pe
        pe(f"s_lshl_b32 s{sT0}, s{sRA}, 2")
        pe(f"s_add_u32 s{sT1}, s{sT0}, s{sW}")
        pe(f"s_sub_u32 s{sFIRST}, 8, s{sT1}")
        pe(f"s_max_i32 s{sFIRST}, s{sFIRST}, 0")
        pe(f"s_mul_i32 s{sT2}, s{sJ}, 43")
        pe(f"s_lshr_b32 s{sT2}, s{sT2}, 7")
        pe(f"s_lshl_b32 s{sT1}, s{sT1}, 4")
        pe(f"s_add_u32 s{sT1}, s{sT1}, s{sT2}")
        pe(f"v_mov_b32 v{vF1A}, s{sT1}")
        pe(f"s_mul_i32 s{sT1}, s{sW}, 3")
        pe(f"s_add_u32 s{sT0}, s{sT0}, s{sT1}")
        pe(f"s_sub_u32 s{sAEND}, s{sT0}, 8")
        T = vTMP + 12
        for part, add in ((0, 16), (1, 32)):
            pe(f"s_add_u32 s{sT2}, s{sJ}, {add}")
            pe(f"s_mul_i32 s{sT2}, s{sT2}, 43")
            pe(f"s_lshr_b32 s{sT2}, s{sT2}, 7")
            pe(f"v_subrev_u32 v{T}, {3*part}, v{vL}")
            pe(f"v_add_u32 v{T+1}, s{sAEND}, v{T}")
            pe(f"v_cmp_gt_u32 {s(sM,2)}, 3, v{T}")
            pe(f"v_cmp_le_i32 vcc, 0, v{T+1}")
            pe(f"v_lshl_add_u32 v{T+1}, v{T+1}, 4, s{sT2}")
            pe(f"s_and_b64 {s(sM,2)}, {s(sM,2)}, vcc")
            pe(f"v_cndmask_b32 v{vF1A}, v{vF1A}, v{T+1}, {s(sM,2)}")
        pe(f"v_lshlrev_b32 v{vF1A}, 7, v{vF1A}")
        pe(f"v_add_u32 v{vF1A}, {F_BASE}, v{vF1A}")

    def att_loads(self):
        e = self.e
        self.poll_check(vF1A, 0)
        self.tKV = []
        for bb in range(3):
            for part in range(2):
                e(f"s_add_u32 s{sT0}, s{sJ}, {16+16*part}")
                e(f"s_lshl_b32 s{sT0}, s{sT0}, 6")
                e(f"s_add_u32 s{sT1}, s{sAEND}, {bb}")
                e(f"s_add_u32 s{sT0}, s{sT0}, s{sT1}")
                e(f"s_lshl_b32 s{sT0}, s{sT0}, 11")
                e(f"s_cmp_lt_i32 s{sT1}, 0")
                e(f"s_cselect_b32 s{sT0}, {OOB}, s{sT0}")
                e(f"s_mul_i32 s{sT1}, s{sW}, 6144")
                e(f"s_add_u32 m0, s{sT1}, {KV+24576*part+2048*bb}")
                for k in range(2):
                    self.tKV.append(e(f"buffer_load_dwordx4 v{vLIN}, {s(S_WS,4)}, s{sT0} offen" + (" offset:1024" if k else "") + " sc1 lds"))
        e(f"s_lshl_b32 s{sT0}, s{sJ}, 4")
        e(f"s_add_u32 s{sT0}, s{sT0}, s{sRA}")
        e(f"s_lshl_b32 s{sT0}, s{sT0}, 2")
        e(f"s_add_u32 s{sT0}, s{sT0}, s{sW}")
        e(f"s_lshl_b32 s{sT0}, s{sT0}, 11")
        for k in range(2):
            e(f"buffer_load_dwordx4 {v(self.vQ+4*k,4)}, v{vLIN}, {s(S_WS,4)}, s{sT0} offen offset:{1024*k} sc1")

    def rd_k(self, i):
        for k in range(2):
            self.e(f"ds_read_b128 {v(self.vKR+8*(i&1)+4*k,4)}, v{self.vKA} offset:{i*2048+k*1024}")

    def rd_v(self, i, st):
        for h in range(2):
            self.e(f"ds_read_b64_tr_b16 {v(self.vVR+4*st+2*h,2)}, v{self.vVA} offset:{i*2048+256*(2*st+h)}")

    def qk(self, i, k):
        S = v(self.vS + 16 * (i & 1), 16)
        C = S if k else v(self.vM0 if i == 0 else self.vM8 if i == 8 else self.vCD, 16)
        self.e(f"v_mfma_f32_32x32x16_bf16 {S}, {v(self.vKR+8*(i&1)+4*k,4)}, {v(self.vQ+4*k,4)}, {C}")

    def patch(self, i, src):
        if not 2 <= i <= 7:
            return
        self.nlab += 1
        n = self.nlab
        self.e(f"s_cmp_eq_u32 s{sFIRST}, {i}")
        self.e(f"s_cbranch_scc1 L_pat{n}")
        self.a.label(f"L_patb{n}")
        self.tail += [f"L_pat{n}:", "s_nop 7"] + [f"v_mov_b32 v{self.vCD+k}, {src}" for k in range(16)] + ["s_nop 1", f"s_branch L_patb{n}"]

    def attention(self):
        e, pe = self.e, self.pe
        vS, vMX = self.vS, self.vMX
        e(f"v_and_b32 v24, 31, v{vL}")
        e(f"v_lshrrev_b32 v25, 5, v{vL}")
        e(f"v_lshlrev_b32 v26, 2, v25")
        e(f"v_sub_u32 v24, v24, v26")
        e(f"s_cmp_gt_u32 s{sFIRST}, 0")
        e(f"s_cselect_b32 s{sT0}, {NINF}, 0")
        e(f"v_mov_b32 v26, s{sT0}")
        e(f"v_mov_b32 v27, {NINF}")
        e(f"s_cmp_gt_u32 s{sFIRST}, 1")
        e(f"s_cselect_b32 s{sT0}, {NINF}, 0")
        prs = (sM, sM2, sM3)
        for j0 in range(0, 16, 2):
            for d in range(2):
                jj = j0 + d
                e(f"v_cmp_le_i32 {s(prs[d],2)}, {(jj&3)+8*(jj>>2)}, v24")
            for d in range(2):
                e(f"v_mov_b32 v{self.vCD+j0+d}, s{sT0}")
            for d in range(2):
                jj = j0 + d
                e(f"v_cndmask_b32 v{self.vM8+jj}, v27, 0, {s(prs[d],2)}")
                e(f"v_cndmask_b32 v{self.vM0+jj}, v26, v27, {s(prs[d],2)}")
        e(f"s_lshl_b32 s{sT0}, s{sW}, 11")
        e(f"v_add_u32 v{self.vKA}, s{sT0}, v{vLIN}")
        e(f"v_bfe_u32 v26, v{vL}, 4, 1")
        e(f"v_xor_b32 v25, v25, v26")
        e(f"v_bfe_u32 v27, v{vL}, 2, 2")
        e(f"v_lshl_add_u32 v27, v25, 3, v27")
        e(f"v_and_b32 v25, 1, v{vL}")
        e(f"v_lshl_add_u32 v27, v25, 2, v27")
        e(f"v_lshlrev_b32 v27, 4, v27")
        e(f"v_lshl_add_u32 v27, v26, 10, v27")
        e(f"v_bfe_u32 v25, v{vL}, 1, 1")
        e(f"v_lshl_add_u32 v27, v25, 3, v27")
        e(f"s_add_u32 s{sT0}, s{sT0}, {KV+24576}")
        e(f"v_add_u32 v{self.vVA}, s{sT0}, v27")
        self.a.need(*self.tKV)
        e("s_barrier")
        self.stamp()
        e(f"v_lshlrev_b32 v24, 2, v{vL}")
        e(f"s_lshl_b32 s{sT0}, s{sCT}, 7")
        e(f"s_mov_b32 m0, {TB2}")
        self.rd_k(0)
        self.tB2 = e(f"buffer_load_dword v24, {s(S_B2,4)}, s{sT0} offen lds")
        e(f"v_mov_b32 v{vMX}, {NINF}")
        e(f"v_mov_b32 v{vMX+1}, {NINF}")
        self.b_step()
        for i in range(10):
            if i < 9:
                self.patch(i, "0")
                self.qk(i, 0)
                if i < 8:
                    self.rd_k(i + 1)
                self.fill(8)
                self.qk(i, 1)
                if i == 8:
                    self.rd_k(0)
            if i > 0:
                S = vS + 16 * ((i - 1) & 1)
                for k in range(8):
                    e(f"v_max3_f32 v{vMX+(k&1)}, v{S+2*k}, v{S+2*k+1}, v{vMX+(k&1)}")
            if i == 4:
                self.b_step()
        self.drain()
        e(f"s_lshl_b32 s{sT0}, s{sRB}, 4")
        e(f"s_add_u32 s{sT0}, s{sT0}, s{sC}")
        e(f"s_lshl_b32 s{sT0}, s{sT0}, 7")
        e(f"s_add_u32 s{sT0}, s{sT0}, {F_BASE+1024*128}")
        e(f"v_max_f32 v{vMX}, v{vMX}, v{vMX+1}")
        e(f"v_mov_b32 v{vMX+1}, v{vMX}")
        self.a.need(*self.tH)
        self.publish(f"s{sT0}")
        e(f"v_permlane32_swap_b32 v{vMX}, v{vMX+1}")
        e(f"v_max_f32 v{vMX}, v{vMX}, v{vMX+1}")
        e(f"v_sub_f32 v{vMX}, 0, v{vMX}")
        e(f"s_cmp_gt_u32 s{sFIRST}, 1")
        e(f"s_cselect_b32 s{sT0}, {NINF}, 0")
        for k in range(16):
            e(f"v_add_f32 v{self.vM0+k}, v{self.vM0+k}, v{vMX}")
        self.qk(0, 0)
        self.rd_k(1)
        self.qk(0, 1)
        e(f"v_add_f32 v{vMX+1}, s{sT0}, v{vMX}")
        for k in range(16):
            e(f"v_mov_b32 v{self.vCD+k}, v{vMX+1}")
        for k in range(16):
            e(f"v_add_f32 v{self.vM8+k}, v{self.vM8+k}, v{vMX}")
        self.stamp()
        for i in range(9):
            S = vS + 16 * (i & 1)
            if i in (0, 2, 3, 5, 6):
                self.b_step()
            if i == 1:
                self.de_addr()
            if i == 4:
                self.push(lambda: self.poll_issue(vF23A, f"s{sM2+1}"))
            if i == 7:
                self.drain()
                self.de_start()
            if i < 8:
                self.patch(i + 1, f"v{vMX}")
                self.qk(i + 1, 0)
            self.rd_v(i, 0)
            for k in range(3):
                e(f"v_exp_f32 v{S+k}, v{S+k}")
            if i < 8:
                self.qk(i + 1, 1)
                if i < 7:
                    self.rd_k(i + 2)
            self.rd_v(i, 1)
            for k in range(3, 9):
                e(f"v_exp_f32 v{S+k}, v{S+k}")
            for k in range(4):
                e(f"v_cvt_pk_bf16_f32 v{self.vP+k}, v{S+2*k}, v{S+2*k+1}")
            e(f"v_exp_f32 v{S+9}, v{S+9}")
            e(f"v_exp_f32 v{S+10}, v{S+10}")
            O = v(self.vO, 16)
            e(f"v_mfma_f32_32x32x16_bf16 {O}, {v(self.vVR,4)}, {v(self.vP,4)}, {O if i else 0}")
            for k in range(11, 16):
                e(f"v_exp_f32 v{S+k}, v{S+k}")
            self.fill(40)
            for k in range(4, 8):
                e(f"v_cvt_pk_bf16_f32 v{self.vP+k}, v{S+2*k}, v{S+2*k+1}")
            self.fill(8)
            e(f"v_mfma_f32_32x32x16_bf16 {O}, {v(self.vVR+4,4)}, {v(self.vP+4,4)}, {O}")
            self.fill(40)
        self.drain()
        e(f"s_lshl_b32 s{sT0}, s{sRA}, 2")
        e(f"s_add_u32 s{sT0}, s{sT0}, s{sW}")
        e(f"s_lshl_b32 s{sT0}, s{sT0}, 4")
        e(f"s_add_u32 s{sT0}, s{sT0}, s{sJ}")
        e(f"s_lshl_b32 s{sT1}, s{sT0}, 7")
        e(f"s_add_u32 s{sMA}, s{sT1}, {F_BASE+2048*128}")
        e(f"s_lshl_b32 s{sT0}, s{sT0}, 11")
        e(f"s_add_u32 s{sT0}, s{sT0}, {O_BASE}")
        e(f"v_mov_b32 v{vMX}, v{self.vO+12}")
        e(f"v_mov_b32 v{vMX+1}, v{self.vO+12}")
        e(f"v_permlane32_swap_b32 v{vMX}, v{vMX+1}")
        e(f"v_rcp_f32 v{vMX}, v{vMX+1}")
        e(f"v_rcp_f32 v{vMX+1}, v{vMX+1}")
        for k in range(8):
            e(f"v_pk_mul_f32 {v(self.vO+2*k,2)}, {v(self.vO+2*k,2)}, {v(vMX,2)}")
        self.tO = []
        for k in range(8):
            e(f"v_cvt_pk_bf16_f32 v{self.vP+k}, v{self.vO+2*k}, v{self.vO+2*k+1}")
            if k == 3:
                self.tO.append(e(f"buffer_store_dwordx4 {v(self.vP,4)}, v{vLIN}, {s(S_WS,4)}, s{sT0} offen sc1"))
        e(f"v_cndmask_b32 v{self.vP+6}, v{self.vP+6}, 0, {s(sHI,2)}")
        self.tO.append(e(f"buffer_store_dwordx4 {v(self.vP+4,4)}, v{vLIN}, {s(S_WS,4)}, s{sT0} offen offset:1024 sc1"))
        self.stamp()

    vAR = 64
    vAB = 144
    vAA = 40
    vA1H, vA1O, vG = 8, 9, 10

    def ar(self, p, k):
        slot = p % 4
        return (64, 80, 104, 120)[slot] + 4 * k

    def de_addr(self):
        pe = self.pe
        T = vTMP + 12
        pe(f"v_bfe_u32 v{T}, v{vL}, 2, 1")
        pe(f"v_and_b32 v{T+1}, 3, v{vL}")
        pe(f"s_lshl_b32 s{sT0}, s{sW}, 2")
        pe(f"v_add_u32 v{T+1}, s{sT0}, v{T+1}")
        pe(f"v_cmp_gt_u32 vcc, 8, v{vL}")
        pe(f"v_lshl_add_u32 v{T+1}, v{T}, 4, v{T+1}")
        pe(f"v_and_b32 v{T}, 1, v{vL}")
        pe(f"v_lshl_add_u32 v{T}, v{T}, 4, 3")
        pe(f"v_cndmask_b32 v{vF23A}, v{T}, v{T+1}, vcc")
        pe(f"v_lshlrev_b32 v{vF23A}, 7, v{vF23A}")
        pe(f"s_lshl_b32 s{sM2+1}, s{sRB0}, 11")
        pe(f"s_add_u32 s{sM2+1}, s{sM2+1}, {F_BASE+1024*128}")
        pe(f"v_add_u32 v{self.vA1H}, {112*1024}, v{vLIN}")
        pe(f"v_add_u32 v{self.vA1O}, {32*1024}, v{vLIN}")
        pe(f"s_mul_i32 s{sAEND}, s{sRB0}, 112")
        pe(f"s_mul_i32 s{sT0}, s{sW}, 28")
        pe(f"s_add_u32 s{sAEND}, s{sAEND}, s{sT0}")
        pe(f"s_lshl_b32 s{sAEND}, s{sAEND}, 10")
        pe(f"s_add_u32 s{sAEND}, s{sAEND}, {H_BASE}")
        pe(f"s_lshl_b32 s{sAOFF}, s{sROT2}, 11")
        pe(f"s_add_u32 s{sAOFF}, s{sAOFF}, s{sAEND}")
        pe(f"s_add_u32 s{sAEND}, s{sAEND}, {28*1024}")
        pe(f"v_and_b32 v{vGA}, 31, v{vL}")
        pe(f"v_lshlrev_b32 v{vGA}, 2, v{vGA}")
        pe(f"s_cmp_lt_u32 s{sLOC}, 28")
        pe(f"s_cselect_b32 s{sAOFF}, s{sAOFF}, {OOB}")

    def a_load(self, p, queued=True):
        out = []
        if p == 14:
            out.append(f"s_lshl_b32 s{sAOFF}, s{sRB0}, 2")
            out.append(f"s_add_u32 s{sAOFF}, s{sAOFF}, s{sW}")
            out.append(f"s_lshl_b32 s{sAOFF}, s{sAOFF}, 13")
            out.append(f"s_add_u32 s{sAOFF}, s{sAOFF}, {O_BASE}")
        for ks in range(2):
            for rb in range(2):
                ad = vLIN if rb == 0 else (self.vA1H if p < 14 else self.vA1O)
                out.append(f"buffer_load_dwordx4 {v(self.ar(p,2*ks+rb),4)}, v{ad}, {s(S_WS,4)}, s{sAOFF} offen offset:{1024*ks} sc1")
        out.append(f"s_add_u32 s{sAOFF}, s{sAOFF}, 2048")
        if p < 13:
            out.append(f"s_cmp_eq_u32 s{sAOFF}, s{sAEND}")
            out.append(f"s_cselect_b32 s{sM2}, {28*1024}, 0")
            out.append(f"s_sub_u32 s{sAOFF}, s{sAOFF}, s{sM2}")
        for t in out:
            self.pe(t) if queued else self.e(t)

    def de_start(self):
        e = self.e
        self.nlab += 1
        n = self.nlab
        self.a.need(self.tPoll)
        e(f"s_cmp_ge_u32 s{sLOC}, 28")
        e(f"s_cbranch_scc1 L_nopoll{n}")
        self.poll_check(vF23A, f"s{sM2+1}")
        self.a.label(f"L_nopoll{n}")
        e(f"s_lshl_b32 s{sT0}, s{sRB0}, 7")
        e(f"s_add_u32 s{sT0}, s{sT0}, {G_BASE}")
        e(f"s_cmp_lt_u32 s{sLOC}, 28")
        e(f"s_cselect_b32 s{sT0}, s{sT0}, {OOB}")
        for p in range(3):
            self.a_load(p)
        for rb in range(2):
            self.pe(f"buffer_load_dword v{self.vG+rb}, v{vGA}, {s(S_WS,4)}, s{sT0} offen offset:{128*rb} sc1")

    def de(self):
        e, pe = self.e, self.pe
        e(f"s_cmp_ge_u32 s{sLOC}, 28")
        e("s_cbranch_scc1 L_idle")
        vAB, vAA, vBI = 144, 208, 208
        accb = lambda rb, t: vAB + 32 * rb + 16 * t
        acca = lambda rb, t: (208, 224, 240, 40)[2 * rb + t]
        self.a_load(3, queued=False)
        self.a.need(self.tB2)
        e(f"v_lshrrev_b32 v{vTBL}, 5, v{vL}")
        e(f"v_lshlrev_b32 v{vTBL}, 3, v{vTBL}")
        e(f"v_add_u32 v{vTBL}, {TB2 - TB2 % 2048}, v{vTBL}")
        e(f"s_cmp_eq_u32 s{sW}, 0")
        e(f"s_cselect_b32 s{sT1}, 1.0, 0")
        self.bias_init(vBI, TB2, factor=f"s{sT1}")
        while self.bnext < 16:
            self.b_step()
        self.drain()
        self.stamp()
        for p in range(18):
            if p == 2:
                self.push(lambda: self.a.need(*self.tO))
                self.push(lambda: self.publish(f"s{sMA}"))
                self.b_read(16)
            if p == 3:
                self.b_read(17)
            if p == 6:
                pe(f"s_add_u32 s{sM2+1}, s{sM2+1}, {1024*128}")
                self.push(lambda: self.poll_issue(vF23A, f"s{sM2+1}"))
            for ks in range(2):
                for rb in range(2):
                    for t in range(2):
                        acc = v(accb(rb, t) if p < 14 else acca(rb, t), 16)
                        C = acc
                        if p == 0 and ks == 0:
                            C = v(vBI + 16 * t, 16)
                        if p == 14 and ks == 0:
                            C = "0"
                        e(f"v_mfma_f32_32x32x16_bf16 {acc}, {a_(16*(p%16)+8*ks+4*t,4)}, {v(self.ar(p,2*ks+rb),4)}, {C}")
                        self.fill(16)
            self.drain()
            if p + 4 < 18:
                if p + 4 == 14:
                    self.poll_check(vF23A, f"s{sM2+1}")
                self.a_load(p + 4)
        self.stamp()
        e(f"s_mul_i32 s{sT0}, s{sW}, 12288")
        e(f"s_add_u32 s{sT0}, s{sT0}, {RED}")
        e(f"v_add_u32 v24, s{sT0}, v{vLIN}")
        e(f"v_mov_b32 v12, v{self.vG}")
        e(f"v_mov_b32 v13, v{self.vG}")
        e(f"v_mov_b32 v14, v{self.vG+1}")
        e(f"v_mov_b32 v15, v{self.vG+1}")
        for qd in range(4):
            rb, t = qd >> 1, qd & 1
            A, B = acca(rb, t), accb(rb, t)
            for k in range(8):
                e(f"v_pk_add_f32 {v(A+2*k,2)}, {v(A+2*k,2)}, {v(B+2*k,2)} neg_lo:[0,1] neg_hi:[0,1]")
            for k in range(8):
                e(f"v_pk_fma_f32 {v(B+2*k,2)}, {v(A+2*k,2)}, {v(12+2*rb,2)}, {v(B+2*k,2)}")
        for w in range(4):
            if w:
                self.a.label(f"L_wr{w}")
            if w < 3:
                e(f"s_cmp_lg_u32 s{sW}, {w}")
                e(f"s_cbranch_scc1 L_wr{w+1}")
            for d in range(1, 4):
                qd = (w + d) & 3
                for k in range(4):
                    e(f"ds_write_b128 v24, {v(vAB+16*qd+4*k,4)} offset:{(d-1)*4096+k*1024}")
            for k in range(8):
                e(f"v_mov_b64 {v(64+2*k,2)}, {v(vAB+16*w+2*k,2)}")
            e("s_waitcnt lgkmcnt(0)")
            if w < 3:
                e("s_branch L_wrdone")
        self.a.label("L_wrdone")
        for d in range(1, 4):
            e(f"s_sub_u32 s{sT0}, s{sW}, {d}")
            e(f"s_and_b32 s{sT0}, s{sT0}, 3")
            e(f"s_mul_i32 s{sT0}, s{sT0}, 12288")
            e(f"s_add_u32 s{sT0}, s{sT0}, {RED+(d-1)*4096}")
            e(f"v_add_u32 v{24+d}, s{sT0}, v{vLIN}")
        e(f"s_lshr_b32 s{sT0}, s{sW}, 1")
        e(f"s_add_u32 s{sT0}, s{sT0}, s{sRB0}")
        e(f"s_mul_i32 s{sT0}, s{sT0}, {32*896}")
        e(f"s_lshl_b32 s{sT1}, s{sCT}, 1")
        e(f"s_and_b32 s{sT2}, s{sW}, 1")
        e(f"s_add_u32 s{sT1}, s{sT1}, s{sT2}")
        e(f"s_lshl_b32 s{sT1}, s{sT1}, 6")
        e(f"s_add_u32 s{sT0}, s{sT0}, s{sT1}")
        e(f"v_and_b32 v28, 31, v{vL}")
        e(f"v_mul_u32_u24 v28, 896, v28")
        e(f"v_lshrrev_b32 v29, 5, v{vL}")
        e(f"v_lshl_add_u32 v28, v29, 4, v28")
        e("s_barrier")
        for d in range(1, 4):
            for k in range(4):
                e(f"ds_read_b128 {v(64+16*d+4*k,4)}, v{24+d} offset:{k*1024}")
        for d in range(1, 4):
            for k in range(8):
                e(f"v_pk_add_f32 {v(64+2*k,2)}, {v(64+2*k,2)}, {v(64+16*d+2*k,2)}")
        for k in range(8):
            e(f"v_cvt_pk_bf16_f32 v{32+k}, v{64+2*k}, v{64+2*k+1}")
        for hh in range(2):
            for d in range(2):
                e(f"v_permlane32_swap_b32 v{32+4*hh+d}, v{32+4*hh+2+d}")
            e(f"buffer_store_dwordx4 {v(32+4*hh,4)}, v28, {s(S_OUT,4)}, s{sT0} offen offset:{32*hh}")
        self.stamp()
        self.write_stamps()
        e("s_endpgm")
        self.a.label("L_idle")
        e("s_waitcnt vmcnt(0)")
        self.publish(f"s{sMA}")
        e("s_cmp_lg_u32 s2, 248")
        e("s_cbranch_scc1 L_end")
        e(f"s_cmp_lg_u32 s{sW}, 0")
        e("s_cbranch_scc1 L_end")
        e(f"v_lshlrev_b32 v24, 7, v{vL}")
        e(f"s_mov_b32 s{sT0}, {F_BASE}")
        e(f"s_mov_b32 s{sSPIN}, 0")
        self.a.label("L_ep")
        e(f"buffer_load_dword v25, v24, {s(S_WS,4)}, s{sT0} offen sc1")
        e(f"s_add_u32 s{sSPIN}, s{sSPIN}, 1")
        e("s_waitcnt vmcnt(0)")
        e(f"v_cmp_ne_u32 vcc, v{vT}, v25")
        e(f"s_cmp_gt_u32 s{sSPIN}, 0x20000")
        e("s_cbranch_scc1 L_epd")
        e("s_cbranch_vccnz L_ep")
        e(f"s_add_u32 s{sT0}, s{sT0}, 8192")
        e(f"s_cmp_lt_u32 s{sT0}, {F_BASE+1024*128}")
        e("s_cbranch_scc1 L_ep")
        self.a.label("L_epd")
        e(f"s_mov_b32 s{sT0}, {E_OFF}")
        self.publish(f"s{sT0}")

    def write_stamps(self):
        if not OPT["stamps"]:
            return
        e = self.e
        e(f"s_lshl_b32 s{sT0}, s2, 2")
        e(f"s_add_u32 s{sT0}, s{sT0}, s{sW}")
        e(f"s_lshl_b32 s{sT0}, s{sT0}, 6")
        e(f"s_add_u32 s{sT0}, s{sT0}, {ST_BASE}")
        for k in range(16):
            e(f"v_mov_b32 v{40+k}, " + (f"s{STREGS[k]}" if k < self.nst else "0"))
        for k in range(4):
            e(f"buffer_store_dwordx4 {v(40+4*k,4)}, v{vL0}, {s(S_WS,4)}, s{sT0} offen offset:{16*k}")

    def build(self):
        self.prologue()
        self.phase1()
        self.attention()
        self.de()
        self.a.label("L_end")
        self.e("s_endpgm")
        self.a.finalize()
        body = self.a.text() + "\n" + "\n".join(t if t.endswith(":") else "    " + t for t in self.tail) + "\nL_code_end:\n    s_endpgm\n"
        head = f"""; Fused gated mix: sliding-window attention branch + GELU FFN branch, one persistent launch.
; @launch grid=(256,1,1) block=(256,1,1) lds={LDS_SIZE}
.amdgcn_target "amdgcn-amd-amdhsa--gfx950"
.text
.globl {NAME}_kernel
.p2align 8
.type {NAME}_kernel,@function
{NAME}_kernel:
"""
        foot = f""".section .rodata,"a"
.p2align 6
.amdhsa_kernel {NAME}_kernel
  .amdhsa_next_free_vgpr 512
  .amdhsa_next_free_sgpr 102
  .amdhsa_accum_offset 256
  .amdhsa_group_segment_fixed_size 0
  .amdhsa_kernarg_size 96
  .amdhsa_user_sgpr_count 2
  .amdhsa_user_sgpr_kernarg_segment_ptr 1
  .amdhsa_system_sgpr_workgroup_id_x 1
  .amdhsa_float_denorm_mode_32 3
.end_amdhsa_kernel
"""
        return head + body + foot


if __name__ == "__main__":
    g = Gen()
    txt = g.build()
    out = sys.argv[1] if len(sys.argv) > 1 else f"cdna_kernels/{NAME}.s"
    open(out, "w").write(txt)
    kinds = {}
    for i in g.a.ins:
        kinds[i.kind] = kinds.get(i.kind, 0) + 1
    print(out, g.a.stats, kinds)
```

```python
import math, struct, sys
from collections import deque
sys.path.insert(0, "tools")
from asmlib import Asm, Ins, v, a_, s

NAME = "gated_mix__sliding_block__dense_activation_gelu__prompt"
OPT = dict(stamps=0, stop=99, dbg=0)
for arg in sys.argv[2:]:
    k, val = arg.split("=")
    OPT[k] = int(val)


def fbits(x):
    return struct.unpack("<I", struct.pack("<f", x))[0]


QKV_BASE, H_BASE, O_BASE, G_BASE = 0, 0x600000, 0xD00000, 0xF00000
F_BASE, E_OFF, ST_BASE, WS_SIZE = 0xF10000, 0xF80000, 0xFA0000, 0x1000000
OOB = 0x40000000
TAG_STEP = 0x6B43A9B7
R_A, R_Q, R_B, RING = 0, 57344, 57344, 114688
KV = 0
TB1, DUMMY, TB2, RED = 163328, 147456, 57344, 58368
LDS_SIZE = 163840
S_CODE, S_X, S_WQ, S_W1, S_WS, S_W2, S_WO, S_OUT, S_B1, S_B2, S_GW = 4, 8, 12, 16, 20, 24, 28, 32, 36, 40, 44
sW, sR, sC, sLIGHT, sUA, sUB, sJ, sRA, sRB0, sCT, sROT2, sLOC = range(48, 60)
sT0, sT1, sT2, sT3 = 60, 61, 62, 63
sHI = 64
sM = 66
sG = 68
sRB = 75
sMQ, sMA, sMB, sRING = 76, 77, 78, 79
sBOFF, sBEND, sAOFF, sAEND, sFIRST, sSPIN = 80, 81, 82, 83, 84, 85
sM2, sM3 = 86, 88
sK2 = 90
sST = 92
STREGS = list(range(92, 102)) + [4, 5, 6, 7, 0, 1]
vL = 0
vLIN = 1
vT = 2
vL0 = 3
vK1 = 4
vTRQ, vTRF0, vTRF1 = 6, 7, 8
vW1A0, vW1A1 = 9, 10
vPV = 11
vBD = 12
vBT0, vBT1 = 16, 17
vXA0, vXA1 = 18, 19
vWQ = 20
vTBL = 23
vTMP = 24
vWR = 40
vACC = 64
vX = 144
vF1A, vF23A, vPOLL, vGA = 18, 19, 20, 21
vGATE = 22

C_GELU = -2.0 * math.sqrt(2.0 / math.pi) * math.log2(math.e)
K1, K2 = fbits(C_GELU), fbits(C_GELU * 0.044715)
QSCALE = fbits(math.log2(math.e) / math.sqrt(28.0))
NINF = 0xFF800000


class Gen:
    def __init__(self):
        self.a = Asm()
        self.q = deque()
        self.tail = []
        self.nst = 0
        self.nlab = 0

    def e(self, t):
        return self.a.e(t)

    def push(self, fn, cost=4):
        self.q.append((fn, cost))

    def pe(self, t, cost=None):
        if cost is None:
            cost = 8 if Ins(t).kind == "trans" else 4
        if t.startswith("s_cselect"):
            fn, c = self.q.pop()
            assert getattr(fn, "scc", False), "s_cselect must follow its s_cmp directly: " + t
            g = lambda fn=fn, t=t: (fn(), self.e(t))
            g.scc = True
            self.q.append((g, c + cost))
            return
        f = lambda t=t: self.e(t)
        f.scc = t.startswith("s_cmp")
        self.q.append((f, cost))

    def fill(self, budget):
        while self.q and budget >= min(self.q[0][1], 8):
            fn, c = self.q.popleft()
            fn()
            budget -= c

    def drain(self):
        while self.q:
            self.q.popleft()[0]()

    def stamp(self, group=1):
        if (OPT["stamps"] == group or (OPT["stamps"] and self.nst == 0)) and self.nst < len(STREGS):
            self.e(f"s_memtime s[{sM3}:{sM3+1}]")
            self.e("s_waitcnt lgkmcnt(0)")
            self.e(f"s_mov_b32 s{STREGS[self.nst]}, s{sM3}")
            self.nst += 1

    def poll_issue(self, addr, soff):
        self.tPoll = self.e(f"buffer_load_dword {v(vPOLL)}, {v(addr)}, {s(S_WS,4)}, {soff} offen sc1")

    def poll_check(self, addr, soff):
        self.nlab += 1
        n = self.nlab
        self.e(f"v_cmp_ne_u32 vcc, {v(vT)}, {v(vPOLL)}")
        self.e(f"s_cbranch_vccnz L_slow{n}")
        self.a.label(f"L_back{n}")
        self.tail += [f"L_slow{n}:", f"s_mov_b32 s{sSPIN}, 0", f"L_spin{n}:",
                      f"buffer_load_dword {v(vPOLL)}, {v(addr)}, {s(S_WS,4)}, {soff} offen sc1",
                      f"s_add_u32 s{sSPIN}, s{sSPIN}, 1",
                      "s_waitcnt vmcnt(0)",
                      f"v_cmp_ne_u32 vcc, {v(vT)}, {v(vPOLL)}",
                      f"s_cmp_gt_u32 s{sSPIN}, 0x20000",
                      f"s_cbranch_scc1 L_back{n}",
                      f"s_cbranch_vccnz L_spin{n}",
                      f"s_branch L_back{n}"]

    def publish(self, soff):
        return self.e(f"buffer_store_dword {v(vT)}, {v(vL0)}, {s(S_WS,4)}, {soff} offen sc1")

    def prologue(self):
        e = self.e
        e("s_cmp_ge_u32 s2, 256")
        e("s_cbranch_scc1 L_end")
        for srd, off in ((S_X, 0), (S_WQ, 8), (S_WS, 88), (S_GW, 64), (S_B1, 40), (S_W1, 32), (S_W2, 48), (S_WO, 16), (S_B2, 56), (S_OUT, 72)):
            e(f"s_load_dwordx2 {s(srd,2)}, s[0:1], {off}")
        e(f"s_getpc_b64 {s(S_CODE,2)}")
        self.a.label("L_pc")
        e(f"s_lshr_b32 s{sLOC}, s2, 3")
        e(f"v_lshrrev_b32 v1, 6, v0")
        e(f"v_and_b32 v{vL}, 63, v0")
        e(f"s_and_b32 s{sT0}, s{sLOC}, 7")
        e(f"v_readfirstlane_b32 s{sW}, v1")
        e(f"s_mov_b32 s{S_CODE+2}, L_code_end-L_pc")
        e(f"s_mov_b32 s{S_CODE+3}, 0x20000")
        e(f"v_and_b32 v24, 7, v{vL}")
        e(f"v_lshl_add_u32 v24, v1, 3, v24")
        e(f"v_lshlrev_b32 v24, 7, v24")
        e(f"s_lshl_b32 s{sT1}, s{sT0}, 12")
        e(f"buffer_load_dword v25, v24, {s(S_CODE,4)}, s{sT1} offen")
        e(f"s_lshr_b32 s{sT1}, s{sLOC}, 3")
        e(f"s_bfe_u32 s{sR}, s2, 0x20001")
        e(f"s_lshl_b32 s{sR}, s{sR}, 2")
        e(f"s_add_u32 s{sR}, s{sR}, s{sT1}")
        e(f"s_and_b32 s{sC}, s2, 1")
        e(f"s_lshl_b32 s{sC}, s{sC}, 3")
        e(f"s_add_u32 s{sC}, s{sC}, s{sT0}")
        e(f"s_lshl_b32 s{sT1}, s{sT1}, 1")
        e(f"s_add_u32 s{sT0}, s{sT0}, s{sT1}")
        e(f"s_sub_u32 s{sT1}, s{sT0}, 7")
        e(f"s_cmp_ge_u32 s{sT0}, 7")
        e(f"s_cselect_b32 s{sG}, s{sT1}, s{sT0}")
        e(f"s_lshl_b32 s{sRB}, s{sR}, 2")
        e(f"s_add_u32 s{sRB}, s{sRB}, s{sW}")
        for srd, size in ((S_X, 2048 * 896), (S_WQ, 448 * 2688)):
            e(f"s_mov_b32 s{srd+2}, {size}")
            e(f"s_mov_b32 s{srd+3}, 0x20000")
        e(f"v_and_b32 v24, 15, v{vL}")
        e(f"s_lshl_b32 s{sT0}, s{sRB}, 5")
        e(f"v_add_u32 v24, s{sT0}, v24")
        e(f"v_mul_u32_u24 v24, 896, v24")
        e(f"v_bfe_u32 v26, v{vL}, 4, 1")
        e(f"v_lshrrev_b32 v27, 5, v{vL}")
        e(f"v_lshl_add_u32 v26, v26, 1, v27")
        e(f"v_lshl_add_u32 v{vXA0}, v26, 4, v24")
        e(f"v_add_u32 v{vXA1}, {16*896}, v{vXA0}")
        e(f"s_mul_i32 s{sT0}, s{sC}, 168")
        e(f"s_and_b32 s{sT0}, s{sT0}, 0xfffffff0")
        e(f"s_mul_i32 s{sT1}, s{sW}, {16*2688}")
        e(f"s_add_u32 s{sT0}, s{sT0}, s{sT1}")
        for i in range(3):
            e(f"v_add_u32 v24, {64*i}, v{vL}")
            e(f"v_mul_u32_u24 v26, 171, v24")
            e(f"v_lshrrev_b32 v26, 11, v26")
            e(f"v_mul_u32_u24 v27, 12, v26")
            e(f"v_sub_u32 v24, v24, v27")
            e(f"v_min_u32 v24, 10, v24")
            e(f"v_mul_u32_u24 v26, 2688, v26")
            e(f"v_lshl_add_u32 v24, v24, 4, v26")
            e(f"v_add_u32 v{vWQ+i}, s{sT0}, v24")
            if i < 2:
                e(f"s_sub_u32 s{sT0}, s{sT0}, 1024")
        e(f"s_mul_i32 s{sMQ}, s{sW}, {16*192}")
        e(f"s_add_u32 s{sMQ}, s{sMQ}, {R_Q}")
        e("s_waitcnt lgkmcnt(0)")
        self.stamp()
        self.ctok = {}
        self.issue_chunk(0, direct=True)
        for i in range(1, 7):
            e(f"s_add_u32 s{sT0}, s{sG+i-1}, 1")
            e(f"s_cmp_eq_u32 s{sT0}, 7")
            e(f"s_cselect_b32 s{sG+i}, 0, s{sT0}")
        self.issue_chunk(1, direct=True)
        for srd, size in ((S_WS, WS_SIZE), (S_GW, 896), (S_B1, 3584), (S_W1, 448 * 3584), (S_B2, 896), (S_OUT, 2048 * 896)):
            e(f"s_mov_b32 s{srd+2}, {size}")
            e(f"s_mov_b32 s{srd+3}, 0x20000")
        e(f"s_lshr_b32 s{sLIGHT}, 0x1248, s{sC}")
        e(f"s_and_b32 s{sLIGHT}, s{sLIGHT}, 1")
        e(f"s_bfm_b32 s{sT0}, s{sC}, 0")
        e(f"s_and_b32 s{sT0}, s{sT0}, 0x1248")
        e(f"s_bcnt1_i32_b32 s{sT0}, s{sT0}")
        e(f"s_lshl_b32 s{sUA}, s{sC}, 1")
        e(f"s_sub_u32 s{sUA}, s{sUA}, s{sT0}")
        e(f"s_add_u32 s{sUB}, s{sUA}, 1")
        e(f"s_sub_u32 s{sUB}, s{sUB}, s{sLIGHT}")
        e(f"v_mov_b32 v24, {E_OFF}")
        self.tE = e(f"buffer_load_dword v{vT}, v24, {s(S_WS,4)}, 0 offen sc1")
        e(f"s_lshl_b32 s{sT0}, s{sW}, 6")
        e(f"v_add_u32 v26, s{sT0}, v{vL}")
        e(f"s_lshl_b32 s{sT1}, s{sG}, 6")
        for h in range(2):
            e(f"v_add_u32 v27, s{sT1}, v26")
            if h:
                e(f"v_add_u32 v27, 256, v27")
            e(f"v_subrev_u32 v28, 448, v27")
            e(f"v_min_u32 v27, v27, v28")
            e(f"v_lshlrev_b32 v27, 1, v27")
            e(f"buffer_load_ushort v{30+h}, v27, {s(S_GW,4)}, 0 offen")
        e(f"s_lshl_b32 s{sT0}, s{sUA}, 7")
        e(f"s_cmp_eq_u32 s{sLIGHT}, 1")
        e(f"s_cselect_b32 s{sT0}, {OOB}, s{sT0}")
        e(f"s_lshl_b32 s{sT1}, s{sUB}, 7")
        e(f"s_sub_u32 s{sT1}, s{sT1}, 128")
        e(f"s_mov_b32 s{sHI}, 0")
        e(f"s_mov_b32 s{sHI+1}, -1")
        e(f"v_mov_b32 v27, s{sT0}")
        e(f"v_mov_b32 v28, s{sT1}")
        e(f"v_cndmask_b32 v27, v27, v28, {s(sHI,2)}")
        e(f"v_lshl_add_u32 v27, v{vL}, 2, v27")
        e(f"s_mov_b32 m0, {TB1}")
        self.tB1 = e(f"buffer_load_dword v27, {s(S_B1,4)}, 0 offen lds")
        self.issue_chunk(2, direct=True)
        if OPT["dbg"]:
            e(f"s_load_dwordx2 {s(S_GW,2)}, s[0:1], 80")
            e("s_waitcnt lgkmcnt(0)")
        e(f"v_lshlrev_b32 v{vLIN}, 4, v{vL}")
        e(f"v_bfe_u32 v24, v{vL}, 2, 2")
        e(f"v_lshrrev_b32 v27, 5, v{vL}")
        e(f"v_bfe_u32 v28, v{vL}, 4, 1")
        e(f"v_and_b32 v29, 3, v{vL}")
        e(f"v_lshlrev_b32 v29, 3, v29")
        e(f"v_lshl_add_u32 v29, v28, 5, v29")
        e(f"v_lshl_add_u32 v32, v27, 3, v24")
        e(f"v_mul_u32_u24 v33, 192, v32")
        e(f"s_and_b32 s{sT0}, s{sC}, 1")
        e(f"s_lshl_b32 s{sT0}, s{sT0}, 3")
        e(f"s_add_u32 s{sT0}, s{sT0}, {R_Q}")
        e(f"v_add3_u32 v{vTRQ}, v33, v29, s{sT0}")
        e(f"v_lshrrev_b32 v33, 1, v24")
        e(f"v_lshl_add_u32 v29, v33, 6, v29")
        e(f"v_lshl_add_u32 v{vTRF0}, v32, 7, v29")
        e(f"v_xor_b32 v{vTRF1}, 64, v{vTRF0}")
        e(f"v_lshl_add_u32 v32, v27, 2, v24")
        e(f"s_mul_i32 s{sRING}, s{sW}, 12288")
        e(f"s_add_u32 s{sRING}, s{sRING}, {RING}")
        e(f"v_lshl_add_u32 v32, v32, 7, v29")
        e(f"v_add_u32 v{vBT0}, s{sRING}, v32")
        e(f"v_xor_b32 v{vBT1}, 64, v{vBT0}")
        e(f"v_lshlrev_b32 v{vTBL}, 3, v27")

    def issue_chunk(self, i, direct=False):
        toks = []
        self.ctok[i] = toks
        def emit(t, tok=False):
            if direct:
                r = self.e(t)
                if tok:
                    toks.append(r)
            elif tok:
                self.push(lambda t=t: toks.append(self.e(t)))
            else:
                self.pe(t)
        emit(f"s_lshl_b32 s{sT2}, s{sG+i}, 7")
        emit(f"s_mul_i32 s{sT3}, s{sG+i}, {64*2688}")
        emit(f"s_add_u32 m0, s{sMQ}, {i*64*192}")
        for kk in range(2):
            for b in range(2):
                f = 4 * i + 2 * kk + b
                emit(f"buffer_load_dwordx4 {v(vX+4*f,4)}, v{vXA0+b}, {s(S_X,4)}, s{sT2} offen offset:{64*kk}", True)
            if kk == 0:
                emit(f"buffer_load_dwordx4 v{vWQ}, {s(S_WQ,4)}, s{sT3} offen lds", True)
        for k in range(1, 3):
            emit(f"buffer_load_dwordx4 v{vWQ+k}, {s(S_WQ,4)}, s{sT3} offen offset:{1024*k} lds", True)

    def issue_w1(self, unit, i):
        toks = []
        self.wtok[(unit, i)] = toks
        self.pe(f"s_mul_i32 s{sT3}, s{sG+i}, {64*3584}")
        if unit == 0:
            self.pe(f"s_add_u32 s{sMA}, s{sMA}, s{sT2}")
            self.pe(f"s_mov_b32 m0, s{sMA}")
        else:
            self.pe(f"s_add_u32 m0, s{sMB}, {i*64*128}")
        for k in range(2):
            t = f"buffer_load_dwordx4 v{vW1A0+k}, {s(S_W1,4)}, s{sT3} offen" + (f" offset:{1024*k}" if k else "") + " lds"
            self.push(lambda t=t: toks.append(self.e(t)))

    def setup_misc(self):
        pe = self.pe
        pe(f"s_cmp_eq_u32 s{sLIGHT}, 1")
        pe(f"s_cselect_b64 {s(sM,2)}, -1, 0")
        pe(f"v_bfe_u32 v27, v26, 1, 1")
        pe(f"v_lshlrev_b32 v28, 7, v26")
        pe(f"v_lshl_add_u32 v28, v27, 6, v28")
        pe(f"v_mov_b32 v29, {DUMMY+4096}")
        pe(f"v_cndmask_b32 v27, v29, v28, {s(sM,2)}")
        pe(f"v_cmp_gt_u32 vcc, 192, v26")
        pe(f"v_add_u32 v28, {256*128}, v28")
        pe(f"s_and_b64 {s(sM,2)}, {s(sM,2)}, vcc")
        pe(f"ds_write_b16 v27, v30")
        pe(f"v_cndmask_b32 v28, v29, v28, {s(sM,2)}")
        pe(f"ds_write_b16 v28, v31")
        pe(f"v_lshrrev_b32 v24, 3, v{vL}")
        pe(f"v_bfe_u32 v27, v{vL}, 4, 1")
        pe(f"v_lshlrev_b32 v27, 2, v27")
        pe(f"v_and_b32 v28, 7, v{vL}")
        pe(f"v_xor_b32 v27, v27, v28")
        pe(f"v_lshlrev_b32 v27, 4, v27")
        pe(f"v_mul_u32_u24 v28, 3584, v24")
        pe(f"s_mul_i32 s{sT0}, s{sW}, {16*3584}")
        pe(f"s_lshl_b32 s{sT1}, s{sUA}, 7")
        pe(f"s_add_u32 s{sT0}, s{sT0}, s{sT1}")
        pe(f"s_cmp_eq_u32 s{sLIGHT}, 1")
        pe(f"s_cselect_b32 s{sT0}, {OOB}, s{sT0}")
        pe(f"v_add3_u32 v{vW1A0}, v28, v27, s{sT0}")
        pe(f"v_add_u32 v{vW1A1}, {8*3584-1024}, v{vW1A0}")
        pe(f"s_lshl_b32 s{sMB}, s{sW}, 11")
        pe(f"s_sub_u32 s{sMA}, s{sMB}, {64*128 - R_A}")
        pe(f"s_add_u32 s{sMB}, s{sMB}, {R_B}")
        pe(f"s_cmp_eq_u32 s{sLIGHT}, 1")
        pe(f"s_cselect_b32 s{sMA}, {DUMMY}, s{sMA}")
        pe(f"s_and_b32 s{sT0}, s2, 7")
        pe(f"s_and_b32 s{sT1}, s{sLOC}, 1")
        pe(f"s_lshl_b32 s{sJ}, s{sT0}, 1")
        pe(f"s_add_u32 s{sJ}, s{sJ}, s{sT1}")
        pe(f"s_lshr_b32 s{sRA}, s{sLOC}, 1")
        pe(f"s_mul_i32 s{sT1}, s{sLOC}, 37")
        pe(f"s_lshr_b32 s{sT1}, s{sT1}, 8")
        pe(f"s_mul_i32 s{sCT}, s{sT1}, 7")
        pe(f"s_sub_u32 s{sCT}, s{sLOC}, s{sCT}")
        pe(f"s_lshl_b32 s{sRB0}, s{sT0}, 2")
        pe(f"s_add_u32 s{sRB0}, s{sRB0}, s{sT1}")
        pe(f"s_lshl_b32 s{sRB0}, s{sRB0}, 1")
        pe(f"s_lshl_b32 s{sT1}, s{sT1}, 2")
        pe(f"s_lshr_b32 s{sT1}, 0xa370, s{sT1}")
        pe(f"s_and_b32 s{sT1}, s{sT1}, 15")
        pe(f"s_lshl_b32 s{sROT2}, s{sCT}, 1")
        pe(f"s_add_u32 s{sROT2}, s{sROT2}, s{sT1}")
        pe(f"s_sub_u32 s{sT1}, s{sROT2}, 14")
        pe(f"s_cmp_ge_u32 s{sROT2}, 14")
        pe(f"s_cselect_b32 s{sROT2}, s{sT1}, s{sROT2}")
        pe(f"s_cmp_lt_u32 s{sLOC}, 28")
        pe(f"s_cselect_b32 s{S_W2+2}, {1792*896}, 0")
        pe(f"s_cselect_b32 s{S_WO+2}, {448*896}, 0")
        pe(f"s_mov_b32 s{S_W2+3}, 0x20000")
        pe(f"s_mov_b32 s{S_WO+3}, 0x20000")
        pe(f"v_mul_u32_u24 v28, 896, v24")
        pe(f"s_lshl_b32 s{sT0}, s{sCT}, 7")
        pe(f"v_add3_u32 v{vBD}, v28, v27, s{sT0}")
        for k in range(1, 4):
            pe(f"v_add_u32 v{vBD+k}, {k*(7168-1024)}, v{vBD}")
        pe(f"s_mul_i32 s{sBEND}, s{sW}, {448*896}")
        pe(f"s_mul_i32 s{sBOFF}, s{sROT2}, {32*896}")
        pe(f"s_add_u32 s{sBOFF}, s{sBOFF}, s{sBEND}")
        pe(f"s_add_u32 s{sBEND}, s{sBEND}, {448*896}")
        pe(f"v_and_b32 v24, 3, v{vL}")
        pe(f"v_lshrrev_b32 v27, 5, v{vL}")
        pe(f"v_lshl_add_u32 v24, v27, 2, v24")
        pe(f"v_bfe_u32 v27, v{vL}, 2, 3")
        pe(f"v_lshl_add_u32 v24, v27, 3, v24")
        pe(f"v_lshlrev_b32 v{vPV}, 4, v24")
        pe(f"v_cmp_eq_u32 vcc, 0, v{vL}")
        pe(f"v_mov_b32 v24, {OOB}")
        pe(f"v_mov_b32 v{vK1}, {K1}")
        pe(f"v_cndmask_b32 v{vL0}, v24, 0, vcc")
        pe(f"v_mov_b32 v{vK1+1}, {K1}")
        pe(f"s_mov_b32 s{sK2}, {K2}")
        pe(f"s_mov_b32 s{sK2+1}, {K2}")

    def bias_init(self, acc, tbl, factor=None):
        for t in range(2):
            for mm in range(2):
                o = (tbl % 2048) // 8 + 8 * t + 4 * mm
                self.pe(f"ds_read2_b64 {v(vTMP+8*t+4*mm,4)}, v{vTBL} offset0:{o} offset1:{o+2}")
        for t in range(2):
            for m in range(4):
                for d in range(2):
                    src = vTMP + 8 * t + 2 * m + d
                    dst = acc + 16 * t + 4 * m + 2 * d
                    self.pe(f"v_lshlrev_b32 v{dst}, 16, v{src}")
                    self.pe(f"v_and_b32 v{dst+1}, 0xffff0000, v{src}")
                    if factor:
                        self.pe(f"v_mul_f32 v{dst}, {factor}, v{dst}")
                        self.pe(f"v_mul_f32 v{dst+1}, {factor}, v{dst+1}")

    def rd_q(self, sidx, t):
        base = vWR + 12 * (sidx & 1) + 4 * t
        o = 56 * t + (sidx % 14) * 3072
        for h in range(2):
            self.e(f"ds_read_b64_tr_b16 {v(base+2*h,2)}, v{vTRQ} offset:{o+768*h}")

    def rd_f(self, sidx, t):
        base = vWR + 8 * (sidx % 3) + 4 * t
        for h in range(2):
            self.e(f"ds_read_b64_tr_b16 {v(base+2*h,2)}, v{vTRF0+t} offset:{sidx*2048+512*h}")

    def open_chunk(self, i):
        self.a.need(*self.ctok[i])
        self.e("s_barrier")
        for p in range(2):
            f = 4 * i + 2 * p
            for r in range(4):
                self.e(f"v_permlane16_swap_b32 v{vX+4*f+r}, v{vX+4*f+4+r}")

    def qkv(self):
        e = self.e
        self.wtok = {}
        self.open_chunk(0)
        self.stamp()
        for t in range(3):
            self.rd_q(0, t)
        for sidx in range(28):
            i = sidx // 4
            if sidx % 2 == 0:
                self.stamp(3)
            if sidx % 4 == 0:
                if i == 0:
                    self.issue_chunk(3)
                    self.setup_misc()
                elif i <= 3:
                    self.issue_chunk(i + 3)
                if i == 1:
                    self.push(lambda: self.a.need(self.tB1), 0)
                    self.pe(f"v_add_u32 v{vTBL}, {TB1 - TB1 % 2048}, v{vTBL}")
                    self.bias_init(vACC + 48, TB1)
                if i == 4:
                    self.pe(f"s_cmp_eq_u32 s{sLIGHT}, 1")
                    self.pe(f"s_cselect_b32 s{sT2}, 0, {64*128}")
                if i >= 4:
                    for k in ((0, 1, 2), (3, 4), (5, 6))[i - 4]:
                        self.issue_w1(0, k)
            for t in range(3):
                acc = v(vACC + 16 * t, 16)
                e(f"v_mfma_f32_32x32x16_bf16 {acc}, {v(vWR+12*(sidx&1)+4*t,4)}, {v(vX+4*sidx,4)}, {acc if sidx else 0}")
                if t == 0 and sidx % 4 == 3:
                    self.drain()
                    if sidx < 27:
                        self.open_chunk(i + 1)
                    else:
                        self.a.need(*self.wtok[(0, 0)])
                        e("s_waitcnt lgkmcnt(0)")
                        e("s_barrier")
                if t == 0 and sidx == 13:
                    e(f"v_add_u32 v{vTRQ}, {14*3072}, v{vTRQ}")
                if sidx < 27:
                    self.rd_q(sidx + 1, t)
                elif t < 2:
                    self.rd_f(0, t)
                self.fill(16)

    def qkv_epilogue(self):
        pe = self.pe
        self.tQKV = []
        for t in range(3):
            acc = vACC + 16 * t
            pe(f"s_mul_i32 s{sT0}, s{sC}, 3")
            pe(f"s_add_u32 s{sT0}, s{sT0}, {t}")
            pe(f"s_cmp_lt_u32 s{sT0}, 16")
            pe(f"s_cselect_b32 s{sT1}, {QSCALE}, 1.0")
            for k in range(16):
                pe(f"v_mul_f32 v{acc+k}, s{sT1}, v{acc+k}")
            pe(f"s_cmp_ge_u32 s{sT0}, 32")
            pe(f"s_cselect_b64 {s(sM,2)}, -1, 0")
            pe(f"s_cselect_b32 s{sT2}, 0x3f80, 0")
            pe(f"s_cselect_b32 s{sT1}, 128, 0")
            pe(f"v_mov_b32 v{vTMP+10}, s{sT2}")
            pe(f"v_cndmask_b32 v{vTMP+8}, v{vLIN}, v{vPV}, {s(sM,2)}")
            pe(f"s_lshl_b32 s{sT0}, s{sT0}, 6")
            pe(f"v_xor_b32 v{vTMP+9}, s{sT1}, v{vTMP+8}")
            pe(f"s_add_u32 s{sT0}, s{sT0}, s{sRB}")
            pe(f"s_lshl_b32 s{sT0}, s{sT0}, 11")
            for k in range(8):
                pe(f"v_cvt_pk_bf16_f32 v{vTMP+k}, v{acc+2*k}, v{acc+2*k+1}")
                if k == 3:
                    tt = f"buffer_store_dwordx4 {v(vTMP,4)}, v{vTMP+8}, {s(S_WS,4)}, s{sT0} offen sc1"
                    self.push(lambda tt=tt: self.tQKV.append(self.e(tt)))
            pe(f"v_cndmask_b32 v{vTMP+6}, v{vTMP+6}, v{vTMP+10}, {s(sHI,2)}")
            pe(f"v_cndmask_b32 v{vTMP+7}, v{vTMP+7}, 0, {s(sHI,2)}")
            tt = f"buffer_store_dwordx4 {v(vTMP+4,4)}, v{vTMP+9}, {s(S_WS,4)}, s{sT0} offen offset:1024 sc1"
            self.push(lambda tt=tt: self.tQKV.append(self.e(tt)))

    def b_dma(self, p):
        toks = []
        self.btok[p] = toks
        srd = S_W2 if p < 14 else S_WO
        if p == 14:
            self.pe(f"s_mul_i32 s{sBOFF}, s{sW}, {112*896}")
        self.pe(f"s_add_u32 m0, s{sRING}, {(p % 3)*4096}")
        for k in range(4):
            t = f"buffer_load_dwordx4 v{vBD+k}, {s(srd,4)}, s{sBOFF} offen" + (f" offset:{1024*k}" if k else "") + " lds"
            self.push(lambda t=t: toks.append(self.e(t)))
        if p < 13:
            self.pe(f"s_add_u32 s{sBOFF}, s{sBOFF}, {32*896}")
            self.pe(f"s_cmp_eq_u32 s{sBOFF}, s{sBEND}")
            self.pe(f"s_cselect_b32 s{sM2}, {448*896}, 0")
            self.pe(f"s_sub_u32 s{sBOFF}, s{sBOFF}, s{sM2}")
        elif p >= 14:
            self.pe(f"s_add_u32 s{sBOFF}, s{sBOFF}, {28*896}")

    def b_read(self, p):
        toks = []
        self.btr[p] = toks
        self.push(lambda: self.a.need(*self.btok[p]), 4)
        for ks in range(2):
            for t in range(2):
                for h in range(2):
                    dst = a_(16 * (p % 16) + 8 * ks + 4 * t + 2 * h, 2)
                    tt = f"ds_read_b64_tr_b16 {dst}, v{vBT0+t} offset:{(p%3)*4096+ks*2048+h*1024}"
                    self.push(lambda tt=tt: toks.append(self.e(tt)))

    def b_step(self):
        p = self.bnext
        if p >= 16:
            return
        self.bnext += 1
        self.b_read(p)
        if p + 3 < 18:
            self.push(lambda: self.a.need(*self.btr[p]), 4)
            self.b_dma(p + 3)

    def gelu_q(self, acc, soff, toks, packed):
        pe = self.pe
        T = vTMP + 8
        for t in range(2):
            for half in range(2):
                for k in range(4):
                    u = acc + 16 * t + 8 * half + 2 * k
                    t0 = T + 2 * (k & 1)
                    if packed:
                        pe(f"v_pk_mul_f32 {v(t0,2)}, {v(u,2)}, {v(u,2)}")
                        pe(f"v_pk_fma_f32 {v(t0,2)}, {v(t0,2)}, {s(sK2,2)}, {v(vK1,2)}")
                        pe(f"v_pk_mul_f32 {v(t0,2)}, {v(t0,2)}, {v(u,2)}")
                        pe(f"v_exp_f32 v{t0}, v{t0}")
                        pe(f"v_exp_f32 v{t0+1}, v{t0+1}")
                        pe("s_nop 0")
                        pe(f"v_pk_add_f32 {v(t0,2)}, {v(t0,2)}, 1.0 op_sel_hi:[1,0]")
                        pe(f"v_rcp_f32 v{t0}, v{t0}")
                        pe(f"v_rcp_f32 v{t0+1}, v{t0+1}")
                        pe("s_nop 0")
                        pe(f"v_pk_mul_f32 {v(t0,2)}, {v(t0,2)}, {v(u,2)}")
                    else:
                        for d in range(2):
                            pe(f"v_mul_f32 v{t0+d}, v{u+d}, v{u+d}")
                        for d in range(2):
                            pe(f"v_fma_f32 v{t0+d}, v{t0+d}, s{sK2}, v{vK1}")
                        for d in range(2):
                            pe(f"v_mul_f32 v{t0+d}, v{t0+d}, v{u+d}")
                        for d in range(2):
                            pe(f"v_exp_f32 v{t0+d}, v{t0+d}")
                        for d in range(2):
                            pe(f"v_add_f32 v{t0+d}, 1.0, v{t0+d}")
                        for d in range(2):
                            pe(f"v_rcp_f32 v{t0+d}, v{t0+d}")
                        for d in range(2):
                            pe(f"v_mul_f32 v{t0+d}, v{t0+d}, v{u+d}")
                    pe(f"v_cvt_pk_bf16_f32 v{vTMP+4*half+k}, v{t0}, v{t0+1}")
                tt = f"buffer_store_dwordx4 {v(vTMP+4*half,4)}, v{vLIN}, {s(S_WS,4)}, s{soff} offen offset:{(2*t+half)*1024} sc1"
                self.push(lambda tt=tt: toks.append(self.e(tt)))
                if not packed or t + half < 2:
                    pass
                self.hook(f"gelu{t}{half}")

    def hook(self, name):
        fn = self.hooks.pop(name, None)
        if fn:
            fn()

    def ffn(self, unit):
        e = self.e
        acc0 = vACC + 48 if unit == 0 else vACC
        for sidx in range(28):
            if sidx % 4 == 0:
                self.stamp(2)
            self.hook(f"ffn{unit}_{sidx}")
            for t in range(2):
                acc = v(acc0 + 16 * t, 16)
                e(f"v_mfma_f32_32x32x16_bf16 {acc}, {v(vWR+8*(sidx%3)+4*t,4)}, {v(vX+4*sidx,4)}, {acc}")
                if t == 0 and sidx % 4 == 3:
                    if sidx < 27:
                        self.a.need(*self.wtok[(unit, sidx // 4 + 1)])
                        e("s_barrier")
                    elif unit == 0:
                        self.drain()
                        self.a.need(*self.wtok[(1, 0)])
                        e("s_waitcnt lgkmcnt(0)")
                        e("s_barrier")
                        e(f"v_add_u32 v{vTRF0}, {R_B-R_A}, v{vTRF0}")
                        e(f"v_add_u32 v{vTRF1}, {R_B-R_A}, v{vTRF1}")
                if sidx < 27:
                    self.rd_f(sidx + 1, t)
                elif unit == 0:
                    self.rd_f(0, t)
                self.fill(12 if unit == 0 else 16)

    def phase1(self):
        e, pe = self.e, self.pe
        self.hooks = {}
        self.btok, self.btr, self.bnext = {}, {}, 0
        self.qkv()
        self.stamp()
        pe(f"s_sub_u32 s{sT0}, s{sUB}, s{sUA}")
        pe(f"s_lshl_b32 s{sT0}, s{sT0}, 7")
        pe(f"s_mul_i32 s{sT1}, s{sW}, {16*3584}")
        pe(f"s_lshl_b32 s{sT2}, s{sUB}, 7")
        pe(f"s_add_u32 s{sT1}, s{sT1}, s{sT2}")
        pe(f"s_sub_u32 s{sT1}, s{sT1}, {OOB}")
        pe(f"s_cmp_eq_u32 s{sLIGHT}, 1")
        pe(f"s_cselect_b32 s{sT0}, s{sT1}, s{sT0}")
        pe(f"v_add_u32 v{vW1A0}, s{sT0}, v{vW1A0}")
        pe(f"v_add_u32 v{vW1A1}, s{sT0}, v{vW1A1}")
        for k in range(7):
            self.issue_w1(1, k)
        self.qkv_epilogue()
        self.bias_init(vACC, TB1 + 128)
        self.b_dma(0)
        self.b_dma(1)
        self.ffn(0)
        self.stamp()
        accA = vACC + 48
        self.b_dma(2)
        pe(f"v_add_u32 v{vT}, {TAG_STEP}, v{vT}")
        pe(f"s_lshl_b32 s{sT0}, s{sRB}, 4")
        pe(f"s_add_u32 s{sT0}, s{sT0}, s{sC}")
        pe(f"s_lshl_b32 s{sT0}, s{sT0}, 7")
        pe(f"s_add_u32 s{sT0}, s{sT0}, {F_BASE}")
        self.push(lambda: self.a.need(*self.tQKV))
        self.push(lambda: self.publish(f"s{sT0}"))
        pe(f"v_mul_f32 v{vGATE}, {fbits(-math.log2(math.e))}, v{accA}")
        pe(f"v_exp_f32 v{vGATE}, v{vGATE}")
        pe(f"v_lshlrev_b32 v{vGA}, 2, v{vL}")
        pe(f"v_add_f32 v{vGATE}, 1.0, v{vGATE}")
        pe(f"v_rcp_f32 v{vGATE}, v{vGATE}")
        pe(f"v_mov_b32 v{vTMP}, {OOB}")
        pe(f"v_cndmask_b32 v{vTMP}, v{vGA}, v{vTMP}, {s(sHI,2)}")
        pe(f"s_lshl_b32 s{sT0}, s{sRB}, 7")
        pe(f"s_add_u32 s{sT0}, s{sT0}, {G_BASE}")
        pe(f"s_cmp_eq_u32 s{sC}, 3")
        pe(f"s_cselect_b32 s{sT0}, s{sT0}, {OOB}")
        self.tH = []
        tt = f"buffer_store_dword v{vGATE}, v{vTMP}, {s(S_WS,4)}, s{sT0} offen sc1"
        self.push(lambda: self.tH.append(self.e(tt)))
        pe(f"s_mul_i32 s{sT1}, s{sRB}, 28")
        pe(f"s_add_u32 s{sT0}, s{sT1}, s{sUA}")
        pe(f"s_lshl_b32 s{sT0}, s{sT0}, 12")
        pe(f"s_add_u32 s{sT0}, s{sT0}, {H_BASE}")
        pe(f"s_cmp_eq_u32 s{sLIGHT}, 1")
        pe(f"s_cselect_b32 s{sMA}, {OOB}, s{sT0}")
        pe(f"s_add_u32 s{sT0}, s{sT1}, s{sUB}")
        pe(f"s_lshl_b32 s{sT0}, s{sT0}, 12")
        pe(f"s_add_u32 s{sMB}, s{sT0}, {H_BASE}")
        self.hooks["gelu00"] = self.b_step
        self.hooks["gelu01"] = lambda: (self.att_addr(), self.b_step())
        self.hooks["gelu10"] = lambda: (self.push(lambda: self.poll_issue(vF1A, 0)), self.b_step())
        self.gelu_q(accA, sMA, self.tH, packed=False)
        self.ffn(1)
        self.drain()
        self.stamp()
        self.att_loads()
        self.hooks["gelu00"] = self.b_step
        self.hooks["gelu01"] = self.b_step
        self.hooks["gelu10"] = self.b_step
        self.gelu_q(vACC, sMB, self.tH, packed=True)
        self.drain()
        self.stamp()

    vQ = 96
    vS = 144
    vCD, vM0, vM8 = 176, 192, 208
    vO = 224
    vP = 240
    vKR = 40
    vVR = 56
    vMX = 248
    vKA, vVA = 6, 7

    def att_addr(self):
        pe = self.pe
        pe(f"s_lshl_b32 s{sT0}, s{sRA}, 2")
        pe(f"s_add_u32 s{sT1}, s{sT0}, s{sW}")
        pe(f"s_sub_u32 s{sFIRST}, 8, s{sT1}")
        pe(f"s_max_i32 s{sFIRST}, s{sFIRST}, 0")
        pe(f"s_mul_i32 s{sT2}, s{sJ}, 43")
        pe(f"s_lshr_b32 s{sT2}, s{sT2}, 7")
        pe(f"s_lshl_b32 s{sT1}, s{sT1}, 4")
        pe(f"s_add_u32 s{sT1}, s{sT1}, s{sT2}")
        pe(f"v_mov_b32 v{vF1A}, s{sT1}")
        pe(f"s_mul_i32 s{sT1}, s{sW}, 3")
        pe(f"s_add_u32 s{sT0}, s{sT0}, s{sT1}")
        pe(f"s_sub_u32 s{sAEND}, s{sT0}, 8")
        T = vTMP + 12
        for part, add in ((0, 16), (1, 32)):
            pe(f"s_add_u32 s{sT2}, s{sJ}, {add}")
            pe(f"s_mul_i32 s{sT2}, s{sT2}, 43")
            pe(f"s_lshr_b32 s{sT2}, s{sT2}, 7")
            pe(f"v_subrev_u32 v{T}, {3*part}, v{vL}")
            pe(f"v_add_u32 v{T+1}, s{sAEND}, v{T}")
            pe(f"v_cmp_gt_u32 {s(sM,2)}, 3, v{T}")
            pe(f"v_cmp_le_i32 vcc, 0, v{T+1}")
            pe(f"v_lshl_add_u32 v{T+1}, v{T+1}, 4, s{sT2}")
            pe(f"s_and_b64 {s(sM,2)}, {s(sM,2)}, vcc")
            pe(f"v_cndmask_b32 v{vF1A}, v{vF1A}, v{T+1}, {s(sM,2)}")
        pe(f"v_lshlrev_b32 v{vF1A}, 7, v{vF1A}")
        pe(f"v_add_u32 v{vF1A}, {F_BASE}, v{vF1A}")

    def att_loads(self):
        e = self.e
        self.poll_check(vF1A, 0)
        self.tKV = []
        for bb in range(3):
            for part in range(2):
                e(f"s_add_u32 s{sT0}, s{sJ}, {16+16*part}")
                e(f"s_lshl_b32 s{sT0}, s{sT0}, 6")
                e(f"s_add_u32 s{sT1}, s{sAEND}, {bb}")
                e(f"s_add_u32 s{sT0}, s{sT0}, s{sT1}")
                e(f"s_lshl_b32 s{sT0}, s{sT0}, 11")
                e(f"s_cmp_lt_i32 s{sT1}, 0")
                e(f"s_cselect_b32 s{sT0}, {OOB}, s{sT0}")
                e(f"s_mul_i32 s{sT1}, s{sW}, 6144")
                e(f"s_add_u32 m0, s{sT1}, {KV+24576*part+2048*bb}")
                for k in range(2):
                    self.tKV.append(e(f"buffer_load_dwordx4 v{vLIN}, {s(S_WS,4)}, s{sT0} offen" + (" offset:1024" if k else "") + " sc1 lds"))
        e(f"s_lshl_b32 s{sT0}, s{sJ}, 4")
        e(f"s_add_u32 s{sT0}, s{sT0}, s{sRA}")
        e(f"s_lshl_b32 s{sT0}, s{sT0}, 2")
        e(f"s_add_u32 s{sT0}, s{sT0}, s{sW}")
        e(f"s_lshl_b32 s{sT0}, s{sT0}, 11")
        for k in range(2):
            e(f"buffer_load_dwordx4 {v(self.vQ+4*k,4)}, v{vLIN}, {s(S_WS,4)}, s{sT0} offen offset:{1024*k} sc1")

    def rd_k(self, i):
        for k in range(2):
            self.e(f"ds_read_b128 {v(self.vKR+8*(i&1)+4*k,4)}, v{self.vKA} offset:{i*2048+k*1024}")

    def rd_v(self, i, st):
        for h in range(2):
            self.e(f"ds_read_b64_tr_b16 {v(self.vVR+4*st+2*h,2)}, v{self.vVA} offset:{i*2048+256*(2*st+h)}")

    def qk(self, i, k):
        S = v(self.vS + 16 * (i & 1), 16)
        C = S if k else v(self.vM0 if i == 0 else self.vM8 if i == 8 else self.vCD, 16)
        self.e(f"v_mfma_f32_32x32x16_bf16 {S}, {v(self.vKR+8*(i&1)+4*k,4)}, {v(self.vQ+4*k,4)}, {C}")

    def patch(self, i, src):
        if not 2 <= i <= 7:
            return
        self.nlab += 1
        n = self.nlab
        self.e(f"s_cmp_eq_u32 s{sFIRST}, {i}")
        self.e(f"s_cbranch_scc1 L_pat{n}")
        self.a.label(f"L_patb{n}")
        self.tail += [f"L_pat{n}:", "s_nop 7"] + [f"v_mov_b32 v{self.vCD+k}, {src}" for k in range(16)] + ["s_nop 1", f"s_branch L_patb{n}"]

    def attention(self):
        e, pe = self.e, self.pe
        vS, vMX = self.vS, self.vMX
        e(f"v_and_b32 v24, 31, v{vL}")
        e(f"v_lshrrev_b32 v25, 5, v{vL}")
        e(f"v_lshlrev_b32 v26, 2, v25")
        e(f"v_sub_u32 v24, v24, v26")
        e(f"s_cmp_gt_u32 s{sFIRST}, 0")
        e(f"s_cselect_b32 s{sT0}, {NINF}, 0")
        e(f"v_mov_b32 v26, s{sT0}")
        e(f"v_mov_b32 v27, {NINF}")
        e(f"s_cmp_gt_u32 s{sFIRST}, 1")
        e(f"s_cselect_b32 s{sT0}, {NINF}, 0")
        prs = (sM, sM2, sM3)
        for j0 in range(0, 16, 2):
            for d in range(2):
                jj = j0 + d
                e(f"v_cmp_le_i32 {s(prs[d],2)}, {(jj&3)+8*(jj>>2)}, v24")
            for d in range(2):
                e(f"v_mov_b32 v{self.vCD+j0+d}, s{sT0}")
            for d in range(2):
                jj = j0 + d
                e(f"v_cndmask_b32 v{self.vM8+jj}, v27, 0, {s(prs[d],2)}")
                e(f"v_cndmask_b32 v{self.vM0+jj}, v26, v27, {s(prs[d],2)}")
        e(f"s_lshl_b32 s{sT0}, s{sW}, 11")
        e(f"v_add_u32 v{self.vKA}, s{sT0}, v{vLIN}")
        e(f"v_bfe_u32 v26, v{vL}, 4, 1")
        e(f"v_xor_b32 v25, v25, v26")
        e(f"v_bfe_u32 v27, v{vL}, 2, 2")
        e(f"v_lshl_add_u32 v27, v25, 3, v27")
        e(f"v_and_b32 v25, 1, v{vL}")
        e(f"v_lshl_add_u32 v27, v25, 2, v27")
        e(f"v_lshlrev_b32 v27, 4, v27")
        e(f"v_lshl_add_u32 v27, v26, 10, v27")
        e(f"v_bfe_u32 v25, v{vL}, 1, 1")
        e(f"v_lshl_add_u32 v27, v25, 3, v27")
        e(f"s_add_u32 s{sT0}, s{sT0}, {KV+24576}")
        e(f"v_add_u32 v{self.vVA}, s{sT0}, v27")
        self.a.need(*self.tKV)
        e("s_barrier")
        self.stamp()
        e(f"v_lshlrev_b32 v24, 2, v{vL}")
        e(f"s_lshl_b32 s{sT0}, s{sCT}, 7")
        e(f"s_mov_b32 m0, {TB2}")
        self.rd_k(0)
        self.tB2 = e(f"buffer_load_dword v24, {s(S_B2,4)}, s{sT0} offen lds")
        e(f"v_mov_b32 v{vMX}, {NINF}")
        e(f"v_mov_b32 v{vMX+1}, {NINF}")
        self.b_step()
        for i in range(10):
            if i % 2 == 0:
                self.stamp(4)
            if i < 9:
                self.patch(i, "0")
                self.qk(i, 0)
                if i < 8:
                    self.rd_k(i + 1)
                self.fill(8)
                self.qk(i, 1)
                if i == 8:
                    self.rd_k(0)
            if i > 0:
                S = vS + 16 * ((i - 1) & 1)
                for k in range(8):
                    e(f"v_max3_f32 v{vMX+(k&1)}, v{S+2*k}, v{S+2*k+1}, v{vMX+(k&1)}")
            if i == 4:
                self.b_step()
        self.drain()
        e(f"s_lshl_b32 s{sT0}, s{sRB}, 4")
        e(f"s_add_u32 s{sT0}, s{sT0}, s{sC}")
        e(f"s_lshl_b32 s{sT0}, s{sT0}, 7")
        e(f"s_add_u32 s{sT0}, s{sT0}, {F_BASE+1024*128}")
        e(f"v_max_f32 v{vMX}, v{vMX}, v{vMX+1}")
        e(f"v_mov_b32 v{vMX+1}, v{vMX}")
        self.a.need(*self.tH)
        self.publish(f"s{sT0}")
        e(f"v_permlane32_swap_b32 v{vMX}, v{vMX+1}")
        e(f"v_max_f32 v{vMX}, v{vMX}, v{vMX+1}")
        e(f"v_sub_f32 v{vMX}, 0, v{vMX}")
        e(f"s_cmp_gt_u32 s{sFIRST}, 1")
        e(f"s_cselect_b32 s{sT0}, {NINF}, 0")
        for k in range(16):
            e(f"v_add_f32 v{self.vM0+k}, v{self.vM0+k}, v{vMX}")
        self.qk(0, 0)
        self.rd_k(1)
        self.qk(0, 1)
        e(f"v_add_f32 v{vMX+1}, s{sT0}, v{vMX}")
        for k in range(16):
            e(f"v_mov_b32 v{self.vCD+k}, v{vMX+1}")
        for k in range(16):
            e(f"v_add_f32 v{self.vM8+k}, v{self.vM8+k}, v{vMX}")
        self.stamp()
        for i in range(9):
            S = vS + 16 * (i & 1)
            self.stamp(4)
            if i in (0, 2, 3, 5, 6):
                self.b_step()
            if i == 1:
                self.de_addr()
            if i == 4:
                self.push(lambda: self.poll_issue(vF23A, f"s{sM2+1}"))
            if i == 7:
                self.drain()
                self.de_start()
            if i < 8:
                self.patch(i + 1, f"v{vMX}")
                self.qk(i + 1, 0)
            self.rd_v(i, 0)
            for k in range(3):
                e(f"v_exp_f32 v{S+k}, v{S+k}")
            if i < 8:
                self.qk(i + 1, 1)
                if i < 7:
                    self.rd_k(i + 2)
            self.rd_v(i, 1)
            for k in range(3, 9):
                e(f"v_exp_f32 v{S+k}, v{S+k}")
            for k in range(4):
                e(f"v_cvt_pk_bf16_f32 v{self.vP+k}, v{S+2*k}, v{S+2*k+1}")
            e(f"v_exp_f32 v{S+9}, v{S+9}")
            e(f"v_exp_f32 v{S+10}, v{S+10}")
            O = v(self.vO, 16)
            e(f"v_mfma_f32_32x32x16_bf16 {O}, {v(self.vVR,4)}, {v(self.vP,4)}, {O if i else 0}")
            for k in range(11, 16):
                e(f"v_exp_f32 v{S+k}, v{S+k}")
            self.fill(40)
            for k in range(4, 8):
                e(f"v_cvt_pk_bf16_f32 v{self.vP+k}, v{S+2*k}, v{S+2*k+1}")
            self.fill(8)
            e(f"v_mfma_f32_32x32x16_bf16 {O}, {v(self.vVR+4,4)}, {v(self.vP+4,4)}, {O}")
            self.fill(40)
        self.drain()
        e(f"s_lshl_b32 s{sT0}, s{sRA}, 2")
        e(f"s_add_u32 s{sT0}, s{sT0}, s{sW}")
        e(f"s_lshl_b32 s{sT0}, s{sT0}, 4")
        e(f"s_add_u32 s{sT0}, s{sT0}, s{sJ}")
        e(f"s_lshl_b32 s{sT1}, s{sT0}, 7")
        e(f"s_add_u32 s{sMA}, s{sT1}, {F_BASE+2048*128}")
        e(f"s_lshl_b32 s{sT0}, s{sT0}, 11")
        e(f"s_add_u32 s{sT0}, s{sT0}, {O_BASE}")
        e(f"v_mov_b32 v{vMX}, v{self.vO+12}")
        e(f"v_mov_b32 v{vMX+1}, v{self.vO+12}")
        e(f"v_permlane32_swap_b32 v{vMX}, v{vMX+1}")
        e(f"v_rcp_f32 v{vMX}, v{vMX+1}")
        e(f"v_rcp_f32 v{vMX+1}, v{vMX+1}")
        for k in range(8):
            e(f"v_pk_mul_f32 {v(self.vO+2*k,2)}, {v(self.vO+2*k,2)}, {v(vMX,2)}")
        self.tO = []
        for k in range(8):
            e(f"v_cvt_pk_bf16_f32 v{self.vP+k}, v{self.vO+2*k}, v{self.vO+2*k+1}")
            if k == 3:
                self.tO.append(e(f"buffer_store_dwordx4 {v(self.vP,4)}, v{vLIN}, {s(S_WS,4)}, s{sT0} offen sc1"))
        e(f"v_cndmask_b32 v{self.vP+6}, v{self.vP+6}, 0, {s(sHI,2)}")
        self.tO.append(e(f"buffer_store_dwordx4 {v(self.vP+4,4)}, v{vLIN}, {s(S_WS,4)}, s{sT0} offen offset:1024 sc1"))
        self.stamp()

    vAR = 64
    vAB = 144
    vAA = 40
    vA1H, vA1O, vG = 8, 9, 10

    def ar(self, p, k):
        slot = p % 4
        return (64, 80, 104, 120)[slot] + 4 * k

    def de_addr(self):
        pe = self.pe
        T = vTMP + 12
        pe(f"v_bfe_u32 v{T}, v{vL}, 2, 1")
        pe(f"v_and_b32 v{T+1}, 3, v{vL}")
        pe(f"s_lshl_b32 s{sT0}, s{sW}, 2")
        pe(f"v_add_u32 v{T+1}, s{sT0}, v{T+1}")
        pe(f"v_cmp_gt_u32 vcc, 8, v{vL}")
        pe(f"v_lshl_add_u32 v{T+1}, v{T}, 4, v{T+1}")
        pe(f"v_and_b32 v{T}, 1, v{vL}")
        pe(f"v_lshl_add_u32 v{T}, v{T}, 4, 3")
        pe(f"v_cndmask_b32 v{vF23A}, v{T}, v{T+1}, vcc")
        pe(f"v_lshlrev_b32 v{vF23A}, 7, v{vF23A}")
        pe(f"s_lshl_b32 s{sM2+1}, s{sRB0}, 11")
        pe(f"s_add_u32 s{sM2+1}, s{sM2+1}, {F_BASE+1024*128}")
        pe(f"v_add_u32 v{self.vA1H}, {112*1024}, v{vLIN}")
        pe(f"v_add_u32 v{self.vA1O}, {32*1024}, v{vLIN}")
        pe(f"s_mul_i32 s{sAEND}, s{sRB0}, 112")
        pe(f"s_mul_i32 s{sT0}, s{sW}, 28")
        pe(f"s_add_u32 s{sAEND}, s{sAEND}, s{sT0}")
        pe(f"s_lshl_b32 s{sAEND}, s{sAEND}, 10")
        pe(f"s_add_u32 s{sAEND}, s{sAEND}, {H_BASE}")
        pe(f"s_lshl_b32 s{sAOFF}, s{sROT2}, 11")
        pe(f"s_add_u32 s{sAOFF}, s{sAOFF}, s{sAEND}")
        pe(f"s_add_u32 s{sAEND}, s{sAEND}, {28*1024}")
        pe(f"v_and_b32 v{vGA}, 31, v{vL}")
        pe(f"v_lshlrev_b32 v{vGA}, 2, v{vGA}")
        pe(f"s_cmp_lt_u32 s{sLOC}, 28")
        pe(f"s_cselect_b32 s{sAOFF}, s{sAOFF}, {OOB}")

    def a_load(self, p, queued=True):
        out = []
        if p == 14:
            out.append(f"s_lshl_b32 s{sAOFF}, s{sRB0}, 2")
            out.append(f"s_add_u32 s{sAOFF}, s{sAOFF}, s{sW}")
            out.append(f"s_lshl_b32 s{sAOFF}, s{sAOFF}, 13")
            out.append(f"s_add_u32 s{sAOFF}, s{sAOFF}, {O_BASE}")
        for ks in range(2):
            for rb in range(2):
                ad = vLIN if rb == 0 else (self.vA1H if p < 14 else self.vA1O)
                out.append(f"buffer_load_dwordx4 {v(self.ar(p,2*ks+rb),4)}, v{ad}, {s(S_WS,4)}, s{sAOFF} offen offset:{1024*ks} sc1")
        out.append(f"s_add_u32 s{sAOFF}, s{sAOFF}, 2048")
        if p < 13:
            out.append(f"s_cmp_eq_u32 s{sAOFF}, s{sAEND}")
            out.append(f"s_cselect_b32 s{sM2}, {28*1024}, 0")
            out.append(f"s_sub_u32 s{sAOFF}, s{sAOFF}, s{sM2}")
        for t in out:
            self.pe(t) if queued else self.e(t)

    def de_start(self):
        e = self.e
        self.nlab += 1
        n = self.nlab
        self.a.need(self.tPoll)
        e(f"s_cmp_ge_u32 s{sLOC}, 28")
        e(f"s_cbranch_scc1 L_nopoll{n}")
        self.poll_check(vF23A, f"s{sM2+1}")
        self.a.label(f"L_nopoll{n}")
        e(f"s_lshl_b32 s{sT0}, s{sRB0}, 7")
        e(f"s_add_u32 s{sT0}, s{sT0}, {G_BASE}")
        e(f"s_cmp_lt_u32 s{sLOC}, 28")
        e(f"s_cselect_b32 s{sT0}, s{sT0}, {OOB}")
        for p in range(3):
            self.a_load(p)
        for rb in range(2):
            self.pe(f"buffer_load_dword v{self.vG+rb}, v{vGA}, {s(S_WS,4)}, s{sT0} offen offset:{128*rb} sc1")

    def de(self):
        e, pe = self.e, self.pe
        e(f"s_cmp_ge_u32 s{sLOC}, 28")
        e("s_cbranch_scc1 L_idle")
        vAB, vAA, vBI = 144, 208, 208
        accb = lambda rb, t: vAB + 32 * rb + 16 * t
        acca = lambda rb, t: (208, 224, 240, 40)[2 * rb + t]
        self.a_load(3, queued=False)
        self.a.need(self.tB2)
        e(f"v_lshrrev_b32 v{vTBL}, 5, v{vL}")
        e(f"v_lshlrev_b32 v{vTBL}, 3, v{vTBL}")
        e(f"v_add_u32 v{vTBL}, {TB2 - TB2 % 2048}, v{vTBL}")
        e(f"s_cmp_eq_u32 s{sW}, 0")
        e(f"s_cselect_b32 s{sT1}, 1.0, 0")
        self.bias_init(vBI, TB2, factor=f"s{sT1}")
        while self.bnext < 16:
            self.b_step()
        self.drain()
        self.stamp()
        for p in range(18):
            if p == 2:
                self.push(lambda: self.a.need(*self.tO))
                self.push(lambda: self.publish(f"s{sMA}"))
                self.b_read(16)
            if p == 3:
                self.b_read(17)
            if p == 6:
                pe(f"s_add_u32 s{sM2+1}, s{sM2+1}, {1024*128}")
                self.push(lambda: self.poll_issue(vF23A, f"s{sM2+1}"))
            for ks in range(2):
                for rb in range(2):
                    for t in range(2):
                        acc = v(accb(rb, t) if p < 14 else acca(rb, t), 16)
                        C = acc
                        if p == 0 and ks == 0:
                            C = v(vBI + 16 * t, 16)
                        if p == 14 and ks == 0:
                            C = "0"
                        e(f"v_mfma_f32_32x32x16_bf16 {acc}, {a_(16*(p%16)+8*ks+4*t,4)}, {v(self.ar(p,2*ks+rb),4)}, {C}")
                        self.fill(16)
            self.drain()
            if p + 4 < 18:
                if p + 4 == 14:
                    self.poll_check(vF23A, f"s{sM2+1}")
                self.a_load(p + 4)
        self.stamp()
        e(f"s_mul_i32 s{sT0}, s{sW}, 12288")
        e(f"s_add_u32 s{sT0}, s{sT0}, {RED}")
        e(f"v_add_u32 v24, s{sT0}, v{vLIN}")
        e(f"v_mov_b32 v12, v{self.vG}")
        e(f"v_mov_b32 v13, v{self.vG}")
        e(f"v_mov_b32 v14, v{self.vG+1}")
        e(f"v_mov_b32 v15, v{self.vG+1}")
        for qd in range(4):
            rb, t = qd >> 1, qd & 1
            A, B = acca(rb, t), accb(rb, t)
            for k in range(8):
                e(f"v_pk_add_f32 {v(A+2*k,2)}, {v(A+2*k,2)}, {v(B+2*k,2)} neg_lo:[0,1] neg_hi:[0,1]")
            for k in range(8):
                e(f"v_pk_fma_f32 {v(B+2*k,2)}, {v(A+2*k,2)}, {v(12+2*rb,2)}, {v(B+2*k,2)}")
        for w in range(4):
            if w:
                self.a.label(f"L_wr{w}")
            if w < 3:
                e(f"s_cmp_lg_u32 s{sW}, {w}")
                e(f"s_cbranch_scc1 L_wr{w+1}")
            for d in range(1, 4):
                qd = (w + d) & 3
                for k in range(4):
                    e(f"ds_write_b128 v24, {v(vAB+16*qd+4*k,4)} offset:{(d-1)*4096+k*1024}")
            for k in range(8):
                e(f"v_mov_b64 {v(64+2*k,2)}, {v(vAB+16*w+2*k,2)}")
            e("s_waitcnt lgkmcnt(0)")
            if w < 3:
                e("s_branch L_wrdone")
        self.a.label("L_wrdone")
        for d in range(1, 4):
            e(f"s_sub_u32 s{sT0}, s{sW}, {d}")
            e(f"s_and_b32 s{sT0}, s{sT0}, 3")
            e(f"s_mul_i32 s{sT0}, s{sT0}, 12288")
            e(f"s_add_u32 s{sT0}, s{sT0}, {RED+(d-1)*4096}")
            e(f"v_add_u32 v{24+d}, s{sT0}, v{vLIN}")
        e(f"s_lshr_b32 s{sT0}, s{sW}, 1")
        e(f"s_add_u32 s{sT0}, s{sT0}, s{sRB0}")
        e(f"s_mul_i32 s{sT0}, s{sT0}, {32*896}")
        e(f"s_lshl_b32 s{sT1}, s{sCT}, 1")
        e(f"s_and_b32 s{sT2}, s{sW}, 1")
        e(f"s_add_u32 s{sT1}, s{sT1}, s{sT2}")
        e(f"s_lshl_b32 s{sT1}, s{sT1}, 6")
        e(f"s_add_u32 s{sT0}, s{sT0}, s{sT1}")
        e(f"v_and_b32 v28, 31, v{vL}")
        e(f"v_mul_u32_u24 v28, 896, v28")
        e(f"v_lshrrev_b32 v29, 5, v{vL}")
        e(f"v_lshl_add_u32 v28, v29, 4, v28")
        e("s_barrier")
        for d in range(1, 4):
            for k in range(4):
                e(f"ds_read_b128 {v(64+16*d+4*k,4)}, v{24+d} offset:{k*1024}")
        for d in range(1, 4):
            for k in range(8):
                e(f"v_pk_add_f32 {v(64+2*k,2)}, {v(64+2*k,2)}, {v(64+16*d+2*k,2)}")
        for k in range(8):
            e(f"v_cvt_pk_bf16_f32 v{32+k}, v{64+2*k}, v{64+2*k+1}")
        for hh in range(2):
            for d in range(2):
                e(f"v_permlane32_swap_b32 v{32+4*hh+d}, v{32+4*hh+2+d}")
            e(f"buffer_store_dwordx4 {v(32+4*hh,4)}, v28, {s(S_OUT,4)}, s{sT0} offen offset:{32*hh}")
        self.stamp()
        self.write_stamps()
        e("s_endpgm")
        self.a.label("L_idle")
        e("s_waitcnt vmcnt(0)")
        self.publish(f"s{sMA}")
        e("s_cmp_lg_u32 s2, 248")
        e("s_cbranch_scc1 L_end")
        e(f"s_cmp_lg_u32 s{sW}, 0")
        e("s_cbranch_scc1 L_end")
        e(f"v_lshlrev_b32 v24, 7, v{vL}")
        e(f"s_mov_b32 s{sT0}, {F_BASE}")
        e(f"s_mov_b32 s{sSPIN}, 0")
        self.a.label("L_ep")
        e(f"buffer_load_dword v25, v24, {s(S_WS,4)}, s{sT0} offen sc1")
        e(f"s_add_u32 s{sSPIN}, s{sSPIN}, 1")
        e("s_waitcnt vmcnt(0)")
        e(f"v_cmp_ne_u32 vcc, v{vT}, v25")
        e(f"s_cmp_gt_u32 s{sSPIN}, 0x20000")
        e("s_cbranch_scc1 L_epd")
        e("s_cbranch_vccnz L_ep")
        e(f"s_add_u32 s{sT0}, s{sT0}, 8192")
        e(f"s_cmp_lt_u32 s{sT0}, {F_BASE+1024*128}")
        e("s_cbranch_scc1 L_ep")
        self.a.label("L_epd")
        e(f"s_mov_b32 s{sT0}, {E_OFF}")
        self.publish(f"s{sT0}")

    def write_stamps(self):
        if not OPT["stamps"]:
            return
        e = self.e
        e(f"s_lshl_b32 s{sT0}, s2, 2")
        e(f"s_add_u32 s{sT0}, s{sT0}, s{sW}")
        e(f"s_lshl_b32 s{sT0}, s{sT0}, 6")
        e(f"s_add_u32 s{sT0}, s{sT0}, {ST_BASE}")
        for k in range(16):
            e(f"v_mov_b32 v{40+k}, " + (f"s{STREGS[k]}" if k < self.nst else "0"))
        for k in range(4):
            e(f"buffer_store_dwordx4 {v(40+4*k,4)}, v{vL0}, {s(S_WS,4)}, s{sT0} offen offset:{16*k}")
        if OPT["dbg"]:
            for k in range(1, 16):
                e(f"v_subrev_u32 v{40+k}, s{STREGS[0]}, v{40+k}")
            e(f"s_lshl_b32 s{sT0}, s2, 2")
            e(f"s_add_u32 s{sT0}, s{sT0}, s{sW}")
            e(f"s_cmp_eq_u32 s{sT0}, {OPT['dbg']}")
            e(f"s_cselect_b32 s{sT0}, 0, {OOB}")
            e(f"s_mov_b32 s{S_B1+2}, 256")
            e(f"s_mov_b32 s{S_B1}, s{S_GW}")
            e(f"s_mov_b32 s{S_B1+1}, s{S_GW+1}")
            for k in range(4):
                e(f"buffer_store_dwordx4 {v(40+4*k,4)}, v{vL0}, {s(S_B1,4)}, s{sT0} offen offset:{16*k}")

    def build(self):
        self.prologue()
        self.phase1()
        self.attention()
        self.de()
        self.a.label("L_end")
        self.e("s_endpgm")
        self.a.finalize()
        body = self.a.text() + "\n" + "\n".join(t if t.endswith(":") else "    " + t for t in self.tail) + "\nL_code_end:\n    s_endpgm\n"
        head = f"""; Fused gated mix: sliding-window attention branch + GELU FFN branch, one persistent launch.
; @launch grid=(256,1,1) block=(256,1,1) lds={LDS_SIZE}
.amdgcn_target "amdgcn-amd-amdhsa--gfx950"
.text
.globl {NAME}_kernel
.p2align 8
.type {NAME}_kernel,@function
{NAME}_kernel:
"""
        foot = f""".section .rodata,"a"
.p2align 6
.amdhsa_kernel {NAME}_kernel
  .amdhsa_next_free_vgpr 512
  .amdhsa_next_free_sgpr 102
  .amdhsa_accum_offset 256
  .amdhsa_group_segment_fixed_size 0
  .amdhsa_kernarg_size 96
  .amdhsa_user_sgpr_count 2
  .amdhsa_user_sgpr_kernarg_segment_ptr 1
  .amdhsa_system_sgpr_workgroup_id_x 1
  .amdhsa_float_denorm_mode_32 3
.end_amdhsa_kernel
"""
        return head + body + foot


if __name__ == "__main__":
    g = Gen()
    txt = g.build()
    out = sys.argv[1] if len(sys.argv) > 1 else f"cdna_kernels/{NAME}.s"
    open(out, "w").write(txt)
    kinds = {}
    for i in g.a.ins:
        kinds[i.kind] = kinds.get(i.kind, 0) + 1
    print(out, g.a.stats, kinds)
```

```python
import re

REG_RE = re.compile(r"^(-|abs\()?([vas])(\d+|\[(\d+):(\d+)\])\)?$")
TRANS = ("v_exp_f32", "v_log_f32", "v_rcp_f32", "v_rsq_f32", "v_sqrt_f32", "v_sin_f32", "v_cos_f32")


def regs_of(op):
    op = op.strip()
    if op == "vcc":
        return {"vcc"}
    if op in ("exec", "m0"):
        return {op}
    m = REG_RE.match(op)
    if not m:
        return set()
    k = m.group(2)
    if m.group(4) is not None:
        return {f"{k}{i}" for i in range(int(m.group(4)), int(m.group(5)) + 1)}
    return {f"{k}{int(m.group(3))}"}


class Ins:
    __slots__ = ("text", "mn", "kind", "w", "r", "a", "b", "c", "states", "skippable", "wide", "note")

    def __init__(self, text):
        self.text = text
        self.skippable = False
        self.note = ""
        t = text.split(";")[0].strip()
        self.w, self.r = set(), set()
        self.a = self.b = self.c = set()
        self.states = 1
        self.wide = False
        if t.endswith(":"):
            self.mn, self.kind, self.states = t, "label", 0
            return
        if t.startswith("."):
            self.mn, self.kind, self.states = t, "dir", 0
            return
        parts = t.split(None, 1)
        mn = parts[0]
        self.mn = mn
        rest = parts[1] if len(parts) > 1 else ""
        ops = [o.strip() for o in rest.split(",")] if rest else []
        mods = ""
        if ops:
            sp = ops[-1].split(None, 1)
            ops[-1] = sp[0]
            mods = sp[1] if len(sp) > 1 else ""
        R = [regs_of(o) for o in ops]
        base = re.sub(r"_e(32|64)$", "", mn)
        if mn.startswith("v_mfma"):
            self.kind = "mfma"
            self.w = R[0]
            self.a, self.b, self.c = R[1], R[2], R[3]
            self.r = R[1] | R[2] | R[3]
        elif mn.startswith("v_cmp"):
            self.kind = "valu"
            self.w = R[0]
            self.r = set().union(*R[1:])
        elif base in ("v_readfirstlane_b32", "v_readlane_b32"):
            self.kind = "valu"
            self.w = R[0]
            self.r = set().union(*R[1:])
        elif base.startswith("v_permlane"):
            self.kind = "valu"
            self.w = R[0] | R[1]
            self.r = R[0] | R[1]
        elif mn.startswith("v_"):
            self.kind = "trans" if base in TRANS else "valu"
            if base == "v_nop":
                return
            self.w = set(R[0])
            self.r = set().union(*R[1:]) if len(R) > 1 else set()
            if base.startswith(("v_fmac", "v_pk_fmac", "v_dot2c", "v_writelane")):
                self.r |= R[0]
            if base in ("v_add_co_u32", "v_sub_co_u32", "v_addc_co_u32"):
                self.w |= R[1]
        elif mn.startswith("buffer_load"):
            if re.search(r"\blds\b", mods):
                self.kind = "dma"
                self.r = R[0] | R[1] | R[2] | {"m0"}
            else:
                self.kind = "vload"
                self.w = R[0]
                self.r = R[1] | R[2] | R[3]
        elif mn.startswith("buffer_store"):
            self.kind = "vstore"
            self.r = R[0] | R[1] | R[2] | R[3]
            self.a = R[0]
            self.wide = mn.endswith(("x3", "x4"))
        elif mn.startswith("ds_read"):
            self.kind = "dsread"
            self.w = R[0]
            self.r = R[1]
        elif mn.startswith("ds_write"):
            self.kind = "dswrite"
            self.r = set().union(*R)
        elif mn == "s_waitcnt":
            self.kind = "wait"
        elif mn == "s_nop":
            self.kind = "nop"
            self.states = int(ops[0]) + 1
        elif mn == "s_barrier":
            self.kind = "barrier"
        elif mn.startswith(("s_branch", "s_cbranch")):
            self.kind = "branch"
            if "vcc" in mn:
                self.r = {"vcc"}
        elif mn in ("s_endpgm", "s_sleep", "s_setprio"):
            self.kind = "salu"
        elif mn.startswith(("s_load", "s_memtime", "s_memrealtime")):
            self.kind = "smem"
            self.w = R[0]
            self.r = set().union(*R[1:]) if len(R) > 1 else set()
        elif mn.startswith(("s_cmp", "s_bitcmp")):
            self.kind = "salu"
            self.r = set().union(*R)
        elif mn.startswith("s_"):
            self.kind = "salu"
            self.w = R[0]
            self.r = set().union(*R[1:]) if len(R) > 1 else set()
        else:
            raise ValueError("unknown instruction: " + text)


def _isv(s):
    return {x for x in s if x[0] in "va" and x != "vcc"}


def _iss(s):
    return {x for x in s if x == "vcc" or (x[0] == "s")}


def hazard(p, c):
    need = 0
    pv = p.kind in ("valu", "trans")
    cv = c.kind in ("valu", "trans")
    cmem = c.kind in ("vload", "vstore", "dma", "dsread", "dswrite")
    if pv:
        wv, ws = _isv(p.w), _iss(p.w)
        if c.kind == "mfma" and wv & c.r:
            need = max(need, 2)
        if cv and c.mn.startswith(("v_readfirstlane", "v_readlane")) and wv & c.r:
            need = max(need, 1)
        if cv and c.mn.startswith("v_permlane") and wv & c.r:
            need = max(need, 2)
        if p.kind == "trans" and (c.kind == "valu" or cmem) and wv & c.r:
            need = max(need, 1)
        if ws:
            if c.kind in ("vload", "vstore", "dma") and ws & c.r:
                need = max(need, 5)
            if cv and ws & c.r:
                need = max(need, 2)
            if c.kind in ("salu", "branch") and ws & c.r:
                need = max(need, 1)
    if p.kind == "mfma":
        if c.kind == "mfma":
            if p.w & (c.a | c.b):
                need = max(need, 12)
            if p.w & c.c and p.w != c.c:
                need = max(need, 10)
            if p.w & c.w and not (p.w == c.w and c.c == c.w):
                need = max(need, 10)
        elif cv or cmem:
            if p.w & (c.r | c.w):
                need = max(need, 12)
            if p.c & c.w:
                need = max(need, 7)
    if p.kind == "salu" and "m0" in p.w and c.kind == "dma":
        need = max(need, 1)
    if p.kind == "vstore" and p.wide and p.a & c.w:
        need = max(need, 2)
    return need


class Asm:
    def __init__(self):
        self.ins = []
        self.vm = []
        self.lg = []
        self.ntok = 0
        self.skip = False
        self.stats = {"vmwait": 0, "lgwait": 0}
        self.clk = 0
        self.mf_free = 0
        self.pipe_free = 0
        self.lds_free = 0
        self.allv = []
        self.done = {}
        self.next_lat = None
        self.stall = {}
        self.busy = 0
        self.log = []
        self.p_svc, self.p_st, self.p_lat, self.p_win = 72, 220, 560, 8

    def _st(self, kind, until, text):
        d = until - self.clk
        if d > 0:
            self.stall[kind] = self.stall.get(kind, 0) + d
            if d >= 120:
                self.log.append(f"   t={self.clk:6d} stall {d:5d} {kind:6s} {text[:100]}")
            self.clk = until

    def vm_free(self):
        return not self.allv or self.allv[-1][0] <= self.clk

    def est(self, toks):
        return max([self.done.get(k, 0) for k in toks if k is not None] or [0])

    def _model(self, i, tok):
        k = i.kind
        if k == "mfma":
            self.clk = max(self.clk, self.mf_free)
            self.mf_free = self.clk + 32
            self.clk += 8
        elif k == "trans":
            self.clk += 8
        elif k == "valu":
            if i.mn.startswith("v_pk"):
                self.clk = max(self.clk, self.mf_free + 12)
            self.clk += 4
        elif k in ("vload", "dma", "vstore"):
            wide = "x4" in i.mn
            store = k == "vstore"
            svc = (self.p_st if store else self.p_svc) if wide else (30 if store else 20)
            if "s[12:15]" in i.text:
                svc = self.p_svc * 4 // 3
            lat = self.next_lat or (800 if store else self.p_lat)
            self.next_lat = None
            if self.allv:
                self._st("vissue", self.allv[-1][0], i.text)
            start = max(self.clk, self.pipe_free)
            big = [x for x in self.allv[-40:] if x[2]]
            if wide and len(big) >= self.p_win:
                start = max(start, big[-self.p_win][1])
            self.pipe_free = start + svc
            self.busy += svc
            comp = max(start + lat, (self.allv[-1][1] + (0 if store else svc)) if self.allv else 0)
            self.allv.append((start, comp, wide))
            self.done[tok] = comp
            self.clk += 8
        elif k in ("dsread", "dswrite"):
            svc = 16 if "b128" in i.mn or "read2" in i.mn else 8
            if k == "dswrite" and "b128" in i.mn:
                svc = 52
            self._st("lds", self.lds_free - 2 * svc, i.text)
            s0 = max(self.clk, self.lds_free)
            self.lds_free = s0 + svc
            self.done[tok] = s0 + svc + 56
            self.clk += 4
        elif k == "barrier":
            self.clk += 20
        elif k == "nop":
            self.clk += 4 * i.states
        elif k not in ("label", "dir", "wait"):
            self.clk += 4

    def _push(self, i):
        i.skippable = self.skip
        self.ins.append(i)

    def _wait(self, vm=None, lg=None):
        parts = []
        if vm is not None:
            vm = min(vm, 63)
            if vm < len(self.vm):
                self._st("vmwait", self.done[self.vm[len(self.vm) - vm - 1][0]], f"vmcnt({vm})")
                self.vm = self.vm[len(self.vm) - vm:] if vm else []
                parts.append(f"vmcnt({vm})")
                self.stats["vmwait"] += 1
        if lg is not None:
            lg = min(lg, 15)
            if lg < len(self.lg):
                self._st("lgwait", self.done[self.lg[len(self.lg) - lg - 1][0]], f"lgkmcnt({lg})")
                self.lg = self.lg[len(self.lg) - lg:] if lg else []
                parts.append(f"lgkmcnt({lg})")
                self.stats["lgwait"] += 1
        if parts:
            assert not self.skip, "wait inside a skippable region"
            last = self.ins[-1] if self.ins else None
            if last is not None and last.kind == "wait" and last.note == "auto":
                old = dict(re.findall(r"(vmcnt|lgkmcnt)\((\d+)\)", last.text))
                for k, v in re.findall(r"(vmcnt|lgkmcnt)\((\d+)\)", " ".join(parts)):
                    old[k] = min(int(v), int(old.get(k, 99)))
                last.text = "s_waitcnt " + " ".join(f"{k}({v})" for k, v in old.items())
                return
            w = Ins("s_waitcnt " + " ".join(parts))
            w.note = "auto"
            self._push(w)
            self.clk += 4

    def _after(self, q, pred):
        for n, e in enumerate(reversed(q)):
            if pred(e):
                return n
        return None

    def e(self, text):
        i = Ins(text)
        touch = i.r | i.w
        if touch and i.kind != "smem":
            self._wait(self._after(self.vm, lambda e: e[1] & touch), self._after(self.lg, lambda e: e[1] & touch))
        self._push(i)
        tok = None
        if i.kind in ("vload", "vstore", "dma"):
            assert not self.skip
            self.ntok += 1
            tok = self.ntok
            self.vm.append((tok, set(i.w)))
            assert len(self.vm) <= 63, "more than 63 vector-memory ops outstanding"
        elif i.kind in ("dsread", "dswrite"):
            assert not self.skip
            self.ntok += 1
            tok = self.ntok
            self.lg.append((tok, set(i.w)))
        elif i.kind == "wait":
            m = re.search(r"vmcnt\((\d+)\)", text)
            if m:
                n = int(m.group(1))
                if n < len(self.vm):
                    self._st("vmwait", self.done[self.vm[len(self.vm) - n - 1][0]], text)
                self.vm = self.vm[max(0, len(self.vm) - n):] if n else []
            m = re.search(r"lgkmcnt\((\d+)\)", text)
            if m:
                n = int(m.group(1))
                if n < len(self.lg):
                    self._st("lgwait", self.done[self.lg[len(self.lg) - n - 1][0]], text)
                self.lg = self.lg[max(0, len(self.lg) - n):] if n else []
            self.clk += 4
        self._model(i, tok)
        return tok

    def need(self, *toks):
        s = {t for t in toks if t is not None}
        self._wait(self._after(self.vm, lambda e: e[0] in s), self._after(self.lg, lambda e: e[0] in s))

    def label(self, name):
        self._push(Ins(name + ":"))

    def comment(self, t):
        i = Ins(".p2align 0")
        i.text = "; " + t
        self._push(i)

    def finalize(self):
        out = []
        nops = 0
        for c in self.ins:
            if c.kind in ("label", "dir"):
                out.append(c)
                continue
            need = 0
            for view in (0, 1):
                dist = 0
                for p in reversed(out):
                    if dist >= 20:
                        break
                    if view == 1 and p.skippable and not c.skippable:
                        continue
                    h = hazard(p, c) if p.kind not in ("label", "dir") else 0
                    if h > dist:
                        need = max(need, h - dist)
                    dist += p.states
            while need > 0:
                n = min(need, 16)
                np_ = Ins(f"s_nop {n-1}")
                np_.skippable = c.skippable
                np_.note = "haz"
                out.append(np_)
                nops += n
                need -= n
            out.append(c)
        self.stats["nop_states"] = nops
        self.ins = out
        return out

    def text(self):
        return "\n".join(("" if i.kind == "label" else "    ") + i.text for i in self.ins)


def v(a, n=1):
    return f"v{a}" if n == 1 else f"v[{a}:{a+n-1}]"


def a_(a, n=1):
    return f"a{a}" if n == 1 else f"a[{a}:{a+n-1}]"


def s(a, n=1):
    return f"s{a}" if n == 1 else f"s[{a}:{a+n-1}]"
```

```python
import math, struct, sys
from collections import deque
sys.path.insert(0, "tools")
from asmlib import Asm, Ins, v, a_, s

NAME = "gated_mix__sliding_block__dense_activation_gelu__prompt"
OPT = dict(stamps=0, dbg=0, npairs=6, probe=0, poll1=20, poll2=4, chk2=7, poll3=7, norot=0, log=0,
           miss=480, pub1=13, svc=64, st=160, lat=480, win=8, strip=0, rot1=0, rot2=2)
for arg in sys.argv[2:]:
    k, val = arg.split("=")
    assert k in OPT, k
    OPT[k] = int(val)


def fbits(x):
    return struct.unpack("<I", struct.pack("<f", x))[0]


QKV_BASE, H_BASE, O_BASE, G_BASE = 0, 0x600000, 0xD00000, 0xF00000
F_BASE, E_OFF, ST_BASE, WS_SIZE = 0xF10000, 0xF80000, 0xFA0000, 0x1000000
F1, F2, F3, F0 = F_BASE, F_BASE + 1024 * 128, F_BASE + 2048 * 128, F_BASE + 3072 * 128
OOB = 0x40000000
TAG_STEP = 0x6B43A9B7
R_A, R_Q, R_B, RING = 0, 57344, 106496, 57344
KV = R_B
XST = 106496
TB1, DUMMY, TB2, RED = 163328, 159744, 0, 8192
LDS_SIZE = 163840
S_CODE, S_X, S_WQ, S_W1, S_WS, S_W2, S_WO, S_OUT, S_B1, S_B2, S_GW, S_DBG = 4, 8, 12, 16, 20, 24, 28, 32, 36, 40, 44, 96
sMX = 3
sW, sC, sLIGHT, sUA, sUB, sJ, sRB0, sCT, sLOC, sRB, sQB, sFIRST = range(48, 60)
sT0, sT1, sT2, sT3 = 60, 61, 62, 63
sHI, sM, sG = 64, 66, 68
sCA, sCB, sBT = 75, 76, 77
sMQ, sMA, sMAS, sMB, sRING = 78, 79, 80, 81, 82
sBOFF, sBEND, sAOFF, sAEND, sKV0 = 83, 84, 85, 86, 87
sM3, sF2O, sSPIN = 88, 90, 91
sQS, sHA, sHB, sF1, sGS, sF0P = 0, 1, 4, 5, 6, 7
sKOFF, sMKV, sQOFF, sOS, sF3P, sF0R, sK2 = 36, 37, 38, 39, 44, 45, 46
sGQ, sGD, sNQ, sOUT = 92, 93, 94, 95
sP0 = 100
vL, vLIN, vT, vL0, vK1, vST = 0, 1, 2, 3, 4, 5
vTRQ, vTRF0, vTRF1 = 6, 7, 8
vW1A0, vW1A1, vPV = 9, 10, 11
vBD = 12
vBT0, vBT1 = 16, 17
vF1A, vF23A = 18, 19
vWQ = 20
vPOLL, vGA, vGATE = 20, 21, 22
vTBL = 23
vTMP = 24
vXD, vXR = 32, 36
vWR = 40
vACC = 64
vX = 144
vQ, vS, vCD, vM0, vM8, vO, vP, vMX = 96, 144, 176, 192, 208, 224, 240, 248
vKR, vVR, vKA, vVA = 40, 136, 6, 7
vAB, vBI, vA1H, vA1O, vG = 144, 208, 8, 9, 10

C_GELU = -2.0 * math.sqrt(2.0 / math.pi) * math.log2(math.e)
K1, K2 = fbits(C_GELU), fbits(C_GELU * 0.044715)
QSCALE = fbits(math.log2(math.e) / math.sqrt(28.0))
NINF = 0xFF800000
MFMA = "v_mfma_f32_32x32x16_bf16"


class Item:
    def __init__(self, text, sink=None, pre=(), post=(), m0=None, after=None, lat=None):
        self.text = [text] if isinstance(text, str) else text
        self.sink, self.pre, self.post, self.m0, self.after, self.lat = sink, pre, post, m0, after, lat
        self.vm = self.text[0].startswith("buffer")
        self.done = False


class Gen:
    def __init__(self):
        self.a = Asm()
        self.a.p_svc, self.a.p_st, self.a.p_lat, self.a.p_win = OPT['svc'], OPT['st'], OPT['lat'], OPT['win']
        self.q = deque()
        self.P, self.C, self.B = deque(), deque(), deque()
        self.tail = []
        self.nst = self.nlab = self.nmark = 0
        self.marks = set()
        self.m0 = None
        self.hooks = {}

    def e(self, t):
        return self.a.e(t)

    def emit_item(self, st):
        it = st.popleft()
        c0 = len(self.a.ins)
        if it.after:
            toks = it.after()
            assert toks is not None, "forced item whose producers are not emitted: " + it.text[0]
            self.a.need(*toks)
        for t in it.pre:
            self.e(t)
        if it.m0 and it.m0 != self.m0:
            reg, imm = it.m0[:2]
            self.e(f"s_mov_b32 m0, {imm}" if reg is None else f"s_add_u32 m0, s{reg}, {imm}" if imm else f"s_mov_b32 m0, s{reg}")
            self.m0 = it.m0
        for t in it.text:
            self.a.next_lat = it.lat
            k = self.e(t)
            if it.sink is not None:
                it.sink.append(k)
        for t in it.post:
            self.e(t)
        it.done = True
        return 4 * (len(self.a.ins) - c0) + (4 if it.vm else 0)

    def side(self):
        a = self.a
        for st in (self.P, self.C, self.B):
            if not st:
                continue
            it = st[0]
            if not (a.vm_free() if it.vm else a.lds_free - a.clk <= 8):
                continue
            if it.after:
                toks = it.after()
                if toks is None or a.est(toks) > a.clk:
                    continue
            return self.emit_item(st)
        return 0

    def force(self, st, it=None):
        while st and (it is None or not it.done):
            self.emit_item(st)

    def m(self, t):
        k = self.e(t)
        if not t.startswith(("s_cmp", "s_cselect", "v_cmp")):
            self.side()
        return k

    def push(self, fn, cost=4):
        self.q.append((fn, cost))

    def pe(self, t):
        cost = 8 if Ins(t).kind == "trans" else 4
        if t.startswith("s_cselect"):
            fn, c = self.q.pop()
            assert getattr(fn, "scc", False), "s_cselect must follow its s_cmp directly: " + t
            g = lambda fn=fn, t=t: (fn(), self.e(t))
            g.scc = True
            self.q.append((g, c + cost))
            return
        f = lambda t=t: self.e(t)
        f.scc = t.startswith("s_cmp")
        self.q.append((f, cost))

    def gap(self, budget):
        budget -= self.side()
        while self.q and budget >= min(self.q[0][1], 8):
            fn, c = self.q.popleft()
            fn()
            budget -= c

    def drain(self, name=None):
        while (self.q if name is None else name not in self.marks):
            self.q.popleft()[0]()
            self.side()

    def mark(self, name):
        self.push(lambda: self.marks.add(name), 0)

    def hook(self, name):
        fn = self.hooks.pop(name, None)
        if fn:
            fn()

    def stamp(self, name="", group=1):
        if group == 1:
            self.a.log.append(f"{self.a.clk:6d} {name}  (pipe busy {self.a.busy})")
        if (OPT["stamps"] == group or (OPT["stamps"] and self.nst == 0)) and self.nst < 16:
            clk = self.a.clk
            self.e(f"s_memtime {s(sM3,2)}")
            self.e("s_waitcnt lgkmcnt(0)")
            self.e(f"v_writelane_b32 v{vST}, s{sM3}, {self.nst}")
            self.a.clk = clk
            self.nst += 1
        if group == 1:
            self.nmark += 1
            if OPT["probe"] == self.nmark:
                self.e(f"s_memtime {s(sM3,2)}")
                self.e("s_waitcnt lgkmcnt(0)")
                self.e(f"s_mov_b32 s{sP0+1}, s{sM3}")

    def poll_item(self, addr, soff):
        it = Item(f"buffer_load_dword {v(vPOLL)}, {v(addr)}, {s(S_WS,4)}, {soff} offen sc1", lat=OPT["miss"])
        self.P.append(it)
        return it

    def poll_check(self, addr, soff):
        self.force(self.P)
        self.nlab += 1
        n = self.nlab
        if OPT["stamps"]:
            self.e(f"s_mov_b32 s{sSPIN}, 0")
        self.e(f"v_cmp_ne_u32 vcc, {v(vT)}, {v(vPOLL)}")
        self.e(f"s_cbranch_vccnz L_slow{n}")
        self.a.label(f"L_back{n}")
        if OPT["stamps"]:
            self.npoll = getattr(self, "npoll", 0) + 1
            self.e(f"v_writelane_b32 v{vST}, s{sSPIN}, {15 + self.npoll}")
        self.tail += [f"L_slow{n}:", f"s_mov_b32 s{sSPIN}, 0", f"L_spin{n}:",
                      f"buffer_load_dword {v(vPOLL)}, {v(addr)}, {s(S_WS,4)}, {soff} offen sc1",
                      f"s_add_u32 s{sSPIN}, s{sSPIN}, 1",
                      "s_waitcnt vmcnt(0)",
                      f"v_cmp_ne_u32 vcc, {v(vT)}, {v(vPOLL)}",
                      f"s_cmp_gt_u32 s{sSPIN}, 0x20000",
                      f"s_cbranch_scc1 L_back{n}",
                      f"s_cbranch_vccnz L_spin{n}",
                      f"s_branch L_back{n}"]

    def pub_text(self, soff):
        return f"buffer_store_dword {v(vT)}, {v(vL0)}, {s(S_WS,4)}, s{soff} offen sc1"

    def publish(self, soff, toks, n, pre=()):
        it = Item(self.pub_text(soff), pre=pre, after=lambda: toks if len(toks) == n else None)
        self.P.append(it)
        return it

    def prologue(self):
        e, m = self.e, self.m
        e("s_cmp_ge_u32 s2, 256")
        e("s_cbranch_scc1 L_end")
        if OPT["probe"]:
            e(f"s_memtime {s(sP0,2)}")
        for srd, off in ((S_X, 0), (S_WQ, 8), (S_WS, 88), (S_GW, 64), (S_B1, 40), (S_W1, 32), (S_W2, 48), (S_WO, 16), (S_B2, 56), (S_OUT, 72)):
            e(f"s_load_dwordx2 {s(srd,2)}, s[0:1], {off}")
        if OPT["dbg"]:
            e(f"s_load_dwordx2 {s(S_DBG,2)}, s[0:1], 80")
        e(f"s_getpc_b64 {s(S_CODE,2)}")
        self.a.label("L_pc")
        e(f"s_lshr_b32 s{sLOC}, s2, 3")
        e(f"v_lshrrev_b32 v1, 6, v0")
        e(f"v_and_b32 v{vL}, 63, v0")
        e(f"s_and_b32 s{sT0}, s{sLOC}, 7")
        e(f"v_readfirstlane_b32 s{sW}, v1")
        e(f"s_mov_b32 s{S_CODE+2}, L_code_end-L_pc")
        e(f"s_mov_b32 s{S_CODE+3}, 0x20000")
        e(f"v_and_b32 v24, 7, v{vL}")
        e(f"v_lshl_add_u32 v24, v1, 3, v24")
        e(f"v_lshlrev_b32 v24, 7, v24")
        e(f"s_lshl_b32 s{sT1}, s{sT0}, 12")
        e(f"buffer_load_dword v25, v24, {s(S_CODE,4)}, s{sT1} offen")
        e(f"s_lshr_b32 s{sT1}, s{sLOC}, 3")
        e(f"s_bfe_u32 s{sRB}, s2, 0x20001")
        e(f"s_lshl_b32 s{sRB}, s{sRB}, 2")
        e(f"s_add_u32 s{sRB}, s{sRB}, s{sT1}")
        e(f"s_and_b32 s{sC}, s2, 1")
        e(f"s_lshl_b32 s{sC}, s{sC}, 3")
        e(f"s_add_u32 s{sC}, s{sC}, s{sT0}")
        e(f"s_lshl_b32 s{sT1}, s{sT1}, 1")
        e(f"s_add_u32 s{sT0}, s{sT0}, s{sT1}")
        e(f"s_sub_u32 s{sT1}, s{sT0}, 7")
        e(f"s_cmp_ge_u32 s{sT0}, 7")
        e(f"s_cselect_b32 s{sG}, s{sT1}, s{sT0}")
        if OPT["rot1"] == 0:
            e(f"s_mov_b32 s{sG}, 0")
        if OPT["rot1"] == 2:
            e(f"s_and_b32 s{sT0}, s2, 7")
            e(f"s_cmp_eq_u32 s{sT0}, 7")
            e(f"s_cselect_b32 s{sG}, 0, s{sT0}")
        e(f"s_lshl_b32 s{sRB}, s{sRB}, 2")
        e(f"s_add_u32 s{sRB}, s{sRB}, s{sW}")
        for srd, size in ((S_X, 2048 * 896), (S_WQ, 448 * 2688)):
            e(f"s_mov_b32 s{srd+2}, {size}")
            e(f"s_mov_b32 s{srd+3}, 0x20000")
        e(f"v_lshrrev_b32 v24, 3, v{vL}")
        e(f"s_lshl_b32 s{sT0}, s{sRB}, 5")
        e(f"v_add_u32 v24, s{sT0}, v24")
        e(f"v_mul_u32_u24 v24, 896, v24")
        e(f"v_lshrrev_b32 v26, 4, v{vL}")
        e(f"v_and_b32 v27, 7, v{vL}")
        e(f"v_xor_b32 v26, v26, v27")
        e(f"v_lshl_add_u32 v{vXD}, v26, 4, v24")
        e(f"v_xor_b32 v{vXD+1}, 64, v{vXD}")
        e(f"v_add_u32 v{vXD+2}, {2*(7168-1024)}, v{vXD}")
        e(f"v_add_u32 v{vXD+3}, {3*(7168-1024)}, v{vXD+1}")
        e(f"v_add_u32 v{vXD+1}, {7168-1024}, v{vXD+1}")
        e(f"s_mul_i32 s{sMX}, s{sW}, 12288")
        e(f"s_add_u32 s{sRING}, s{sMX}, {RED}")
        e(f"s_add_u32 s{sMX}, s{sMX}, {XST}")
        e(f"s_mul_i32 s{sT0}, s{sC}, 168")
        e(f"s_and_b32 s{sT0}, s{sT0}, 0xfffffff0")
        e(f"s_mul_i32 s{sT1}, s{sW}, {16*2688}")
        e(f"s_add_u32 s{sT0}, s{sT0}, s{sT1}")
        for i in range(3):
            e(f"v_add_u32 v24, {64*i}, v{vL}")
            e(f"v_mul_u32_u24 v26, 171, v24")
            e(f"v_lshrrev_b32 v26, 11, v26")
            e(f"v_mul_u32_u24 v27, 12, v26")
            e(f"v_sub_u32 v24, v24, v27")
            e(f"v_min_u32 v24, 10, v24")
            e(f"v_mul_u32_u24 v26, 2688, v26")
            e(f"v_lshl_add_u32 v24, v24, 4, v26")
            e(f"v_add_u32 v{vWQ+i}, s{sT0}, v24")
            if i < 2:
                e(f"s_sub_u32 s{sT0}, s{sT0}, 1024")
        e(f"s_mul_i32 s{sMQ}, s{sW}, {16*192}")
        e(f"s_add_u32 s{sMQ}, s{sMQ}, {R_Q}")
        e("s_waitcnt lgkmcnt(0)")
        self.a.clk = 0
        self.stamp("kernarg")
        self.ctok, self.wtok, self.xrd, self.ftok = {}, {}, {}, {}
        self.add_chunk(0)
        self.force(self.C)
        for i in range(1, 7):
            e(f"s_add_u32 s{sT0}, s{sG+i-1}, 1")
            e(f"s_cmp_eq_u32 s{sT0}, 7")
            e(f"s_cselect_b32 s{sG+i}, 0, s{sT0}")
        for srd, size in ((S_WS, WS_SIZE), (S_GW, 896), (S_B1, 3584), (S_W1, 448 * 3584), (S_B2, 896), (S_OUT, 2048 * 896)):
            e(f"s_mov_b32 s{srd+2}, {size}")
            e(f"s_mov_b32 s{srd+3}, 0x20000")
        e(f"s_lshr_b32 s{sLIGHT}, 0x1248, s{sC}")
        e(f"s_and_b32 s{sLIGHT}, s{sLIGHT}, 1")
        e(f"s_bfm_b32 s{sT0}, s{sC}, 0")
        e(f"s_and_b32 s{sT0}, s{sT0}, 0x1248")
        e(f"s_bcnt1_i32_b32 s{sT0}, s{sT0}")
        e(f"s_lshl_b32 s{sUA}, s{sC}, 1")
        e(f"s_sub_u32 s{sUA}, s{sUA}, s{sT0}")
        e(f"s_add_u32 s{sUB}, s{sUA}, 1")
        e(f"s_sub_u32 s{sUB}, s{sUB}, s{sLIGHT}")
        e(f"v_mov_b32 v24, {E_OFF}")
        self.a.next_lat = OPT["miss"]
        e(f"buffer_load_dword v{vT}, v24, {s(S_WS,4)}, 0 offen sc1")
        e(f"s_lshl_b32 s{sT0}, s{sW}, 6")
        e(f"v_add_u32 v26, s{sT0}, v{vL}")
        e(f"s_lshl_b32 s{sT1}, s{sG}, 6")
        for h in range(2):
            e(f"v_add_u32 v27, s{sT1}, v26")
            if h:
                e(f"v_add_u32 v27, 256, v27")
            e(f"v_subrev_u32 v28, 448, v27")
            e(f"v_min_u32 v27, v27, v28")
            e(f"v_lshlrev_b32 v27, 1, v27")
            e(f"buffer_load_ushort v{30+h}, v27, {s(S_GW,4)}, 0 offen")
        e(f"s_lshl_b32 s{sT0}, s{sUA}, 7")
        e(f"s_cmp_eq_u32 s{sLIGHT}, 1")
        e(f"s_cselect_b32 s{sT0}, {OOB}, s{sT0}")
        e(f"s_lshl_b32 s{sT1}, s{sUB}, 7")
        e(f"s_sub_u32 s{sT1}, s{sT1}, 128")
        e(f"s_mov_b32 s{sHI}, 0")
        e(f"s_mov_b32 s{sHI+1}, -1")
        e(f"v_mov_b32 v27, s{sT0}")
        e(f"v_mov_b32 v28, s{sT1}")
        e(f"v_cndmask_b32 v27, v27, v28, {s(sHI,2)}")
        e(f"v_lshl_add_u32 v27, v{vL}, 2, v27")
        e(f"s_mov_b32 m0, {TB1}")
        self.m0 = None
        self.tB1 = e(f"buffer_load_dword v27, {s(S_B1,4)}, 0 offen lds")
        self.add_chunk(1)
        self.add_chunk(2)
        m(f"v_lshlrev_b32 v{vLIN}, 4, v{vL}")
        m(f"v_bfe_u32 v24, v{vL}, 2, 2")
        m(f"v_lshrrev_b32 v27, 5, v{vL}")
        m(f"v_bfe_u32 v28, v{vL}, 4, 1")
        m(f"v_and_b32 v29, 3, v{vL}")
        m(f"v_lshlrev_b32 v29, 3, v29")
        m(f"v_lshl_add_u32 v29, v28, 5, v29")
        m(f"v_lshl_add_u32 v40, v27, 3, v24")
        m(f"v_mul_u32_u24 v41, 192, v40")
        m(f"s_and_b32 s{sT0}, s{sC}, 1")
        m(f"s_lshl_b32 s{sT0}, s{sT0}, 3")
        m(f"s_add_u32 s{sT0}, s{sT0}, {R_Q}")
        m(f"v_add3_u32 v{vTRQ}, v41, v29, s{sT0}")
        m(f"v_lshrrev_b32 v41, 1, v24")
        m(f"v_lshl_add_u32 v29, v41, 6, v29")
        m(f"v_lshl_add_u32 v{vTRF0}, v40, 7, v29")
        m(f"v_xor_b32 v{vTRF1}, 64, v{vTRF0}")
        m(f"v_lshl_add_u32 v40, v27, 2, v24")
        m(f"v_lshl_add_u32 v40, v40, 7, v29")
        m(f"v_add_u32 v{vBT0}, s{sRING}, v40")
        m(f"v_xor_b32 v{vBT1}, 64, v{vBT0}")
        m(f"v_and_b32 v40, 31, v{vL}")
        m(f"v_bfe_u32 v41, v{vL}, 1, 3")
        m(f"v_xor_b32 v41, v41, v27")
        m(f"v_lshlrev_b32 v41, 4, v41")
        m(f"v_lshl_add_u32 v40, v40, 7, v41")
        m(f"v_add_u32 v{vXR}, s{sMX}, v40")
        for k in range(1, 4):
            m(f"v_xor_b32 v{vXR+k}, {32*k}, v{vXR}")
        m(f"v_lshlrev_b32 v{vTBL}, 3, v27")
        m(f"v_add_u32 v{vTBL}, {TB1 - TB1 % 2048}, v{vTBL}")
        m(f"v_and_b32 v40, 3, v{vL}")
        m(f"v_lshl_add_u32 v40, v27, 2, v40")
        m(f"v_bfe_u32 v41, v{vL}, 2, 3")
        m(f"v_lshl_add_u32 v40, v41, 3, v40")
        m(f"v_lshlrev_b32 v{vPV}, 4, v40")
        m(f"v_cmp_eq_u32 vcc, 0, v{vL}")
        m(f"v_mov_b32 v40, {OOB}")
        m(f"v_mov_b32 v{vK1}, {K1}")
        m(f"v_cndmask_b32 v{vL0}, v40, 0, vcc")
        m(f"s_and_b32 s{sT0}, s2, 7")
        m(f"s_and_b32 s{sT1}, s{sLOC}, 1")
        m(f"s_lshl_b32 s{sJ}, s{sT0}, 1")
        m(f"s_add_u32 s{sJ}, s{sJ}, s{sT1}")
        m(f"s_mul_i32 s{sT1}, s{sLOC}, 37")
        m(f"s_lshr_b32 s{sT1}, s{sT1}, 8")
        m(f"s_mul_i32 s{sCT}, s{sT1}, 7")
        m(f"s_sub_u32 s{sCT}, s{sLOC}, s{sCT}")
        m(f"s_lshl_b32 s{sRB0}, s{sT0}, 2")
        m(f"s_add_u32 s{sRB0}, s{sRB0}, s{sT1}")
        m(f"s_lshl_b32 s{sRB0}, s{sRB0}, 1")
        m(f"s_lshl_b32 s{sT1}, s{sT1}, 2")
        m(f"s_lshr_b32 s{sT1}, 0xa370, s{sT1}")
        m(f"s_and_b32 s{sT1}, s{sT1}, 15")
        m(f"s_lshl_b32 s{sT3}, s{sCT}, 1")
        m(f"s_add_u32 s{sT3}, s{sT3}, s{sT1}")
        m(f"s_sub_u32 s{sT1}, s{sT3}, 14")
        m(f"s_cmp_ge_u32 s{sT3}, 14")
        m(f"s_cselect_b32 s{sT3}, s{sT1}, s{sT3}")
        if OPT["rot2"] == 0:
            m(f"s_mov_b32 s{sT3}, 0")
        if OPT["rot2"] == 2:
            m(f"s_and_b32 s{sT3}, s2, 7")
            m(f"s_mul_i32 s{sT3}, s{sT3}, 7")
            m(f"s_lshr_b32 s{sT3}, s{sT3}, 2")
        if OPT["rot2"] == 3:
            m(f"s_lshl_b32 s{sT3}, s{sCT}, 1")
        m(f"s_mul_i32 s{sBEND}, s{sW}, {448*896}")
        m(f"s_mul_i32 s{sBOFF}, s{sT3}, {32*896}")
        m(f"s_add_u32 s{sBOFF}, s{sBOFF}, s{sBEND}")
        m(f"s_add_u32 s{sBEND}, s{sBEND}, {448*896}")
        m(f"s_mul_i32 s{sAEND}, s{sRB0}, 112")
        m(f"s_mul_i32 s{sT0}, s{sW}, 28")
        m(f"s_add_u32 s{sAEND}, s{sAEND}, s{sT0}")
        m(f"s_lshl_b32 s{sAEND}, s{sAEND}, 10")
        m(f"s_add_u32 s{sAEND}, s{sAEND}, {H_BASE}")
        m(f"s_lshl_b32 s{sAOFF}, s{sT3}, 11")
        m(f"s_add_u32 s{sAOFF}, s{sAOFF}, s{sAEND}")
        m(f"s_add_u32 s{sAEND}, s{sAEND}, {28*1024}")
        m(f"s_lshl_b32 s{sGD}, s{sRB0}, 7")
        m(f"s_add_u32 s{sGD}, s{sGD}, {G_BASE}")
        m(f"s_cmp_lt_u32 s{sLOC}, 28")
        m(f"s_cselect_b32 s{S_W2+2}, {1792*896}, 0")
        m(f"s_cselect_b32 s{S_WO+2}, {448*896}, 0")
        m(f"s_cselect_b32 s{sAOFF}, s{sAOFF}, {OOB}")
        m(f"s_cselect_b32 s{sGD}, s{sGD}, {OOB}")
        m(f"s_mov_b32 s{S_W2+3}, 0x20000")
        m(f"s_mov_b32 s{S_WO+3}, 0x20000")
        m(f"s_lshl_b32 s{sF2O}, s{sRB0}, 11")
        m(f"s_add_u32 s{sF2O}, s{sF2O}, {F2}")
        m(f"v_lshrrev_b32 v24, 3, v{vL}")
        m(f"v_lshlrev_b32 v28, 2, v28")
        m(f"v_and_b32 v29, 7, v{vL}")
        m(f"v_xor_b32 v28, v28, v29")
        m(f"v_lshlrev_b32 v28, 4, v28")
        m(f"v_mul_u32_u24 v29, 3584, v24")
        m(f"s_mul_i32 s{sT0}, s{sW}, {16*3584}")
        m(f"v_add3_u32 v{vW1A0}, v29, v28, s{sT0}")
        m(f"v_add_u32 v{vW1A1}, {8*3584-1024}, v{vW1A0}")
        m(f"v_mul_u32_u24 v29, 896, v24")
        m(f"s_lshl_b32 s{sT0}, s{sCT}, 7")
        m(f"v_add3_u32 v{vBD}, v29, v28, s{sT0}")
        for k in range(1, 4):
            m(f"v_add_u32 v{vBD+k}, {k*(7168-1024)}, v{vBD}")
        m(f"s_lshl_b32 s{sMB}, s{sW}, 11")
        m(f"s_sub_u32 s{sMA}, s{sMB}, {64*128 - R_A}")
        m(f"s_add_u32 s{sMB}, s{sMB}, {R_B}")
        m(f"s_mul_i32 s{sT0}, s{sC}, 3")
        m(f"s_sub_u32 s{sNQ}, 16, s{sT0}")
        m(f"s_lshl_b32 s{sT0}, s{sT0}, 6")
        m(f"s_add_u32 s{sT0}, s{sT0}, s{sRB}")
        m(f"s_lshl_b32 s{sQS}, s{sT0}, 11")
        m(f"s_mul_i32 s{sT1}, s{sRB}, 28")
        m(f"s_add_u32 s{sT0}, s{sT1}, s{sUB}")
        m(f"s_lshl_b32 s{sT0}, s{sT0}, 12")
        m(f"s_add_u32 s{sHB}, s{sT0}, {H_BASE}")
        m(f"s_sub_u32 s{sHA}, s{sHB}, 4096")
        m(f"s_lshl_b32 s{sUA}, s{sUA}, 7")
        m(f"s_lshl_b32 s{sUB}, s{sUB}, 7")
        m(f"s_cmp_eq_u32 s{sLIGHT}, 1")
        m(f"s_cselect_b32 s{sHA}, {OOB}, s{sHA}")
        m(f"s_cselect_b32 s{sUA}, {OOB}, s{sUA}")
        m(f"s_cselect_b32 s{sMA}, {DUMMY}, s{sMA}")
        m(f"s_cselect_b32 s{sMAS}, 0, {64*128}")
        m(f"s_lshl_b32 s{sT0}, s{sRB}, 4")
        m(f"s_add_u32 s{sT0}, s{sT0}, s{sC}")
        m(f"s_lshl_b32 s{sT0}, s{sT0}, 7")
        m(f"s_add_u32 s{sF1}, s{sT0}, {F1}")
        m(f"s_lshl_b32 s{sT0}, s{sRB}, 7")
        m(f"s_add_u32 s{sGS}, s{sT0}, {G_BASE}")
        m(f"s_add_u32 s{sF0P}, s{sT0}, {F0}")
        m(f"s_cmp_eq_u32 s{sC}, 3")
        m(f"s_cselect_b32 s{sGS}, s{sGS}, {OOB}")
        m(f"s_cselect_b32 s{sF0P}, s{sF0P}, {OOB}")
        m(f"s_lshr_b32 s{sT0}, s{sLOC}, 1")
        m(f"s_lshl_b32 s{sT0}, s{sT0}, 2")
        m(f"s_add_u32 s{sQB}, s{sT0}, s{sW}")
        m(f"s_sub_u32 s{sFIRST}, 8, s{sQB}")
        m(f"s_max_i32 s{sFIRST}, s{sFIRST}, 0")
        m(f"s_mul_i32 s{sT1}, s{sW}, 3")
        m(f"s_add_u32 s{sT0}, s{sT0}, s{sT1}")
        m(f"s_sub_u32 s{sKV0}, s{sT0}, 8")
        m(f"s_mul_i32 s{sT2}, s{sJ}, 43")
        m(f"s_lshr_b32 s{sT2}, s{sT2}, 7")
        m(f"s_lshl_b32 s{sT1}, s{sQB}, 4")
        m(f"s_add_u32 s{sT2}, s{sT1}, s{sT2}")
        m(f"v_mov_b32 v{vF1A}, s{sT2}")
        m(f"s_add_u32 s{sT1}, s{sT1}, s{sJ}")
        m(f"s_lshl_b32 s{sF3P}, s{sT1}, 7")
        m(f"s_add_u32 s{sF3P}, s{sF3P}, {F3}")
        m(f"s_lshl_b32 s{sOS}, s{sT1}, 11")
        m(f"s_add_u32 s{sOS}, s{sOS}, {O_BASE}")
        for part, add in ((0, 16), (1, 32)):
            m(f"s_add_u32 s{sT2}, s{sJ}, {add}")
            m(f"s_mul_i32 s{sT2}, s{sT2}, 43")
            m(f"s_lshr_b32 s{sT2}, s{sT2}, 7")
            m(f"v_subrev_u32 v40, {3*part}, v{vL}")
            m(f"v_add_u32 v41, s{sKV0}, v40")
            m(f"v_cmp_gt_u32 {s(sM,2)}, 3, v40")
            m(f"v_cmp_le_i32 vcc, 0, v41")
            m(f"v_lshl_add_u32 v41, v41, 4, s{sT2}")
            m(f"s_and_b64 {s(sM,2)}, {s(sM,2)}, vcc")
            m(f"v_cndmask_b32 v{vF1A}, v{vF1A}, v41, {s(sM,2)}")
        m(f"v_lshlrev_b32 v{vF1A}, 7, v{vF1A}")
        m(f"v_add_u32 v{vF1A}, {F1}, v{vF1A}")
        m(f"s_lshl_b32 s{sT0}, s{sJ}, 6")
        m(f"s_add_u32 s{sKOFF}, s{sT0}, s{sKV0}")
        m(f"s_lshl_b32 s{sKOFF}, s{sKOFF}, 11")
        m(f"s_add_u32 s{sQOFF}, s{sT0}, s{sQB}")
        m(f"s_lshl_b32 s{sQOFF}, s{sQOFF}, 11")
        m(f"s_mul_i32 s{sMKV}, s{sW}, 6144")
        m(f"s_lshl_b32 s{sT0}, s{sQB}, 7")
        m(f"s_add_u32 s{sF0R}, s{sT0}, {F0}")
        m(f"s_add_u32 s{sGQ}, s{sT0}, {G_BASE}")
        m(f"v_bfe_u32 v40, v{vL}, 2, 1")
        m(f"v_and_b32 v41, 3, v{vL}")
        m(f"s_lshl_b32 s{sT0}, s{sW}, 2")
        m(f"v_add_u32 v41, s{sT0}, v41")
        m(f"v_cmp_gt_u32 vcc, 8, v{vL}")
        m(f"v_lshl_add_u32 v41, v40, 4, v41")
        m(f"v_and_b32 v40, 1, v{vL}")
        m(f"v_lshl_add_u32 v40, v40, 4, 3")
        m(f"v_cndmask_b32 v{vF23A}, v40, v41, vcc")
        m(f"v_lshlrev_b32 v{vF23A}, 7, v{vF23A}")
        m(f"s_lshr_b32 s{sT0}, s{sW}, 1")
        m(f"s_add_u32 s{sT0}, s{sT0}, s{sRB0}")
        m(f"s_mul_i32 s{sT0}, s{sT0}, {32*896}")
        m(f"s_lshl_b32 s{sT1}, s{sCT}, 1")
        m(f"s_and_b32 s{sT2}, s{sW}, 1")
        m(f"s_add_u32 s{sT1}, s{sT1}, s{sT2}")
        m(f"s_lshl_b32 s{sT1}, s{sT1}, 6")
        m(f"s_add_u32 s{sOUT}, s{sT0}, s{sT1}")
        m(f"s_mov_b32 s{sK2}, {K2}")
        m(f"s_mov_b32 s{sK2+1}, {K2}")

    def add_chunk(self, i):
        toks = self.ctok[i] = []
        lx = OPT["miss"] + 300 if i < 1 else None
        lw = OPT["miss"] + 300 if i < 2 else None
        xs, ws = [], []
        for k in range(4):
            xs.append(Item(f"buffer_load_dwordx4 v{vXD+k}, {s(S_X,4)}, s{sCA} offen" + (f" offset:{1024*k}" if k else "") + " lds", toks,
                           pre=[f"s_lshl_b32 s{sCA}, s{sG+i}, 7"] if k == 0 else (), m0=(sMX, (i % 3) * 4096), lat=lx,
                           after=(lambda: self.xrd[i - 3] if len(self.xrd.get(i - 3, ())) == 4 else None) if i >= 3 and k == 0 else None))
        for k in range(3):
            ws.append(Item(f"buffer_load_dwordx4 v{vWQ+k}, {s(S_WQ,4)}, s{sCB} offen" + (f" offset:{1024*k}" if k else "") + " lds", toks,
                           pre=[f"s_mul_i32 s{sCB}, s{sG+i}, {64*2688}"] if k == 0 else (), m0=(sMQ, (i % 4) * 64 * 192), lat=lw))
        self.C.extend(xs + ws if i == 0 else ws + xs)
        self.clast = getattr(self, "clast", {})
        self.clast[i] = self.C[-1]

    def add_w1(self, unit, i):
        toks = self.wtok[(unit, i)] = []
        pre = [f"s_mul_i32 s{sCB}, s{sG+i}, {64*3584}", f"s_add_u32 s{sCB}, s{sCB}, s{sUA+unit}"]
        if unit == 0:
            pre.append(f"s_add_u32 s{sMA}, s{sMA}, s{sMAS}")
        for k in range(2):
            self.C.append(Item(f"buffer_load_dwordx4 v{vW1A0+k}, {s(S_W1,4)}, s{sCB} offen" + (" offset:1024" if k else "") + " lds", toks,
                               pre=pre if k == 0 else (), m0=(sMB, i * 8192) if unit else (sMA, 0, i),
                               lat=OPT["miss"] if i < 4 else None))
        self.wlast = getattr(self, "wlast", {})
        self.wlast[(unit, i)] = self.C[-1]

    def gate_write(self):
        pe = self.pe
        pe(f"s_cmp_eq_u32 s{sLIGHT}, 1")
        pe(f"s_cselect_b64 {s(sM,2)}, -1, 0")
        pe(f"v_bfe_u32 v27, v26, 1, 1")
        pe(f"v_lshlrev_b32 v28, 7, v26")
        pe(f"v_lshl_add_u32 v28, v27, 6, v28")
        pe(f"v_mov_b32 v29, {DUMMY+2048}")
        pe(f"v_cndmask_b32 v27, v29, v28, {s(sM,2)}")
        pe(f"v_cmp_gt_u32 vcc, 192, v26")
        pe(f"v_add_u32 v28, {256*128}, v28")
        pe(f"s_and_b64 {s(sM,2)}, {s(sM,2)}, vcc")
        pe(f"ds_write_b16 v27, v30")
        pe(f"v_cndmask_b32 v28, v29, v28, {s(sM,2)}")
        pe(f"ds_write_b16 v28, v31")

    def store_addr(self):
        pe = self.pe
        for n, lim in ((0, 11), (1, 10)):
            pe(f"s_cmp_ge_u32 s{sC}, {lim}")
            pe(f"s_cselect_b64 {s(sM,2)}, -1, 0")
            pe(f"s_cselect_b32 s{sT0}, 128, 0")
            pe(f"s_cselect_b32 s{sT1}, 0x3f80, 0")
            pe(f"v_cndmask_b32 v{24+2*n}, v{vLIN}, v{vPV}, {s(sM,2)}")
            pe(f"v_mov_b32 v{28+n}, s{sT1}")
            pe(f"v_xor_b32 v{25+2*n}, s{sT0}, v{24+2*n}")

    def bias_init(self, acc, tbl, factor=None):
        for t in range(2):
            for mm in range(2):
                o = (tbl % 2048) // 8 + 8 * t + 4 * mm
                self.pe(f"ds_read2_b64 {v(acc+16*t+8+4*mm,4)}, v{vTBL} offset0:{o} offset1:{o+2}")
        for t in range(2):
            for k in range(8):
                src, dst = acc + 16 * t + 8 + k, acc + 16 * t + 2 * k
                self.pe(f"v_lshlrev_b32 v{dst}, 16, v{src}")
                self.pe(f"v_and_b32 v{dst+1}, 0xffff0000, v{src}")
        if factor:
            for k in range(16):
                self.pe(f"v_pk_mul_f32 {v(acc+2*k,2)}, {v(acc+2*k,2)}, {factor}")

    def rd_q(self, sidx, t):
        base = vWR + 12 * (sidx & 1) + 4 * t
        o = 56 * t + (sidx % 16) * 3072
        return [self.e(f"ds_read_b64_tr_b16 {v(base+2*h,2)}, v{vTRQ} offset:{o+768*h}") for h in range(2)]

    def rd_f(self, g, t):
        base = vWR + 8 * (g % 3) + 4 * t
        toks = self.ftok.setdefault(g, [])
        for h in range(2):
            toks.append(self.e(f"ds_read_b64_tr_b16 {v(base+2*h,2)}, v{vTRF0+t} offset:{(g%28)*2048+512*h}"))

    def rd_x(self, sidx):
        self.xrd.setdefault(sidx // 4, []).append(self.e(f"ds_read_b128 {v(vX+4*sidx,4)}, v{vXR+sidx%4} offset:{(sidx//4%3)*4096}"))

    def sync(self, st, last, toks, drain_lds=True):
        self.force(st, last)
        while self.a.est(toks) > self.a.clk + 8 and self.side_wait(self.a.est(toks)):
            pass
        self.a.need(*toks)
        if drain_lds and self.a.lg:
            self.e("s_waitcnt lgkmcnt(0)")
        self.e("s_barrier")

    def side_wait(self, until):
        a = self.a
        for st in (self.P, self.C, self.B):
            if not st:
                continue
            it = st[0]
            t = a.allv[-1][0] if it.vm else a.clk
            if it.after:
                toks = it.after()
                if toks is None:
                    continue
                t = max(t, a.est(toks))
            if t + 8 <= until:
                self.emit_item(st)
                return True
        return False

    def qkv(self):
        e = self.e
        qtok = {}
        self.sync(self.C, self.clast[0], self.ctok[0])
        self.stamp("chunk 0")
        self.add_chunk(3)
        self.rd_x(0)
        self.rd_x(1)
        for t in range(3):
            qtok[(0, t)] = self.rd_q(0, t)
        for sidx in range(28):
            i = sidx // 4
            if sidx % 2 == 0:
                self.stamp(group=3)
            if sidx == 0:
                self.gate_write()
            if sidx == 4:
                self.push(lambda: self.a.need(self.tB1), 0)
                self.bias_init(vACC + 48, TB1)
            if sidx == 8:
                self.store_addr()
            for t in range(3):
                if t == 0:
                    self.a.need(*qtok[(sidx, 0)], *qtok[(sidx, 1)])
                acc = v(vACC + 16 * t, 16)
                e(f"{MFMA} {acc}, {v(vWR+12*(sidx&1)+4*t,4)}, {v(vX+4*sidx,4)}, {acc if sidx else 0}")
                if t == 0 and sidx % 4 == 3:
                    self.drain()
                    if sidx < 27:
                        self.sync(self.C, self.clast[i + 1], self.ctok[i + 1])
                        if i + 4 < 7:
                            self.add_chunk(i + 4)
                        if i + 4 == 6:
                            for k in range(7):
                                self.add_w1(0, k)
                    else:
                        self.sync(self.C, self.wlast[(0, 0)], self.wtok[(0, 0)])
                if sidx % 4 == 3 and sidx < 27 and t < 2:
                    self.rd_x(sidx + 1 + t)
                if sidx % 4 == 0 and t < 2:
                    self.rd_x(sidx + 2 + t)
                if sidx < 27:
                    qtok[(sidx + 1, t)] = self.rd_q(sidx + 1, t)
                elif t < 2:
                    self.rd_f(0, t)
                self.gap((12, 16, 12)[t] if sidx % 4 in (1, 2) else (4, 8, 12)[t])
        self.rd_f(1, 0)
        self.rd_f(1, 1)

    QPK = (vTMP + 8, vACC + 40, vACC + 32)

    def qkv_pack(self, t):
        pe = self.pe
        acc, dst = vACC + 16 * t, self.QPK[t]
        pe(f"s_cmp_gt_i32 s{sNQ}, {t}")
        pe(f"s_cselect_b32 s{sT1}, {QSCALE}, 1.0")
        for k in range(16):
            pe(f"v_mul_f32 v{acc+k}, s{sT1}, v{acc+k}")
        def store(half):
            pre = [f"s_add_u32 s{sCA}, s{sQS}, {t*64*2048}"] if half == 0 else ()
            self.C.append(Item(f"buffer_store_dwordx4 {v(dst+4*half,4)}, v{24+2*(t>>1)+half}, {s(S_WS,4)}, s{sCA} offen offset:{1024*half} sc1",
                               self.tQKV, pre=pre))
            self.lastS = self.C[-1]
        for k in range(8):
            pe(f"v_cvt_pk_bf16_f32 v{dst+k}, v{acc+2*k}, v{acc+2*k+1}")
            if k == 3:
                self.push(lambda: store(0), 0)
        pe(f"v_cndmask_b32 v{dst+6}, v{dst+6}, v{28+(t>>1)}, {s(sHI,2)}")
        pe(f"v_cndmask_b32 v{dst+7}, v{dst+7}, 0, {s(sHI,2)}")
        self.push(lambda: store(1), 0)

    def b_slot(self, p):
        return (RING - RED) + (p % 6) * 4096 if p % 6 < 3 else (p % 6 - 3) * 4096

    def b_dma(self, p):
        toks = self.btok[p] = []
        out = []
        pre, post, off = [], [], sBOFF
        if p >= 14:
            off = sBT
            pre = [f"s_mul_i32 s{sBT}, s{sW}, {112*896}"] + ([f"s_add_u32 s{sBT}, s{sBT}, {(p-14)*28*896}"] if p > 14 else [])
        elif p < 13:
            post = [f"s_add_u32 s{sBOFF}, s{sBOFF}, {32*896}", f"s_cmp_eq_u32 s{sBOFF}, s{sBEND}",
                    f"s_cselect_b32 s{sBT}, {448*896}, 0", f"s_sub_u32 s{sBOFF}, s{sBOFF}, s{sBT}"]
        for k in range(4):
            out.append(Item(f"buffer_load_dwordx4 v{vBD+k}, {s(S_W2 if p < 14 else S_WO,4)}, s{off} offen" + (f" offset:{1024*k}" if k else "") + " lds",
                            toks, pre=pre if k == 0 else (), post=post if k == 3 else (), m0=(sRING, self.b_slot(p)),
                            lat=OPT["miss"] if p < 4 or p >= 14 else None,
                            after=(lambda: self.btr[p - 6] if len(self.btr.get(p - 6, ())) == 8 else None) if k == 0 and p >= 6 else None))
        return out

    def b_read(self, p):
        toks = self.btr[p] = []
        out = []
        for ks in range(2):
            for t in range(2):
                out.append(Item([f"ds_read_b64_tr_b16 {a_(16*(p%16)+8*ks+4*t+2*h,2)}, v{vBT0+t} offset:{self.b_slot(p)+ks*2048+h*1024}" for h in range(2)],
                                toks, after=(lambda: self.btok[p] if len(self.btok[p]) == 4 else None) if ks + t == 0 else None))
        self.blast[p] = out[-1]
        return out

    def gelu_two(self, acc, soff, n, packed):
        pe = self.pe
        T = vTMP + 12
        U = [acc + 2 * n, acc + 2 * n + 2]
        R = [T, T + 2]
        if packed:
            for u, r in zip(U, R):
                pe(f"v_pk_mul_f32 {v(r,2)}, {v(u,2)}, {v(u,2)}")
                pe(f"v_pk_fma_f32 {v(r,2)}, {v(r,2)}, {s(sK2,2)}, {v(vK1,2)} op_sel_hi:[1,1,0]")
                pe(f"v_pk_mul_f32 {v(r,2)}, {v(r,2)}, {v(u,2)}")
            for k in range(4):
                pe(f"v_exp_f32 v{T+k}, v{T+k}")
            for r in R:
                pe(f"v_pk_add_f32 {v(r,2)}, {v(r,2)}, 1.0 op_sel_hi:[1,0]")
            for k in range(4):
                pe(f"v_rcp_f32 v{T+k}, v{T+k}")
            for u, r in zip(U, R):
                pe(f"v_pk_mul_f32 {v(r,2)}, {v(r,2)}, {v(u,2)}")
        else:
            u = U[0]
            for k in range(4):
                pe(f"v_mul_f32 v{T+k}, v{u+k}, v{u+k}")
                pe(f"v_fma_f32 v{T+k}, v{T+k}, s{sK2}, v{vK1}")
                pe(f"v_mul_f32 v{T+k}, v{T+k}, v{u+k}")
            for k in range(4):
                pe(f"v_exp_f32 v{T+k}, v{T+k}")
            for k in range(4):
                pe(f"v_add_f32 v{T+k}, 1.0, v{T+k}")
            for k in range(4):
                pe(f"v_rcp_f32 v{T+k}, v{T+k}")
            for k in range(4):
                pe(f"v_mul_f32 v{T+k}, v{T+k}, v{u+k}")
        for d in range(2):
            pe(f"v_cvt_pk_bf16_f32 v{acc+n+d}, v{T+2*d}, v{T+2*d+1}")
        if n % 4 == 2:
            fr = n // 4
            self.push(lambda: self.C.append(Item(
                f"buffer_store_dwordx4 {v(acc+4*fr,4)}, v{vLIN}, {s(S_WS,4)}, s{soff} offen offset:{fr*1024} sc1", self.tH)), 0)

    def ffn(self, unit):
        e = self.e
        acc0 = vACC + 48 if unit == 0 else vACC
        for sidx in range(28):
            g = 28 * unit + sidx
            if sidx % 4 == 0:
                self.stamp(group=2)
            self.hook(f"ffn{unit}_{sidx}")
            self.a.need(*self.ftok[g])
            for t in range(2):
                acc = v(acc0 + 16 * t, 16)
                e(f"{MFMA} {acc}, {v(vWR+8*(g%3)+4*t,4)}, {v(vX+4*sidx,4)}, {acc}")
                if t == 0 and sidx % 4 == 2:
                    if sidx < 26:
                        k = (unit, sidx // 4 + 1)
                        self.sync(self.C, self.wlast[k], self.wtok[k], drain_lds=False)
                    elif unit == 0:
                        self.drain("biasb")
                        self.sync(self.C, self.wlast[(1, 0)], self.wtok[(1, 0)])
                        e(f"v_add_u32 v{vTRF0}, {R_B-R_A}, v{vTRF0}")
                        e(f"v_add_u32 v{vTRF1}, {R_B-R_A}, v{vTRF1}")
                        self.add_w1(1, 6)
                        self.B.extend(self.b_dma(3) + self.b_dma(4) + self.b_dma(5))
                        for p in range(12):
                            self.B.extend(self.b_read(p) + self.b_dma(p + 6))
                        for p in range(12, 16):
                            self.B.extend(self.b_read(p))
                if g + 2 < 56:
                    self.rd_f(g + 2, t)
                self.gap((16, 12)[t])

    def phase1(self):
        e, pe, m = self.e, self.pe, self.m
        self.btok, self.btr, self.blast = {}, {}, {}
        self.tQKV, self.tH, tG = [], [], []
        self.qkv()
        self.stamp("qkv done")
        self.add_w1(1, 0)
        self.qkv_pack(2)
        self.push(lambda: self.add_w1(1, 1), 0)
        self.qkv_pack(1)
        self.qkv_pack(0)
        self.push(lambda: [self.add_w1(1, k) for k in range(2, 6)], 0)
        self.bias_init(vACC, TB1 + 128)
        pe(f"v_add_u32 v{vT}, {TAG_STEP}, v{vT}")
        self.mark("biasb")
        self.B.extend(self.b_dma(0) + self.b_dma(1) + self.b_dma(2))
        self.ffn(0)
        self.force(self.C, self.lastS)
        self.stamp("ffn a done")
        accA = vACC + 48
        pub1 = self.publish(sF1, self.tQKV, 6)
        pe(f"v_mul_f32 v{vGATE}, {fbits(-math.log2(math.e))}, v{accA}")
        pe(f"v_exp_f32 v{vGATE}, v{vGATE}")
        pe(f"v_and_b32 v{vGA}, 31, v{vL}")
        pe(f"v_add_f32 v{vGATE}, 1.0, v{vGATE}")
        pe(f"v_lshlrev_b32 v{vGA}, 2, v{vGA}")
        pe(f"v_rcp_f32 v{vGATE}, v{vGATE}")
        pe(f"v_mov_b32 v{vTMP}, {OOB}")
        pe(f"v_cndmask_b32 v{vTMP}, v{vGA}, v{vTMP}, {s(sHI,2)}")
        self.push(lambda: self.C.appendleft(Item(f"buffer_store_dword v{vGATE}, v{vTMP}, {s(S_WS,4)}, s{sGS} offen sc1", tG)), 0)
        self.push(lambda: self.publish(sF0P, tG, 1), 0)
        ga = deque(range(0, 16, 2))
        while ga and ga[0] < OPT["npairs"]:
            self.gelu_two(accA, sHA, ga.popleft(), False)
        self.hooks[f"ffn1_{OPT['pub1']}"] = lambda: self.force(self.P, pub1)
        self.hooks[f"ffn1_{OPT['poll1']}"] = lambda: self.poll_item(vF1A, 0)
        self.ffn(1)
        self.poll_check(vF1A, 0)
        e("s_barrier")
        self.att_loads()
        self.stamp("ffn b done")
        m(f"v_lshlrev_b32 v{vTMP+1}, 2, v{vL}")
        self.tB2 = []
        self.C.append(Item(f"buffer_load_dword v{vTMP+1}, {s(S_B2,4)}, s{sCB} offen lds", self.tB2,
                           pre=[f"s_lshl_b32 s{sCB}, s{sCT}, 7"], m0=(None, TB2), lat=OPT["miss"]))
        self.drain()
        for acc, soff, todo in ((accA, sHA, ga), (vACC, sHB, range(0, 16, 2))):
            for n in todo:
                self.gelu_two(acc, soff, n, True)
        self.drain()
        self.stamp("gelu done")

    def att_loads(self):
        self.tKV = []
        items = []
        for bb in range(3):
            for part in range(2):
                pre = ([f"s_add_u32 s{sCA}, s{sKOFF}, {16*64*2048+2048*bb}", f"s_cmp_lt_i32 s{sKV0}, {-bb}", f"s_cselect_b32 s{sCA}, {OOB}, s{sCA}"]
                       if part == 0 else [f"s_add_u32 s{sCA}, s{sCA}, {16*64*2048}"])
                for k in range(2):
                    items.append(Item(f"buffer_load_dwordx4 v{vLIN}, {s(S_WS,4)}, s{sCA} offen" + (" offset:1024" if k else "") + " sc1 lds",
                                      self.tKV, pre=pre if k == 0 else (), m0=(sMKV, KV + 24576 * part + 2048 * bb), lat=OPT["miss"]))
        for k in range(2):
            items.append(Item(f"buffer_load_dwordx4 {v(vQ+4*k,4)}, v{vLIN}, {s(S_WS,4)}, s{sQOFF} offen offset:{1024*k} sc1", self.tKV, lat=OPT["miss"]))
        self.C.extendleft(reversed(items))
        self.kvlast = items[-1]

    def rd_k(self, n):
        for k in range(2):
            self.m(f"ds_read_b128 {v(vKR+8*(n%3)+4*k,4)}, v{vKA} offset:{(n%9)*2048+k*1024}")

    def rd_v(self, i, st):
        for h in range(2):
            self.e(f"ds_read_b64_tr_b16 {v(vVR+4*st+2*h,2)}, v{vVA} offset:{i*2048+256*(2*st+h)}")

    def qk(self, i, k):
        S = v(vS + 16 * (i & 1), 16)
        C = S if k else v(vM0 if i == 0 else vM8 if i == 8 else vCD, 16)
        self.e(f"{MFMA} {S}, {v(vKR+8*(i%3)+4*k,4)}, {v(vQ+4*k,4)}, {C}")

    def patch(self, i, src):
        if not 2 <= i <= 7:
            return
        self.nlab += 1
        n = self.nlab
        self.e(f"s_cmp_eq_u32 s{sFIRST}, {i}")
        self.e(f"s_cbranch_scc1 L_pat{n}")
        self.a.label(f"L_patb{n}")
        self.tail += [f"L_pat{n}:", "s_nop 7"] + [f"v_mov_b32 v{vCD+k}, {src}" for k in range(16)] + ["s_nop 1", f"s_branch L_patb{n}"]

    def attention(self):
        e, pe, m = self.e, self.pe, self.m
        m(f"v_and_b32 v26, 31, v{vL}")
        m(f"v_lshrrev_b32 v27, 5, v{vL}")
        m(f"v_lshlrev_b32 v28, 2, v27")
        m(f"v_sub_u32 v26, v26, v28")
        m(f"s_cmp_gt_u32 s{sFIRST}, 0")
        m(f"s_cselect_b32 s{sT0}, {NINF}, 0")
        m(f"v_mov_b32 v28, s{sT0}")
        m(f"v_mov_b32 v29, {NINF}")
        m(f"s_cmp_gt_u32 s{sFIRST}, 1")
        m(f"s_cselect_b32 s{sT0}, {NINF}, 0")
        prs = (sM, sM3)
        for j0 in range(0, 16, 2):
            for d in range(2):
                jj = j0 + d
                m(f"v_cmp_le_i32 {s(prs[d],2)}, {(jj&3)+8*(jj>>2)}, v26")
            for d in range(2):
                m(f"v_mov_b32 v{vCD+j0+d}, s{sT0}")
            for d in range(2):
                jj = j0 + d
                m(f"v_cndmask_b32 v{vM8+jj}, v29, 0, {s(prs[d],2)}")
                m(f"v_cndmask_b32 v{vM0+jj}, v28, v29, {s(prs[d],2)}")
        m(f"s_lshl_b32 s{sT1}, s{sW}, 11")
        m(f"s_add_u32 s{sT1}, s{sT1}, {KV}")
        m(f"v_add_u32 v{vKA}, s{sT1}, v{vLIN}")
        m(f"v_bfe_u32 v28, v{vL}, 4, 1")
        m(f"v_xor_b32 v27, v27, v28")
        m(f"v_bfe_u32 v29, v{vL}, 2, 2")
        m(f"v_lshl_add_u32 v29, v27, 3, v29")
        m(f"v_and_b32 v27, 1, v{vL}")
        m(f"v_lshl_add_u32 v29, v27, 2, v29")
        m(f"v_lshlrev_b32 v29, 4, v29")
        m(f"v_lshl_add_u32 v29, v28, 10, v29")
        m(f"v_bfe_u32 v27, v{vL}, 1, 1")
        m(f"v_lshl_add_u32 v29, v27, 3, v29")
        m(f"s_add_u32 s{sT1}, s{sT1}, 24576")
        m(f"v_add_u32 v{vVA}, s{sT1}, v29")
        m(f"v_mov_b32 v{vMX}, {NINF}")
        m(f"v_mov_b32 v{vMX+1}, {NINF}")
        m(f"v_mov_b32 v{vF1A}, 0")
        m(f"v_add_u32 v{vA1H}, {112*1024}, v{vLIN}")
        m(f"v_add_u32 v{vA1O}, {32*1024}, v{vLIN}")
        self.sync(self.C, self.kvlast, self.tKV, drain_lds=False)
        self.stamp("kv in")
        self.poll_item(vF1A, f"s{sF0R}")
        pub2 = self.publish(sT3, self.tH, 8, pre=[f"s_add_u32 s{sT3}, s{sF1}, {F2-F1}"])
        self.rd_k(0)
        self.rd_k(1)
        for i in range(10):
            if i % 2 == 0:
                self.stamp(group=4)
            if i < 9:
                self.patch(i, "0")
                self.qk(i, 0)
                self.rd_k(i + 2)
                self.qk(i, 1)
            if i > 0:
                S = vS + 16 * ((i - 1) & 1)
                for k in range(8):
                    (m if k % 4 == 3 else e)(f"v_max3_f32 v{vMX+(k&1)}, v{S+2*k}, v{S+2*k+1}, v{vMX+(k&1)}")
        m(f"v_max_f32 v{vMX}, v{vMX}, v{vMX+1}")
        m(f"v_mov_b32 v{vMX+1}, v{vMX}")
        self.force(self.C)
        self.poll_check(vF1A, f"s{sF0R}")
        self.C.append(Item(f"buffer_load_dword v{vGATE}, v{vGA}, {s(S_WS,4)}, s{sGQ} offen sc1", lat=OPT["miss"]))
        m(f"v_permlane32_swap_b32 v{vMX}, v{vMX+1}")
        m(f"v_max_f32 v{vMX}, v{vMX}, v{vMX+1}")
        m(f"v_sub_f32 v{vMX}, 0, v{vMX}")
        for k in range(16):
            m(f"v_add_f32 v{vM0+k}, v{vM0+k}, v{vMX}")
        self.qk(0, 0)
        self.rd_k(2)
        self.qk(0, 1)
        m(f"v_add_f32 v{vMX+1}, s{sT0}, v{vMX}")
        for k in range(16):
            m(f"v_mov_b32 v{vCD+k}, v{vMX+1}")
        for k in range(16):
            m(f"v_add_f32 v{vM8+k}, v{vM8+k}, v{vMX}")
        self.stamp("pass 1 done")
        O = v(vO, 16)
        for i in range(9):
            S = vS + 16 * (i & 1)
            ex = lambda k: m(f"v_exp_f32 v{S+k}, v{S+k}")
            cv = lambda k: e(f"v_cvt_pk_bf16_f32 v{vP+k}, v{S+2*k}, v{S+2*k+1}")
            self.stamp(group=4)
            if i == OPT["poll2"]:
                self.poll_item(vF23A, f"s{sF2O}")
            if i == OPT["chk2"]:
                self.de_start()
            if i < 8:
                self.patch(i + 1, f"v{vMX}")
                self.qk(i + 1, 0)
            self.rd_v(i, 0)
            for k in range(3):
                ex(k)
            if i < 8:
                self.qk(i + 1, 1)
            self.rd_v(i, 1)
            for k in range(3, 9):
                ex(k)
            for k in range(4):
                cv(k)
            ex(9)
            ex(10)
            e(f"{MFMA} {O}, {v(vVR,4)}, {v(vP,4)}, {O if i else 0}")
            if i < 6:
                self.rd_k(i + 3)
            for k in range(11, 16):
                ex(k)
            for k in range(4, 8):
                cv(k)
            self.side()
            e(f"{MFMA} {O}, {v(vVR+4,4)}, {v(vP+4,4)}, {O}")
        self.a.need(*self.tB2)
        m(f"v_subrev_u32 v{vTBL}, {(TB1 - TB1 % 2048) - (TB2 - TB2 % 2048)}, v{vTBL}")
        m(f"s_cmp_eq_u32 s{sW}, 0")
        m(f"s_cselect_b32 s{sM}, 1.0, 0")
        m(f"s_mov_b32 s{sM+1}, s{sM}")
        self.bias_init(vCD, TB2, factor=s(sM, 2))
        for _ in range(12):
            self.q.popleft()[0]()
        m(f"v_mov_b32 v{vMX}, v{vO+12}")
        m(f"v_mov_b32 v{vMX+1}, v{vO+12}")
        m(f"v_permlane32_swap_b32 v{vMX}, v{vMX+1}")
        m(f"v_rcp_f32 v{vMX}, v{vMX+1}")
        m(f"v_mul_f32 v{vMX}, v{vMX}, v{vGATE}")
        for k in range(8):
            m(f"v_pk_mul_f32 {v(vO+2*k,2)}, {v(vO+2*k,2)}, {v(vMX,2)} op_sel_hi:[1,0]")
        self.tO = []
        for k in range(8):
            m(f"v_cvt_pk_bf16_f32 v{vP+k}, v{vO+2*k}, v{vO+2*k+1}")
            if k == 3:
                self.P.append(Item(f"buffer_store_dwordx4 {v(vP,4)}, v{vLIN}, {s(S_WS,4)}, s{sOS} offen sc1", self.tO))
        m(f"v_cndmask_b32 v{vP+6}, v{vP+6}, 0, {s(sHI,2)}")
        self.P.append(Item(f"buffer_store_dwordx4 {v(vP+4,4)}, v{vLIN}, {s(S_WS,4)}, s{sOS} offen offset:1024 sc1", self.tO))
        self.drain()
        self.force(self.P)
        self.stamp("attention done")

    def ar(self, p, k):
        return (64, 80, 104, 120)[p % 4] + 4 * k

    def a_load(self, p):
        pre = []
        if p == 14:
            pre = [f"s_lshl_b32 s{sAOFF}, s{sRB0}, 2", f"s_add_u32 s{sAOFF}, s{sAOFF}, s{sW}",
                   f"s_lshl_b32 s{sAOFF}, s{sAOFF}, 13", f"s_add_u32 s{sAOFF}, s{sAOFF}, {O_BASE}"]
        post = [f"s_add_u32 s{sAOFF}, s{sAOFF}, 2048"]
        if p < 13:
            post += [f"s_cmp_eq_u32 s{sAOFF}, s{sAEND}", f"s_cselect_b32 s{sCB}, {28*1024}, 0", f"s_sub_u32 s{sAOFF}, s{sAOFF}, s{sCB}"]
        for n in range(4):
            ks, rb = n >> 1, n & 1
            ad = vLIN if rb == 0 else (vA1H if p < 14 else vA1O)
            self.C.append(Item(f"buffer_load_dwordx4 {v(self.ar(p,n),4)}, v{ad}, {s(S_WS,4)}, s{sAOFF} offen offset:{1024*ks} sc1",
                               pre=pre if n == 0 else (), post=post if n == 3 else (), lat=OPT["miss"] if p < 2 or p in (14, 15) else None))
        self.alast[p] = self.C[-1]

    def de_start(self):
        e = self.e
        self.alast = {}
        self.nlab += 1
        n = self.nlab
        self.force(self.P)
        self.a.need(*[k for k, r in self.a.vm if f"v{vPOLL}" in r])
        e(f"s_cmp_ge_u32 s{sLOC}, 28")
        e(f"s_cbranch_scc1 L_nopoll{n}")
        self.poll_check(vF23A, f"s{sF2O}")
        self.a.label(f"L_nopoll{n}")
        for p in range(4):
            self.a_load(p)
        for rb in range(2):
            self.C.append(Item(f"buffer_load_dword v{vG+rb}, v{vGA}, {s(S_WS,4)}, s{sGD} offen offset:{128*rb} sc1", lat=OPT["miss"]))

    def de(self):
        e, pe, m = self.e, self.pe, self.m
        e(f"s_cmp_ge_u32 s{sLOC}, 28")
        e("s_cbranch_scc1 L_idle")
        self.publish(sF3P, self.tO, 2)
        vBI = vCD

        def mm(p, ks, qd):
            rb, t = qd >> 1, qd & 1
            acc = v(vAB + 16 * qd, 16)
            C = v(vBI + 16 * t, 16) if p == 0 and ks == 0 else acc
            e(f"{MFMA} {acc}, {a_(16*(p%16)+8*ks+4*t,4)}, {v(self.ar(p,2*ks+rb),4)}, {C}")

        def scale(qd, half):
            for k in range(8 * half, 8 * half + 8):
                e(f"v_mul_f32 v{vAB+16*qd+k}, v{vG+(qd>>1)}, v{vAB+16*qd+k}")

        for p in range(17):
            self.force(self.C, self.alast[p])
            self.force(self.B, self.blast[p])
            if p in (1, 2):
                self.B.extend(self.b_read(15 + p))
            if p == OPT["poll3"]:
                e(f"s_add_u32 s{sF2O}, s{sF2O}, {F3-F2}")
                self.poll_item(vF23A, f"s{sF2O}")
            if p == 11:
                for rb in range(2):
                    e(f"v_sub_f32 v{vG+rb}, 1.0, v{vG+rb}")
            if p in (13, 14):
                for n in range(8):
                    mm(p, n & 1, n >> 1)
                    k = n - 4 + 8 * (p - 13)
                    self.side()
                    if 0 <= k < 8:
                        scale(k >> 1, k & 1)
            else:
                for ks in range(2):
                    for qd in range(4):
                        mm(p, ks, qd)
                        self.side()
            if p + 4 < 18:
                if p + 4 == 14:
                    self.poll_check(vF23A, f"s{sF2O}")
                self.a_load(p + 4)
        self.force(self.C)
        self.force(self.B)
        self.stamp("pair 16 done")
        e(f"v_add_u32 v24, s{sRING}, v{vLIN}")
        for d in range(1, 4):
            e(f"s_sub_u32 s{sT0}, s{sW}, {d}")
            e(f"s_and_b32 s{sT0}, s{sT0}, 3")
            e(f"s_mul_i32 s{sT0}, s{sT0}, 12288")
            e(f"s_add_u32 s{sT0}, s{sT0}, {RED+(d-1)*4096}")
            e(f"v_add_u32 v{24+d}, s{sT0}, v{vLIN}")
        e(f"v_and_b32 v28, 31, v{vL}")
        e(f"v_mul_u32_u24 v28, 896, v28")
        e(f"v_lshrrev_b32 v29, 5, v{vL}")
        e(f"v_lshl_add_u32 v28, v29, 4, v28")
        self.a.need(*[k for k, _ in self.a.vm + self.a.lg])
        for w in range(4):
            clk = self.a.clk, self.a.mf_free, self.a.lds_free
            if w:
                self.a.label(f"L_wr{w}")
            if w < 3:
                e(f"s_cmp_lg_u32 s{sW}, {w}")
                e(f"s_cbranch_scc1 L_wr{w+1}")
            order = [(w + d) & 3 for d in (1, 2, 3, 4)]
            for n, qd in enumerate(order):
                mm(17, 0, qd)
                mm(17, 1, qd)
                if n >= 2:
                    for k in range(4):
                        e(f"ds_write_b128 v24, {v(vAB+16*order[n-2]+4*k,4)} offset:{(n-2)*4096+k*1024}")
            for k in range(4):
                e(f"ds_write_b128 v24, {v(vAB+16*order[2]+4*k,4)} offset:{2*4096+k*1024}")
            for k in range(8):
                e(f"v_mov_b64 {v(64+2*k,2)}, {v(vAB+16*w+2*k,2)}")
            e("s_waitcnt lgkmcnt(0)")
            if w < 3:
                e("s_branch L_wrdone")
                self.a.clk, self.a.mf_free, self.a.lds_free = clk
        self.a.label("L_wrdone")
        e("s_barrier")
        for d in range(1, 4):
            for k in range(4):
                e(f"ds_read_b128 {v(64+16*d+4*k,4)}, v{24+d} offset:{k*1024}")
        for d in range(1, 4):
            for k in range(8):
                e(f"v_pk_add_f32 {v(64+2*k,2)}, {v(64+2*k,2)}, {v(64+16*d+2*k,2)}")
        for k in range(8):
            e(f"v_cvt_pk_bf16_f32 v{32+k}, v{64+2*k}, v{64+2*k+1}")
        for hh in range(2):
            for d in range(2):
                e(f"v_permlane32_swap_b32 v{32+4*hh+d}, v{32+4*hh+2+d}")
            e(f"buffer_store_dwordx4 {v(32+4*hh,4)}, v28, {s(S_OUT,4)}, s{sOUT} offen offset:{32*hh}")
        self.stamp("end")
        self.write_stamps()
        e("s_endpgm")
        self.a.label("L_idle")
        e("s_waitcnt vmcnt(0)")
        e(self.pub_text(sF3P))
        e("s_cmp_lg_u32 s2, 248")
        e("s_cbranch_scc1 L_end")
        e(f"s_cmp_lg_u32 s{sW}, 0")
        e("s_cbranch_scc1 L_end")
        e(f"v_lshlrev_b32 v24, 7, v{vL}")
        e(f"s_mov_b32 s{sT0}, {F1}")
        e(f"s_mov_b32 s{sSPIN}, 0")
        self.a.label("L_ep")
        e(f"buffer_load_dword v25, v24, {s(S_WS,4)}, s{sT0} offen sc1")
        e(f"s_add_u32 s{sSPIN}, s{sSPIN}, 1")
        e("s_waitcnt vmcnt(0)")
        e(f"v_cmp_ne_u32 vcc, v{vT}, v25")
        e(f"s_cmp_gt_u32 s{sSPIN}, 0x20000")
        e("s_cbranch_scc1 L_epd")
        e("s_cbranch_vccnz L_ep")
        e(f"s_add_u32 s{sT0}, s{sT0}, 8192")
        e(f"s_cmp_lt_u32 s{sT0}, {F2}")
        e("s_cbranch_scc1 L_ep")
        self.a.label("L_epd")
        e(f"s_mov_b32 s{sT0}, {E_OFF}")
        e(self.pub_text(sT0))

    def write_stamps(self):
        e = self.e
        if OPT["probe"]:
            e(f"s_sub_u32 s{sT0}, s{sP0+1}, s{sP0}")
            e(f"s_lshl_b32 s{sT0}, s{sT0}, 2")
            e(f"s_add_u32 s{sT0}, s{sT0}, 72000")
            self.a.label("L_probe")
            e(f"s_memtime {s(sM3,2)}")
            e("s_waitcnt lgkmcnt(0)")
            e(f"s_sub_u32 s{sT1}, s{sM3}, s{sP0}")
            e(f"s_cmp_lt_u32 s{sT1}, s{sT0}")
            e("s_cbranch_scc1 L_probe")
        if not OPT["stamps"]:
            return
        e(f"s_lshl_b32 s{sT0}, s2, 2")
        e(f"s_add_u32 s{sT0}, s{sT0}, s{sW}")
        e(f"s_lshl_b32 s{sT1}, s{sT0}, 7")
        e(f"s_add_u32 s{sT1}, s{sT1}, {ST_BASE}")
        e(f"s_mov_b32 s{sT2}, {self.nst}")
        e(f"v_lshlrev_b32 v40, 2, v{vL}")
        e(f"v_writelane_b32 v{vST}, s{sT2}, 31")
        e(f"v_cmp_gt_u32 vcc, 32, v{vL}")
        e(f"v_mov_b32 v41, {OOB}")
        e(f"v_cndmask_b32 v40, v41, v40, vcc")
        e(f"buffer_store_dword v{vST}, v40, {s(S_WS,4)}, s{sT1} offen")
        if OPT["dbg"]:
            e(f"v_readfirstlane_b32 s{sT1}, v{vST}")
            e(f"s_cmp_eq_u32 s{sT0}, {OPT['dbg']}")
            e(f"s_cselect_b32 s{sT0}, 0, {OOB}")
            e(f"s_mov_b32 s{S_DBG+2}, 256")
            e(f"s_mov_b32 s{S_DBG+3}, 0x20000")
            e(f"v_subrev_u32 v{vST}, s{sT1}, v{vST}")
            e(f"buffer_store_dword v{vST}, v40, {s(S_DBG,4)}, s{sT0} offen")

    def build(self):
        self.prologue()
        self.phase1()
        self.attention()
        self.de()
        self.a.label("L_end")
        self.e("s_endpgm")
        if OPT["strip"]:
            keep, pro = [], True
            for i in self.a.ins:
                if i.kind == "barrier":
                    pro = False
                drop = i.kind in ("mfma", "trans", "dsread", "dswrite") or (
                    not pro and i.kind == "valu" and any(r[0] == "v" and r != "vcc" and int(r[1:]) >= 30 for r in i.w) and "v40" not in i.w and "v41" not in i.w)
                if OPT["strip"] == 2 and i.kind == "vstore" and "x4" in i.mn:
                    i = Ins(i.text.replace("offen", "offen").replace(f"v{vLIN},", f"v{vL0},").replace("v24,", f"v{vL0},").replace("v25,", f"v{vL0},").replace("v26,", f"v{vL0},").replace("v27,", f"v{vL0},"))
                if not drop:
                    keep.append(i)
            self.a.ins = keep
        self.a.finalize()
        body = self.a.text() + "\n" + "\n".join(t if t.endswith(":") else "    " + t for t in self.tail) + "\nL_code_end:\n    s_endpgm\n"
        head = f"""; Fused gated mix: sliding-window attention branch + GELU FFN branch, one persistent launch.
; @launch grid=(256,1,1) block=(256,1,1) lds={LDS_SIZE}
.amdgcn_target "amdgcn-amd-amdhsa--gfx950"
.text
.globl {NAME}_kernel
.p2align 8
.type {NAME}_kernel,@function
{NAME}_kernel:
"""
        foot = f""".section .rodata,"a"
.p2align 6
.amdhsa_kernel {NAME}_kernel
  .amdhsa_next_free_vgpr 512
  .amdhsa_next_free_sgpr 102
  .amdhsa_accum_offset 256
  .amdhsa_group_segment_fixed_size 0
  .amdhsa_kernarg_size 96
  .amdhsa_user_sgpr_count 2
  .amdhsa_user_sgpr_kernarg_segment_ptr 1
  .amdhsa_system_sgpr_workgroup_id_x 1
  .amdhsa_float_denorm_mode_32 3
.end_amdhsa_kernel
"""
        return head + body + foot


if __name__ == "__main__":
    g = Gen()
    txt = g.build()
    out = sys.argv[1] if len(sys.argv) > 1 else f"cdna_kernels/{NAME}.s"
    open(out, "w").write(txt)
    kinds = {}
    for i in g.a.ins:
        kinds[i.kind] = kinds.get(i.kind, 0) + 1
    print(out, g.a.stats, kinds)
    if OPT["log"]:
        print("\n".join(g.a.log))
        print("model stalls", g.a.stall, "pipe busy", g.a.busy)
```

```python
import math, struct, sys
from collections import deque
sys.path.insert(0, "tools")
from asmlib import Asm, Ins, v, a_, s

NAME = "gated_mix__sliding_block__dense_activation_gelu__prompt"
OPT = dict(stamps=0, dbg=0, npairs=6, probe=0, poll1=20, poll2=4, chk2=7, poll3=7, norot=0, log=0,
           miss=480, pub1=13, svc=64, st=160, lat=480, win=8, strip=0, rot1=0, rot2=2)
for arg in sys.argv[2:]:
    k, val = arg.split("=")
    assert k in OPT, k
    OPT[k] = int(val)


def fbits(x):
    return struct.unpack("<I", struct.pack("<f", x))[0]


QKV_BASE, H_BASE, O_BASE, G_BASE = 0, 0x600000, 0xD00000, 0xF00000
F_BASE, E_OFF, ST_BASE, WS_SIZE = 0xF10000, 0xF80000, 0xFA0000, 0x1000000
F1, F2, F3, F0 = F_BASE, F_BASE + 1024 * 128, F_BASE + 2048 * 128, F_BASE + 3072 * 128
OOB = 0x40000000
TAG_STEP = 0x6B43A9B7
R_A, R_Q, R_B, RING = 0, 57344, 106496, 57344
KV = R_B
XST = 106496
TB1, DUMMY, TB2, RED = 163328, 159744, 0, 8192
LDS_SIZE = 163840
S_CODE, S_X, S_WQ, S_W1, S_WS, S_W2, S_WO, S_OUT, S_B1, S_B2, S_GW, S_DBG = 4, 8, 12, 16, 20, 24, 28, 32, 36, 40, 44, 96
sMX = 3
sW, sC, sLIGHT, sUA, sUB, sJ, sRB0, sCT, sLOC, sRB, sQB, sFIRST = range(48, 60)
sT0, sT1, sT2, sT3 = 60, 61, 62, 63
sHI, sM, sG = 64, 66, 68
sCA, sCB, sBT = 75, 76, 77
sMQ, sMA, sMAS, sMB, sRING = 78, 79, 80, 81, 82
sBOFF, sBEND, sAOFF, sAEND, sKV0 = 83, 84, 85, 86, 87
sM3, sF2O, sSPIN = 88, 90, 91
sQS, sHA, sHB, sF1, sGS, sF0P = 0, 1, 4, 5, 6, 7
sKOFF, sMKV, sQOFF, sOS, sF3P, sF0R, sK2 = 36, 37, 38, 39, 44, 45, 46
sGQ, sGD, sNQ, sOUT = 92, 93, 94, 95
sP0 = 100
vL, vLIN, vT, vL0, vK1, vST = 0, 1, 2, 3, 4, 5
vTRQ, vTRF0, vTRF1 = 6, 7, 8
vW1A0, vW1A1, vPV = 9, 10, 11
vBD = 12
vBT0, vBT1 = 16, 17
vF1A, vF23A = 18, 19
vWQ = 20
vPOLL, vGA, vGATE = 20, 21, 22
vTBL = 23
vTMP = 24
vXD, vXR = 32, 36
vWR = 40
vACC = 64
vX = 144
vQ, vS, vCD, vM0, vM8, vO, vP, vMX = 96, 144, 176, 192, 208, 224, 240, 248
vKR, vVR, vKA, vVA = 40, 136, 6, 7
vAB, vBI, vA1H, vA1O, vG = 144, 208, 8, 9, 10

C_GELU = -2.0 * math.sqrt(2.0 / math.pi) * math.log2(math.e)
K1, K2 = fbits(C_GELU), fbits(C_GELU * 0.044715)
QSCALE = fbits(math.log2(math.e) / math.sqrt(28.0))
NINF = 0xFF800000
MFMA = "v_mfma_f32_32x32x16_bf16"


class Item:
    def __init__(self, text, sink=None, pre=(), post=(), m0=None, after=None, lat=None):
        self.text = [text] if isinstance(text, str) else text
        self.sink, self.pre, self.post, self.m0, self.after, self.lat = sink, pre, post, m0, after, lat
        self.vm = self.text[0].startswith("buffer")
        self.done = False


class Gen:
    def __init__(self):
        self.a = Asm()
        self.a.p_svc, self.a.p_st, self.a.p_lat, self.a.p_win = OPT['svc'], OPT['st'], OPT['lat'], OPT['win']
        self.q = deque()
        self.P, self.C, self.B = deque(), deque(), deque()
        self.tail = []
        self.nst = self.nlab = self.nmark = 0
        self.marks = set()
        self.m0 = None
        self.hooks = {}

    def e(self, t):
        return self.a.e(t)

    def emit_item(self, st):
        it = st.popleft()
        c0 = len(self.a.ins)
        if it.after:
            toks = it.after()
            assert toks is not None, "forced item whose producers are not emitted: " + it.text[0]
            self.a.need(*toks)
        for t in it.pre:
            self.e(t)
        if it.m0 and it.m0 != self.m0:
            reg, imm = it.m0[:2]
            self.e(f"s_mov_b32 m0, {imm}" if reg is None else f"s_add_u32 m0, s{reg}, {imm}" if imm else f"s_mov_b32 m0, s{reg}")
            self.m0 = it.m0
        for t in it.text:
            self.a.next_lat = it.lat
            k = self.e(t)
            if it.sink is not None:
                it.sink.append(k)
        for t in it.post:
            self.e(t)
        it.done = True
        return 4 * (len(self.a.ins) - c0) + (4 if it.vm else 0)

    def side(self):
        a = self.a
        for st in (self.P, self.C, self.B):
            if not st:
                continue
            it = st[0]
            if not (a.vm_free() if it.vm else a.lds_free - a.clk <= 8):
                continue
            if it.after:
                toks = it.after()
                if toks is None or a.est(toks) > a.clk:
                    continue
            return self.emit_item(st)
        return 0

    def force(self, st, it=None):
        while st and (it is None or not it.done):
            self.emit_item(st)

    def m(self, t):
        k = self.e(t)
        if not t.startswith(("s_cmp", "s_cselect", "v_cmp")):
            self.side()
        return k

    def push(self, fn, cost=4):
        self.q.append((fn, cost))

    def pe(self, t):
        cost = 8 if Ins(t).kind == "trans" else 4
        if t.startswith("s_cselect"):
            fn, c = self.q.pop()
            assert getattr(fn, "scc", False), "s_cselect must follow its s_cmp directly: " + t
            g = lambda fn=fn, t=t: (fn(), self.e(t))
            g.scc = True
            self.q.append((g, c + cost))
            return
        f = lambda t=t: self.e(t)
        f.scc = t.startswith("s_cmp")
        self.q.append((f, cost))

    def gap(self, budget):
        budget -= self.side()
        while self.q and budget >= min(self.q[0][1], 8):
            fn, c = self.q.popleft()
            fn()
            budget -= c

    def drain(self, name=None):
        while (self.q if name is None else name not in self.marks):
            self.q.popleft()[0]()
            self.side()

    def mark(self, name):
        self.push(lambda: self.marks.add(name), 0)

    def hook(self, name):
        fn = self.hooks.pop(name, None)
        if fn:
            fn()

    def stamp(self, name="", group=1):
        if group == 1:
            self.a.log.append(f"{self.a.clk:6d} {name}  (pipe busy {self.a.busy})")
        if (OPT["stamps"] == group or (OPT["stamps"] and self.nst == 0)) and self.nst < 16:
            clk = self.a.clk
            self.e(f"s_memtime {s(sM3,2)}")
            self.e("s_waitcnt lgkmcnt(0)")
            self.e(f"v_writelane_b32 v{vST}, s{sM3}, {self.nst}")
            self.a.clk = clk
            self.nst += 1
        if group == 1:
            self.nmark += 1
            if OPT["probe"] == self.nmark:
                self.e(f"s_memtime {s(sM3,2)}")
                self.e("s_waitcnt lgkmcnt(0)")
                self.e(f"s_mov_b32 s{sP0+1}, s{sM3}")

    def poll_item(self, addr, soff):
        it = Item(f"buffer_load_dword {v(vPOLL)}, {v(addr)}, {s(S_WS,4)}, {soff} offen sc1", lat=OPT["miss"])
        self.P.append(it)
        return it

    def poll_check(self, addr, soff):
        self.force(self.P)
        self.nlab += 1
        n = self.nlab
        if OPT["stamps"]:
            self.e(f"s_mov_b32 s{sSPIN}, 0")
        self.e(f"v_cmp_ne_u32 vcc, {v(vT)}, {v(vPOLL)}")
        self.e(f"s_cbranch_vccnz L_slow{n}")
        self.a.label(f"L_back{n}")
        if OPT["stamps"]:
            self.npoll = getattr(self, "npoll", 0) + 1
            self.e(f"v_writelane_b32 v{vST}, s{sSPIN}, {15 + self.npoll}")
        self.tail += [f"L_slow{n}:", f"s_mov_b32 s{sSPIN}, 0", f"L_spin{n}:",
                      f"buffer_load_dword {v(vPOLL)}, {v(addr)}, {s(S_WS,4)}, {soff} offen sc1",
                      f"s_add_u32 s{sSPIN}, s{sSPIN}, 1",
                      "s_waitcnt vmcnt(0)",
                      f"v_cmp_ne_u32 vcc, {v(vT)}, {v(vPOLL)}",
                      f"s_cmp_gt_u32 s{sSPIN}, 0x20000",
                      f"s_cbranch_scc1 L_back{n}",
                      f"s_cbranch_vccnz L_spin{n}",
                      f"s_branch L_back{n}"]

    def pub_text(self, soff):
        return f"buffer_store_dword {v(vT)}, {v(vL0)}, {s(S_WS,4)}, s{soff} offen sc1"

    def publish(self, soff, toks, n, pre=()):
        it = Item(self.pub_text(soff), pre=pre, after=lambda: toks if len(toks) == n else None)
        self.P.append(it)
        return it

    def prologue(self):
        e, m = self.e, self.m
        e("s_cmp_ge_u32 s2, 256")
        e("s_cbranch_scc1 L_end")
        if OPT["probe"]:
            e(f"s_memtime {s(sP0,2)}")
        for srd, off in ((S_X, 0), (S_WQ, 8), (S_WS, 88), (S_GW, 64), (S_B1, 40), (S_W1, 32), (S_W2, 48), (S_WO, 16), (S_B2, 56), (S_OUT, 72)):
            e(f"s_load_dwordx2 {s(srd,2)}, s[0:1], {off}")
        if OPT["dbg"]:
            e(f"s_load_dwordx2 {s(S_DBG,2)}, s[0:1], 80")
        e(f"s_getpc_b64 {s(S_CODE,2)}")
        self.a.label("L_pc")
        e(f"s_lshr_b32 s{sLOC}, s2, 3")
        e(f"v_lshrrev_b32 v1, 6, v0")
        e(f"v_and_b32 v{vL}, 63, v0")
        e(f"s_and_b32 s{sT0}, s{sLOC}, 7")
        e(f"v_readfirstlane_b32 s{sW}, v1")
        e(f"s_mov_b32 s{S_CODE+2}, L_code_end-L_pc")
        e(f"s_mov_b32 s{S_CODE+3}, 0x20000")
        e(f"v_and_b32 v24, 7, v{vL}")
        e(f"v_lshl_add_u32 v24, v1, 3, v24")
        e(f"v_lshlrev_b32 v24, 7, v24")
        e(f"s_lshl_b32 s{sT1}, s{sT0}, 12")
        e(f"buffer_load_dword v25, v24, {s(S_CODE,4)}, s{sT1} offen")
        e(f"s_lshr_b32 s{sT1}, s{sLOC}, 3")
        e(f"s_bfe_u32 s{sRB}, s2, 0x20001")
        e(f"s_lshl_b32 s{sRB}, s{sRB}, 2")
        e(f"s_add_u32 s{sRB}, s{sRB}, s{sT1}")
        e(f"s_and_b32 s{sC}, s2, 1")
        e(f"s_lshl_b32 s{sC}, s{sC}, 3")
        e(f"s_add_u32 s{sC}, s{sC}, s{sT0}")
        e(f"s_lshl_b32 s{sT1}, s{sT1}, 1")
        e(f"s_add_u32 s{sT0}, s{sT0}, s{sT1}")
        e(f"s_sub_u32 s{sT1}, s{sT0}, 7")
        e(f"s_cmp_ge_u32 s{sT0}, 7")
        e(f"s_cselect_b32 s{sG}, s{sT1}, s{sT0}")
        if OPT["rot1"] == 0:
            e(f"s_mov_b32 s{sG}, 0")
        if OPT["rot1"] == 2:
            e(f"s_and_b32 s{sT0}, s2, 7")
            e(f"s_cmp_eq_u32 s{sT0}, 7")
            e(f"s_cselect_b32 s{sG}, 0, s{sT0}")
        e(f"s_lshl_b32 s{sRB}, s{sRB}, 2")
        e(f"s_add_u32 s{sRB}, s{sRB}, s{sW}")
        for srd, size in ((S_X, 2048 * 896), (S_WQ, 448 * 2688)):
            e(f"s_mov_b32 s{srd+2}, {size}")
            e(f"s_mov_b32 s{srd+3}, 0x20000")
        e(f"v_lshrrev_b32 v24, 3, v{vL}")
        e(f"s_lshl_b32 s{sT0}, s{sRB}, 5")
        e(f"v_add_u32 v24, s{sT0}, v24")
        e(f"v_mul_u32_u24 v24, 896, v24")
        e(f"v_lshrrev_b32 v26, 4, v{vL}")
        e(f"v_and_b32 v27, 7, v{vL}")
        e(f"v_xor_b32 v26, v26, v27")
        e(f"v_lshl_add_u32 v{vXD}, v26, 4, v24")
        e(f"v_xor_b32 v{vXD+1}, 64, v{vXD}")
        e(f"v_add_u32 v{vXD+2}, {2*(7168-1024)}, v{vXD}")
        e(f"v_add_u32 v{vXD+3}, {3*(7168-1024)}, v{vXD+1}")
        e(f"v_add_u32 v{vXD+1}, {7168-1024}, v{vXD+1}")
        e(f"s_mul_i32 s{sMX}, s{sW}, 12288")
        e(f"s_add_u32 s{sRING}, s{sMX}, {RED}")
        e(f"s_add_u32 s{sMX}, s{sMX}, {XST}")
        e(f"s_mul_i32 s{sT0}, s{sC}, 168")
        e(f"s_and_b32 s{sT0}, s{sT0}, 0xfffffff0")
        e(f"s_mul_i32 s{sT1}, s{sW}, {16*2688}")
        e(f"s_add_u32 s{sT0}, s{sT0}, s{sT1}")
        for i in range(3):
            e(f"v_add_u32 v24, {64*i}, v{vL}")
            e(f"v_mul_u32_u24 v26, 171, v24")
            e(f"v_lshrrev_b32 v26, 11, v26")
            e(f"v_mul_u32_u24 v27, 12, v26")
            e(f"v_sub_u32 v24, v24, v27")
            e(f"v_min_u32 v24, 10, v24")
            e(f"v_mul_u32_u24 v26, 2688, v26")
            e(f"v_lshl_add_u32 v24, v24, 4, v26")
            e(f"v_add_u32 v{vWQ+i}, s{sT0}, v24")
            if i < 2:
                e(f"s_sub_u32 s{sT0}, s{sT0}, 1024")
        e(f"s_mul_i32 s{sMQ}, s{sW}, {16*192}")
        e(f"s_add_u32 s{sMQ}, s{sMQ}, {R_Q}")
        e("s_waitcnt lgkmcnt(0)")
        self.a.clk = 0
        self.stamp("kernarg")
        self.ctok, self.wtok, self.xrd, self.ftok = {}, {}, {}, {}
        self.add_chunk(0)
        self.force(self.C)
        for i in range(1, 7):
            e(f"s_add_u32 s{sT0}, s{sG+i-1}, 1")
            e(f"s_cmp_eq_u32 s{sT0}, 7")
            e(f"s_cselect_b32 s{sG+i}, 0, s{sT0}")
        for srd, size in ((S_WS, WS_SIZE), (S_GW, 896), (S_B1, 3584), (S_W1, 448 * 3584), (S_B2, 896), (S_OUT, 2048 * 896)):
            e(f"s_mov_b32 s{srd+2}, {size}")
            e(f"s_mov_b32 s{srd+3}, 0x20000")
        e(f"s_lshr_b32 s{sLIGHT}, 0x1248, s{sC}")
        e(f"s_and_b32 s{sLIGHT}, s{sLIGHT}, 1")
        e(f"s_bfm_b32 s{sT0}, s{sC}, 0")
        e(f"s_and_b32 s{sT0}, s{sT0}, 0x1248")
        e(f"s_bcnt1_i32_b32 s{sT0}, s{sT0}")
        e(f"s_lshl_b32 s{sUA}, s{sC}, 1")
        e(f"s_sub_u32 s{sUA}, s{sUA}, s{sT0}")
        e(f"s_add_u32 s{sUB}, s{sUA}, 1")
        e(f"s_sub_u32 s{sUB}, s{sUB}, s{sLIGHT}")
        e(f"v_mov_b32 v24, {E_OFF}")
        self.a.next_lat = OPT["miss"]
        e(f"buffer_load_dword v{vT}, v24, {s(S_WS,4)}, 0 offen sc1")
        e(f"s_lshl_b32 s{sT0}, s{sW}, 6")
        e(f"v_add_u32 v26, s{sT0}, v{vL}")
        e(f"s_lshl_b32 s{sT1}, s{sG}, 6")
        for h in range(2):
            e(f"v_add_u32 v27, s{sT1}, v26")
            if h:
                e(f"v_add_u32 v27, 256, v27")
            e(f"v_subrev_u32 v28, 448, v27")
            e(f"v_min_u32 v27, v27, v28")
            e(f"v_lshlrev_b32 v27, 1, v27")
            e(f"buffer_load_ushort v{30+h}, v27, {s(S_GW,4)}, 0 offen")
        e(f"s_lshl_b32 s{sT0}, s{sUA}, 7")
        e(f"s_cmp_eq_u32 s{sLIGHT}, 1")
        e(f"s_cselect_b32 s{sT0}, {OOB}, s{sT0}")
        e(f"s_lshl_b32 s{sT1}, s{sUB}, 7")
        e(f"s_sub_u32 s{sT1}, s{sT1}, 128")
        e(f"s_mov_b32 s{sHI}, 0")
        e(f"s_mov_b32 s{sHI+1}, -1")
        e(f"v_mov_b32 v27, s{sT0}")
        e(f"v_mov_b32 v28, s{sT1}")
        e(f"v_cndmask_b32 v27, v27, v28, {s(sHI,2)}")
        e(f"v_lshl_add_u32 v27, v{vL}, 2, v27")
        e(f"s_mov_b32 m0, {TB1}")
        self.m0 = None
        self.tB1 = e(f"buffer_load_dword v27, {s(S_B1,4)}, 0 offen lds")
        self.add_chunk(1)
        self.add_chunk(2)
        m(f"v_lshlrev_b32 v{vLIN}, 4, v{vL}")
        m(f"v_bfe_u32 v24, v{vL}, 2, 2")
        m(f"v_lshrrev_b32 v27, 5, v{vL}")
        m(f"v_bfe_u32 v28, v{vL}, 4, 1")
        m(f"v_and_b32 v29, 3, v{vL}")
        m(f"v_lshlrev_b32 v29, 3, v29")
        m(f"v_lshl_add_u32 v29, v28, 5, v29")
        m(f"v_lshl_add_u32 v40, v27, 3, v24")
        m(f"v_mul_u32_u24 v41, 192, v40")
        m(f"s_and_b32 s{sT0}, s{sC}, 1")
        m(f"s_lshl_b32 s{sT0}, s{sT0}, 3")
        m(f"s_add_u32 s{sT0}, s{sT0}, {R_Q}")
        m(f"v_add3_u32 v{vTRQ}, v41, v29, s{sT0}")
        m(f"v_lshrrev_b32 v41, 1, v24")
        m(f"v_lshl_add_u32 v29, v41, 6, v29")
        m(f"v_lshl_add_u32 v{vTRF0}, v40, 7, v29")
        m(f"v_xor_b32 v{vTRF1}, 64, v{vTRF0}")
        m(f"v_lshl_add_u32 v40, v27, 2, v24")
        m(f"v_lshl_add_u32 v40, v40, 7, v29")
        m(f"v_add_u32 v{vBT0}, s{sRING}, v40")
        m(f"v_xor_b32 v{vBT1}, 64, v{vBT0}")
        m(f"v_and_b32 v40, 31, v{vL}")
        m(f"v_bfe_u32 v41, v{vL}, 1, 3")
        m(f"v_xor_b32 v41, v41, v27")
        m(f"v_lshlrev_b32 v41, 4, v41")
        m(f"v_lshl_add_u32 v40, v40, 7, v41")
        m(f"v_add_u32 v{vXR}, s{sMX}, v40")
        for k in range(1, 4):
            m(f"v_xor_b32 v{vXR+k}, {32*k}, v{vXR}")
        m(f"v_lshlrev_b32 v{vTBL}, 3, v27")
        m(f"v_add_u32 v{vTBL}, {TB1 - TB1 % 2048}, v{vTBL}")
        m(f"v_and_b32 v40, 3, v{vL}")
        m(f"v_lshl_add_u32 v40, v27, 2, v40")
        m(f"v_bfe_u32 v41, v{vL}, 2, 3")
        m(f"v_lshl_add_u32 v40, v41, 3, v40")
        m(f"v_lshlrev_b32 v{vPV}, 4, v40")
        m(f"v_cmp_eq_u32 vcc, 0, v{vL}")
        m(f"v_mov_b32 v40, {OOB}")
        m(f"v_mov_b32 v{vK1}, {K1}")
        m(f"v_cndmask_b32 v{vL0}, v40, 0, vcc")
        m(f"s_and_b32 s{sT0}, s2, 7")
        m(f"s_and_b32 s{sT1}, s{sLOC}, 1")
        m(f"s_lshl_b32 s{sJ}, s{sT0}, 1")
        m(f"s_add_u32 s{sJ}, s{sJ}, s{sT1}")
        m(f"s_mul_i32 s{sT1}, s{sLOC}, 37")
        m(f"s_lshr_b32 s{sT1}, s{sT1}, 8")
        m(f"s_mul_i32 s{sCT}, s{sT1}, 7")
        m(f"s_sub_u32 s{sCT}, s{sLOC}, s{sCT}")
        m(f"s_lshl_b32 s{sRB0}, s{sT0}, 2")
        m(f"s_add_u32 s{sRB0}, s{sRB0}, s{sT1}")
        m(f"s_lshl_b32 s{sRB0}, s{sRB0}, 1")
        m(f"s_lshl_b32 s{sT1}, s{sT1}, 2")
        m(f"s_lshr_b32 s{sT1}, 0xa370, s{sT1}")
        m(f"s_and_b32 s{sT1}, s{sT1}, 15")
        m(f"s_lshl_b32 s{sT3}, s{sCT}, 1")
        m(f"s_add_u32 s{sT3}, s{sT3}, s{sT1}")
        m(f"s_sub_u32 s{sT1}, s{sT3}, 14")
        m(f"s_cmp_ge_u32 s{sT3}, 14")
        m(f"s_cselect_b32 s{sT3}, s{sT1}, s{sT3}")
        if OPT["rot2"] == 0:
            m(f"s_mov_b32 s{sT3}, 0")
        if OPT["rot2"] == 2:
            m(f"s_and_b32 s{sT3}, s2, 7")
            m(f"s_mul_i32 s{sT3}, s{sT3}, 7")
            m(f"s_lshr_b32 s{sT3}, s{sT3}, 2")
        if OPT["rot2"] == 3:
            m(f"s_lshl_b32 s{sT3}, s{sCT}, 1")
        m(f"s_mul_i32 s{sBEND}, s{sW}, {448*896}")
        m(f"s_mul_i32 s{sBOFF}, s{sT3}, {32*896}")
        m(f"s_add_u32 s{sBOFF}, s{sBOFF}, s{sBEND}")
        m(f"s_add_u32 s{sBEND}, s{sBEND}, {448*896}")
        m(f"s_mul_i32 s{sAEND}, s{sRB0}, 112")
        m(f"s_mul_i32 s{sT0}, s{sW}, 28")
        m(f"s_add_u32 s{sAEND}, s{sAEND}, s{sT0}")
        m(f"s_lshl_b32 s{sAEND}, s{sAEND}, 10")
        m(f"s_add_u32 s{sAEND}, s{sAEND}, {H_BASE}")
        m(f"s_lshl_b32 s{sAOFF}, s{sT3}, 11")
        m(f"s_add_u32 s{sAOFF}, s{sAOFF}, s{sAEND}")
        m(f"s_add_u32 s{sAEND}, s{sAEND}, {28*1024}")
        m(f"s_lshl_b32 s{sGD}, s{sRB0}, 7")
        m(f"s_add_u32 s{sGD}, s{sGD}, {G_BASE}")
        m(f"s_cmp_lt_u32 s{sLOC}, 28")
        m(f"s_cselect_b32 s{S_W2+2}, {1792*896}, 0")
        m(f"s_cselect_b32 s{S_WO+2}, {448*896}, 0")
        m(f"s_cselect_b32 s{sAOFF}, s{sAOFF}, {OOB}")
        m(f"s_cselect_b32 s{sGD}, s{sGD}, {OOB}")
        m(f"s_mov_b32 s{S_W2+3}, 0x20000")
        m(f"s_mov_b32 s{S_WO+3}, 0x20000")
        m(f"s_lshl_b32 s{sF2O}, s{sRB0}, 11")
        m(f"s_add_u32 s{sF2O}, s{sF2O}, {F2}")
        m(f"v_lshrrev_b32 v24, 3, v{vL}")
        m(f"v_lshlrev_b32 v28, 2, v28")
        m(f"v_and_b32 v29, 7, v{vL}")
        m(f"v_xor_b32 v28, v28, v29")
        m(f"v_lshlrev_b32 v28, 4, v28")
        m(f"v_mul_u32_u24 v29, 3584, v24")
        m(f"s_mul_i32 s{sT0}, s{sW}, {16*3584}")
        m(f"v_add3_u32 v{vW1A0}, v29, v28, s{sT0}")
        m(f"v_add_u32 v{vW1A1}, {8*3584-1024}, v{vW1A0}")
        m(f"v_mul_u32_u24 v29, 896, v24")
        m(f"s_lshl_b32 s{sT0}, s{sCT}, 7")
        m(f"v_add3_u32 v{vBD}, v29, v28, s{sT0}")
        for k in range(1, 4):
            m(f"v_add_u32 v{vBD+k}, {k*(7168-1024)}, v{vBD}")
        m(f"s_lshl_b32 s{sMB}, s{sW}, 11")
        m(f"s_sub_u32 s{sMA}, s{sMB}, {64*128 - R_A}")
        m(f"s_add_u32 s{sMB}, s{sMB}, {R_B}")
        m(f"s_mul_i32 s{sT0}, s{sC}, 3")
        m(f"s_sub_u32 s{sNQ}, 16, s{sT0}")
        m(f"s_lshl_b32 s{sT0}, s{sT0}, 6")
        m(f"s_add_u32 s{sT0}, s{sT0}, s{sRB}")
        m(f"s_lshl_b32 s{sQS}, s{sT0}, 11")
        m(f"s_mul_i32 s{sT1}, s{sRB}, 28")
        m(f"s_add_u32 s{sT0}, s{sT1}, s{sUB}")
        m(f"s_lshl_b32 s{sT0}, s{sT0}, 12")
        m(f"s_add_u32 s{sHB}, s{sT0}, {H_BASE}")
        m(f"s_sub_u32 s{sHA}, s{sHB}, 4096")
        m(f"s_lshl_b32 s{sUA}, s{sUA}, 7")
        m(f"s_lshl_b32 s{sUB}, s{sUB}, 7")
        m(f"s_cmp_eq_u32 s{sLIGHT}, 1")
        m(f"s_cselect_b32 s{sHA}, {OOB}, s{sHA}")
        m(f"s_cselect_b32 s{sUA}, {OOB}, s{sUA}")
        m(f"s_cselect_b32 s{sMA}, {DUMMY}, s{sMA}")
        m(f"s_cselect_b32 s{sMAS}, 0, {64*128}")
        m(f"s_lshl_b32 s{sT0}, s{sRB}, 4")
        m(f"s_add_u32 s{sT0}, s{sT0}, s{sC}")
        m(f"s_lshl_b32 s{sT0}, s{sT0}, 7")
        m(f"s_add_u32 s{sF1}, s{sT0}, {F1}")
        m(f"s_lshl_b32 s{sT0}, s{sRB}, 7")
        m(f"s_add_u32 s{sGS}, s{sT0}, {G_BASE}")
        m(f"s_add_u32 s{sF0P}, s{sT0}, {F0}")
        m(f"s_cmp_eq_u32 s{sC}, 3")
        m(f"s_cselect_b32 s{sGS}, s{sGS}, {OOB}")
        m(f"s_cselect_b32 s{sF0P}, s{sF0P}, {OOB}")
        m(f"s_lshr_b32 s{sT0}, s{sLOC}, 1")
        m(f"s_lshl_b32 s{sT0}, s{sT0}, 2")
        m(f"s_add_u32 s{sQB}, s{sT0}, s{sW}")
        m(f"s_sub_u32 s{sFIRST}, 8, s{sQB}")
        m(f"s_max_i32 s{sFIRST}, s{sFIRST}, 0")
        m(f"s_mul_i32 s{sT1}, s{sW}, 3")
        m(f"s_add_u32 s{sT0}, s{sT0}, s{sT1}")
        m(f"s_sub_u32 s{sKV0}, s{sT0}, 8")
        m(f"s_mul_i32 s{sT2}, s{sJ}, 43")
        m(f"s_lshr_b32 s{sT2}, s{sT2}, 7")
        m(f"s_lshl_b32 s{sT1}, s{sQB}, 4")
        m(f"s_add_u32 s{sT2}, s{sT1}, s{sT2}")
        m(f"v_mov_b32 v{vF1A}, s{sT2}")
        m(f"s_add_u32 s{sT1}, s{sT1}, s{sJ}")
        m(f"s_lshl_b32 s{sF3P}, s{sT1}, 7")
        m(f"s_add_u32 s{sF3P}, s{sF3P}, {F3}")
        m(f"s_lshl_b32 s{sOS}, s{sT1}, 11")
        m(f"s_add_u32 s{sOS}, s{sOS}, {O_BASE}")
        for part, add in ((0, 16), (1, 32)):
            m(f"s_add_u32 s{sT2}, s{sJ}, {add}")
            m(f"s_mul_i32 s{sT2}, s{sT2}, 43")
            m(f"s_lshr_b32 s{sT2}, s{sT2}, 7")
            m(f"v_subrev_u32 v40, {3*part}, v{vL}")
            m(f"v_add_u32 v41, s{sKV0}, v40")
            m(f"v_cmp_gt_u32 {s(sM,2)}, 3, v40")
            m(f"v_cmp_le_i32 vcc, 0, v41")
            m(f"v_lshl_add_u32 v41, v41, 4, s{sT2}")
            m(f"s_and_b64 {s(sM,2)}, {s(sM,2)}, vcc")
            m(f"v_cndmask_b32 v{vF1A}, v{vF1A}, v41, {s(sM,2)}")
        m(f"v_lshlrev_b32 v{vF1A}, 7, v{vF1A}")
        m(f"v_add_u32 v{vF1A}, {F1}, v{vF1A}")
        m(f"s_lshl_b32 s{sT0}, s{sJ}, 6")
        m(f"s_add_u32 s{sKOFF}, s{sT0}, s{sKV0}")
        m(f"s_lshl_b32 s{sKOFF}, s{sKOFF}, 11")
        m(f"s_add_u32 s{sQOFF}, s{sT0}, s{sQB}")
        m(f"s_lshl_b32 s{sQOFF}, s{sQOFF}, 11")
        m(f"s_mul_i32 s{sMKV}, s{sW}, 6144")
        m(f"s_lshl_b32 s{sT0}, s{sQB}, 7")
        m(f"s_add_u32 s{sF0R}, s{sT0}, {F0}")
        m(f"s_add_u32 s{sGQ}, s{sT0}, {G_BASE}")
        m(f"v_bfe_u32 v40, v{vL}, 2, 1")
        m(f"v_and_b32 v41, 3, v{vL}")
        m(f"s_lshl_b32 s{sT0}, s{sW}, 2")
        m(f"v_add_u32 v41, s{sT0}, v41")
        m(f"v_cmp_gt_u32 vcc, 8, v{vL}")
        m(f"v_lshl_add_u32 v41, v40, 4, v41")
        m(f"v_and_b32 v40, 1, v{vL}")
        m(f"v_lshl_add_u32 v40, v40, 4, 3")
        m(f"v_cndmask_b32 v{vF23A}, v40, v41, vcc")
        m(f"v_lshlrev_b32 v{vF23A}, 7, v{vF23A}")
        m(f"s_lshr_b32 s{sT0}, s{sW}, 1")
        m(f"s_add_u32 s{sT0}, s{sT0}, s{sRB0}")
        m(f"s_mul_i32 s{sT0}, s{sT0}, {32*896}")
        m(f"s_lshl_b32 s{sT1}, s{sCT}, 1")
        m(f"s_and_b32 s{sT2}, s{sW}, 1")
        m(f"s_add_u32 s{sT1}, s{sT1}, s{sT2}")
        m(f"s_lshl_b32 s{sT1}, s{sT1}, 6")
        m(f"s_add_u32 s{sOUT}, s{sT0}, s{sT1}")
        m(f"s_mov_b32 s{sK2}, {K2}")
        m(f"s_mov_b32 s{sK2+1}, {K2}")

    def add_chunk(self, i):
        toks = self.ctok[i] = []
        lx = OPT["miss"] + 300 if i < 1 else None
        lw = OPT["miss"] + 300 if i < 2 else None
        xs, ws = [], []
        for k in range(4):
            xs.append(Item(f"buffer_load_dwordx4 v{vXD+k}, {s(S_X,4)}, s{sCA} offen" + (f" offset:{1024*k}" if k else "") + " lds", toks,
                           pre=[f"s_lshl_b32 s{sCA}, s{sG+i}, 7"] if k == 0 else (), m0=(sMX, (i % 3) * 4096), lat=lx,
                           after=(lambda: self.xrd[i - 3] if len(self.xrd.get(i - 3, ())) == 4 else None) if i >= 3 and k == 0 else None))
        for k in range(3):
            ws.append(Item(f"buffer_load_dwordx4 v{vWQ+k}, {s(S_WQ,4)}, s{sCB} offen" + (f" offset:{1024*k}" if k else "") + " lds", toks,
                           pre=[f"s_mul_i32 s{sCB}, s{sG+i}, {64*2688}"] if k == 0 else (), m0=(sMQ, (i % 4) * 64 * 192), lat=lw))
        self.C.extend(xs + ws if i == 0 else ws + xs)
        self.clast = getattr(self, "clast", {})
        self.clast[i] = self.C[-1]

    def add_w1(self, unit, i):
        toks = self.wtok[(unit, i)] = []
        pre = [f"s_mul_i32 s{sCB}, s{sG+i}, {64*3584}", f"s_add_u32 s{sCB}, s{sCB}, s{sUA+unit}"]
        if unit == 0:
            pre.append(f"s_add_u32 s{sMA}, s{sMA}, s{sMAS}")
        for k in range(2):
            self.C.append(Item(f"buffer_load_dwordx4 v{vW1A0+k}, {s(S_W1,4)}, s{sCB} offen" + (" offset:1024" if k else "") + " lds", toks,
                               pre=pre if k == 0 else (), m0=(sMB, i * 8192) if unit else (sMA, 0, i),
                               lat=OPT["miss"] if i < 4 else None))
        self.wlast = getattr(self, "wlast", {})
        self.wlast[(unit, i)] = self.C[-1]

    def gate_write(self):
        pe = self.pe
        pe(f"s_cmp_eq_u32 s{sLIGHT}, 1")
        pe(f"s_cselect_b64 {s(sM,2)}, -1, 0")
        pe(f"v_bfe_u32 v27, v26, 1, 1")
        pe(f"v_lshlrev_b32 v28, 7, v26")
        pe(f"v_lshl_add_u32 v28, v27, 6, v28")
        pe(f"v_mov_b32 v29, {DUMMY+2048}")
        pe(f"v_cndmask_b32 v27, v29, v28, {s(sM,2)}")
        pe(f"v_cmp_gt_u32 vcc, 192, v26")
        pe(f"v_add_u32 v28, {256*128}, v28")
        pe(f"s_and_b64 {s(sM,2)}, {s(sM,2)}, vcc")
        pe(f"ds_write_b16 v27, v30")
        pe(f"v_cndmask_b32 v28, v29, v28, {s(sM,2)}")
        pe(f"ds_write_b16 v28, v31")

    def store_addr(self):
        pe = self.pe
        for n, lim in ((0, 11), (1, 10)):
            pe(f"s_cmp_ge_u32 s{sC}, {lim}")
            pe(f"s_cselect_b64 {s(sM,2)}, -1, 0")
            pe(f"s_cselect_b32 s{sT0}, 128, 0")
            pe(f"s_cselect_b32 s{sT1}, 0x3f80, 0")
            pe(f"v_cndmask_b32 v{24+2*n}, v{vLIN}, v{vPV}, {s(sM,2)}")
            pe(f"v_mov_b32 v{28+n}, s{sT1}")
            pe(f"v_xor_b32 v{25+2*n}, s{sT0}, v{24+2*n}")

    def bias_init(self, acc, tbl, factor=None):
        for t in range(2):
            for mm in range(2):
                o = (tbl % 2048) // 8 + 8 * t + 4 * mm
                self.pe(f"ds_read2_b64 {v(acc+16*t+8+4*mm,4)}, v{vTBL} offset0:{o} offset1:{o+2}")
        for t in range(2):
            for k in range(8):
                src, dst = acc + 16 * t + 8 + k, acc + 16 * t + 2 * k
                self.pe(f"v_lshlrev_b32 v{dst}, 16, v{src}")
                self.pe(f"v_and_b32 v{dst+1}, 0xffff0000, v{src}")
        if factor:
            for k in range(16):
                self.pe(f"v_pk_mul_f32 {v(acc+2*k,2)}, {v(acc+2*k,2)}, {factor}")

    def rd_q(self, sidx, t):
        base = vWR + 12 * (sidx & 1) + 4 * t
        o = 56 * t + (sidx % 16) * 3072
        return [self.e(f"ds_read_b64_tr_b16 {v(base+2*h,2)}, v{vTRQ} offset:{o+768*h}") for h in range(2)]

    def rd_f(self, g, t):
        base = vWR + 8 * (g % 3) + 4 * t
        toks = self.ftok.setdefault(g, [])
        for h in range(2):
            toks.append(self.e(f"ds_read_b64_tr_b16 {v(base+2*h,2)}, v{vTRF0+t} offset:{(g%28)*2048+512*h}"))

    def rd_x(self, sidx):
        self.xrd.setdefault(sidx // 4, []).append(self.e(f"ds_read_b128 {v(vX+4*sidx,4)}, v{vXR+sidx%4} offset:{(sidx//4%3)*4096}"))

    def sync(self, st, last, toks, drain_lds=True):
        self.force(st, last)
        while self.a.est(toks) > self.a.clk + 8 and self.side_wait(self.a.est(toks)):
            pass
        self.a.need(*toks)
        if drain_lds and self.a.lg:
            self.e("s_waitcnt lgkmcnt(0)")
        self.e("s_barrier")

    def side_wait(self, until):
        a = self.a
        for st in (self.P, self.C, self.B):
            if not st:
                continue
            it = st[0]
            t = a.allv[-1][0] if it.vm else a.clk
            if it.after:
                toks = it.after()
                if toks is None:
                    continue
                t = max(t, a.est(toks))
            if t + 8 <= until:
                self.emit_item(st)
                return True
        return False

    def qkv(self):
        e = self.e
        qtok = {}
        self.sync(self.C, self.clast[0], self.ctok[0])
        self.stamp("chunk 0")
        self.add_chunk(3)
        self.rd_x(0)
        self.rd_x(1)
        for t in range(3):
            qtok[(0, t)] = self.rd_q(0, t)
        for sidx in range(28):
            i = sidx // 4
            if sidx % 2 == 0:
                self.stamp(group=3)
            if sidx == 0:
                self.gate_write()
            if sidx == 4:
                self.push(lambda: self.a.need(self.tB1), 0)
                self.bias_init(vACC + 48, TB1)
            if sidx == 8:
                self.store_addr()
            for t in range(3):
                if t == 0:
                    self.a.need(*qtok[(sidx, 0)], *qtok[(sidx, 1)])
                acc = v(vACC + 16 * t, 16)
                e(f"{MFMA} {acc}, {v(vWR+12*(sidx&1)+4*t,4)}, {v(vX+4*sidx,4)}, {acc if sidx else 0}")
                if t == 0 and sidx % 4 == 3:
                    self.drain()
                    if sidx < 27:
                        self.sync(self.C, self.clast[i + 1], self.ctok[i + 1])
                        if i + 4 < 7:
                            self.add_chunk(i + 4)
                        if i + 4 == 6:
                            for k in range(7):
                                self.add_w1(0, k)
                    else:
                        self.sync(self.C, self.wlast[(0, 0)], self.wtok[(0, 0)])
                if sidx % 4 == 3 and sidx < 27 and t < 2:
                    self.rd_x(sidx + 1 + t)
                if sidx % 4 == 0 and t < 2:
                    self.rd_x(sidx + 2 + t)
                if sidx < 27:
                    qtok[(sidx + 1, t)] = self.rd_q(sidx + 1, t)
                elif t < 2:
                    self.rd_f(0, t)
                self.gap((12, 16, 12)[t] if sidx % 4 in (1, 2) else (4, 8, 12)[t])
        self.rd_f(1, 0)
        self.rd_f(1, 1)

    QPK = (vTMP + 8, vACC + 40, vACC + 32)

    def qkv_pack(self, t):
        pe = self.pe
        acc, dst = vACC + 16 * t, self.QPK[t]
        pe(f"s_cmp_gt_i32 s{sNQ}, {t}")
        pe(f"s_cselect_b32 s{sT1}, {QSCALE}, 1.0")
        for k in range(16):
            pe(f"v_mul_f32 v{acc+k}, s{sT1}, v{acc+k}")
        def store(half):
            pre = [f"s_add_u32 s{sCA}, s{sQS}, {t*64*2048}"] if half == 0 else ()
            self.C.append(Item(f"buffer_store_dwordx4 {v(dst+4*half,4)}, v{24+2*(t>>1)+half}, {s(S_WS,4)}, s{sCA} offen offset:{1024*half} sc1",
                               self.tQKV, pre=pre))
            self.lastS = self.C[-1]
        for k in range(8):
            pe(f"v_cvt_pk_bf16_f32 v{dst+k}, v{acc+2*k}, v{acc+2*k+1}")
            if k == 3:
                self.push(lambda: store(0), 0)
        pe(f"v_cndmask_b32 v{dst+6}, v{dst+6}, v{28+(t>>1)}, {s(sHI,2)}")
        pe(f"v_cndmask_b32 v{dst+7}, v{dst+7}, 0, {s(sHI,2)}")
        self.push(lambda: store(1), 0)

    def b_slot(self, p):
        return (RING - RED) + (p % 6) * 4096 if p % 6 < 3 else (p % 6 - 3) * 4096

    def b_dma(self, p):
        toks = self.btok[p] = []
        out = []
        pre, post, off = [], [], sBOFF
        if p >= 14:
            off = sBT
            pre = [f"s_mul_i32 s{sBT}, s{sW}, {112*896}"] + ([f"s_add_u32 s{sBT}, s{sBT}, {(p-14)*28*896}"] if p > 14 else [])
        elif p < 13:
            post = [f"s_add_u32 s{sBOFF}, s{sBOFF}, {32*896}", f"s_cmp_eq_u32 s{sBOFF}, s{sBEND}",
                    f"s_cselect_b32 s{sBT}, {448*896}, 0", f"s_sub_u32 s{sBOFF}, s{sBOFF}, s{sBT}"]
        for k in range(4):
            out.append(Item(f"buffer_load_dwordx4 v{vBD+k}, {s(S_W2 if p < 14 else S_WO,4)}, s{off} offen" + (f" offset:{1024*k}" if k else "") + " lds",
                            toks, pre=pre if k == 0 else (), post=post if k == 3 else (), m0=(sRING, self.b_slot(p)),
                            lat=OPT["miss"] if p < 4 or p >= 14 else None,
                            after=(lambda: self.btr[p - 6] if len(self.btr.get(p - 6, ())) == 8 else None) if k == 0 and p >= 6 else None))
        return out

    def b_read(self, p):
        toks = self.btr[p] = []
        out = []
        for ks in range(2):
            for t in range(2):
                out.append(Item([f"ds_read_b64_tr_b16 {a_(16*(p%16)+8*ks+4*t+2*h,2)}, v{vBT0+t} offset:{self.b_slot(p)+ks*2048+h*1024}" for h in range(2)],
                                toks, after=(lambda: self.btok[p] if len(self.btok[p]) == 4 else None) if ks + t == 0 else None))
        self.blast[p] = out[-1]
        return out

    def gelu_two(self, acc, soff, n, packed):
        pe = self.pe
        T = vTMP + 12
        U = [acc + 2 * n, acc + 2 * n + 2]
        R = [T, T + 2]
        if packed:
            for u, r in zip(U, R):
                pe(f"v_pk_mul_f32 {v(r,2)}, {v(u,2)}, {v(u,2)}")
                pe(f"v_pk_fma_f32 {v(r,2)}, {v(r,2)}, {s(sK2,2)}, {v(vK1,2)} op_sel_hi:[1,1,0]")
                pe(f"v_pk_mul_f32 {v(r,2)}, {v(r,2)}, {v(u,2)}")
            for k in range(4):
                pe(f"v_exp_f32 v{T+k}, v{T+k}")
            for r in R:
                pe(f"v_pk_add_f32 {v(r,2)}, {v(r,2)}, 1.0 op_sel_hi:[1,0]")
            for k in range(4):
                pe(f"v_rcp_f32 v{T+k}, v{T+k}")
            for u, r in zip(U, R):
                pe(f"v_pk_mul_f32 {v(r,2)}, {v(r,2)}, {v(u,2)}")
        else:
            u = U[0]
            for k in range(4):
                pe(f"v_mul_f32 v{T+k}, v{u+k}, v{u+k}")
                pe(f"v_fma_f32 v{T+k}, v{T+k}, s{sK2}, v{vK1}")
                pe(f"v_mul_f32 v{T+k}, v{T+k}, v{u+k}")
            for k in range(4):
                pe(f"v_exp_f32 v{T+k}, v{T+k}")
            for k in range(4):
                pe(f"v_add_f32 v{T+k}, 1.0, v{T+k}")
            for k in range(4):
                pe(f"v_rcp_f32 v{T+k}, v{T+k}")
            for k in range(4):
                pe(f"v_mul_f32 v{T+k}, v{T+k}, v{u+k}")
        for d in range(2):
            pe(f"v_cvt_pk_bf16_f32 v{acc+n+d}, v{T+2*d}, v{T+2*d+1}")
        if n % 4 == 2:
            fr = n // 4
            self.push(lambda: self.C.append(Item(
                f"buffer_store_dwordx4 {v(acc+4*fr,4)}, v{vLIN}, {s(S_WS,4)}, s{soff} offen offset:{fr*1024} sc1", self.tH)), 0)

    def ffn(self, unit):
        e = self.e
        acc0 = vACC + 48 if unit == 0 else vACC
        for sidx in range(28):
            g = 28 * unit + sidx
            if sidx % 4 == 0:
                self.stamp(group=2)
            self.hook(f"ffn{unit}_{sidx}")
            self.a.need(*self.ftok[g])
            for t in range(2):
                acc = v(acc0 + 16 * t, 16)
                e(f"{MFMA} {acc}, {v(vWR+8*(g%3)+4*t,4)}, {v(vX+4*sidx,4)}, {acc}")
                if t == 0 and sidx % 4 == 2:
                    if sidx < 26:
                        k = (unit, sidx // 4 + 1)
                        self.sync(self.C, self.wlast[k], self.wtok[k], drain_lds=False)
                    elif unit == 0:
                        self.drain("biasb")
                        self.sync(self.C, self.wlast[(1, 0)], self.wtok[(1, 0)])
                        e(f"v_add_u32 v{vTRF0}, {R_B-R_A}, v{vTRF0}")
                        e(f"v_add_u32 v{vTRF1}, {R_B-R_A}, v{vTRF1}")
                        self.add_w1(1, 6)
                        self.B.extend(self.b_dma(3) + self.b_dma(4) + self.b_dma(5))
                        for p in range(12):
                            self.B.extend(self.b_read(p) + self.b_dma(p + 6))
                        for p in range(12, 16):
                            self.B.extend(self.b_read(p))
                if g + 2 < 56:
                    self.rd_f(g + 2, t)
                self.gap((16, 12)[t])

    def phase1(self):
        e, pe, m = self.e, self.pe, self.m
        self.btok, self.btr, self.blast = {}, {}, {}
        self.tQKV, self.tH, tG = [], [], []
        self.qkv()
        self.stamp("qkv done")
        self.add_w1(1, 0)
        self.qkv_pack(2)
        self.push(lambda: self.add_w1(1, 1), 0)
        self.qkv_pack(1)
        self.qkv_pack(0)
        self.push(lambda: [self.add_w1(1, k) for k in range(2, 6)], 0)
        self.bias_init(vACC, TB1 + 128)
        pe(f"v_add_u32 v{vT}, {TAG_STEP}, v{vT}")
        self.mark("biasb")
        self.B.extend(self.b_dma(0) + self.b_dma(1) + self.b_dma(2))
        self.ffn(0)
        self.force(self.C, self.lastS)
        self.stamp("ffn a done")
        accA = vACC + 48
        pub1 = self.publish(sF1, self.tQKV, 6)
        pe(f"v_mul_f32 v{vGATE}, {fbits(-math.log2(math.e))}, v{accA}")
        pe(f"v_exp_f32 v{vGATE}, v{vGATE}")
        pe(f"v_and_b32 v{vGA}, 31, v{vL}")
        pe(f"v_add_f32 v{vGATE}, 1.0, v{vGATE}")
        pe(f"v_lshlrev_b32 v{vGA}, 2, v{vGA}")
        pe(f"v_rcp_f32 v{vGATE}, v{vGATE}")
        pe(f"v_mov_b32 v{vTMP}, {OOB}")
        pe(f"v_cndmask_b32 v{vTMP}, v{vGA}, v{vTMP}, {s(sHI,2)}")
        self.push(lambda: self.C.appendleft(Item(f"buffer_store_dword v{vGATE}, v{vTMP}, {s(S_WS,4)}, s{sGS} offen sc1", tG)), 0)
        self.push(lambda: self.publish(sF0P, tG, 1), 0)
        ga = deque(range(0, 16, 2))
        while ga and ga[0] < OPT["npairs"]:
            self.gelu_two(accA, sHA, ga.popleft(), False)
        self.hooks[f"ffn1_{OPT['pub1']}"] = lambda: self.force(self.P, pub1)
        self.hooks[f"ffn1_{OPT['poll1']}"] = lambda: self.poll_item(vF1A, 0)
        self.ffn(1)
        self.poll_check(vF1A, 0)
        e("s_barrier")
        self.att_loads()
        self.stamp("ffn b done")
        m(f"v_lshlrev_b32 v{vTMP+1}, 2, v{vL}")
        self.tB2 = []
        self.C.append(Item(f"buffer_load_dword v{vTMP+1}, {s(S_B2,4)}, s{sCB} offen lds", self.tB2,
                           pre=[f"s_lshl_b32 s{sCB}, s{sCT}, 7"], m0=(None, TB2), lat=OPT["miss"]))
        self.drain()
        for acc, soff, todo in ((accA, sHA, ga), (vACC, sHB, range(0, 16, 2))):
            for n in todo:
                self.gelu_two(acc, soff, n, True)
        self.drain()
        self.stamp("gelu done")

    def att_loads(self):
        self.tKV = []
        items = []
        for bb in range(3):
            for part in range(2):
                pre = ([f"s_add_u32 s{sCA}, s{sKOFF}, {16*64*2048+2048*bb}", f"s_cmp_lt_i32 s{sKV0}, {-bb}", f"s_cselect_b32 s{sCA}, {OOB}, s{sCA}"]
                       if part == 0 else [f"s_add_u32 s{sCA}, s{sCA}, {16*64*2048}"])
                for k in range(2):
                    items.append(Item(f"buffer_load_dwordx4 v{vLIN}, {s(S_WS,4)}, s{sCA} offen" + (" offset:1024" if k else "") + " sc1 lds",
                                      self.tKV, pre=pre if k == 0 else (), m0=(sMKV, KV + 24576 * part + 2048 * bb), lat=OPT["miss"]))
        for k in range(2):
            items.append(Item(f"buffer_load_dwordx4 {v(vQ+4*k,4)}, v{vLIN}, {s(S_WS,4)}, s{sQOFF} offen offset:{1024*k} sc1", self.tKV, lat=OPT["miss"]))
        self.C.extendleft(reversed(items))
        self.kvlast = items[-1]

    def rd_k(self, n):
        for k in range(2):
            self.m(f"ds_read_b128 {v(vKR+8*(n%3)+4*k,4)}, v{vKA} offset:{(n%9)*2048+k*1024}")

    def rd_v(self, i, st):
        for h in range(2):
            self.e(f"ds_read_b64_tr_b16 {v(vVR+4*st+2*h,2)}, v{vVA} offset:{i*2048+256*(2*st+h)}")

    def qk(self, i, k):
        S = v(vS + 16 * (i & 1), 16)
        C = S if k else v(vM0 if i == 0 else vM8 if i == 8 else vCD, 16)
        self.e(f"{MFMA} {S}, {v(vKR+8*(i%3)+4*k,4)}, {v(vQ+4*k,4)}, {C}")

    def patch(self, i, src):
        if not 2 <= i <= 7:
            return
        self.nlab += 1
        n = self.nlab
        self.e(f"s_cmp_eq_u32 s{sFIRST}, {i}")
        self.e(f"s_cbranch_scc1 L_pat{n}")
        self.a.label(f"L_patb{n}")
        self.tail += [f"L_pat{n}:", "s_nop 7"] + [f"v_mov_b32 v{vCD+k}, {src}" for k in range(16)] + ["s_nop 1", f"s_branch L_patb{n}"]

    def attention(self):
        e, pe, m = self.e, self.pe, self.m
        m(f"v_and_b32 v26, 31, v{vL}")
        m(f"v_lshrrev_b32 v27, 5, v{vL}")
        m(f"v_lshlrev_b32 v28, 2, v27")
        m(f"v_sub_u32 v26, v26, v28")
        m(f"s_cmp_gt_u32 s{sFIRST}, 0")
        m(f"s_cselect_b32 s{sT0}, {NINF}, 0")
        m(f"v_mov_b32 v28, s{sT0}")
        m(f"v_mov_b32 v29, {NINF}")
        m(f"s_cmp_gt_u32 s{sFIRST}, 1")
        m(f"s_cselect_b32 s{sT0}, {NINF}, 0")
        prs = (sM, sM3)
        for j0 in range(0, 16, 2):
            for d in range(2):
                jj = j0 + d
                m(f"v_cmp_le_i32 {s(prs[d],2)}, {(jj&3)+8*(jj>>2)}, v26")
            for d in range(2):
                m(f"v_mov_b32 v{vCD+j0+d}, s{sT0}")
            for d in range(2):
                jj = j0 + d
                m(f"v_cndmask_b32 v{vM8+jj}, v29, 0, {s(prs[d],2)}")
                m(f"v_cndmask_b32 v{vM0+jj}, v28, v29, {s(prs[d],2)}")
        m(f"s_lshl_b32 s{sT1}, s{sW}, 11")
        m(f"s_add_u32 s{sT1}, s{sT1}, {KV}")
        m(f"v_add_u32 v{vKA}, s{sT1}, v{vLIN}")
        m(f"v_bfe_u32 v28, v{vL}, 4, 1")
        m(f"v_xor_b32 v27, v27, v28")
        m(f"v_bfe_u32 v29, v{vL}, 2, 2")
        m(f"v_lshl_add_u32 v29, v27, 3, v29")
        m(f"v_and_b32 v27, 1, v{vL}")
        m(f"v_lshl_add_u32 v29, v27, 2, v29")
        m(f"v_lshlrev_b32 v29, 4, v29")
        m(f"v_lshl_add_u32 v29, v28, 10, v29")
        m(f"v_bfe_u32 v27, v{vL}, 1, 1")
        m(f"v_lshl_add_u32 v29, v27, 3, v29")
        m(f"s_add_u32 s{sT1}, s{sT1}, 24576")
        m(f"v_add_u32 v{vVA}, s{sT1}, v29")
        m(f"v_mov_b32 v{vMX}, {NINF}")
        m(f"v_mov_b32 v{vMX+1}, {NINF}")
        m(f"v_mov_b32 v{vF1A}, 0")
        m(f"v_add_u32 v{vA1H}, {112*1024}, v{vLIN}")
        m(f"v_add_u32 v{vA1O}, {32*1024}, v{vLIN}")
        self.sync(self.C, self.kvlast, self.tKV, drain_lds=False)
        self.stamp("kv in")
        self.poll_item(vF1A, f"s{sF0R}")
        pub2 = self.publish(sT3, self.tH, 8, pre=[f"s_add_u32 s{sT3}, s{sF1}, {F2-F1}"])
        self.rd_k(0)
        self.rd_k(1)
        for i in range(10):
            if i % 2 == 0:
                self.stamp(group=4)
            if i < 9:
                self.patch(i, "0")
                self.qk(i, 0)
                self.rd_k(i + 2)
                self.qk(i, 1)
            if i > 0:
                S = vS + 16 * ((i - 1) & 1)
                for k in range(8):
                    (m if k % 4 == 3 else e)(f"v_max3_f32 v{vMX+(k&1)}, v{S+2*k}, v{S+2*k+1}, v{vMX+(k&1)}")
        m(f"v_max_f32 v{vMX}, v{vMX}, v{vMX+1}")
        m(f"v_mov_b32 v{vMX+1}, v{vMX}")
        self.force(self.C)
        self.poll_check(vF1A, f"s{sF0R}")
        self.C.append(Item(f"buffer_load_dword v{vGATE}, v{vGA}, {s(S_WS,4)}, s{sGQ} offen sc1", lat=OPT["miss"]))
        m(f"v_permlane32_swap_b32 v{vMX}, v{vMX+1}")
        m(f"v_max_f32 v{vMX}, v{vMX}, v{vMX+1}")
        m(f"v_sub_f32 v{vMX}, 0, v{vMX}")
        for k in range(16):
            m(f"v_add_f32 v{vM0+k}, v{vM0+k}, v{vMX}")
        self.qk(0, 0)
        self.rd_k(2)
        self.qk(0, 1)
        m(f"v_add_f32 v{vMX+1}, s{sT0}, v{vMX}")
        for k in range(16):
            m(f"v_mov_b32 v{vCD+k}, v{vMX+1}")
        for k in range(16):
            m(f"v_add_f32 v{vM8+k}, v{vM8+k}, v{vMX}")
        self.stamp("pass 1 done")
        O = v(vO, 16)
        for i in range(9):
            S = vS + 16 * (i & 1)
            ex = lambda k: m(f"v_exp_f32 v{S+k}, v{S+k}")
            cv = lambda k: e(f"v_cvt_pk_bf16_f32 v{vP+k}, v{S+2*k}, v{S+2*k+1}")
            self.stamp(group=4)
            if i == OPT["poll2"]:
                self.poll_item(vF23A, f"s{sF2O}")
            if i == OPT["chk2"]:
                self.de_start()
            if i < 8:
                self.patch(i + 1, f"v{vMX}")
                self.qk(i + 1, 0)
            self.rd_v(i, 0)
            for k in range(3):
                ex(k)
            if i < 8:
                self.qk(i + 1, 1)
            self.rd_v(i, 1)
            for k in range(3, 9):
                ex(k)
            for k in range(4):
                cv(k)
            ex(9)
            ex(10)
            e(f"{MFMA} {O}, {v(vVR,4)}, {v(vP,4)}, {O if i else 0}")
            if i < 6:
                self.rd_k(i + 3)
            for k in range(11, 16):
                ex(k)
            for k in range(4, 8):
                cv(k)
            self.side()
            e(f"{MFMA} {O}, {v(vVR+4,4)}, {v(vP+4,4)}, {O}")
        self.a.need(*self.tB2)
        m(f"v_subrev_u32 v{vTBL}, {(TB1 - TB1 % 2048) - (TB2 - TB2 % 2048)}, v{vTBL}")
        m(f"s_cmp_eq_u32 s{sW}, 0")
        m(f"s_cselect_b32 s{sM}, 1.0, 0")
        m(f"s_mov_b32 s{sM+1}, s{sM}")
        self.bias_init(vCD, TB2, factor=s(sM, 2))
        for _ in range(12):
            self.q.popleft()[0]()
        m(f"v_mov_b32 v{vMX}, v{vO+12}")
        m(f"v_mov_b32 v{vMX+1}, v{vO+12}")
        m(f"v_permlane32_swap_b32 v{vMX}, v{vMX+1}")
        m(f"v_rcp_f32 v{vMX}, v{vMX+1}")
        m(f"v_mul_f32 v{vMX}, v{vMX}, v{vGATE}")
        for k in range(8):
            m(f"v_pk_mul_f32 {v(vO+2*k,2)}, {v(vO+2*k,2)}, {v(vMX,2)} op_sel_hi:[1,0]")
        self.tO = []
        for k in range(8):
            m(f"v_cvt_pk_bf16_f32 v{vP+k}, v{vO+2*k}, v{vO+2*k+1}")
            if k == 3:
                self.P.append(Item(f"buffer_store_dwordx4 {v(vP,4)}, v{vLIN}, {s(S_WS,4)}, s{sOS} offen sc1", self.tO))
        m(f"v_cndmask_b32 v{vP+6}, v{vP+6}, 0, {s(sHI,2)}")
        self.P.append(Item(f"buffer_store_dwordx4 {v(vP+4,4)}, v{vLIN}, {s(S_WS,4)}, s{sOS} offen offset:1024 sc1", self.tO))
        self.drain()
        self.force(self.P)
        self.stamp("attention done")

    def ar(self, p, k):
        return (64, 80, 104, 120)[p % 4] + 4 * k

    def a_load(self, p):
        pre = []
        if p == 14:
            pre = [f"s_lshl_b32 s{sAOFF}, s{sRB0}, 2", f"s_add_u32 s{sAOFF}, s{sAOFF}, s{sW}",
                   f"s_lshl_b32 s{sAOFF}, s{sAOFF}, 13", f"s_add_u32 s{sAOFF}, s{sAOFF}, {O_BASE}"]
        post = [f"s_add_u32 s{sAOFF}, s{sAOFF}, 2048"]
        if p < 13:
            post += [f"s_cmp_eq_u32 s{sAOFF}, s{sAEND}", f"s_cselect_b32 s{sCB}, {28*1024}, 0", f"s_sub_u32 s{sAOFF}, s{sAOFF}, s{sCB}"]
        for n in range(4):
            ks, rb = n >> 1, n & 1
            ad = vLIN if rb == 0 else (vA1H if p < 14 else vA1O)
            self.C.append(Item(f"buffer_load_dwordx4 {v(self.ar(p,n),4)}, v{ad}, {s(S_WS,4)}, s{sAOFF} offen offset:{1024*ks} sc1",
                               pre=pre if n == 0 else (), post=post if n == 3 else (), lat=OPT["miss"] if p < 2 or p in (14, 15) else None))
        self.alast[p] = self.C[-1]

    def de_start(self):
        e = self.e
        self.alast = {}
        self.nlab += 1
        n = self.nlab
        self.force(self.P)
        self.a.need(*[k for k, r in self.a.vm if f"v{vPOLL}" in r])
        e(f"s_cmp_ge_u32 s{sLOC}, 28")
        e(f"s_cbranch_scc1 L_nopoll{n}")
        self.poll_check(vF23A, f"s{sF2O}")
        self.a.label(f"L_nopoll{n}")
        for p in range(4):
            self.a_load(p)
        for rb in range(2):
            self.C.append(Item(f"buffer_load_dword v{vG+rb}, v{vGA}, {s(S_WS,4)}, s{sGD} offen offset:{128*rb} sc1", lat=OPT["miss"]))

    def de(self):
        e, pe, m = self.e, self.pe, self.m
        e(f"s_cmp_ge_u32 s{sLOC}, 28")
        e("s_cbranch_scc1 L_idle")
        self.publish(sF3P, self.tO, 2)
        vBI = vCD

        def mm(p, ks, qd):
            rb, t = qd >> 1, qd & 1
            acc = v(vAB + 16 * qd, 16)
            C = v(vBI + 16 * t, 16) if p == 0 and ks == 0 else acc
            e(f"{MFMA} {acc}, {a_(16*(p%16)+8*ks+4*t,4)}, {v(self.ar(p,2*ks+rb),4)}, {C}")

        def scale(qd, half):
            for k in range(8 * half, 8 * half + 8):
                e(f"v_mul_f32 v{vAB+16*qd+k}, v{vG+(qd>>1)}, v{vAB+16*qd+k}")

        for p in range(17):
            self.force(self.C, self.alast[p])
            self.force(self.B, self.blast[p])
            if p in (1, 2):
                self.B.extend(self.b_read(15 + p))
            if p == OPT["poll3"]:
                e(f"s_add_u32 s{sF2O}, s{sF2O}, {F3-F2}")
                self.poll_item(vF23A, f"s{sF2O}")
            if p == 11:
                for rb in range(2):
                    e(f"v_sub_f32 v{vG+rb}, 1.0, v{vG+rb}")
            if p in (13, 14):
                for n in range(8):
                    mm(p, n & 1, n >> 1)
                    k = n - 4 + 8 * (p - 13)
                    self.side()
                    if 0 <= k < 8:
                        scale(k >> 1, k & 1)
            else:
                for ks in range(2):
                    for qd in range(4):
                        mm(p, ks, qd)
                        self.side()
            if p + 4 < 18:
                if p + 4 == 14:
                    self.poll_check(vF23A, f"s{sF2O}")
                self.a_load(p + 4)
        self.force(self.C)
        self.force(self.B)
        self.stamp("pair 16 done")
        e(f"v_add_u32 v24, s{sRING}, v{vLIN}")
        for d in range(1, 4):
            e(f"s_sub_u32 s{sT0}, s{sW}, {d}")
            e(f"s_and_b32 s{sT0}, s{sT0}, 3")
            e(f"s_mul_i32 s{sT0}, s{sT0}, 12288")
            e(f"s_add_u32 s{sT0}, s{sT0}, {RED+(d-1)*4096}")
            e(f"v_add_u32 v{24+d}, s{sT0}, v{vLIN}")
        e(f"v_and_b32 v28, 31, v{vL}")
        e(f"v_mul_u32_u24 v28, 896, v28")
        e(f"v_lshrrev_b32 v29, 5, v{vL}")
        e(f"v_lshl_add_u32 v28, v29, 4, v28")
        self.a.need(*[k for k, _ in self.a.vm + self.a.lg])
        for w in range(4):
            clk = self.a.clk, self.a.mf_free, self.a.lds_free
            if w:
                self.a.label(f"L_wr{w}")
            if w < 3:
                e(f"s_cmp_lg_u32 s{sW}, {w}")
                e(f"s_cbranch_scc1 L_wr{w+1}")
            order = [(w + d) & 3 for d in (1, 2, 3, 4)]
            for n, qd in enumerate(order):
                mm(17, 0, qd)
                mm(17, 1, qd)
                if n >= 2:
                    for k in range(4):
                        e(f"ds_write_b128 v24, {v(vAB+16*order[n-2]+4*k,4)} offset:{(n-2)*4096+k*1024}")
            for k in range(4):
                e(f"ds_write_b128 v24, {v(vAB+16*order[2]+4*k,4)} offset:{2*4096+k*1024}")
            for k in range(8):
                e(f"v_mov_b64 {v(64+2*k,2)}, {v(vAB+16*w+2*k,2)}")
            e("s_waitcnt lgkmcnt(0)")
            if w < 3:
                e("s_branch L_wrdone")
                self.a.clk, self.a.mf_free, self.a.lds_free = clk
        self.a.label("L_wrdone")
        e("s_barrier")
        for d in range(1, 4):
            for k in range(4):
                e(f"ds_read_b128 {v(64+16*d+4*k,4)}, v{24+d} offset:{k*1024}")
        for d in range(1, 4):
            for k in range(8):
                e(f"v_pk_add_f32 {v(64+2*k,2)}, {v(64+2*k,2)}, {v(64+16*d+2*k,2)}")
        for k in range(8):
            e(f"v_cvt_pk_bf16_f32 v{32+k}, v{64+2*k}, v{64+2*k+1}")
        for hh in range(2):
            for d in range(2):
                e(f"v_permlane32_swap_b32 v{32+4*hh+d}, v{32+4*hh+2+d}")
            e(f"buffer_store_dwordx4 {v(32+4*hh,4)}, v28, {s(S_OUT,4)}, s{sOUT} offen offset:{32*hh}")
        self.stamp("end")
        self.write_stamps()
        e("s_endpgm")
        self.a.label("L_idle")
        e("s_waitcnt vmcnt(0)")
        e(self.pub_text(sF3P))
        e("s_cmp_lg_u32 s2, 248")
        e("s_cbranch_scc1 L_end")
        e(f"s_cmp_lg_u32 s{sW}, 0")
        e("s_cbranch_scc1 L_end")
        e(f"v_lshlrev_b32 v24, 7, v{vL}")
        e(f"s_mov_b32 s{sSPIN}, 0")
        self.a.label("L_ep")
        for k in range(16):
            e(f"s_mov_b32 s{sT0}, {F1+8192*k}")
            e(f"buffer_load_dword v{40+k}, v24, {s(S_WS,4)}, s{sT0} offen sc1")
        e(f"s_add_u32 s{sSPIN}, s{sSPIN}, 1")
        e("s_waitcnt vmcnt(0)")
        for k in range(16):
            e(f"v_xor_b32 v{40+k}, v{vT}, v{40+k}")
        for k in range(1, 16):
            e(f"v_or_b32 v40, v40, v{40+k}")
        e(f"v_cmp_ne_u32 vcc, 0, v40")
        e(f"s_cmp_gt_u32 s{sSPIN}, 0x8000")
        e("s_cbranch_scc1 L_epd")
        e("s_cbranch_vccnz L_ep")
        self.a.label("L_epd")
        e(f"s_mov_b32 s{sT0}, {E_OFF}")
        e(self.pub_text(sT0))

    def write_stamps(self):
        e = self.e
        if OPT["probe"]:
            e(f"s_sub_u32 s{sT0}, s{sP0+1}, s{sP0}")
            e(f"s_lshl_b32 s{sT0}, s{sT0}, 2")
            e(f"s_add_u32 s{sT0}, s{sT0}, 72000")
            self.a.label("L_probe")
            e(f"s_memtime {s(sM3,2)}")
            e("s_waitcnt lgkmcnt(0)")
            e(f"s_sub_u32 s{sT1}, s{sM3}, s{sP0}")
            e(f"s_cmp_lt_u32 s{sT1}, s{sT0}")
            e("s_cbranch_scc1 L_probe")
        if not OPT["stamps"]:
            return
        e(f"s_lshl_b32 s{sT0}, s2, 2")
        e(f"s_add_u32 s{sT0}, s{sT0}, s{sW}")
        e(f"s_lshl_b32 s{sT1}, s{sT0}, 7")
        e(f"s_add_u32 s{sT1}, s{sT1}, {ST_BASE}")
        e(f"s_mov_b32 s{sT2}, {self.nst}")
        e(f"v_lshlrev_b32 v40, 2, v{vL}")
        e(f"v_writelane_b32 v{vST}, s{sT2}, 31")
        e(f"v_cmp_gt_u32 vcc, 32, v{vL}")
        e(f"v_mov_b32 v41, {OOB}")
        e(f"v_cndmask_b32 v40, v41, v40, vcc")
        e(f"buffer_store_dword v{vST}, v40, {s(S_WS,4)}, s{sT1} offen")
        if OPT["dbg"]:
            e(f"v_readfirstlane_b32 s{sT1}, v{vST}")
            e(f"s_cmp_eq_u32 s{sT0}, {OPT['dbg']}")
            e(f"s_cselect_b32 s{sT0}, 0, {OOB}")
            e(f"s_mov_b32 s{S_DBG+2}, 256")
            e(f"s_mov_b32 s{S_DBG+3}, 0x20000")
            e(f"v_subrev_u32 v{vST}, s{sT1}, v{vST}")
            e(f"buffer_store_dword v{vST}, v40, {s(S_DBG,4)}, s{sT0} offen")

    def build(self):
        self.prologue()
        self.phase1()
        self.attention()
        self.de()
        self.a.label("L_end")
        self.e("s_endpgm")
        if OPT["strip"]:
            keep, pro = [], True
            for i in self.a.ins:
                if i.kind == "barrier":
                    pro = False
                drop = i.kind in ("mfma", "trans", "dsread", "dswrite") or (
                    not pro and i.kind == "valu" and any(r[0] == "v" and r != "vcc" and int(r[1:]) >= 30 for r in i.w) and "v40" not in i.w and "v41" not in i.w)
                if OPT["strip"] == 2 and i.kind == "vstore" and "x4" in i.mn:
                    i = Ins(i.text.replace("offen", "offen").replace(f"v{vLIN},", f"v{vL0},").replace("v24,", f"v{vL0},").replace("v25,", f"v{vL0},").replace("v26,", f"v{vL0},").replace("v27,", f"v{vL0},"))
                if not drop:
                    keep.append(i)
            self.a.ins = keep
        self.a.finalize()
        body = self.a.text() + "\n" + "\n".join(t if t.endswith(":") else "    " + t for t in self.tail) + "\nL_code_end:\n    s_endpgm\n"
        head = f"""; Fused gated mix: sliding-window attention branch + GELU FFN branch, one persistent launch.
; @launch grid=(256,1,1) block=(256,1,1) lds={LDS_SIZE}
.amdgcn_target "amdgcn-amd-amdhsa--gfx950"
.text
.globl {NAME}_kernel
.p2align 8
.type {NAME}_kernel,@function
{NAME}_kernel:
"""
        foot = f""".section .rodata,"a"
.p2align 6
.amdhsa_kernel {NAME}_kernel
  .amdhsa_next_free_vgpr 512
  .amdhsa_next_free_sgpr 102
  .amdhsa_accum_offset 256
  .amdhsa_group_segment_fixed_size 0
  .amdhsa_kernarg_size 96
  .amdhsa_user_sgpr_count 2
  .amdhsa_user_sgpr_kernarg_segment_ptr 1
  .amdhsa_system_sgpr_workgroup_id_x 1
  .amdhsa_float_denorm_mode_32 3
.end_amdhsa_kernel
"""
        return head + body + foot


if __name__ == "__main__":
    g = Gen()
    txt = g.build()
    out = sys.argv[1] if len(sys.argv) > 1 else f"cdna_kernels/{NAME}.s"
    open(out, "w").write(txt)
    kinds = {}
    for i in g.a.ins:
        kinds[i.kind] = kinds.get(i.kind, 0) + 1
    print(out, g.a.stats, kinds)
    if OPT["log"]:
        print("\n".join(g.a.log))
        print("model stalls", g.a.stall, "pipe busy", g.a.busy)
```

```python
import math, struct, sys
from collections import deque
sys.path.insert(0, "tools")
from asmlib import Asm, Ins, v, a_, s

NAME = "gated_mix__sliding_block__dense_activation_gelu__prompt"
OPT = dict(stamps=0, dbg=0, npairs=6, probe=0, poll1=20, poll2=4, chk2=7, poll3=7, norot=0, log=0,
           miss=480, pub1=13, svc=64, st=160, lat=480, win=8, strip=0, rot1=0, rot2=2, cpf=1, nt=0)
for arg in sys.argv[2:]:
    k, val = arg.split("=")
    assert k in OPT, k
    OPT[k] = int(val)


def fbits(x):
    return struct.unpack("<I", struct.pack("<f", x))[0]


QKV_BASE, H_BASE, O_BASE, G_BASE = 0, 0x600000, 0xD00000, 0xF00000
F_BASE, E_OFF, ST_BASE, WS_SIZE = 0xF10000, 0xF80000, 0xFA0000, 0x1000000
F1, F2, F3, F0 = F_BASE, F_BASE + 1024 * 128, F_BASE + 2048 * 128, F_BASE + 3072 * 128
OOB = 0x40000000
TAG_STEP = 0x6B43A9B7
R_A, R_Q, R_B, RING = 0, 57344, 106496, 57344
KV = R_B
XST = 106496
TB1, DUMMY, TB2, RED = 163328, 159744, 0, 8192
LDS_SIZE = 163840
S_CODE, S_X, S_WQ, S_W1, S_WS, S_W2, S_WO, S_OUT, S_B1, S_B2, S_GW, S_DBG = 4, 8, 12, 16, 20, 24, 28, 32, 36, 40, 44, 96
sMX = 3
sW, sC, sLIGHT, sUA, sUB, sJ, sRB0, sCT, sLOC, sRB, sQB, sFIRST = range(48, 60)
sT0, sT1, sT2, sT3 = 60, 61, 62, 63
sHI, sM, sG = 64, 66, 68
sCA, sCB, sBT = 75, 76, 77
sMQ, sMA, sMAS, sMB, sRING = 78, 79, 80, 81, 82
sBOFF, sBEND, sAOFF, sAEND, sKV0 = 83, 84, 85, 86, 87
sM3, sF2O, sSPIN = 88, 90, 91
sQS, sHA, sHB, sF1, sGS, sF0P = 0, 1, 4, 5, 6, 7
sKOFF, sMKV, sQOFF, sOS, sF3P, sF0R, sK2 = 36, 37, 38, 39, 44, 45, 46
sGQ, sGD, sNQ, sOUT = 92, 93, 94, 95
sP0 = 100
vL, vLIN, vT, vL0, vK1, vST = 0, 1, 2, 3, 4, 5
vTRQ, vTRF0, vTRF1 = 6, 7, 8
vW1A0, vW1A1, vPV = 9, 10, 11
vBD = 12
vBT0, vBT1 = 16, 17
vF1A, vF23A = 18, 19
vWQ = 20
vPOLL, vGA, vGATE = 20, 21, 22
vTBL = 23
vTMP = 24
vXD, vXR = 32, 36
vWR = 40
vACC = 64
vX = 144
vQ, vS, vCD, vM0, vM8, vO, vP, vMX = 96, 144, 176, 192, 208, 224, 240, 248
vKR, vVR, vKA, vVA = 40, 136, 6, 7
vAB, vBI, vA1H, vA1O, vG = 144, 208, 8, 9, 10

C_GELU = -2.0 * math.sqrt(2.0 / math.pi) * math.log2(math.e)
K1, K2 = fbits(C_GELU), fbits(C_GELU * 0.044715)
QSCALE = fbits(math.log2(math.e) / math.sqrt(28.0))
NINF = 0xFF800000
MFMA = "v_mfma_f32_32x32x16_bf16"


def NT(bit):
    return " nt" if OPT["nt"] & bit else ""


class Item:
    def __init__(self, text, sink=None, pre=(), post=(), m0=None, after=None, lat=None):
        self.text = [text] if isinstance(text, str) else text
        self.sink, self.pre, self.post, self.m0, self.after, self.lat = sink, pre, post, m0, after, lat
        self.vm = self.text[0].startswith("buffer")
        self.done = False


class Gen:
    def __init__(self):
        self.a = Asm()
        self.a.p_svc, self.a.p_st, self.a.p_lat, self.a.p_win = OPT['svc'], OPT['st'], OPT['lat'], OPT['win']
        self.q = deque()
        self.P, self.C, self.B = deque(), deque(), deque()
        self.tail = []
        self.nst = self.nlab = self.nmark = 0
        self.marks = set()
        self.m0 = None
        self.hooks = {}

    def e(self, t):
        return self.a.e(t)

    def emit_item(self, st):
        it = st.popleft()
        c0 = len(self.a.ins)
        if it.after:
            toks = it.after()
            assert toks is not None, "forced item whose producers are not emitted: " + it.text[0]
            self.a.need(*toks)
        for t in it.pre:
            self.e(t)
        if it.m0 and it.m0 != self.m0:
            reg, imm = it.m0[:2]
            self.e(f"s_mov_b32 m0, {imm}" if reg is None else f"s_add_u32 m0, s{reg}, {imm}" if imm else f"s_mov_b32 m0, s{reg}")
            self.m0 = it.m0
        for t in it.text:
            self.a.next_lat = it.lat
            k = self.e(t)
            if it.sink is not None:
                it.sink.append(k)
        for t in it.post:
            self.e(t)
        it.done = True
        return 4 * (len(self.a.ins) - c0) + (4 if it.vm else 0)

    def side(self):
        a = self.a
        for st in (self.P, self.C, self.B):
            if not st:
                continue
            it = st[0]
            if not (a.vm_free() if it.vm else a.lds_free - a.clk <= 8):
                continue
            if it.after:
                toks = it.after()
                if toks is None or a.est(toks) > a.clk:
                    continue
            return self.emit_item(st)
        return 0

    def force(self, st, it=None):
        while st and (it is None or not it.done):
            self.emit_item(st)

    def m(self, t):
        k = self.e(t)
        if not t.startswith(("s_cmp", "s_cselect", "v_cmp")):
            self.side()
        return k

    def push(self, fn, cost=4):
        self.q.append((fn, cost))

    def pe(self, t):
        cost = 8 if Ins(t).kind == "trans" else 4
        if t.startswith("s_cselect"):
            fn, c = self.q.pop()
            assert getattr(fn, "scc", False), "s_cselect must follow its s_cmp directly: " + t
            g = lambda fn=fn, t=t: (fn(), self.e(t))
            g.scc = True
            self.q.append((g, c + cost))
            return
        f = lambda t=t: self.e(t)
        f.scc = t.startswith("s_cmp")
        self.q.append((f, cost))

    def gap(self, budget):
        budget -= self.side()
        while self.q and budget >= min(self.q[0][1], 8):
            fn, c = self.q.popleft()
            fn()
            budget -= c

    def drain(self, name=None):
        while (self.q if name is None else name not in self.marks):
            self.q.popleft()[0]()
            self.side()

    def mark(self, name):
        self.push(lambda: self.marks.add(name), 0)

    def hook(self, name):
        fn = self.hooks.pop(name, None)
        if fn:
            fn()

    def stamp(self, name="", group=1):
        if group == 1:
            self.a.log.append(f"{self.a.clk:6d} {name}  (pipe busy {self.a.busy})")
        if (OPT["stamps"] == group or (OPT["stamps"] and self.nst == 0)) and self.nst < 16:
            clk = self.a.clk
            self.e(f"s_memtime {s(sM3,2)}")
            self.e("s_waitcnt lgkmcnt(0)")
            self.e(f"v_writelane_b32 v{vST}, s{sM3}, {self.nst}")
            self.a.clk = clk
            self.nst += 1
        if group == 1:
            self.nmark += 1
            if OPT["probe"] == self.nmark:
                self.e(f"s_memtime {s(sM3,2)}")
                self.e("s_waitcnt lgkmcnt(0)")
                self.e(f"s_mov_b32 s{sP0+1}, s{sM3}")

    def poll_item(self, addr, soff):
        it = Item(f"buffer_load_dword {v(vPOLL)}, {v(addr)}, {s(S_WS,4)}, {soff} offen sc1", lat=OPT["miss"])
        self.P.append(it)
        return it

    def poll_check(self, addr, soff):
        self.force(self.P)
        self.nlab += 1
        n = self.nlab
        if OPT["stamps"]:
            self.e(f"s_mov_b32 s{sSPIN}, 0")
        self.e(f"v_cmp_ne_u32 vcc, {v(vT)}, {v(vPOLL)}")
        self.e(f"s_cbranch_vccnz L_slow{n}")
        self.a.label(f"L_back{n}")
        if OPT["stamps"]:
            self.npoll = getattr(self, "npoll", 0) + 1
            self.e(f"v_writelane_b32 v{vST}, s{sSPIN}, {15 + self.npoll}")
        self.tail += [f"L_slow{n}:", f"s_mov_b32 s{sSPIN}, 0", f"L_spin{n}:",
                      f"buffer_load_dword {v(vPOLL)}, {v(addr)}, {s(S_WS,4)}, {soff} offen sc1",
                      f"s_add_u32 s{sSPIN}, s{sSPIN}, 1",
                      "s_waitcnt vmcnt(0)",
                      f"v_cmp_ne_u32 vcc, {v(vT)}, {v(vPOLL)}",
                      f"s_cmp_gt_u32 s{sSPIN}, 0x20000",
                      f"s_cbranch_scc1 L_back{n}",
                      f"s_cbranch_vccnz L_spin{n}",
                      f"s_branch L_back{n}"]

    def pub_text(self, soff):
        return f"buffer_store_dword {v(vT)}, {v(vL0)}, {s(S_WS,4)}, s{soff} offen sc1"

    def publish(self, soff, toks, n, pre=()):
        it = Item(self.pub_text(soff), pre=pre, after=lambda: toks if len(toks) == n else None)
        self.P.append(it)
        return it

    def prologue(self):
        e, m = self.e, self.m
        e("s_cmp_ge_u32 s2, 256")
        e("s_cbranch_scc1 L_end")
        if OPT["probe"]:
            e(f"s_memtime {s(sP0,2)}")
        for srd, off in ((S_X, 0), (S_WQ, 8), (S_WS, 88), (S_GW, 64), (S_B1, 40), (S_W1, 32), (S_W2, 48), (S_WO, 16), (S_B2, 56), (S_OUT, 72)):
            e(f"s_load_dwordx2 {s(srd,2)}, s[0:1], {off}")
        if OPT["dbg"]:
            e(f"s_load_dwordx2 {s(S_DBG,2)}, s[0:1], 80")
        e(f"s_getpc_b64 {s(S_CODE,2)}")
        self.a.label("L_pc")
        e(f"s_lshr_b32 s{sLOC}, s2, 3")
        e(f"v_lshrrev_b32 v1, 6, v0")
        e(f"v_and_b32 v{vL}, 63, v0")
        e(f"s_and_b32 s{sT0}, s{sLOC}, 7")
        e(f"v_readfirstlane_b32 s{sW}, v1")
        e(f"s_mov_b32 s{S_CODE+2}, L_code_end-L_pc")
        e(f"s_mov_b32 s{S_CODE+3}, 0x20000")
        e(f"v_and_b32 v24, 7, v{vL}")
        e(f"v_lshl_add_u32 v24, v1, 3, v24")
        e(f"v_lshlrev_b32 v24, 7, v24")
        e(f"s_lshl_b32 s{sT1}, s{sT0}, 12")
        if OPT["cpf"]:
            e(f"buffer_load_dword v46, v24, {s(S_CODE,4)}, 0 offen")
        e(f"buffer_load_dword v25, v24, {s(S_CODE,4)}, s{sT1} offen")
        e(f"s_lshr_b32 s{sT1}, s{sLOC}, 3")
        e(f"s_bfe_u32 s{sRB}, s2, 0x20001")
        e(f"s_lshl_b32 s{sRB}, s{sRB}, 2")
        e(f"s_add_u32 s{sRB}, s{sRB}, s{sT1}")
        e(f"s_and_b32 s{sC}, s2, 1")
        e(f"s_lshl_b32 s{sC}, s{sC}, 3")
        e(f"s_add_u32 s{sC}, s{sC}, s{sT0}")
        e(f"s_lshl_b32 s{sT1}, s{sT1}, 1")
        e(f"s_add_u32 s{sT0}, s{sT0}, s{sT1}")
        e(f"s_sub_u32 s{sT1}, s{sT0}, 7")
        e(f"s_cmp_ge_u32 s{sT0}, 7")
        e(f"s_cselect_b32 s{sG}, s{sT1}, s{sT0}")
        if OPT["rot1"] == 0:
            e(f"s_mov_b32 s{sG}, 0")
        if OPT["rot1"] == 2:
            e(f"s_and_b32 s{sT0}, s2, 7")
            e(f"s_cmp_eq_u32 s{sT0}, 7")
            e(f"s_cselect_b32 s{sG}, 0, s{sT0}")
        e(f"s_lshl_b32 s{sRB}, s{sRB}, 2")
        e(f"s_add_u32 s{sRB}, s{sRB}, s{sW}")
        for srd, size in ((S_X, 2048 * 896), (S_WQ, 448 * 2688)):
            e(f"s_mov_b32 s{srd+2}, {size}")
            e(f"s_mov_b32 s{srd+3}, 0x20000")
        e(f"v_lshrrev_b32 v24, 3, v{vL}")
        e(f"s_lshl_b32 s{sT0}, s{sRB}, 5")
        e(f"v_add_u32 v24, s{sT0}, v24")
        e(f"v_mul_u32_u24 v24, 896, v24")
        e(f"v_lshrrev_b32 v26, 4, v{vL}")
        e(f"v_and_b32 v27, 7, v{vL}")
        e(f"v_xor_b32 v26, v26, v27")
        e(f"v_lshl_add_u32 v{vXD}, v26, 4, v24")
        e(f"v_xor_b32 v{vXD+1}, 64, v{vXD}")
        e(f"v_add_u32 v{vXD+2}, {2*(7168-1024)}, v{vXD}")
        e(f"v_add_u32 v{vXD+3}, {3*(7168-1024)}, v{vXD+1}")
        e(f"v_add_u32 v{vXD+1}, {7168-1024}, v{vXD+1}")
        e(f"s_mul_i32 s{sMX}, s{sW}, 12288")
        e(f"s_add_u32 s{sRING}, s{sMX}, {RED}")
        e(f"s_add_u32 s{sMX}, s{sMX}, {XST}")
        e(f"s_mul_i32 s{sT0}, s{sC}, 168")
        e(f"s_and_b32 s{sT0}, s{sT0}, 0xfffffff0")
        e(f"s_mul_i32 s{sT1}, s{sW}, {16*2688}")
        e(f"s_add_u32 s{sT0}, s{sT0}, s{sT1}")
        for i in range(3):
            e(f"v_add_u32 v24, {64*i}, v{vL}")
            e(f"v_mul_u32_u24 v26, 171, v24")
            e(f"v_lshrrev_b32 v26, 11, v26")
            e(f"v_mul_u32_u24 v27, 12, v26")
            e(f"v_sub_u32 v24, v24, v27")
            e(f"v_min_u32 v24, 10, v24")
            e(f"v_mul_u32_u24 v26, 2688, v26")
            e(f"v_lshl_add_u32 v24, v24, 4, v26")
            e(f"v_add_u32 v{vWQ+i}, s{sT0}, v24")
            if i < 2:
                e(f"s_sub_u32 s{sT0}, s{sT0}, 1024")
        e(f"s_mul_i32 s{sMQ}, s{sW}, {16*192}")
        e(f"s_add_u32 s{sMQ}, s{sMQ}, {R_Q}")
        for i in range(1, 7):
            e(f"s_add_u32 s{sT0}, s{sG+i-1}, 1")
            e(f"s_cmp_eq_u32 s{sT0}, 7")
            e(f"s_cselect_b32 s{sG+i}, 0, s{sT0}")
        for srd, size in ((S_WS, WS_SIZE), (S_GW, 896), (S_B1, 3584), (S_W1, 448 * 3584), (S_B2, 896), (S_OUT, 2048 * 896)):
            e(f"s_mov_b32 s{srd+2}, {size}")
            e(f"s_mov_b32 s{srd+3}, 0x20000")
        e(f"s_lshr_b32 s{sLIGHT}, 0x1248, s{sC}")
        e(f"s_and_b32 s{sLIGHT}, s{sLIGHT}, 1")
        e(f"s_bfm_b32 s{sT0}, s{sC}, 0")
        e(f"s_and_b32 s{sT0}, s{sT0}, 0x1248")
        e(f"s_bcnt1_i32_b32 s{sT0}, s{sT0}")
        e(f"s_lshl_b32 s{sUA}, s{sC}, 1")
        e(f"s_sub_u32 s{sUA}, s{sUA}, s{sT0}")
        e(f"s_add_u32 s{sUB}, s{sUA}, 1")
        e(f"s_sub_u32 s{sUB}, s{sUB}, s{sLIGHT}")
        e(f"s_lshl_b32 s{sT0}, s{sW}, 6")
        e(f"v_add_u32 v26, s{sT0}, v{vL}")
        e(f"s_lshl_b32 s{sT1}, s{sG}, 6")
        for h in range(2):
            e(f"v_add_u32 v27, s{sT1}, v26")
            if h:
                e(f"v_add_u32 v27, 256, v27")
            e(f"v_subrev_u32 v28, 448, v27")
            e(f"v_min_u32 v27, v27, v28")
            e(f"v_lshlrev_b32 v{42+h}, 1, v27")
        e(f"s_lshl_b32 s{sT0}, s{sUA}, 7")
        e(f"s_cmp_eq_u32 s{sLIGHT}, 1")
        e(f"s_cselect_b32 s{sT0}, {OOB}, s{sT0}")
        e(f"s_lshl_b32 s{sT1}, s{sUB}, 7")
        e(f"s_sub_u32 s{sT1}, s{sT1}, 128")
        e(f"s_mov_b32 s{sHI}, 0")
        e(f"s_mov_b32 s{sHI+1}, -1")
        e(f"v_mov_b32 v27, s{sT0}")
        e(f"v_mov_b32 v28, s{sT1}")
        e(f"v_cndmask_b32 v27, v27, v28, {s(sHI,2)}")
        e(f"v_lshl_add_u32 v44, v{vL}, 2, v27")
        e(f"v_mov_b32 v45, {E_OFF}")
        m(f"v_lshlrev_b32 v{vLIN}, 4, v{vL}")
        m(f"v_bfe_u32 v24, v{vL}, 2, 2")
        m(f"v_lshrrev_b32 v27, 5, v{vL}")
        m(f"v_bfe_u32 v28, v{vL}, 4, 1")
        m(f"v_and_b32 v29, 3, v{vL}")
        m(f"v_lshlrev_b32 v29, 3, v29")
        m(f"v_lshl_add_u32 v29, v28, 5, v29")
        m(f"v_lshl_add_u32 v40, v27, 3, v24")
        m(f"v_mul_u32_u24 v41, 192, v40")
        m(f"s_and_b32 s{sT0}, s{sC}, 1")
        m(f"s_lshl_b32 s{sT0}, s{sT0}, 3")
        m(f"s_add_u32 s{sT0}, s{sT0}, {R_Q}")
        m(f"v_add3_u32 v{vTRQ}, v41, v29, s{sT0}")
        m(f"v_lshrrev_b32 v41, 1, v24")
        m(f"v_lshl_add_u32 v29, v41, 6, v29")
        m(f"v_lshl_add_u32 v{vTRF0}, v40, 7, v29")
        m(f"v_xor_b32 v{vTRF1}, 64, v{vTRF0}")
        m(f"v_lshl_add_u32 v40, v27, 2, v24")
        m(f"v_lshl_add_u32 v40, v40, 7, v29")
        m(f"v_add_u32 v{vBT0}, s{sRING}, v40")
        m(f"v_xor_b32 v{vBT1}, 64, v{vBT0}")
        m(f"v_and_b32 v40, 31, v{vL}")
        m(f"v_bfe_u32 v41, v{vL}, 1, 3")
        m(f"v_xor_b32 v41, v41, v27")
        m(f"v_lshlrev_b32 v41, 4, v41")
        m(f"v_lshl_add_u32 v40, v40, 7, v41")
        m(f"v_add_u32 v{vXR}, s{sMX}, v40")
        for k in range(1, 4):
            m(f"v_xor_b32 v{vXR+k}, {32*k}, v{vXR}")
        m(f"v_lshlrev_b32 v{vTBL}, 3, v27")
        m(f"v_add_u32 v{vTBL}, {TB1 - TB1 % 2048}, v{vTBL}")
        m(f"v_and_b32 v40, 3, v{vL}")
        m(f"v_lshl_add_u32 v40, v27, 2, v40")
        m(f"v_bfe_u32 v41, v{vL}, 2, 3")
        m(f"v_lshl_add_u32 v40, v41, 3, v40")
        m(f"v_lshlrev_b32 v{vPV}, 4, v40")
        m(f"v_cmp_eq_u32 vcc, 0, v{vL}")
        m(f"v_mov_b32 v40, {OOB}")
        m(f"v_mov_b32 v{vK1}, {K1}")
        m(f"v_cndmask_b32 v{vL0}, v40, 0, vcc")
        m(f"s_and_b32 s{sT0}, s2, 7")
        m(f"s_and_b32 s{sT1}, s{sLOC}, 1")
        m(f"s_lshl_b32 s{sJ}, s{sT0}, 1")
        m(f"s_add_u32 s{sJ}, s{sJ}, s{sT1}")
        m(f"s_mul_i32 s{sT1}, s{sLOC}, 37")
        m(f"s_lshr_b32 s{sT1}, s{sT1}, 8")
        m(f"s_mul_i32 s{sCT}, s{sT1}, 7")
        m(f"s_sub_u32 s{sCT}, s{sLOC}, s{sCT}")
        m(f"s_lshl_b32 s{sRB0}, s{sT0}, 2")
        m(f"s_add_u32 s{sRB0}, s{sRB0}, s{sT1}")
        m(f"s_lshl_b32 s{sRB0}, s{sRB0}, 1")
        m(f"s_lshl_b32 s{sT1}, s{sT1}, 2")
        m(f"s_lshr_b32 s{sT1}, 0xa370, s{sT1}")
        m(f"s_and_b32 s{sT1}, s{sT1}, 15")
        m(f"s_lshl_b32 s{sT3}, s{sCT}, 1")
        m(f"s_add_u32 s{sT3}, s{sT3}, s{sT1}")
        m(f"s_sub_u32 s{sT1}, s{sT3}, 14")
        m(f"s_cmp_ge_u32 s{sT3}, 14")
        m(f"s_cselect_b32 s{sT3}, s{sT1}, s{sT3}")
        if OPT["rot2"] == 0:
            m(f"s_mov_b32 s{sT3}, 0")
        if OPT["rot2"] == 2:
            m(f"s_and_b32 s{sT3}, s2, 7")
            m(f"s_mul_i32 s{sT3}, s{sT3}, 7")
            m(f"s_lshr_b32 s{sT3}, s{sT3}, 2")
        if OPT["rot2"] == 3:
            m(f"s_lshl_b32 s{sT3}, s{sCT}, 1")
        m(f"s_mul_i32 s{sBEND}, s{sW}, {448*896}")
        m(f"s_mul_i32 s{sBOFF}, s{sT3}, {32*896}")
        m(f"s_add_u32 s{sBOFF}, s{sBOFF}, s{sBEND}")
        m(f"s_add_u32 s{sBEND}, s{sBEND}, {448*896}")
        m(f"s_mul_i32 s{sAEND}, s{sRB0}, 112")
        m(f"s_mul_i32 s{sT0}, s{sW}, 28")
        m(f"s_add_u32 s{sAEND}, s{sAEND}, s{sT0}")
        m(f"s_lshl_b32 s{sAEND}, s{sAEND}, 10")
        m(f"s_add_u32 s{sAEND}, s{sAEND}, {H_BASE}")
        m(f"s_lshl_b32 s{sAOFF}, s{sT3}, 11")
        m(f"s_add_u32 s{sAOFF}, s{sAOFF}, s{sAEND}")
        m(f"s_add_u32 s{sAEND}, s{sAEND}, {28*1024}")
        m(f"s_lshl_b32 s{sGD}, s{sRB0}, 7")
        m(f"s_add_u32 s{sGD}, s{sGD}, {G_BASE}")
        m(f"s_cmp_lt_u32 s{sLOC}, 28")
        m(f"s_cselect_b32 s{S_W2+2}, {1792*896}, 0")
        m(f"s_cselect_b32 s{S_WO+2}, {448*896}, 0")
        m(f"s_cselect_b32 s{sAOFF}, s{sAOFF}, {OOB}")
        m(f"s_cselect_b32 s{sGD}, s{sGD}, {OOB}")
        m(f"s_mov_b32 s{S_W2+3}, 0x20000")
        m(f"s_mov_b32 s{S_WO+3}, 0x20000")
        m(f"s_lshl_b32 s{sF2O}, s{sRB0}, 11")
        m(f"s_add_u32 s{sF2O}, s{sF2O}, {F2}")
        m(f"v_lshrrev_b32 v24, 3, v{vL}")
        m(f"v_lshlrev_b32 v28, 2, v28")
        m(f"v_and_b32 v29, 7, v{vL}")
        m(f"v_xor_b32 v28, v28, v29")
        m(f"v_lshlrev_b32 v28, 4, v28")
        m(f"v_mul_u32_u24 v29, 3584, v24")
        m(f"s_mul_i32 s{sT0}, s{sW}, {16*3584}")
        m(f"v_add3_u32 v{vW1A0}, v29, v28, s{sT0}")
        m(f"v_add_u32 v{vW1A1}, {8*3584-1024}, v{vW1A0}")
        m(f"v_mul_u32_u24 v29, 896, v24")
        m(f"s_lshl_b32 s{sT0}, s{sCT}, 7")
        m(f"v_add3_u32 v{vBD}, v29, v28, s{sT0}")
        for k in range(1, 4):
            m(f"v_add_u32 v{vBD+k}, {k*(7168-1024)}, v{vBD}")
        m(f"s_lshl_b32 s{sMB}, s{sW}, 11")
        m(f"s_sub_u32 s{sMA}, s{sMB}, {64*128 - R_A}")
        m(f"s_add_u32 s{sMB}, s{sMB}, {R_B}")
        m(f"s_mul_i32 s{sT0}, s{sC}, 3")
        m(f"s_sub_u32 s{sNQ}, 16, s{sT0}")
        m(f"s_lshl_b32 s{sT0}, s{sT0}, 6")
        m(f"s_add_u32 s{sT0}, s{sT0}, s{sRB}")
        m(f"s_lshl_b32 s{sQS}, s{sT0}, 11")
        m(f"s_mul_i32 s{sT1}, s{sRB}, 28")
        m(f"s_add_u32 s{sT0}, s{sT1}, s{sUB}")
        m(f"s_lshl_b32 s{sT0}, s{sT0}, 12")
        m(f"s_add_u32 s{sHB}, s{sT0}, {H_BASE}")
        m(f"s_sub_u32 s{sHA}, s{sHB}, 4096")
        m(f"s_lshl_b32 s{sUA}, s{sUA}, 7")
        m(f"s_lshl_b32 s{sUB}, s{sUB}, 7")
        m(f"s_cmp_eq_u32 s{sLIGHT}, 1")
        m(f"s_cselect_b32 s{sHA}, {OOB}, s{sHA}")
        m(f"s_cselect_b32 s{sUA}, {OOB}, s{sUA}")
        m(f"s_cselect_b32 s{sMA}, {DUMMY}, s{sMA}")
        m(f"s_cselect_b32 s{sMAS}, 0, {64*128}")
        m(f"s_lshl_b32 s{sT0}, s{sRB}, 4")
        m(f"s_add_u32 s{sT0}, s{sT0}, s{sC}")
        m(f"s_lshl_b32 s{sT0}, s{sT0}, 7")
        m(f"s_add_u32 s{sF1}, s{sT0}, {F1}")
        m(f"s_lshl_b32 s{sT0}, s{sRB}, 7")
        m(f"s_add_u32 s{sGS}, s{sT0}, {G_BASE}")
        m(f"s_add_u32 s{sF0P}, s{sT0}, {F0}")
        m(f"s_cmp_eq_u32 s{sC}, 3")
        m(f"s_cselect_b32 s{sGS}, s{sGS}, {OOB}")
        m(f"s_cselect_b32 s{sF0P}, s{sF0P}, {OOB}")
        m(f"s_lshr_b32 s{sT0}, s{sLOC}, 1")
        m(f"s_lshl_b32 s{sT0}, s{sT0}, 2")
        m(f"s_add_u32 s{sQB}, s{sT0}, s{sW}")
        m(f"s_sub_u32 s{sFIRST}, 8, s{sQB}")
        m(f"s_max_i32 s{sFIRST}, s{sFIRST}, 0")
        m(f"s_mul_i32 s{sT1}, s{sW}, 3")
        m(f"s_add_u32 s{sT0}, s{sT0}, s{sT1}")
        m(f"s_sub_u32 s{sKV0}, s{sT0}, 8")
        m(f"s_mul_i32 s{sT2}, s{sJ}, 43")
        m(f"s_lshr_b32 s{sT2}, s{sT2}, 7")
        m(f"s_lshl_b32 s{sT1}, s{sQB}, 4")
        m(f"s_add_u32 s{sT2}, s{sT1}, s{sT2}")
        m(f"v_mov_b32 v{vF1A}, s{sT2}")
        for part, add in ((0, 16), (1, 32)):
            m(f"s_add_u32 s{sT2}, s{sJ}, {add}")
            m(f"s_mul_i32 s{sT2}, s{sT2}, 43")
            m(f"s_lshr_b32 s{sT2}, s{sT2}, 7")
            m(f"v_subrev_u32 v40, {3*part}, v{vL}")
            m(f"v_add_u32 v41, s{sKV0}, v40")
            m(f"v_cmp_gt_u32 {s(sM,2)}, 3, v40")
            m(f"v_cmp_le_i32 vcc, 0, v41")
            m(f"v_lshl_add_u32 v41, v41, 4, s{sT2}")
            m(f"s_and_b64 {s(sM,2)}, {s(sM,2)}, vcc")
            m(f"v_cndmask_b32 v{vF1A}, v{vF1A}, v41, {s(sM,2)}")
        m(f"v_lshlrev_b32 v{vF1A}, 7, v{vF1A}")
        m(f"v_add_u32 v{vF1A}, {F1}, v{vF1A}")
        m(f"v_bfe_u32 v40, v{vL}, 2, 1")
        m(f"v_and_b32 v41, 3, v{vL}")
        m(f"s_lshl_b32 s{sT0}, s{sW}, 2")
        m(f"v_add_u32 v41, s{sT0}, v41")
        m(f"v_cmp_gt_u32 vcc, 8, v{vL}")
        m(f"v_lshl_add_u32 v41, v40, 4, v41")
        m(f"v_and_b32 v40, 1, v{vL}")
        m(f"v_lshl_add_u32 v40, v40, 4, 3")
        m(f"v_cndmask_b32 v{vF23A}, v40, v41, vcc")
        m(f"v_lshlrev_b32 v{vF23A}, 7, v{vF23A}")
        m(f"s_lshr_b32 s{sT0}, s{sW}, 1")
        m(f"s_add_u32 s{sT0}, s{sT0}, s{sRB0}")
        m(f"s_mul_i32 s{sT0}, s{sT0}, {32*896}")
        m(f"s_lshl_b32 s{sT1}, s{sCT}, 1")
        m(f"s_and_b32 s{sT2}, s{sW}, 1")
        m(f"s_add_u32 s{sT1}, s{sT1}, s{sT2}")
        m(f"s_lshl_b32 s{sT1}, s{sT1}, 6")
        m(f"s_add_u32 s{sOUT}, s{sT0}, s{sT1}")
        e("s_waitcnt lgkmcnt(0)")
        self.a.clk = self.a.pipe_free = 0
        self.a.allv = []
        self.a.done = {k: 0 for k in self.a.done}
        self.stamp("kernarg")
        self.ctok, self.wtok, self.xrd, self.ftok = {}, {}, {}, {}
        self.add_chunk(0)
        self.force(self.C)
        self.a.next_lat = OPT["miss"]
        e(f"buffer_load_dword v{vT}, v45, {s(S_WS,4)}, 0 offen sc1")
        for h in range(2):
            e(f"buffer_load_ushort v{30+h}, v{42+h}, {s(S_GW,4)}, 0 offen")
        e(f"s_mov_b32 m0, {TB1}")
        self.m0 = None
        self.tB1 = e(f"buffer_load_dword v44, {s(S_B1,4)}, 0 offen lds")
        self.add_chunk(1)
        self.add_chunk(2)
        m(f"s_lshl_b32 s{sT1}, s{sQB}, 4")
        m(f"s_add_u32 s{sT1}, s{sT1}, s{sJ}")
        m(f"s_lshl_b32 s{sF3P}, s{sT1}, 7")
        m(f"s_add_u32 s{sF3P}, s{sF3P}, {F3}")
        m(f"s_lshl_b32 s{sOS}, s{sT1}, 11")
        m(f"s_add_u32 s{sOS}, s{sOS}, {O_BASE}")
        m(f"s_lshl_b32 s{sT0}, s{sJ}, 6")
        m(f"s_add_u32 s{sKOFF}, s{sT0}, s{sKV0}")
        m(f"s_lshl_b32 s{sKOFF}, s{sKOFF}, 11")
        m(f"s_add_u32 s{sQOFF}, s{sT0}, s{sQB}")
        m(f"s_lshl_b32 s{sQOFF}, s{sQOFF}, 11")
        m(f"s_mul_i32 s{sMKV}, s{sW}, 6144")
        m(f"s_lshl_b32 s{sT0}, s{sQB}, 7")
        m(f"s_add_u32 s{sF0R}, s{sT0}, {F0}")
        m(f"s_add_u32 s{sGQ}, s{sT0}, {G_BASE}")
        m(f"s_mov_b32 s{sK2}, {K2}")
        m(f"s_mov_b32 s{sK2+1}, {K2}")

    def add_chunk(self, i):
        toks = self.ctok[i] = []
        lx = OPT["miss"] + 300 if i < 1 else None
        lw = OPT["miss"] + 300 if i < 2 else None
        xs, ws = [], []
        for k in range(4):
            xs.append(Item(f"buffer_load_dwordx4 v{vXD+k}, {s(S_X,4)}, s{sCA} offen" + (f" offset:{1024*k}" if k else "") + NT(1) + " lds", toks,
                           pre=[f"s_lshl_b32 s{sCA}, s{sG+i}, 7"] if k == 0 else (), m0=(sMX, (i % 3) * 4096), lat=lx,
                           after=(lambda: self.xrd[i - 3] if len(self.xrd.get(i - 3, ())) == 4 else None) if i >= 3 and k == 0 else None))
        for k in range(3):
            ws.append(Item(f"buffer_load_dwordx4 v{vWQ+k}, {s(S_WQ,4)}, s{sCB} offen" + (f" offset:{1024*k}" if k else "") + NT(2) + " lds", toks,
                           pre=[f"s_mul_i32 s{sCB}, s{sG+i}, {64*2688}"] if k == 0 else (), m0=(sMQ, (i % 4) * 64 * 192), lat=lw))
        self.C.extend(xs + ws if i == 0 else ws + xs)
        self.clast = getattr(self, "clast", {})
        self.clast[i] = self.C[-1]

    def add_w1(self, unit, i):
        toks = self.wtok[(unit, i)] = []
        pre = [f"s_mul_i32 s{sCB}, s{sG+i}, {64*3584}", f"s_add_u32 s{sCB}, s{sCB}, s{sUA+unit}"]
        if unit == 0:
            pre.append(f"s_add_u32 s{sMA}, s{sMA}, s{sMAS}")
        for k in range(2):
            self.C.append(Item(f"buffer_load_dwordx4 v{vW1A0+k}, {s(S_W1,4)}, s{sCB} offen" + (" offset:1024" if k else "") + NT(4) + " lds", toks,
                               pre=pre if k == 0 else (), m0=(sMB, i * 8192) if unit else (sMA, 0, i),
                               lat=OPT["miss"] if i < 4 else None))
        self.wlast = getattr(self, "wlast", {})
        self.wlast[(unit, i)] = self.C[-1]

    def gate_write(self):
        pe = self.pe
        pe(f"s_cmp_eq_u32 s{sLIGHT}, 1")
        pe(f"s_cselect_b64 {s(sM,2)}, -1, 0")
        pe(f"v_bfe_u32 v27, v26, 1, 1")
        pe(f"v_lshlrev_b32 v28, 7, v26")
        pe(f"v_lshl_add_u32 v28, v27, 6, v28")
        pe(f"v_mov_b32 v29, {DUMMY+2048}")
        pe(f"v_cndmask_b32 v27, v29, v28, {s(sM,2)}")
        pe(f"v_cmp_gt_u32 vcc, 192, v26")
        pe(f"v_add_u32 v28, {256*128}, v28")
        pe(f"s_and_b64 {s(sM,2)}, {s(sM,2)}, vcc")
        pe(f"ds_write_b16 v27, v30")
        pe(f"v_cndmask_b32 v28, v29, v28, {s(sM,2)}")
        pe(f"ds_write_b16 v28, v31")

    def store_addr(self):
        pe = self.pe
        for n, lim in ((0, 11), (1, 10)):
            pe(f"s_cmp_ge_u32 s{sC}, {lim}")
            pe(f"s_cselect_b64 {s(sM,2)}, -1, 0")
            pe(f"s_cselect_b32 s{sT0}, 128, 0")
            pe(f"s_cselect_b32 s{sT1}, 0x3f80, 0")
            pe(f"v_cndmask_b32 v{24+2*n}, v{vLIN}, v{vPV}, {s(sM,2)}")
            pe(f"v_mov_b32 v{28+n}, s{sT1}")
            pe(f"v_xor_b32 v{25+2*n}, s{sT0}, v{24+2*n}")

    def bias_init(self, acc, tbl, factor=None):
        for t in range(2):
            for mm in range(2):
                o = (tbl % 2048) // 8 + 8 * t + 4 * mm
                self.pe(f"ds_read2_b64 {v(acc+16*t+8+4*mm,4)}, v{vTBL} offset0:{o} offset1:{o+2}")
        for t in range(2):
            for k in range(8):
                src, dst = acc + 16 * t + 8 + k, acc + 16 * t + 2 * k
                self.pe(f"v_lshlrev_b32 v{dst}, 16, v{src}")
                self.pe(f"v_and_b32 v{dst+1}, 0xffff0000, v{src}")
        if factor:
            for k in range(16):
                self.pe(f"v_pk_mul_f32 {v(acc+2*k,2)}, {v(acc+2*k,2)}, {factor}")

    def rd_q(self, sidx, t):
        base = vWR + 12 * (sidx & 1) + 4 * t
        o = 56 * t + (sidx % 16) * 3072
        return [self.e(f"ds_read_b64_tr_b16 {v(base+2*h,2)}, v{vTRQ} offset:{o+768*h}") for h in range(2)]

    def rd_f(self, g, t):
        base = vWR + 8 * (g % 3) + 4 * t
        toks = self.ftok.setdefault(g, [])
        for h in range(2):
            toks.append(self.e(f"ds_read_b64_tr_b16 {v(base+2*h,2)}, v{vTRF0+t} offset:{(g%28)*2048+512*h}"))

    def rd_x(self, sidx):
        self.xrd.setdefault(sidx // 4, []).append(self.e(f"ds_read_b128 {v(vX+4*sidx,4)}, v{vXR+sidx%4} offset:{(sidx//4%3)*4096}"))

    def sync(self, st, last, toks, drain_lds=True):
        self.force(st, last)
        while self.a.est(toks) > self.a.clk + 8 and self.side_wait(self.a.est(toks)):
            pass
        self.a.need(*toks)
        if drain_lds and self.a.lg:
            self.e("s_waitcnt lgkmcnt(0)")
        self.e("s_barrier")

    def side_wait(self, until):
        a = self.a
        for st in (self.P, self.C, self.B):
            if not st:
                continue
            it = st[0]
            t = a.allv[-1][0] if it.vm else a.clk
            if it.after:
                toks = it.after()
                if toks is None:
                    continue
                t = max(t, a.est(toks))
            if t + 8 <= until:
                self.emit_item(st)
                return True
        return False

    def qkv(self):
        e = self.e
        qtok = {}
        self.sync(self.C, self.clast[0], self.ctok[0])
        self.stamp("chunk 0")
        self.add_chunk(3)
        self.rd_x(0)
        self.rd_x(1)
        for t in range(3):
            qtok[(0, t)] = self.rd_q(0, t)
        for sidx in range(28):
            i = sidx // 4
            if sidx % 2 == 0:
                self.stamp(group=3)
            if sidx == 0:
                self.gate_write()
            if sidx == 4:
                self.push(lambda: self.a.need(self.tB1), 0)
                self.bias_init(vACC + 48, TB1)
            if sidx == 8:
                self.store_addr()
            for t in range(3):
                if t == 0:
                    self.a.need(*qtok[(sidx, 0)], *qtok[(sidx, 1)])
                acc = v(vACC + 16 * t, 16)
                e(f"{MFMA} {acc}, {v(vWR+12*(sidx&1)+4*t,4)}, {v(vX+4*sidx,4)}, {acc if sidx else 0}")
                if t == 0 and sidx % 4 == 3:
                    self.drain()
                    if sidx < 27:
                        self.sync(self.C, self.clast[i + 1], self.ctok[i + 1])
                        if i + 4 < 7:
                            self.add_chunk(i + 4)
                        if i + 4 == 6:
                            for k in range(7):
                                self.add_w1(0, k)
                    else:
                        self.sync(self.C, self.wlast[(0, 0)], self.wtok[(0, 0)])
                if sidx % 4 == 3 and sidx < 27 and t < 2:
                    self.rd_x(sidx + 1 + t)
                if sidx % 4 == 0 and t < 2:
                    self.rd_x(sidx + 2 + t)
                if sidx < 27:
                    qtok[(sidx + 1, t)] = self.rd_q(sidx + 1, t)
                elif t < 2:
                    self.rd_f(0, t)
                self.gap((12, 16, 12)[t] if sidx % 4 in (1, 2) else (4, 8, 12)[t])
        self.rd_f(1, 0)
        self.rd_f(1, 1)

    QPK = (vTMP + 8, vACC + 40, vACC + 32)

    def qkv_pack(self, t):
        pe = self.pe
        acc, dst = vACC + 16 * t, self.QPK[t]
        pe(f"s_cmp_gt_i32 s{sNQ}, {t}")
        pe(f"s_cselect_b32 s{sT1}, {QSCALE}, 1.0")
        for k in range(16):
            pe(f"v_mul_f32 v{acc+k}, s{sT1}, v{acc+k}")
        def store(half):
            pre = [f"s_add_u32 s{sCA}, s{sQS}, {t*64*2048}"] if half == 0 else ()
            self.C.append(Item(f"buffer_store_dwordx4 {v(dst+4*half,4)}, v{24+2*(t>>1)+half}, {s(S_WS,4)}, s{sCA} offen offset:{1024*half} sc1",
                               self.tQKV, pre=pre))
            self.lastS = self.C[-1]
        for k in range(8):
            pe(f"v_cvt_pk_bf16_f32 v{dst+k}, v{acc+2*k}, v{acc+2*k+1}")
            if k == 3:
                self.push(lambda: store(0), 0)
        pe(f"v_cndmask_b32 v{dst+6}, v{dst+6}, v{28+(t>>1)}, {s(sHI,2)}")
        pe(f"v_cndmask_b32 v{dst+7}, v{dst+7}, 0, {s(sHI,2)}")
        self.push(lambda: store(1), 0)

    def b_slot(self, p):
        return (RING - RED) + (p % 6) * 4096 if p % 6 < 3 else (p % 6 - 3) * 4096

    def b_dma(self, p):
        toks = self.btok[p] = []
        out = []
        pre, post, off = [], [], sBOFF
        if p >= 14:
            off = sBT
            pre = [f"s_mul_i32 s{sBT}, s{sW}, {112*896}"] + ([f"s_add_u32 s{sBT}, s{sBT}, {(p-14)*28*896}"] if p > 14 else [])
        elif p < 13:
            post = [f"s_add_u32 s{sBOFF}, s{sBOFF}, {32*896}", f"s_cmp_eq_u32 s{sBOFF}, s{sBEND}",
                    f"s_cselect_b32 s{sBT}, {448*896}, 0", f"s_sub_u32 s{sBOFF}, s{sBOFF}, s{sBT}"]
        for k in range(4):
            out.append(Item(f"buffer_load_dwordx4 v{vBD+k}, {s(S_W2 if p < 14 else S_WO,4)}, s{off} offen" + (f" offset:{1024*k}" if k else "") + NT(8) + " lds",
                            toks, pre=pre if k == 0 else (), post=post if k == 3 else (), m0=(sRING, self.b_slot(p)),
                            lat=OPT["miss"] if p < 4 or p >= 14 else None,
                            after=(lambda: self.btr[p - 6] if len(self.btr.get(p - 6, ())) == 8 else None) if k == 0 and p >= 6 else None))
        return out

    def b_read(self, p):
        toks = self.btr[p] = []
        out = []
        for ks in range(2):
            for t in range(2):
                out.append(Item([f"ds_read_b64_tr_b16 {a_(16*(p%16)+8*ks+4*t+2*h,2)}, v{vBT0+t} offset:{self.b_slot(p)+ks*2048+h*1024}" for h in range(2)],
                                toks, after=(lambda: self.btok[p] if len(self.btok[p]) == 4 else None) if ks + t == 0 else None))
        self.blast[p] = out[-1]
        return out

    def gelu_two(self, acc, soff, n, packed):
        pe = self.pe
        T = vTMP + 12
        U = [acc + 2 * n, acc + 2 * n + 2]
        R = [T, T + 2]
        if packed:
            for u, r in zip(U, R):
                pe(f"v_pk_mul_f32 {v(r,2)}, {v(u,2)}, {v(u,2)}")
                pe(f"v_pk_fma_f32 {v(r,2)}, {v(r,2)}, {s(sK2,2)}, {v(vK1,2)} op_sel_hi:[1,1,0]")
                pe(f"v_pk_mul_f32 {v(r,2)}, {v(r,2)}, {v(u,2)}")
            for k in range(4):
                pe(f"v_exp_f32 v{T+k}, v{T+k}")
            for r in R:
                pe(f"v_pk_add_f32 {v(r,2)}, {v(r,2)}, 1.0 op_sel_hi:[1,0]")
            for k in range(4):
                pe(f"v_rcp_f32 v{T+k}, v{T+k}")
            for u, r in zip(U, R):
                pe(f"v_pk_mul_f32 {v(r,2)}, {v(r,2)}, {v(u,2)}")
        else:
            u = U[0]
            for k in range(4):
                pe(f"v_mul_f32 v{T+k}, v{u+k}, v{u+k}")
                pe(f"v_fma_f32 v{T+k}, v{T+k}, s{sK2}, v{vK1}")
                pe(f"v_mul_f32 v{T+k}, v{T+k}, v{u+k}")
            for k in range(4):
                pe(f"v_exp_f32 v{T+k}, v{T+k}")
            for k in range(4):
                pe(f"v_add_f32 v{T+k}, 1.0, v{T+k}")
            for k in range(4):
                pe(f"v_rcp_f32 v{T+k}, v{T+k}")
            for k in range(4):
                pe(f"v_mul_f32 v{T+k}, v{T+k}, v{u+k}")
        for d in range(2):
            pe(f"v_cvt_pk_bf16_f32 v{acc+n+d}, v{T+2*d}, v{T+2*d+1}")
        if n % 4 == 2:
            fr = n // 4
            self.push(lambda: self.C.append(Item(
                f"buffer_store_dwordx4 {v(acc+4*fr,4)}, v{vLIN}, {s(S_WS,4)}, s{soff} offen offset:{fr*1024} sc1", self.tH)), 0)

    def ffn(self, unit):
        e = self.e
        acc0 = vACC + 48 if unit == 0 else vACC
        for sidx in range(28):
            g = 28 * unit + sidx
            if sidx % 4 == 0:
                self.stamp(group=2)
            self.hook(f"ffn{unit}_{sidx}")
            self.a.need(*self.ftok[g])
            for t in range(2):
                acc = v(acc0 + 16 * t, 16)
                e(f"{MFMA} {acc}, {v(vWR+8*(g%3)+4*t,4)}, {v(vX+4*sidx,4)}, {acc}")
                if t == 0 and sidx % 4 == 2:
                    if sidx < 26:
                        k = (unit, sidx // 4 + 1)
                        self.sync(self.C, self.wlast[k], self.wtok[k], drain_lds=False)
                    elif unit == 0:
                        self.drain("biasb")
                        self.sync(self.C, self.wlast[(1, 0)], self.wtok[(1, 0)])
                        e(f"v_add_u32 v{vTRF0}, {R_B-R_A}, v{vTRF0}")
                        e(f"v_add_u32 v{vTRF1}, {R_B-R_A}, v{vTRF1}")
                        self.add_w1(1, 6)
                        self.B.extend(self.b_dma(3) + self.b_dma(4) + self.b_dma(5))
                        for p in range(12):
                            self.B.extend(self.b_read(p) + self.b_dma(p + 6))
                        for p in range(12, 16):
                            self.B.extend(self.b_read(p))
                if g + 2 < 56:
                    self.rd_f(g + 2, t)
                self.gap((16, 12)[t])

    def phase1(self):
        e, pe, m = self.e, self.pe, self.m
        self.btok, self.btr, self.blast = {}, {}, {}
        self.tQKV, self.tH, tG = [], [], []
        self.qkv()
        self.stamp("qkv done")
        self.add_w1(1, 0)
        self.qkv_pack(2)
        self.push(lambda: self.add_w1(1, 1), 0)
        self.qkv_pack(1)
        self.qkv_pack(0)
        self.push(lambda: [self.add_w1(1, k) for k in range(2, 6)], 0)
        self.bias_init(vACC, TB1 + 128)
        pe(f"v_add_u32 v{vT}, {TAG_STEP}, v{vT}")
        self.mark("biasb")
        self.B.extend(self.b_dma(0) + self.b_dma(1) + self.b_dma(2))
        self.ffn(0)
        self.force(self.C, self.lastS)
        self.stamp("ffn a done")
        accA = vACC + 48
        pub1 = self.publish(sF1, self.tQKV, 6)
        pe(f"v_mul_f32 v{vGATE}, {fbits(-math.log2(math.e))}, v{accA}")
        pe(f"v_exp_f32 v{vGATE}, v{vGATE}")
        pe(f"v_and_b32 v{vGA}, 31, v{vL}")
        pe(f"v_add_f32 v{vGATE}, 1.0, v{vGATE}")
        pe(f"v_lshlrev_b32 v{vGA}, 2, v{vGA}")
        pe(f"v_rcp_f32 v{vGATE}, v{vGATE}")
        pe(f"v_mov_b32 v{vTMP}, {OOB}")
        pe(f"v_cndmask_b32 v{vTMP}, v{vGA}, v{vTMP}, {s(sHI,2)}")
        self.push(lambda: self.C.appendleft(Item(f"buffer_store_dword v{vGATE}, v{vTMP}, {s(S_WS,4)}, s{sGS} offen sc1", tG)), 0)
        self.push(lambda: self.publish(sF0P, tG, 1), 0)
        ga = deque(range(0, 16, 2))
        while ga and ga[0] < OPT["npairs"]:
            self.gelu_two(accA, sHA, ga.popleft(), False)
        self.hooks[f"ffn1_{OPT['pub1']}"] = lambda: self.force(self.P, pub1)
        self.hooks[f"ffn1_{OPT['poll1']}"] = lambda: self.poll_item(vF1A, 0)
        self.ffn(1)
        self.poll_check(vF1A, 0)
        e("s_barrier")
        self.att_loads()
        self.stamp("ffn b done")
        m(f"v_lshlrev_b32 v{vTMP+1}, 2, v{vL}")
        self.tB2 = []
        self.C.append(Item(f"buffer_load_dword v{vTMP+1}, {s(S_B2,4)}, s{sCB} offen lds", self.tB2,
                           pre=[f"s_lshl_b32 s{sCB}, s{sCT}, 7"], m0=(None, TB2), lat=OPT["miss"]))
        self.drain()
        for acc, soff, todo in ((accA, sHA, ga), (vACC, sHB, range(0, 16, 2))):
            for n in todo:
                self.gelu_two(acc, soff, n, True)
        self.drain()
        self.stamp("gelu done")

    def att_loads(self):
        self.tKV = []
        items = []
        for bb in range(3):
            for part in range(2):
                pre = ([f"s_add_u32 s{sCA}, s{sKOFF}, {16*64*2048+2048*bb}", f"s_cmp_lt_i32 s{sKV0}, {-bb}", f"s_cselect_b32 s{sCA}, {OOB}, s{sCA}"]
                       if part == 0 else [f"s_add_u32 s{sCA}, s{sCA}, {16*64*2048}"])
                for k in range(2):
                    items.append(Item(f"buffer_load_dwordx4 v{vLIN}, {s(S_WS,4)}, s{sCA} offen" + (" offset:1024" if k else "") + " sc1 lds",
                                      self.tKV, pre=pre if k == 0 else (), m0=(sMKV, KV + 24576 * part + 2048 * bb), lat=OPT["miss"]))
        for k in range(2):
            items.append(Item(f"buffer_load_dwordx4 {v(vQ+4*k,4)}, v{vLIN}, {s(S_WS,4)}, s{sQOFF} offen offset:{1024*k} sc1", self.tKV, lat=OPT["miss"]))
        self.C.extendleft(reversed(items))
        self.kvlast = items[-1]

    def rd_k(self, n):
        for k in range(2):
            self.m(f"ds_read_b128 {v(vKR+8*(n%3)+4*k,4)}, v{vKA} offset:{(n%9)*2048+k*1024}")

    def rd_v(self, i, st):
        for h in range(2):
            self.e(f"ds_read_b64_tr_b16 {v(vVR+4*st+2*h,2)}, v{vVA} offset:{i*2048+256*(2*st+h)}")

    def qk(self, i, k):
        S = v(vS + 16 * (i & 1), 16)
        C = S if k else v(vM0 if i == 0 else vM8 if i == 8 else vCD, 16)
        self.e(f"{MFMA} {S}, {v(vKR+8*(i%3)+4*k,4)}, {v(vQ+4*k,4)}, {C}")

    def patch(self, i, src):
        if not 2 <= i <= 7:
            return
        self.nlab += 1
        n = self.nlab
        self.e(f"s_cmp_eq_u32 s{sFIRST}, {i}")
        self.e(f"s_cbranch_scc1 L_pat{n}")
        self.a.label(f"L_patb{n}")
        self.tail += [f"L_pat{n}:", "s_nop 7"] + [f"v_mov_b32 v{vCD+k}, {src}" for k in range(16)] + ["s_nop 1", f"s_branch L_patb{n}"]

    def attention(self):
        e, pe, m = self.e, self.pe, self.m
        m(f"v_and_b32 v26, 31, v{vL}")
        m(f"v_lshrrev_b32 v27, 5, v{vL}")
        m(f"v_lshlrev_b32 v28, 2, v27")
        m(f"v_sub_u32 v26, v26, v28")
        m(f"s_cmp_gt_u32 s{sFIRST}, 0")
        m(f"s_cselect_b32 s{sT0}, {NINF}, 0")
        m(f"v_mov_b32 v28, s{sT0}")
        m(f"v_mov_b32 v29, {NINF}")
        m(f"s_cmp_gt_u32 s{sFIRST}, 1")
        m(f"s_cselect_b32 s{sT0}, {NINF}, 0")
        prs = (sM, sM3)
        for j0 in range(0, 16, 2):
            for d in range(2):
                jj = j0 + d
                m(f"v_cmp_le_i32 {s(prs[d],2)}, {(jj&3)+8*(jj>>2)}, v26")
            for d in range(2):
                m(f"v_mov_b32 v{vCD+j0+d}, s{sT0}")
            for d in range(2):
                jj = j0 + d
                m(f"v_cndmask_b32 v{vM8+jj}, v29, 0, {s(prs[d],2)}")
                m(f"v_cndmask_b32 v{vM0+jj}, v28, v29, {s(prs[d],2)}")
        m(f"s_lshl_b32 s{sT1}, s{sW}, 11")
        m(f"s_add_u32 s{sT1}, s{sT1}, {KV}")
        m(f"v_add_u32 v{vKA}, s{sT1}, v{vLIN}")
        m(f"v_bfe_u32 v28, v{vL}, 4, 1")
        m(f"v_xor_b32 v27, v27, v28")
        m(f"v_bfe_u32 v29, v{vL}, 2, 2")
        m(f"v_lshl_add_u32 v29, v27, 3, v29")
        m(f"v_and_b32 v27, 1, v{vL}")
        m(f"v_lshl_add_u32 v29, v27, 2, v29")
        m(f"v_lshlrev_b32 v29, 4, v29")
        m(f"v_lshl_add_u32 v29, v28, 10, v29")
        m(f"v_bfe_u32 v27, v{vL}, 1, 1")
        m(f"v_lshl_add_u32 v29, v27, 3, v29")
        m(f"s_add_u32 s{sT1}, s{sT1}, 24576")
        m(f"v_add_u32 v{vVA}, s{sT1}, v29")
        m(f"v_mov_b32 v{vMX}, {NINF}")
        m(f"v_mov_b32 v{vMX+1}, {NINF}")
        m(f"v_mov_b32 v{vF1A}, 0")
        m(f"v_add_u32 v{vA1H}, {112*1024}, v{vLIN}")
        m(f"v_add_u32 v{vA1O}, {32*1024}, v{vLIN}")
        self.sync(self.C, self.kvlast, self.tKV, drain_lds=False)
        self.stamp("kv in")
        self.poll_item(vF1A, f"s{sF0R}")
        pub2 = self.publish(sT3, self.tH, 8, pre=[f"s_add_u32 s{sT3}, s{sF1}, {F2-F1}"])
        self.rd_k(0)
        self.rd_k(1)
        for i in range(10):
            if i % 2 == 0:
                self.stamp(group=4)
            if i < 9:
                self.patch(i, "0")
                self.qk(i, 0)
                self.rd_k(i + 2)
                self.qk(i, 1)
            if i > 0:
                S = vS + 16 * ((i - 1) & 1)
                for k in range(8):
                    (m if k % 4 == 3 else e)(f"v_max3_f32 v{vMX+(k&1)}, v{S+2*k}, v{S+2*k+1}, v{vMX+(k&1)}")
        m(f"v_max_f32 v{vMX}, v{vMX}, v{vMX+1}")
        m(f"v_mov_b32 v{vMX+1}, v{vMX}")
        self.force(self.C)
        self.poll_check(vF1A, f"s{sF0R}")
        self.C.append(Item(f"buffer_load_dword v{vGATE}, v{vGA}, {s(S_WS,4)}, s{sGQ} offen sc1", lat=OPT["miss"]))
        m(f"v_permlane32_swap_b32 v{vMX}, v{vMX+1}")
        m(f"v_max_f32 v{vMX}, v{vMX}, v{vMX+1}")
        m(f"v_sub_f32 v{vMX}, 0, v{vMX}")
        for k in range(16):
            m(f"v_add_f32 v{vM0+k}, v{vM0+k}, v{vMX}")
        self.qk(0, 0)
        self.rd_k(2)
        self.qk(0, 1)
        m(f"v_add_f32 v{vMX+1}, s{sT0}, v{vMX}")
        for k in range(16):
            m(f"v_mov_b32 v{vCD+k}, v{vMX+1}")
        for k in range(16):
            m(f"v_add_f32 v{vM8+k}, v{vM8+k}, v{vMX}")
        self.stamp("pass 1 done")
        O = v(vO, 16)
        for i in range(9):
            S = vS + 16 * (i & 1)
            ex = lambda k: m(f"v_exp_f32 v{S+k}, v{S+k}")
            cv = lambda k: e(f"v_cvt_pk_bf16_f32 v{vP+k}, v{S+2*k}, v{S+2*k+1}")
            self.stamp(group=4)
            if i == OPT["poll2"]:
                self.poll_item(vF23A, f"s{sF2O}")
            if i == OPT["chk2"]:
                self.de_start()
            if i < 8:
                self.patch(i + 1, f"v{vMX}")
                self.qk(i + 1, 0)
            self.rd_v(i, 0)
            for k in range(3):
                ex(k)
            if i < 8:
                self.qk(i + 1, 1)
            self.rd_v(i, 1)
            for k in range(3, 9):
                ex(k)
            for k in range(4):
                cv(k)
            ex(9)
            ex(10)
            e(f"{MFMA} {O}, {v(vVR,4)}, {v(vP,4)}, {O if i else 0}")
            if i < 6:
                self.rd_k(i + 3)
            for k in range(11, 16):
                ex(k)
            for k in range(4, 8):
                cv(k)
            self.side()
            e(f"{MFMA} {O}, {v(vVR+4,4)}, {v(vP+4,4)}, {O}")
        self.a.need(*self.tB2)
        m(f"v_subrev_u32 v{vTBL}, {(TB1 - TB1 % 2048) - (TB2 - TB2 % 2048)}, v{vTBL}")
        m(f"s_cmp_eq_u32 s{sW}, 0")
        m(f"s_cselect_b32 s{sM}, 1.0, 0")
        m(f"s_mov_b32 s{sM+1}, s{sM}")
        self.bias_init(vCD, TB2, factor=s(sM, 2))
        for _ in range(12):
            self.q.popleft()[0]()
        m(f"v_mov_b32 v{vMX}, v{vO+12}")
        m(f"v_mov_b32 v{vMX+1}, v{vO+12}")
        m(f"v_permlane32_swap_b32 v{vMX}, v{vMX+1}")
        m(f"v_rcp_f32 v{vMX}, v{vMX+1}")
        m(f"v_mul_f32 v{vMX}, v{vMX}, v{vGATE}")
        for k in range(8):
            m(f"v_pk_mul_f32 {v(vO+2*k,2)}, {v(vO+2*k,2)}, {v(vMX,2)} op_sel_hi:[1,0]")
        self.tO = []
        for k in range(8):
            m(f"v_cvt_pk_bf16_f32 v{vP+k}, v{vO+2*k}, v{vO+2*k+1}")
            if k == 3:
                self.P.append(Item(f"buffer_store_dwordx4 {v(vP,4)}, v{vLIN}, {s(S_WS,4)}, s{sOS} offen sc1", self.tO))
        m(f"v_cndmask_b32 v{vP+6}, v{vP+6}, 0, {s(sHI,2)}")
        self.P.append(Item(f"buffer_store_dwordx4 {v(vP+4,4)}, v{vLIN}, {s(S_WS,4)}, s{sOS} offen offset:1024 sc1", self.tO))
        self.drain()
        self.force(self.P)
        self.stamp("attention done")

    def ar(self, p, k):
        return (64, 80, 104, 120)[p % 4] + 4 * k

    def a_load(self, p):
        pre = []
        if p == 14:
            pre = [f"s_lshl_b32 s{sAOFF}, s{sRB0}, 2", f"s_add_u32 s{sAOFF}, s{sAOFF}, s{sW}",
                   f"s_lshl_b32 s{sAOFF}, s{sAOFF}, 13", f"s_add_u32 s{sAOFF}, s{sAOFF}, {O_BASE}"]
        post = [f"s_add_u32 s{sAOFF}, s{sAOFF}, 2048"]
        if p < 13:
            post += [f"s_cmp_eq_u32 s{sAOFF}, s{sAEND}", f"s_cselect_b32 s{sCB}, {28*1024}, 0", f"s_sub_u32 s{sAOFF}, s{sAOFF}, s{sCB}"]
        for n in range(4):
            ks, rb = n >> 1, n & 1
            ad = vLIN if rb == 0 else (vA1H if p < 14 else vA1O)
            self.C.append(Item(f"buffer_load_dwordx4 {v(self.ar(p,n),4)}, v{ad}, {s(S_WS,4)}, s{sAOFF} offen offset:{1024*ks} sc1",
                               pre=pre if n == 0 else (), post=post if n == 3 else (), lat=OPT["miss"] if p < 2 or p in (14, 15) else None))
        self.alast[p] = self.C[-1]

    def de_start(self):
        e = self.e
        self.alast = {}
        self.nlab += 1
        n = self.nlab
        self.force(self.P)
        self.a.need(*[k for k, r in self.a.vm if f"v{vPOLL}" in r])
        e(f"s_cmp_ge_u32 s{sLOC}, 28")
        e(f"s_cbranch_scc1 L_nopoll{n}")
        self.poll_check(vF23A, f"s{sF2O}")
        self.a.label(f"L_nopoll{n}")
        for p in range(4):
            self.a_load(p)
        for rb in range(2):
            self.C.append(Item(f"buffer_load_dword v{vG+rb}, v{vGA}, {s(S_WS,4)}, s{sGD} offen offset:{128*rb} sc1", lat=OPT["miss"]))

    def de(self):
        e, pe, m = self.e, self.pe, self.m
        e(f"s_cmp_ge_u32 s{sLOC}, 28")
        e("s_cbranch_scc1 L_idle")
        self.publish(sF3P, self.tO, 2)
        vBI = vCD

        def mm(p, ks, qd):
            rb, t = qd >> 1, qd & 1
            acc = v(vAB + 16 * qd, 16)
            C = v(vBI + 16 * t, 16) if p == 0 and ks == 0 else acc
            e(f"{MFMA} {acc}, {a_(16*(p%16)+8*ks+4*t,4)}, {v(self.ar(p,2*ks+rb),4)}, {C}")

        def scale(qd, half):
            for k in range(8 * half, 8 * half + 8):
                e(f"v_mul_f32 v{vAB+16*qd+k}, v{vG+(qd>>1)}, v{vAB+16*qd+k}")

        for p in range(17):
            self.force(self.C, self.alast[p])
            self.force(self.B, self.blast[p])
            if p in (1, 2):
                self.B.extend(self.b_read(15 + p))
            if p == OPT["poll3"]:
                e(f"s_add_u32 s{sF2O}, s{sF2O}, {F3-F2}")
                self.poll_item(vF23A, f"s{sF2O}")
            if p == 11:
                for rb in range(2):
                    e(f"v_sub_f32 v{vG+rb}, 1.0, v{vG+rb}")
            if p in (13, 14):
                for n in range(8):
                    mm(p, n & 1, n >> 1)
                    k = n - 4 + 8 * (p - 13)
                    self.side()
                    if 0 <= k < 8:
                        scale(k >> 1, k & 1)
            else:
                for ks in range(2):
                    for qd in range(4):
                        mm(p, ks, qd)
                        self.side()
            if p + 4 < 18:
                if p + 4 == 14:
                    self.poll_check(vF23A, f"s{sF2O}")
                self.a_load(p + 4)
        self.force(self.C)
        self.force(self.B)
        self.stamp("pair 16 done")
        e(f"v_add_u32 v24, s{sRING}, v{vLIN}")
        for d in range(1, 4):
            e(f"s_sub_u32 s{sT0}, s{sW}, {d}")
            e(f"s_and_b32 s{sT0}, s{sT0}, 3")
            e(f"s_mul_i32 s{sT0}, s{sT0}, 12288")
            e(f"s_add_u32 s{sT0}, s{sT0}, {RED+(d-1)*4096}")
            e(f"v_add_u32 v{24+d}, s{sT0}, v{vLIN}")
        e(f"v_and_b32 v28, 31, v{vL}")
        e(f"v_mul_u32_u24 v28, 896, v28")
        e(f"v_lshrrev_b32 v29, 5, v{vL}")
        e(f"v_lshl_add_u32 v28, v29, 4, v28")
        self.a.need(*[k for k, _ in self.a.vm + self.a.lg])
        for w in range(4):
            clk = self.a.clk, self.a.mf_free, self.a.lds_free
            if w:
                self.a.label(f"L_wr{w}")
            if w < 3:
                e(f"s_cmp_lg_u32 s{sW}, {w}")
                e(f"s_cbranch_scc1 L_wr{w+1}")
            order = [(w + d) & 3 for d in (1, 2, 3, 4)]
            for n, qd in enumerate(order):
                mm(17, 0, qd)
                mm(17, 1, qd)
                if n >= 2:
                    for k in range(4):
                        e(f"ds_write_b128 v24, {v(vAB+16*order[n-2]+4*k,4)} offset:{(n-2)*4096+k*1024}")
            for k in range(4):
                e(f"ds_write_b128 v24, {v(vAB+16*order[2]+4*k,4)} offset:{2*4096+k*1024}")
            for k in range(8):
                e(f"v_mov_b64 {v(64+2*k,2)}, {v(vAB+16*w+2*k,2)}")
            e("s_waitcnt lgkmcnt(0)")
            if w < 3:
                e("s_branch L_wrdone")
                self.a.clk, self.a.mf_free, self.a.lds_free = clk
        self.a.label("L_wrdone")
        e("s_barrier")
        for d in range(1, 4):
            for k in range(4):
                e(f"ds_read_b128 {v(64+16*d+4*k,4)}, v{24+d} offset:{k*1024}")
        for d in range(1, 4):
            for k in range(8):
                e(f"v_pk_add_f32 {v(64+2*k,2)}, {v(64+2*k,2)}, {v(64+16*d+2*k,2)}")
        for k in range(8):
            e(f"v_cvt_pk_bf16_f32 v{32+k}, v{64+2*k}, v{64+2*k+1}")
        for hh in range(2):
            for d in range(2):
                e(f"v_permlane32_swap_b32 v{32+4*hh+d}, v{32+4*hh+2+d}")
            e(f"buffer_store_dwordx4 {v(32+4*hh,4)}, v28, {s(S_OUT,4)}, s{sOUT} offen offset:{32*hh}")
        self.stamp("end")
        self.write_stamps()
        e("s_endpgm")
        self.a.label("L_idle")
        e("s_waitcnt vmcnt(0)")
        e(self.pub_text(sF3P))
        e("s_cmp_lg_u32 s2, 248")
        e("s_cbranch_scc1 L_end")
        e(f"s_cmp_lg_u32 s{sW}, 0")
        e("s_cbranch_scc1 L_end")
        e(f"v_lshlrev_b32 v24, 7, v{vL}")
        e(f"s_mov_b32 s{sSPIN}, 0")
        self.a.label("L_ep")
        for k in range(16):
            e(f"s_mov_b32 s{sT0}, {F1+8192*k}")
            e(f"buffer_load_dword v{40+k}, v24, {s(S_WS,4)}, s{sT0} offen sc1")
        e(f"s_add_u32 s{sSPIN}, s{sSPIN}, 1")
        e("s_waitcnt vmcnt(0)")
        for k in range(16):
            e(f"v_xor_b32 v{40+k}, v{vT}, v{40+k}")
        for k in range(1, 16):
            e(f"v_or_b32 v40, v40, v{40+k}")
        e(f"v_cmp_ne_u32 vcc, 0, v40")
        e(f"s_cmp_gt_u32 s{sSPIN}, 0x8000")
        e("s_cbranch_scc1 L_epd")
        e("s_cbranch_vccnz L_ep")
        self.a.label("L_epd")
        e(f"s_mov_b32 s{sT0}, {E_OFF}")
        e(self.pub_text(sT0))

    def write_stamps(self):
        e = self.e
        if OPT["probe"]:
            e(f"s_sub_u32 s{sT0}, s{sP0+1}, s{sP0}")
            e(f"s_lshl_b32 s{sT0}, s{sT0}, 2")
            e(f"s_add_u32 s{sT0}, s{sT0}, 72000")
            self.a.label("L_probe")
            e(f"s_memtime {s(sM3,2)}")
            e("s_waitcnt lgkmcnt(0)")
            e(f"s_sub_u32 s{sT1}, s{sM3}, s{sP0}")
            e(f"s_cmp_lt_u32 s{sT1}, s{sT0}")
            e("s_cbranch_scc1 L_probe")
        if not OPT["stamps"]:
            return
        e(f"s_lshl_b32 s{sT0}, s2, 2")
        e(f"s_add_u32 s{sT0}, s{sT0}, s{sW}")
        e(f"s_lshl_b32 s{sT1}, s{sT0}, 7")
        e(f"s_add_u32 s{sT1}, s{sT1}, {ST_BASE}")
        e(f"s_mov_b32 s{sT2}, {self.nst}")
        e(f"v_lshlrev_b32 v40, 2, v{vL}")
        e(f"v_writelane_b32 v{vST}, s{sT2}, 31")
        e(f"v_cmp_gt_u32 vcc, 32, v{vL}")
        e(f"v_mov_b32 v41, {OOB}")
        e(f"v_cndmask_b32 v40, v41, v40, vcc")
        e(f"buffer_store_dword v{vST}, v40, {s(S_WS,4)}, s{sT1} offen")
        if OPT["dbg"]:
            e(f"v_readfirstlane_b32 s{sT1}, v{vST}")
            e(f"s_cmp_eq_u32 s{sT0}, {OPT['dbg']}")
            e(f"s_cselect_b32 s{sT0}, 0, {OOB}")
            e(f"s_mov_b32 s{S_DBG+2}, 256")
            e(f"s_mov_b32 s{S_DBG+3}, 0x20000")
            e(f"v_subrev_u32 v{vST}, s{sT1}, v{vST}")
            e(f"buffer_store_dword v{vST}, v40, {s(S_DBG,4)}, s{sT0} offen")

    def build(self):
        self.prologue()
        self.phase1()
        self.attention()
        self.de()
        self.a.label("L_end")
        self.e("s_endpgm")
        if OPT["strip"]:
            keep, pro = [], True
            for i in self.a.ins:
                if i.kind == "barrier":
                    pro = False
                drop = i.kind in ("mfma", "trans", "dsread", "dswrite") or (
                    not pro and i.kind == "valu" and any(r[0] == "v" and r != "vcc" and int(r[1:]) >= 30 for r in i.w) and "v40" not in i.w and "v41" not in i.w)
                if OPT["strip"] == 2 and i.kind == "vstore" and "x4" in i.mn:
                    i = Ins(i.text.replace("offen", "offen").replace(f"v{vLIN},", f"v{vL0},").replace("v24,", f"v{vL0},").replace("v25,", f"v{vL0},").replace("v26,", f"v{vL0},").replace("v27,", f"v{vL0},"))
                if not drop:
                    keep.append(i)
            self.a.ins = keep
        self.a.finalize()
        body = self.a.text() + "\n" + "\n".join(t if t.endswith(":") else "    " + t for t in self.tail) + "\nL_code_end:\n    s_endpgm\n"
        head = f"""; Fused gated mix: sliding-window attention branch + GELU FFN branch, one persistent launch.
; @launch grid=(256,1,1) block=(256,1,1) lds={LDS_SIZE}
.amdgcn_target "amdgcn-amd-amdhsa--gfx950"
.text
.globl {NAME}_kernel
.p2align 8
.type {NAME}_kernel,@function
{NAME}_kernel:
"""
        foot = f""".section .rodata,"a"
.p2align 6
.amdhsa_kernel {NAME}_kernel
  .amdhsa_next_free_vgpr 512
  .amdhsa_next_free_sgpr 102
  .amdhsa_accum_offset 256
  .amdhsa_group_segment_fixed_size 0
  .amdhsa_kernarg_size 96
  .amdhsa_user_sgpr_count 2
  .amdhsa_user_sgpr_kernarg_segment_ptr 1
  .amdhsa_system_sgpr_workgroup_id_x 1
  .amdhsa_float_denorm_mode_32 3
.end_amdhsa_kernel
"""
        return head + body + foot


if __name__ == "__main__":
    g = Gen()
    txt = g.build()
    out = sys.argv[1] if len(sys.argv) > 1 else f"cdna_kernels/{NAME}.s"
    open(out, "w").write(txt)
    kinds = {}
    for i in g.a.ins:
        kinds[i.kind] = kinds.get(i.kind, 0) + 1
    print(out, g.a.stats, kinds)
    if OPT["log"]:
        print("\n".join(g.a.log))
        print("model stalls", g.a.stall, "pipe busy", g.a.busy)
```

```python
import math, struct, sys
from collections import deque
sys.path.insert(0, "tools")
from asmlib import Asm, Ins, v, a_, s

NAME = "gated_mix__sliding_block__dense_activation_gelu__prompt"
OPT = dict(stamps=0, dbg=0, npairs=6, probe=0, poll1=20, poll2=4, chk2=7, poll3=7, norot=0, log=0,
           miss=480, pub1=13, svc=64, st=160, lat=480, win=8, strip=0, rot1=0, rot2=2, cpf=1, nt=0)
for arg in sys.argv[2:]:
    k, val = arg.split("=")
    assert k in OPT, k
    OPT[k] = int(val)


def fbits(x):
    return struct.unpack("<I", struct.pack("<f", x))[0]


QKV_BASE, H_BASE, O_BASE, G_BASE = 0, 0x600000, 0xD00000, 0xF00000
F_BASE, E_OFF, ST_BASE, WS_SIZE = 0xF10000, 0xF80000, 0xFA0000, 0x1000000
F1, F2, F3, F0 = F_BASE, F_BASE + 1024 * 128, F_BASE + 2048 * 128, F_BASE + 3072 * 128
OOB = 0x40000000
TAG_STEP = 0x6B43A9B7
R_A, R_Q, R_B, RING = 0, 57344, 106496, 57344
KV = R_B
XST = 106496
TB1, DUMMY, TB2, RED = 163328, 159744, 0, 8192
LDS_SIZE = 163840
S_CODE, S_X, S_WQ, S_W1, S_WS, S_W2, S_WO, S_OUT, S_B1, S_B2, S_GW, S_DBG = 4, 8, 12, 16, 20, 24, 28, 32, 36, 40, 44, 96
sMX = 3
sW, sC, sLIGHT, sUA, sUB, sJ, sRB0, sCT, sLOC, sRB, sQB, sFIRST = range(48, 60)
sT0, sT1, sT2, sT3 = 60, 61, 62, 63
sHI, sM, sG = 64, 66, 68
sCA, sCB, sBT = 75, 76, 77
sMQ, sMA, sMAS, sMB, sRING = 78, 79, 80, 81, 82
sBOFF, sBEND, sAOFF, sAEND, sKV0 = 83, 84, 85, 86, 87
sM3, sF2O, sSPIN = 88, 90, 91
sQS, sHA, sHB, sF1, sGS, sF0P = 0, 1, 4, 5, 6, 7
sKOFF, sMKV, sQOFF, sOS, sF3P, sF0R, sK2 = 36, 37, 38, 39, 44, 45, 46
sGQ, sGD, sNQ, sOUT = 92, 93, 94, 95
sP0 = 100
vL, vLIN, vT, vL0, vK1, vST = 0, 1, 2, 3, 4, 5
vTRQ, vTRF0, vTRF1 = 6, 7, 8
vW1A0, vW1A1, vPV = 9, 10, 11
vBD = 12
vBT0, vBT1 = 16, 17
vF1A, vF23A = 18, 19
vWQ = 20
vPOLL, vGA, vGATE = 20, 21, 22
vTBL = 23
vTMP = 24
vXD, vXR = 32, 36
vWR = 40
vACC = 64
vX = 144
vQ, vS, vCD, vM0, vM8, vO, vP, vMX = 96, 144, 176, 192, 208, 224, 240, 248
vKR, vVR, vKA, vVA = 40, 136, 6, 7
vAB, vBI, vA1H, vA1O, vG = 144, 208, 8, 9, 10

C_GELU = -2.0 * math.sqrt(2.0 / math.pi) * math.log2(math.e)
K1, K2 = fbits(C_GELU), fbits(C_GELU * 0.044715)
QSCALE = fbits(math.log2(math.e) / math.sqrt(28.0))
NINF = 0xFF800000
MFMA = "v_mfma_f32_32x32x16_bf16"


def NT(bit):
    return " nt" if OPT["nt"] & bit else ""


class Item:
    def __init__(self, text, sink=None, pre=(), post=(), m0=None, after=None, lat=None):
        self.text = [text] if isinstance(text, str) else text
        self.sink, self.pre, self.post, self.m0, self.after, self.lat = sink, pre, post, m0, after, lat
        self.vm = self.text[0].startswith("buffer")
        self.done = False


class Gen:
    def __init__(self):
        self.a = Asm()
        self.a.p_svc, self.a.p_st, self.a.p_lat, self.a.p_win = OPT['svc'], OPT['st'], OPT['lat'], OPT['win']
        self.q = deque()
        self.P, self.C, self.B = deque(), deque(), deque()
        self.tail = []
        self.nst = self.nlab = self.nmark = 0
        self.marks = set()
        self.m0 = None
        self.hooks = {}

    def e(self, t):
        return self.a.e(t)

    def emit_item(self, st):
        it = st.popleft()
        c0 = len(self.a.ins)
        if it.after:
            toks = it.after()
            assert toks is not None, "forced item whose producers are not emitted: " + it.text[0]
            self.a.need(*toks)
        for t in it.pre:
            self.e(t)
        if it.m0 and it.m0 != self.m0:
            reg, imm = it.m0[:2]
            self.e(f"s_mov_b32 m0, {imm}" if reg is None else f"s_add_u32 m0, s{reg}, {imm}" if imm else f"s_mov_b32 m0, s{reg}")
            self.m0 = it.m0
        for t in it.text:
            self.a.next_lat = it.lat
            k = self.e(t)
            if it.sink is not None:
                it.sink.append(k)
        for t in it.post:
            self.e(t)
        it.done = True
        return 4 * (len(self.a.ins) - c0) + (4 if it.vm else 0)

    def side(self):
        a = self.a
        for st in (self.P, self.C, self.B):
            if not st:
                continue
            it = st[0]
            if not (a.vm_free() if it.vm else a.lds_free - a.clk <= 8):
                continue
            if it.after:
                toks = it.after()
                if toks is None or a.est(toks) > a.clk:
                    continue
            return self.emit_item(st)
        return 0

    def force(self, st, it=None):
        while st and (it is None or not it.done):
            self.emit_item(st)

    def m(self, t):
        k = self.e(t)
        if not t.startswith(("s_cmp", "s_cselect", "v_cmp")):
            self.side()
        return k

    def push(self, fn, cost=4):
        self.q.append((fn, cost))

    def pe(self, t):
        cost = 8 if Ins(t).kind == "trans" else 4
        if t.startswith("s_cselect"):
            fn, c = self.q.pop()
            assert getattr(fn, "scc", False), "s_cselect must follow its s_cmp directly: " + t
            g = lambda fn=fn, t=t: (fn(), self.e(t))
            g.scc = True
            self.q.append((g, c + cost))
            return
        f = lambda t=t: self.e(t)
        f.scc = t.startswith("s_cmp")
        self.q.append((f, cost))

    def gap(self, budget):
        budget -= self.side()
        while self.q and budget >= min(self.q[0][1], 8):
            fn, c = self.q.popleft()
            fn()
            budget -= c

    def drain(self, name=None):
        while (self.q if name is None else name not in self.marks):
            self.q.popleft()[0]()
            self.side()

    def mark(self, name):
        self.push(lambda: self.marks.add(name), 0)

    def hook(self, name):
        fn = self.hooks.pop(name, None)
        if fn:
            fn()

    def stamp(self, name="", group=1):
        if group == 1:
            self.a.log.append(f"{self.a.clk:6d} {name}  (pipe busy {self.a.busy})")
        if (OPT["stamps"] == group or (OPT["stamps"] and self.nst == 0)) and self.nst < 16:
            clk = self.a.clk
            self.e(f"s_memtime {s(sM3,2)}")
            self.e("s_waitcnt lgkmcnt(0)")
            self.e(f"v_writelane_b32 v{vST}, s{sM3}, {self.nst}")
            self.a.clk = clk
            self.nst += 1
        if group == 1:
            self.nmark += 1
            if OPT["probe"] == self.nmark:
                self.e(f"s_memtime {s(sM3,2)}")
                self.e("s_waitcnt lgkmcnt(0)")
                self.e(f"s_mov_b32 s{sP0+1}, s{sM3}")

    def poll_item(self, addr, soff):
        it = Item(f"buffer_load_dword {v(vPOLL)}, {v(addr)}, {s(S_WS,4)}, {soff} offen sc1", lat=OPT["miss"])
        self.P.append(it)
        return it

    def poll_check(self, addr, soff):
        self.force(self.P)
        self.nlab += 1
        n = self.nlab
        if OPT["stamps"]:
            self.e(f"s_mov_b32 s{sSPIN}, 0")
        self.e(f"v_cmp_ne_u32 vcc, {v(vT)}, {v(vPOLL)}")
        self.e(f"s_cbranch_vccnz L_slow{n}")
        self.a.label(f"L_back{n}")
        if OPT["stamps"]:
            self.npoll = getattr(self, "npoll", 0) + 1
            self.e(f"v_writelane_b32 v{vST}, s{sSPIN}, {15 + self.npoll}")
        self.tail += [f"L_slow{n}:", f"s_mov_b32 s{sSPIN}, 0", f"L_spin{n}:",
                      f"buffer_load_dword {v(vPOLL)}, {v(addr)}, {s(S_WS,4)}, {soff} offen sc1",
                      f"s_add_u32 s{sSPIN}, s{sSPIN}, 1",
                      "s_waitcnt vmcnt(0)",
                      f"v_cmp_ne_u32 vcc, {v(vT)}, {v(vPOLL)}",
                      f"s_cmp_gt_u32 s{sSPIN}, 0x20000",
                      f"s_cbranch_scc1 L_back{n}",
                      f"s_cbranch_vccnz L_spin{n}",
                      f"s_branch L_back{n}"]

    def pub_text(self, soff):
        return f"buffer_store_dword {v(vT)}, {v(vL0)}, {s(S_WS,4)}, s{soff} offen sc1"

    def publish(self, soff, toks, n, pre=()):
        it = Item(self.pub_text(soff), pre=pre, after=lambda: toks if len(toks) == n else None)
        self.P.append(it)
        return it

    def prologue(self):
        e, m = self.e, self.m
        e("s_cmp_ge_u32 s2, 256")
        e("s_cbranch_scc1 L_end")
        if OPT["probe"]:
            e(f"s_memtime {s(sP0,2)}")
        def kargs(base):
            for srd, off in ((S_X, 0), (S_WQ, 8), (S_WS, 88), (S_GW, 64), (S_B1, 40), (S_W1, 32), (S_W2, 48), (S_WO, 16), (S_B2, 56), (S_OUT, 72)):
                e(f"s_load_dwordx2 {s(srd,2)}, {base}, {off}")
        if OPT["probe"] == 102:
            e("s_mov_b64 s[98:99], s[0:1]")
        else:
            kargs("s[0:1]")
        if OPT["probe"] == 101:
            e("s_waitcnt lgkmcnt(0)")
            e(f"s_memtime {s(sM3,2)}")
            e("s_waitcnt lgkmcnt(0)")
            e(f"s_mov_b32 s{sP0+1}, s{sM3}")
        if OPT["dbg"]:
            e(f"s_load_dwordx2 {s(S_DBG,2)}, s[0:1], 80")
        e(f"s_getpc_b64 {s(S_CODE,2)}")
        self.a.label("L_pc")
        e(f"s_lshr_b32 s{sLOC}, s2, 3")
        e(f"v_lshrrev_b32 v1, 6, v0")
        e(f"v_and_b32 v{vL}, 63, v0")
        e(f"s_and_b32 s{sT0}, s{sLOC}, 7")
        e(f"v_readfirstlane_b32 s{sW}, v1")
        e(f"s_mov_b32 s{S_CODE+2}, L_code_end-L_pc")
        e(f"s_mov_b32 s{S_CODE+3}, 0x20000")
        e(f"v_and_b32 v24, 7, v{vL}")
        e(f"v_lshl_add_u32 v24, v1, 3, v24")
        e(f"v_lshlrev_b32 v24, 7, v24")
        e(f"s_lshl_b32 s{sT1}, s{sT0}, 12")
        if OPT["cpf"]:
            e(f"buffer_load_dword v46, v24, {s(S_CODE,4)}, 0 offen")
        e(f"buffer_load_dword v25, v24, {s(S_CODE,4)}, s{sT1} offen")
        e(f"s_lshr_b32 s{sT1}, s{sLOC}, 3")
        e(f"s_bfe_u32 s{sRB}, s2, 0x20001")
        e(f"s_lshl_b32 s{sRB}, s{sRB}, 2")
        e(f"s_add_u32 s{sRB}, s{sRB}, s{sT1}")
        e(f"s_and_b32 s{sC}, s2, 1")
        e(f"s_lshl_b32 s{sC}, s{sC}, 3")
        e(f"s_add_u32 s{sC}, s{sC}, s{sT0}")
        e(f"s_lshl_b32 s{sT1}, s{sT1}, 1")
        e(f"s_add_u32 s{sT0}, s{sT0}, s{sT1}")
        e(f"s_sub_u32 s{sT1}, s{sT0}, 7")
        e(f"s_cmp_ge_u32 s{sT0}, 7")
        e(f"s_cselect_b32 s{sG}, s{sT1}, s{sT0}")
        if OPT["rot1"] == 0:
            e(f"s_mov_b32 s{sG}, 0")
        if OPT["rot1"] == 2:
            e(f"s_and_b32 s{sT0}, s2, 7")
            e(f"s_cmp_eq_u32 s{sT0}, 7")
            e(f"s_cselect_b32 s{sG}, 0, s{sT0}")
        e(f"s_lshl_b32 s{sRB}, s{sRB}, 2")
        e(f"s_add_u32 s{sRB}, s{sRB}, s{sW}")
        for srd, size in ((S_X, 2048 * 896), (S_WQ, 448 * 2688)):
            e(f"s_mov_b32 s{srd+2}, {size}")
            e(f"s_mov_b32 s{srd+3}, 0x20000")
        e(f"v_lshrrev_b32 v24, 3, v{vL}")
        e(f"s_lshl_b32 s{sT0}, s{sRB}, 5")
        e(f"v_add_u32 v24, s{sT0}, v24")
        e(f"v_mul_u32_u24 v24, 896, v24")
        e(f"v_lshrrev_b32 v26, 4, v{vL}")
        e(f"v_and_b32 v27, 7, v{vL}")
        e(f"v_xor_b32 v26, v26, v27")
        e(f"v_lshl_add_u32 v{vXD}, v26, 4, v24")
        e(f"v_xor_b32 v{vXD+1}, 64, v{vXD}")
        e(f"v_add_u32 v{vXD+2}, {2*(7168-1024)}, v{vXD}")
        e(f"v_add_u32 v{vXD+3}, {3*(7168-1024)}, v{vXD+1}")
        e(f"v_add_u32 v{vXD+1}, {7168-1024}, v{vXD+1}")
        e(f"s_mul_i32 s{sMX}, s{sW}, 12288")
        e(f"s_add_u32 s{sRING}, s{sMX}, {RED}")
        e(f"s_add_u32 s{sMX}, s{sMX}, {XST}")
        e(f"s_mul_i32 s{sT0}, s{sC}, 168")
        e(f"s_and_b32 s{sT0}, s{sT0}, 0xfffffff0")
        e(f"s_mul_i32 s{sT1}, s{sW}, {16*2688}")
        e(f"s_add_u32 s{sT0}, s{sT0}, s{sT1}")
        for i in range(3):
            e(f"v_add_u32 v24, {64*i}, v{vL}")
            e(f"v_mul_u32_u24 v26, 171, v24")
            e(f"v_lshrrev_b32 v26, 11, v26")
            e(f"v_mul_u32_u24 v27, 12, v26")
            e(f"v_sub_u32 v24, v24, v27")
            e(f"v_min_u32 v24, 10, v24")
            e(f"v_mul_u32_u24 v26, 2688, v26")
            e(f"v_lshl_add_u32 v24, v24, 4, v26")
            e(f"v_add_u32 v{vWQ+i}, s{sT0}, v24")
            if i < 2:
                e(f"s_sub_u32 s{sT0}, s{sT0}, 1024")
        e(f"s_mul_i32 s{sMQ}, s{sW}, {16*192}")
        e(f"s_add_u32 s{sMQ}, s{sMQ}, {R_Q}")
        for i in range(1, 7):
            e(f"s_add_u32 s{sT0}, s{sG+i-1}, 1")
            e(f"s_cmp_eq_u32 s{sT0}, 7")
            e(f"s_cselect_b32 s{sG+i}, 0, s{sT0}")
        for srd, size in ((S_WS, WS_SIZE), (S_GW, 896), (S_B1, 3584), (S_W1, 448 * 3584), (S_B2, 896), (S_OUT, 2048 * 896)):
            e(f"s_mov_b32 s{srd+2}, {size}")
            e(f"s_mov_b32 s{srd+3}, 0x20000")
        e(f"s_lshr_b32 s{sLIGHT}, 0x1248, s{sC}")
        e(f"s_and_b32 s{sLIGHT}, s{sLIGHT}, 1")
        e(f"s_bfm_b32 s{sT0}, s{sC}, 0")
        e(f"s_and_b32 s{sT0}, s{sT0}, 0x1248")
        e(f"s_bcnt1_i32_b32 s{sT0}, s{sT0}")
        e(f"s_lshl_b32 s{sUA}, s{sC}, 1")
        e(f"s_sub_u32 s{sUA}, s{sUA}, s{sT0}")
        e(f"s_add_u32 s{sUB}, s{sUA}, 1")
        e(f"s_sub_u32 s{sUB}, s{sUB}, s{sLIGHT}")
        e(f"s_lshl_b32 s{sT0}, s{sW}, 6")
        e(f"v_add_u32 v26, s{sT0}, v{vL}")
        e(f"s_lshl_b32 s{sT1}, s{sG}, 6")
        for h in range(2):
            e(f"v_add_u32 v27, s{sT1}, v26")
            if h:
                e(f"v_add_u32 v27, 256, v27")
            e(f"v_subrev_u32 v28, 448, v27")
            e(f"v_min_u32 v27, v27, v28")
            e(f"v_lshlrev_b32 v{42+h}, 1, v27")
        e(f"s_lshl_b32 s{sT0}, s{sUA}, 7")
        e(f"s_cmp_eq_u32 s{sLIGHT}, 1")
        e(f"s_cselect_b32 s{sT0}, {OOB}, s{sT0}")
        e(f"s_lshl_b32 s{sT1}, s{sUB}, 7")
        e(f"s_sub_u32 s{sT1}, s{sT1}, 128")
        e(f"s_mov_b32 s{sHI}, 0")
        e(f"s_mov_b32 s{sHI+1}, -1")
        e(f"v_mov_b32 v27, s{sT0}")
        e(f"v_mov_b32 v28, s{sT1}")
        e(f"v_cndmask_b32 v27, v27, v28, {s(sHI,2)}")
        e(f"v_lshl_add_u32 v44, v{vL}, 2, v27")
        e(f"v_mov_b32 v45, {E_OFF}")
        m(f"v_lshlrev_b32 v{vLIN}, 4, v{vL}")
        m(f"v_bfe_u32 v24, v{vL}, 2, 2")
        m(f"v_lshrrev_b32 v27, 5, v{vL}")
        m(f"v_bfe_u32 v28, v{vL}, 4, 1")
        m(f"v_and_b32 v29, 3, v{vL}")
        m(f"v_lshlrev_b32 v29, 3, v29")
        m(f"v_lshl_add_u32 v29, v28, 5, v29")
        m(f"v_lshl_add_u32 v40, v27, 3, v24")
        m(f"v_mul_u32_u24 v41, 192, v40")
        m(f"s_and_b32 s{sT0}, s{sC}, 1")
        m(f"s_lshl_b32 s{sT0}, s{sT0}, 3")
        m(f"s_add_u32 s{sT0}, s{sT0}, {R_Q}")
        m(f"v_add3_u32 v{vTRQ}, v41, v29, s{sT0}")
        m(f"v_lshrrev_b32 v41, 1, v24")
        m(f"v_lshl_add_u32 v29, v41, 6, v29")
        m(f"v_lshl_add_u32 v{vTRF0}, v40, 7, v29")
        m(f"v_xor_b32 v{vTRF1}, 64, v{vTRF0}")
        m(f"v_lshl_add_u32 v40, v27, 2, v24")
        m(f"v_lshl_add_u32 v40, v40, 7, v29")
        m(f"v_add_u32 v{vBT0}, s{sRING}, v40")
        m(f"v_xor_b32 v{vBT1}, 64, v{vBT0}")
        m(f"v_and_b32 v40, 31, v{vL}")
        m(f"v_bfe_u32 v41, v{vL}, 1, 3")
        m(f"v_xor_b32 v41, v41, v27")
        m(f"v_lshlrev_b32 v41, 4, v41")
        m(f"v_lshl_add_u32 v40, v40, 7, v41")
        m(f"v_add_u32 v{vXR}, s{sMX}, v40")
        for k in range(1, 4):
            m(f"v_xor_b32 v{vXR+k}, {32*k}, v{vXR}")
        m(f"v_lshlrev_b32 v{vTBL}, 3, v27")
        m(f"v_add_u32 v{vTBL}, {TB1 - TB1 % 2048}, v{vTBL}")
        m(f"v_and_b32 v40, 3, v{vL}")
        m(f"v_lshl_add_u32 v40, v27, 2, v40")
        m(f"v_bfe_u32 v41, v{vL}, 2, 3")
        m(f"v_lshl_add_u32 v40, v41, 3, v40")
        m(f"v_lshlrev_b32 v{vPV}, 4, v40")
        m(f"v_cmp_eq_u32 vcc, 0, v{vL}")
        m(f"v_mov_b32 v40, {OOB}")
        m(f"v_mov_b32 v{vK1}, {K1}")
        m(f"v_cndmask_b32 v{vL0}, v40, 0, vcc")
        m(f"s_and_b32 s{sT0}, s2, 7")
        m(f"s_and_b32 s{sT1}, s{sLOC}, 1")
        m(f"s_lshl_b32 s{sJ}, s{sT0}, 1")
        m(f"s_add_u32 s{sJ}, s{sJ}, s{sT1}")
        m(f"s_mul_i32 s{sT1}, s{sLOC}, 37")
        m(f"s_lshr_b32 s{sT1}, s{sT1}, 8")
        m(f"s_mul_i32 s{sCT}, s{sT1}, 7")
        m(f"s_sub_u32 s{sCT}, s{sLOC}, s{sCT}")
        m(f"s_lshl_b32 s{sRB0}, s{sT0}, 2")
        m(f"s_add_u32 s{sRB0}, s{sRB0}, s{sT1}")
        m(f"s_lshl_b32 s{sRB0}, s{sRB0}, 1")
        m(f"s_lshl_b32 s{sT1}, s{sT1}, 2")
        m(f"s_lshr_b32 s{sT1}, 0xa370, s{sT1}")
        m(f"s_and_b32 s{sT1}, s{sT1}, 15")
        m(f"s_lshl_b32 s{sT3}, s{sCT}, 1")
        m(f"s_add_u32 s{sT3}, s{sT3}, s{sT1}")
        m(f"s_sub_u32 s{sT1}, s{sT3}, 14")
        m(f"s_cmp_ge_u32 s{sT3}, 14")
        m(f"s_cselect_b32 s{sT3}, s{sT1}, s{sT3}")
        if OPT["rot2"] == 0:
            m(f"s_mov_b32 s{sT3}, 0")
        if OPT["rot2"] == 2:
            m(f"s_and_b32 s{sT3}, s2, 7")
            m(f"s_mul_i32 s{sT3}, s{sT3}, 7")
            m(f"s_lshr_b32 s{sT3}, s{sT3}, 2")
        if OPT["rot2"] == 3:
            m(f"s_lshl_b32 s{sT3}, s{sCT}, 1")
        m(f"s_mul_i32 s{sBEND}, s{sW}, {448*896}")
        m(f"s_mul_i32 s{sBOFF}, s{sT3}, {32*896}")
        m(f"s_add_u32 s{sBOFF}, s{sBOFF}, s{sBEND}")
        m(f"s_add_u32 s{sBEND}, s{sBEND}, {448*896}")
        m(f"s_mul_i32 s{sAEND}, s{sRB0}, 112")
        m(f"s_mul_i32 s{sT0}, s{sW}, 28")
        m(f"s_add_u32 s{sAEND}, s{sAEND}, s{sT0}")
        m(f"s_lshl_b32 s{sAEND}, s{sAEND}, 10")
        m(f"s_add_u32 s{sAEND}, s{sAEND}, {H_BASE}")
        m(f"s_lshl_b32 s{sAOFF}, s{sT3}, 11")
        m(f"s_add_u32 s{sAOFF}, s{sAOFF}, s{sAEND}")
        m(f"s_add_u32 s{sAEND}, s{sAEND}, {28*1024}")
        m(f"s_lshl_b32 s{sGD}, s{sRB0}, 7")
        m(f"s_add_u32 s{sGD}, s{sGD}, {G_BASE}")
        m(f"s_cmp_lt_u32 s{sLOC}, 28")
        m(f"s_cselect_b32 s{S_W2+2}, {1792*896}, 0")
        m(f"s_cselect_b32 s{S_WO+2}, {448*896}, 0")
        m(f"s_cselect_b32 s{sAOFF}, s{sAOFF}, {OOB}")
        m(f"s_cselect_b32 s{sGD}, s{sGD}, {OOB}")
        m(f"s_mov_b32 s{S_W2+3}, 0x20000")
        m(f"s_mov_b32 s{S_WO+3}, 0x20000")
        m(f"s_lshl_b32 s{sF2O}, s{sRB0}, 11")
        m(f"s_add_u32 s{sF2O}, s{sF2O}, {F2}")
        m(f"v_lshrrev_b32 v24, 3, v{vL}")
        m(f"v_lshlrev_b32 v28, 2, v28")
        m(f"v_and_b32 v29, 7, v{vL}")
        m(f"v_xor_b32 v28, v28, v29")
        m(f"v_lshlrev_b32 v28, 4, v28")
        m(f"v_mul_u32_u24 v29, 3584, v24")
        m(f"s_mul_i32 s{sT0}, s{sW}, {16*3584}")
        m(f"v_add3_u32 v{vW1A0}, v29, v28, s{sT0}")
        m(f"v_add_u32 v{vW1A1}, {8*3584-1024}, v{vW1A0}")
        m(f"v_mul_u32_u24 v29, 896, v24")
        m(f"s_lshl_b32 s{sT0}, s{sCT}, 7")
        m(f"v_add3_u32 v{vBD}, v29, v28, s{sT0}")
        for k in range(1, 4):
            m(f"v_add_u32 v{vBD+k}, {k*(7168-1024)}, v{vBD}")
        m(f"s_lshl_b32 s{sMB}, s{sW}, 11")
        m(f"s_sub_u32 s{sMA}, s{sMB}, {64*128 - R_A}")
        m(f"s_add_u32 s{sMB}, s{sMB}, {R_B}")
        m(f"s_mul_i32 s{sT0}, s{sC}, 3")
        m(f"s_sub_u32 s{sNQ}, 16, s{sT0}")
        m(f"s_lshl_b32 s{sT0}, s{sT0}, 6")
        m(f"s_add_u32 s{sT0}, s{sT0}, s{sRB}")
        m(f"s_lshl_b32 s{sQS}, s{sT0}, 11")
        m(f"s_mul_i32 s{sT1}, s{sRB}, 28")
        m(f"s_add_u32 s{sT0}, s{sT1}, s{sUB}")
        m(f"s_lshl_b32 s{sT0}, s{sT0}, 12")
        m(f"s_add_u32 s{sHB}, s{sT0}, {H_BASE}")
        m(f"s_sub_u32 s{sHA}, s{sHB}, 4096")
        m(f"s_lshl_b32 s{sUA}, s{sUA}, 7")
        m(f"s_lshl_b32 s{sUB}, s{sUB}, 7")
        m(f"s_cmp_eq_u32 s{sLIGHT}, 1")
        m(f"s_cselect_b32 s{sHA}, {OOB}, s{sHA}")
        m(f"s_cselect_b32 s{sUA}, {OOB}, s{sUA}")
        m(f"s_cselect_b32 s{sMA}, {DUMMY}, s{sMA}")
        m(f"s_cselect_b32 s{sMAS}, 0, {64*128}")
        m(f"s_lshl_b32 s{sT0}, s{sRB}, 4")
        m(f"s_add_u32 s{sT0}, s{sT0}, s{sC}")
        m(f"s_lshl_b32 s{sT0}, s{sT0}, 7")
        m(f"s_add_u32 s{sF1}, s{sT0}, {F1}")
        m(f"s_lshl_b32 s{sT0}, s{sRB}, 7")
        m(f"s_add_u32 s{sGS}, s{sT0}, {G_BASE}")
        m(f"s_add_u32 s{sF0P}, s{sT0}, {F0}")
        m(f"s_cmp_eq_u32 s{sC}, 3")
        m(f"s_cselect_b32 s{sGS}, s{sGS}, {OOB}")
        m(f"s_cselect_b32 s{sF0P}, s{sF0P}, {OOB}")
        m(f"s_lshr_b32 s{sT0}, s{sLOC}, 1")
        m(f"s_lshl_b32 s{sT0}, s{sT0}, 2")
        m(f"s_add_u32 s{sQB}, s{sT0}, s{sW}")
        m(f"s_sub_u32 s{sFIRST}, 8, s{sQB}")
        m(f"s_max_i32 s{sFIRST}, s{sFIRST}, 0")
        m(f"s_mul_i32 s{sT1}, s{sW}, 3")
        m(f"s_add_u32 s{sT0}, s{sT0}, s{sT1}")
        m(f"s_sub_u32 s{sKV0}, s{sT0}, 8")
        m(f"s_mul_i32 s{sT2}, s{sJ}, 43")
        m(f"s_lshr_b32 s{sT2}, s{sT2}, 7")
        m(f"s_lshl_b32 s{sT1}, s{sQB}, 4")
        m(f"s_add_u32 s{sT2}, s{sT1}, s{sT2}")
        m(f"v_mov_b32 v{vF1A}, s{sT2}")
        for part, add in ((0, 16), (1, 32)):
            m(f"s_add_u32 s{sT2}, s{sJ}, {add}")
            m(f"s_mul_i32 s{sT2}, s{sT2}, 43")
            m(f"s_lshr_b32 s{sT2}, s{sT2}, 7")
            m(f"v_subrev_u32 v40, {3*part}, v{vL}")
            m(f"v_add_u32 v41, s{sKV0}, v40")
            m(f"v_cmp_gt_u32 {s(sM,2)}, 3, v40")
            m(f"v_cmp_le_i32 vcc, 0, v41")
            m(f"v_lshl_add_u32 v41, v41, 4, s{sT2}")
            m(f"s_and_b64 {s(sM,2)}, {s(sM,2)}, vcc")
            m(f"v_cndmask_b32 v{vF1A}, v{vF1A}, v41, {s(sM,2)}")
        m(f"v_lshlrev_b32 v{vF1A}, 7, v{vF1A}")
        m(f"v_add_u32 v{vF1A}, {F1}, v{vF1A}")
        m(f"v_bfe_u32 v40, v{vL}, 2, 1")
        m(f"v_and_b32 v41, 3, v{vL}")
        m(f"s_lshl_b32 s{sT0}, s{sW}, 2")
        m(f"v_add_u32 v41, s{sT0}, v41")
        m(f"v_cmp_gt_u32 vcc, 8, v{vL}")
        m(f"v_lshl_add_u32 v41, v40, 4, v41")
        m(f"v_and_b32 v40, 1, v{vL}")
        m(f"v_lshl_add_u32 v40, v40, 4, 3")
        m(f"v_cndmask_b32 v{vF23A}, v40, v41, vcc")
        m(f"v_lshlrev_b32 v{vF23A}, 7, v{vF23A}")
        m(f"s_lshr_b32 s{sT0}, s{sW}, 1")
        m(f"s_add_u32 s{sT0}, s{sT0}, s{sRB0}")
        m(f"s_mul_i32 s{sT0}, s{sT0}, {32*896}")
        m(f"s_lshl_b32 s{sT1}, s{sCT}, 1")
        m(f"s_and_b32 s{sT2}, s{sW}, 1")
        m(f"s_add_u32 s{sT1}, s{sT1}, s{sT2}")
        m(f"s_lshl_b32 s{sT1}, s{sT1}, 6")
        m(f"s_add_u32 s{sOUT}, s{sT0}, s{sT1}")
        if OPT["probe"] == 102:
            e("s_waitcnt lgkmcnt(0)")
            e(f"s_memtime {s(sM3,2)}")
            e("s_waitcnt lgkmcnt(0)")
            e(f"s_mov_b32 s{sP0+1}, s{sM3}")
            kargs("s[98:99]")
        e("s_waitcnt lgkmcnt(0)")
        self.a.clk = self.a.pipe_free = 0
        self.a.allv = []
        self.a.done = {k: 0 for k in self.a.done}
        self.stamp("kernarg")
        self.ctok, self.wtok, self.xrd, self.ftok = {}, {}, {}, {}
        self.add_chunk(0)
        self.force(self.C)
        self.a.next_lat = OPT["miss"]
        e(f"buffer_load_dword v{vT}, v45, {s(S_WS,4)}, 0 offen sc1")
        for h in range(2):
            e(f"buffer_load_ushort v{30+h}, v{42+h}, {s(S_GW,4)}, 0 offen")
        e(f"s_mov_b32 m0, {TB1}")
        self.m0 = None
        self.tB1 = e(f"buffer_load_dword v44, {s(S_B1,4)}, 0 offen lds")
        self.add_chunk(1)
        self.add_chunk(2)
        m(f"s_lshl_b32 s{sT1}, s{sQB}, 4")
        m(f"s_add_u32 s{sT1}, s{sT1}, s{sJ}")
        m(f"s_lshl_b32 s{sF3P}, s{sT1}, 7")
        m(f"s_add_u32 s{sF3P}, s{sF3P}, {F3}")
        m(f"s_lshl_b32 s{sOS}, s{sT1}, 11")
        m(f"s_add_u32 s{sOS}, s{sOS}, {O_BASE}")
        m(f"s_lshl_b32 s{sT0}, s{sJ}, 6")
        m(f"s_add_u32 s{sKOFF}, s{sT0}, s{sKV0}")
        m(f"s_lshl_b32 s{sKOFF}, s{sKOFF}, 11")
        m(f"s_add_u32 s{sQOFF}, s{sT0}, s{sQB}")
        m(f"s_lshl_b32 s{sQOFF}, s{sQOFF}, 11")
        m(f"s_mul_i32 s{sMKV}, s{sW}, 6144")
        m(f"s_lshl_b32 s{sT0}, s{sQB}, 7")
        m(f"s_add_u32 s{sF0R}, s{sT0}, {F0}")
        m(f"s_add_u32 s{sGQ}, s{sT0}, {G_BASE}")
        m(f"s_mov_b32 s{sK2}, {K2}")
        m(f"s_mov_b32 s{sK2+1}, {K2}")

    def add_chunk(self, i):
        toks = self.ctok[i] = []
        lx = OPT["miss"] + 300 if i < 1 else None
        lw = OPT["miss"] + 300 if i < 2 else None
        xs, ws = [], []
        for k in range(4):
            xs.append(Item(f"buffer_load_dwordx4 v{vXD+k}, {s(S_X,4)}, s{sCA} offen" + (f" offset:{1024*k}" if k else "") + NT(1) + " lds", toks,
                           pre=[f"s_lshl_b32 s{sCA}, s{sG+i}, 7"] if k == 0 else (), m0=(sMX, (i % 3) * 4096), lat=lx,
                           after=(lambda: self.xrd[i - 3] if len(self.xrd.get(i - 3, ())) == 4 else None) if i >= 3 and k == 0 else None))
        for k in range(3):
            ws.append(Item(f"buffer_load_dwordx4 v{vWQ+k}, {s(S_WQ,4)}, s{sCB} offen" + (f" offset:{1024*k}" if k else "") + NT(2) + " lds", toks,
                           pre=[f"s_mul_i32 s{sCB}, s{sG+i}, {64*2688}"] if k == 0 else (), m0=(sMQ, (i % 4) * 64 * 192), lat=lw))
        self.C.extend(xs + ws if i == 0 else ws + xs)
        self.clast = getattr(self, "clast", {})
        self.clast[i] = self.C[-1]

    def add_w1(self, unit, i):
        toks = self.wtok[(unit, i)] = []
        pre = [f"s_mul_i32 s{sCB}, s{sG+i}, {64*3584}", f"s_add_u32 s{sCB}, s{sCB}, s{sUA+unit}"]
        if unit == 0:
            pre.append(f"s_add_u32 s{sMA}, s{sMA}, s{sMAS}")
        for k in range(2):
            self.C.append(Item(f"buffer_load_dwordx4 v{vW1A0+k}, {s(S_W1,4)}, s{sCB} offen" + (" offset:1024" if k else "") + NT(4) + " lds", toks,
                               pre=pre if k == 0 else (), m0=(sMB, i * 8192) if unit else (sMA, 0, i),
                               lat=OPT["miss"] if i < 4 else None))
        self.wlast = getattr(self, "wlast", {})
        self.wlast[(unit, i)] = self.C[-1]

    def gate_write(self):
        pe = self.pe
        pe(f"s_cmp_eq_u32 s{sLIGHT}, 1")
        pe(f"s_cselect_b64 {s(sM,2)}, -1, 0")
        pe(f"v_bfe_u32 v27, v26, 1, 1")
        pe(f"v_lshlrev_b32 v28, 7, v26")
        pe(f"v_lshl_add_u32 v28, v27, 6, v28")
        pe(f"v_mov_b32 v29, {DUMMY+2048}")
        pe(f"v_cndmask_b32 v27, v29, v28, {s(sM,2)}")
        pe(f"v_cmp_gt_u32 vcc, 192, v26")
        pe(f"v_add_u32 v28, {256*128}, v28")
        pe(f"s_and_b64 {s(sM,2)}, {s(sM,2)}, vcc")
        pe(f"ds_write_b16 v27, v30")
        pe(f"v_cndmask_b32 v28, v29, v28, {s(sM,2)}")
        pe(f"ds_write_b16 v28, v31")

    def store_addr(self):
        pe = self.pe
        for n, lim in ((0, 11), (1, 10)):
            pe(f"s_cmp_ge_u32 s{sC}, {lim}")
            pe(f"s_cselect_b64 {s(sM,2)}, -1, 0")
            pe(f"s_cselect_b32 s{sT0}, 128, 0")
            pe(f"s_cselect_b32 s{sT1}, 0x3f80, 0")
            pe(f"v_cndmask_b32 v{24+2*n}, v{vLIN}, v{vPV}, {s(sM,2)}")
            pe(f"v_mov_b32 v{28+n}, s{sT1}")
            pe(f"v_xor_b32 v{25+2*n}, s{sT0}, v{24+2*n}")

    def bias_init(self, acc, tbl, factor=None):
        for t in range(2):
            for mm in range(2):
                o = (tbl % 2048) // 8 + 8 * t + 4 * mm
                self.pe(f"ds_read2_b64 {v(acc+16*t+8+4*mm,4)}, v{vTBL} offset0:{o} offset1:{o+2}")
        for t in range(2):
            for k in range(8):
                src, dst = acc + 16 * t + 8 + k, acc + 16 * t + 2 * k
                self.pe(f"v_lshlrev_b32 v{dst}, 16, v{src}")
                self.pe(f"v_and_b32 v{dst+1}, 0xffff0000, v{src}")
        if factor:
            for k in range(16):
                self.pe(f"v_pk_mul_f32 {v(acc+2*k,2)}, {v(acc+2*k,2)}, {factor}")

    def rd_q(self, sidx, t):
        base = vWR + 12 * (sidx & 1) + 4 * t
        o = 56 * t + (sidx % 16) * 3072
        return [self.e(f"ds_read_b64_tr_b16 {v(base+2*h,2)}, v{vTRQ} offset:{o+768*h}") for h in range(2)]

    def rd_f(self, g, t):
        base = vWR + 8 * (g % 3) + 4 * t
        toks = self.ftok.setdefault(g, [])
        for h in range(2):
            toks.append(self.e(f"ds_read_b64_tr_b16 {v(base+2*h,2)}, v{vTRF0+t} offset:{(g%28)*2048+512*h}"))

    def rd_x(self, sidx):
        self.xrd.setdefault(sidx // 4, []).append(self.e(f"ds_read_b128 {v(vX+4*sidx,4)}, v{vXR+sidx%4} offset:{(sidx//4%3)*4096}"))

    def sync(self, st, last, toks, drain_lds=True):
        self.force(st, last)
        while self.a.est(toks) > self.a.clk + 8 and self.side_wait(self.a.est(toks)):
            pass
        self.a.need(*toks)
        if drain_lds and self.a.lg:
            self.e("s_waitcnt lgkmcnt(0)")
        self.e("s_barrier")

    def side_wait(self, until):
        a = self.a
        for st in (self.P, self.C, self.B):
            if not st:
                continue
            it = st[0]
            t = a.allv[-1][0] if it.vm else a.clk
            if it.after:
                toks = it.after()
                if toks is None:
                    continue
                t = max(t, a.est(toks))
            if t + 8 <= until:
                self.emit_item(st)
                return True
        return False

    def qkv(self):
        e = self.e
        qtok = {}
        self.sync(self.C, self.clast[0], self.ctok[0])
        self.stamp("chunk 0")
        self.add_chunk(3)
        self.rd_x(0)
        self.rd_x(1)
        for t in range(3):
            qtok[(0, t)] = self.rd_q(0, t)
        for sidx in range(28):
            i = sidx // 4
            if sidx % 2 == 0:
                self.stamp(group=3)
            if sidx == 0:
                self.gate_write()
            if sidx == 4:
                self.push(lambda: self.a.need(self.tB1), 0)
                self.bias_init(vACC + 48, TB1)
            if sidx == 8:
                self.store_addr()
            for t in range(3):
                if t == 0:
                    self.a.need(*qtok[(sidx, 0)], *qtok[(sidx, 1)])
                acc = v(vACC + 16 * t, 16)
                e(f"{MFMA} {acc}, {v(vWR+12*(sidx&1)+4*t,4)}, {v(vX+4*sidx,4)}, {acc if sidx else 0}")
                if t == 0 and sidx % 4 == 3:
                    self.drain()
                    if sidx < 27:
                        self.sync(self.C, self.clast[i + 1], self.ctok[i + 1])
                        if i + 4 < 7:
                            self.add_chunk(i + 4)
                        if i + 4 == 6:
                            for k in range(7):
                                self.add_w1(0, k)
                    else:
                        self.sync(self.C, self.wlast[(0, 0)], self.wtok[(0, 0)])
                if sidx % 4 == 3 and sidx < 27 and t < 2:
                    self.rd_x(sidx + 1 + t)
                if sidx % 4 == 0 and t < 2:
                    self.rd_x(sidx + 2 + t)
                if sidx < 27:
                    qtok[(sidx + 1, t)] = self.rd_q(sidx + 1, t)
                elif t < 2:
                    self.rd_f(0, t)
                self.gap((12, 16, 12)[t] if sidx % 4 in (1, 2) else (4, 8, 12)[t])
        self.rd_f(1, 0)
        self.rd_f(1, 1)

    QPK = (vTMP + 8, vACC + 40, vACC + 32)

    def qkv_pack(self, t):
        pe = self.pe
        acc, dst = vACC + 16 * t, self.QPK[t]
        pe(f"s_cmp_gt_i32 s{sNQ}, {t}")
        pe(f"s_cselect_b32 s{sT1}, {QSCALE}, 1.0")
        for k in range(16):
            pe(f"v_mul_f32 v{acc+k}, s{sT1}, v{acc+k}")
        def store(half):
            pre = [f"s_add_u32 s{sCA}, s{sQS}, {t*64*2048}"] if half == 0 else ()
            self.C.append(Item(f"buffer_store_dwordx4 {v(dst+4*half,4)}, v{24+2*(t>>1)+half}, {s(S_WS,4)}, s{sCA} offen offset:{1024*half} sc1",
                               self.tQKV, pre=pre))
            self.lastS = self.C[-1]
        for k in range(8):
            pe(f"v_cvt_pk_bf16_f32 v{dst+k}, v{acc+2*k}, v{acc+2*k+1}")
            if k == 3:
                self.push(lambda: store(0), 0)
        pe(f"v_cndmask_b32 v{dst+6}, v{dst+6}, v{28+(t>>1)}, {s(sHI,2)}")
        pe(f"v_cndmask_b32 v{dst+7}, v{dst+7}, 0, {s(sHI,2)}")
        self.push(lambda: store(1), 0)

    def b_slot(self, p):
        return (RING - RED) + (p % 6) * 4096 if p % 6 < 3 else (p % 6 - 3) * 4096

    def b_dma(self, p):
        toks = self.btok[p] = []
        out = []
        pre, post, off = [], [], sBOFF
        if p >= 14:
            off = sBT
            pre = [f"s_mul_i32 s{sBT}, s{sW}, {112*896}"] + ([f"s_add_u32 s{sBT}, s{sBT}, {(p-14)*28*896}"] if p > 14 else [])
        elif p < 13:
            post = [f"s_add_u32 s{sBOFF}, s{sBOFF}, {32*896}", f"s_cmp_eq_u32 s{sBOFF}, s{sBEND}",
                    f"s_cselect_b32 s{sBT}, {448*896}, 0", f"s_sub_u32 s{sBOFF}, s{sBOFF}, s{sBT}"]
        for k in range(4):
            out.append(Item(f"buffer_load_dwordx4 v{vBD+k}, {s(S_W2 if p < 14 else S_WO,4)}, s{off} offen" + (f" offset:{1024*k}" if k else "") + NT(8) + " lds",
                            toks, pre=pre if k == 0 else (), post=post if k == 3 else (), m0=(sRING, self.b_slot(p)),
                            lat=OPT["miss"] if p < 4 or p >= 14 else None,
                            after=(lambda: self.btr[p - 6] if len(self.btr.get(p - 6, ())) == 8 else None) if k == 0 and p >= 6 else None))
        return out

    def b_read(self, p):
        toks = self.btr[p] = []
        out = []
        for ks in range(2):
            for t in range(2):
                out.append(Item([f"ds_read_b64_tr_b16 {a_(16*(p%16)+8*ks+4*t+2*h,2)}, v{vBT0+t} offset:{self.b_slot(p)+ks*2048+h*1024}" for h in range(2)],
                                toks, after=(lambda: self.btok[p] if len(self.btok[p]) == 4 else None) if ks + t == 0 else None))
        self.blast[p] = out[-1]
        return out

    def gelu_two(self, acc, soff, n, packed):
        pe = self.pe
        T = vTMP + 12
        U = [acc + 2 * n, acc + 2 * n + 2]
        R = [T, T + 2]
        if packed:
            for u, r in zip(U, R):
                pe(f"v_pk_mul_f32 {v(r,2)}, {v(u,2)}, {v(u,2)}")
                pe(f"v_pk_fma_f32 {v(r,2)}, {v(r,2)}, {s(sK2,2)}, {v(vK1,2)} op_sel_hi:[1,1,0]")
                pe(f"v_pk_mul_f32 {v(r,2)}, {v(r,2)}, {v(u,2)}")
            for k in range(4):
                pe(f"v_exp_f32 v{T+k}, v{T+k}")
            for r in R:
                pe(f"v_pk_add_f32 {v(r,2)}, {v(r,2)}, 1.0 op_sel_hi:[1,0]")
            for k in range(4):
                pe(f"v_rcp_f32 v{T+k}, v{T+k}")
            for u, r in zip(U, R):
                pe(f"v_pk_mul_f32 {v(r,2)}, {v(r,2)}, {v(u,2)}")
        else:
            u = U[0]
            for k in range(4):
                pe(f"v_mul_f32 v{T+k}, v{u+k}, v{u+k}")
                pe(f"v_fma_f32 v{T+k}, v{T+k}, s{sK2}, v{vK1}")
                pe(f"v_mul_f32 v{T+k}, v{T+k}, v{u+k}")
            for k in range(4):
                pe(f"v_exp_f32 v{T+k}, v{T+k}")
            for k in range(4):
                pe(f"v_add_f32 v{T+k}, 1.0, v{T+k}")
            for k in range(4):
                pe(f"v_rcp_f32 v{T+k}, v{T+k}")
            for k in range(4):
                pe(f"v_mul_f32 v{T+k}, v{T+k}, v{u+k}")
        for d in range(2):
            pe(f"v_cvt_pk_bf16_f32 v{acc+n+d}, v{T+2*d}, v{T+2*d+1}")
        if n % 4 == 2:
            fr = n // 4
            self.push(lambda: self.C.append(Item(
                f"buffer_store_dwordx4 {v(acc+4*fr,4)}, v{vLIN}, {s(S_WS,4)}, s{soff} offen offset:{fr*1024} sc1", self.tH)), 0)

    def ffn(self, unit):
        e = self.e
        acc0 = vACC + 48 if unit == 0 else vACC
        for sidx in range(28):
            g = 28 * unit + sidx
            if sidx % 4 == 0:
                self.stamp(group=2)
            self.hook(f"ffn{unit}_{sidx}")
            self.a.need(*self.ftok[g])
            for t in range(2):
                acc = v(acc0 + 16 * t, 16)
                e(f"{MFMA} {acc}, {v(vWR+8*(g%3)+4*t,4)}, {v(vX+4*sidx,4)}, {acc}")
                if t == 0 and sidx % 4 == 2:
                    if sidx < 26:
                        k = (unit, sidx // 4 + 1)
                        self.sync(self.C, self.wlast[k], self.wtok[k], drain_lds=False)
                    elif unit == 0:
                        self.drain("biasb")
                        self.sync(self.C, self.wlast[(1, 0)], self.wtok[(1, 0)])
                        e(f"v_add_u32 v{vTRF0}, {R_B-R_A}, v{vTRF0}")
                        e(f"v_add_u32 v{vTRF1}, {R_B-R_A}, v{vTRF1}")
                        self.add_w1(1, 6)
                        self.B.extend(self.b_dma(3) + self.b_dma(4) + self.b_dma(5))
                        for p in range(12):
                            self.B.extend(self.b_read(p) + self.b_dma(p + 6))
                        for p in range(12, 16):
                            self.B.extend(self.b_read(p))
                if g + 2 < 56:
                    self.rd_f(g + 2, t)
                self.gap((16, 12)[t])

    def phase1(self):
        e, pe, m = self.e, self.pe, self.m
        self.btok, self.btr, self.blast = {}, {}, {}
        self.tQKV, self.tH, tG = [], [], []
        self.qkv()
        self.stamp("qkv done")
        self.add_w1(1, 0)
        self.qkv_pack(2)
        self.push(lambda: self.add_w1(1, 1), 0)
        self.qkv_pack(1)
        self.qkv_pack(0)
        self.push(lambda: [self.add_w1(1, k) for k in range(2, 6)], 0)
        self.bias_init(vACC, TB1 + 128)
        pe(f"v_add_u32 v{vT}, {TAG_STEP}, v{vT}")
        self.mark("biasb")
        self.B.extend(self.b_dma(0) + self.b_dma(1) + self.b_dma(2))
        self.ffn(0)
        self.force(self.C, self.lastS)
        self.stamp("ffn a done")
        accA = vACC + 48
        pub1 = self.publish(sF1, self.tQKV, 6)
        pe(f"v_mul_f32 v{vGATE}, {fbits(-math.log2(math.e))}, v{accA}")
        pe(f"v_exp_f32 v{vGATE}, v{vGATE}")
        pe(f"v_and_b32 v{vGA}, 31, v{vL}")
        pe(f"v_add_f32 v{vGATE}, 1.0, v{vGATE}")
        pe(f"v_lshlrev_b32 v{vGA}, 2, v{vGA}")
        pe(f"v_rcp_f32 v{vGATE}, v{vGATE}")
        pe(f"v_mov_b32 v{vTMP}, {OOB}")
        pe(f"v_cndmask_b32 v{vTMP}, v{vGA}, v{vTMP}, {s(sHI,2)}")
        self.push(lambda: self.C.appendleft(Item(f"buffer_store_dword v{vGATE}, v{vTMP}, {s(S_WS,4)}, s{sGS} offen sc1", tG)), 0)
        self.push(lambda: self.publish(sF0P, tG, 1), 0)
        ga = deque(range(0, 16, 2))
        while ga and ga[0] < OPT["npairs"]:
            self.gelu_two(accA, sHA, ga.popleft(), False)
        self.hooks[f"ffn1_{OPT['pub1']}"] = lambda: self.force(self.P, pub1)
        self.hooks[f"ffn1_{OPT['poll1']}"] = lambda: self.poll_item(vF1A, 0)
        self.ffn(1)
        self.poll_check(vF1A, 0)
        e("s_barrier")
        self.att_loads()
        self.stamp("ffn b done")
        m(f"v_lshlrev_b32 v{vTMP+1}, 2, v{vL}")
        self.tB2 = []
        self.C.append(Item(f"buffer_load_dword v{vTMP+1}, {s(S_B2,4)}, s{sCB} offen lds", self.tB2,
                           pre=[f"s_lshl_b32 s{sCB}, s{sCT}, 7"], m0=(None, TB2), lat=OPT["miss"]))
        self.drain()
        for acc, soff, todo in ((accA, sHA, ga), (vACC, sHB, range(0, 16, 2))):
            for n in todo:
                self.gelu_two(acc, soff, n, True)
        self.drain()
        self.stamp("gelu done")

    def att_loads(self):
        self.tKV = []
        items = []
        for bb in range(3):
            for part in range(2):
                pre = ([f"s_add_u32 s{sCA}, s{sKOFF}, {16*64*2048+2048*bb}", f"s_cmp_lt_i32 s{sKV0}, {-bb}", f"s_cselect_b32 s{sCA}, {OOB}, s{sCA}"]
                       if part == 0 else [f"s_add_u32 s{sCA}, s{sCA}, {16*64*2048}"])
                for k in range(2):
                    items.append(Item(f"buffer_load_dwordx4 v{vLIN}, {s(S_WS,4)}, s{sCA} offen" + (" offset:1024" if k else "") + " sc1 lds",
                                      self.tKV, pre=pre if k == 0 else (), m0=(sMKV, KV + 24576 * part + 2048 * bb), lat=OPT["miss"]))
        for k in range(2):
            items.append(Item(f"buffer_load_dwordx4 {v(vQ+4*k,4)}, v{vLIN}, {s(S_WS,4)}, s{sQOFF} offen offset:{1024*k} sc1", self.tKV, lat=OPT["miss"]))
        self.C.extendleft(reversed(items))
        self.kvlast = items[-1]

    def rd_k(self, n):
        for k in range(2):
            self.m(f"ds_read_b128 {v(vKR+8*(n%3)+4*k,4)}, v{vKA} offset:{(n%9)*2048+k*1024}")

    def rd_v(self, i, st):
        for h in range(2):
            self.e(f"ds_read_b64_tr_b16 {v(vVR+4*st+2*h,2)}, v{vVA} offset:{i*2048+256*(2*st+h)}")

    def qk(self, i, k):
        S = v(vS + 16 * (i & 1), 16)
        C = S if k else v(vM0 if i == 0 else vM8 if i == 8 else vCD, 16)
        self.e(f"{MFMA} {S}, {v(vKR+8*(i%3)+4*k,4)}, {v(vQ+4*k,4)}, {C}")

    def patch(self, i, src):
        if not 2 <= i <= 7:
            return
        self.nlab += 1
        n = self.nlab
        self.e(f"s_cmp_eq_u32 s{sFIRST}, {i}")
        self.e(f"s_cbranch_scc1 L_pat{n}")
        self.a.label(f"L_patb{n}")
        self.tail += [f"L_pat{n}:", "s_nop 7"] + [f"v_mov_b32 v{vCD+k}, {src}" for k in range(16)] + ["s_nop 1", f"s_branch L_patb{n}"]

    def attention(self):
        e, pe, m = self.e, self.pe, self.m
        m(f"v_and_b32 v26, 31, v{vL}")
        m(f"v_lshrrev_b32 v27, 5, v{vL}")
        m(f"v_lshlrev_b32 v28, 2, v27")
        m(f"v_sub_u32 v26, v26, v28")
        m(f"s_cmp_gt_u32 s{sFIRST}, 0")
        m(f"s_cselect_b32 s{sT0}, {NINF}, 0")
        m(f"v_mov_b32 v28, s{sT0}")
        m(f"v_mov_b32 v29, {NINF}")
        m(f"s_cmp_gt_u32 s{sFIRST}, 1")
        m(f"s_cselect_b32 s{sT0}, {NINF}, 0")
        prs = (sM, sM3)
        for j0 in range(0, 16, 2):
            for d in range(2):
                jj = j0 + d
                m(f"v_cmp_le_i32 {s(prs[d],2)}, {(jj&3)+8*(jj>>2)}, v26")
            for d in range(2):
                m(f"v_mov_b32 v{vCD+j0+d}, s{sT0}")
            for d in range(2):
                jj = j0 + d
                m(f"v_cndmask_b32 v{vM8+jj}, v29, 0, {s(prs[d],2)}")
                m(f"v_cndmask_b32 v{vM0+jj}, v28, v29, {s(prs[d],2)}")
        m(f"s_lshl_b32 s{sT1}, s{sW}, 11")
        m(f"s_add_u32 s{sT1}, s{sT1}, {KV}")
        m(f"v_add_u32 v{vKA}, s{sT1}, v{vLIN}")
        m(f"v_bfe_u32 v28, v{vL}, 4, 1")
        m(f"v_xor_b32 v27, v27, v28")
        m(f"v_bfe_u32 v29, v{vL}, 2, 2")
        m(f"v_lshl_add_u32 v29, v27, 3, v29")
        m(f"v_and_b32 v27, 1, v{vL}")
        m(f"v_lshl_add_u32 v29, v27, 2, v29")
        m(f"v_lshlrev_b32 v29, 4, v29")
        m(f"v_lshl_add_u32 v29, v28, 10, v29")
        m(f"v_bfe_u32 v27, v{vL}, 1, 1")
        m(f"v_lshl_add_u32 v29, v27, 3, v29")
        m(f"s_add_u32 s{sT1}, s{sT1}, 24576")
        m(f"v_add_u32 v{vVA}, s{sT1}, v29")
        m(f"v_mov_b32 v{vMX}, {NINF}")
        m(f"v_mov_b32 v{vMX+1}, {NINF}")
        m(f"v_mov_b32 v{vF1A}, 0")
        m(f"v_add_u32 v{vA1H}, {112*1024}, v{vLIN}")
        m(f"v_add_u32 v{vA1O}, {32*1024}, v{vLIN}")
        self.sync(self.C, self.kvlast, self.tKV, drain_lds=False)
        self.stamp("kv in")
        self.poll_item(vF1A, f"s{sF0R}")
        pub2 = self.publish(sT3, self.tH, 8, pre=[f"s_add_u32 s{sT3}, s{sF1}, {F2-F1}"])
        self.rd_k(0)
        self.rd_k(1)
        for i in range(10):
            if i % 2 == 0:
                self.stamp(group=4)
            if i < 9:
                self.patch(i, "0")
                self.qk(i, 0)
                self.rd_k(i + 2)
                self.qk(i, 1)
            if i > 0:
                S = vS + 16 * ((i - 1) & 1)
                for k in range(8):
                    (m if k % 4 == 3 else e)(f"v_max3_f32 v{vMX+(k&1)}, v{S+2*k}, v{S+2*k+1}, v{vMX+(k&1)}")
        m(f"v_max_f32 v{vMX}, v{vMX}, v{vMX+1}")
        m(f"v_mov_b32 v{vMX+1}, v{vMX}")
        self.force(self.C)
        self.poll_check(vF1A, f"s{sF0R}")
        self.C.append(Item(f"buffer_load_dword v{vGATE}, v{vGA}, {s(S_WS,4)}, s{sGQ} offen sc1", lat=OPT["miss"]))
        m(f"v_permlane32_swap_b32 v{vMX}, v{vMX+1}")
        m(f"v_max_f32 v{vMX}, v{vMX}, v{vMX+1}")
        m(f"v_sub_f32 v{vMX}, 0, v{vMX}")
        for k in range(16):
            m(f"v_add_f32 v{vM0+k}, v{vM0+k}, v{vMX}")
        self.qk(0, 0)
        self.rd_k(2)
        self.qk(0, 1)
        m(f"v_add_f32 v{vMX+1}, s{sT0}, v{vMX}")
        for k in range(16):
            m(f"v_mov_b32 v{vCD+k}, v{vMX+1}")
        for k in range(16):
            m(f"v_add_f32 v{vM8+k}, v{vM8+k}, v{vMX}")
        self.stamp("pass 1 done")
        O = v(vO, 16)
        for i in range(9):
            S = vS + 16 * (i & 1)
            ex = lambda k: m(f"v_exp_f32 v{S+k}, v{S+k}")
            cv = lambda k: e(f"v_cvt_pk_bf16_f32 v{vP+k}, v{S+2*k}, v{S+2*k+1}")
            self.stamp(group=4)
            if i == OPT["poll2"]:
                self.poll_item(vF23A, f"s{sF2O}")
            if i == OPT["chk2"]:
                self.de_start()
            if i < 8:
                self.patch(i + 1, f"v{vMX}")
                self.qk(i + 1, 0)
            self.rd_v(i, 0)
            for k in range(3):
                ex(k)
            if i < 8:
                self.qk(i + 1, 1)
            self.rd_v(i, 1)
            for k in range(3, 9):
                ex(k)
            for k in range(4):
                cv(k)
            ex(9)
            ex(10)
            e(f"{MFMA} {O}, {v(vVR,4)}, {v(vP,4)}, {O if i else 0}")
            if i < 6:
                self.rd_k(i + 3)
            for k in range(11, 16):
                ex(k)
            for k in range(4, 8):
                cv(k)
            self.side()
            e(f"{MFMA} {O}, {v(vVR+4,4)}, {v(vP+4,4)}, {O}")
        self.a.need(*self.tB2)
        m(f"v_subrev_u32 v{vTBL}, {(TB1 - TB1 % 2048) - (TB2 - TB2 % 2048)}, v{vTBL}")
        m(f"s_cmp_eq_u32 s{sW}, 0")
        m(f"s_cselect_b32 s{sM}, 1.0, 0")
        m(f"s_mov_b32 s{sM+1}, s{sM}")
        self.bias_init(vCD, TB2, factor=s(sM, 2))
        for _ in range(12):
            self.q.popleft()[0]()
        m(f"v_mov_b32 v{vMX}, v{vO+12}")
        m(f"v_mov_b32 v{vMX+1}, v{vO+12}")
        m(f"v_permlane32_swap_b32 v{vMX}, v{vMX+1}")
        m(f"v_rcp_f32 v{vMX}, v{vMX+1}")
        m(f"v_mul_f32 v{vMX}, v{vMX}, v{vGATE}")
        for k in range(8):
            m(f"v_pk_mul_f32 {v(vO+2*k,2)}, {v(vO+2*k,2)}, {v(vMX,2)} op_sel_hi:[1,0]")
        self.tO = []
        for k in range(8):
            m(f"v_cvt_pk_bf16_f32 v{vP+k}, v{vO+2*k}, v{vO+2*k+1}")
            if k == 3:
                self.P.append(Item(f"buffer_store_dwordx4 {v(vP,4)}, v{vLIN}, {s(S_WS,4)}, s{sOS} offen sc1", self.tO))
        m(f"v_cndmask_b32 v{vP+6}, v{vP+6}, 0, {s(sHI,2)}")
        self.P.append(Item(f"buffer_store_dwordx4 {v(vP+4,4)}, v{vLIN}, {s(S_WS,4)}, s{sOS} offen offset:1024 sc1", self.tO))
        self.drain()
        self.force(self.P)
        self.stamp("attention done")

    def ar(self, p, k):
        return (64, 80, 104, 120)[p % 4] + 4 * k

    def a_load(self, p):
        pre = []
        if p == 14:
            pre = [f"s_lshl_b32 s{sAOFF}, s{sRB0}, 2", f"s_add_u32 s{sAOFF}, s{sAOFF}, s{sW}",
                   f"s_lshl_b32 s{sAOFF}, s{sAOFF}, 13", f"s_add_u32 s{sAOFF}, s{sAOFF}, {O_BASE}"]
        post = [f"s_add_u32 s{sAOFF}, s{sAOFF}, 2048"]
        if p < 13:
            post += [f"s_cmp_eq_u32 s{sAOFF}, s{sAEND}", f"s_cselect_b32 s{sCB}, {28*1024}, 0", f"s_sub_u32 s{sAOFF}, s{sAOFF}, s{sCB}"]
        for n in range(4):
            ks, rb = n >> 1, n & 1
            ad = vLIN if rb == 0 else (vA1H if p < 14 else vA1O)
            self.C.append(Item(f"buffer_load_dwordx4 {v(self.ar(p,n),4)}, v{ad}, {s(S_WS,4)}, s{sAOFF} offen offset:{1024*ks} sc1",
                               pre=pre if n == 0 else (), post=post if n == 3 else (), lat=OPT["miss"] if p < 2 or p in (14, 15) else None))
        self.alast[p] = self.C[-1]

    def de_start(self):
        e = self.e
        self.alast = {}
        self.nlab += 1
        n = self.nlab
        self.force(self.P)
        self.a.need(*[k for k, r in self.a.vm if f"v{vPOLL}" in r])
        e(f"s_cmp_ge_u32 s{sLOC}, 28")
        e(f"s_cbranch_scc1 L_nopoll{n}")
        self.poll_check(vF23A, f"s{sF2O}")
        self.a.label(f"L_nopoll{n}")
        for p in range(4):
            self.a_load(p)
        for rb in range(2):
            self.C.append(Item(f"buffer_load_dword v{vG+rb}, v{vGA}, {s(S_WS,4)}, s{sGD} offen offset:{128*rb} sc1", lat=OPT["miss"]))

    def de(self):
        e, pe, m = self.e, self.pe, self.m
        e(f"s_cmp_ge_u32 s{sLOC}, 28")
        e("s_cbranch_scc1 L_idle")
        self.publish(sF3P, self.tO, 2)
        vBI = vCD

        def mm(p, ks, qd):
            rb, t = qd >> 1, qd & 1
            acc = v(vAB + 16 * qd, 16)
            C = v(vBI + 16 * t, 16) if p == 0 and ks == 0 else acc
            e(f"{MFMA} {acc}, {a_(16*(p%16)+8*ks+4*t,4)}, {v(self.ar(p,2*ks+rb),4)}, {C}")

        def scale(qd, half):
            for k in range(8 * half, 8 * half + 8):
                e(f"v_mul_f32 v{vAB+16*qd+k}, v{vG+(qd>>1)}, v{vAB+16*qd+k}")

        for p in range(17):
            self.force(self.C, self.alast[p])
            self.force(self.B, self.blast[p])
            if p in (1, 2):
                self.B.extend(self.b_read(15 + p))
            if p == OPT["poll3"]:
                e(f"s_add_u32 s{sF2O}, s{sF2O}, {F3-F2}")
                self.poll_item(vF23A, f"s{sF2O}")
            if p == 11:
                for rb in range(2):
                    e(f"v_sub_f32 v{vG+rb}, 1.0, v{vG+rb}")
            if p in (13, 14):
                for n in range(8):
                    mm(p, n & 1, n >> 1)
                    k = n - 4 + 8 * (p - 13)
                    self.side()
                    if 0 <= k < 8:
                        scale(k >> 1, k & 1)
            else:
                for ks in range(2):
                    for qd in range(4):
                        mm(p, ks, qd)
                        self.side()
            if p + 4 < 18:
                if p + 4 == 14:
                    self.poll_check(vF23A, f"s{sF2O}")
                self.a_load(p + 4)
        self.force(self.C)
        self.force(self.B)
        self.stamp("pair 16 done")
        e(f"v_add_u32 v24, s{sRING}, v{vLIN}")
        for d in range(1, 4):
            e(f"s_sub_u32 s{sT0}, s{sW}, {d}")
            e(f"s_and_b32 s{sT0}, s{sT0}, 3")
            e(f"s_mul_i32 s{sT0}, s{sT0}, 12288")
            e(f"s_add_u32 s{sT0}, s{sT0}, {RED+(d-1)*4096}")
            e(f"v_add_u32 v{24+d}, s{sT0}, v{vLIN}")
        e(f"v_and_b32 v28, 31, v{vL}")
        e(f"v_mul_u32_u24 v28, 896, v28")
        e(f"v_lshrrev_b32 v29, 5, v{vL}")
        e(f"v_lshl_add_u32 v28, v29, 4, v28")
        self.a.need(*[k for k, _ in self.a.vm + self.a.lg])
        for w in range(4):
            clk = self.a.clk, self.a.mf_free, self.a.lds_free
            if w:
                self.a.label(f"L_wr{w}")
            if w < 3:
                e(f"s_cmp_lg_u32 s{sW}, {w}")
                e(f"s_cbranch_scc1 L_wr{w+1}")
            order = [(w + d) & 3 for d in (1, 2, 3, 4)]
            for n, qd in enumerate(order):
                mm(17, 0, qd)
                mm(17, 1, qd)
                if n >= 2:
                    for k in range(4):
                        e(f"ds_write_b128 v24, {v(vAB+16*order[n-2]+4*k,4)} offset:{(n-2)*4096+k*1024}")
            for k in range(4):
                e(f"ds_write_b128 v24, {v(vAB+16*order[2]+4*k,4)} offset:{2*4096+k*1024}")
            for k in range(8):
                e(f"v_mov_b64 {v(64+2*k,2)}, {v(vAB+16*w+2*k,2)}")
            e("s_waitcnt lgkmcnt(0)")
            if w < 3:
                e("s_branch L_wrdone")
                self.a.clk, self.a.mf_free, self.a.lds_free = clk
        self.a.label("L_wrdone")
        e("s_barrier")
        for d in range(1, 4):
            for k in range(4):
                e(f"ds_read_b128 {v(64+16*d+4*k,4)}, v{24+d} offset:{k*1024}")
        for d in range(1, 4):
            for k in range(8):
                e(f"v_pk_add_f32 {v(64+2*k,2)}, {v(64+2*k,2)}, {v(64+16*d+2*k,2)}")
        for k in range(8):
            e(f"v_cvt_pk_bf16_f32 v{32+k}, v{64+2*k}, v{64+2*k+1}")
        for hh in range(2):
            for d in range(2):
                e(f"v_permlane32_swap_b32 v{32+4*hh+d}, v{32+4*hh+2+d}")
            e(f"buffer_store_dwordx4 {v(32+4*hh,4)}, v28, {s(S_OUT,4)}, s{sOUT} offen offset:{32*hh}")
        self.stamp("end")
        self.write_stamps()
        e("s_endpgm")
        self.a.label("L_idle")
        e("s_waitcnt vmcnt(0)")
        e(self.pub_text(sF3P))
        e("s_cmp_lg_u32 s2, 248")
        e("s_cbranch_scc1 L_end")
        e(f"s_cmp_lg_u32 s{sW}, 0")
        e("s_cbranch_scc1 L_end")
        e(f"v_lshlrev_b32 v24, 7, v{vL}")
        e(f"s_mov_b32 s{sSPIN}, 0")
        self.a.label("L_ep")
        for k in range(16):
            e(f"s_mov_b32 s{sT0}, {F1+8192*k}")
            e(f"buffer_load_dword v{40+k}, v24, {s(S_WS,4)}, s{sT0} offen sc1")
        e(f"s_add_u32 s{sSPIN}, s{sSPIN}, 1")
        e("s_waitcnt vmcnt(0)")
        for k in range(16):
            e(f"v_xor_b32 v{40+k}, v{vT}, v{40+k}")
        for k in range(1, 16):
            e(f"v_or_b32 v40, v40, v{40+k}")
        e(f"v_cmp_ne_u32 vcc, 0, v40")
        e(f"s_cmp_gt_u32 s{sSPIN}, 0x8000")
        e("s_cbranch_scc1 L_epd")
        e("s_cbranch_vccnz L_ep")
        self.a.label("L_epd")
        e(f"s_mov_b32 s{sT0}, {E_OFF}")
        e(self.pub_text(sT0))

    def write_stamps(self):
        e = self.e
        if OPT["probe"]:
            e(f"s_sub_u32 s{sT0}, s{sP0+1}, s{sP0}")
            e(f"s_lshl_b32 s{sT0}, s{sT0}, 2")
            e(f"s_add_u32 s{sT0}, s{sT0}, 72000")
            self.a.label("L_probe")
            e(f"s_memtime {s(sM3,2)}")
            e("s_waitcnt lgkmcnt(0)")
            e(f"s_sub_u32 s{sT1}, s{sM3}, s{sP0}")
            e(f"s_cmp_lt_u32 s{sT1}, s{sT0}")
            e("s_cbranch_scc1 L_probe")
        if not OPT["stamps"]:
            return
        e(f"s_lshl_b32 s{sT0}, s2, 2")
        e(f"s_add_u32 s{sT0}, s{sT0}, s{sW}")
        e(f"s_lshl_b32 s{sT1}, s{sT0}, 7")
        e(f"s_add_u32 s{sT1}, s{sT1}, {ST_BASE}")
        e(f"s_mov_b32 s{sT2}, {self.nst}")
        e(f"v_lshlrev_b32 v40, 2, v{vL}")
        e(f"v_writelane_b32 v{vST}, s{sT2}, 31")
        e(f"v_cmp_gt_u32 vcc, 32, v{vL}")
        e(f"v_mov_b32 v41, {OOB}")
        e(f"v_cndmask_b32 v40, v41, v40, vcc")
        e(f"buffer_store_dword v{vST}, v40, {s(S_WS,4)}, s{sT1} offen")
        if OPT["dbg"]:
            e(f"v_readfirstlane_b32 s{sT1}, v{vST}")
            e(f"s_cmp_eq_u32 s{sT0}, {OPT['dbg']}")
            e(f"s_cselect_b32 s{sT0}, 0, {OOB}")
            e(f"s_mov_b32 s{S_DBG+2}, 256")
            e(f"s_mov_b32 s{S_DBG+3}, 0x20000")
            e(f"v_subrev_u32 v{vST}, s{sT1}, v{vST}")
            e(f"buffer_store_dword v{vST}, v40, {s(S_DBG,4)}, s{sT0} offen")

    def build(self):
        self.prologue()
        self.phase1()
        self.attention()
        self.de()
        self.a.label("L_end")
        self.e("s_endpgm")
        if OPT["strip"]:
            keep, pro = [], True
            for i in self.a.ins:
                if i.kind == "barrier":
                    pro = False
                drop = i.kind in ("mfma", "trans", "dsread", "dswrite") or (
                    not pro and i.kind == "valu" and any(r[0] == "v" and r != "vcc" and int(r[1:]) >= 30 for r in i.w) and "v40" not in i.w and "v41" not in i.w)
                if OPT["strip"] == 2 and i.kind == "vstore" and "x4" in i.mn:
                    i = Ins(i.text.replace("offen", "offen").replace(f"v{vLIN},", f"v{vL0},").replace("v24,", f"v{vL0},").replace("v25,", f"v{vL0},").replace("v26,", f"v{vL0},").replace("v27,", f"v{vL0},"))
                if not drop:
                    keep.append(i)
            self.a.ins = keep
        self.a.finalize()
        body = self.a.text() + "\n" + "\n".join(t if t.endswith(":") else "    " + t for t in self.tail) + "\nL_code_end:\n    s_endpgm\n"
        head = f"""; Fused gated mix: sliding-window attention branch + GELU FFN branch, one persistent launch.
; @launch grid=(256,1,1) block=(256,1,1) lds={LDS_SIZE}
.amdgcn_target "amdgcn-amd-amdhsa--gfx950"
.text
.globl {NAME}_kernel
.p2align 8
.type {NAME}_kernel,@function
{NAME}_kernel:
"""
        foot = f""".section .rodata,"a"
.p2align 6
.amdhsa_kernel {NAME}_kernel
  .amdhsa_next_free_vgpr 512
  .amdhsa_next_free_sgpr 102
  .amdhsa_accum_offset 256
  .amdhsa_group_segment_fixed_size 0
  .amdhsa_kernarg_size 96
  .amdhsa_user_sgpr_count 2
  .amdhsa_user_sgpr_kernarg_segment_ptr 1
  .amdhsa_system_sgpr_workgroup_id_x 1
  .amdhsa_float_denorm_mode_32 3
.end_amdhsa_kernel
"""
        return head + body + foot


if __name__ == "__main__":
    g = Gen()
    txt = g.build()
    out = sys.argv[1] if len(sys.argv) > 1 else f"cdna_kernels/{NAME}.s"
    open(out, "w").write(txt)
    kinds = {}
    for i in g.a.ins:
        kinds[i.kind] = kinds.get(i.kind, 0) + 1
    print(out, g.a.stats, kinds)
    if OPT["log"]:
        print("\n".join(g.a.log))
        print("model stalls", g.a.stall, "pipe busy", g.a.busy)
```

```python
import math, struct, sys
from collections import deque
sys.path.insert(0, "tools")
from asmlib import Asm, Ins, v, a_, s

NAME = "gated_mix__sliding_block__dense_activation_gelu__prompt"
OPT = dict(stamps=0, dbg=0, npairs=6, probe=0, poll1=20, poll2=4, chk2=7, poll3=7, norot=0, log=0,
           miss=480, pub1=13, svc=64, st=160, lat=480, win=8, strip=0, rot1=0, rot2=2, cpf=1, nt=0)
for arg in sys.argv[2:]:
    k, val = arg.split("=")
    assert k in OPT, k
    OPT[k] = int(val)


def fbits(x):
    return struct.unpack("<I", struct.pack("<f", x))[0]


QKV_BASE, H_BASE, O_BASE, G_BASE = 0, 0x600000, 0xD00000, 0xF00000
F_BASE, E_OFF, ST_BASE, WS_SIZE = 0xF10000, 0xF80000, 0xFA0000, 0x1000000
F1, F2, F3, F0 = F_BASE, F_BASE + 1024 * 128, F_BASE + 2048 * 128, F_BASE + 3072 * 128
OOB = 0x40000000
TAG_STEP = 0x6B43A9B7
R_A, R_Q, R_B, RING = 0, 57344, 106496, 57344
KV = R_B
XST = 106496
TB1, DUMMY, TB2, RED = 163328, 159744, 0, 8192
LDS_SIZE = 163840
S_CODE, S_X, S_WQ, S_W1, S_WS, S_W2, S_WO, S_OUT, S_B1, S_B2, S_GW, S_DBG = 4, 8, 12, 16, 20, 24, 28, 32, 36, 40, 44, 96
sMX = 3
sW, sC, sLIGHT, sUA, sUB, sJ, sRB0, sCT, sLOC, sRB, sQB, sFIRST = range(48, 60)
sT0, sT1, sT2, sT3 = 60, 61, 62, 63
sHI, sM, sG = 64, 66, 68
sCA, sCB, sBT = 75, 76, 77
sMQ, sMA, sMAS, sMB, sRING = 78, 79, 80, 81, 82
sBOFF, sBEND, sAOFF, sAEND, sKV0 = 83, 84, 85, 86, 87
sM3, sF2O, sSPIN = 88, 90, 91
sQS, sHA, sHB, sF1, sGS, sF0P = 0, 1, 4, 5, 6, 7
sKOFF, sMKV, sQOFF, sOS, sF3P, sF0R, sK2 = 36, 37, 38, 39, 44, 45, 46
sGQ, sGD, sNQ, sOUT = 92, 93, 94, 95
sP0 = 100
vL, vLIN, vT, vL0, vK1, vST = 0, 1, 2, 3, 4, 5
vTRQ, vTRF0, vTRF1 = 6, 7, 8
vW1A0, vW1A1, vPV = 9, 10, 11
vBD = 12
vBT0, vBT1 = 16, 17
vF1A, vF23A = 18, 19
vWQ = 20
vPOLL, vGA, vGATE = 20, 21, 22
vTBL = 23
vTMP = 24
vXD, vXR = 32, 36
vWR = 40
vACC = 64
vX = 144
vQ, vS, vCD, vM0, vM8, vO, vP, vMX = 96, 144, 176, 192, 208, 224, 240, 248
vKR, vVR, vKA, vVA = 40, 136, 6, 7
vAB, vBI, vA1H, vA1O, vG = 144, 208, 8, 9, 10

C_GELU = -2.0 * math.sqrt(2.0 / math.pi) * math.log2(math.e)
K1, K2 = fbits(C_GELU), fbits(C_GELU * 0.044715)
QSCALE = fbits(math.log2(math.e) / math.sqrt(28.0))
NINF = 0xFF800000
MFMA = "v_mfma_f32_32x32x16_bf16"


def NT(bit):
    return " nt" if OPT["nt"] & bit else ""


class Item:
    def __init__(self, text, sink=None, pre=(), post=(), m0=None, after=None, lat=None):
        self.text = [text] if isinstance(text, str) else text
        self.sink, self.pre, self.post, self.m0, self.after, self.lat = sink, pre, post, m0, after, lat
        self.vm = self.text[0].startswith("buffer")
        self.done = False


class Gen:
    def __init__(self):
        self.a = Asm()
        self.a.p_svc, self.a.p_st, self.a.p_lat, self.a.p_win = OPT['svc'], OPT['st'], OPT['lat'], OPT['win']
        self.q = deque()
        self.P, self.C, self.B = deque(), deque(), deque()
        self.tail = []
        self.nst = self.nlab = self.nmark = 0
        self.marks = set()
        self.m0 = None
        self.hooks = {}

    def e(self, t):
        return self.a.e(t)

    def emit_item(self, st):
        it = st.popleft()
        c0 = len(self.a.ins)
        if it.after:
            toks = it.after()
            assert toks is not None, "forced item whose producers are not emitted: " + it.text[0]
            self.a.need(*toks)
        for t in it.pre:
            self.e(t)
        if it.m0 and it.m0 != self.m0:
            reg, imm = it.m0[:2]
            self.e(f"s_mov_b32 m0, {imm}" if reg is None else f"s_add_u32 m0, s{reg}, {imm}" if imm else f"s_mov_b32 m0, s{reg}")
            self.m0 = it.m0
        for t in it.text:
            self.a.next_lat = it.lat
            k = self.e(t)
            if it.sink is not None:
                it.sink.append(k)
        for t in it.post:
            self.e(t)
        it.done = True
        return 4 * (len(self.a.ins) - c0) + (4 if it.vm else 0)

    def side(self):
        a = self.a
        for st in (self.P, self.C, self.B):
            if not st:
                continue
            it = st[0]
            if not (a.vm_free() if it.vm else a.lds_free - a.clk <= 8):
                continue
            if it.after:
                toks = it.after()
                if toks is None or a.est(toks) > a.clk:
                    continue
            return self.emit_item(st)
        return 0

    def force(self, st, it=None):
        while st and (it is None or not it.done):
            self.emit_item(st)

    def m(self, t):
        k = self.e(t)
        if not t.startswith(("s_cmp", "s_cselect", "v_cmp")):
            self.side()
        return k

    def push(self, fn, cost=4):
        self.q.append((fn, cost))

    def pe(self, t):
        cost = 8 if Ins(t).kind == "trans" else 4
        if t.startswith("s_cselect"):
            fn, c = self.q.pop()
            assert getattr(fn, "scc", False), "s_cselect must follow its s_cmp directly: " + t
            g = lambda fn=fn, t=t: (fn(), self.e(t))
            g.scc = True
            self.q.append((g, c + cost))
            return
        f = lambda t=t: self.e(t)
        f.scc = t.startswith("s_cmp")
        self.q.append((f, cost))

    def gap(self, budget):
        budget -= self.side()
        while self.q and budget >= min(self.q[0][1], 8):
            fn, c = self.q.popleft()
            fn()
            budget -= c

    def drain(self, name=None):
        while (self.q if name is None else name not in self.marks):
            self.q.popleft()[0]()
            self.side()

    def mark(self, name):
        self.push(lambda: self.marks.add(name), 0)

    def hook(self, name):
        fn = self.hooks.pop(name, None)
        if fn:
            fn()

    def stamp(self, name="", group=1):
        if group == 1:
            self.a.log.append(f"{self.a.clk:6d} {name}  (pipe busy {self.a.busy})")
        if (OPT["stamps"] == group or (OPT["stamps"] and self.nst == 0)) and self.nst < 16:
            clk = self.a.clk
            self.e(f"s_memtime {s(sM3,2)}")
            self.e("s_waitcnt lgkmcnt(0)")
            self.e(f"v_writelane_b32 v{vST}, s{sM3}, {self.nst}")
            self.a.clk = clk
            self.nst += 1
        if group == 1:
            self.nmark += 1
            if OPT["probe"] == self.nmark:
                self.e(f"s_memtime {s(sM3,2)}")
                self.e("s_waitcnt lgkmcnt(0)")
                self.e(f"s_mov_b32 s{sP0+1}, s{sM3}")

    def poll_item(self, addr, soff):
        it = Item(f"buffer_load_dword {v(vPOLL)}, {v(addr)}, {s(S_WS,4)}, {soff} offen sc1", lat=OPT["miss"])
        self.P.append(it)
        return it

    def poll_check(self, addr, soff):
        self.force(self.P)
        self.nlab += 1
        n = self.nlab
        if OPT["stamps"]:
            self.e(f"s_mov_b32 s{sSPIN}, 0")
        self.e(f"v_cmp_ne_u32 vcc, {v(vT)}, {v(vPOLL)}")
        self.e(f"s_cbranch_vccnz L_slow{n}")
        self.a.label(f"L_back{n}")
        if OPT["stamps"]:
            self.npoll = getattr(self, "npoll", 0) + 1
            self.e(f"v_writelane_b32 v{vST}, s{sSPIN}, {15 + self.npoll}")
        self.tail += [f"L_slow{n}:", f"s_mov_b32 s{sSPIN}, 0", f"L_spin{n}:",
                      f"buffer_load_dword {v(vPOLL)}, {v(addr)}, {s(S_WS,4)}, {soff} offen sc1",
                      f"s_add_u32 s{sSPIN}, s{sSPIN}, 1",
                      "s_waitcnt vmcnt(0)",
                      f"v_cmp_ne_u32 vcc, {v(vT)}, {v(vPOLL)}",
                      f"s_cmp_gt_u32 s{sSPIN}, 0x20000",
                      f"s_cbranch_scc1 L_back{n}",
                      f"s_cbranch_vccnz L_spin{n}",
                      f"s_branch L_back{n}"]

    def pub_text(self, soff):
        return f"buffer_store_dword {v(vT)}, {v(vL0)}, {s(S_WS,4)}, s{soff} offen sc1"

    def publish(self, soff, toks, n, pre=()):
        it = Item(self.pub_text(soff), pre=pre, after=lambda: toks if len(toks) == n else None)
        self.P.append(it)
        return it

    def prologue(self):
        e, m = self.e, self.m
        e("s_cmp_ge_u32 s2, 256")
        e("s_cbranch_scc1 L_end")
        if OPT["probe"]:
            e(f"s_memtime {s(sP0,2)}")
        def kargs(base):
            for srd, off in ((S_X, 0), (S_WQ, 8), (S_WS, 88), (S_GW, 64), (S_B1, 40), (S_W1, 32), (S_W2, 48), (S_WO, 16), (S_B2, 56), (S_OUT, 72)):
                e(f"s_load_dwordx2 {s(srd,2)}, {base}, {off}")
        if OPT["probe"] == 102:
            e("s_mov_b64 s[98:99], s[0:1]")
        else:
            kargs("s[0:1]")
        if OPT["probe"] == 101:
            e("s_waitcnt lgkmcnt(0)")
            e(f"s_memtime {s(sM3,2)}")
            e("s_waitcnt lgkmcnt(0)")
            e(f"s_mov_b32 s{sP0+1}, s{sM3}")
        if OPT["dbg"]:
            e(f"s_load_dwordx2 {s(S_DBG,2)}, s[0:1], 80")
        e(f"s_getpc_b64 {s(S_CODE,2)}")
        self.a.label("L_pc")
        e(f"s_lshr_b32 s{sLOC}, s2, 3")
        e(f"v_lshrrev_b32 v1, 6, v0")
        e(f"v_and_b32 v{vL}, 63, v0")
        e(f"s_and_b32 s{sT0}, s{sLOC}, 7")
        e(f"v_readfirstlane_b32 s{sW}, v1")
        e(f"s_mov_b32 s{S_CODE+2}, L_code_end-L_pc")
        e(f"s_mov_b32 s{S_CODE+3}, 0x20000")
        e(f"v_and_b32 v24, 7, v{vL}")
        e(f"v_lshl_add_u32 v24, v1, 3, v24")
        e(f"v_lshlrev_b32 v24, 7, v24")
        e(f"s_lshl_b32 s{sT1}, s{sT0}, 12")
        if OPT["cpf"]:
            e(f"buffer_load_dword v46, v24, {s(S_CODE,4)}, 0 offen")
        e(f"buffer_load_dword v25, v24, {s(S_CODE,4)}, s{sT1} offen")
        e(f"s_lshr_b32 s{sT1}, s{sLOC}, 3")
        e(f"s_bfe_u32 s{sRB}, s2, 0x20001")
        e(f"s_lshl_b32 s{sRB}, s{sRB}, 2")
        e(f"s_add_u32 s{sRB}, s{sRB}, s{sT1}")
        e(f"s_and_b32 s{sC}, s2, 1")
        e(f"s_lshl_b32 s{sC}, s{sC}, 3")
        e(f"s_add_u32 s{sC}, s{sC}, s{sT0}")
        e(f"s_lshl_b32 s{sT1}, s{sT1}, 1")
        e(f"s_add_u32 s{sT0}, s{sT0}, s{sT1}")
        e(f"s_sub_u32 s{sT1}, s{sT0}, 7")
        e(f"s_cmp_ge_u32 s{sT0}, 7")
        e(f"s_cselect_b32 s{sG}, s{sT1}, s{sT0}")
        if OPT["rot1"] == 0:
            e(f"s_mov_b32 s{sG}, 0")
        if OPT["rot1"] == 2:
            e(f"s_and_b32 s{sT0}, s2, 7")
            e(f"s_cmp_eq_u32 s{sT0}, 7")
            e(f"s_cselect_b32 s{sG}, 0, s{sT0}")
        e(f"s_lshl_b32 s{sRB}, s{sRB}, 2")
        e(f"s_add_u32 s{sRB}, s{sRB}, s{sW}")
        for srd, size in ((S_X, 2048 * 896), (S_WQ, 448 * 2688)):
            e(f"s_mov_b32 s{srd+2}, {size}")
            e(f"s_mov_b32 s{srd+3}, 0x20000")
        e(f"v_lshrrev_b32 v24, 3, v{vL}")
        e(f"s_lshl_b32 s{sT0}, s{sRB}, 5")
        e(f"v_add_u32 v24, s{sT0}, v24")
        e(f"v_mul_u32_u24 v24, 896, v24")
        e(f"v_lshrrev_b32 v26, 4, v{vL}")
        e(f"v_and_b32 v27, 7, v{vL}")
        e(f"v_xor_b32 v26, v26, v27")
        e(f"v_lshl_add_u32 v{vXD}, v26, 4, v24")
        e(f"v_xor_b32 v{vXD+1}, 64, v{vXD}")
        e(f"v_add_u32 v{vXD+2}, {2*(7168-1024)}, v{vXD}")
        e(f"v_add_u32 v{vXD+3}, {3*(7168-1024)}, v{vXD+1}")
        e(f"v_add_u32 v{vXD+1}, {7168-1024}, v{vXD+1}")
        e(f"s_mul_i32 s{sMX}, s{sW}, 12288")
        e(f"s_add_u32 s{sRING}, s{sMX}, {RED}")
        e(f"s_add_u32 s{sMX}, s{sMX}, {XST}")
        e(f"s_mul_i32 s{sT0}, s{sC}, 168")
        e(f"s_and_b32 s{sT0}, s{sT0}, 0xfffffff0")
        e(f"s_mul_i32 s{sT1}, s{sW}, {16*2688}")
        e(f"s_add_u32 s{sT0}, s{sT0}, s{sT1}")
        for i in range(3):
            e(f"v_add_u32 v24, {64*i}, v{vL}")
            e(f"v_mul_u32_u24 v26, 171, v24")
            e(f"v_lshrrev_b32 v26, 11, v26")
            e(f"v_mul_u32_u24 v27, 12, v26")
            e(f"v_sub_u32 v24, v24, v27")
            e(f"v_min_u32 v24, 10, v24")
            e(f"v_mul_u32_u24 v26, 2688, v26")
            e(f"v_lshl_add_u32 v24, v24, 4, v26")
            e(f"v_add_u32 v{vWQ+i}, s{sT0}, v24")
            if i < 2:
                e(f"s_sub_u32 s{sT0}, s{sT0}, 1024")
        e(f"s_mul_i32 s{sMQ}, s{sW}, {16*192}")
        e(f"s_add_u32 s{sMQ}, s{sMQ}, {R_Q}")
        for i in range(1, 7):
            e(f"s_add_u32 s{sT0}, s{sG+i-1}, 1")
            e(f"s_cmp_eq_u32 s{sT0}, 7")
            e(f"s_cselect_b32 s{sG+i}, 0, s{sT0}")
        for srd, size in ((S_WS, WS_SIZE), (S_GW, 896), (S_B1, 3584), (S_W1, 448 * 3584), (S_B2, 896), (S_OUT, 2048 * 896)):
            e(f"s_mov_b32 s{srd+2}, {size}")
            e(f"s_mov_b32 s{srd+3}, 0x20000")
        e(f"s_lshr_b32 s{sLIGHT}, 0x1248, s{sC}")
        e(f"s_and_b32 s{sLIGHT}, s{sLIGHT}, 1")
        e(f"s_bfm_b32 s{sT0}, s{sC}, 0")
        e(f"s_and_b32 s{sT0}, s{sT0}, 0x1248")
        e(f"s_bcnt1_i32_b32 s{sT0}, s{sT0}")
        e(f"s_lshl_b32 s{sUA}, s{sC}, 1")
        e(f"s_sub_u32 s{sUA}, s{sUA}, s{sT0}")
        e(f"s_add_u32 s{sUB}, s{sUA}, 1")
        e(f"s_sub_u32 s{sUB}, s{sUB}, s{sLIGHT}")
        e(f"s_lshl_b32 s{sT0}, s{sW}, 6")
        e(f"v_add_u32 v26, s{sT0}, v{vL}")
        e(f"s_lshl_b32 s{sT1}, s{sG}, 6")
        for h in range(2):
            e(f"v_add_u32 v27, s{sT1}, v26")
            if h:
                e(f"v_add_u32 v27, 256, v27")
            e(f"v_subrev_u32 v28, 448, v27")
            e(f"v_min_u32 v27, v27, v28")
            e(f"v_lshlrev_b32 v{42+h}, 1, v27")
        e(f"s_lshl_b32 s{sT0}, s{sUA}, 7")
        e(f"s_cmp_eq_u32 s{sLIGHT}, 1")
        e(f"s_cselect_b32 s{sT0}, {OOB}, s{sT0}")
        e(f"s_lshl_b32 s{sT1}, s{sUB}, 7")
        e(f"s_sub_u32 s{sT1}, s{sT1}, 128")
        e(f"s_mov_b32 s{sHI}, 0")
        e(f"s_mov_b32 s{sHI+1}, -1")
        e(f"v_mov_b32 v27, s{sT0}")
        e(f"v_mov_b32 v28, s{sT1}")
        e(f"v_cndmask_b32 v27, v27, v28, {s(sHI,2)}")
        e(f"v_lshl_add_u32 v44, v{vL}, 2, v27")
        e(f"v_mov_b32 v45, {E_OFF}")
        m(f"v_lshlrev_b32 v{vLIN}, 4, v{vL}")
        m(f"v_bfe_u32 v24, v{vL}, 2, 2")
        m(f"v_lshrrev_b32 v27, 5, v{vL}")
        m(f"v_bfe_u32 v28, v{vL}, 4, 1")
        m(f"v_and_b32 v29, 3, v{vL}")
        m(f"v_lshlrev_b32 v29, 3, v29")
        m(f"v_lshl_add_u32 v29, v28, 5, v29")
        m(f"v_lshl_add_u32 v40, v27, 3, v24")
        m(f"v_mul_u32_u24 v41, 192, v40")
        m(f"s_and_b32 s{sT0}, s{sC}, 1")
        m(f"s_lshl_b32 s{sT0}, s{sT0}, 3")
        m(f"s_add_u32 s{sT0}, s{sT0}, {R_Q}")
        m(f"v_add3_u32 v{vTRQ}, v41, v29, s{sT0}")
        m(f"v_lshrrev_b32 v41, 1, v24")
        m(f"v_lshl_add_u32 v29, v41, 6, v29")
        m(f"v_lshl_add_u32 v{vTRF0}, v40, 7, v29")
        m(f"v_xor_b32 v{vTRF1}, 64, v{vTRF0}")
        m(f"v_lshl_add_u32 v40, v27, 2, v24")
        m(f"v_lshl_add_u32 v40, v40, 7, v29")
        m(f"v_add_u32 v{vBT0}, s{sRING}, v40")
        m(f"v_xor_b32 v{vBT1}, 64, v{vBT0}")
        m(f"v_and_b32 v40, 31, v{vL}")
        m(f"v_bfe_u32 v41, v{vL}, 1, 3")
        m(f"v_xor_b32 v41, v41, v27")
        m(f"v_lshlrev_b32 v41, 4, v41")
        m(f"v_lshl_add_u32 v40, v40, 7, v41")
        m(f"v_add_u32 v{vXR}, s{sMX}, v40")
        for k in range(1, 4):
            m(f"v_xor_b32 v{vXR+k}, {32*k}, v{vXR}")
        m(f"v_lshlrev_b32 v{vTBL}, 3, v27")
        m(f"v_add_u32 v{vTBL}, {TB1 - TB1 % 2048}, v{vTBL}")
        m(f"v_and_b32 v40, 3, v{vL}")
        m(f"v_lshl_add_u32 v40, v27, 2, v40")
        m(f"v_bfe_u32 v41, v{vL}, 2, 3")
        m(f"v_lshl_add_u32 v40, v41, 3, v40")
        m(f"v_lshlrev_b32 v{vPV}, 4, v40")
        m(f"v_cmp_eq_u32 vcc, 0, v{vL}")
        m(f"v_mov_b32 v40, {OOB}")
        m(f"v_mov_b32 v{vK1}, {K1}")
        m(f"v_cndmask_b32 v{vL0}, v40, 0, vcc")
        m(f"s_and_b32 s{sT0}, s2, 7")
        m(f"s_and_b32 s{sT1}, s{sLOC}, 1")
        m(f"s_lshl_b32 s{sJ}, s{sT0}, 1")
        m(f"s_add_u32 s{sJ}, s{sJ}, s{sT1}")
        m(f"s_mul_i32 s{sT1}, s{sLOC}, 37")
        m(f"s_lshr_b32 s{sT1}, s{sT1}, 8")
        m(f"s_mul_i32 s{sCT}, s{sT1}, 7")
        m(f"s_sub_u32 s{sCT}, s{sLOC}, s{sCT}")
        m(f"s_lshl_b32 s{sRB0}, s{sT0}, 2")
        m(f"s_add_u32 s{sRB0}, s{sRB0}, s{sT1}")
        m(f"s_lshl_b32 s{sRB0}, s{sRB0}, 1")
        m(f"s_lshl_b32 s{sT1}, s{sT1}, 2")
        m(f"s_lshr_b32 s{sT1}, 0xa370, s{sT1}")
        m(f"s_and_b32 s{sT1}, s{sT1}, 15")
        m(f"s_lshl_b32 s{sT3}, s{sCT}, 1")
        m(f"s_add_u32 s{sT3}, s{sT3}, s{sT1}")
        m(f"s_sub_u32 s{sT1}, s{sT3}, 14")
        m(f"s_cmp_ge_u32 s{sT3}, 14")
        m(f"s_cselect_b32 s{sT3}, s{sT1}, s{sT3}")
        if OPT["rot2"] == 0:
            m(f"s_mov_b32 s{sT3}, 0")
        if OPT["rot2"] == 2:
            m(f"s_and_b32 s{sT3}, s2, 7")
            m(f"s_mul_i32 s{sT3}, s{sT3}, 7")
            m(f"s_lshr_b32 s{sT3}, s{sT3}, 2")
        if OPT["rot2"] == 3:
            m(f"s_lshl_b32 s{sT3}, s{sCT}, 1")
        m(f"s_mul_i32 s{sBEND}, s{sW}, {448*896}")
        m(f"s_mul_i32 s{sBOFF}, s{sT3}, {32*896}")
        m(f"s_add_u32 s{sBOFF}, s{sBOFF}, s{sBEND}")
        m(f"s_add_u32 s{sBEND}, s{sBEND}, {448*896}")
        m(f"s_mul_i32 s{sAEND}, s{sRB0}, 112")
        m(f"s_mul_i32 s{sT0}, s{sW}, 28")
        m(f"s_add_u32 s{sAEND}, s{sAEND}, s{sT0}")
        m(f"s_lshl_b32 s{sAEND}, s{sAEND}, 10")
        m(f"s_add_u32 s{sAEND}, s{sAEND}, {H_BASE}")
        m(f"s_lshl_b32 s{sAOFF}, s{sT3}, 11")
        m(f"s_add_u32 s{sAOFF}, s{sAOFF}, s{sAEND}")
        m(f"s_add_u32 s{sAEND}, s{sAEND}, {28*1024}")
        m(f"s_lshl_b32 s{sGD}, s{sRB0}, 7")
        m(f"s_add_u32 s{sGD}, s{sGD}, {G_BASE}")
        m(f"s_cmp_lt_u32 s{sLOC}, 28")
        m(f"s_cselect_b32 s{S_W2+2}, {1792*896}, 0")
        m(f"s_cselect_b32 s{S_WO+2}, {448*896}, 0")
        m(f"s_cselect_b32 s{sAOFF}, s{sAOFF}, {OOB}")
        m(f"s_cselect_b32 s{sGD}, s{sGD}, {OOB}")
        m(f"s_mov_b32 s{S_W2+3}, 0x20000")
        m(f"s_mov_b32 s{S_WO+3}, 0x20000")
        m(f"s_lshl_b32 s{sF2O}, s{sRB0}, 11")
        m(f"s_add_u32 s{sF2O}, s{sF2O}, {F2}")
        m(f"v_lshrrev_b32 v24, 3, v{vL}")
        m(f"v_lshlrev_b32 v28, 2, v28")
        m(f"v_and_b32 v29, 7, v{vL}")
        m(f"v_xor_b32 v28, v28, v29")
        m(f"v_lshlrev_b32 v28, 4, v28")
        m(f"v_mul_u32_u24 v29, 3584, v24")
        m(f"s_mul_i32 s{sT0}, s{sW}, {16*3584}")
        m(f"v_add3_u32 v{vW1A0}, v29, v28, s{sT0}")
        m(f"v_add_u32 v{vW1A1}, {8*3584-1024}, v{vW1A0}")
        m(f"v_mul_u32_u24 v29, 896, v24")
        m(f"s_lshl_b32 s{sT0}, s{sCT}, 7")
        m(f"v_add3_u32 v{vBD}, v29, v28, s{sT0}")
        for k in range(1, 4):
            m(f"v_add_u32 v{vBD+k}, {k*(7168-1024)}, v{vBD}")
        m(f"s_lshl_b32 s{sMB}, s{sW}, 11")
        m(f"s_sub_u32 s{sMA}, s{sMB}, {64*128 - R_A}")
        m(f"s_add_u32 s{sMB}, s{sMB}, {R_B}")
        m(f"s_mul_i32 s{sT0}, s{sC}, 3")
        m(f"s_sub_u32 s{sNQ}, 16, s{sT0}")
        m(f"s_lshl_b32 s{sT0}, s{sT0}, 6")
        m(f"s_add_u32 s{sT0}, s{sT0}, s{sRB}")
        m(f"s_lshl_b32 s{sQS}, s{sT0}, 11")
        m(f"s_mul_i32 s{sT1}, s{sRB}, 28")
        m(f"s_add_u32 s{sT0}, s{sT1}, s{sUB}")
        m(f"s_lshl_b32 s{sT0}, s{sT0}, 12")
        m(f"s_add_u32 s{sHB}, s{sT0}, {H_BASE}")
        m(f"s_sub_u32 s{sHA}, s{sHB}, 4096")
        m(f"s_lshl_b32 s{sUA}, s{sUA}, 7")
        m(f"s_lshl_b32 s{sUB}, s{sUB}, 7")
        m(f"s_cmp_eq_u32 s{sLIGHT}, 1")
        m(f"s_cselect_b32 s{sHA}, {OOB}, s{sHA}")
        m(f"s_cselect_b32 s{sUA}, {OOB}, s{sUA}")
        m(f"s_cselect_b32 s{sMA}, {DUMMY}, s{sMA}")
        m(f"s_cselect_b32 s{sMAS}, 0, {64*128}")
        m(f"s_lshl_b32 s{sT0}, s{sRB}, 4")
        m(f"s_add_u32 s{sT0}, s{sT0}, s{sC}")
        m(f"s_lshl_b32 s{sT0}, s{sT0}, 7")
        m(f"s_add_u32 s{sF1}, s{sT0}, {F1}")
        m(f"s_lshl_b32 s{sT0}, s{sRB}, 7")
        m(f"s_add_u32 s{sGS}, s{sT0}, {G_BASE}")
        m(f"s_add_u32 s{sF0P}, s{sT0}, {F0}")
        m(f"s_cmp_eq_u32 s{sC}, 3")
        m(f"s_cselect_b32 s{sGS}, s{sGS}, {OOB}")
        m(f"s_cselect_b32 s{sF0P}, s{sF0P}, {OOB}")
        m(f"s_lshr_b32 s{sT0}, s{sLOC}, 1")
        m(f"s_lshl_b32 s{sT0}, s{sT0}, 2")
        m(f"s_add_u32 s{sQB}, s{sT0}, s{sW}")
        m(f"s_sub_u32 s{sFIRST}, 8, s{sQB}")
        m(f"s_max_i32 s{sFIRST}, s{sFIRST}, 0")
        m(f"s_mul_i32 s{sT1}, s{sW}, 3")
        m(f"s_add_u32 s{sT0}, s{sT0}, s{sT1}")
        m(f"s_sub_u32 s{sKV0}, s{sT0}, 8")
        m(f"s_mul_i32 s{sT2}, s{sJ}, 43")
        m(f"s_lshr_b32 s{sT2}, s{sT2}, 7")
        m(f"s_lshl_b32 s{sT1}, s{sQB}, 4")
        m(f"s_add_u32 s{sT2}, s{sT1}, s{sT2}")
        m(f"v_mov_b32 v{vF1A}, s{sT2}")
        for part, add in ((0, 16), (1, 32)):
            m(f"s_add_u32 s{sT2}, s{sJ}, {add}")
            m(f"s_mul_i32 s{sT2}, s{sT2}, 43")
            m(f"s_lshr_b32 s{sT2}, s{sT2}, 7")
            m(f"v_subrev_u32 v40, {3*part}, v{vL}")
            m(f"v_add_u32 v41, s{sKV0}, v40")
            m(f"v_cmp_gt_u32 {s(sM,2)}, 3, v40")
            m(f"v_cmp_le_i32 vcc, 0, v41")
            m(f"v_lshl_add_u32 v41, v41, 4, s{sT2}")
            m(f"s_and_b64 {s(sM,2)}, {s(sM,2)}, vcc")
            m(f"v_cndmask_b32 v{vF1A}, v{vF1A}, v41, {s(sM,2)}")
        m(f"v_lshlrev_b32 v{vF1A}, 7, v{vF1A}")
        m(f"v_add_u32 v{vF1A}, {F1}, v{vF1A}")
        m(f"v_bfe_u32 v40, v{vL}, 2, 1")
        m(f"v_and_b32 v41, 3, v{vL}")
        m(f"s_lshl_b32 s{sT0}, s{sW}, 2")
        m(f"v_add_u32 v41, s{sT0}, v41")
        m(f"v_cmp_gt_u32 vcc, 8, v{vL}")
        m(f"v_lshl_add_u32 v41, v40, 4, v41")
        m(f"v_and_b32 v40, 1, v{vL}")
        m(f"v_lshl_add_u32 v40, v40, 4, 3")
        m(f"v_cndmask_b32 v{vF23A}, v40, v41, vcc")
        m(f"v_lshlrev_b32 v{vF23A}, 7, v{vF23A}")
        m(f"s_lshr_b32 s{sT0}, s{sW}, 1")
        m(f"s_add_u32 s{sT0}, s{sT0}, s{sRB0}")
        m(f"s_mul_i32 s{sT0}, s{sT0}, {32*896}")
        m(f"s_lshl_b32 s{sT1}, s{sCT}, 1")
        m(f"s_and_b32 s{sT2}, s{sW}, 1")
        m(f"s_add_u32 s{sT1}, s{sT1}, s{sT2}")
        m(f"s_lshl_b32 s{sT1}, s{sT1}, 6")
        m(f"s_add_u32 s{sOUT}, s{sT0}, s{sT1}")
        if OPT["probe"] == 102:
            e("s_waitcnt lgkmcnt(0)")
            e(f"s_memtime {s(sM3,2)}")
            e("s_waitcnt lgkmcnt(0)")
            e(f"s_mov_b32 s{sP0+1}, s{sM3}")
            kargs("s[98:99]")
        e("s_waitcnt lgkmcnt(0)")
        if 103 <= OPT["probe"] <= 108:
            seq = {103: [(S_X, 0)], 104: [(S_X, 0), (S_X, 0x80000)], 105: [(S_X, 0), (S_W1, 0)], 106: [(S_X, 0), (S_WS, 0x300000)],
                   107: [(S_X, 0), (S_WS, 0x300000), (S_WS, 0x310000)], 108: [(S_X, 0), (S_WS, 0x300000), (S_WS, 0x900000)]}[OPT["probe"]]
            e(f"s_lshl_b32 s{sT0}, s2, 10")
            e(f"s_lshl_b32 s{sT1}, s{sW}, 8")
            e(f"s_add_u32 s{sT0}, s{sT0}, s{sT1}")
            e(f"v_mov_b32 v47, s{sT0}")
            for n, (srd, off) in enumerate(seq):
                if n == len(seq) - 1:
                    e(f"s_memtime {s(sP0,2)}")
                    e("s_waitcnt lgkmcnt(0)")
                e(f"s_mov_b32 s{sT0}, {off}")
                e(f"buffer_load_dword v48, v47, {s(srd,4)}, s{sT0} offen")
                e("s_waitcnt vmcnt(0)")
            e(f"s_memtime {s(sM3,2)}")
            e("s_waitcnt lgkmcnt(0)")
            e(f"s_mov_b32 s{sP0+1}, s{sM3}")
        self.a.clk = self.a.pipe_free = 0
        self.a.allv = []
        self.a.done = {k: 0 for k in self.a.done}
        self.stamp("kernarg")
        self.ctok, self.wtok, self.xrd, self.ftok = {}, {}, {}, {}
        self.add_chunk(0)
        self.force(self.C)
        self.a.next_lat = OPT["miss"]
        e(f"buffer_load_dword v{vT}, v45, {s(S_WS,4)}, 0 offen sc1")
        for h in range(2):
            e(f"buffer_load_ushort v{30+h}, v{42+h}, {s(S_GW,4)}, 0 offen")
        e(f"s_mov_b32 m0, {TB1}")
        self.m0 = None
        self.tB1 = e(f"buffer_load_dword v44, {s(S_B1,4)}, 0 offen lds")
        self.add_chunk(1)
        self.add_chunk(2)
        m(f"s_lshl_b32 s{sT1}, s{sQB}, 4")
        m(f"s_add_u32 s{sT1}, s{sT1}, s{sJ}")
        m(f"s_lshl_b32 s{sF3P}, s{sT1}, 7")
        m(f"s_add_u32 s{sF3P}, s{sF3P}, {F3}")
        m(f"s_lshl_b32 s{sOS}, s{sT1}, 11")
        m(f"s_add_u32 s{sOS}, s{sOS}, {O_BASE}")
        m(f"s_lshl_b32 s{sT0}, s{sJ}, 6")
        m(f"s_add_u32 s{sKOFF}, s{sT0}, s{sKV0}")
        m(f"s_lshl_b32 s{sKOFF}, s{sKOFF}, 11")
        m(f"s_add_u32 s{sQOFF}, s{sT0}, s{sQB}")
        m(f"s_lshl_b32 s{sQOFF}, s{sQOFF}, 11")
        m(f"s_mul_i32 s{sMKV}, s{sW}, 6144")
        m(f"s_lshl_b32 s{sT0}, s{sQB}, 7")
        m(f"s_add_u32 s{sF0R}, s{sT0}, {F0}")
        m(f"s_add_u32 s{sGQ}, s{sT0}, {G_BASE}")
        m(f"s_mov_b32 s{sK2}, {K2}")
        m(f"s_mov_b32 s{sK2+1}, {K2}")

    def add_chunk(self, i):
        toks = self.ctok[i] = []
        lx = OPT["miss"] + 300 if i < 1 else None
        lw = OPT["miss"] + 300 if i < 2 else None
        xs, ws = [], []
        for k in range(4):
            xs.append(Item(f"buffer_load_dwordx4 v{vXD+k}, {s(S_X,4)}, s{sCA} offen" + (f" offset:{1024*k}" if k else "") + NT(1) + " lds", toks,
                           pre=[f"s_lshl_b32 s{sCA}, s{sG+i}, 7"] if k == 0 else (), m0=(sMX, (i % 3) * 4096), lat=lx,
                           after=(lambda: self.xrd[i - 3] if len(self.xrd.get(i - 3, ())) == 4 else None) if i >= 3 and k == 0 else None))
        for k in range(3):
            ws.append(Item(f"buffer_load_dwordx4 v{vWQ+k}, {s(S_WQ,4)}, s{sCB} offen" + (f" offset:{1024*k}" if k else "") + NT(2) + " lds", toks,
                           pre=[f"s_mul_i32 s{sCB}, s{sG+i}, {64*2688}"] if k == 0 else (), m0=(sMQ, (i % 4) * 64 * 192), lat=lw))
        self.C.extend(xs + ws if i == 0 else ws + xs)
        self.clast = getattr(self, "clast", {})
        self.clast[i] = self.C[-1]

    def add_w1(self, unit, i):
        toks = self.wtok[(unit, i)] = []
        pre = [f"s_mul_i32 s{sCB}, s{sG+i}, {64*3584}", f"s_add_u32 s{sCB}, s{sCB}, s{sUA+unit}"]
        if unit == 0:
            pre.append(f"s_add_u32 s{sMA}, s{sMA}, s{sMAS}")
        for k in range(2):
            self.C.append(Item(f"buffer_load_dwordx4 v{vW1A0+k}, {s(S_W1,4)}, s{sCB} offen" + (" offset:1024" if k else "") + NT(4) + " lds", toks,
                               pre=pre if k == 0 else (), m0=(sMB, i * 8192) if unit else (sMA, 0, i),
                               lat=OPT["miss"] if i < 4 else None))
        self.wlast = getattr(self, "wlast", {})
        self.wlast[(unit, i)] = self.C[-1]

    def gate_write(self):
        pe = self.pe
        pe(f"s_cmp_eq_u32 s{sLIGHT}, 1")
        pe(f"s_cselect_b64 {s(sM,2)}, -1, 0")
        pe(f"v_bfe_u32 v27, v26, 1, 1")
        pe(f"v_lshlrev_b32 v28, 7, v26")
        pe(f"v_lshl_add_u32 v28, v27, 6, v28")
        pe(f"v_mov_b32 v29, {DUMMY+2048}")
        pe(f"v_cndmask_b32 v27, v29, v28, {s(sM,2)}")
        pe(f"v_cmp_gt_u32 vcc, 192, v26")
        pe(f"v_add_u32 v28, {256*128}, v28")
        pe(f"s_and_b64 {s(sM,2)}, {s(sM,2)}, vcc")
        pe(f"ds_write_b16 v27, v30")
        pe(f"v_cndmask_b32 v28, v29, v28, {s(sM,2)}")
        pe(f"ds_write_b16 v28, v31")

    def store_addr(self):
        pe = self.pe
        for n, lim in ((0, 11), (1, 10)):
            pe(f"s_cmp_ge_u32 s{sC}, {lim}")
            pe(f"s_cselect_b64 {s(sM,2)}, -1, 0")
            pe(f"s_cselect_b32 s{sT0}, 128, 0")
            pe(f"s_cselect_b32 s{sT1}, 0x3f80, 0")
            pe(f"v_cndmask_b32 v{24+2*n}, v{vLIN}, v{vPV}, {s(sM,2)}")
            pe(f"v_mov_b32 v{28+n}, s{sT1}")
            pe(f"v_xor_b32 v{25+2*n}, s{sT0}, v{24+2*n}")

    def bias_init(self, acc, tbl, factor=None):
        for t in range(2):
            for mm in range(2):
                o = (tbl % 2048) // 8 + 8 * t + 4 * mm
                self.pe(f"ds_read2_b64 {v(acc+16*t+8+4*mm,4)}, v{vTBL} offset0:{o} offset1:{o+2}")
        for t in range(2):
            for k in range(8):
                src, dst = acc + 16 * t + 8 + k, acc + 16 * t + 2 * k
                self.pe(f"v_lshlrev_b32 v{dst}, 16, v{src}")
                self.pe(f"v_and_b32 v{dst+1}, 0xffff0000, v{src}")
        if factor:
            for k in range(16):
                self.pe(f"v_pk_mul_f32 {v(acc+2*k,2)}, {v(acc+2*k,2)}, {factor}")

    def rd_q(self, sidx, t):
        base = vWR + 12 * (sidx & 1) + 4 * t
        o = 56 * t + (sidx % 16) * 3072
        return [self.e(f"ds_read_b64_tr_b16 {v(base+2*h,2)}, v{vTRQ} offset:{o+768*h}") for h in range(2)]

    def rd_f(self, g, t):
        base = vWR + 8 * (g % 3) + 4 * t
        toks = self.ftok.setdefault(g, [])
        for h in range(2):
            toks.append(self.e(f"ds_read_b64_tr_b16 {v(base+2*h,2)}, v{vTRF0+t} offset:{(g%28)*2048+512*h}"))

    def rd_x(self, sidx):
        self.xrd.setdefault(sidx // 4, []).append(self.e(f"ds_read_b128 {v(vX+4*sidx,4)}, v{vXR+sidx%4} offset:{(sidx//4%3)*4096}"))

    def sync(self, st, last, toks, drain_lds=True):
        self.force(st, last)
        while self.a.est(toks) > self.a.clk + 8 and self.side_wait(self.a.est(toks)):
            pass
        self.a.need(*toks)
        if drain_lds and self.a.lg:
            self.e("s_waitcnt lgkmcnt(0)")
        self.e("s_barrier")

    def side_wait(self, until):
        a = self.a
        for st in (self.P, self.C, self.B):
            if not st:
                continue
            it = st[0]
            t = a.allv[-1][0] if it.vm else a.clk
            if it.after:
                toks = it.after()
                if toks is None:
                    continue
                t = max(t, a.est(toks))
            if t + 8 <= until:
                self.emit_item(st)
                return True
        return False

    def qkv(self):
        e = self.e
        qtok = {}
        self.sync(self.C, self.clast[0], self.ctok[0])
        self.stamp("chunk 0")
        self.add_chunk(3)
        self.rd_x(0)
        self.rd_x(1)
        for t in range(3):
            qtok[(0, t)] = self.rd_q(0, t)
        for sidx in range(28):
            i = sidx // 4
            if sidx % 2 == 0:
                self.stamp(group=3)
            if sidx == 0:
                self.gate_write()
            if sidx == 4:
                self.push(lambda: self.a.need(self.tB1), 0)
                self.bias_init(vACC + 48, TB1)
            if sidx == 8:
                self.store_addr()
            for t in range(3):
                if t == 0:
                    self.a.need(*qtok[(sidx, 0)], *qtok[(sidx, 1)])
                acc = v(vACC + 16 * t, 16)
                e(f"{MFMA} {acc}, {v(vWR+12*(sidx&1)+4*t,4)}, {v(vX+4*sidx,4)}, {acc if sidx else 0}")
                if t == 0 and sidx % 4 == 3:
                    self.drain()
                    if sidx < 27:
                        self.sync(self.C, self.clast[i + 1], self.ctok[i + 1])
                        if i + 4 < 7:
                            self.add_chunk(i + 4)
                        if i + 4 == 6:
                            for k in range(7):
                                self.add_w1(0, k)
                    else:
                        self.sync(self.C, self.wlast[(0, 0)], self.wtok[(0, 0)])
                if sidx % 4 == 3 and sidx < 27 and t < 2:
                    self.rd_x(sidx + 1 + t)
                if sidx % 4 == 0 and t < 2:
                    self.rd_x(sidx + 2 + t)
                if sidx < 27:
                    qtok[(sidx + 1, t)] = self.rd_q(sidx + 1, t)
                elif t < 2:
                    self.rd_f(0, t)
                self.gap((12, 16, 12)[t] if sidx % 4 in (1, 2) else (4, 8, 12)[t])
        self.rd_f(1, 0)
        self.rd_f(1, 1)

    QPK = (vTMP + 8, vACC + 40, vACC + 32)

    def qkv_pack(self, t):
        pe = self.pe
        acc, dst = vACC + 16 * t, self.QPK[t]
        pe(f"s_cmp_gt_i32 s{sNQ}, {t}")
        pe(f"s_cselect_b32 s{sT1}, {QSCALE}, 1.0")
        for k in range(16):
            pe(f"v_mul_f32 v{acc+k}, s{sT1}, v{acc+k}")
        def store(half):
            pre = [f"s_add_u32 s{sCA}, s{sQS}, {t*64*2048}"] if half == 0 else ()
            self.C.append(Item(f"buffer_store_dwordx4 {v(dst+4*half,4)}, v{24+2*(t>>1)+half}, {s(S_WS,4)}, s{sCA} offen offset:{1024*half} sc1",
                               self.tQKV, pre=pre))
            self.lastS = self.C[-1]
        for k in range(8):
            pe(f"v_cvt_pk_bf16_f32 v{dst+k}, v{acc+2*k}, v{acc+2*k+1}")
            if k == 3:
                self.push(lambda: store(0), 0)
        pe(f"v_cndmask_b32 v{dst+6}, v{dst+6}, v{28+(t>>1)}, {s(sHI,2)}")
        pe(f"v_cndmask_b32 v{dst+7}, v{dst+7}, 0, {s(sHI,2)}")
        self.push(lambda: store(1), 0)

    def b_slot(self, p):
        return (RING - RED) + (p % 6) * 4096 if p % 6 < 3 else (p % 6 - 3) * 4096

    def b_dma(self, p):
        toks = self.btok[p] = []
        out = []
        pre, post, off = [], [], sBOFF
        if p >= 14:
            off = sBT
            pre = [f"s_mul_i32 s{sBT}, s{sW}, {112*896}"] + ([f"s_add_u32 s{sBT}, s{sBT}, {(p-14)*28*896}"] if p > 14 else [])
        elif p < 13:
            post = [f"s_add_u32 s{sBOFF}, s{sBOFF}, {32*896}", f"s_cmp_eq_u32 s{sBOFF}, s{sBEND}",
                    f"s_cselect_b32 s{sBT}, {448*896}, 0", f"s_sub_u32 s{sBOFF}, s{sBOFF}, s{sBT}"]
        for k in range(4):
            out.append(Item(f"buffer_load_dwordx4 v{vBD+k}, {s(S_W2 if p < 14 else S_WO,4)}, s{off} offen" + (f" offset:{1024*k}" if k else "") + NT(8) + " lds",
                            toks, pre=pre if k == 0 else (), post=post if k == 3 else (), m0=(sRING, self.b_slot(p)),
                            lat=OPT["miss"] if p < 4 or p >= 14 else None,
                            after=(lambda: self.btr[p - 6] if len(self.btr.get(p - 6, ())) == 8 else None) if k == 0 and p >= 6 else None))
        return out

    def b_read(self, p):
        toks = self.btr[p] = []
        out = []
        for ks in range(2):
            for t in range(2):
                out.append(Item([f"ds_read_b64_tr_b16 {a_(16*(p%16)+8*ks+4*t+2*h,2)}, v{vBT0+t} offset:{self.b_slot(p)+ks*2048+h*1024}" for h in range(2)],
                                toks, after=(lambda: self.btok[p] if len(self.btok[p]) == 4 else None) if ks + t == 0 else None))
        self.blast[p] = out[-1]
        return out

    def gelu_two(self, acc, soff, n, packed):
        pe = self.pe
        T = vTMP + 12
        U = [acc + 2 * n, acc + 2 * n + 2]
        R = [T, T + 2]
        if packed:
            for u, r in zip(U, R):
                pe(f"v_pk_mul_f32 {v(r,2)}, {v(u,2)}, {v(u,2)}")
                pe(f"v_pk_fma_f32 {v(r,2)}, {v(r,2)}, {s(sK2,2)}, {v(vK1,2)} op_sel_hi:[1,1,0]")
                pe(f"v_pk_mul_f32 {v(r,2)}, {v(r,2)}, {v(u,2)}")
            for k in range(4):
                pe(f"v_exp_f32 v{T+k}, v{T+k}")
            for r in R:
                pe(f"v_pk_add_f32 {v(r,2)}, {v(r,2)}, 1.0 op_sel_hi:[1,0]")
            for k in range(4):
                pe(f"v_rcp_f32 v{T+k}, v{T+k}")
            for u, r in zip(U, R):
                pe(f"v_pk_mul_f32 {v(r,2)}, {v(r,2)}, {v(u,2)}")
        else:
            u = U[0]
            for k in range(4):
                pe(f"v_mul_f32 v{T+k}, v{u+k}, v{u+k}")
                pe(f"v_fma_f32 v{T+k}, v{T+k}, s{sK2}, v{vK1}")
                pe(f"v_mul_f32 v{T+k}, v{T+k}, v{u+k}")
            for k in range(4):
                pe(f"v_exp_f32 v{T+k}, v{T+k}")
            for k in range(4):
                pe(f"v_add_f32 v{T+k}, 1.0, v{T+k}")
            for k in range(4):
                pe(f"v_rcp_f32 v{T+k}, v{T+k}")
            for k in range(4):
                pe(f"v_mul_f32 v{T+k}, v{T+k}, v{u+k}")
        for d in range(2):
            pe(f"v_cvt_pk_bf16_f32 v{acc+n+d}, v{T+2*d}, v{T+2*d+1}")
        if n % 4 == 2:
            fr = n // 4
            self.push(lambda: self.C.append(Item(
                f"buffer_store_dwordx4 {v(acc+4*fr,4)}, v{vLIN}, {s(S_WS,4)}, s{soff} offen offset:{fr*1024} sc1", self.tH)), 0)

    def ffn(self, unit):
        e = self.e
        acc0 = vACC + 48 if unit == 0 else vACC
        for sidx in range(28):
            g = 28 * unit + sidx
            if sidx % 4 == 0:
                self.stamp(group=2)
            self.hook(f"ffn{unit}_{sidx}")
            self.a.need(*self.ftok[g])
            for t in range(2):
                acc = v(acc0 + 16 * t, 16)
                e(f"{MFMA} {acc}, {v(vWR+8*(g%3)+4*t,4)}, {v(vX+4*sidx,4)}, {acc}")
                if t == 0 and sidx % 4 == 2:
                    if sidx < 26:
                        k = (unit, sidx // 4 + 1)
                        self.sync(self.C, self.wlast[k], self.wtok[k], drain_lds=False)
                    elif unit == 0:
                        self.drain("biasb")
                        self.sync(self.C, self.wlast[(1, 0)], self.wtok[(1, 0)])
                        e(f"v_add_u32 v{vTRF0}, {R_B-R_A}, v{vTRF0}")
                        e(f"v_add_u32 v{vTRF1}, {R_B-R_A}, v{vTRF1}")
                        self.add_w1(1, 6)
                        self.B.extend(self.b_dma(3) + self.b_dma(4) + self.b_dma(5))
                        for p in range(12):
                            self.B.extend(self.b_read(p) + self.b_dma(p + 6))
                        for p in range(12, 16):
                            self.B.extend(self.b_read(p))
                if g + 2 < 56:
                    self.rd_f(g + 2, t)
                self.gap((16, 12)[t])

    def phase1(self):
        e, pe, m = self.e, self.pe, self.m
        self.btok, self.btr, self.blast = {}, {}, {}
        self.tQKV, self.tH, tG = [], [], []
        self.qkv()
        self.stamp("qkv done")
        self.add_w1(1, 0)
        self.qkv_pack(2)
        self.push(lambda: self.add_w1(1, 1), 0)
        self.qkv_pack(1)
        self.qkv_pack(0)
        self.push(lambda: [self.add_w1(1, k) for k in range(2, 6)], 0)
        self.bias_init(vACC, TB1 + 128)
        pe(f"v_add_u32 v{vT}, {TAG_STEP}, v{vT}")
        self.mark("biasb")
        self.B.extend(self.b_dma(0) + self.b_dma(1) + self.b_dma(2))
        self.ffn(0)
        self.force(self.C, self.lastS)
        self.stamp("ffn a done")
        accA = vACC + 48
        pub1 = self.publish(sF1, self.tQKV, 6)
        pe(f"v_mul_f32 v{vGATE}, {fbits(-math.log2(math.e))}, v{accA}")
        pe(f"v_exp_f32 v{vGATE}, v{vGATE}")
        pe(f"v_and_b32 v{vGA}, 31, v{vL}")
        pe(f"v_add_f32 v{vGATE}, 1.0, v{vGATE}")
        pe(f"v_lshlrev_b32 v{vGA}, 2, v{vGA}")
        pe(f"v_rcp_f32 v{vGATE}, v{vGATE}")
        pe(f"v_mov_b32 v{vTMP}, {OOB}")
        pe(f"v_cndmask_b32 v{vTMP}, v{vGA}, v{vTMP}, {s(sHI,2)}")
        self.push(lambda: self.C.appendleft(Item(f"buffer_store_dword v{vGATE}, v{vTMP}, {s(S_WS,4)}, s{sGS} offen sc1", tG)), 0)
        self.push(lambda: self.publish(sF0P, tG, 1), 0)
        ga = deque(range(0, 16, 2))
        while ga and ga[0] < OPT["npairs"]:
            self.gelu_two(accA, sHA, ga.popleft(), False)
        self.hooks[f"ffn1_{OPT['pub1']}"] = lambda: self.force(self.P, pub1)
        self.hooks[f"ffn1_{OPT['poll1']}"] = lambda: self.poll_item(vF1A, 0)
        self.ffn(1)
        self.poll_check(vF1A, 0)
        e("s_barrier")
        self.att_loads()
        self.stamp("ffn b done")
        m(f"v_lshlrev_b32 v{vTMP+1}, 2, v{vL}")
        self.tB2 = []
        self.C.append(Item(f"buffer_load_dword v{vTMP+1}, {s(S_B2,4)}, s{sCB} offen lds", self.tB2,
                           pre=[f"s_lshl_b32 s{sCB}, s{sCT}, 7"], m0=(None, TB2), lat=OPT["miss"]))
        self.drain()
        for acc, soff, todo in ((accA, sHA, ga), (vACC, sHB, range(0, 16, 2))):
            for n in todo:
                self.gelu_two(acc, soff, n, True)
        self.drain()
        self.stamp("gelu done")

    def att_loads(self):
        self.tKV = []
        items = []
        for bb in range(3):
            for part in range(2):
                pre = ([f"s_add_u32 s{sCA}, s{sKOFF}, {16*64*2048+2048*bb}", f"s_cmp_lt_i32 s{sKV0}, {-bb}", f"s_cselect_b32 s{sCA}, {OOB}, s{sCA}"]
                       if part == 0 else [f"s_add_u32 s{sCA}, s{sCA}, {16*64*2048}"])
                for k in range(2):
                    items.append(Item(f"buffer_load_dwordx4 v{vLIN}, {s(S_WS,4)}, s{sCA} offen" + (" offset:1024" if k else "") + " sc1 lds",
                                      self.tKV, pre=pre if k == 0 else (), m0=(sMKV, KV + 24576 * part + 2048 * bb), lat=OPT["miss"]))
        for k in range(2):
            items.append(Item(f"buffer_load_dwordx4 {v(vQ+4*k,4)}, v{vLIN}, {s(S_WS,4)}, s{sQOFF} offen offset:{1024*k} sc1", self.tKV, lat=OPT["miss"]))
        self.C.extendleft(reversed(items))
        self.kvlast = items[-1]

    def rd_k(self, n):
        for k in range(2):
            self.m(f"ds_read_b128 {v(vKR+8*(n%3)+4*k,4)}, v{vKA} offset:{(n%9)*2048+k*1024}")

    def rd_v(self, i, st):
        for h in range(2):
            self.e(f"ds_read_b64_tr_b16 {v(vVR+4*st+2*h,2)}, v{vVA} offset:{i*2048+256*(2*st+h)}")

    def qk(self, i, k):
        S = v(vS + 16 * (i & 1), 16)
        C = S if k else v(vM0 if i == 0 else vM8 if i == 8 else vCD, 16)
        self.e(f"{MFMA} {S}, {v(vKR+8*(i%3)+4*k,4)}, {v(vQ+4*k,4)}, {C}")

    def patch(self, i, src):
        if not 2 <= i <= 7:
            return
        self.nlab += 1
        n = self.nlab
        self.e(f"s_cmp_eq_u32 s{sFIRST}, {i}")
        self.e(f"s_cbranch_scc1 L_pat{n}")
        self.a.label(f"L_patb{n}")
        self.tail += [f"L_pat{n}:", "s_nop 7"] + [f"v_mov_b32 v{vCD+k}, {src}" for k in range(16)] + ["s_nop 1", f"s_branch L_patb{n}"]

    def attention(self):
        e, pe, m = self.e, self.pe, self.m
        m(f"v_and_b32 v26, 31, v{vL}")
        m(f"v_lshrrev_b32 v27, 5, v{vL}")
        m(f"v_lshlrev_b32 v28, 2, v27")
        m(f"v_sub_u32 v26, v26, v28")
        m(f"s_cmp_gt_u32 s{sFIRST}, 0")
        m(f"s_cselect_b32 s{sT0}, {NINF}, 0")
        m(f"v_mov_b32 v28, s{sT0}")
        m(f"v_mov_b32 v29, {NINF}")
        m(f"s_cmp_gt_u32 s{sFIRST}, 1")
        m(f"s_cselect_b32 s{sT0}, {NINF}, 0")
        prs = (sM, sM3)
        for j0 in range(0, 16, 2):
            for d in range(2):
                jj = j0 + d
                m(f"v_cmp_le_i32 {s(prs[d],2)}, {(jj&3)+8*(jj>>2)}, v26")
            for d in range(2):
                m(f"v_mov_b32 v{vCD+j0+d}, s{sT0}")
            for d in range(2):
                jj = j0 + d
                m(f"v_cndmask_b32 v{vM8+jj}, v29, 0, {s(prs[d],2)}")
                m(f"v_cndmask_b32 v{vM0+jj}, v28, v29, {s(prs[d],2)}")
        m(f"s_lshl_b32 s{sT1}, s{sW}, 11")
        m(f"s_add_u32 s{sT1}, s{sT1}, {KV}")
        m(f"v_add_u32 v{vKA}, s{sT1}, v{vLIN}")
        m(f"v_bfe_u32 v28, v{vL}, 4, 1")
        m(f"v_xor_b32 v27, v27, v28")
        m(f"v_bfe_u32 v29, v{vL}, 2, 2")
        m(f"v_lshl_add_u32 v29, v27, 3, v29")
        m(f"v_and_b32 v27, 1, v{vL}")
        m(f"v_lshl_add_u32 v29, v27, 2, v29")
        m(f"v_lshlrev_b32 v29, 4, v29")
        m(f"v_lshl_add_u32 v29, v28, 10, v29")
        m(f"v_bfe_u32 v27, v{vL}, 1, 1")
        m(f"v_lshl_add_u32 v29, v27, 3, v29")
        m(f"s_add_u32 s{sT1}, s{sT1}, 24576")
        m(f"v_add_u32 v{vVA}, s{sT1}, v29")
        m(f"v_mov_b32 v{vMX}, {NINF}")
        m(f"v_mov_b32 v{vMX+1}, {NINF}")
        m(f"v_mov_b32 v{vF1A}, 0")
        m(f"v_add_u32 v{vA1H}, {112*1024}, v{vLIN}")
        m(f"v_add_u32 v{vA1O}, {32*1024}, v{vLIN}")
        self.sync(self.C, self.kvlast, self.tKV, drain_lds=False)
        self.stamp("kv in")
        self.poll_item(vF1A, f"s{sF0R}")
        pub2 = self.publish(sT3, self.tH, 8, pre=[f"s_add_u32 s{sT3}, s{sF1}, {F2-F1}"])
        self.rd_k(0)
        self.rd_k(1)
        for i in range(10):
            if i % 2 == 0:
                self.stamp(group=4)
            if i < 9:
                self.patch(i, "0")
                self.qk(i, 0)
                self.rd_k(i + 2)
                self.qk(i, 1)
            if i > 0:
                S = vS + 16 * ((i - 1) & 1)
                for k in range(8):
                    (m if k % 4 == 3 else e)(f"v_max3_f32 v{vMX+(k&1)}, v{S+2*k}, v{S+2*k+1}, v{vMX+(k&1)}")
        m(f"v_max_f32 v{vMX}, v{vMX}, v{vMX+1}")
        m(f"v_mov_b32 v{vMX+1}, v{vMX}")
        self.force(self.C)
        self.poll_check(vF1A, f"s{sF0R}")
        self.C.append(Item(f"buffer_load_dword v{vGATE}, v{vGA}, {s(S_WS,4)}, s{sGQ} offen sc1", lat=OPT["miss"]))
        m(f"v_permlane32_swap_b32 v{vMX}, v{vMX+1}")
        m(f"v_max_f32 v{vMX}, v{vMX}, v{vMX+1}")
        m(f"v_sub_f32 v{vMX}, 0, v{vMX}")
        for k in range(16):
            m(f"v_add_f32 v{vM0+k}, v{vM0+k}, v{vMX}")
        self.qk(0, 0)
        self.rd_k(2)
        self.qk(0, 1)
        m(f"v_add_f32 v{vMX+1}, s{sT0}, v{vMX}")
        for k in range(16):
            m(f"v_mov_b32 v{vCD+k}, v{vMX+1}")
        for k in range(16):
            m(f"v_add_f32 v{vM8+k}, v{vM8+k}, v{vMX}")
        self.stamp("pass 1 done")
        O = v(vO, 16)
        for i in range(9):
            S = vS + 16 * (i & 1)
            ex = lambda k: m(f"v_exp_f32 v{S+k}, v{S+k}")
            cv = lambda k: e(f"v_cvt_pk_bf16_f32 v{vP+k}, v{S+2*k}, v{S+2*k+1}")
            self.stamp(group=4)
            if i == OPT["poll2"]:
                self.poll_item(vF23A, f"s{sF2O}")
            if i == OPT["chk2"]:
                self.de_start()
            if i < 8:
                self.patch(i + 1, f"v{vMX}")
                self.qk(i + 1, 0)
            self.rd_v(i, 0)
            for k in range(3):
                ex(k)
            if i < 8:
                self.qk(i + 1, 1)
            self.rd_v(i, 1)
            for k in range(3, 9):
                ex(k)
            for k in range(4):
                cv(k)
            ex(9)
            ex(10)
            e(f"{MFMA} {O}, {v(vVR,4)}, {v(vP,4)}, {O if i else 0}")
            if i < 6:
                self.rd_k(i + 3)
            for k in range(11, 16):
                ex(k)
            for k in range(4, 8):
                cv(k)
            self.side()
            e(f"{MFMA} {O}, {v(vVR+4,4)}, {v(vP+4,4)}, {O}")
        self.a.need(*self.tB2)
        m(f"v_subrev_u32 v{vTBL}, {(TB1 - TB1 % 2048) - (TB2 - TB2 % 2048)}, v{vTBL}")
        m(f"s_cmp_eq_u32 s{sW}, 0")
        m(f"s_cselect_b32 s{sM}, 1.0, 0")
        m(f"s_mov_b32 s{sM+1}, s{sM}")
        self.bias_init(vCD, TB2, factor=s(sM, 2))
        for _ in range(12):
            self.q.popleft()[0]()
        m(f"v_mov_b32 v{vMX}, v{vO+12}")
        m(f"v_mov_b32 v{vMX+1}, v{vO+12}")
        m(f"v_permlane32_swap_b32 v{vMX}, v{vMX+1}")
        m(f"v_rcp_f32 v{vMX}, v{vMX+1}")
        m(f"v_mul_f32 v{vMX}, v{vMX}, v{vGATE}")
        for k in range(8):
            m(f"v_pk_mul_f32 {v(vO+2*k,2)}, {v(vO+2*k,2)}, {v(vMX,2)} op_sel_hi:[1,0]")
        self.tO = []
        for k in range(8):
            m(f"v_cvt_pk_bf16_f32 v{vP+k}, v{vO+2*k}, v{vO+2*k+1}")
            if k == 3:
                self.P.append(Item(f"buffer_store_dwordx4 {v(vP,4)}, v{vLIN}, {s(S_WS,4)}, s{sOS} offen sc1", self.tO))
        m(f"v_cndmask_b32 v{vP+6}, v{vP+6}, 0, {s(sHI,2)}")
        self.P.append(Item(f"buffer_store_dwordx4 {v(vP+4,4)}, v{vLIN}, {s(S_WS,4)}, s{sOS} offen offset:1024 sc1", self.tO))
        self.drain()
        self.force(self.P)
        self.stamp("attention done")

    def ar(self, p, k):
        return (64, 80, 104, 120)[p % 4] + 4 * k

    def a_load(self, p):
        pre = []
        if p == 14:
            pre = [f"s_lshl_b32 s{sAOFF}, s{sRB0}, 2", f"s_add_u32 s{sAOFF}, s{sAOFF}, s{sW}",
                   f"s_lshl_b32 s{sAOFF}, s{sAOFF}, 13", f"s_add_u32 s{sAOFF}, s{sAOFF}, {O_BASE}"]
        post = [f"s_add_u32 s{sAOFF}, s{sAOFF}, 2048"]
        if p < 13:
            post += [f"s_cmp_eq_u32 s{sAOFF}, s{sAEND}", f"s_cselect_b32 s{sCB}, {28*1024}, 0", f"s_sub_u32 s{sAOFF}, s{sAOFF}, s{sCB}"]
        for n in range(4):
            ks, rb = n >> 1, n & 1
            ad = vLIN if rb == 0 else (vA1H if p < 14 else vA1O)
            self.C.append(Item(f"buffer_load_dwordx4 {v(self.ar(p,n),4)}, v{ad}, {s(S_WS,4)}, s{sAOFF} offen offset:{1024*ks} sc1",
                               pre=pre if n == 0 else (), post=post if n == 3 else (), lat=OPT["miss"] if p < 2 or p in (14, 15) else None))
        self.alast[p] = self.C[-1]

    def de_start(self):
        e = self.e
        self.alast = {}
        self.nlab += 1
        n = self.nlab
        self.force(self.P)
        self.a.need(*[k for k, r in self.a.vm if f"v{vPOLL}" in r])
        e(f"s_cmp_ge_u32 s{sLOC}, 28")
        e(f"s_cbranch_scc1 L_nopoll{n}")
        self.poll_check(vF23A, f"s{sF2O}")
        self.a.label(f"L_nopoll{n}")
        for p in range(4):
            self.a_load(p)
        for rb in range(2):
            self.C.append(Item(f"buffer_load_dword v{vG+rb}, v{vGA}, {s(S_WS,4)}, s{sGD} offen offset:{128*rb} sc1", lat=OPT["miss"]))

    def de(self):
        e, pe, m = self.e, self.pe, self.m
        e(f"s_cmp_ge_u32 s{sLOC}, 28")
        e("s_cbranch_scc1 L_idle")
        self.publish(sF3P, self.tO, 2)
        vBI = vCD

        def mm(p, ks, qd):
            rb, t = qd >> 1, qd & 1
            acc = v(vAB + 16 * qd, 16)
            C = v(vBI + 16 * t, 16) if p == 0 and ks == 0 else acc
            e(f"{MFMA} {acc}, {a_(16*(p%16)+8*ks+4*t,4)}, {v(self.ar(p,2*ks+rb),4)}, {C}")

        def scale(qd, half):
            for k in range(8 * half, 8 * half + 8):
                e(f"v_mul_f32 v{vAB+16*qd+k}, v{vG+(qd>>1)}, v{vAB+16*qd+k}")

        for p in range(17):
            self.force(self.C, self.alast[p])
            self.force(self.B, self.blast[p])
            if p in (1, 2):
                self.B.extend(self.b_read(15 + p))
            if p == OPT["poll3"]:
                e(f"s_add_u32 s{sF2O}, s{sF2O}, {F3-F2}")
                self.poll_item(vF23A, f"s{sF2O}")
            if p == 11:
                for rb in range(2):
                    e(f"v_sub_f32 v{vG+rb}, 1.0, v{vG+rb}")
            if p in (13, 14):
                for n in range(8):
                    mm(p, n & 1, n >> 1)
                    k = n - 4 + 8 * (p - 13)
                    self.side()
                    if 0 <= k < 8:
                        scale(k >> 1, k & 1)
            else:
                for ks in range(2):
                    for qd in range(4):
                        mm(p, ks, qd)
                        self.side()
            if p + 4 < 18:
                if p + 4 == 14:
                    self.poll_check(vF23A, f"s{sF2O}")
                self.a_load(p + 4)
        self.force(self.C)
        self.force(self.B)
        self.stamp("pair 16 done")
        e(f"v_add_u32 v24, s{sRING}, v{vLIN}")
        for d in range(1, 4):
            e(f"s_sub_u32 s{sT0}, s{sW}, {d}")
            e(f"s_and_b32 s{sT0}, s{sT0}, 3")
            e(f"s_mul_i32 s{sT0}, s{sT0}, 12288")
            e(f"s_add_u32 s{sT0}, s{sT0}, {RED+(d-1)*4096}")
            e(f"v_add_u32 v{24+d}, s{sT0}, v{vLIN}")
        e(f"v_and_b32 v28, 31, v{vL}")
        e(f"v_mul_u32_u24 v28, 896, v28")
        e(f"v_lshrrev_b32 v29, 5, v{vL}")
        e(f"v_lshl_add_u32 v28, v29, 4, v28")
        self.a.need(*[k for k, _ in self.a.vm + self.a.lg])
        for w in range(4):
            clk = self.a.clk, self.a.mf_free, self.a.lds_free
            if w:
                self.a.label(f"L_wr{w}")
            if w < 3:
                e(f"s_cmp_lg_u32 s{sW}, {w}")
                e(f"s_cbranch_scc1 L_wr{w+1}")
            order = [(w + d) & 3 for d in (1, 2, 3, 4)]
            for n, qd in enumerate(order):
                mm(17, 0, qd)
                mm(17, 1, qd)
                if n >= 2:
                    for k in range(4):
                        e(f"ds_write_b128 v24, {v(vAB+16*order[n-2]+4*k,4)} offset:{(n-2)*4096+k*1024}")
            for k in range(4):
                e(f"ds_write_b128 v24, {v(vAB+16*order[2]+4*k,4)} offset:{2*4096+k*1024}")
            for k in range(8):
                e(f"v_mov_b64 {v(64+2*k,2)}, {v(vAB+16*w+2*k,2)}")
            e("s_waitcnt lgkmcnt(0)")
            if w < 3:
                e("s_branch L_wrdone")
                self.a.clk, self.a.mf_free, self.a.lds_free = clk
        self.a.label("L_wrdone")
        e("s_barrier")
        for d in range(1, 4):
            for k in range(4):
                e(f"ds_read_b128 {v(64+16*d+4*k,4)}, v{24+d} offset:{k*1024}")
        for d in range(1, 4):
            for k in range(8):
                e(f"v_pk_add_f32 {v(64+2*k,2)}, {v(64+2*k,2)}, {v(64+16*d+2*k,2)}")
        for k in range(8):
            e(f"v_cvt_pk_bf16_f32 v{32+k}, v{64+2*k}, v{64+2*k+1}")
        for hh in range(2):
            for d in range(2):
                e(f"v_permlane32_swap_b32 v{32+4*hh+d}, v{32+4*hh+2+d}")
            e(f"buffer_store_dwordx4 {v(32+4*hh,4)}, v28, {s(S_OUT,4)}, s{sOUT} offen offset:{32*hh}")
        self.stamp("end")
        self.write_stamps()
        e("s_endpgm")
        self.a.label("L_idle")
        e("s_waitcnt vmcnt(0)")
        e(self.pub_text(sF3P))
        e("s_cmp_lg_u32 s2, 248")
        e("s_cbranch_scc1 L_end")
        e(f"s_cmp_lg_u32 s{sW}, 0")
        e("s_cbranch_scc1 L_end")
        e(f"v_lshlrev_b32 v24, 7, v{vL}")
        e(f"s_mov_b32 s{sSPIN}, 0")
        self.a.label("L_ep")
        for k in range(16):
            e(f"s_mov_b32 s{sT0}, {F1+8192*k}")
            e(f"buffer_load_dword v{40+k}, v24, {s(S_WS,4)}, s{sT0} offen sc1")
        e(f"s_add_u32 s{sSPIN}, s{sSPIN}, 1")
        e("s_waitcnt vmcnt(0)")
        for k in range(16):
            e(f"v_xor_b32 v{40+k}, v{vT}, v{40+k}")
        for k in range(1, 16):
            e(f"v_or_b32 v40, v40, v{40+k}")
        e(f"v_cmp_ne_u32 vcc, 0, v40")
        e(f"s_cmp_gt_u32 s{sSPIN}, 0x8000")
        e("s_cbranch_scc1 L_epd")
        e("s_cbranch_vccnz L_ep")
        self.a.label("L_epd")
        e(f"s_mov_b32 s{sT0}, {E_OFF}")
        e(self.pub_text(sT0))

    def write_stamps(self):
        e = self.e
        if OPT["probe"]:
            e(f"s_sub_u32 s{sT0}, s{sP0+1}, s{sP0}")
            e(f"s_lshl_b32 s{sT0}, s{sT0}, 2")
            e(f"s_add_u32 s{sT0}, s{sT0}, 72000")
            self.a.label("L_probe")
            e(f"s_memtime {s(sM3,2)}")
            e("s_waitcnt lgkmcnt(0)")
            e(f"s_sub_u32 s{sT1}, s{sM3}, s{sP0}")
            e(f"s_cmp_lt_u32 s{sT1}, s{sT0}")
            e("s_cbranch_scc1 L_probe")
        if not OPT["stamps"]:
            return
        e(f"s_lshl_b32 s{sT0}, s2, 2")
        e(f"s_add_u32 s{sT0}, s{sT0}, s{sW}")
        e(f"s_lshl_b32 s{sT1}, s{sT0}, 7")
        e(f"s_add_u32 s{sT1}, s{sT1}, {ST_BASE}")
        e(f"s_mov_b32 s{sT2}, {self.nst}")
        e(f"v_lshlrev_b32 v40, 2, v{vL}")
        e(f"v_writelane_b32 v{vST}, s{sT2}, 31")
        e(f"v_cmp_gt_u32 vcc, 32, v{vL}")
        e(f"v_mov_b32 v41, {OOB}")
        e(f"v_cndmask_b32 v40, v41, v40, vcc")
        e(f"buffer_store_dword v{vST}, v40, {s(S_WS,4)}, s{sT1} offen")
        if OPT["dbg"]:
            e(f"v_readfirstlane_b32 s{sT1}, v{vST}")
            e(f"s_cmp_eq_u32 s{sT0}, {OPT['dbg']}")
            e(f"s_cselect_b32 s{sT0}, 0, {OOB}")
            e(f"s_mov_b32 s{S_DBG+2}, 256")
            e(f"s_mov_b32 s{S_DBG+3}, 0x20000")
            e(f"v_subrev_u32 v{vST}, s{sT1}, v{vST}")
            e(f"buffer_store_dword v{vST}, v40, {s(S_DBG,4)}, s{sT0} offen")

    def build(self):
        self.prologue()
        self.phase1()
        self.attention()
        self.de()
        self.a.label("L_end")
        self.e("s_endpgm")
        if OPT["strip"]:
            keep, pro = [], True
            for i in self.a.ins:
                if i.kind == "barrier":
                    pro = False
                drop = i.kind in ("mfma", "trans", "dsread", "dswrite") or (
                    not pro and i.kind == "valu" and any(r[0] == "v" and r != "vcc" and int(r[1:]) >= 30 for r in i.w) and "v40" not in i.w and "v41" not in i.w)
                if OPT["strip"] == 2 and i.kind == "vstore" and "x4" in i.mn:
                    i = Ins(i.text.replace("offen", "offen").replace(f"v{vLIN},", f"v{vL0},").replace("v24,", f"v{vL0},").replace("v25,", f"v{vL0},").replace("v26,", f"v{vL0},").replace("v27,", f"v{vL0},"))
                if not drop:
                    keep.append(i)
            self.a.ins = keep
        self.a.finalize()
        body = self.a.text() + "\n" + "\n".join(t if t.endswith(":") else "    " + t for t in self.tail) + "\nL_code_end:\n    s_endpgm\n"
        head = f"""; Fused gated mix: sliding-window attention branch + GELU FFN branch, one persistent launch.
; @launch grid=(256,1,1) block=(256,1,1) lds={LDS_SIZE}
.amdgcn_target "amdgcn-amd-amdhsa--gfx950"
.text
.globl {NAME}_kernel
.p2align 8
.type {NAME}_kernel,@function
{NAME}_kernel:
"""
        foot = f""".section .rodata,"a"
.p2align 6
.amdhsa_kernel {NAME}_kernel
  .amdhsa_next_free_vgpr 512
  .amdhsa_next_free_sgpr 102
  .amdhsa_accum_offset 256
  .amdhsa_group_segment_fixed_size 0
  .amdhsa_kernarg_size 96
  .amdhsa_user_sgpr_count 2
  .amdhsa_user_sgpr_kernarg_segment_ptr 1
  .amdhsa_system_sgpr_workgroup_id_x 1
  .amdhsa_float_denorm_mode_32 3
.end_amdhsa_kernel
"""
        return head + body + foot


if __name__ == "__main__":
    g = Gen()
    txt = g.build()
    out = sys.argv[1] if len(sys.argv) > 1 else f"cdna_kernels/{NAME}.s"
    open(out, "w").write(txt)
    kinds = {}
    for i in g.a.ins:
        kinds[i.kind] = kinds.get(i.kind, 0) + 1
    print(out, g.a.stats, kinds)
    if OPT["log"]:
        print("\n".join(g.a.log))
        print("model stalls", g.a.stall, "pipe busy", g.a.busy)
```

```python
import math, struct, sys
from collections import deque
sys.path.insert(0, "tools")
from asmlib import Asm, Ins, v, a_, s

NAME = "gated_mix__sliding_block__dense_activation_gelu__prompt"
OPT = dict(stamps=0, dbg=0, npairs=6, probe=0, poll1=20, poll2=4, chk2=7, poll3=7, norot=0, log=0,
           miss=480, pub1=13, svc=64, st=160, lat=480, win=8, strip=0, rot1=3, rot2=2, cpf=1, nt=0, split=1, wpf=1)
for arg in sys.argv[2:]:
    k, val = arg.split("=")
    assert k in OPT, k
    OPT[k] = int(val)


def fbits(x):
    return struct.unpack("<I", struct.pack("<f", x))[0]


QKV_BASE, H_BASE, O_BASE, G_BASE = 0, 0x600000, 0xD00000, 0xF00000
F_BASE, E_OFF, ST_BASE, WS_SIZE = 0xF10000, 0xF80000, 0xFA0000, 0x1000000
F1, F2, F3, F0 = F_BASE, F_BASE + 1024 * 128, F_BASE + 2048 * 128, F_BASE + 3072 * 128
OOB = 0x40000000
TAG_STEP = 0x6B43A9B7
R_A, R_Q, R_B, RING = 0, 57344, 106496, 57344
KV = R_B
XST = 106496
TB1, DUMMY, TB2, RED = 163328, 159744, 0, 8192
LDS_SIZE = 163840
S_CODE, S_X, S_WQ, S_W1, S_WS, S_W2, S_WO, S_OUT, S_B1, S_B2, S_GW, S_DBG = 4, 8, 12, 16, 20, 24, 28, 32, 36, 40, 44, 96
sMX = 3
sW, sC, sLIGHT, sUA, sUB, sJ, sRB0, sCT, sLOC, sRB, sQB, sFIRST = range(48, 60)
sT0, sT1, sT2, sT3 = 60, 61, 62, 63
sHI, sM, sG = 64, 66, 68
sCA, sCB, sBT = 75, 76, 77
sMQ, sMA, sMAS, sMB, sRING = 78, 79, 80, 81, 82
sBOFF, sBEND, sAOFF, sAEND, sKV0 = 83, 84, 85, 86, 87
sM3, sF2O, sSPIN = 88, 90, 91
sQS, sHA, sHB, sF1, sGS, sF0P = 0, 1, 4, 5, 6, 7
sKOFF, sMKV, sQOFF, sOS, sF3P, sF0R, sK2 = 36, 37, 38, 39, 44, 45, 46
sGQ, sGD, sNQ, sOUT = 92, 93, 94, 95
sP0 = 100
vL, vLIN, vT, vL0, vK1, vST = 0, 1, 2, 3, 4, 5
vTRQ, vTRF0, vTRF1 = 6, 7, 8
vW1A0, vW1A1, vPV = 9, 10, 11
vBD = 12
vBT0, vBT1 = 16, 17
vF1A, vF23A = 18, 19
vWQ = 20
vPOLL, vGA, vGATE = 20, 21, 22
vTBL = 23
vTMP = 24
vXD, vXR = 32, 36
vWR = 40
vACC = 64
vX = 144
vQ, vS, vCD, vM0, vM8, vO, vP, vMX = 96, 144, 176, 192, 208, 224, 240, 248
vKR, vVR, vKA, vVA = 40, 136, 6, 7
vAB, vBI, vA1H, vA1O, vG = 144, 208, 8, 9, 10

C_GELU = -2.0 * math.sqrt(2.0 / math.pi) * math.log2(math.e)
K1, K2 = fbits(C_GELU), fbits(C_GELU * 0.044715)
QSCALE = fbits(math.log2(math.e) / math.sqrt(28.0))
NINF = 0xFF800000
MFMA = "v_mfma_f32_32x32x16_bf16"


def NT(bit):
    return " nt" if OPT["nt"] & bit else ""


class Item:
    def __init__(self, text, sink=None, pre=(), post=(), m0=None, after=None, lat=None):
        self.text = [text] if isinstance(text, str) else text
        self.sink, self.pre, self.post, self.m0, self.after, self.lat = sink, pre, post, m0, after, lat
        self.vm = self.text[0].startswith("buffer")
        self.done = False


class Gen:
    def __init__(self):
        self.a = Asm()
        self.a.p_svc, self.a.p_st, self.a.p_lat, self.a.p_win = OPT['svc'], OPT['st'], OPT['lat'], OPT['win']
        self.q = deque()
        self.P, self.C, self.B = deque(), deque(), deque()
        self.tail = []
        self.nst = self.nlab = self.nmark = 0
        self.marks = set()
        self.m0 = None
        self.hooks = {}

    def e(self, t):
        return self.a.e(t)

    def emit_item(self, st):
        it = st.popleft()
        c0 = len(self.a.ins)
        if it.after:
            toks = it.after()
            assert toks is not None, "forced item whose producers are not emitted: " + it.text[0]
            self.a.need(*toks)
        for t in it.pre:
            self.e(t)
        if it.m0 and it.m0 != self.m0:
            reg, imm = it.m0[:2]
            self.e(f"s_mov_b32 m0, {imm}" if reg is None else f"s_add_u32 m0, s{reg}, {imm}" if imm else f"s_mov_b32 m0, s{reg}")
            self.m0 = it.m0
        for t in it.text:
            self.a.next_lat = it.lat
            k = self.e(t)
            if it.sink is not None:
                it.sink.append(k)
        for t in it.post:
            self.e(t)
        it.done = True
        return 4 * (len(self.a.ins) - c0) + (4 if it.vm else 0)

    def side(self):
        a = self.a
        for st in (self.P, self.C, self.B):
            if not st:
                continue
            it = st[0]
            if not (a.vm_free() if it.vm else a.lds_free - a.clk <= 8):
                continue
            if it.after:
                toks = it.after()
                if toks is None or a.est(toks) > a.clk:
                    continue
            return self.emit_item(st)
        return 0

    def force(self, st, it=None):
        while st and (it is None or not it.done):
            self.emit_item(st)

    def m(self, t):
        k = self.e(t)
        if not t.startswith(("s_cmp", "s_cselect", "v_cmp")):
            self.side()
        return k

    def push(self, fn, cost=4):
        self.q.append((fn, cost))

    def pe(self, t):
        cost = 8 if Ins(t).kind == "trans" else 4
        if t.startswith("s_cselect"):
            fn, c = self.q.pop()
            assert getattr(fn, "scc", False), "s_cselect must follow its s_cmp directly: " + t
            g = lambda fn=fn, t=t: (fn(), self.e(t))
            g.scc = True
            self.q.append((g, c + cost))
            return
        f = lambda t=t: self.e(t)
        f.scc = t.startswith("s_cmp")
        self.q.append((f, cost))

    def gap(self, budget):
        budget -= self.side()
        while self.q and budget >= min(self.q[0][1], 8):
            fn, c = self.q.popleft()
            fn()
            budget -= c

    def drain(self, name=None):
        while (self.q if name is None else name not in self.marks):
            self.q.popleft()[0]()
            self.side()

    def mark(self, name):
        self.push(lambda: self.marks.add(name), 0)

    def hook(self, name):
        fn = self.hooks.pop(name, None)
        if fn:
            fn()

    def stamp(self, name="", group=1):
        if group == 1:
            self.a.log.append(f"{self.a.clk:6d} {name}  (pipe busy {self.a.busy})")
        if (OPT["stamps"] == group or (OPT["stamps"] and self.nst == 0)) and self.nst < 16:
            clk = self.a.clk
            self.e(f"s_memtime {s(sM3,2)}")
            self.e("s_waitcnt lgkmcnt(0)")
            self.e(f"v_writelane_b32 v{vST}, s{sM3}, {self.nst}")
            self.a.clk = clk
            self.nst += 1
        if group == 1:
            self.nmark += 1
            if OPT["probe"] == self.nmark:
                self.e(f"s_memtime {s(sM3,2)}")
                self.e("s_waitcnt lgkmcnt(0)")
                self.e(f"s_mov_b32 s{sP0+1}, s{sM3}")

    def poll_item(self, addr, soff):
        it = Item(f"buffer_load_dword {v(vPOLL)}, {v(addr)}, {s(S_WS,4)}, {soff} offen sc1", lat=OPT["miss"])
        self.P.append(it)
        return it

    def poll_check(self, addr, soff):
        self.force(self.P)
        self.nlab += 1
        n = self.nlab
        if OPT["stamps"]:
            self.e(f"s_mov_b32 s{sSPIN}, 0")
        self.e(f"v_cmp_ne_u32 vcc, {v(vT)}, {v(vPOLL)}")
        self.e(f"s_cbranch_vccnz L_slow{n}")
        self.a.label(f"L_back{n}")
        if OPT["stamps"]:
            self.npoll = getattr(self, "npoll", 0) + 1
            self.e(f"v_writelane_b32 v{vST}, s{sSPIN}, {15 + self.npoll}")
        self.tail += [f"L_slow{n}:", f"s_mov_b32 s{sSPIN}, 0", f"L_spin{n}:",
                      f"buffer_load_dword {v(vPOLL)}, {v(addr)}, {s(S_WS,4)}, {soff} offen sc1",
                      f"s_add_u32 s{sSPIN}, s{sSPIN}, 1",
                      "s_waitcnt vmcnt(0)",
                      f"v_cmp_ne_u32 vcc, {v(vT)}, {v(vPOLL)}",
                      f"s_cmp_gt_u32 s{sSPIN}, 0x20000",
                      f"s_cbranch_scc1 L_back{n}",
                      f"s_cbranch_vccnz L_spin{n}",
                      f"s_branch L_back{n}"]

    def pub_text(self, soff):
        return f"buffer_store_dword {v(vT)}, {v(vL0)}, {s(S_WS,4)}, s{soff} offen sc1"

    def publish(self, soff, toks, n, pre=()):
        it = Item(self.pub_text(soff), pre=pre, after=lambda: toks if len(toks) == n else None)
        self.P.append(it)
        return it

    def prologue(self):
        e, m = self.e, self.m
        e("s_cmp_ge_u32 s2, 256")
        e("s_cbranch_scc1 L_end")
        if OPT["probe"]:
            e(f"s_memtime {s(sP0,2)}")
        def kargs(base):
            for srd, off in ((S_X, 0), (S_WQ, 8), (S_WS, 88), (S_GW, 64), (S_B1, 40), (S_W1, 32), (S_W2, 48), (S_WO, 16), (S_B2, 56), (S_OUT, 72)):
                e(f"s_load_dwordx2 {s(srd,2)}, {base}, {off}")
        if OPT["probe"] == 102:
            e("s_mov_b64 s[98:99], s[0:1]")
        else:
            kargs("s[0:1]")
        if OPT["probe"] == 101:
            e("s_waitcnt lgkmcnt(0)")
            e(f"s_memtime {s(sM3,2)}")
            e("s_waitcnt lgkmcnt(0)")
            e(f"s_mov_b32 s{sP0+1}, s{sM3}")
        if OPT["dbg"]:
            e(f"s_load_dwordx2 {s(S_DBG,2)}, s[0:1], 80")
        e(f"s_getpc_b64 {s(S_CODE,2)}")
        self.a.label("L_pc")
        e(f"s_lshr_b32 s{sLOC}, s2, 3")
        e(f"v_lshrrev_b32 v1, 6, v0")
        e(f"v_and_b32 v{vL}, 63, v0")
        e(f"s_and_b32 s{sT0}, s{sLOC}, 7")
        e(f"v_readfirstlane_b32 s{sW}, v1")
        e(f"s_mov_b32 s{S_CODE+2}, L_code_end-L_pc")
        e(f"s_mov_b32 s{S_CODE+3}, 0x20000")
        e(f"v_and_b32 v24, 7, v{vL}")
        e(f"v_lshl_add_u32 v24, v1, 3, v24")
        e(f"v_lshlrev_b32 v24, 7, v24")
        e(f"s_lshl_b32 s{sT1}, s{sT0}, 12")
        if OPT["cpf"]:
            e(f"buffer_load_dword v250, v24, {s(S_CODE,4)}, 0 offen")
        e(f"buffer_load_dword v251, v24, {s(S_CODE,4)}, s{sT1} offen")
        e(f"s_lshr_b32 s{sT1}, s{sLOC}, 3")
        e(f"s_bfe_u32 s{sRB}, s2, 0x20001")
        e(f"s_lshl_b32 s{sRB}, s{sRB}, 2")
        e(f"s_add_u32 s{sRB}, s{sRB}, s{sT1}")
        e(f"s_and_b32 s{sC}, s2, 1")
        e(f"s_lshl_b32 s{sC}, s{sC}, 3")
        e(f"s_add_u32 s{sC}, s{sC}, s{sT0}")
        e(f"s_lshl_b32 s{sT1}, s{sT1}, 1")
        e(f"s_add_u32 s{sT0}, s{sT0}, s{sT1}")
        e(f"s_sub_u32 s{sT1}, s{sT0}, 7")
        e(f"s_cmp_ge_u32 s{sT0}, 7")
        e(f"s_cselect_b32 s{sG}, s{sT1}, s{sT0}")
        if OPT["rot1"] == 3:
            e(f"s_bfe_u32 s{sT0}, s2, 0x20001")
            e(f"s_add_u32 s{sT0}, s{sT0}, s{sG}")
            e(f"s_sub_u32 s{sT1}, s{sT0}, 7")
            e(f"s_cmp_ge_u32 s{sT0}, 7")
            e(f"s_cselect_b32 s{sG}, s{sT1}, s{sT0}")
        if OPT["rot1"] == 0:
            e(f"s_mov_b32 s{sG}, 0")
        if OPT["rot1"] == 2:
            e(f"s_and_b32 s{sT0}, s2, 7")
            e(f"s_cmp_eq_u32 s{sT0}, 7")
            e(f"s_cselect_b32 s{sG}, 0, s{sT0}")
        e(f"s_lshl_b32 s{sRB}, s{sRB}, 2")
        e(f"s_add_u32 s{sRB}, s{sRB}, s{sW}")
        for srd, size in ((S_X, 2048 * 896), (S_WQ, 448 * 2688)):
            e(f"s_mov_b32 s{srd+2}, {size}")
            e(f"s_mov_b32 s{srd+3}, 0x20000")
        e(f"v_lshrrev_b32 v24, 3, v{vL}")
        e(f"s_lshl_b32 s{sT0}, s{sRB}, 5")
        e(f"v_add_u32 v24, s{sT0}, v24")
        e(f"v_mul_u32_u24 v24, 896, v24")
        e(f"v_lshrrev_b32 v26, 4, v{vL}")
        e(f"v_and_b32 v27, 7, v{vL}")
        e(f"v_xor_b32 v26, v26, v27")
        e(f"v_lshl_add_u32 v{vXD}, v26, 4, v24")
        e(f"v_xor_b32 v{vXD+1}, 64, v{vXD}")
        e(f"v_add_u32 v{vXD+2}, {2*(7168-1024)}, v{vXD}")
        e(f"v_add_u32 v{vXD+3}, {3*(7168-1024)}, v{vXD+1}")
        e(f"v_add_u32 v{vXD+1}, {7168-1024}, v{vXD+1}")
        e(f"s_mul_i32 s{sMX}, s{sW}, 12288")
        e(f"s_add_u32 s{sRING}, s{sMX}, {RED}")
        e(f"s_add_u32 s{sMX}, s{sMX}, {XST}")
        e(f"s_mul_i32 s{sT0}, s{sC}, 168")
        e(f"s_and_b32 s{sT0}, s{sT0}, 0xfffffff0")
        e(f"s_mul_i32 s{sT1}, s{sW}, {16*2688}")
        e(f"s_add_u32 s{sT0}, s{sT0}, s{sT1}")
        for i in range(3):
            e(f"v_add_u32 v24, {64*i}, v{vL}")
            e(f"v_mul_u32_u24 v26, 171, v24")
            e(f"v_lshrrev_b32 v26, 11, v26")
            e(f"v_mul_u32_u24 v27, 12, v26")
            e(f"v_sub_u32 v24, v24, v27")
            e(f"v_min_u32 v24, 10, v24")
            e(f"v_mul_u32_u24 v26, 2688, v26")
            e(f"v_lshl_add_u32 v24, v24, 4, v26")
            e(f"v_add_u32 v{vWQ+i}, s{sT0}, v24")
            if i < 2:
                e(f"s_sub_u32 s{sT0}, s{sT0}, 1024")
        e(f"s_mul_i32 s{sMQ}, s{sW}, {16*192}")
        e(f"s_add_u32 s{sMQ}, s{sMQ}, {R_Q}")
        for i in range(1, 7):
            e(f"s_add_u32 s{sT0}, s{sG+i-1}, 1")
            e(f"s_cmp_eq_u32 s{sT0}, 7")
            e(f"s_cselect_b32 s{sG+i}, 0, s{sT0}")
        for srd, size in ((S_WS, WS_SIZE), (S_GW, 896), (S_B1, 3584), (S_W1, 448 * 3584), (S_B2, 896), (S_OUT, 2048 * 896)):
            e(f"s_mov_b32 s{srd+2}, {size}")
            e(f"s_mov_b32 s{srd+3}, 0x20000")
        e(f"s_lshr_b32 s{sLIGHT}, 0x1248, s{sC}")
        e(f"s_and_b32 s{sLIGHT}, s{sLIGHT}, 1")
        e(f"s_bfm_b32 s{sT0}, s{sC}, 0")
        e(f"s_and_b32 s{sT0}, s{sT0}, 0x1248")
        e(f"s_bcnt1_i32_b32 s{sT0}, s{sT0}")
        e(f"s_lshl_b32 s{sUA}, s{sC}, 1")
        e(f"s_sub_u32 s{sUA}, s{sUA}, s{sT0}")
        e(f"s_add_u32 s{sUB}, s{sUA}, 1")
        e(f"s_sub_u32 s{sUB}, s{sUB}, s{sLIGHT}")
        e(f"s_lshl_b32 s{sT0}, s{sW}, 6")
        e(f"v_add_u32 v26, s{sT0}, v{vL}")
        e(f"s_lshl_b32 s{sT1}, s{sG}, 6")
        for h in range(2):
            e(f"v_add_u32 v27, s{sT1}, v26")
            if h:
                e(f"v_add_u32 v27, 256, v27")
            e(f"v_subrev_u32 v28, 448, v27")
            e(f"v_min_u32 v27, v27, v28")
            e(f"v_lshlrev_b32 v{42+h}, 1, v27")
        e(f"s_lshl_b32 s{sT0}, s{sUA}, 7")
        e(f"s_cmp_eq_u32 s{sLIGHT}, 1")
        e(f"s_cselect_b32 s{sT0}, {OOB}, s{sT0}")
        e(f"s_lshl_b32 s{sT1}, s{sUB}, 7")
        e(f"s_sub_u32 s{sT1}, s{sT1}, 128")
        e(f"s_mov_b32 s{sHI}, 0")
        e(f"s_mov_b32 s{sHI+1}, -1")
        e(f"v_mov_b32 v27, s{sT0}")
        e(f"v_mov_b32 v28, s{sT1}")
        e(f"v_cndmask_b32 v27, v27, v28, {s(sHI,2)}")
        e(f"v_lshl_add_u32 v44, v{vL}, 2, v27")
        e(f"v_mov_b32 v45, {E_OFF}")
        m(f"v_lshlrev_b32 v{vLIN}, 4, v{vL}")
        m(f"v_bfe_u32 v24, v{vL}, 2, 2")
        m(f"v_lshrrev_b32 v27, 5, v{vL}")
        m(f"v_bfe_u32 v28, v{vL}, 4, 1")
        m(f"v_and_b32 v29, 3, v{vL}")
        m(f"v_lshlrev_b32 v29, 3, v29")
        m(f"v_lshl_add_u32 v29, v28, 5, v29")
        m(f"v_lshl_add_u32 v40, v27, 3, v24")
        m(f"v_mul_u32_u24 v41, 192, v40")
        m(f"s_and_b32 s{sT0}, s{sC}, 1")
        m(f"s_lshl_b32 s{sT0}, s{sT0}, 3")
        m(f"s_add_u32 s{sT0}, s{sT0}, {R_Q}")
        m(f"v_add3_u32 v{vTRQ}, v41, v29, s{sT0}")
        m(f"v_lshrrev_b32 v41, 1, v24")
        m(f"v_lshl_add_u32 v29, v41, 6, v29")
        m(f"v_lshl_add_u32 v{vTRF0}, v40, 7, v29")
        m(f"v_xor_b32 v{vTRF1}, 64, v{vTRF0}")
        m(f"v_lshl_add_u32 v40, v27, 2, v24")
        m(f"v_lshl_add_u32 v40, v40, 7, v29")
        m(f"v_add_u32 v{vBT0}, s{sRING}, v40")
        m(f"v_xor_b32 v{vBT1}, 64, v{vBT0}")
        m(f"v_and_b32 v40, 31, v{vL}")
        m(f"v_bfe_u32 v41, v{vL}, 1, 3")
        m(f"v_xor_b32 v41, v41, v27")
        m(f"v_lshlrev_b32 v41, 4, v41")
        m(f"v_lshl_add_u32 v40, v40, 7, v41")
        m(f"v_add_u32 v{vXR}, s{sMX}, v40")
        for k in range(1, 4):
            m(f"v_xor_b32 v{vXR+k}, {32*k}, v{vXR}")
        m(f"v_lshlrev_b32 v{vTBL}, 3, v27")
        m(f"v_add_u32 v{vTBL}, {TB1 - TB1 % 2048}, v{vTBL}")
        m(f"v_and_b32 v40, 3, v{vL}")
        m(f"v_lshl_add_u32 v40, v27, 2, v40")
        m(f"v_bfe_u32 v41, v{vL}, 2, 3")
        m(f"v_lshl_add_u32 v40, v41, 3, v40")
        m(f"v_lshlrev_b32 v{vPV}, 4, v40")
        m(f"v_cmp_eq_u32 vcc, 0, v{vL}")
        m(f"v_mov_b32 v40, {OOB}")
        m(f"v_mov_b32 v{vK1}, {K1}")
        m(f"v_cndmask_b32 v{vL0}, v40, 0, vcc")
        e(f"s_lshl_b32 s{sT0}, s2, 2")
        e(f"s_add_u32 s{sT0}, s{sT0}, s{sW}")
        e(f"s_mul_i32 s{sT0}, s{sT0}, 49")
        e(f"s_lshr_b32 s{sT2}, s{sT0}, 2")
        e(f"s_lshl_b32 s{sT2}, s{sT2}, 7")
        e(f"s_lshr_b32 s{sT3}, s{sT0}, 4")
        e(f"s_lshl_b32 s{sT3}, s{sT3}, 7")
        e(f"v_min_u32 v47, 12, v{vL}")
        e(f"v_lshlrev_b32 v47, 7, v47")
        e(f"v_min_u32 v48, 3, v{vL}")
        e(f"v_lshlrev_b32 v48, 7, v48")
        for srd, size in ((S_W2, 1792 * 896), (S_WO, 448 * 896)):
            e(f"s_mov_b32 s{srd+2}, {size}")
            e(f"s_mov_b32 s{srd+3}, 0x20000")
        if not OPT["split"]:
            self.setup_later()
        if OPT["probe"] == 102:
            e("s_waitcnt lgkmcnt(0)")
            e(f"s_memtime {s(sM3,2)}")
            e("s_waitcnt lgkmcnt(0)")
            e(f"s_mov_b32 s{sP0+1}, s{sM3}")
            kargs("s[98:99]")
        e("s_waitcnt lgkmcnt(0)")
        if 103 <= OPT["probe"] <= 108:
            seq = {103: [(S_X, 0)], 104: [(S_X, 0), (S_X, 0x80000)], 105: [(S_X, 0), (S_W1, 0)], 106: [(S_X, 0), (S_WS, 0x300000)],
                   107: [(S_X, 0), (S_WS, 0x300000), (S_WS, 0x310000)], 108: [(S_X, 0), (S_WS, 0x300000), (S_WS, 0x900000)]}[OPT["probe"]]
            e(f"s_lshl_b32 s{sT0}, s2, 10")
            e(f"s_lshl_b32 s{sT1}, s{sW}, 8")
            e(f"s_add_u32 s{sT0}, s{sT0}, s{sT1}")
            e(f"v_mov_b32 v47, s{sT0}")
            for n, (srd, off) in enumerate(seq):
                if n == len(seq) - 1:
                    e(f"s_memtime {s(sP0,2)}")
                    e("s_waitcnt lgkmcnt(0)")
                e(f"s_mov_b32 s{sT0}, {off}")
                e(f"buffer_load_dword v48, v47, {s(srd,4)}, s{sT0} offen")
                e("s_waitcnt vmcnt(0)")
            e(f"s_memtime {s(sM3,2)}")
            e("s_waitcnt lgkmcnt(0)")
            e(f"s_mov_b32 s{sP0+1}, s{sM3}")
        self.a.clk = self.a.pipe_free = 0
        self.a.allv = []
        self.a.done = {k: 0 for k in self.a.done}
        self.stamp("kernarg")
        self.ctok, self.wtok, self.xrd, self.ftok = {}, {}, {}, {}
        self.add_chunk(0)
        self.force(self.C)
        if OPT["wpf"]:
            e(f"buffer_load_dword v252, v47, {s(S_W1,4)}, s{sT2} offen")
            e(f"buffer_load_dword v253, v47, {s(S_W2,4)}, s{sT2} offen")
            e(f"buffer_load_dword v254, v48, {s(S_WO,4)}, s{sT3} offen")
        self.a.next_lat = OPT["miss"]
        e(f"buffer_load_dword v{vT}, v45, {s(S_WS,4)}, 0 offen sc1")
        for h in range(2):
            e(f"buffer_load_ushort v{30+h}, v{42+h}, {s(S_GW,4)}, 0 offen")
        e(f"s_mov_b32 m0, {TB1}")
        self.m0 = None
        self.tB1 = e(f"buffer_load_dword v44, {s(S_B1,4)}, 0 offen lds")
        self.add_chunk(1)
        self.add_chunk(2)
        if OPT["split"]:
            self.setup_later()
        m(f"s_cmp_lt_u32 s{sLOC}, 28")
        m(f"s_cselect_b32 s{S_W2+2}, {1792*896}, 0")
        m(f"s_cselect_b32 s{S_WO+2}, {448*896}, 0")
        m(f"s_lshl_b32 s{sT1}, s{sQB}, 4")
        m(f"s_add_u32 s{sT1}, s{sT1}, s{sJ}")
        m(f"s_lshl_b32 s{sF3P}, s{sT1}, 7")
        m(f"s_add_u32 s{sF3P}, s{sF3P}, {F3}")
        m(f"s_lshl_b32 s{sOS}, s{sT1}, 11")
        m(f"s_add_u32 s{sOS}, s{sOS}, {O_BASE}")
        m(f"s_lshl_b32 s{sT0}, s{sJ}, 6")
        m(f"s_add_u32 s{sKOFF}, s{sT0}, s{sKV0}")
        m(f"s_lshl_b32 s{sKOFF}, s{sKOFF}, 11")
        m(f"s_add_u32 s{sQOFF}, s{sT0}, s{sQB}")
        m(f"s_lshl_b32 s{sQOFF}, s{sQOFF}, 11")
        m(f"s_mul_i32 s{sMKV}, s{sW}, 6144")
        m(f"s_lshl_b32 s{sT0}, s{sQB}, 7")
        m(f"s_add_u32 s{sF0R}, s{sT0}, {F0}")
        m(f"s_add_u32 s{sGQ}, s{sT0}, {G_BASE}")
        m(f"s_mov_b32 s{sK2}, {K2}")
        m(f"s_mov_b32 s{sK2+1}, {K2}")

    def setup_later(self):
        m = self.m
        m(f"s_and_b32 s{sT0}, s2, 7")
        m(f"s_and_b32 s{sT1}, s{sLOC}, 1")
        m(f"s_lshl_b32 s{sJ}, s{sT0}, 1")
        m(f"s_add_u32 s{sJ}, s{sJ}, s{sT1}")
        m(f"s_mul_i32 s{sT1}, s{sLOC}, 37")
        m(f"s_lshr_b32 s{sT1}, s{sT1}, 8")
        m(f"s_mul_i32 s{sCT}, s{sT1}, 7")
        m(f"s_sub_u32 s{sCT}, s{sLOC}, s{sCT}")
        m(f"s_lshl_b32 s{sRB0}, s{sT0}, 2")
        m(f"s_add_u32 s{sRB0}, s{sRB0}, s{sT1}")
        m(f"s_lshl_b32 s{sRB0}, s{sRB0}, 1")
        m(f"s_lshl_b32 s{sT1}, s{sT1}, 2")
        m(f"s_lshr_b32 s{sT1}, 0xa370, s{sT1}")
        m(f"s_and_b32 s{sT1}, s{sT1}, 15")
        m(f"s_lshl_b32 s{sT3}, s{sCT}, 1")
        m(f"s_add_u32 s{sT3}, s{sT3}, s{sT1}")
        m(f"s_sub_u32 s{sT1}, s{sT3}, 14")
        m(f"s_cmp_ge_u32 s{sT3}, 14")
        m(f"s_cselect_b32 s{sT3}, s{sT1}, s{sT3}")
        if OPT["rot2"] == 0:
            m(f"s_mov_b32 s{sT3}, 0")
        if OPT["rot2"] == 2:
            m(f"s_and_b32 s{sT3}, s2, 7")
            m(f"s_mul_i32 s{sT3}, s{sT3}, 7")
            m(f"s_lshr_b32 s{sT3}, s{sT3}, 2")
        if OPT["rot2"] == 3:
            m(f"s_lshl_b32 s{sT3}, s{sCT}, 1")
        m(f"s_mul_i32 s{sBEND}, s{sW}, {448*896}")
        m(f"s_mul_i32 s{sBOFF}, s{sT3}, {32*896}")
        m(f"s_add_u32 s{sBOFF}, s{sBOFF}, s{sBEND}")
        m(f"s_add_u32 s{sBEND}, s{sBEND}, {448*896}")
        m(f"s_mul_i32 s{sAEND}, s{sRB0}, 112")
        m(f"s_mul_i32 s{sT0}, s{sW}, 28")
        m(f"s_add_u32 s{sAEND}, s{sAEND}, s{sT0}")
        m(f"s_lshl_b32 s{sAEND}, s{sAEND}, 10")
        m(f"s_add_u32 s{sAEND}, s{sAEND}, {H_BASE}")
        m(f"s_lshl_b32 s{sAOFF}, s{sT3}, 11")
        m(f"s_add_u32 s{sAOFF}, s{sAOFF}, s{sAEND}")
        m(f"s_add_u32 s{sAEND}, s{sAEND}, {28*1024}")
        m(f"s_lshl_b32 s{sGD}, s{sRB0}, 7")
        m(f"s_add_u32 s{sGD}, s{sGD}, {G_BASE}")
        m(f"s_cmp_lt_u32 s{sLOC}, 28")
        m(f"s_cselect_b32 s{sAOFF}, s{sAOFF}, {OOB}")
        m(f"s_cselect_b32 s{sGD}, s{sGD}, {OOB}")
        m(f"s_lshl_b32 s{sF2O}, s{sRB0}, 11")
        m(f"s_add_u32 s{sF2O}, s{sF2O}, {F2}")
        m(f"v_lshrrev_b32 v24, 3, v{vL}")
        m(f"v_lshlrev_b32 v28, 2, v28")
        m(f"v_and_b32 v29, 7, v{vL}")
        m(f"v_xor_b32 v28, v28, v29")
        m(f"v_lshlrev_b32 v28, 4, v28")
        m(f"v_mul_u32_u24 v29, 3584, v24")
        m(f"s_mul_i32 s{sT0}, s{sW}, {16*3584}")
        m(f"v_add3_u32 v{vW1A0}, v29, v28, s{sT0}")
        m(f"v_add_u32 v{vW1A1}, {8*3584-1024}, v{vW1A0}")
        m(f"v_mul_u32_u24 v29, 896, v24")
        m(f"s_lshl_b32 s{sT0}, s{sCT}, 7")
        m(f"v_add3_u32 v{vBD}, v29, v28, s{sT0}")
        for k in range(1, 4):
            m(f"v_add_u32 v{vBD+k}, {k*(7168-1024)}, v{vBD}")
        m(f"s_lshl_b32 s{sMB}, s{sW}, 11")
        m(f"s_sub_u32 s{sMA}, s{sMB}, {64*128 - R_A}")
        m(f"s_add_u32 s{sMB}, s{sMB}, {R_B}")
        m(f"s_mul_i32 s{sT0}, s{sC}, 3")
        m(f"s_sub_u32 s{sNQ}, 16, s{sT0}")
        m(f"s_lshl_b32 s{sT0}, s{sT0}, 6")
        m(f"s_add_u32 s{sT0}, s{sT0}, s{sRB}")
        m(f"s_lshl_b32 s{sQS}, s{sT0}, 11")
        m(f"s_mul_i32 s{sT1}, s{sRB}, 28")
        m(f"s_add_u32 s{sT0}, s{sT1}, s{sUB}")
        m(f"s_lshl_b32 s{sT0}, s{sT0}, 12")
        m(f"s_add_u32 s{sHB}, s{sT0}, {H_BASE}")
        m(f"s_sub_u32 s{sHA}, s{sHB}, 4096")
        m(f"s_lshl_b32 s{sUA}, s{sUA}, 7")
        m(f"s_lshl_b32 s{sUB}, s{sUB}, 7")
        m(f"s_cmp_eq_u32 s{sLIGHT}, 1")
        m(f"s_cselect_b32 s{sHA}, {OOB}, s{sHA}")
        m(f"s_cselect_b32 s{sUA}, {OOB}, s{sUA}")
        m(f"s_cselect_b32 s{sMA}, {DUMMY}, s{sMA}")
        m(f"s_cselect_b32 s{sMAS}, 0, {64*128}")
        m(f"s_lshl_b32 s{sT0}, s{sRB}, 4")
        m(f"s_add_u32 s{sT0}, s{sT0}, s{sC}")
        m(f"s_lshl_b32 s{sT0}, s{sT0}, 7")
        m(f"s_add_u32 s{sF1}, s{sT0}, {F1}")
        m(f"s_lshl_b32 s{sT0}, s{sRB}, 7")
        m(f"s_add_u32 s{sGS}, s{sT0}, {G_BASE}")
        m(f"s_add_u32 s{sF0P}, s{sT0}, {F0}")
        m(f"s_cmp_eq_u32 s{sC}, 3")
        m(f"s_cselect_b32 s{sGS}, s{sGS}, {OOB}")
        m(f"s_cselect_b32 s{sF0P}, s{sF0P}, {OOB}")
        m(f"s_lshr_b32 s{sT0}, s{sLOC}, 1")
        m(f"s_lshl_b32 s{sT0}, s{sT0}, 2")
        m(f"s_add_u32 s{sQB}, s{sT0}, s{sW}")
        m(f"s_sub_u32 s{sFIRST}, 8, s{sQB}")
        m(f"s_max_i32 s{sFIRST}, s{sFIRST}, 0")
        m(f"s_mul_i32 s{sT1}, s{sW}, 3")
        m(f"s_add_u32 s{sT0}, s{sT0}, s{sT1}")
        m(f"s_sub_u32 s{sKV0}, s{sT0}, 8")
        m(f"s_mul_i32 s{sT2}, s{sJ}, 43")
        m(f"s_lshr_b32 s{sT2}, s{sT2}, 7")
        m(f"s_lshl_b32 s{sT1}, s{sQB}, 4")
        m(f"s_add_u32 s{sT2}, s{sT1}, s{sT2}")
        m(f"v_mov_b32 v{vF1A}, s{sT2}")
        for part, add in ((0, 16), (1, 32)):
            m(f"s_add_u32 s{sT2}, s{sJ}, {add}")
            m(f"s_mul_i32 s{sT2}, s{sT2}, 43")
            m(f"s_lshr_b32 s{sT2}, s{sT2}, 7")
            m(f"v_subrev_u32 v40, {3*part}, v{vL}")
            m(f"v_add_u32 v41, s{sKV0}, v40")
            m(f"v_cmp_gt_u32 {s(sM,2)}, 3, v40")
            m(f"v_cmp_le_i32 vcc, 0, v41")
            m(f"v_lshl_add_u32 v41, v41, 4, s{sT2}")
            m(f"s_and_b64 {s(sM,2)}, {s(sM,2)}, vcc")
            m(f"v_cndmask_b32 v{vF1A}, v{vF1A}, v41, {s(sM,2)}")
        m(f"v_lshlrev_b32 v{vF1A}, 7, v{vF1A}")
        m(f"v_add_u32 v{vF1A}, {F1}, v{vF1A}")
        m(f"v_bfe_u32 v40, v{vL}, 2, 1")
        m(f"v_and_b32 v41, 3, v{vL}")
        m(f"s_lshl_b32 s{sT0}, s{sW}, 2")
        m(f"v_add_u32 v41, s{sT0}, v41")
        m(f"v_cmp_gt_u32 vcc, 8, v{vL}")
        m(f"v_lshl_add_u32 v41, v40, 4, v41")
        m(f"v_and_b32 v40, 1, v{vL}")
        m(f"v_lshl_add_u32 v40, v40, 4, 3")
        m(f"v_cndmask_b32 v{vF23A}, v40, v41, vcc")
        m(f"v_lshlrev_b32 v{vF23A}, 7, v{vF23A}")
        m(f"s_lshr_b32 s{sT0}, s{sW}, 1")
        m(f"s_add_u32 s{sT0}, s{sT0}, s{sRB0}")
        m(f"s_mul_i32 s{sT0}, s{sT0}, {32*896}")
        m(f"s_lshl_b32 s{sT1}, s{sCT}, 1")
        m(f"s_and_b32 s{sT2}, s{sW}, 1")
        m(f"s_add_u32 s{sT1}, s{sT1}, s{sT2}")
        m(f"s_lshl_b32 s{sT1}, s{sT1}, 6")
        m(f"s_add_u32 s{sOUT}, s{sT0}, s{sT1}")

    def add_chunk(self, i):
        toks = self.ctok[i] = []
        lx = OPT["miss"] + 300 if i < 1 else None
        lw = OPT["miss"] + 300 if i < 2 else None
        xs, ws = [], []
        for k in range(4):
            xs.append(Item(f"buffer_load_dwordx4 v{vXD+k}, {s(S_X,4)}, s{sCA} offen" + (f" offset:{1024*k}" if k else "") + NT(1) + " lds", toks,
                           pre=[f"s_lshl_b32 s{sCA}, s{sG+i}, 7"] if k == 0 else (), m0=(sMX, (i % 3) * 4096), lat=lx,
                           after=(lambda: self.xrd[i - 3] if len(self.xrd.get(i - 3, ())) == 4 else None) if i >= 3 and k == 0 else None))
        for k in range(3):
            ws.append(Item(f"buffer_load_dwordx4 v{vWQ+k}, {s(S_WQ,4)}, s{sCB} offen" + (f" offset:{1024*k}" if k else "") + NT(2) + " lds", toks,
                           pre=[f"s_mul_i32 s{sCB}, s{sG+i}, {64*2688}"] if k == 0 else (), m0=(sMQ, (i % 4) * 64 * 192), lat=lw))
        self.C.extend(xs + ws if i == 0 else ws + xs)
        self.clast = getattr(self, "clast", {})
        self.clast[i] = self.C[-1]

    def add_w1(self, unit, i):
        toks = self.wtok[(unit, i)] = []
        pre = [f"s_mul_i32 s{sCB}, s{sG+i}, {64*3584}", f"s_add_u32 s{sCB}, s{sCB}, s{sUA+unit}"]
        if unit == 0:
            pre.append(f"s_add_u32 s{sMA}, s{sMA}, s{sMAS}")
        for k in range(2):
            self.C.append(Item(f"buffer_load_dwordx4 v{vW1A0+k}, {s(S_W1,4)}, s{sCB} offen" + (" offset:1024" if k else "") + NT(4) + " lds", toks,
                               pre=pre if k == 0 else (), m0=(sMB, i * 8192) if unit else (sMA, 0, i),
                               lat=OPT["miss"] if i < 4 else None))
        self.wlast = getattr(self, "wlast", {})
        self.wlast[(unit, i)] = self.C[-1]

    def gate_write(self):
        pe = self.pe
        pe(f"s_cmp_eq_u32 s{sLIGHT}, 1")
        pe(f"s_cselect_b64 {s(sM,2)}, -1, 0")
        pe(f"v_bfe_u32 v27, v26, 1, 1")
        pe(f"v_lshlrev_b32 v28, 7, v26")
        pe(f"v_lshl_add_u32 v28, v27, 6, v28")
        pe(f"v_mov_b32 v29, {DUMMY+2048}")
        pe(f"v_cndmask_b32 v27, v29, v28, {s(sM,2)}")
        pe(f"v_cmp_gt_u32 vcc, 192, v26")
        pe(f"v_add_u32 v28, {256*128}, v28")
        pe(f"s_and_b64 {s(sM,2)}, {s(sM,2)}, vcc")
        pe(f"ds_write_b16 v27, v30")
        pe(f"v_cndmask_b32 v28, v29, v28, {s(sM,2)}")
        pe(f"ds_write_b16 v28, v31")

    def store_addr(self):
        pe = self.pe
        for n, lim in ((0, 11), (1, 10)):
            pe(f"s_cmp_ge_u32 s{sC}, {lim}")
            pe(f"s_cselect_b64 {s(sM,2)}, -1, 0")
            pe(f"s_cselect_b32 s{sT0}, 128, 0")
            pe(f"s_cselect_b32 s{sT1}, 0x3f80, 0")
            pe(f"v_cndmask_b32 v{24+2*n}, v{vLIN}, v{vPV}, {s(sM,2)}")
            pe(f"v_mov_b32 v{28+n}, s{sT1}")
            pe(f"v_xor_b32 v{25+2*n}, s{sT0}, v{24+2*n}")

    def bias_init(self, acc, tbl, factor=None):
        for t in range(2):
            for mm in range(2):
                o = (tbl % 2048) // 8 + 8 * t + 4 * mm
                self.pe(f"ds_read2_b64 {v(acc+16*t+8+4*mm,4)}, v{vTBL} offset0:{o} offset1:{o+2}")
        for t in range(2):
            for k in range(8):
                src, dst = acc + 16 * t + 8 + k, acc + 16 * t + 2 * k
                self.pe(f"v_lshlrev_b32 v{dst}, 16, v{src}")
                self.pe(f"v_and_b32 v{dst+1}, 0xffff0000, v{src}")
        if factor:
            for k in range(16):
                self.pe(f"v_pk_mul_f32 {v(acc+2*k,2)}, {v(acc+2*k,2)}, {factor}")

    def rd_q(self, sidx, t):
        base = vWR + 12 * (sidx & 1) + 4 * t
        o = 56 * t + (sidx % 16) * 3072
        return [self.e(f"ds_read_b64_tr_b16 {v(base+2*h,2)}, v{vTRQ} offset:{o+768*h}") for h in range(2)]

    def rd_f(self, g, t):
        base = vWR + 8 * (g % 3) + 4 * t
        toks = self.ftok.setdefault(g, [])
        for h in range(2):
            toks.append(self.e(f"ds_read_b64_tr_b16 {v(base+2*h,2)}, v{vTRF0+t} offset:{(g%28)*2048+512*h}"))

    def rd_x(self, sidx):
        self.xrd.setdefault(sidx // 4, []).append(self.e(f"ds_read_b128 {v(vX+4*sidx,4)}, v{vXR+sidx%4} offset:{(sidx//4%3)*4096}"))

    def sync(self, st, last, toks, drain_lds=True):
        self.force(st, last)
        while self.a.est(toks) > self.a.clk + 8 and self.side_wait(self.a.est(toks)):
            pass
        self.a.need(*toks)
        if drain_lds and self.a.lg:
            self.e("s_waitcnt lgkmcnt(0)")
        self.e("s_barrier")

    def side_wait(self, until):
        a = self.a
        for st in (self.P, self.C, self.B):
            if not st:
                continue
            it = st[0]
            t = a.allv[-1][0] if it.vm else a.clk
            if it.after:
                toks = it.after()
                if toks is None:
                    continue
                t = max(t, a.est(toks))
            if t + 8 <= until:
                self.emit_item(st)
                return True
        return False

    def qkv(self):
        e = self.e
        qtok = {}
        self.sync(self.C, self.clast[0], self.ctok[0])
        self.stamp("chunk 0")
        self.add_chunk(3)
        self.rd_x(0)
        self.rd_x(1)
        for t in range(3):
            qtok[(0, t)] = self.rd_q(0, t)
        for sidx in range(28):
            i = sidx // 4
            if sidx % 2 == 0:
                self.stamp(group=3)
            if sidx == 0:
                self.gate_write()
            if sidx == 4:
                self.push(lambda: self.a.need(self.tB1), 0)
                self.bias_init(vACC + 48, TB1)
            if sidx == 8:
                self.store_addr()
            for t in range(3):
                if t == 0:
                    self.a.need(*qtok[(sidx, 0)], *qtok[(sidx, 1)])
                acc = v(vACC + 16 * t, 16)
                e(f"{MFMA} {acc}, {v(vWR+12*(sidx&1)+4*t,4)}, {v(vX+4*sidx,4)}, {acc if sidx else 0}")
                if t == 0 and sidx % 4 == 3:
                    self.drain()
                    if sidx < 27:
                        self.sync(self.C, self.clast[i + 1], self.ctok[i + 1])
                        if i + 4 < 7:
                            self.add_chunk(i + 4)
                        if i + 4 == 6:
                            for k in range(7):
                                self.add_w1(0, k)
                    else:
                        self.sync(self.C, self.wlast[(0, 0)], self.wtok[(0, 0)])
                if sidx % 4 == 3 and sidx < 27 and t < 2:
                    self.rd_x(sidx + 1 + t)
                if sidx % 4 == 0 and t < 2:
                    self.rd_x(sidx + 2 + t)
                if sidx < 27:
                    qtok[(sidx + 1, t)] = self.rd_q(sidx + 1, t)
                elif t < 2:
                    self.rd_f(0, t)
                self.gap((12, 16, 12)[t] if sidx % 4 in (1, 2) else (4, 8, 12)[t])
        self.rd_f(1, 0)
        self.rd_f(1, 1)

    QPK = (vTMP + 8, vACC + 40, vACC + 32)

    def qkv_pack(self, t):
        pe = self.pe
        acc, dst = vACC + 16 * t, self.QPK[t]
        pe(f"s_cmp_gt_i32 s{sNQ}, {t}")
        pe(f"s_cselect_b32 s{sT1}, {QSCALE}, 1.0")
        for k in range(16):
            pe(f"v_mul_f32 v{acc+k}, s{sT1}, v{acc+k}")
        def store(half):
            pre = [f"s_add_u32 s{sCA}, s{sQS}, {t*64*2048}"] if half == 0 else ()
            self.C.append(Item(f"buffer_store_dwordx4 {v(dst+4*half,4)}, v{24+2*(t>>1)+half}, {s(S_WS,4)}, s{sCA} offen offset:{1024*half} sc1",
                               self.tQKV, pre=pre))
            self.lastS = self.C[-1]
        for k in range(8):
            pe(f"v_cvt_pk_bf16_f32 v{dst+k}, v{acc+2*k}, v{acc+2*k+1}")
            if k == 3:
                self.push(lambda: store(0), 0)
        pe(f"v_cndmask_b32 v{dst+6}, v{dst+6}, v{28+(t>>1)}, {s(sHI,2)}")
        pe(f"v_cndmask_b32 v{dst+7}, v{dst+7}, 0, {s(sHI,2)}")
        self.push(lambda: store(1), 0)

    def b_slot(self, p):
        return (RING - RED) + (p % 6) * 4096 if p % 6 < 3 else (p % 6 - 3) * 4096

    def b_dma(self, p):
        toks = self.btok[p] = []
        out = []
        pre, post, off = [], [], sBOFF
        if p >= 14:
            off = sBT
            pre = [f"s_mul_i32 s{sBT}, s{sW}, {112*896}"] + ([f"s_add_u32 s{sBT}, s{sBT}, {(p-14)*28*896}"] if p > 14 else [])
        elif p < 13:
            post = [f"s_add_u32 s{sBOFF}, s{sBOFF}, {32*896}", f"s_cmp_eq_u32 s{sBOFF}, s{sBEND}",
                    f"s_cselect_b32 s{sBT}, {448*896}, 0", f"s_sub_u32 s{sBOFF}, s{sBOFF}, s{sBT}"]
        for k in range(4):
            out.append(Item(f"buffer_load_dwordx4 v{vBD+k}, {s(S_W2 if p < 14 else S_WO,4)}, s{off} offen" + (f" offset:{1024*k}" if k else "") + NT(8) + " lds",
                            toks, pre=pre if k == 0 else (), post=post if k == 3 else (), m0=(sRING, self.b_slot(p)),
                            lat=OPT["miss"] if p < 4 or p >= 14 else None,
                            after=(lambda: self.btr[p - 6] if len(self.btr.get(p - 6, ())) == 8 else None) if k == 0 and p >= 6 else None))
        return out

    def b_read(self, p):
        toks = self.btr[p] = []
        out = []
        for ks in range(2):
            for t in range(2):
                out.append(Item([f"ds_read_b64_tr_b16 {a_(16*(p%16)+8*ks+4*t+2*h,2)}, v{vBT0+t} offset:{self.b_slot(p)+ks*2048+h*1024}" for h in range(2)],
                                toks, after=(lambda: self.btok[p] if len(self.btok[p]) == 4 else None) if ks + t == 0 else None))
        self.blast[p] = out[-1]
        return out

    def gelu_two(self, acc, soff, n, packed):
        pe = self.pe
        T = vTMP + 12
        U = [acc + 2 * n, acc + 2 * n + 2]
        R = [T, T + 2]
        if packed:
            for u, r in zip(U, R):
                pe(f"v_pk_mul_f32 {v(r,2)}, {v(u,2)}, {v(u,2)}")
                pe(f"v_pk_fma_f32 {v(r,2)}, {v(r,2)}, {s(sK2,2)}, {v(vK1,2)} op_sel_hi:[1,1,0]")
                pe(f"v_pk_mul_f32 {v(r,2)}, {v(r,2)}, {v(u,2)}")
            for k in range(4):
                pe(f"v_exp_f32 v{T+k}, v{T+k}")
            for r in R:
                pe(f"v_pk_add_f32 {v(r,2)}, {v(r,2)}, 1.0 op_sel_hi:[1,0]")
            for k in range(4):
                pe(f"v_rcp_f32 v{T+k}, v{T+k}")
            for u, r in zip(U, R):
                pe(f"v_pk_mul_f32 {v(r,2)}, {v(r,2)}, {v(u,2)}")
        else:
            u = U[0]
            for k in range(4):
                pe(f"v_mul_f32 v{T+k}, v{u+k}, v{u+k}")
                pe(f"v_fma_f32 v{T+k}, v{T+k}, s{sK2}, v{vK1}")
                pe(f"v_mul_f32 v{T+k}, v{T+k}, v{u+k}")
            for k in range(4):
                pe(f"v_exp_f32 v{T+k}, v{T+k}")
            for k in range(4):
                pe(f"v_add_f32 v{T+k}, 1.0, v{T+k}")
            for k in range(4):
                pe(f"v_rcp_f32 v{T+k}, v{T+k}")
            for k in range(4):
                pe(f"v_mul_f32 v{T+k}, v{T+k}, v{u+k}")
        for d in range(2):
            pe(f"v_cvt_pk_bf16_f32 v{acc+n+d}, v{T+2*d}, v{T+2*d+1}")
        if n % 4 == 2:
            fr = n // 4
            self.push(lambda: self.C.append(Item(
                f"buffer_store_dwordx4 {v(acc+4*fr,4)}, v{vLIN}, {s(S_WS,4)}, s{soff} offen offset:{fr*1024} sc1", self.tH)), 0)

    def ffn(self, unit):
        e = self.e
        acc0 = vACC + 48 if unit == 0 else vACC
        for sidx in range(28):
            g = 28 * unit + sidx
            if sidx % 4 == 0:
                self.stamp(group=2)
            self.hook(f"ffn{unit}_{sidx}")
            self.a.need(*self.ftok[g])
            for t in range(2):
                acc = v(acc0 + 16 * t, 16)
                e(f"{MFMA} {acc}, {v(vWR+8*(g%3)+4*t,4)}, {v(vX+4*sidx,4)}, {acc}")
                if t == 0 and sidx % 4 == 2:
                    if sidx < 26:
                        k = (unit, sidx // 4 + 1)
                        self.sync(self.C, self.wlast[k], self.wtok[k], drain_lds=False)
                    elif unit == 0:
                        self.drain("biasb")
                        self.sync(self.C, self.wlast[(1, 0)], self.wtok[(1, 0)])
                        e(f"v_add_u32 v{vTRF0}, {R_B-R_A}, v{vTRF0}")
                        e(f"v_add_u32 v{vTRF1}, {R_B-R_A}, v{vTRF1}")
                        self.add_w1(1, 6)
                        self.B.extend(self.b_dma(3) + self.b_dma(4) + self.b_dma(5))
                        for p in range(12):
                            self.B.extend(self.b_read(p) + self.b_dma(p + 6))
                        for p in range(12, 16):
                            self.B.extend(self.b_read(p))
                if g + 2 < 56:
                    self.rd_f(g + 2, t)
                self.gap((16, 12)[t])

    def phase1(self):
        e, pe, m = self.e, self.pe, self.m
        self.btok, self.btr, self.blast = {}, {}, {}
        self.tQKV, self.tH, tG = [], [], []
        self.qkv()
        self.stamp("qkv done")
        self.add_w1(1, 0)
        self.qkv_pack(2)
        self.push(lambda: self.add_w1(1, 1), 0)
        self.qkv_pack(1)
        self.qkv_pack(0)
        self.push(lambda: [self.add_w1(1, k) for k in range(2, 6)], 0)
        self.bias_init(vACC, TB1 + 128)
        pe(f"v_add_u32 v{vT}, {TAG_STEP}, v{vT}")
        self.mark("biasb")
        self.B.extend(self.b_dma(0) + self.b_dma(1) + self.b_dma(2))
        self.ffn(0)
        self.force(self.C, self.lastS)
        self.stamp("ffn a done")
        accA = vACC + 48
        pub1 = self.publish(sF1, self.tQKV, 6)
        pe(f"v_mul_f32 v{vGATE}, {fbits(-math.log2(math.e))}, v{accA}")
        pe(f"v_exp_f32 v{vGATE}, v{vGATE}")
        pe(f"v_and_b32 v{vGA}, 31, v{vL}")
        pe(f"v_add_f32 v{vGATE}, 1.0, v{vGATE}")
        pe(f"v_lshlrev_b32 v{vGA}, 2, v{vGA}")
        pe(f"v_rcp_f32 v{vGATE}, v{vGATE}")
        pe(f"v_mov_b32 v{vTMP}, {OOB}")
        pe(f"v_cndmask_b32 v{vTMP}, v{vGA}, v{vTMP}, {s(sHI,2)}")
        self.push(lambda: self.C.appendleft(Item(f"buffer_store_dword v{vGATE}, v{vTMP}, {s(S_WS,4)}, s{sGS} offen sc1", tG)), 0)
        self.push(lambda: self.publish(sF0P, tG, 1), 0)
        ga = deque(range(0, 16, 2))
        while ga and ga[0] < OPT["npairs"]:
            self.gelu_two(accA, sHA, ga.popleft(), False)
        self.hooks[f"ffn1_{OPT['pub1']}"] = lambda: self.force(self.P, pub1)
        self.hooks[f"ffn1_{OPT['poll1']}"] = lambda: self.poll_item(vF1A, 0)
        self.ffn(1)
        self.poll_check(vF1A, 0)
        e("s_barrier")
        self.att_loads()
        self.stamp("ffn b done")
        m(f"v_lshlrev_b32 v{vTMP+1}, 2, v{vL}")
        self.tB2 = []
        self.C.append(Item(f"buffer_load_dword v{vTMP+1}, {s(S_B2,4)}, s{sCB} offen lds", self.tB2,
                           pre=[f"s_lshl_b32 s{sCB}, s{sCT}, 7"], m0=(None, TB2), lat=OPT["miss"]))
        self.drain()
        for acc, soff, todo in ((accA, sHA, ga), (vACC, sHB, range(0, 16, 2))):
            for n in todo:
                self.gelu_two(acc, soff, n, True)
        self.drain()
        self.stamp("gelu done")

    def att_loads(self):
        self.tKV = []
        items = []
        for bb in range(3):
            for part in range(2):
                pre = ([f"s_add_u32 s{sCA}, s{sKOFF}, {16*64*2048+2048*bb}", f"s_cmp_lt_i32 s{sKV0}, {-bb}", f"s_cselect_b32 s{sCA}, {OOB}, s{sCA}"]
                       if part == 0 else [f"s_add_u32 s{sCA}, s{sCA}, {16*64*2048}"])
                for k in range(2):
                    items.append(Item(f"buffer_load_dwordx4 v{vLIN}, {s(S_WS,4)}, s{sCA} offen" + (" offset:1024" if k else "") + " sc1 lds",
                                      self.tKV, pre=pre if k == 0 else (), m0=(sMKV, KV + 24576 * part + 2048 * bb), lat=OPT["miss"]))
        for k in range(2):
            items.append(Item(f"buffer_load_dwordx4 {v(vQ+4*k,4)}, v{vLIN}, {s(S_WS,4)}, s{sQOFF} offen offset:{1024*k} sc1", self.tKV, lat=OPT["miss"]))
        self.C.extendleft(reversed(items))
        self.kvlast = items[-1]

    def rd_k(self, n):
        for k in range(2):
            self.m(f"ds_read_b128 {v(vKR+8*(n%3)+4*k,4)}, v{vKA} offset:{(n%9)*2048+k*1024}")

    def rd_v(self, i, st):
        for h in range(2):
            self.e(f"ds_read_b64_tr_b16 {v(vVR+4*st+2*h,2)}, v{vVA} offset:{i*2048+256*(2*st+h)}")

    def qk(self, i, k):
        S = v(vS + 16 * (i & 1), 16)
        C = S if k else v(vM0 if i == 0 else vM8 if i == 8 else vCD, 16)
        self.e(f"{MFMA} {S}, {v(vKR+8*(i%3)+4*k,4)}, {v(vQ+4*k,4)}, {C}")

    def patch(self, i, src):
        if not 2 <= i <= 7:
            return
        self.nlab += 1
        n = self.nlab
        self.e(f"s_cmp_eq_u32 s{sFIRST}, {i}")
        self.e(f"s_cbranch_scc1 L_pat{n}")
        self.a.label(f"L_patb{n}")
        self.tail += [f"L_pat{n}:", "s_nop 7"] + [f"v_mov_b32 v{vCD+k}, {src}" for k in range(16)] + ["s_nop 1", f"s_branch L_patb{n}"]

    def attention(self):
        e, pe, m = self.e, self.pe, self.m
        m(f"v_and_b32 v26, 31, v{vL}")
        m(f"v_lshrrev_b32 v27, 5, v{vL}")
        m(f"v_lshlrev_b32 v28, 2, v27")
        m(f"v_sub_u32 v26, v26, v28")
        m(f"s_cmp_gt_u32 s{sFIRST}, 0")
        m(f"s_cselect_b32 s{sT0}, {NINF}, 0")
        m(f"v_mov_b32 v28, s{sT0}")
        m(f"v_mov_b32 v29, {NINF}")
        m(f"s_cmp_gt_u32 s{sFIRST}, 1")
        m(f"s_cselect_b32 s{sT0}, {NINF}, 0")
        prs = (sM, sM3)
        for j0 in range(0, 16, 2):
            for d in range(2):
                jj = j0 + d
                m(f"v_cmp_le_i32 {s(prs[d],2)}, {(jj&3)+8*(jj>>2)}, v26")
            for d in range(2):
                m(f"v_mov_b32 v{vCD+j0+d}, s{sT0}")
            for d in range(2):
                jj = j0 + d
                m(f"v_cndmask_b32 v{vM8+jj}, v29, 0, {s(prs[d],2)}")
                m(f"v_cndmask_b32 v{vM0+jj}, v28, v29, {s(prs[d],2)}")
        m(f"s_lshl_b32 s{sT1}, s{sW}, 11")
        m(f"s_add_u32 s{sT1}, s{sT1}, {KV}")
        m(f"v_add_u32 v{vKA}, s{sT1}, v{vLIN}")
        m(f"v_bfe_u32 v28, v{vL}, 4, 1")
        m(f"v_xor_b32 v27, v27, v28")
        m(f"v_bfe_u32 v29, v{vL}, 2, 2")
        m(f"v_lshl_add_u32 v29, v27, 3, v29")
        m(f"v_and_b32 v27, 1, v{vL}")
        m(f"v_lshl_add_u32 v29, v27, 2, v29")
        m(f"v_lshlrev_b32 v29, 4, v29")
        m(f"v_lshl_add_u32 v29, v28, 10, v29")
        m(f"v_bfe_u32 v27, v{vL}, 1, 1")
        m(f"v_lshl_add_u32 v29, v27, 3, v29")
        m(f"s_add_u32 s{sT1}, s{sT1}, 24576")
        m(f"v_add_u32 v{vVA}, s{sT1}, v29")
        m(f"v_mov_b32 v{vMX}, {NINF}")
        m(f"v_mov_b32 v{vMX+1}, {NINF}")
        m(f"v_mov_b32 v{vF1A}, 0")
        m(f"v_add_u32 v{vA1H}, {112*1024}, v{vLIN}")
        m(f"v_add_u32 v{vA1O}, {32*1024}, v{vLIN}")
        self.sync(self.C, self.kvlast, self.tKV, drain_lds=False)
        self.stamp("kv in")
        self.poll_item(vF1A, f"s{sF0R}")
        pub2 = self.publish(sT3, self.tH, 8, pre=[f"s_add_u32 s{sT3}, s{sF1}, {F2-F1}"])
        self.rd_k(0)
        self.rd_k(1)
        for i in range(10):
            if i % 2 == 0:
                self.stamp(group=4)
            if i < 9:
                self.patch(i, "0")
                self.qk(i, 0)
                self.rd_k(i + 2)
                self.qk(i, 1)
            if i > 0:
                S = vS + 16 * ((i - 1) & 1)
                for k in range(8):
                    (m if k % 4 == 3 else e)(f"v_max3_f32 v{vMX+(k&1)}, v{S+2*k}, v{S+2*k+1}, v{vMX+(k&1)}")
        m(f"v_max_f32 v{vMX}, v{vMX}, v{vMX+1}")
        m(f"v_mov_b32 v{vMX+1}, v{vMX}")
        self.force(self.C)
        self.poll_check(vF1A, f"s{sF0R}")
        self.C.append(Item(f"buffer_load_dword v{vGATE}, v{vGA}, {s(S_WS,4)}, s{sGQ} offen sc1", lat=OPT["miss"]))
        m(f"v_permlane32_swap_b32 v{vMX}, v{vMX+1}")
        m(f"v_max_f32 v{vMX}, v{vMX}, v{vMX+1}")
        m(f"v_sub_f32 v{vMX}, 0, v{vMX}")
        for k in range(16):
            m(f"v_add_f32 v{vM0+k}, v{vM0+k}, v{vMX}")
        self.qk(0, 0)
        self.rd_k(2)
        self.qk(0, 1)
        m(f"v_add_f32 v{vMX+1}, s{sT0}, v{vMX}")
        for k in range(16):
            m(f"v_mov_b32 v{vCD+k}, v{vMX+1}")
        for k in range(16):
            m(f"v_add_f32 v{vM8+k}, v{vM8+k}, v{vMX}")
        self.stamp("pass 1 done")
        O = v(vO, 16)
        for i in range(9):
            S = vS + 16 * (i & 1)
            ex = lambda k: m(f"v_exp_f32 v{S+k}, v{S+k}")
            cv = lambda k: e(f"v_cvt_pk_bf16_f32 v{vP+k}, v{S+2*k}, v{S+2*k+1}")
            self.stamp(group=4)
            if i == OPT["poll2"]:
                self.poll_item(vF23A, f"s{sF2O}")
            if i == OPT["chk2"]:
                self.de_start()
            if i < 8:
                self.patch(i + 1, f"v{vMX}")
                self.qk(i + 1, 0)
            self.rd_v(i, 0)
            for k in range(3):
                ex(k)
            if i < 8:
                self.qk(i + 1, 1)
            self.rd_v(i, 1)
            for k in range(3, 9):
                ex(k)
            for k in range(4):
                cv(k)
            ex(9)
            ex(10)
            e(f"{MFMA} {O}, {v(vVR,4)}, {v(vP,4)}, {O if i else 0}")
            if i < 6:
                self.rd_k(i + 3)
            for k in range(11, 16):
                ex(k)
            for k in range(4, 8):
                cv(k)
            self.side()
            e(f"{MFMA} {O}, {v(vVR+4,4)}, {v(vP+4,4)}, {O}")
        self.a.need(*self.tB2)
        m(f"v_subrev_u32 v{vTBL}, {(TB1 - TB1 % 2048) - (TB2 - TB2 % 2048)}, v{vTBL}")
        m(f"s_cmp_eq_u32 s{sW}, 0")
        m(f"s_cselect_b32 s{sM}, 1.0, 0")
        m(f"s_mov_b32 s{sM+1}, s{sM}")
        self.bias_init(vCD, TB2, factor=s(sM, 2))
        for _ in range(12):
            self.q.popleft()[0]()
        m(f"v_mov_b32 v{vMX}, v{vO+12}")
        m(f"v_mov_b32 v{vMX+1}, v{vO+12}")
        m(f"v_permlane32_swap_b32 v{vMX}, v{vMX+1}")
        m(f"v_rcp_f32 v{vMX}, v{vMX+1}")
        m(f"v_mul_f32 v{vMX}, v{vMX}, v{vGATE}")
        for k in range(8):
            m(f"v_pk_mul_f32 {v(vO+2*k,2)}, {v(vO+2*k,2)}, {v(vMX,2)} op_sel_hi:[1,0]")
        self.tO = []
        for k in range(8):
            m(f"v_cvt_pk_bf16_f32 v{vP+k}, v{vO+2*k}, v{vO+2*k+1}")
            if k == 3:
                self.P.append(Item(f"buffer_store_dwordx4 {v(vP,4)}, v{vLIN}, {s(S_WS,4)}, s{sOS} offen sc1", self.tO))
        m(f"v_cndmask_b32 v{vP+6}, v{vP+6}, 0, {s(sHI,2)}")
        self.P.append(Item(f"buffer_store_dwordx4 {v(vP+4,4)}, v{vLIN}, {s(S_WS,4)}, s{sOS} offen offset:1024 sc1", self.tO))
        self.drain()
        self.force(self.P)
        self.stamp("attention done")

    def ar(self, p, k):
        return (64, 80, 104, 120)[p % 4] + 4 * k

    def a_load(self, p):
        pre = []
        if p == 14:
            pre = [f"s_lshl_b32 s{sAOFF}, s{sRB0}, 2", f"s_add_u32 s{sAOFF}, s{sAOFF}, s{sW}",
                   f"s_lshl_b32 s{sAOFF}, s{sAOFF}, 13", f"s_add_u32 s{sAOFF}, s{sAOFF}, {O_BASE}"]
        post = [f"s_add_u32 s{sAOFF}, s{sAOFF}, 2048"]
        if p < 13:
            post += [f"s_cmp_eq_u32 s{sAOFF}, s{sAEND}", f"s_cselect_b32 s{sCB}, {28*1024}, 0", f"s_sub_u32 s{sAOFF}, s{sAOFF}, s{sCB}"]
        for n in range(4):
            ks, rb = n >> 1, n & 1
            ad = vLIN if rb == 0 else (vA1H if p < 14 else vA1O)
            self.C.append(Item(f"buffer_load_dwordx4 {v(self.ar(p,n),4)}, v{ad}, {s(S_WS,4)}, s{sAOFF} offen offset:{1024*ks} sc1",
                               pre=pre if n == 0 else (), post=post if n == 3 else (), lat=OPT["miss"] if p < 2 or p in (14, 15) else None))
        self.alast[p] = self.C[-1]

    def de_start(self):
        e = self.e
        self.alast = {}
        self.nlab += 1
        n = self.nlab
        self.force(self.P)
        self.a.need(*[k for k, r in self.a.vm if f"v{vPOLL}" in r])
        e(f"s_cmp_ge_u32 s{sLOC}, 28")
        e(f"s_cbranch_scc1 L_nopoll{n}")
        self.poll_check(vF23A, f"s{sF2O}")
        self.a.label(f"L_nopoll{n}")
        for p in range(4):
            self.a_load(p)
        for rb in range(2):
            self.C.append(Item(f"buffer_load_dword v{vG+rb}, v{vGA}, {s(S_WS,4)}, s{sGD} offen offset:{128*rb} sc1", lat=OPT["miss"]))

    def de(self):
        e, pe, m = self.e, self.pe, self.m
        e(f"s_cmp_ge_u32 s{sLOC}, 28")
        e("s_cbranch_scc1 L_idle")
        self.publish(sF3P, self.tO, 2)
        vBI = vCD

        def mm(p, ks, qd):
            rb, t = qd >> 1, qd & 1
            acc = v(vAB + 16 * qd, 16)
            C = v(vBI + 16 * t, 16) if p == 0 and ks == 0 else acc
            e(f"{MFMA} {acc}, {a_(16*(p%16)+8*ks+4*t,4)}, {v(self.ar(p,2*ks+rb),4)}, {C}")

        def scale(qd, half):
            for k in range(8 * half, 8 * half + 8):
                e(f"v_mul_f32 v{vAB+16*qd+k}, v{vG+(qd>>1)}, v{vAB+16*qd+k}")

        for p in range(17):
            self.force(self.C, self.alast[p])
            self.force(self.B, self.blast[p])
            if p in (1, 2):
                self.B.extend(self.b_read(15 + p))
            if p == OPT["poll3"]:
                e(f"s_add_u32 s{sF2O}, s{sF2O}, {F3-F2}")
                self.poll_item(vF23A, f"s{sF2O}")
            if p == 11:
                for rb in range(2):
                    e(f"v_sub_f32 v{vG+rb}, 1.0, v{vG+rb}")
            if p in (13, 14):
                for n in range(8):
                    mm(p, n & 1, n >> 1)
                    k = n - 4 + 8 * (p - 13)
                    self.side()
                    if 0 <= k < 8:
                        scale(k >> 1, k & 1)
            else:
                for ks in range(2):
                    for qd in range(4):
                        mm(p, ks, qd)
                        self.side()
            if p + 4 < 18:
                if p + 4 == 14:
                    self.poll_check(vF23A, f"s{sF2O}")
                self.a_load(p + 4)
        self.force(self.C)
        self.force(self.B)
        self.stamp("pair 16 done")
        e(f"v_add_u32 v24, s{sRING}, v{vLIN}")
        for d in range(1, 4):
            e(f"s_sub_u32 s{sT0}, s{sW}, {d}")
            e(f"s_and_b32 s{sT0}, s{sT0}, 3")
            e(f"s_mul_i32 s{sT0}, s{sT0}, 12288")
            e(f"s_add_u32 s{sT0}, s{sT0}, {RED+(d-1)*4096}")
            e(f"v_add_u32 v{24+d}, s{sT0}, v{vLIN}")
        e(f"v_and_b32 v28, 31, v{vL}")
        e(f"v_mul_u32_u24 v28, 896, v28")
        e(f"v_lshrrev_b32 v29, 5, v{vL}")
        e(f"v_lshl_add_u32 v28, v29, 4, v28")
        self.a.need(*[k for k, _ in self.a.vm + self.a.lg])
        for w in range(4):
            clk = self.a.clk, self.a.mf_free, self.a.lds_free
            if w:
                self.a.label(f"L_wr{w}")
            if w < 3:
                e(f"s_cmp_lg_u32 s{sW}, {w}")
                e(f"s_cbranch_scc1 L_wr{w+1}")
            order = [(w + d) & 3 for d in (1, 2, 3, 4)]
            for n, qd in enumerate(order):
                mm(17, 0, qd)
                mm(17, 1, qd)
                if n >= 2:
                    for k in range(4):
                        e(f"ds_write_b128 v24, {v(vAB+16*order[n-2]+4*k,4)} offset:{(n-2)*4096+k*1024}")
            for k in range(4):
                e(f"ds_write_b128 v24, {v(vAB+16*order[2]+4*k,4)} offset:{2*4096+k*1024}")
            for k in range(8):
                e(f"v_mov_b64 {v(64+2*k,2)}, {v(vAB+16*w+2*k,2)}")
            e("s_waitcnt lgkmcnt(0)")
            if w < 3:
                e("s_branch L_wrdone")
                self.a.clk, self.a.mf_free, self.a.lds_free = clk
        self.a.label("L_wrdone")
        e("s_barrier")
        for d in range(1, 4):
            for k in range(4):
                e(f"ds_read_b128 {v(64+16*d+4*k,4)}, v{24+d} offset:{k*1024}")
        for d in range(1, 4):
            for k in range(8):
                e(f"v_pk_add_f32 {v(64+2*k,2)}, {v(64+2*k,2)}, {v(64+16*d+2*k,2)}")
        for k in range(8):
            e(f"v_cvt_pk_bf16_f32 v{32+k}, v{64+2*k}, v{64+2*k+1}")
        for hh in range(2):
            for d in range(2):
                e(f"v_permlane32_swap_b32 v{32+4*hh+d}, v{32+4*hh+2+d}")
            e(f"buffer_store_dwordx4 {v(32+4*hh,4)}, v28, {s(S_OUT,4)}, s{sOUT} offen offset:{32*hh}")
        self.stamp("end")
        self.write_stamps()
        e("s_endpgm")
        self.a.label("L_idle")
        e("s_waitcnt vmcnt(0)")
        e(self.pub_text(sF3P))
        e("s_cmp_lg_u32 s2, 248")
        e("s_cbranch_scc1 L_end")
        e(f"s_cmp_lg_u32 s{sW}, 0")
        e("s_cbranch_scc1 L_end")
        e(f"v_lshlrev_b32 v24, 7, v{vL}")
        e(f"s_mov_b32 s{sSPIN}, 0")
        self.a.label("L_ep")
        for k in range(16):
            e(f"s_mov_b32 s{sT0}, {F1+8192*k}")
            e(f"buffer_load_dword v{40+k}, v24, {s(S_WS,4)}, s{sT0} offen sc1")
        e(f"s_add_u32 s{sSPIN}, s{sSPIN}, 1")
        e("s_waitcnt vmcnt(0)")
        for k in range(16):
            e(f"v_xor_b32 v{40+k}, v{vT}, v{40+k}")
        for k in range(1, 16):
            e(f"v_or_b32 v40, v40, v{40+k}")
        e(f"v_cmp_ne_u32 vcc, 0, v40")
        e(f"s_cmp_gt_u32 s{sSPIN}, 0x8000")
        e("s_cbranch_scc1 L_epd")
        e("s_cbranch_vccnz L_ep")
        self.a.label("L_epd")
        e(f"s_mov_b32 s{sT0}, {E_OFF}")
        e(self.pub_text(sT0))

    def write_stamps(self):
        e = self.e
        if OPT["probe"]:
            e(f"s_sub_u32 s{sT0}, s{sP0+1}, s{sP0}")
            e(f"s_lshl_b32 s{sT0}, s{sT0}, 2")
            e(f"s_add_u32 s{sT0}, s{sT0}, 72000")
            self.a.label("L_probe")
            e(f"s_memtime {s(sM3,2)}")
            e("s_waitcnt lgkmcnt(0)")
            e(f"s_sub_u32 s{sT1}, s{sM3}, s{sP0}")
            e(f"s_cmp_lt_u32 s{sT1}, s{sT0}")
            e("s_cbranch_scc1 L_probe")
        if not OPT["stamps"]:
            return
        e(f"s_lshl_b32 s{sT0}, s2, 2")
        e(f"s_add_u32 s{sT0}, s{sT0}, s{sW}")
        e(f"s_lshl_b32 s{sT1}, s{sT0}, 7")
        e(f"s_add_u32 s{sT1}, s{sT1}, {ST_BASE}")
        e(f"s_mov_b32 s{sT2}, {self.nst}")
        e(f"v_lshlrev_b32 v40, 2, v{vL}")
        e(f"v_writelane_b32 v{vST}, s{sT2}, 31")
        e(f"v_cmp_gt_u32 vcc, 32, v{vL}")
        e(f"v_mov_b32 v41, {OOB}")
        e(f"v_cndmask_b32 v40, v41, v40, vcc")
        e(f"buffer_store_dword v{vST}, v40, {s(S_WS,4)}, s{sT1} offen")
        if OPT["dbg"]:
            e(f"v_readfirstlane_b32 s{sT1}, v{vST}")
            e(f"s_cmp_eq_u32 s{sT0}, {OPT['dbg']}")
            e(f"s_cselect_b32 s{sT0}, 0, {OOB}")
            e(f"s_mov_b32 s{S_DBG+2}, 256")
            e(f"s_mov_b32 s{S_DBG+3}, 0x20000")
            e(f"v_subrev_u32 v{vST}, s{sT1}, v{vST}")
            e(f"buffer_store_dword v{vST}, v40, {s(S_DBG,4)}, s{sT0} offen")

    def build(self):
        self.prologue()
        self.phase1()
        self.attention()
        self.de()
        self.a.label("L_end")
        self.e("s_endpgm")
        if OPT["strip"]:
            keep, pro = [], True
            for i in self.a.ins:
                if i.kind == "barrier":
                    pro = False
                drop = i.kind in ("mfma", "trans", "dsread", "dswrite") or (
                    not pro and i.kind == "valu" and any(r[0] == "v" and r != "vcc" and int(r[1:]) >= 30 for r in i.w) and "v40" not in i.w and "v41" not in i.w)
                if OPT["strip"] == 2 and i.kind == "vstore" and "x4" in i.mn:
                    i = Ins(i.text.replace("offen", "offen").replace(f"v{vLIN},", f"v{vL0},").replace("v24,", f"v{vL0},").replace("v25,", f"v{vL0},").replace("v26,", f"v{vL0},").replace("v27,", f"v{vL0},"))
                if not drop:
                    keep.append(i)
            self.a.ins = keep
        self.a.finalize()
        body = self.a.text() + "\n" + "\n".join(t if t.endswith(":") else "    " + t for t in self.tail) + "\nL_code_end:\n    s_endpgm\n"
        head = f"""; Fused gated mix: sliding-window attention branch + GELU FFN branch, one persistent launch.
; @launch grid=(256,1,1) block=(256,1,1) lds={LDS_SIZE}
.amdgcn_target "amdgcn-amd-amdhsa--gfx950"
.text
.globl {NAME}_kernel
.p2align 8
.type {NAME}_kernel,@function
{NAME}_kernel:
"""
        foot = f""".section .rodata,"a"
.p2align 6
.amdhsa_kernel {NAME}_kernel
  .amdhsa_next_free_vgpr 512
  .amdhsa_next_free_sgpr 102
  .amdhsa_accum_offset 256
  .amdhsa_group_segment_fixed_size 0
  .amdhsa_kernarg_size 96
  .amdhsa_user_sgpr_count 2
  .amdhsa_user_sgpr_kernarg_segment_ptr 1
  .amdhsa_system_sgpr_workgroup_id_x 1
  .amdhsa_float_denorm_mode_32 3
.end_amdhsa_kernel
"""
        return head + body + foot


if __name__ == "__main__":
    g = Gen()
    txt = g.build()
    out = sys.argv[1] if len(sys.argv) > 1 else f"cdna_kernels/{NAME}.s"
    open(out, "w").write(txt)
    kinds = {}
    for i in g.a.ins:
        kinds[i.kind] = kinds.get(i.kind, 0) + 1
    print(out, g.a.stats, kinds)
    if OPT["log"]:
        print("\n".join(g.a.log))
        print("model stalls", g.a.stall, "pipe busy", g.a.busy)
```

```python
import math, struct, sys
from collections import deque
sys.path.insert(0, "tools")
from asmlib import Asm, Ins, v, a_, s

NAME = "gated_mix__sliding_block__dense_activation_gelu__prompt"
OPT = dict(stamps=0, dbg=0, npairs=6, probe=0, poll1=20, poll2=4, chk2=7, poll3=7, norot=0, log=0,
           miss=480, pub1=13, svc=64, st=160, lat=480, win=8, strip=0, rot1=3, rot2=2, cpf=1, nt=0, split=1, wpf=0, wsoff=0)
for arg in sys.argv[2:]:
    k, val = arg.split("=")
    assert k in OPT, k
    OPT[k] = int(val)


def fbits(x):
    return struct.unpack("<I", struct.pack("<f", x))[0]


QKV_BASE, H_BASE, O_BASE, G_BASE = 0, 0x600000, 0xD00000, 0xF00000
F_BASE, E_OFF, ST_BASE, WS_SIZE = 0xF10000, 0xF80000, 0xFA0000, 0x1000000
F1, F2, F3, F0 = F_BASE, F_BASE + 1024 * 128, F_BASE + 2048 * 128, F_BASE + 3072 * 128
OOB = 0x40000000
TAG_STEP = 0x6B43A9B7
R_A, R_Q, R_B, RING = 0, 57344, 106496, 57344
KV = R_B
XST = 106496
TB1, DUMMY, TB2, RED = 163328, 159744, 0, 8192
LDS_SIZE = 163840
S_CODE, S_X, S_WQ, S_W1, S_WS, S_W2, S_WO, S_OUT, S_B1, S_B2, S_GW, S_DBG = 4, 8, 12, 16, 20, 24, 28, 32, 36, 40, 44, 96
sMX = 3
sW, sC, sLIGHT, sUA, sUB, sJ, sRB0, sCT, sLOC, sRB, sQB, sFIRST = range(48, 60)
sT0, sT1, sT2, sT3 = 60, 61, 62, 63
sHI, sM, sG = 64, 66, 68
sCA, sCB, sBT = 75, 76, 77
sMQ, sMA, sMAS, sMB, sRING = 78, 79, 80, 81, 82
sBOFF, sBEND, sAOFF, sAEND, sKV0 = 83, 84, 85, 86, 87
sM3, sF2O, sSPIN = 88, 90, 91
sQS, sHA, sHB, sF1, sGS, sF0P = 0, 1, 4, 5, 6, 7
sKOFF, sMKV, sQOFF, sOS, sF3P, sF0R, sK2 = 36, 37, 38, 39, 44, 45, 46
sGQ, sGD, sNQ, sOUT = 92, 93, 94, 95
sP0 = 100
vL, vLIN, vT, vL0, vK1, vST = 0, 1, 2, 3, 4, 5
vTRQ, vTRF0, vTRF1 = 6, 7, 8
vW1A0, vW1A1, vPV = 9, 10, 11
vBD = 12
vBT0, vBT1 = 16, 17
vF1A, vF23A = 18, 19
vWQ = 20
vPOLL, vGA, vGATE = 20, 21, 22
vTBL = 23
vTMP = 24
vXD, vXR = 32, 36
vWR = 40
vACC = 64
vX = 144
vQ, vS, vCD, vM0, vM8, vO, vP, vMX = 96, 144, 176, 192, 208, 224, 240, 248
vKR, vVR, vKA, vVA = 40, 136, 6, 7
vAB, vBI, vA1H, vA1O, vG = 144, 208, 8, 9, 10

C_GELU = -2.0 * math.sqrt(2.0 / math.pi) * math.log2(math.e)
K1, K2 = fbits(C_GELU), fbits(C_GELU * 0.044715)
QSCALE = fbits(math.log2(math.e) / math.sqrt(28.0))
NINF = 0xFF800000
MFMA = "v_mfma_f32_32x32x16_bf16"


def NT(bit):
    return " nt" if OPT["nt"] & bit else ""


class Item:
    def __init__(self, text, sink=None, pre=(), post=(), m0=None, after=None, lat=None):
        self.text = [text] if isinstance(text, str) else text
        self.sink, self.pre, self.post, self.m0, self.after, self.lat = sink, pre, post, m0, after, lat
        self.vm = self.text[0].startswith("buffer")
        self.done = False


class Gen:
    def __init__(self):
        self.a = Asm()
        self.a.p_svc, self.a.p_st, self.a.p_lat, self.a.p_win = OPT['svc'], OPT['st'], OPT['lat'], OPT['win']
        self.q = deque()
        self.P, self.C, self.B = deque(), deque(), deque()
        self.tail = []
        self.nst = self.nlab = self.nmark = 0
        self.marks = set()
        self.m0 = None
        self.hooks = {}

    def e(self, t):
        return self.a.e(t)

    def emit_item(self, st):
        it = st.popleft()
        c0 = len(self.a.ins)
        if it.after:
            toks = it.after()
            assert toks is not None, "forced item whose producers are not emitted: " + it.text[0]
            self.a.need(*toks)
        for t in it.pre:
            self.e(t)
        if it.m0 and it.m0 != self.m0:
            reg, imm = it.m0[:2]
            self.e(f"s_mov_b32 m0, {imm}" if reg is None else f"s_add_u32 m0, s{reg}, {imm}" if imm else f"s_mov_b32 m0, s{reg}")
            self.m0 = it.m0
        for t in it.text:
            self.a.next_lat = it.lat
            k = self.e(t)
            if it.sink is not None:
                it.sink.append(k)
        for t in it.post:
            self.e(t)
        it.done = True
        return 4 * (len(self.a.ins) - c0) + (4 if it.vm else 0)

    def side(self):
        a = self.a
        for st in (self.P, self.C, self.B):
            if not st:
                continue
            it = st[0]
            if not (a.vm_free() if it.vm else a.lds_free - a.clk <= 8):
                continue
            if it.after:
                toks = it.after()
                if toks is None or a.est(toks) > a.clk:
                    continue
            return self.emit_item(st)
        return 0

    def force(self, st, it=None):
        while st and (it is None or not it.done):
            self.emit_item(st)

    def m(self, t):
        k = self.e(t)
        if not t.startswith(("s_cmp", "s_cselect", "v_cmp")):
            self.side()
        return k

    def push(self, fn, cost=4):
        self.q.append((fn, cost))

    def pe(self, t):
        cost = 8 if Ins(t).kind == "trans" else 4
        if t.startswith("s_cselect"):
            fn, c = self.q.pop()
            assert getattr(fn, "scc", False), "s_cselect must follow its s_cmp directly: " + t
            g = lambda fn=fn, t=t: (fn(), self.e(t))
            g.scc = True
            self.q.append((g, c + cost))
            return
        f = lambda t=t: self.e(t)
        f.scc = t.startswith("s_cmp")
        self.q.append((f, cost))

    def gap(self, budget):
        budget -= self.side()
        while self.q and budget >= min(self.q[0][1], 8):
            fn, c = self.q.popleft()
            fn()
            budget -= c

    def drain(self, name=None):
        while (self.q if name is None else name not in self.marks):
            self.q.popleft()[0]()
            self.side()

    def mark(self, name):
        self.push(lambda: self.marks.add(name), 0)

    def hook(self, name):
        fn = self.hooks.pop(name, None)
        if fn:
            fn()

    def stamp(self, name="", group=1):
        if group == 1:
            self.a.log.append(f"{self.a.clk:6d} {name}  (pipe busy {self.a.busy})")
        if (OPT["stamps"] == group or (OPT["stamps"] and self.nst == 0)) and self.nst < 16:
            clk = self.a.clk
            self.e(f"s_memtime {s(sM3,2)}")
            self.e("s_waitcnt lgkmcnt(0)")
            self.e(f"v_writelane_b32 v{vST}, s{sM3}, {self.nst}")
            self.a.clk = clk
            self.nst += 1
        if group == 1:
            self.nmark += 1
            if OPT["probe"] == self.nmark:
                self.e(f"s_memtime {s(sM3,2)}")
                self.e("s_waitcnt lgkmcnt(0)")
                self.e(f"s_mov_b32 s{sP0+1}, s{sM3}")

    def poll_item(self, addr, soff):
        it = Item(f"buffer_load_dword {v(vPOLL)}, {v(addr)}, {s(S_WS,4)}, {soff} offen sc1", lat=OPT["miss"])
        self.P.append(it)
        return it

    def poll_check(self, addr, soff):
        self.force(self.P)
        self.nlab += 1
        n = self.nlab
        if OPT["stamps"]:
            self.e(f"s_mov_b32 s{sSPIN}, 0")
        self.e(f"v_cmp_ne_u32 vcc, {v(vT)}, {v(vPOLL)}")
        self.e(f"s_cbranch_vccnz L_slow{n}")
        self.a.label(f"L_back{n}")
        if OPT["stamps"]:
            self.npoll = getattr(self, "npoll", 0) + 1
            self.e(f"v_writelane_b32 v{vST}, s{sSPIN}, {15 + self.npoll}")
        self.tail += [f"L_slow{n}:", f"s_mov_b32 s{sSPIN}, 0", f"L_spin{n}:",
                      f"buffer_load_dword {v(vPOLL)}, {v(addr)}, {s(S_WS,4)}, {soff} offen sc1",
                      f"s_add_u32 s{sSPIN}, s{sSPIN}, 1",
                      "s_waitcnt vmcnt(0)",
                      f"v_cmp_ne_u32 vcc, {v(vT)}, {v(vPOLL)}",
                      f"s_cmp_gt_u32 s{sSPIN}, 0x20000",
                      f"s_cbranch_scc1 L_back{n}",
                      f"s_cbranch_vccnz L_spin{n}",
                      f"s_branch L_back{n}"]

    def pub_text(self, soff):
        return f"buffer_store_dword {v(vT)}, {v(vL0)}, {s(S_WS,4)}, s{soff} offen sc1"

    def publish(self, soff, toks, n, pre=()):
        it = Item(self.pub_text(soff), pre=pre, after=lambda: toks if len(toks) == n else None)
        self.P.append(it)
        return it

    def prologue(self):
        e, m = self.e, self.m
        e("s_cmp_ge_u32 s2, 256")
        e("s_cbranch_scc1 L_end")
        if OPT["probe"]:
            e(f"s_memtime {s(sP0,2)}")
        def kargs(base):
            for srd, off in ((S_X, 0), (S_WQ, 8), (S_WS, 88), (S_GW, 64), (S_B1, 40), (S_W1, 32), (S_W2, 48), (S_WO, 16), (S_B2, 56), (S_OUT, 72)):
                e(f"s_load_dwordx2 {s(srd,2)}, {base}, {off}")
        if OPT["probe"] == 102:
            e("s_mov_b64 s[98:99], s[0:1]")
        else:
            kargs("s[0:1]")
        if OPT["probe"] == 101:
            e("s_waitcnt lgkmcnt(0)")
            e(f"s_memtime {s(sM3,2)}")
            e("s_waitcnt lgkmcnt(0)")
            e(f"s_mov_b32 s{sP0+1}, s{sM3}")
        if OPT["dbg"]:
            e(f"s_load_dwordx2 {s(S_DBG,2)}, s[0:1], 80")
        e(f"s_getpc_b64 {s(S_CODE,2)}")
        self.a.label("L_pc")
        e(f"s_lshr_b32 s{sLOC}, s2, 3")
        e(f"v_lshrrev_b32 v1, 6, v0")
        e(f"v_and_b32 v{vL}, 63, v0")
        e(f"s_and_b32 s{sT0}, s{sLOC}, 7")
        e(f"v_readfirstlane_b32 s{sW}, v1")
        e(f"s_mov_b32 s{S_CODE+2}, L_code_end-L_pc")
        e(f"s_mov_b32 s{S_CODE+3}, 0x20000")
        e(f"v_and_b32 v24, 7, v{vL}")
        e(f"v_lshl_add_u32 v24, v1, 3, v24")
        e(f"v_lshlrev_b32 v24, 7, v24")
        e(f"s_lshl_b32 s{sT1}, s{sT0}, 12")
        if OPT["cpf"]:
            e(f"buffer_load_dword v250, v24, {s(S_CODE,4)}, 0 offen")
        e(f"buffer_load_dword v251, v24, {s(S_CODE,4)}, s{sT1} offen")
        e(f"s_lshr_b32 s{sT1}, s{sLOC}, 3")
        e(f"s_bfe_u32 s{sRB}, s2, 0x20001")
        e(f"s_lshl_b32 s{sRB}, s{sRB}, 2")
        e(f"s_add_u32 s{sRB}, s{sRB}, s{sT1}")
        e(f"s_and_b32 s{sC}, s2, 1")
        e(f"s_lshl_b32 s{sC}, s{sC}, 3")
        e(f"s_add_u32 s{sC}, s{sC}, s{sT0}")
        e(f"s_lshl_b32 s{sT1}, s{sT1}, 1")
        e(f"s_add_u32 s{sT0}, s{sT0}, s{sT1}")
        e(f"s_sub_u32 s{sT1}, s{sT0}, 7")
        e(f"s_cmp_ge_u32 s{sT0}, 7")
        e(f"s_cselect_b32 s{sG}, s{sT1}, s{sT0}")
        if OPT["rot1"] == 3:
            e(f"s_bfe_u32 s{sT0}, s2, 0x20001")
            e(f"s_add_u32 s{sT0}, s{sT0}, s{sG}")
            e(f"s_sub_u32 s{sT1}, s{sT0}, 7")
            e(f"s_cmp_ge_u32 s{sT0}, 7")
            e(f"s_cselect_b32 s{sG}, s{sT1}, s{sT0}")
        if OPT["rot1"] == 0:
            e(f"s_mov_b32 s{sG}, 0")
        if OPT["rot1"] == 2:
            e(f"s_and_b32 s{sT0}, s2, 7")
            e(f"s_cmp_eq_u32 s{sT0}, 7")
            e(f"s_cselect_b32 s{sG}, 0, s{sT0}")
        e(f"s_lshl_b32 s{sRB}, s{sRB}, 2")
        e(f"s_add_u32 s{sRB}, s{sRB}, s{sW}")
        for srd, size in ((S_X, 2048 * 896), (S_WQ, 448 * 2688)):
            e(f"s_mov_b32 s{srd+2}, {size}")
            e(f"s_mov_b32 s{srd+3}, 0x20000")
        e(f"v_lshrrev_b32 v24, 3, v{vL}")
        e(f"s_lshl_b32 s{sT0}, s{sRB}, 5")
        e(f"v_add_u32 v24, s{sT0}, v24")
        e(f"v_mul_u32_u24 v24, 896, v24")
        e(f"v_lshrrev_b32 v26, 4, v{vL}")
        e(f"v_and_b32 v27, 7, v{vL}")
        e(f"v_xor_b32 v26, v26, v27")
        e(f"v_lshl_add_u32 v{vXD}, v26, 4, v24")
        e(f"v_xor_b32 v{vXD+1}, 64, v{vXD}")
        e(f"v_add_u32 v{vXD+2}, {2*(7168-1024)}, v{vXD}")
        e(f"v_add_u32 v{vXD+3}, {3*(7168-1024)}, v{vXD+1}")
        e(f"v_add_u32 v{vXD+1}, {7168-1024}, v{vXD+1}")
        e(f"s_mul_i32 s{sMX}, s{sW}, 12288")
        e(f"s_add_u32 s{sRING}, s{sMX}, {RED}")
        e(f"s_add_u32 s{sMX}, s{sMX}, {XST}")
        e(f"s_mul_i32 s{sT0}, s{sC}, 168")
        e(f"s_and_b32 s{sT0}, s{sT0}, 0xfffffff0")
        e(f"s_mul_i32 s{sT1}, s{sW}, {16*2688}")
        e(f"s_add_u32 s{sT0}, s{sT0}, s{sT1}")
        for i in range(3):
            e(f"v_add_u32 v24, {64*i}, v{vL}")
            e(f"v_mul_u32_u24 v26, 171, v24")
            e(f"v_lshrrev_b32 v26, 11, v26")
            e(f"v_mul_u32_u24 v27, 12, v26")
            e(f"v_sub_u32 v24, v24, v27")
            e(f"v_min_u32 v24, 10, v24")
            e(f"v_mul_u32_u24 v26, 2688, v26")
            e(f"v_lshl_add_u32 v24, v24, 4, v26")
            e(f"v_add_u32 v{vWQ+i}, s{sT0}, v24")
            if i < 2:
                e(f"s_sub_u32 s{sT0}, s{sT0}, 1024")
        e(f"s_mul_i32 s{sMQ}, s{sW}, {16*192}")
        e(f"s_add_u32 s{sMQ}, s{sMQ}, {R_Q}")
        for i in range(1, 7):
            e(f"s_add_u32 s{sT0}, s{sG+i-1}, 1")
            e(f"s_cmp_eq_u32 s{sT0}, 7")
            e(f"s_cselect_b32 s{sG+i}, 0, s{sT0}")
        for srd, size in ((S_WS, WS_SIZE), (S_GW, 896), (S_B1, 3584), (S_W1, 448 * 3584), (S_B2, 896), (S_OUT, 2048 * 896)):
            e(f"s_mov_b32 s{srd+2}, {size}")
            e(f"s_mov_b32 s{srd+3}, 0x20000")
        e(f"s_lshr_b32 s{sLIGHT}, 0x1248, s{sC}")
        e(f"s_and_b32 s{sLIGHT}, s{sLIGHT}, 1")
        e(f"s_bfm_b32 s{sT0}, s{sC}, 0")
        e(f"s_and_b32 s{sT0}, s{sT0}, 0x1248")
        e(f"s_bcnt1_i32_b32 s{sT0}, s{sT0}")
        e(f"s_lshl_b32 s{sUA}, s{sC}, 1")
        e(f"s_sub_u32 s{sUA}, s{sUA}, s{sT0}")
        e(f"s_add_u32 s{sUB}, s{sUA}, 1")
        e(f"s_sub_u32 s{sUB}, s{sUB}, s{sLIGHT}")
        e(f"s_lshl_b32 s{sT0}, s{sW}, 6")
        e(f"v_add_u32 v26, s{sT0}, v{vL}")
        e(f"s_lshl_b32 s{sT1}, s{sG}, 6")
        for h in range(2):
            e(f"v_add_u32 v27, s{sT1}, v26")
            if h:
                e(f"v_add_u32 v27, 256, v27")
            e(f"v_subrev_u32 v28, 448, v27")
            e(f"v_min_u32 v27, v27, v28")
            e(f"v_lshlrev_b32 v{42+h}, 1, v27")
        e(f"s_lshl_b32 s{sT0}, s{sUA}, 7")
        e(f"s_cmp_eq_u32 s{sLIGHT}, 1")
        e(f"s_cselect_b32 s{sT0}, {OOB}, s{sT0}")
        e(f"s_lshl_b32 s{sT1}, s{sUB}, 7")
        e(f"s_sub_u32 s{sT1}, s{sT1}, 128")
        e(f"s_mov_b32 s{sHI}, 0")
        e(f"s_mov_b32 s{sHI+1}, -1")
        e(f"v_mov_b32 v27, s{sT0}")
        e(f"v_mov_b32 v28, s{sT1}")
        e(f"v_cndmask_b32 v27, v27, v28, {s(sHI,2)}")
        e(f"v_lshl_add_u32 v44, v{vL}, 2, v27")
        e(f"v_mov_b32 v45, {E_OFF}")
        m(f"v_lshlrev_b32 v{vLIN}, 4, v{vL}")
        m(f"v_bfe_u32 v24, v{vL}, 2, 2")
        m(f"v_lshrrev_b32 v27, 5, v{vL}")
        m(f"v_bfe_u32 v28, v{vL}, 4, 1")
        m(f"v_and_b32 v29, 3, v{vL}")
        m(f"v_lshlrev_b32 v29, 3, v29")
        m(f"v_lshl_add_u32 v29, v28, 5, v29")
        m(f"v_lshl_add_u32 v40, v27, 3, v24")
        m(f"v_mul_u32_u24 v41, 192, v40")
        m(f"s_and_b32 s{sT0}, s{sC}, 1")
        m(f"s_lshl_b32 s{sT0}, s{sT0}, 3")
        m(f"s_add_u32 s{sT0}, s{sT0}, {R_Q}")
        m(f"v_add3_u32 v{vTRQ}, v41, v29, s{sT0}")
        m(f"v_lshrrev_b32 v41, 1, v24")
        m(f"v_lshl_add_u32 v29, v41, 6, v29")
        m(f"v_lshl_add_u32 v{vTRF0}, v40, 7, v29")
        m(f"v_xor_b32 v{vTRF1}, 64, v{vTRF0}")
        m(f"v_lshl_add_u32 v40, v27, 2, v24")
        m(f"v_lshl_add_u32 v40, v40, 7, v29")
        m(f"v_add_u32 v{vBT0}, s{sRING}, v40")
        m(f"v_xor_b32 v{vBT1}, 64, v{vBT0}")
        m(f"v_and_b32 v40, 31, v{vL}")
        m(f"v_bfe_u32 v41, v{vL}, 1, 3")
        m(f"v_xor_b32 v41, v41, v27")
        m(f"v_lshlrev_b32 v41, 4, v41")
        m(f"v_lshl_add_u32 v40, v40, 7, v41")
        m(f"v_add_u32 v{vXR}, s{sMX}, v40")
        for k in range(1, 4):
            m(f"v_xor_b32 v{vXR+k}, {32*k}, v{vXR}")
        m(f"v_lshlrev_b32 v{vTBL}, 3, v27")
        m(f"v_add_u32 v{vTBL}, {TB1 - TB1 % 2048}, v{vTBL}")
        m(f"v_and_b32 v40, 3, v{vL}")
        m(f"v_lshl_add_u32 v40, v27, 2, v40")
        m(f"v_bfe_u32 v41, v{vL}, 2, 3")
        m(f"v_lshl_add_u32 v40, v41, 3, v40")
        m(f"v_lshlrev_b32 v{vPV}, 4, v40")
        m(f"v_cmp_eq_u32 vcc, 0, v{vL}")
        m(f"v_mov_b32 v40, {OOB}")
        m(f"v_mov_b32 v{vK1}, {K1}")
        m(f"v_cndmask_b32 v{vL0}, v40, 0, vcc")
        e(f"s_lshl_b32 s{sT0}, s2, 2")
        e(f"s_add_u32 s{sT0}, s{sT0}, s{sW}")
        e(f"s_mul_i32 s{sT0}, s{sT0}, 49")
        e(f"s_lshr_b32 s{sT2}, s{sT0}, 2")
        e(f"s_lshl_b32 s{sT2}, s{sT2}, 7")
        e(f"s_lshr_b32 s{sT3}, s{sT0}, 4")
        e(f"s_lshl_b32 s{sT3}, s{sT3}, 7")
        e(f"v_min_u32 v47, 12, v{vL}")
        e(f"v_lshlrev_b32 v47, 7, v47")
        e(f"v_min_u32 v48, 3, v{vL}")
        e(f"v_lshlrev_b32 v48, 7, v48")
        for srd, size in ((S_W2, 1792 * 896), (S_WO, 448 * 896)):
            e(f"s_mov_b32 s{srd+2}, {size}")
            e(f"s_mov_b32 s{srd+3}, 0x20000")
        if not OPT["split"]:
            self.setup_later()
        if OPT["probe"] == 102:
            e("s_waitcnt lgkmcnt(0)")
            e(f"s_memtime {s(sM3,2)}")
            e("s_waitcnt lgkmcnt(0)")
            e(f"s_mov_b32 s{sP0+1}, s{sM3}")
            kargs("s[98:99]")
        e("s_waitcnt lgkmcnt(0)")
        if 103 <= OPT["probe"] <= 108:
            seq = {103: [(S_X, 0)], 104: [(S_X, 0), (S_X, 0x80000)], 105: [(S_X, 0), (S_W1, 0)], 106: [(S_X, 0), (S_WS, 0x300000)],
                   107: [(S_X, 0), (S_WS, 0x300000), (S_WS, 0x310000)], 108: [(S_X, 0), (S_WS, 0x300000), (S_WS, 0x900000)]}[OPT["probe"]]
            e(f"s_lshl_b32 s{sT0}, s2, 10")
            e(f"s_lshl_b32 s{sT1}, s{sW}, 8")
            e(f"s_add_u32 s{sT0}, s{sT0}, s{sT1}")
            e(f"v_mov_b32 v47, s{sT0}")
            for n, (srd, off) in enumerate(seq):
                if n == len(seq) - 1:
                    e(f"s_memtime {s(sP0,2)}")
                    e("s_waitcnt lgkmcnt(0)")
                e(f"s_mov_b32 s{sT0}, {off}")
                e(f"buffer_load_dword v48, v47, {s(srd,4)}, s{sT0} offen")
                e("s_waitcnt vmcnt(0)")
            e(f"s_memtime {s(sM3,2)}")
            e("s_waitcnt lgkmcnt(0)")
            e(f"s_mov_b32 s{sP0+1}, s{sM3}")
        self.a.clk = self.a.pipe_free = 0
        self.a.allv = []
        self.a.done = {k: 0 for k in self.a.done}
        if OPT["wsoff"]:
            e(f"s_add_u32 s{S_WS}, s{S_WS}, {OPT['wsoff'] << 20}")
            e(f"s_addc_u32 s{S_WS+1}, s{S_WS+1}, 0")
        self.stamp("kernarg")
        self.ctok, self.wtok, self.xrd, self.ftok = {}, {}, {}, {}
        self.add_chunk(0)
        self.force(self.C)
        if OPT["wpf"]:
            e(f"buffer_load_dword v252, v47, {s(S_W1,4)}, s{sT2} offen")
            e(f"buffer_load_dword v253, v47, {s(S_W2,4)}, s{sT2} offen")
            e(f"buffer_load_dword v254, v48, {s(S_WO,4)}, s{sT3} offen")
        self.a.next_lat = OPT["miss"]
        e(f"buffer_load_dword v{vT}, v45, {s(S_WS,4)}, 0 offen sc1")
        for h in range(2):
            e(f"buffer_load_ushort v{30+h}, v{42+h}, {s(S_GW,4)}, 0 offen")
        e(f"s_mov_b32 m0, {TB1}")
        self.m0 = None
        self.tB1 = e(f"buffer_load_dword v44, {s(S_B1,4)}, 0 offen lds")
        self.add_chunk(1)
        self.add_chunk(2)
        if OPT["split"]:
            self.setup_later()
        m(f"s_cmp_lt_u32 s{sLOC}, 28")
        m(f"s_cselect_b32 s{S_W2+2}, {1792*896}, 0")
        m(f"s_cselect_b32 s{S_WO+2}, {448*896}, 0")
        m(f"s_lshl_b32 s{sT1}, s{sQB}, 4")
        m(f"s_add_u32 s{sT1}, s{sT1}, s{sJ}")
        m(f"s_lshl_b32 s{sF3P}, s{sT1}, 7")
        m(f"s_add_u32 s{sF3P}, s{sF3P}, {F3}")
        m(f"s_lshl_b32 s{sOS}, s{sT1}, 11")
        m(f"s_add_u32 s{sOS}, s{sOS}, {O_BASE}")
        m(f"s_lshl_b32 s{sT0}, s{sJ}, 6")
        m(f"s_add_u32 s{sKOFF}, s{sT0}, s{sKV0}")
        m(f"s_lshl_b32 s{sKOFF}, s{sKOFF}, 11")
        m(f"s_add_u32 s{sQOFF}, s{sT0}, s{sQB}")
        m(f"s_lshl_b32 s{sQOFF}, s{sQOFF}, 11")
        m(f"s_mul_i32 s{sMKV}, s{sW}, 6144")
        m(f"s_lshl_b32 s{sT0}, s{sQB}, 7")
        m(f"s_add_u32 s{sF0R}, s{sT0}, {F0}")
        m(f"s_add_u32 s{sGQ}, s{sT0}, {G_BASE}")
        m(f"s_mov_b32 s{sK2}, {K2}")
        m(f"s_mov_b32 s{sK2+1}, {K2}")

    def setup_later(self):
        m = self.m
        m(f"s_and_b32 s{sT0}, s2, 7")
        m(f"s_and_b32 s{sT1}, s{sLOC}, 1")
        m(f"s_lshl_b32 s{sJ}, s{sT0}, 1")
        m(f"s_add_u32 s{sJ}, s{sJ}, s{sT1}")
        m(f"s_mul_i32 s{sT1}, s{sLOC}, 37")
        m(f"s_lshr_b32 s{sT1}, s{sT1}, 8")
        m(f"s_mul_i32 s{sCT}, s{sT1}, 7")
        m(f"s_sub_u32 s{sCT}, s{sLOC}, s{sCT}")
        m(f"s_lshl_b32 s{sRB0}, s{sT0}, 2")
        m(f"s_add_u32 s{sRB0}, s{sRB0}, s{sT1}")
        m(f"s_lshl_b32 s{sRB0}, s{sRB0}, 1")
        m(f"s_lshl_b32 s{sT1}, s{sT1}, 2")
        m(f"s_lshr_b32 s{sT1}, 0xa370, s{sT1}")
        m(f"s_and_b32 s{sT1}, s{sT1}, 15")
        m(f"s_lshl_b32 s{sT3}, s{sCT}, 1")
        m(f"s_add_u32 s{sT3}, s{sT3}, s{sT1}")
        m(f"s_sub_u32 s{sT1}, s{sT3}, 14")
        m(f"s_cmp_ge_u32 s{sT3}, 14")
        m(f"s_cselect_b32 s{sT3}, s{sT1}, s{sT3}")
        if OPT["rot2"] == 0:
            m(f"s_mov_b32 s{sT3}, 0")
        if OPT["rot2"] == 2:
            m(f"s_and_b32 s{sT3}, s2, 7")
            m(f"s_mul_i32 s{sT3}, s{sT3}, 7")
            m(f"s_lshr_b32 s{sT3}, s{sT3}, 2")
        if OPT["rot2"] == 3:
            m(f"s_lshl_b32 s{sT3}, s{sCT}, 1")
        m(f"s_mul_i32 s{sBEND}, s{sW}, {448*896}")
        m(f"s_mul_i32 s{sBOFF}, s{sT3}, {32*896}")
        m(f"s_add_u32 s{sBOFF}, s{sBOFF}, s{sBEND}")
        m(f"s_add_u32 s{sBEND}, s{sBEND}, {448*896}")
        m(f"s_mul_i32 s{sAEND}, s{sRB0}, 112")
        m(f"s_mul_i32 s{sT0}, s{sW}, 28")
        m(f"s_add_u32 s{sAEND}, s{sAEND}, s{sT0}")
        m(f"s_lshl_b32 s{sAEND}, s{sAEND}, 10")
        m(f"s_add_u32 s{sAEND}, s{sAEND}, {H_BASE}")
        m(f"s_lshl_b32 s{sAOFF}, s{sT3}, 11")
        m(f"s_add_u32 s{sAOFF}, s{sAOFF}, s{sAEND}")
        m(f"s_add_u32 s{sAEND}, s{sAEND}, {28*1024}")
        m(f"s_lshl_b32 s{sGD}, s{sRB0}, 7")
        m(f"s_add_u32 s{sGD}, s{sGD}, {G_BASE}")
        m(f"s_cmp_lt_u32 s{sLOC}, 28")
        m(f"s_cselect_b32 s{sAOFF}, s{sAOFF}, {OOB}")
        m(f"s_cselect_b32 s{sGD}, s{sGD}, {OOB}")
        m(f"s_lshl_b32 s{sF2O}, s{sRB0}, 11")
        m(f"s_add_u32 s{sF2O}, s{sF2O}, {F2}")
        m(f"v_lshrrev_b32 v24, 3, v{vL}")
        m(f"v_lshlrev_b32 v28, 2, v28")
        m(f"v_and_b32 v29, 7, v{vL}")
        m(f"v_xor_b32 v28, v28, v29")
        m(f"v_lshlrev_b32 v28, 4, v28")
        m(f"v_mul_u32_u24 v29, 3584, v24")
        m(f"s_mul_i32 s{sT0}, s{sW}, {16*3584}")
        m(f"v_add3_u32 v{vW1A0}, v29, v28, s{sT0}")
        m(f"v_add_u32 v{vW1A1}, {8*3584-1024}, v{vW1A0}")
        m(f"v_mul_u32_u24 v29, 896, v24")
        m(f"s_lshl_b32 s{sT0}, s{sCT}, 7")
        m(f"v_add3_u32 v{vBD}, v29, v28, s{sT0}")
        for k in range(1, 4):
            m(f"v_add_u32 v{vBD+k}, {k*(7168-1024)}, v{vBD}")
        m(f"s_lshl_b32 s{sMB}, s{sW}, 11")
        m(f"s_sub_u32 s{sMA}, s{sMB}, {64*128 - R_A}")
        m(f"s_add_u32 s{sMB}, s{sMB}, {R_B}")
        m(f"s_mul_i32 s{sT0}, s{sC}, 3")
        m(f"s_sub_u32 s{sNQ}, 16, s{sT0}")
        m(f"s_lshl_b32 s{sT0}, s{sT0}, 6")
        m(f"s_add_u32 s{sT0}, s{sT0}, s{sRB}")
        m(f"s_lshl_b32 s{sQS}, s{sT0}, 11")
        m(f"s_mul_i32 s{sT1}, s{sRB}, 28")
        m(f"s_add_u32 s{sT0}, s{sT1}, s{sUB}")
        m(f"s_lshl_b32 s{sT0}, s{sT0}, 12")
        m(f"s_add_u32 s{sHB}, s{sT0}, {H_BASE}")
        m(f"s_sub_u32 s{sHA}, s{sHB}, 4096")
        m(f"s_lshl_b32 s{sUA}, s{sUA}, 7")
        m(f"s_lshl_b32 s{sUB}, s{sUB}, 7")
        m(f"s_cmp_eq_u32 s{sLIGHT}, 1")
        m(f"s_cselect_b32 s{sHA}, {OOB}, s{sHA}")
        m(f"s_cselect_b32 s{sUA}, {OOB}, s{sUA}")
        m(f"s_cselect_b32 s{sMA}, {DUMMY}, s{sMA}")
        m(f"s_cselect_b32 s{sMAS}, 0, {64*128}")
        m(f"s_lshl_b32 s{sT0}, s{sRB}, 4")
        m(f"s_add_u32 s{sT0}, s{sT0}, s{sC}")
        m(f"s_lshl_b32 s{sT0}, s{sT0}, 7")
        m(f"s_add_u32 s{sF1}, s{sT0}, {F1}")
        m(f"s_lshl_b32 s{sT0}, s{sRB}, 7")
        m(f"s_add_u32 s{sGS}, s{sT0}, {G_BASE}")
        m(f"s_add_u32 s{sF0P}, s{sT0}, {F0}")
        m(f"s_cmp_eq_u32 s{sC}, 3")
        m(f"s_cselect_b32 s{sGS}, s{sGS}, {OOB}")
        m(f"s_cselect_b32 s{sF0P}, s{sF0P}, {OOB}")
        m(f"s_lshr_b32 s{sT0}, s{sLOC}, 1")
        m(f"s_lshl_b32 s{sT0}, s{sT0}, 2")
        m(f"s_add_u32 s{sQB}, s{sT0}, s{sW}")
        m(f"s_sub_u32 s{sFIRST}, 8, s{sQB}")
        m(f"s_max_i32 s{sFIRST}, s{sFIRST}, 0")
        m(f"s_mul_i32 s{sT1}, s{sW}, 3")
        m(f"s_add_u32 s{sT0}, s{sT0}, s{sT1}")
        m(f"s_sub_u32 s{sKV0}, s{sT0}, 8")
        m(f"s_mul_i32 s{sT2}, s{sJ}, 43")
        m(f"s_lshr_b32 s{sT2}, s{sT2}, 7")
        m(f"s_lshl_b32 s{sT1}, s{sQB}, 4")
        m(f"s_add_u32 s{sT2}, s{sT1}, s{sT2}")
        m(f"v_mov_b32 v{vF1A}, s{sT2}")
        for part, add in ((0, 16), (1, 32)):
            m(f"s_add_u32 s{sT2}, s{sJ}, {add}")
            m(f"s_mul_i32 s{sT2}, s{sT2}, 43")
            m(f"s_lshr_b32 s{sT2}, s{sT2}, 7")
            m(f"v_subrev_u32 v40, {3*part}, v{vL}")
            m(f"v_add_u32 v41, s{sKV0}, v40")
            m(f"v_cmp_gt_u32 {s(sM,2)}, 3, v40")
            m(f"v_cmp_le_i32 vcc, 0, v41")
            m(f"v_lshl_add_u32 v41, v41, 4, s{sT2}")
            m(f"s_and_b64 {s(sM,2)}, {s(sM,2)}, vcc")
            m(f"v_cndmask_b32 v{vF1A}, v{vF1A}, v41, {s(sM,2)}")
        m(f"v_lshlrev_b32 v{vF1A}, 7, v{vF1A}")
        m(f"v_add_u32 v{vF1A}, {F1}, v{vF1A}")
        m(f"v_bfe_u32 v40, v{vL}, 2, 1")
        m(f"v_and_b32 v41, 3, v{vL}")
        m(f"s_lshl_b32 s{sT0}, s{sW}, 2")
        m(f"v_add_u32 v41, s{sT0}, v41")
        m(f"v_cmp_gt_u32 vcc, 8, v{vL}")
        m(f"v_lshl_add_u32 v41, v40, 4, v41")
        m(f"v_and_b32 v40, 1, v{vL}")
        m(f"v_lshl_add_u32 v40, v40, 4, 3")
        m(f"v_cndmask_b32 v{vF23A}, v40, v41, vcc")
        m(f"v_lshlrev_b32 v{vF23A}, 7, v{vF23A}")
        m(f"s_lshr_b32 s{sT0}, s{sW}, 1")
        m(f"s_add_u32 s{sT0}, s{sT0}, s{sRB0}")
        m(f"s_mul_i32 s{sT0}, s{sT0}, {32*896}")
        m(f"s_lshl_b32 s{sT1}, s{sCT}, 1")
        m(f"s_and_b32 s{sT2}, s{sW}, 1")
        m(f"s_add_u32 s{sT1}, s{sT1}, s{sT2}")
        m(f"s_lshl_b32 s{sT1}, s{sT1}, 6")
        m(f"s_add_u32 s{sOUT}, s{sT0}, s{sT1}")

    def add_chunk(self, i):
        toks = self.ctok[i] = []
        lx = OPT["miss"] + 300 if i < 1 else None
        lw = OPT["miss"] + 300 if i < 2 else None
        xs, ws = [], []
        for k in range(4):
            xs.append(Item(f"buffer_load_dwordx4 v{vXD+k}, {s(S_X,4)}, s{sCA} offen" + (f" offset:{1024*k}" if k else "") + NT(1) + " lds", toks,
                           pre=[f"s_lshl_b32 s{sCA}, s{sG+i}, 7"] if k == 0 else (), m0=(sMX, (i % 3) * 4096), lat=lx,
                           after=(lambda: self.xrd[i - 3] if len(self.xrd.get(i - 3, ())) == 4 else None) if i >= 3 and k == 0 else None))
        for k in range(3):
            ws.append(Item(f"buffer_load_dwordx4 v{vWQ+k}, {s(S_WQ,4)}, s{sCB} offen" + (f" offset:{1024*k}" if k else "") + NT(2) + " lds", toks,
                           pre=[f"s_mul_i32 s{sCB}, s{sG+i}, {64*2688}"] if k == 0 else (), m0=(sMQ, (i % 4) * 64 * 192), lat=lw))
        self.C.extend(xs + ws if i == 0 else ws + xs)
        self.clast = getattr(self, "clast", {})
        self.clast[i] = self.C[-1]

    def add_w1(self, unit, i):
        toks = self.wtok[(unit, i)] = []
        pre = [f"s_mul_i32 s{sCB}, s{sG+i}, {64*3584}", f"s_add_u32 s{sCB}, s{sCB}, s{sUA+unit}"]
        if unit == 0:
            pre.append(f"s_add_u32 s{sMA}, s{sMA}, s{sMAS}")
        for k in range(2):
            self.C.append(Item(f"buffer_load_dwordx4 v{vW1A0+k}, {s(S_W1,4)}, s{sCB} offen" + (" offset:1024" if k else "") + NT(4) + " lds", toks,
                               pre=pre if k == 0 else (), m0=(sMB, i * 8192) if unit else (sMA, 0, i),
                               lat=OPT["miss"] if i < 4 else None))
        self.wlast = getattr(self, "wlast", {})
        self.wlast[(unit, i)] = self.C[-1]

    def gate_write(self):
        pe = self.pe
        pe(f"s_cmp_eq_u32 s{sLIGHT}, 1")
        pe(f"s_cselect_b64 {s(sM,2)}, -1, 0")
        pe(f"v_bfe_u32 v27, v26, 1, 1")
        pe(f"v_lshlrev_b32 v28, 7, v26")
        pe(f"v_lshl_add_u32 v28, v27, 6, v28")
        pe(f"v_mov_b32 v29, {DUMMY+2048}")
        pe(f"v_cndmask_b32 v27, v29, v28, {s(sM,2)}")
        pe(f"v_cmp_gt_u32 vcc, 192, v26")
        pe(f"v_add_u32 v28, {256*128}, v28")
        pe(f"s_and_b64 {s(sM,2)}, {s(sM,2)}, vcc")
        pe(f"ds_write_b16 v27, v30")
        pe(f"v_cndmask_b32 v28, v29, v28, {s(sM,2)}")
        pe(f"ds_write_b16 v28, v31")

    def store_addr(self):
        pe = self.pe
        for n, lim in ((0, 11), (1, 10)):
            pe(f"s_cmp_ge_u32 s{sC}, {lim}")
            pe(f"s_cselect_b64 {s(sM,2)}, -1, 0")
            pe(f"s_cselect_b32 s{sT0}, 128, 0")
            pe(f"s_cselect_b32 s{sT1}, 0x3f80, 0")
            pe(f"v_cndmask_b32 v{24+2*n}, v{vLIN}, v{vPV}, {s(sM,2)}")
            pe(f"v_mov_b32 v{28+n}, s{sT1}")
            pe(f"v_xor_b32 v{25+2*n}, s{sT0}, v{24+2*n}")

    def bias_init(self, acc, tbl, factor=None):
        for t in range(2):
            for mm in range(2):
                o = (tbl % 2048) // 8 + 8 * t + 4 * mm
                self.pe(f"ds_read2_b64 {v(acc+16*t+8+4*mm,4)}, v{vTBL} offset0:{o} offset1:{o+2}")
        for t in range(2):
            for k in range(8):
                src, dst = acc + 16 * t + 8 + k, acc + 16 * t + 2 * k
                self.pe(f"v_lshlrev_b32 v{dst}, 16, v{src}")
                self.pe(f"v_and_b32 v{dst+1}, 0xffff0000, v{src}")
        if factor:
            for k in range(16):
                self.pe(f"v_pk_mul_f32 {v(acc+2*k,2)}, {v(acc+2*k,2)}, {factor}")

    def rd_q(self, sidx, t):
        base = vWR + 12 * (sidx & 1) + 4 * t
        o = 56 * t + (sidx % 16) * 3072
        return [self.e(f"ds_read_b64_tr_b16 {v(base+2*h,2)}, v{vTRQ} offset:{o+768*h}") for h in range(2)]

    def rd_f(self, g, t):
        base = vWR + 8 * (g % 3) + 4 * t
        toks = self.ftok.setdefault(g, [])
        for h in range(2):
            toks.append(self.e(f"ds_read_b64_tr_b16 {v(base+2*h,2)}, v{vTRF0+t} offset:{(g%28)*2048+512*h}"))

    def rd_x(self, sidx):
        self.xrd.setdefault(sidx // 4, []).append(self.e(f"ds_read_b128 {v(vX+4*sidx,4)}, v{vXR+sidx%4} offset:{(sidx//4%3)*4096}"))

    def sync(self, st, last, toks, drain_lds=True):
        self.force(st, last)
        while self.a.est(toks) > self.a.clk + 8 and self.side_wait(self.a.est(toks)):
            pass
        self.a.need(*toks)
        if drain_lds and self.a.lg:
            self.e("s_waitcnt lgkmcnt(0)")
        self.e("s_barrier")

    def side_wait(self, until):
        a = self.a
        for st in (self.P, self.C, self.B):
            if not st:
                continue
            it = st[0]
            t = a.allv[-1][0] if it.vm else a.clk
            if it.after:
                toks = it.after()
                if toks is None:
                    continue
                t = max(t, a.est(toks))
            if t + 8 <= until:
                self.emit_item(st)
                return True
        return False

    def qkv(self):
        e = self.e
        qtok = {}
        self.sync(self.C, self.clast[0], self.ctok[0])
        self.stamp("chunk 0")
        self.add_chunk(3)
        self.rd_x(0)
        self.rd_x(1)
        for t in range(3):
            qtok[(0, t)] = self.rd_q(0, t)
        for sidx in range(28):
            i = sidx // 4
            if sidx % 2 == 0:
                self.stamp(group=3)
            if sidx == 0:
                self.gate_write()
            if sidx == 4:
                self.push(lambda: self.a.need(self.tB1), 0)
                self.bias_init(vACC + 48, TB1)
            if sidx == 8:
                self.store_addr()
            for t in range(3):
                if t == 0:
                    self.a.need(*qtok[(sidx, 0)], *qtok[(sidx, 1)])
                acc = v(vACC + 16 * t, 16)
                e(f"{MFMA} {acc}, {v(vWR+12*(sidx&1)+4*t,4)}, {v(vX+4*sidx,4)}, {acc if sidx else 0}")
                if t == 0 and sidx % 4 == 3:
                    self.drain()
                    if sidx < 27:
                        self.sync(self.C, self.clast[i + 1], self.ctok[i + 1])
                        if i + 4 < 7:
                            self.add_chunk(i + 4)
                        if i + 4 == 6:
                            for k in range(7):
                                self.add_w1(0, k)
                    else:
                        self.sync(self.C, self.wlast[(0, 0)], self.wtok[(0, 0)])
                if sidx % 4 == 3 and sidx < 27 and t < 2:
                    self.rd_x(sidx + 1 + t)
                if sidx % 4 == 0 and t < 2:
                    self.rd_x(sidx + 2 + t)
                if sidx < 27:
                    qtok[(sidx + 1, t)] = self.rd_q(sidx + 1, t)
                elif t < 2:
                    self.rd_f(0, t)
                self.gap((12, 16, 12)[t] if sidx % 4 in (1, 2) else (4, 8, 12)[t])
        self.rd_f(1, 0)
        self.rd_f(1, 1)

    QPK = (vTMP + 8, vACC + 40, vACC + 32)

    def qkv_pack(self, t):
        pe = self.pe
        acc, dst = vACC + 16 * t, self.QPK[t]
        pe(f"s_cmp_gt_i32 s{sNQ}, {t}")
        pe(f"s_cselect_b32 s{sT1}, {QSCALE}, 1.0")
        for k in range(16):
            pe(f"v_mul_f32 v{acc+k}, s{sT1}, v{acc+k}")
        def store(half):
            pre = [f"s_add_u32 s{sCA}, s{sQS}, {t*64*2048}"] if half == 0 else ()
            self.C.append(Item(f"buffer_store_dwordx4 {v(dst+4*half,4)}, v{24+2*(t>>1)+half}, {s(S_WS,4)}, s{sCA} offen offset:{1024*half} sc1",
                               self.tQKV, pre=pre))
            self.lastS = self.C[-1]
        for k in range(8):
            pe(f"v_cvt_pk_bf16_f32 v{dst+k}, v{acc+2*k}, v{acc+2*k+1}")
            if k == 3:
                self.push(lambda: store(0), 0)
        pe(f"v_cndmask_b32 v{dst+6}, v{dst+6}, v{28+(t>>1)}, {s(sHI,2)}")
        pe(f"v_cndmask_b32 v{dst+7}, v{dst+7}, 0, {s(sHI,2)}")
        self.push(lambda: store(1), 0)

    def b_slot(self, p):
        return (RING - RED) + (p % 6) * 4096 if p % 6 < 3 else (p % 6 - 3) * 4096

    def b_dma(self, p):
        toks = self.btok[p] = []
        out = []
        pre, post, off = [], [], sBOFF
        if p >= 14:
            off = sBT
            pre = [f"s_mul_i32 s{sBT}, s{sW}, {112*896}"] + ([f"s_add_u32 s{sBT}, s{sBT}, {(p-14)*28*896}"] if p > 14 else [])
        elif p < 13:
            post = [f"s_add_u32 s{sBOFF}, s{sBOFF}, {32*896}", f"s_cmp_eq_u32 s{sBOFF}, s{sBEND}",
                    f"s_cselect_b32 s{sBT}, {448*896}, 0", f"s_sub_u32 s{sBOFF}, s{sBOFF}, s{sBT}"]
        for k in range(4):
            out.append(Item(f"buffer_load_dwordx4 v{vBD+k}, {s(S_W2 if p < 14 else S_WO,4)}, s{off} offen" + (f" offset:{1024*k}" if k else "") + NT(8) + " lds",
                            toks, pre=pre if k == 0 else (), post=post if k == 3 else (), m0=(sRING, self.b_slot(p)),
                            lat=OPT["miss"] if p < 4 or p >= 14 else None,
                            after=(lambda: self.btr[p - 6] if len(self.btr.get(p - 6, ())) == 8 else None) if k == 0 and p >= 6 else None))
        return out

    def b_read(self, p):
        toks = self.btr[p] = []
        out = []
        for ks in range(2):
            for t in range(2):
                out.append(Item([f"ds_read_b64_tr_b16 {a_(16*(p%16)+8*ks+4*t+2*h,2)}, v{vBT0+t} offset:{self.b_slot(p)+ks*2048+h*1024}" for h in range(2)],
                                toks, after=(lambda: self.btok[p] if len(self.btok[p]) == 4 else None) if ks + t == 0 else None))
        self.blast[p] = out[-1]
        return out

    def gelu_two(self, acc, soff, n, packed):
        pe = self.pe
        T = vTMP + 12
        U = [acc + 2 * n, acc + 2 * n + 2]
        R = [T, T + 2]
        if packed:
            for u, r in zip(U, R):
                pe(f"v_pk_mul_f32 {v(r,2)}, {v(u,2)}, {v(u,2)}")
                pe(f"v_pk_fma_f32 {v(r,2)}, {v(r,2)}, {s(sK2,2)}, {v(vK1,2)} op_sel_hi:[1,1,0]")
                pe(f"v_pk_mul_f32 {v(r,2)}, {v(r,2)}, {v(u,2)}")
            for k in range(4):
                pe(f"v_exp_f32 v{T+k}, v{T+k}")
            for r in R:
                pe(f"v_pk_add_f32 {v(r,2)}, {v(r,2)}, 1.0 op_sel_hi:[1,0]")
            for k in range(4):
                pe(f"v_rcp_f32 v{T+k}, v{T+k}")
            for u, r in zip(U, R):
                pe(f"v_pk_mul_f32 {v(r,2)}, {v(r,2)}, {v(u,2)}")
        else:
            u = U[0]
            for k in range(4):
                pe(f"v_mul_f32 v{T+k}, v{u+k}, v{u+k}")
                pe(f"v_fma_f32 v{T+k}, v{T+k}, s{sK2}, v{vK1}")
                pe(f"v_mul_f32 v{T+k}, v{T+k}, v{u+k}")
            for k in range(4):
                pe(f"v_exp_f32 v{T+k}, v{T+k}")
            for k in range(4):
                pe(f"v_add_f32 v{T+k}, 1.0, v{T+k}")
            for k in range(4):
                pe(f"v_rcp_f32 v{T+k}, v{T+k}")
            for k in range(4):
                pe(f"v_mul_f32 v{T+k}, v{T+k}, v{u+k}")
        for d in range(2):
            pe(f"v_cvt_pk_bf16_f32 v{acc+n+d}, v{T+2*d}, v{T+2*d+1}")
        if n % 4 == 2:
            fr = n // 4
            self.push(lambda: self.C.append(Item(
                f"buffer_store_dwordx4 {v(acc+4*fr,4)}, v{vLIN}, {s(S_WS,4)}, s{soff} offen offset:{fr*1024} sc1", self.tH)), 0)

    def ffn(self, unit):
        e = self.e
        acc0 = vACC + 48 if unit == 0 else vACC
        for sidx in range(28):
            g = 28 * unit + sidx
            if sidx % 4 == 0:
                self.stamp(group=2)
            self.hook(f"ffn{unit}_{sidx}")
            self.a.need(*self.ftok[g])
            for t in range(2):
                acc = v(acc0 + 16 * t, 16)
                e(f"{MFMA} {acc}, {v(vWR+8*(g%3)+4*t,4)}, {v(vX+4*sidx,4)}, {acc}")
                if t == 0 and sidx % 4 == 2:
                    if sidx < 26:
                        k = (unit, sidx // 4 + 1)
                        self.sync(self.C, self.wlast[k], self.wtok[k], drain_lds=False)
                    elif unit == 0:
                        self.drain("biasb")
                        self.sync(self.C, self.wlast[(1, 0)], self.wtok[(1, 0)])
                        e(f"v_add_u32 v{vTRF0}, {R_B-R_A}, v{vTRF0}")
                        e(f"v_add_u32 v{vTRF1}, {R_B-R_A}, v{vTRF1}")
                        self.add_w1(1, 6)
                        self.B.extend(self.b_dma(3) + self.b_dma(4) + self.b_dma(5))
                        for p in range(12):
                            self.B.extend(self.b_read(p) + self.b_dma(p + 6))
                        for p in range(12, 16):
                            self.B.extend(self.b_read(p))
                if g + 2 < 56:
                    self.rd_f(g + 2, t)
                self.gap((16, 12)[t])

    def phase1(self):
        e, pe, m = self.e, self.pe, self.m
        self.btok, self.btr, self.blast = {}, {}, {}
        self.tQKV, self.tH, tG = [], [], []
        self.qkv()
        self.stamp("qkv done")
        self.add_w1(1, 0)
        self.qkv_pack(2)
        self.push(lambda: self.add_w1(1, 1), 0)
        self.qkv_pack(1)
        self.qkv_pack(0)
        self.push(lambda: [self.add_w1(1, k) for k in range(2, 6)], 0)
        self.bias_init(vACC, TB1 + 128)
        pe(f"v_add_u32 v{vT}, {TAG_STEP}, v{vT}")
        self.mark("biasb")
        self.B.extend(self.b_dma(0) + self.b_dma(1) + self.b_dma(2))
        self.ffn(0)
        self.force(self.C, self.lastS)
        self.stamp("ffn a done")
        accA = vACC + 48
        pub1 = self.publish(sF1, self.tQKV, 6)
        pe(f"v_mul_f32 v{vGATE}, {fbits(-math.log2(math.e))}, v{accA}")
        pe(f"v_exp_f32 v{vGATE}, v{vGATE}")
        pe(f"v_and_b32 v{vGA}, 31, v{vL}")
        pe(f"v_add_f32 v{vGATE}, 1.0, v{vGATE}")
        pe(f"v_lshlrev_b32 v{vGA}, 2, v{vGA}")
        pe(f"v_rcp_f32 v{vGATE}, v{vGATE}")
        pe(f"v_mov_b32 v{vTMP}, {OOB}")
        pe(f"v_cndmask_b32 v{vTMP}, v{vGA}, v{vTMP}, {s(sHI,2)}")
        self.push(lambda: self.C.appendleft(Item(f"buffer_store_dword v{vGATE}, v{vTMP}, {s(S_WS,4)}, s{sGS} offen sc1", tG)), 0)
        self.push(lambda: self.publish(sF0P, tG, 1), 0)
        ga = deque(range(0, 16, 2))
        while ga and ga[0] < OPT["npairs"]:
            self.gelu_two(accA, sHA, ga.popleft(), False)
        self.hooks[f"ffn1_{OPT['pub1']}"] = lambda: self.force(self.P, pub1)
        self.hooks[f"ffn1_{OPT['poll1']}"] = lambda: self.poll_item(vF1A, 0)
        self.ffn(1)
        self.poll_check(vF1A, 0)
        e("s_barrier")
        self.att_loads()
        self.stamp("ffn b done")
        m(f"v_lshlrev_b32 v{vTMP+1}, 2, v{vL}")
        self.tB2 = []
        self.C.append(Item(f"buffer_load_dword v{vTMP+1}, {s(S_B2,4)}, s{sCB} offen lds", self.tB2,
                           pre=[f"s_lshl_b32 s{sCB}, s{sCT}, 7"], m0=(None, TB2), lat=OPT["miss"]))
        self.drain()
        for acc, soff, todo in ((accA, sHA, ga), (vACC, sHB, range(0, 16, 2))):
            for n in todo:
                self.gelu_two(acc, soff, n, True)
        self.drain()
        self.stamp("gelu done")

    def att_loads(self):
        self.tKV = []
        items = []
        for bb in range(3):
            for part in range(2):
                pre = ([f"s_add_u32 s{sCA}, s{sKOFF}, {16*64*2048+2048*bb}", f"s_cmp_lt_i32 s{sKV0}, {-bb}", f"s_cselect_b32 s{sCA}, {OOB}, s{sCA}"]
                       if part == 0 else [f"s_add_u32 s{sCA}, s{sCA}, {16*64*2048}"])
                for k in range(2):
                    items.append(Item(f"buffer_load_dwordx4 v{vLIN}, {s(S_WS,4)}, s{sCA} offen" + (" offset:1024" if k else "") + " sc1 lds",
                                      self.tKV, pre=pre if k == 0 else (), m0=(sMKV, KV + 24576 * part + 2048 * bb), lat=OPT["miss"]))
        for k in range(2):
            items.append(Item(f"buffer_load_dwordx4 {v(vQ+4*k,4)}, v{vLIN}, {s(S_WS,4)}, s{sQOFF} offen offset:{1024*k} sc1", self.tKV, lat=OPT["miss"]))
        self.C.extendleft(reversed(items))
        self.kvlast = items[-1]

    def rd_k(self, n):
        for k in range(2):
            self.m(f"ds_read_b128 {v(vKR+8*(n%3)+4*k,4)}, v{vKA} offset:{(n%9)*2048+k*1024}")

    def rd_v(self, i, st):
        for h in range(2):
            self.e(f"ds_read_b64_tr_b16 {v(vVR+4*st+2*h,2)}, v{vVA} offset:{i*2048+256*(2*st+h)}")

    def qk(self, i, k):
        S = v(vS + 16 * (i & 1), 16)
        C = S if k else v(vM0 if i == 0 else vM8 if i == 8 else vCD, 16)
        self.e(f"{MFMA} {S}, {v(vKR+8*(i%3)+4*k,4)}, {v(vQ+4*k,4)}, {C}")

    def patch(self, i, src):
        if not 2 <= i <= 7:
            return
        self.nlab += 1
        n = self.nlab
        self.e(f"s_cmp_eq_u32 s{sFIRST}, {i}")
        self.e(f"s_cbranch_scc1 L_pat{n}")
        self.a.label(f"L_patb{n}")
        self.tail += [f"L_pat{n}:", "s_nop 7"] + [f"v_mov_b32 v{vCD+k}, {src}" for k in range(16)] + ["s_nop 1", f"s_branch L_patb{n}"]

    def attention(self):
        e, pe, m = self.e, self.pe, self.m
        m(f"v_and_b32 v26, 31, v{vL}")
        m(f"v_lshrrev_b32 v27, 5, v{vL}")
        m(f"v_lshlrev_b32 v28, 2, v27")
        m(f"v_sub_u32 v26, v26, v28")
        m(f"s_cmp_gt_u32 s{sFIRST}, 0")
        m(f"s_cselect_b32 s{sT0}, {NINF}, 0")
        m(f"v_mov_b32 v28, s{sT0}")
        m(f"v_mov_b32 v29, {NINF}")
        m(f"s_cmp_gt_u32 s{sFIRST}, 1")
        m(f"s_cselect_b32 s{sT0}, {NINF}, 0")
        prs = (sM, sM3)
        for j0 in range(0, 16, 2):
            for d in range(2):
                jj = j0 + d
                m(f"v_cmp_le_i32 {s(prs[d],2)}, {(jj&3)+8*(jj>>2)}, v26")
            for d in range(2):
                m(f"v_mov_b32 v{vCD+j0+d}, s{sT0}")
            for d in range(2):
                jj = j0 + d
                m(f"v_cndmask_b32 v{vM8+jj}, v29, 0, {s(prs[d],2)}")
                m(f"v_cndmask_b32 v{vM0+jj}, v28, v29, {s(prs[d],2)}")
        m(f"s_lshl_b32 s{sT1}, s{sW}, 11")
        m(f"s_add_u32 s{sT1}, s{sT1}, {KV}")
        m(f"v_add_u32 v{vKA}, s{sT1}, v{vLIN}")
        m(f"v_bfe_u32 v28, v{vL}, 4, 1")
        m(f"v_xor_b32 v27, v27, v28")
        m(f"v_bfe_u32 v29, v{vL}, 2, 2")
        m(f"v_lshl_add_u32 v29, v27, 3, v29")
        m(f"v_and_b32 v27, 1, v{vL}")
        m(f"v_lshl_add_u32 v29, v27, 2, v29")
        m(f"v_lshlrev_b32 v29, 4, v29")
        m(f"v_lshl_add_u32 v29, v28, 10, v29")
        m(f"v_bfe_u32 v27, v{vL}, 1, 1")
        m(f"v_lshl_add_u32 v29, v27, 3, v29")
        m(f"s_add_u32 s{sT1}, s{sT1}, 24576")
        m(f"v_add_u32 v{vVA}, s{sT1}, v29")
        m(f"v_mov_b32 v{vMX}, {NINF}")
        m(f"v_mov_b32 v{vMX+1}, {NINF}")
        m(f"v_mov_b32 v{vF1A}, 0")
        m(f"v_add_u32 v{vA1H}, {112*1024}, v{vLIN}")
        m(f"v_add_u32 v{vA1O}, {32*1024}, v{vLIN}")
        self.sync(self.C, self.kvlast, self.tKV, drain_lds=False)
        self.stamp("kv in")
        self.poll_item(vF1A, f"s{sF0R}")
        pub2 = self.publish(sT3, self.tH, 8, pre=[f"s_add_u32 s{sT3}, s{sF1}, {F2-F1}"])
        self.rd_k(0)
        self.rd_k(1)
        for i in range(10):
            if i % 2 == 0:
                self.stamp(group=4)
            if i < 9:
                self.patch(i, "0")
                self.qk(i, 0)
                self.rd_k(i + 2)
                self.qk(i, 1)
            if i > 0:
                S = vS + 16 * ((i - 1) & 1)
                for k in range(8):
                    (m if k % 4 == 3 else e)(f"v_max3_f32 v{vMX+(k&1)}, v{S+2*k}, v{S+2*k+1}, v{vMX+(k&1)}")
        m(f"v_max_f32 v{vMX}, v{vMX}, v{vMX+1}")
        m(f"v_mov_b32 v{vMX+1}, v{vMX}")
        self.force(self.C)
        self.poll_check(vF1A, f"s{sF0R}")
        self.C.append(Item(f"buffer_load_dword v{vGATE}, v{vGA}, {s(S_WS,4)}, s{sGQ} offen sc1", lat=OPT["miss"]))
        m(f"v_permlane32_swap_b32 v{vMX}, v{vMX+1}")
        m(f"v_max_f32 v{vMX}, v{vMX}, v{vMX+1}")
        m(f"v_sub_f32 v{vMX}, 0, v{vMX}")
        for k in range(16):
            m(f"v_add_f32 v{vM0+k}, v{vM0+k}, v{vMX}")
        self.qk(0, 0)
        self.rd_k(2)
        self.qk(0, 1)
        m(f"v_add_f32 v{vMX+1}, s{sT0}, v{vMX}")
        for k in range(16):
            m(f"v_mov_b32 v{vCD+k}, v{vMX+1}")
        for k in range(16):
            m(f"v_add_f32 v{vM8+k}, v{vM8+k}, v{vMX}")
        self.stamp("pass 1 done")
        O = v(vO, 16)
        for i in range(9):
            S = vS + 16 * (i & 1)
            ex = lambda k: m(f"v_exp_f32 v{S+k}, v{S+k}")
            cv = lambda k: e(f"v_cvt_pk_bf16_f32 v{vP+k}, v{S+2*k}, v{S+2*k+1}")
            self.stamp(group=4)
            if i == OPT["poll2"]:
                self.poll_item(vF23A, f"s{sF2O}")
            if i == OPT["chk2"]:
                self.de_start()
            if i < 8:
                self.patch(i + 1, f"v{vMX}")
                self.qk(i + 1, 0)
            self.rd_v(i, 0)
            for k in range(3):
                ex(k)
            if i < 8:
                self.qk(i + 1, 1)
            self.rd_v(i, 1)
            for k in range(3, 9):
                ex(k)
            for k in range(4):
                cv(k)
            ex(9)
            ex(10)
            e(f"{MFMA} {O}, {v(vVR,4)}, {v(vP,4)}, {O if i else 0}")
            if i < 6:
                self.rd_k(i + 3)
            for k in range(11, 16):
                ex(k)
            for k in range(4, 8):
                cv(k)
            self.side()
            e(f"{MFMA} {O}, {v(vVR+4,4)}, {v(vP+4,4)}, {O}")
        self.a.need(*self.tB2)
        m(f"v_subrev_u32 v{vTBL}, {(TB1 - TB1 % 2048) - (TB2 - TB2 % 2048)}, v{vTBL}")
        m(f"s_cmp_eq_u32 s{sW}, 0")
        m(f"s_cselect_b32 s{sM}, 1.0, 0")
        m(f"s_mov_b32 s{sM+1}, s{sM}")
        self.bias_init(vCD, TB2, factor=s(sM, 2))
        for _ in range(12):
            self.q.popleft()[0]()
        m(f"v_mov_b32 v{vMX}, v{vO+12}")
        m(f"v_mov_b32 v{vMX+1}, v{vO+12}")
        m(f"v_permlane32_swap_b32 v{vMX}, v{vMX+1}")
        m(f"v_rcp_f32 v{vMX}, v{vMX+1}")
        m(f"v_mul_f32 v{vMX}, v{vMX}, v{vGATE}")
        for k in range(8):
            m(f"v_pk_mul_f32 {v(vO+2*k,2)}, {v(vO+2*k,2)}, {v(vMX,2)} op_sel_hi:[1,0]")
        self.tO = []
        for k in range(8):
            m(f"v_cvt_pk_bf16_f32 v{vP+k}, v{vO+2*k}, v{vO+2*k+1}")
            if k == 3:
                self.P.append(Item(f"buffer_store_dwordx4 {v(vP,4)}, v{vLIN}, {s(S_WS,4)}, s{sOS} offen sc1", self.tO))
        m(f"v_cndmask_b32 v{vP+6}, v{vP+6}, 0, {s(sHI,2)}")
        self.P.append(Item(f"buffer_store_dwordx4 {v(vP+4,4)}, v{vLIN}, {s(S_WS,4)}, s{sOS} offen offset:1024 sc1", self.tO))
        self.drain()
        self.force(self.P)
        self.stamp("attention done")

    def ar(self, p, k):
        return (64, 80, 104, 120)[p % 4] + 4 * k

    def a_load(self, p):
        pre = []
        if p == 14:
            pre = [f"s_lshl_b32 s{sAOFF}, s{sRB0}, 2", f"s_add_u32 s{sAOFF}, s{sAOFF}, s{sW}",
                   f"s_lshl_b32 s{sAOFF}, s{sAOFF}, 13", f"s_add_u32 s{sAOFF}, s{sAOFF}, {O_BASE}"]
        post = [f"s_add_u32 s{sAOFF}, s{sAOFF}, 2048"]
        if p < 13:
            post += [f"s_cmp_eq_u32 s{sAOFF}, s{sAEND}", f"s_cselect_b32 s{sCB}, {28*1024}, 0", f"s_sub_u32 s{sAOFF}, s{sAOFF}, s{sCB}"]
        for n in range(4):
            ks, rb = n >> 1, n & 1
            ad = vLIN if rb == 0 else (vA1H if p < 14 else vA1O)
            self.C.append(Item(f"buffer_load_dwordx4 {v(self.ar(p,n),4)}, v{ad}, {s(S_WS,4)}, s{sAOFF} offen offset:{1024*ks} sc1",
                               pre=pre if n == 0 else (), post=post if n == 3 else (), lat=OPT["miss"] if p < 2 or p in (14, 15) else None))
        self.alast[p] = self.C[-1]

    def de_start(self):
        e = self.e
        self.alast = {}
        self.nlab += 1
        n = self.nlab
        self.force(self.P)
        self.a.need(*[k for k, r in self.a.vm if f"v{vPOLL}" in r])
        e(f"s_cmp_ge_u32 s{sLOC}, 28")
        e(f"s_cbranch_scc1 L_nopoll{n}")
        self.poll_check(vF23A, f"s{sF2O}")
        self.a.label(f"L_nopoll{n}")
        for p in range(4):
            self.a_load(p)
        for rb in range(2):
            self.C.append(Item(f"buffer_load_dword v{vG+rb}, v{vGA}, {s(S_WS,4)}, s{sGD} offen offset:{128*rb} sc1", lat=OPT["miss"]))

    def de(self):
        e, pe, m = self.e, self.pe, self.m
        e(f"s_cmp_ge_u32 s{sLOC}, 28")
        e("s_cbranch_scc1 L_idle")
        self.publish(sF3P, self.tO, 2)
        vBI = vCD

        def mm(p, ks, qd):
            rb, t = qd >> 1, qd & 1
            acc = v(vAB + 16 * qd, 16)
            C = v(vBI + 16 * t, 16) if p == 0 and ks == 0 else acc
            e(f"{MFMA} {acc}, {a_(16*(p%16)+8*ks+4*t,4)}, {v(self.ar(p,2*ks+rb),4)}, {C}")

        def scale(qd, half):
            for k in range(8 * half, 8 * half + 8):
                e(f"v_mul_f32 v{vAB+16*qd+k}, v{vG+(qd>>1)}, v{vAB+16*qd+k}")

        for p in range(17):
            self.force(self.C, self.alast[p])
            self.force(self.B, self.blast[p])
            if p in (1, 2):
                self.B.extend(self.b_read(15 + p))
            if p == OPT["poll3"]:
                e(f"s_add_u32 s{sF2O}, s{sF2O}, {F3-F2}")
                self.poll_item(vF23A, f"s{sF2O}")
            if p == 11:
                for rb in range(2):
                    e(f"v_sub_f32 v{vG+rb}, 1.0, v{vG+rb}")
            if p in (13, 14):
                for n in range(8):
                    mm(p, n & 1, n >> 1)
                    k = n - 4 + 8 * (p - 13)
                    self.side()
                    if 0 <= k < 8:
                        scale(k >> 1, k & 1)
            else:
                for ks in range(2):
                    for qd in range(4):
                        mm(p, ks, qd)
                        self.side()
            if p + 4 < 18:
                if p + 4 == 14:
                    self.poll_check(vF23A, f"s{sF2O}")
                self.a_load(p + 4)
        self.force(self.C)
        self.force(self.B)
        self.stamp("pair 16 done")
        e(f"v_add_u32 v24, s{sRING}, v{vLIN}")
        for d in range(1, 4):
            e(f"s_sub_u32 s{sT0}, s{sW}, {d}")
            e(f"s_and_b32 s{sT0}, s{sT0}, 3")
            e(f"s_mul_i32 s{sT0}, s{sT0}, 12288")
            e(f"s_add_u32 s{sT0}, s{sT0}, {RED+(d-1)*4096}")
            e(f"v_add_u32 v{24+d}, s{sT0}, v{vLIN}")
        e(f"v_and_b32 v28, 31, v{vL}")
        e(f"v_mul_u32_u24 v28, 896, v28")
        e(f"v_lshrrev_b32 v29, 5, v{vL}")
        e(f"v_lshl_add_u32 v28, v29, 4, v28")
        self.a.need(*[k for k, _ in self.a.vm + self.a.lg])
        for w in range(4):
            clk = self.a.clk, self.a.mf_free, self.a.lds_free
            if w:
                self.a.label(f"L_wr{w}")
            if w < 3:
                e(f"s_cmp_lg_u32 s{sW}, {w}")
                e(f"s_cbranch_scc1 L_wr{w+1}")
            order = [(w + d) & 3 for d in (1, 2, 3, 4)]
            for n, qd in enumerate(order):
                mm(17, 0, qd)
                mm(17, 1, qd)
                if n >= 2:
                    for k in range(4):
                        e(f"ds_write_b128 v24, {v(vAB+16*order[n-2]+4*k,4)} offset:{(n-2)*4096+k*1024}")
            for k in range(4):
                e(f"ds_write_b128 v24, {v(vAB+16*order[2]+4*k,4)} offset:{2*4096+k*1024}")
            for k in range(8):
                e(f"v_mov_b64 {v(64+2*k,2)}, {v(vAB+16*w+2*k,2)}")
            e("s_waitcnt lgkmcnt(0)")
            if w < 3:
                e("s_branch L_wrdone")
                self.a.clk, self.a.mf_free, self.a.lds_free = clk
        self.a.label("L_wrdone")
        e("s_barrier")
        for d in range(1, 4):
            for k in range(4):
                e(f"ds_read_b128 {v(64+16*d+4*k,4)}, v{24+d} offset:{k*1024}")
        for d in range(1, 4):
            for k in range(8):
                e(f"v_pk_add_f32 {v(64+2*k,2)}, {v(64+2*k,2)}, {v(64+16*d+2*k,2)}")
        for k in range(8):
            e(f"v_cvt_pk_bf16_f32 v{32+k}, v{64+2*k}, v{64+2*k+1}")
        for hh in range(2):
            for d in range(2):
                e(f"v_permlane32_swap_b32 v{32+4*hh+d}, v{32+4*hh+2+d}")
            e(f"buffer_store_dwordx4 {v(32+4*hh,4)}, v28, {s(S_OUT,4)}, s{sOUT} offen offset:{32*hh}")
        self.stamp("end")
        self.write_stamps()
        e("s_endpgm")
        self.a.label("L_idle")
        e("s_waitcnt vmcnt(0)")
        e(self.pub_text(sF3P))
        e("s_cmp_lg_u32 s2, 248")
        e("s_cbranch_scc1 L_end")
        e(f"s_cmp_lg_u32 s{sW}, 0")
        e("s_cbranch_scc1 L_end")
        e(f"v_lshlrev_b32 v24, 7, v{vL}")
        e(f"s_mov_b32 s{sSPIN}, 0")
        self.a.label("L_ep")
        for k in range(16):
            e(f"s_mov_b32 s{sT0}, {F1+8192*k}")
            e(f"buffer_load_dword v{40+k}, v24, {s(S_WS,4)}, s{sT0} offen sc1")
        e(f"s_add_u32 s{sSPIN}, s{sSPIN}, 1")
        e("s_waitcnt vmcnt(0)")
        for k in range(16):
            e(f"v_xor_b32 v{40+k}, v{vT}, v{40+k}")
        for k in range(1, 16):
            e(f"v_or_b32 v40, v40, v{40+k}")
        e(f"v_cmp_ne_u32 vcc, 0, v40")
        e(f"s_cmp_gt_u32 s{sSPIN}, 0x8000")
        e("s_cbranch_scc1 L_epd")
        e("s_cbranch_vccnz L_ep")
        self.a.label("L_epd")
        e(f"s_mov_b32 s{sT0}, {E_OFF}")
        e(self.pub_text(sT0))

    def write_stamps(self):
        e = self.e
        if OPT["probe"]:
            e(f"s_sub_u32 s{sT0}, s{sP0+1}, s{sP0}")
            e(f"s_lshl_b32 s{sT0}, s{sT0}, 2")
            e(f"s_add_u32 s{sT0}, s{sT0}, 72000")
            self.a.label("L_probe")
            e(f"s_memtime {s(sM3,2)}")
            e("s_waitcnt lgkmcnt(0)")
            e(f"s_sub_u32 s{sT1}, s{sM3}, s{sP0}")
            e(f"s_cmp_lt_u32 s{sT1}, s{sT0}")
            e("s_cbranch_scc1 L_probe")
        if not OPT["stamps"]:
            return
        e(f"s_lshl_b32 s{sT0}, s2, 2")
        e(f"s_add_u32 s{sT0}, s{sT0}, s{sW}")
        e(f"s_lshl_b32 s{sT1}, s{sT0}, 7")
        e(f"s_add_u32 s{sT1}, s{sT1}, {ST_BASE}")
        e(f"s_mov_b32 s{sT2}, {self.nst}")
        e(f"v_lshlrev_b32 v40, 2, v{vL}")
        e(f"v_writelane_b32 v{vST}, s{sT2}, 31")
        e(f"v_cmp_gt_u32 vcc, 32, v{vL}")
        e(f"v_mov_b32 v41, {OOB}")
        e(f"v_cndmask_b32 v40, v41, v40, vcc")
        e(f"buffer_store_dword v{vST}, v40, {s(S_WS,4)}, s{sT1} offen")
        if OPT["dbg"]:
            e(f"v_readfirstlane_b32 s{sT1}, v{vST}")
            e(f"s_cmp_eq_u32 s{sT0}, {OPT['dbg']}")
            e(f"s_cselect_b32 s{sT0}, 0, {OOB}")
            e(f"s_mov_b32 s{S_DBG+2}, 256")
            e(f"s_mov_b32 s{S_DBG+3}, 0x20000")
            e(f"v_subrev_u32 v{vST}, s{sT1}, v{vST}")
            e(f"buffer_store_dword v{vST}, v40, {s(S_DBG,4)}, s{sT0} offen")

    def build(self):
        self.prologue()
        self.phase1()
        self.attention()
        self.de()
        self.a.label("L_end")
        self.e("s_endpgm")
        if OPT["strip"]:
            keep, pro = [], True
            for i in self.a.ins:
                if i.kind == "barrier":
                    pro = False
                drop = i.kind in ("mfma", "trans", "dsread", "dswrite") or (
                    not pro and i.kind == "valu" and any(r[0] == "v" and r != "vcc" and int(r[1:]) >= 30 for r in i.w) and "v40" not in i.w and "v41" not in i.w)
                if OPT["strip"] == 2 and i.kind == "vstore" and "x4" in i.mn:
                    i = Ins(i.text.replace("offen", "offen").replace(f"v{vLIN},", f"v{vL0},").replace("v24,", f"v{vL0},").replace("v25,", f"v{vL0},").replace("v26,", f"v{vL0},").replace("v27,", f"v{vL0},"))
                if not drop:
                    keep.append(i)
            self.a.ins = keep
        self.a.finalize()
        body = self.a.text() + "\n" + "\n".join(t if t.endswith(":") else "    " + t for t in self.tail) + "\nL_code_end:\n    s_endpgm\n"
        head = f"""; Fused gated mix: sliding-window attention branch + GELU FFN branch, one persistent launch.
; @launch grid=(256,1,1) block=(256,1,1) lds={LDS_SIZE}
.amdgcn_target "amdgcn-amd-amdhsa--gfx950"
.text
.globl {NAME}_kernel
.p2align 8
.type {NAME}_kernel,@function
{NAME}_kernel:
"""
        foot = f""".section .rodata,"a"
.p2align 6
.amdhsa_kernel {NAME}_kernel
  .amdhsa_next_free_vgpr 512
  .amdhsa_next_free_sgpr 102
  .amdhsa_accum_offset 256
  .amdhsa_group_segment_fixed_size 0
  .amdhsa_kernarg_size 96
  .amdhsa_user_sgpr_count 2
  .amdhsa_user_sgpr_kernarg_segment_ptr 1
  .amdhsa_system_sgpr_workgroup_id_x 1
  .amdhsa_float_denorm_mode_32 3
.end_amdhsa_kernel
"""
        return head + body + foot


if __name__ == "__main__":
    g = Gen()
    txt = g.build()
    out = sys.argv[1] if len(sys.argv) > 1 else f"cdna_kernels/{NAME}.s"
    open(out, "w").write(txt)
    kinds = {}
    for i in g.a.ins:
        kinds[i.kind] = kinds.get(i.kind, 0) + 1
    print(out, g.a.stats, kinds)
    if OPT["log"]:
        print("\n".join(g.a.log))
        print("model stalls", g.a.stall, "pipe busy", g.a.busy)
```

```python
import re

REG_RE = re.compile(r"^(-|abs\()?([vas])(\d+|\[(\d+):(\d+)\])\)?$")
TRANS = ("v_exp_f32", "v_log_f32", "v_rcp_f32", "v_rsq_f32", "v_sqrt_f32", "v_sin_f32", "v_cos_f32")


def regs_of(op):
    op = op.strip()
    if op == "vcc":
        return {"vcc"}
    if op in ("exec", "m0"):
        return {op}
    m = REG_RE.match(op)
    if not m:
        return set()
    k = m.group(2)
    if m.group(4) is not None:
        return {f"{k}{i}" for i in range(int(m.group(4)), int(m.group(5)) + 1)}
    return {f"{k}{int(m.group(3))}"}


class Ins:
    __slots__ = ("text", "mn", "kind", "w", "r", "a", "b", "c", "states", "skippable", "wide", "note")

    def __init__(self, text):
        self.text = text
        self.skippable = False
        self.note = ""
        t = text.split(";")[0].strip()
        self.w, self.r = set(), set()
        self.a = self.b = self.c = set()
        self.states = 1
        self.wide = False
        if t.endswith(":"):
            self.mn, self.kind, self.states = t, "label", 0
            return
        if t.startswith("."):
            self.mn, self.kind, self.states = t, "dir", 0
            return
        parts = t.split(None, 1)
        mn = parts[0]
        self.mn = mn
        rest = parts[1] if len(parts) > 1 else ""
        ops = [o.strip() for o in rest.split(",")] if rest else []
        mods = ""
        if ops:
            sp = ops[-1].split(None, 1)
            ops[-1] = sp[0]
            mods = sp[1] if len(sp) > 1 else ""
        R = [regs_of(o) for o in ops]
        base = re.sub(r"_e(32|64)$", "", mn)
        if mn.startswith("v_mfma"):
            self.kind = "mfma"
            self.w = R[0]
            self.a, self.b, self.c = R[1], R[2], R[3]
            self.r = R[1] | R[2] | R[3]
        elif mn.startswith("v_cmp"):
            self.kind = "valu"
            self.w = R[0]
            self.r = set().union(*R[1:])
        elif base in ("v_readfirstlane_b32", "v_readlane_b32"):
            self.kind = "valu"
            self.w = R[0]
            self.r = set().union(*R[1:])
        elif base.startswith("v_permlane"):
            self.kind = "valu"
            self.w = R[0] | R[1]
            self.r = R[0] | R[1]
        elif mn.startswith("v_"):
            self.kind = "trans" if base in TRANS else "valu"
            if base == "v_nop":
                return
            self.w = set(R[0])
            self.r = set().union(*R[1:]) if len(R) > 1 else set()
            if base.startswith(("v_fmac", "v_pk_fmac", "v_dot2c", "v_writelane")):
                self.r |= R[0]
            if base in ("v_add_co_u32", "v_sub_co_u32", "v_addc_co_u32"):
                self.w |= R[1]
        elif mn.startswith("buffer_load"):
            if re.search(r"\blds\b", mods):
                self.kind = "dma"
                self.r = R[0] | R[1] | R[2] | {"m0"}
            else:
                self.kind = "vload"
                self.w = R[0]
                self.r = R[1] | R[2] | R[3]
        elif mn.startswith("buffer_store"):
            self.kind = "vstore"
            self.r = R[0] | R[1] | R[2] | R[3]
            self.a = R[0]
            self.wide = mn.endswith(("x3", "x4"))
        elif mn.startswith("ds_read"):
            self.kind = "dsread"
            self.w = R[0]
            self.r = R[1]
        elif mn.startswith("ds_write"):
            self.kind = "dswrite"
            self.r = set().union(*R)
        elif mn == "s_waitcnt":
            self.kind = "wait"
        elif mn == "s_nop":
            self.kind = "nop"
            self.states = int(ops[0]) + 1
        elif mn == "s_barrier":
            self.kind = "barrier"
        elif mn.startswith(("s_branch", "s_cbranch")):
            self.kind = "branch"
            if "vcc" in mn:
                self.r = {"vcc"}
        elif mn in ("s_endpgm", "s_sleep", "s_setprio"):
            self.kind = "salu"
        elif mn.startswith(("s_load", "s_memtime", "s_memrealtime")):
            self.kind = "smem"
            self.w = R[0]
            self.r = set().union(*R[1:]) if len(R) > 1 else set()
        elif mn.startswith(("s_cmp", "s_bitcmp")):
            self.kind = "salu"
            self.r = set().union(*R)
        elif mn.startswith("s_"):
            self.kind = "salu"
            self.w = R[0]
            self.r = set().union(*R[1:]) if len(R) > 1 else set()
        else:
            raise ValueError("unknown instruction: " + text)


def _isv(s):
    return {x for x in s if x[0] in "va" and x != "vcc"}


def _iss(s):
    return {x for x in s if x == "vcc" or (x[0] == "s")}


def hazard(p, c):
    need = 0
    pv = p.kind in ("valu", "trans")
    cv = c.kind in ("valu", "trans")
    cmem = c.kind in ("vload", "vstore", "dma", "dsread", "dswrite")
    if pv:
        wv, ws = _isv(p.w), _iss(p.w)
        if c.kind == "mfma" and wv & c.r:
            need = max(need, 2)
        if cv and c.mn.startswith(("v_readfirstlane", "v_readlane")) and wv & c.r:
            need = max(need, 1)
        if cv and c.mn.startswith("v_permlane") and wv & c.r:
            need = max(need, 2)
        if p.kind == "trans" and (c.kind == "valu" or cmem) and wv & c.r:
            need = max(need, 1)
        if ws:
            if c.kind in ("vload", "vstore", "dma") and ws & c.r:
                need = max(need, 5)
            if cv and ws & c.r:
                need = max(need, 2)
            if c.kind in ("salu", "branch") and ws & c.r:
                need = max(need, 1)
    if p.kind == "mfma":
        if c.kind == "mfma":
            if p.w & (c.a | c.b):
                need = max(need, 12)
            if p.w & c.c and p.w != c.c:
                need = max(need, 10)
            if p.w & c.w and not (p.w == c.w and c.c == c.w):
                need = max(need, 10)
        elif cv or cmem:
            if p.w & (c.r | c.w):
                need = max(need, 12)
            if p.c & c.w:
                need = max(need, 7)
    if p.kind == "salu" and "m0" in p.w and c.kind == "dma":
        need = max(need, 1)
    if p.kind == "vstore" and p.wide and p.a & c.w:
        need = max(need, 2)
    return need


class Asm:
    def __init__(self):
        self.ins = []
        self.vm = []
        self.lg = []
        self.ntok = 0
        self.skip = False
        self.stats = {"vmwait": 0, "lgwait": 0}
        self.clk = 0
        self.mf_free = 0
        self.pipe_free = 0
        self.lds_free = 0
        self.allv = []
        self.done = {}
        self.next_lat = None
        self.stall = {}
        self.busy = 0
        self.idle = 0
        self.nvm = 0
        self.verbose = False
        self.log = []
        self.p_svc, self.p_st, self.p_lat, self.p_win = 72, 220, 560, 8
        self.p_stlat = 800

    def _st(self, kind, until, text):
        d = until - self.clk
        if d > 0:
            self.stall[kind] = self.stall.get(kind, 0) + d
            if d >= 120:
                self.log.append(f"   t={self.clk:6d} stall {d:5d} {kind:6s} {text[:100]}")
            self.clk = until

    def vm_free(self):
        return not self.allv or self.allv[-1][0] <= self.clk

    def est(self, toks):
        return max([self.done.get(k, 0) for k in toks if k is not None] or [0])

    def _model(self, i, tok):
        k = i.kind
        if k == "mfma":
            self.clk = max(self.clk, self.mf_free)
            self.mf_free = self.clk + 32
            self.clk += 8
        elif k == "trans":
            self.clk += 8
        elif k == "valu":
            if i.mn.startswith("v_pk"):
                self.clk = max(self.clk, self.mf_free + 12)
            self.clk += 4
        elif k in ("vload", "dma", "vstore"):
            wide = "x4" in i.mn
            store = k == "vstore"
            svc = (self.p_st if store else self.p_svc) if wide else (30 if store else 20)
            if "s[12:15]" in i.text:
                svc = self.p_svc * 4 // 3
            lat = self.next_lat or (self.p_stlat if store else self.p_lat)
            self.next_lat = None
            if self.allv:
                self._st("vissue", self.allv[-1][0], i.text)
            start = max(self.clk, self.pipe_free)
            big = [x for x in self.allv[-40:] if x[2]]
            if wide and len(big) >= self.p_win:
                start = max(start, big[-self.p_win][1])
            if start - self.pipe_free >= 100 and self.verbose:
                self.log.append(f"      pipe idle {start - self.pipe_free:5d} before t={start} {i.text[:70]}")
            self.idle += max(0, start - self.pipe_free)
            self.nvm += 1
            self.pipe_free = start + svc
            self.busy += svc
            comp = max(start + lat, (self.allv[-1][1] + (0 if store else svc)) if self.allv else 0)
            self.allv.append((start, comp, wide))
            self.done[tok] = comp
            self.clk += 8
        elif k in ("dsread", "dswrite"):
            svc = 16 if "b128" in i.mn or "read2" in i.mn else 8
            if k == "dswrite" and "b128" in i.mn:
                svc = 52
            self._st("lds", self.lds_free - 2 * svc, i.text)
            s0 = max(self.clk, self.lds_free)
            self.lds_free = s0 + svc
            self.done[tok] = s0 + svc + 56
            self.clk += 4
        elif k == "barrier":
            self.clk += 20
        elif k == "nop":
            self.clk += 4 * i.states
        elif k not in ("label", "dir", "wait"):
            self.clk += 4

    def _push(self, i):
        i.skippable = self.skip
        self.ins.append(i)

    def _wait(self, vm=None, lg=None):
        parts = []
        if vm is not None:
            vm = min(vm, 63)
            if vm < len(self.vm):
                self._st("vmwait", self.done[self.vm[len(self.vm) - vm - 1][0]], f"vmcnt({vm})")
                self.vm = self.vm[len(self.vm) - vm:] if vm else []
                parts.append(f"vmcnt({vm})")
                self.stats["vmwait"] += 1
        if lg is not None:
            lg = min(lg, 15)
            if lg < len(self.lg):
                self._st("lgwait", self.done[self.lg[len(self.lg) - lg - 1][0]], f"lgkmcnt({lg})")
                self.lg = self.lg[len(self.lg) - lg:] if lg else []
                parts.append(f"lgkmcnt({lg})")
                self.stats["lgwait"] += 1
        if parts:
            assert not self.skip, "wait inside a skippable region"
            last = self.ins[-1] if self.ins else None
            if last is not None and last.kind == "wait" and last.note == "auto":
                old = dict(re.findall(r"(vmcnt|lgkmcnt)\((\d+)\)", last.text))
                for k, v in re.findall(r"(vmcnt|lgkmcnt)\((\d+)\)", " ".join(parts)):
                    old[k] = min(int(v), int(old.get(k, 99)))
                last.text = "s_waitcnt " + " ".join(f"{k}({v})" for k, v in old.items())
                return
            w = Ins("s_waitcnt " + " ".join(parts))
            w.note = "auto"
            self._push(w)
            self.clk += 4

    def _after(self, q, pred):
        for n, e in enumerate(reversed(q)):
            if pred(e):
                return n
        return None

    def e(self, text):
        i = Ins(text)
        touch = i.r | i.w
        if touch and i.kind != "smem":
            self._wait(self._after(self.vm, lambda e: e[1] & touch), self._after(self.lg, lambda e: e[1] & touch))
        self._push(i)
        tok = None
        if i.kind in ("vload", "vstore", "dma"):
            assert not self.skip
            self.ntok += 1
            tok = self.ntok
            self.vm.append((tok, set(i.w)))
            assert len(self.vm) <= 63, "more than 63 vector-memory ops outstanding"
        elif i.kind in ("dsread", "dswrite"):
            assert not self.skip
            self.ntok += 1
            tok = self.ntok
            self.lg.append((tok, set(i.w)))
        elif i.kind == "wait":
            m = re.search(r"vmcnt\((\d+)\)", text)
            if m:
                n = int(m.group(1))
                if n < len(self.vm):
                    self._st("vmwait", self.done[self.vm[len(self.vm) - n - 1][0]], text)
                self.vm = self.vm[max(0, len(self.vm) - n):] if n else []
            m = re.search(r"lgkmcnt\((\d+)\)", text)
            if m:
                n = int(m.group(1))
                if n < len(self.lg):
                    self._st("lgwait", self.done[self.lg[len(self.lg) - n - 1][0]], text)
                self.lg = self.lg[max(0, len(self.lg) - n):] if n else []
            self.clk += 4
        self._model(i, tok)
        return tok

    def need(self, *toks):
        s = {t for t in toks if t is not None}
        self._wait(self._after(self.vm, lambda e: e[0] in s), self._after(self.lg, lambda e: e[0] in s))

    def label(self, name):
        self._push(Ins(name + ":"))

    def comment(self, t):
        i = Ins(".p2align 0")
        i.text = "; " + t
        self._push(i)

    def finalize(self):
        out = []
        nops = 0
        for c in self.ins:
            if c.kind in ("label", "dir"):
                out.append(c)
                continue
            need = 0
            for view in (0, 1):
                dist = 0
                for p in reversed(out):
                    if dist >= 20:
                        break
                    if view == 1 and p.skippable and not c.skippable:
                        continue
                    h = hazard(p, c) if p.kind not in ("label", "dir") else 0
                    if h > dist:
                        need = max(need, h - dist)
                    dist += p.states
            while need > 0:
                n = min(need, 16)
                np_ = Ins(f"s_nop {n-1}")
                np_.skippable = c.skippable
                np_.note = "haz"
                out.append(np_)
                nops += n
                need -= n
            out.append(c)
        self.stats["nop_states"] = nops
        self.ins = out
        return out

    def text(self):
        return "\n".join(("" if i.kind == "label" else "    ") + i.text for i in self.ins)


def v(a, n=1):
    return f"v{a}" if n == 1 else f"v[{a}:{a+n-1}]"


def a_(a, n=1):
    return f"a{a}" if n == 1 else f"a[{a}:{a+n-1}]"


def s(a, n=1):
    return f"s{a}" if n == 1 else f"s[{a}:{a+n-1}]"
```

```python
import math, struct, sys
from collections import deque
sys.path.insert(0, "tools")
from asmlib import Asm, Ins, v, a_, s

NAME = "gated_mix__sliding_block__dense_activation_gelu__prompt"
OPT = dict(stamps=0, dbg=0, npairs=6, probe=0, poll1=20, poll2=4, chk2=7, poll3=7, norot=0, log=0,
           miss=480, pub1=13, svc=64, st=160, lat=480, win=8, strip=0, rot1=3, rot2=2, cpf=1, nt=0, split=1, wpf=1, wsoff=0, rt=0, ldsq=24, pfa0=4, pfa1=14, pfb0=12, pfb1=28)
for arg in sys.argv[2:]:
    k, val = arg.split("=")
    assert k in OPT, k
    OPT[k] = int(val)


def fbits(x):
    return struct.unpack("<I", struct.pack("<f", x))[0]


QKV_BASE, H_BASE, O_BASE, G_BASE = 0, 0x600000, 0xD00000, 0xF00000
F_BASE, E_OFF, ST_BASE, WS_SIZE = 0xF10000, 0xF80000, 0xFA0000, 0x1000000
F1, F2, F3, F0 = F_BASE, F_BASE + 1024 * 128, F_BASE + 2048 * 128, F_BASE + 3072 * 128
OOB = 0x40000000
TAG_STEP = 0x6B43A9B7
R_A, R_Q, R_B, RING = 0, 57344, 106496, 57344
KV = R_B
XST = 106496
TB1, DUMMY, TB2, RED = 163328, 159744, 0, 8192
LDS_SIZE = 163840
S_CODE, S_X, S_WQ, S_W1, S_WS, S_W2, S_WO, S_OUT, S_B1, S_B2, S_GW, S_DBG = 4, 8, 12, 16, 20, 24, 28, 32, 36, 40, 44, 8
sMX = 3
sW, sC, sLIGHT, sUA, sUB, sJ, sRB0, sCT, sLOC, sRB, sQB, sFIRST = range(48, 60)
sT0, sT1, sT2, sT3 = 60, 61, 62, 63
sHI, sM, sG = 64, 66, 68
sCA, sCB, sBT = 75, 76, 77
sMQ, sMA, sMAS, sMB, sRING = 78, 79, 80, 81, 82
sBOFF, sBEND, sAOFF, sAEND, sKV0 = 83, 84, 85, 86, 87
sM3, sF2O, sSPIN = 88, 90, 91
sQS, sHA, sHB, sF1, sGS, sF0P = 0, 1, 4, 5, 6, 7
sKOFF, sMKV, sQOFF, sOS, sF3P, sF0R, sK2 = 36, 37, 38, 39, 44, 45, 46
sGQ, sGD, sNQ, sOUT = 92, 93, 94, 95
sPF1, sPF2, sSLA, sSLB = 96, 97, 98, 99
sP0 = 100
vL, vLIN, vT, vL0, vK1, vST = 0, 1, 2, 3, 4, 5
vTRQ, vTRF0, vTRF1 = 6, 7, 8
vW1A0, vW1A1, vPV = 9, 10, 11
vBD = 12
vBT0, vBT1 = 16, 17
vF1A, vF23A = 18, 19
vWQ = 20
vPOLL, vGA, vGATE = 20, 21, 22
vTBL = 23
vTMP = 24
vXD, vXR = 32, 36
vWR = 40
vACC = 64
vX = 144
vQ, vS, vCD, vM0, vM8, vO, vP, vMX = 96, 144, 176, 192, 208, 224, 240, 248
vKR, vVR, vKA, vVA = 40, 136, 6, 7
vAB, vBI, vA1H, vA1O, vG = 144, 208, 8, 9, 10

C_GELU = -2.0 * math.sqrt(2.0 / math.pi) * math.log2(math.e)
K1, K2 = fbits(C_GELU), fbits(C_GELU * 0.044715)
QSCALE = fbits(math.log2(math.e) / math.sqrt(28.0))
NINF = 0xFF800000
MFMA = "v_mfma_f32_32x32x16_bf16"


def NT(bit):
    return " nt" if OPT["nt"] & bit else ""


class Item:
    def __init__(self, text, sink=None, pre=(), post=(), m0=None, after=None, lat=None):
        self.text = [text] if isinstance(text, str) else text
        self.sink, self.pre, self.post, self.m0, self.after, self.lat = sink, pre, post, m0, after, lat
        self.vm = self.text[0].startswith("buffer")
        self.done = False


class Gen:
    def __init__(self):
        self.a = Asm()
        self.a.verbose = OPT['log'] > 1
        self.a.p_svc, self.a.p_st, self.a.p_lat, self.a.p_win = OPT['svc'], OPT['st'], OPT['lat'], OPT['win']
        self.q = deque()
        self.P, self.C, self.B = deque(), deque(), deque()
        self.tail = []
        self.nst = self.nlab = self.nmark = 0
        self.marks = set()
        self.m0 = None
        self.hooks = {}

    def e(self, t):
        return self.a.e(t)

    def emit_item(self, st):
        it = st.popleft()
        c0 = len(self.a.ins)
        if it.after:
            toks = it.after()
            assert toks is not None, "forced item whose producers are not emitted: " + it.text[0]
            self.a.need(*toks)
        for t in it.pre:
            self.e(t)
        if it.m0 and it.m0 != self.m0:
            reg, imm = it.m0[:2]
            self.e(f"s_mov_b32 m0, {imm}" if reg is None else f"s_add_u32 m0, s{reg}, {imm}" if imm else f"s_mov_b32 m0, s{reg}")
            self.m0 = it.m0
        for t in it.text:
            self.a.next_lat = it.lat
            k = self.e(t)
            if it.sink is not None:
                it.sink.append(k)
        for t in it.post:
            self.e(t)
        it.done = True
        return 4 * (len(self.a.ins) - c0) + (4 if it.vm else 0)

    def side(self):
        a = self.a
        for st in (self.P, self.C, self.B):
            if not st:
                continue
            it = st[0]
            if not (a.vm_free() if it.vm else a.lds_free - a.clk <= OPT['ldsq']):
                continue
            if it.after:
                toks = it.after()
                if toks is None or a.est(toks) > a.clk:
                    continue
            return self.emit_item(st)
        return 0

    def force(self, st, it=None):
        while st and (it is None or not it.done):
            self.emit_item(st)

    def m(self, t):
        k = self.e(t)
        if not t.startswith(("s_cmp", "s_cselect", "v_cmp")):
            self.side()
        return k

    def push(self, fn, cost=4):
        self.q.append((fn, cost))

    def pe(self, t):
        cost = 8 if Ins(t).kind == "trans" else 4
        if t.startswith("s_cselect"):
            fn, c = self.q.pop()
            assert getattr(fn, "scc", False), "s_cselect must follow its s_cmp directly: " + t
            g = lambda fn=fn, t=t: (fn(), self.e(t))
            g.scc = True
            self.q.append((g, c + cost))
            return
        f = lambda t=t: self.e(t)
        f.scc = t.startswith("s_cmp")
        self.q.append((f, cost))

    def gap(self, budget):
        budget -= self.side()
        while self.q and budget >= min(self.q[0][1], 8):
            fn, c = self.q.popleft()
            fn()
            budget -= c

    def drain(self, name=None):
        while (self.q if name is None else name not in self.marks):
            self.q.popleft()[0]()
            self.side()

    def mark(self, name):
        self.push(lambda: self.marks.add(name), 0)

    def hook(self, name):
        fn = self.hooks.pop(name, None)
        if fn:
            fn()

    def stamp(self, name="", group=1):
        if group == 1:
            self.a.log.append(f"{self.a.clk:6d} {name}  (pipe busy {self.a.busy} idle {self.a.idle} ops {self.a.nvm}; left C {len(self.C)} B {len(self.B)})")
        if (OPT["stamps"] == group or (OPT["stamps"] and self.nst == 0)) and self.nst < 16:
            clk = self.a.clk
            self.e(f"{'s_memrealtime' if OPT['rt'] else 's_memtime'} {s(sM3,2)}")
            self.e("s_waitcnt lgkmcnt(0)")
            self.e(f"v_writelane_b32 v{vST}, s{sM3}, {self.nst}")
            self.a.clk = clk
            self.nst += 1
        if group == 1:
            self.nmark += 1
            if OPT["probe"] == self.nmark:
                self.e(f"s_memtime {s(sM3,2)}")
                self.e("s_waitcnt lgkmcnt(0)")
                self.e(f"s_mov_b32 s{sP0+1}, s{sM3}")

    def poll_item(self, addr, soff):
        it = Item(f"buffer_load_dword {v(vPOLL)}, {v(addr)}, {s(S_WS,4)}, {soff} offen sc1", lat=OPT["miss"])
        self.P.append(it)
        return it

    def poll_check(self, addr, soff):
        self.force_p()
        self.await_([k for k, r in self.a.vm if f"v{vPOLL}" in r])
        self.nlab += 1
        n = self.nlab
        if OPT["stamps"]:
            self.e(f"s_mov_b32 s{sSPIN}, 0")
        self.e(f"v_cmp_ne_u32 vcc, {v(vT)}, {v(vPOLL)}")
        self.e(f"s_cbranch_vccnz L_slow{n}")
        self.a.label(f"L_back{n}")
        if OPT["stamps"]:
            self.npoll = getattr(self, "npoll", 0) + 1
            self.e(f"v_writelane_b32 v{vST}, s{sSPIN}, {15 + self.npoll}")
        self.tail += [f"L_slow{n}:", f"s_mov_b32 s{sSPIN}, 0", f"L_spin{n}:",
                      f"buffer_load_dword {v(vPOLL)}, {v(addr)}, {s(S_WS,4)}, {soff} offen sc1",
                      f"s_add_u32 s{sSPIN}, s{sSPIN}, 1",
                      "s_waitcnt vmcnt(0)",
                      f"v_cmp_ne_u32 vcc, {v(vT)}, {v(vPOLL)}",
                      f"s_cmp_gt_u32 s{sSPIN}, 0x20000",
                      f"s_cbranch_scc1 L_back{n}",
                      f"s_cbranch_vccnz L_spin{n}",
                      f"s_branch L_back{n}"]

    def pub_text(self, soff):
        return f"buffer_store_dword {v(vT)}, {v(vL0)}, {s(S_WS,4)}, s{soff} offen sc1"

    def publish(self, soff, toks, n, pre=()):
        it = Item(self.pub_text(soff), pre=pre, after=lambda: toks if len(toks) == n else None)
        self.P.append(it)
        return it

    def prologue(self):
        e, m = self.e, self.m
        e("s_cmp_ge_u32 s2, 256")
        e("s_cbranch_scc1 L_end")
        if OPT["probe"] or OPT["stamps"]:
            e(f"s_memtime {s(sP0,2)}")
        if OPT["stamps"]:
            e("s_memrealtime s[88:89]")
        def kargs(base):
            for srd, off in ((S_X, 0), (S_WQ, 8), (S_WS, 88), (S_GW, 64), (S_B1, 40), (S_W1, 32), (S_W2, 48), (S_WO, 16), (S_B2, 56), (S_OUT, 72)):
                e(f"s_load_dwordx2 {s(srd,2)}, {base}, {off}")
        if OPT["probe"] == 102:
            e("s_mov_b64 s[98:99], s[0:1]")
        else:
            kargs("s[0:1]")
        if OPT["probe"] == 101:
            e("s_waitcnt lgkmcnt(0)")
            e(f"s_memtime {s(sM3,2)}")
            e("s_waitcnt lgkmcnt(0)")
            e(f"s_mov_b32 s{sP0+1}, s{sM3}")
        e(f"s_getpc_b64 {s(S_CODE,2)}")
        self.a.label("L_pc")
        e(f"s_lshr_b32 s{sLOC}, s2, 3")
        e(f"v_lshrrev_b32 v1, 6, v0")
        e(f"v_and_b32 v{vL}, 63, v0")
        e(f"s_and_b32 s{sT0}, s{sLOC}, 7")
        e(f"v_readfirstlane_b32 s{sW}, v1")
        e(f"s_mov_b32 s{S_CODE+2}, L_code_end-L_pc")
        e(f"s_mov_b32 s{S_CODE+3}, 0x20000")
        e(f"v_and_b32 v24, 7, v{vL}")
        e(f"v_lshl_add_u32 v24, v1, 3, v24")
        e(f"v_lshlrev_b32 v24, 7, v24")
        e(f"s_lshl_b32 s{sT1}, s{sT0}, 12")
        if OPT["cpf"]:
            e(f"buffer_load_dword v250, v24, {s(S_CODE,4)}, 0 offen")
        e(f"buffer_load_dword v251, v24, {s(S_CODE,4)}, s{sT1} offen")
        e(f"s_lshr_b32 s{sT1}, s{sLOC}, 3")
        e(f"s_bfe_u32 s{sRB}, s2, 0x20001")
        e(f"s_lshl_b32 s{sRB}, s{sRB}, 2")
        e(f"s_add_u32 s{sRB}, s{sRB}, s{sT1}")
        e(f"s_and_b32 s{sC}, s2, 1")
        e(f"s_lshl_b32 s{sC}, s{sC}, 3")
        e(f"s_add_u32 s{sC}, s{sC}, s{sT0}")
        e(f"s_lshl_b32 s{sT1}, s{sT1}, 1")
        e(f"s_add_u32 s{sT0}, s{sT0}, s{sT1}")
        e(f"s_sub_u32 s{sT1}, s{sT0}, 7")
        e(f"s_cmp_ge_u32 s{sT0}, 7")
        e(f"s_cselect_b32 s{sG}, s{sT1}, s{sT0}")
        if OPT["rot1"] == 3:
            e(f"s_bfe_u32 s{sT0}, s2, 0x20001")
            e(f"s_add_u32 s{sT0}, s{sT0}, s{sG}")
            e(f"s_sub_u32 s{sT1}, s{sT0}, 7")
            e(f"s_cmp_ge_u32 s{sT0}, 7")
            e(f"s_cselect_b32 s{sG}, s{sT1}, s{sT0}")
        if OPT["rot1"] == 0:
            e(f"s_mov_b32 s{sG}, 0")
        if OPT["rot1"] == 2:
            e(f"s_and_b32 s{sT0}, s2, 7")
            e(f"s_cmp_eq_u32 s{sT0}, 7")
            e(f"s_cselect_b32 s{sG}, 0, s{sT0}")
        e(f"s_lshl_b32 s{sRB}, s{sRB}, 2")
        e(f"s_add_u32 s{sRB}, s{sRB}, s{sW}")
        for srd, size in ((S_X, 2048 * 896), (S_WQ, 448 * 2688)):
            e(f"s_mov_b32 s{srd+2}, {size}")
            e(f"s_mov_b32 s{srd+3}, 0x20000")
        e(f"v_lshrrev_b32 v24, 3, v{vL}")
        e(f"s_lshl_b32 s{sT0}, s{sRB}, 5")
        e(f"v_add_u32 v24, s{sT0}, v24")
        e(f"v_mul_u32_u24 v24, 896, v24")
        e(f"v_lshrrev_b32 v26, 4, v{vL}")
        e(f"v_and_b32 v27, 7, v{vL}")
        e(f"v_xor_b32 v26, v26, v27")
        e(f"v_lshl_add_u32 v{vXD}, v26, 4, v24")
        e(f"v_xor_b32 v{vXD+1}, 64, v{vXD}")
        e(f"v_add_u32 v{vXD+2}, {2*(7168-1024)}, v{vXD}")
        e(f"v_add_u32 v{vXD+3}, {3*(7168-1024)}, v{vXD+1}")
        e(f"v_add_u32 v{vXD+1}, {7168-1024}, v{vXD+1}")
        e(f"s_mul_i32 s{sMX}, s{sW}, 12288")
        e(f"s_add_u32 s{sRING}, s{sMX}, {RED}")
        e(f"s_add_u32 s{sMX}, s{sMX}, {XST}")
        e(f"s_mul_i32 s{sT0}, s{sC}, 168")
        e(f"s_and_b32 s{sT0}, s{sT0}, 0xfffffff0")
        e(f"s_mul_i32 s{sT1}, s{sW}, {16*2688}")
        e(f"s_add_u32 s{sT0}, s{sT0}, s{sT1}")
        for i in range(3):
            e(f"v_add_u32 v24, {64*i}, v{vL}")
            e(f"v_mul_u32_u24 v26, 171, v24")
            e(f"v_lshrrev_b32 v26, 11, v26")
            e(f"v_mul_u32_u24 v27, 12, v26")
            e(f"v_sub_u32 v24, v24, v27")
            e(f"v_min_u32 v24, 10, v24")
            e(f"v_mul_u32_u24 v26, 2688, v26")
            e(f"v_lshl_add_u32 v24, v24, 4, v26")
            e(f"v_add_u32 v{vWQ+i}, s{sT0}, v24")
            if i < 2:
                e(f"s_sub_u32 s{sT0}, s{sT0}, 1024")
        e(f"s_mul_i32 s{sMQ}, s{sW}, {16*192}")
        e(f"s_add_u32 s{sMQ}, s{sMQ}, {R_Q}")
        for i in range(1, 7):
            e(f"s_add_u32 s{sT0}, s{sG+i-1}, 1")
            e(f"s_cmp_eq_u32 s{sT0}, 7")
            e(f"s_cselect_b32 s{sG+i}, 0, s{sT0}")
        for srd, size in ((S_WS, WS_SIZE), (S_GW, 896), (S_B1, 3584), (S_W1, 448 * 3584), (S_B2, 896), (S_OUT, 2048 * 896)):
            e(f"s_mov_b32 s{srd+2}, {size}")
            e(f"s_mov_b32 s{srd+3}, 0x20000")
        e(f"s_lshr_b32 s{sLIGHT}, 0x1248, s{sC}")
        e(f"s_and_b32 s{sLIGHT}, s{sLIGHT}, 1")
        e(f"s_bfm_b32 s{sT0}, s{sC}, 0")
        e(f"s_and_b32 s{sT0}, s{sT0}, 0x1248")
        e(f"s_bcnt1_i32_b32 s{sT0}, s{sT0}")
        e(f"s_lshl_b32 s{sUA}, s{sC}, 1")
        e(f"s_sub_u32 s{sUA}, s{sUA}, s{sT0}")
        e(f"s_add_u32 s{sUB}, s{sUA}, 1")
        e(f"s_sub_u32 s{sUB}, s{sUB}, s{sLIGHT}")
        e(f"s_lshl_b32 s{sT0}, s{sW}, 6")
        e(f"v_add_u32 v26, s{sT0}, v{vL}")
        e(f"s_lshl_b32 s{sT1}, s{sG}, 6")
        for h in range(2):
            e(f"v_add_u32 v27, s{sT1}, v26")
            if h:
                e(f"v_add_u32 v27, 256, v27")
            e(f"v_subrev_u32 v28, 448, v27")
            e(f"v_min_u32 v27, v27, v28")
            e(f"v_lshlrev_b32 v{42+h}, 1, v27")
        e(f"s_lshl_b32 s{sT0}, s{sUA}, 7")
        e(f"s_cmp_eq_u32 s{sLIGHT}, 1")
        e(f"s_cselect_b32 s{sT0}, {OOB}, s{sT0}")
        e(f"s_lshl_b32 s{sT1}, s{sUB}, 7")
        e(f"s_sub_u32 s{sT1}, s{sT1}, 128")
        e(f"s_mov_b32 s{sHI}, 0")
        e(f"s_mov_b32 s{sHI+1}, -1")
        e(f"v_mov_b32 v27, s{sT0}")
        e(f"v_mov_b32 v28, s{sT1}")
        e(f"v_cndmask_b32 v27, v27, v28, {s(sHI,2)}")
        e(f"v_lshl_add_u32 v44, v{vL}, 2, v27")
        e(f"v_mov_b32 v45, {E_OFF}")
        m(f"v_lshlrev_b32 v{vLIN}, 4, v{vL}")
        m(f"v_bfe_u32 v24, v{vL}, 2, 2")
        m(f"v_lshrrev_b32 v27, 5, v{vL}")
        m(f"v_bfe_u32 v28, v{vL}, 4, 1")
        m(f"v_and_b32 v29, 3, v{vL}")
        m(f"v_lshlrev_b32 v29, 3, v29")
        m(f"v_lshl_add_u32 v29, v28, 5, v29")
        m(f"v_lshl_add_u32 v40, v27, 3, v24")
        m(f"v_mul_u32_u24 v41, 192, v40")
        m(f"s_and_b32 s{sT0}, s{sC}, 1")
        m(f"s_lshl_b32 s{sT0}, s{sT0}, 3")
        m(f"s_add_u32 s{sT0}, s{sT0}, {R_Q}")
        m(f"v_add3_u32 v{vTRQ}, v41, v29, s{sT0}")
        m(f"v_lshrrev_b32 v41, 1, v24")
        m(f"v_lshl_add_u32 v29, v41, 6, v29")
        m(f"v_lshl_add_u32 v{vTRF0}, v40, 7, v29")
        m(f"v_xor_b32 v{vTRF1}, 64, v{vTRF0}")
        m(f"v_lshl_add_u32 v40, v27, 2, v24")
        m(f"v_lshl_add_u32 v40, v40, 7, v29")
        m(f"v_add_u32 v{vBT0}, s{sRING}, v40")
        m(f"v_xor_b32 v{vBT1}, 64, v{vBT0}")
        m(f"v_and_b32 v40, 31, v{vL}")
        m(f"v_bfe_u32 v41, v{vL}, 1, 3")
        m(f"v_xor_b32 v41, v41, v27")
        m(f"v_lshlrev_b32 v41, 4, v41")
        m(f"v_lshl_add_u32 v40, v40, 7, v41")
        m(f"v_add_u32 v{vXR}, s{sMX}, v40")
        for k in range(1, 4):
            m(f"v_xor_b32 v{vXR+k}, {32*k}, v{vXR}")
        m(f"v_lshlrev_b32 v{vTBL}, 3, v27")
        m(f"v_add_u32 v{vTBL}, {TB1 - TB1 % 2048}, v{vTBL}")
        m(f"v_and_b32 v40, 3, v{vL}")
        m(f"v_lshl_add_u32 v40, v27, 2, v40")
        m(f"v_bfe_u32 v41, v{vL}, 2, 3")
        m(f"v_lshl_add_u32 v40, v41, 3, v40")
        m(f"v_lshlrev_b32 v{vPV}, 4, v40")
        m(f"v_cmp_eq_u32 vcc, 0, v{vL}")
        m(f"v_mov_b32 v40, {OOB}")
        m(f"v_mov_b32 v{vK1}, {K1}")
        m(f"v_cndmask_b32 v{vL0}, v40, 0, vcc")
        e(f"s_lshl_b32 s{sT0}, s2, 2")
        e(f"s_add_u32 s{sT0}, s{sT0}, s{sW}")
        e(f"s_mul_i32 s{sT0}, s{sT0}, 49")
        e(f"s_lshr_b32 s{sPF1}, s{sT0}, 2")
        e(f"s_lshl_b32 s{sPF1}, s{sPF1}, 7")
        e(f"s_lshr_b32 s{sPF2}, s{sT0}, 4")
        e(f"s_lshl_b32 s{sPF2}, s{sPF2}, 7")
        e(f"s_mul_i32 s{sSLA}, s2, {OPT['pfa1'] - OPT['pfa0']}")
        e(f"s_lshr_b32 s{sSLA}, s{sSLA}, 8")
        e(f"s_mul_i32 s{sSLB}, s2, {OPT['pfb1'] - OPT['pfb0']}")
        e(f"s_lshr_b32 s{sSLB}, s{sSLB}, 8")
        for srd, size in ((S_W2, 1792 * 896), (S_WO, 448 * 896)):
            e(f"s_mov_b32 s{srd+2}, {size}")
            e(f"s_mov_b32 s{srd+3}, 0x20000")
        if not OPT["split"]:
            self.setup_later()
        if OPT["probe"] == 102:
            e("s_waitcnt lgkmcnt(0)")
            e(f"s_memtime {s(sM3,2)}")
            e("s_waitcnt lgkmcnt(0)")
            e(f"s_mov_b32 s{sP0+1}, s{sM3}")
            kargs("s[98:99]")
        e("s_waitcnt lgkmcnt(0)")
        self.a.clk = self.a.pipe_free = 0
        self.a.allv = []
        self.a.done = {k: 0 for k in self.a.done}
        if OPT["wsoff"]:
            e(f"s_add_u32 s{S_WS}, s{S_WS}, {OPT['wsoff'] << 20}")
            e(f"s_addc_u32 s{S_WS+1}, s{S_WS+1}, 0")
        if OPT["stamps"]:
            e(f"v_writelane_b32 v{vST}, s88, 29")
        self.stamp("kernarg")
        self.ctok, self.wtok, self.xrd, self.ftok = {}, {}, {}, {}
        self.add_chunk(0)
        self.force(self.C)
        self.a.next_lat = OPT["miss"]
        e(f"buffer_load_dword v{vT}, v45, {s(S_WS,4)}, 0 offen sc1")
        for h in range(2):
            e(f"buffer_load_ushort v{30+h}, v{42+h}, {s(S_GW,4)}, 0 offen")
        e(f"s_mov_b32 m0, {TB1}")
        self.m0 = None
        self.tB1 = e(f"buffer_load_dword v44, {s(S_B1,4)}, 0 offen lds")
        self.add_chunk(1)
        self.add_chunk(2)
        if OPT["split"]:
            self.setup_later()
        m(f"s_lshl_b32 s{sT1}, s{sQB}, 4")
        m(f"s_add_u32 s{sT1}, s{sT1}, s{sJ}")
        m(f"s_lshl_b32 s{sF3P}, s{sT1}, 7")
        m(f"s_add_u32 s{sF3P}, s{sF3P}, {F3}")
        m(f"s_lshl_b32 s{sOS}, s{sT1}, 11")
        m(f"s_add_u32 s{sOS}, s{sOS}, {O_BASE}")
        m(f"s_lshl_b32 s{sT0}, s{sJ}, 6")
        m(f"s_add_u32 s{sKOFF}, s{sT0}, s{sKV0}")
        m(f"s_lshl_b32 s{sKOFF}, s{sKOFF}, 11")
        m(f"s_add_u32 s{sQOFF}, s{sT0}, s{sQB}")
        m(f"s_lshl_b32 s{sQOFF}, s{sQOFF}, 11")
        m(f"s_mul_i32 s{sMKV}, s{sW}, 6144")
        m(f"s_lshl_b32 s{sT0}, s{sQB}, 7")
        m(f"s_add_u32 s{sF0R}, s{sT0}, {F0}")
        m(f"s_add_u32 s{sGQ}, s{sT0}, {G_BASE}")
        m(f"s_mov_b32 s{sK2}, {K2}")
        m(f"s_mov_b32 s{sK2+1}, {K2}")

    def setup_later(self):
        m = self.m
        m(f"s_and_b32 s{sT0}, s2, 7")
        m(f"s_and_b32 s{sT1}, s{sLOC}, 1")
        m(f"s_lshl_b32 s{sJ}, s{sT0}, 1")
        m(f"s_add_u32 s{sJ}, s{sJ}, s{sT1}")
        m(f"s_mul_i32 s{sT1}, s{sLOC}, 37")
        m(f"s_lshr_b32 s{sT1}, s{sT1}, 8")
        m(f"s_mul_i32 s{sCT}, s{sT1}, 7")
        m(f"s_sub_u32 s{sCT}, s{sLOC}, s{sCT}")
        m(f"s_lshl_b32 s{sRB0}, s{sT0}, 2")
        m(f"s_add_u32 s{sRB0}, s{sRB0}, s{sT1}")
        m(f"s_lshl_b32 s{sRB0}, s{sRB0}, 1")
        m(f"s_lshl_b32 s{sT1}, s{sT1}, 2")
        m(f"s_lshr_b32 s{sT1}, 0xa370, s{sT1}")
        m(f"s_and_b32 s{sT1}, s{sT1}, 15")
        m(f"s_lshl_b32 s{sT3}, s{sCT}, 1")
        m(f"s_add_u32 s{sT3}, s{sT3}, s{sT1}")
        m(f"s_sub_u32 s{sT1}, s{sT3}, 14")
        m(f"s_cmp_ge_u32 s{sT3}, 14")
        m(f"s_cselect_b32 s{sT3}, s{sT1}, s{sT3}")
        if OPT["rot2"] == 0:
            m(f"s_mov_b32 s{sT3}, 0")
        if OPT["rot2"] == 2:
            m(f"s_and_b32 s{sT3}, s2, 7")
            m(f"s_mul_i32 s{sT3}, s{sT3}, 7")
            m(f"s_lshr_b32 s{sT3}, s{sT3}, 2")
        if OPT["rot2"] == 3:
            m(f"s_lshl_b32 s{sT3}, s{sCT}, 1")
        m(f"s_mul_i32 s{sBEND}, s{sW}, {448*896}")
        m(f"s_mul_i32 s{sBOFF}, s{sT3}, {32*896}")
        m(f"s_add_u32 s{sBOFF}, s{sBOFF}, s{sBEND}")
        m(f"s_add_u32 s{sBEND}, s{sBEND}, {448*896}")
        m(f"s_mul_i32 s{sAEND}, s{sRB0}, 112")
        m(f"s_mul_i32 s{sT0}, s{sW}, 28")
        m(f"s_add_u32 s{sAEND}, s{sAEND}, s{sT0}")
        m(f"s_lshl_b32 s{sAEND}, s{sAEND}, 10")
        m(f"s_add_u32 s{sAEND}, s{sAEND}, {H_BASE}")
        m(f"s_lshl_b32 s{sAOFF}, s{sT3}, 11")
        m(f"s_add_u32 s{sAOFF}, s{sAOFF}, s{sAEND}")
        m(f"s_add_u32 s{sAEND}, s{sAEND}, {28*1024}")
        m(f"s_lshl_b32 s{sGD}, s{sRB0}, 7")
        m(f"s_add_u32 s{sGD}, s{sGD}, {G_BASE}")
        m(f"s_cmp_lt_u32 s{sLOC}, 28")
        m(f"s_cselect_b32 s{sAOFF}, s{sAOFF}, {OOB}")
        m(f"s_cselect_b32 s{sGD}, s{sGD}, {OOB}")
        m(f"s_lshl_b32 s{sF2O}, s{sRB0}, 11")
        m(f"s_add_u32 s{sF2O}, s{sF2O}, {F2}")
        m(f"v_lshrrev_b32 v24, 3, v{vL}")
        m(f"v_lshlrev_b32 v28, 2, v28")
        m(f"v_and_b32 v29, 7, v{vL}")
        m(f"v_xor_b32 v28, v28, v29")
        m(f"v_lshlrev_b32 v28, 4, v28")
        m(f"v_mul_u32_u24 v29, 3584, v24")
        m(f"s_mul_i32 s{sT0}, s{sW}, {16*3584}")
        m(f"v_add3_u32 v{vW1A0}, v29, v28, s{sT0}")
        m(f"v_add_u32 v{vW1A1}, {8*3584-1024}, v{vW1A0}")
        m(f"v_mul_u32_u24 v29, 896, v24")
        m(f"s_lshl_b32 s{sT0}, s{sCT}, 7")
        m(f"v_add3_u32 v{vBD}, v29, v28, s{sT0}")
        for k in range(1, 4):
            m(f"v_add_u32 v{vBD+k}, {k*(7168-1024)}, v{vBD}")
        m(f"s_lshl_b32 s{sMB}, s{sW}, 11")
        m(f"s_sub_u32 s{sMA}, s{sMB}, {64*128 - R_A}")
        m(f"s_add_u32 s{sMB}, s{sMB}, {R_B}")
        m(f"s_mul_i32 s{sT0}, s{sC}, 3")
        m(f"s_sub_u32 s{sNQ}, 16, s{sT0}")
        m(f"s_lshl_b32 s{sT0}, s{sT0}, 6")
        m(f"s_add_u32 s{sT0}, s{sT0}, s{sRB}")
        m(f"s_lshl_b32 s{sQS}, s{sT0}, 11")
        m(f"s_mul_i32 s{sT1}, s{sRB}, 28")
        m(f"s_add_u32 s{sT0}, s{sT1}, s{sUB}")
        m(f"s_lshl_b32 s{sT0}, s{sT0}, 12")
        m(f"s_add_u32 s{sHB}, s{sT0}, {H_BASE}")
        m(f"s_sub_u32 s{sHA}, s{sHB}, 4096")
        m(f"s_lshl_b32 s{sUA}, s{sUA}, 7")
        m(f"s_lshl_b32 s{sUB}, s{sUB}, 7")
        m(f"s_cmp_eq_u32 s{sLIGHT}, 1")
        m(f"s_cselect_b32 s{sHA}, {OOB}, s{sHA}")
        m(f"s_cselect_b32 s{sUA}, {OOB}, s{sUA}")
        m(f"s_cselect_b32 s{sMA}, {DUMMY}, s{sMA}")
        m(f"s_cselect_b32 s{sMAS}, 0, {64*128}")
        m(f"s_lshl_b32 s{sT0}, s{sRB}, 4")
        m(f"s_add_u32 s{sT0}, s{sT0}, s{sC}")
        m(f"s_lshl_b32 s{sT0}, s{sT0}, 7")
        m(f"s_add_u32 s{sF1}, s{sT0}, {F1}")
        m(f"s_lshl_b32 s{sT0}, s{sRB}, 7")
        m(f"s_add_u32 s{sGS}, s{sT0}, {G_BASE}")
        m(f"s_add_u32 s{sF0P}, s{sT0}, {F0}")
        m(f"s_cmp_eq_u32 s{sC}, 3")
        m(f"s_cselect_b32 s{sGS}, s{sGS}, {OOB}")
        m(f"s_cselect_b32 s{sF0P}, s{sF0P}, {OOB}")
        m(f"s_lshr_b32 s{sT0}, s{sLOC}, 1")
        m(f"s_lshl_b32 s{sT0}, s{sT0}, 2")
        m(f"s_add_u32 s{sQB}, s{sT0}, s{sW}")
        m(f"s_sub_u32 s{sFIRST}, 8, s{sQB}")
        m(f"s_max_i32 s{sFIRST}, s{sFIRST}, 0")
        m(f"s_mul_i32 s{sT1}, s{sW}, 3")
        m(f"s_add_u32 s{sT0}, s{sT0}, s{sT1}")
        m(f"s_sub_u32 s{sKV0}, s{sT0}, 8")
        m(f"s_mul_i32 s{sT2}, s{sJ}, 43")
        m(f"s_lshr_b32 s{sT2}, s{sT2}, 7")
        m(f"s_lshl_b32 s{sT1}, s{sQB}, 4")
        m(f"s_add_u32 s{sT2}, s{sT1}, s{sT2}")
        m(f"v_mov_b32 v{vF1A}, s{sT2}")
        for part, add in ((0, 16), (1, 32)):
            m(f"s_add_u32 s{sT2}, s{sJ}, {add}")
            m(f"s_mul_i32 s{sT2}, s{sT2}, 43")
            m(f"s_lshr_b32 s{sT2}, s{sT2}, 7")
            m(f"v_subrev_u32 v40, {3*part}, v{vL}")
            m(f"v_add_u32 v41, s{sKV0}, v40")
            m(f"v_cmp_gt_u32 {s(sM,2)}, 3, v40")
            m(f"v_cmp_le_i32 vcc, 0, v41")
            m(f"v_lshl_add_u32 v41, v41, 4, s{sT2}")
            m(f"s_and_b64 {s(sM,2)}, {s(sM,2)}, vcc")
            m(f"v_cndmask_b32 v{vF1A}, v{vF1A}, v41, {s(sM,2)}")
        m(f"v_lshlrev_b32 v{vF1A}, 7, v{vF1A}")
        m(f"v_add_u32 v{vF1A}, {F1}, v{vF1A}")
        m(f"v_bfe_u32 v40, v{vL}, 2, 1")
        m(f"v_and_b32 v41, 3, v{vL}")
        m(f"s_lshl_b32 s{sT0}, s{sW}, 2")
        m(f"v_add_u32 v41, s{sT0}, v41")
        m(f"v_cmp_gt_u32 vcc, 8, v{vL}")
        m(f"v_lshl_add_u32 v41, v40, 4, v41")
        m(f"v_and_b32 v40, 1, v{vL}")
        m(f"v_lshl_add_u32 v40, v40, 4, 3")
        m(f"v_cndmask_b32 v{vF23A}, v40, v41, vcc")
        m(f"v_lshlrev_b32 v{vF23A}, 7, v{vF23A}")
        m(f"s_lshr_b32 s{sT0}, s{sW}, 1")
        m(f"s_add_u32 s{sT0}, s{sT0}, s{sRB0}")
        m(f"s_mul_i32 s{sT0}, s{sT0}, {32*896}")
        m(f"s_lshl_b32 s{sT1}, s{sCT}, 1")
        m(f"s_and_b32 s{sT2}, s{sW}, 1")
        m(f"s_add_u32 s{sT1}, s{sT1}, s{sT2}")
        m(f"s_lshl_b32 s{sT1}, s{sT1}, 6")
        m(f"s_add_u32 s{sOUT}, s{sT0}, s{sT1}")

    def add_chunk(self, i):
        toks = self.ctok[i] = []
        lx = OPT["miss"] + 300 if i < 1 else None
        lw = OPT["miss"] + 300 if i < 2 else None
        xs, ws = [], []
        for k in range(4):
            xs.append(Item(f"buffer_load_dwordx4 v{vXD+k}, {s(S_X,4)}, s{sCA} offen" + (f" offset:{1024*k}" if k else "") + NT(1) + " lds", toks,
                           pre=[f"s_lshl_b32 s{sCA}, s{sG+i}, 7"] if k == 0 else (), m0=(sMX, (i % 3) * 4096), lat=lx,
                           after=(lambda: self.xrd[i - 3] if len(self.xrd.get(i - 3, ())) == 4 else None) if i >= 3 and k == 0 else None))
        for k in range(3):
            ws.append(Item(f"buffer_load_dwordx4 v{vWQ+k}, {s(S_WQ,4)}, s{sCB} offen" + (f" offset:{1024*k}" if k else "") + NT(2) + " lds", toks,
                           pre=[f"s_mul_i32 s{sCB}, s{sG+i}, {64*2688}"] if k == 0 else (), m0=(sMQ, (i % 4) * 64 * 192), lat=lw))
        self.C.extend(xs + ws if i == 0 else ws + xs)
        self.clast = getattr(self, "clast", {})
        self.clast[i] = self.C[-1]

    def add_w1(self, unit, i):
        toks = self.wtok[(unit, i)] = []
        pre = [f"s_mul_i32 s{sCB}, s{sG+i}, {64*3584}", f"s_add_u32 s{sCB}, s{sCB}, s{sUA+unit}"]
        if unit == 0:
            pre.append(f"s_add_u32 s{sMA}, s{sMA}, s{sMAS}")
        for k in range(2):
            self.C.append(Item(f"buffer_load_dwordx4 v{vW1A0+k}, {s(S_W1,4)}, s{sCB} offen" + (" offset:1024" if k else "") + NT(4) + " lds", toks,
                               pre=pre if k == 0 else (), m0=(sMB, i * 8192) if unit else (sMA, 0, i),
                               lat=OPT["miss"] if i < 4 else None))
        self.wlast = getattr(self, "wlast", {})
        self.wlast[(unit, i)] = self.C[-1]

    def gate_write(self):
        pe = self.pe
        pe(f"s_cmp_eq_u32 s{sLIGHT}, 1")
        pe(f"s_cselect_b64 {s(sM,2)}, -1, 0")
        pe(f"v_bfe_u32 v27, v26, 1, 1")
        pe(f"v_lshlrev_b32 v28, 7, v26")
        pe(f"v_lshl_add_u32 v28, v27, 6, v28")
        pe(f"v_mov_b32 v29, {DUMMY+2048}")
        pe(f"v_cndmask_b32 v27, v29, v28, {s(sM,2)}")
        pe(f"v_cmp_gt_u32 vcc, 192, v26")
        pe(f"v_add_u32 v28, {256*128}, v28")
        pe(f"s_and_b64 {s(sM,2)}, {s(sM,2)}, vcc")
        pe(f"ds_write_b16 v27, v30")
        pe(f"v_cndmask_b32 v28, v29, v28, {s(sM,2)}")
        pe(f"ds_write_b16 v28, v31")

    def store_addr(self):
        pe = self.pe
        for n, lim in ((0, 11), (1, 10)):
            pe(f"s_cmp_ge_u32 s{sC}, {lim}")
            pe(f"s_cselect_b64 {s(sM,2)}, -1, 0")
            pe(f"s_cselect_b32 s{sT0}, 128, 0")
            pe(f"s_cselect_b32 s{sT1}, 0x3f80, 0")
            pe(f"v_cndmask_b32 v{24+2*n}, v{vLIN}, v{vPV}, {s(sM,2)}")
            pe(f"v_mov_b32 v{28+n}, s{sT1}")
            pe(f"v_xor_b32 v{25+2*n}, s{sT0}, v{24+2*n}")

    def bias_init(self, acc, tbl, factor=None):
        for t in range(2):
            for mm in range(2):
                o = (tbl % 2048) // 8 + 8 * t + 4 * mm
                self.pe(f"ds_read2_b64 {v(acc+16*t+8+4*mm,4)}, v{vTBL} offset0:{o} offset1:{o+2}")
        for t in range(2):
            for k in range(8):
                src, dst = acc + 16 * t + 8 + k, acc + 16 * t + 2 * k
                self.pe(f"v_lshlrev_b32 v{dst}, 16, v{src}")
                self.pe(f"v_and_b32 v{dst+1}, 0xffff0000, v{src}")
        if factor:
            for k in range(16):
                self.pe(f"v_pk_mul_f32 {v(acc+2*k,2)}, {v(acc+2*k,2)}, {factor}")

    def rd_q(self, sidx, t):
        base = vWR + 12 * (sidx & 1) + 4 * t
        o = 56 * t + (sidx % 16) * 3072
        return [self.e(f"ds_read_b64_tr_b16 {v(base+2*h,2)}, v{vTRQ} offset:{o+768*h}") for h in range(2)]

    def rd_f(self, g, t):
        base = vWR + 8 * (g % 3) + 4 * t
        toks = self.ftok.setdefault(g, [])
        for h in range(2):
            toks.append(self.e(f"ds_read_b64_tr_b16 {v(base+2*h,2)}, v{vTRF0+t} offset:{(g%28)*2048+512*h}"))

    def rd_x(self, sidx):
        self.xrd.setdefault(sidx // 4, []).append(self.e(f"ds_read_b128 {v(vX+4*sidx,4)}, v{vXR+sidx%4} offset:{(sidx//4%3)*4096}"))

    def sync(self, st, last, toks, drain_lds=True):
        self.force(st, last)
        self.await_(toks)
        if drain_lds and self.a.lg:
            self.e("s_waitcnt lgkmcnt(0)")
        self.e("s_barrier")

    def await_(self, toks):
        while self.a.est(toks) > self.a.clk + 8 and self.side_wait(self.a.est(toks)):
            pass
        self.a.need(*toks)

    def force_p(self):
        while self.P:
            it = self.P[0]
            keep, self.P = self.P, deque()
            if it.after:
                self.await_(it.after())
            self.P = keep
            self.emit_item(self.P)

    def side_wait(self, until):
        a = self.a
        for st in (self.P, self.C, self.B):
            if not st:
                continue
            it = st[0]
            t = a.allv[-1][0] if it.vm else a.clk
            if it.after:
                toks = it.after()
                if toks is None:
                    continue
                t = max(t, a.est(toks))
            if t + 8 <= until:
                self.emit_item(st)
                return True
        return False

    def prefetch_slot(self, sidx):
        if not OPT["wpf"]:
            return
        for reg, lo, hi, loads in ((sSLA, OPT["pfa0"], OPT["pfa1"], ((S_W1, 12, sPF1),)), (sSLB, OPT["pfb0"], OPT["pfb1"], ((S_W2, 12, sPF1), (S_WO, 3, sPF2)))):
            if lo <= sidx < hi:
                self.nlab += 1
                n = self.nlab
                self.e(f"s_cmp_eq_u32 s{reg}, {sidx - lo}")
                self.e(f"s_cbranch_scc1 L_pf{n}")
                self.a.label(f"L_pfb{n}")
                self.tail += [f"L_pf{n}:"]
                for srd, top, off in loads:
                    self.tail += [f"v_min_u32 v30, {top}, v{vL}", "v_lshlrev_b32 v30, 7, v30", f"buffer_load_dword v31, v30, {s(srd,4)}, s{off} offen"]
                self.tail += [f"s_branch L_pfb{n}"]

    def qkv(self):
        e = self.e
        qtok = {}
        self.sync(self.C, self.clast[0], self.ctok[0])
        self.stamp("chunk 0")
        self.add_chunk(3)
        self.rd_x(0)
        self.rd_x(1)
        for t in range(3):
            qtok[(0, t)] = self.rd_q(0, t)
        for sidx in range(28):
            i = sidx // 4
            if sidx % 2 == 0:
                self.stamp(group=3)
            if sidx == 0:
                self.gate_write()
            if sidx == 4:
                self.push(lambda: self.a.need(self.tB1), 0)
                self.bias_init(vACC + 48, TB1)
            if sidx == 8:
                self.store_addr()
            self.prefetch_slot(sidx)
            for t in range(3):
                if t == 0:
                    self.a.need(*qtok[(sidx, 0)], *qtok[(sidx, 1)])
                acc = v(vACC + 16 * t, 16)
                e(f"{MFMA} {acc}, {v(vWR+12*(sidx&1)+4*t,4)}, {v(vX+4*sidx,4)}, {acc if sidx else 0}")
                if t == 0 and sidx % 4 == 3:
                    self.drain()
                    if sidx < 27:
                        self.sync(self.C, self.clast[i + 1], self.ctok[i + 1])
                        if i + 4 < 7:
                            self.add_chunk(i + 4)
                        if i + 4 == 6:
                            for k in range(7):
                                self.add_w1(0, k)
                    else:
                        self.sync(self.C, self.wlast[(0, 0)], self.wtok[(0, 0)])
                if sidx % 4 == 3 and sidx < 27 and t < 2:
                    self.rd_x(sidx + 1 + t)
                if sidx % 4 == 0 and t < 2:
                    self.rd_x(sidx + 2 + t)
                if sidx < 27:
                    qtok[(sidx + 1, t)] = self.rd_q(sidx + 1, t)
                elif t < 2:
                    self.rd_f(0, t)
                self.gap((12, 16, 12)[t] if sidx % 4 in (1, 2) else (4, 8, 12)[t])
        self.rd_f(1, 0)
        self.rd_f(1, 1)

    QPK = (vTMP + 8, vACC + 40, vACC + 32)

    def qkv_pack(self, t):
        pe = self.pe
        acc, dst = vACC + 16 * t, self.QPK[t]
        pe(f"s_cmp_gt_i32 s{sNQ}, {t}")
        pe(f"s_cselect_b32 s{sT1}, {QSCALE}, 1.0")
        for k in range(16):
            pe(f"v_mul_f32 v{acc+k}, s{sT1}, v{acc+k}")
        def store(half):
            pre = [f"s_add_u32 s{sCA}, s{sQS}, {t*64*2048}"] if half == 0 else ()
            self.C.append(Item(f"buffer_store_dwordx4 {v(dst+4*half,4)}, v{24+2*(t>>1)+half}, {s(S_WS,4)}, s{sCA} offen offset:{1024*half} sc1",
                               self.tQKV, pre=pre))
            self.lastS = self.C[-1]
        for k in range(8):
            pe(f"v_cvt_pk_bf16_f32 v{dst+k}, v{acc+2*k}, v{acc+2*k+1}")
            if k == 3:
                self.push(lambda: store(0), 0)
        pe(f"v_cndmask_b32 v{dst+6}, v{dst+6}, v{28+(t>>1)}, {s(sHI,2)}")
        pe(f"v_cndmask_b32 v{dst+7}, v{dst+7}, 0, {s(sHI,2)}")
        self.push(lambda: store(1), 0)

    def b_slot(self, p):
        return (RING - RED) + (p % 6) * 4096 if p % 6 < 3 else (p % 6 - 3) * 4096

    def b_dma(self, p):
        toks = self.btok[p] = []
        out = []
        pre, post, off = [], [], sBOFF
        if p >= 14:
            off = sBT
            pre = [f"s_mul_i32 s{sBT}, s{sW}, {112*896}"] + ([f"s_add_u32 s{sBT}, s{sBT}, {(p-14)*28*896}"] if p > 14 else [])
        elif p < 13:
            post = [f"s_add_u32 s{sBOFF}, s{sBOFF}, {32*896}", f"s_cmp_eq_u32 s{sBOFF}, s{sBEND}",
                    f"s_cselect_b32 s{sBT}, {448*896}, 0", f"s_sub_u32 s{sBOFF}, s{sBOFF}, s{sBT}"]
        for k in range(4):
            out.append(Item(f"buffer_load_dwordx4 v{vBD+k}, {s(S_W2 if p < 14 else S_WO,4)}, s{off} offen" + (f" offset:{1024*k}" if k else "") + NT(8) + " lds",
                            toks, pre=pre if k == 0 else (), post=post if k == 3 else (), m0=(sRING, self.b_slot(p)),
                            lat=OPT["miss"] if p < 4 or p >= 14 else None,
                            after=(lambda: self.btr[p - 6] if len(self.btr.get(p - 6, ())) == 8 else None) if k == 0 and p >= 6 else None))
        return out

    def b_read(self, p):
        toks = self.btr[p] = []
        out = []
        for ks in range(2):
            for t in range(2):
                out.append(Item([f"ds_read_b64_tr_b16 {a_(16*(p%16)+8*ks+4*t+2*h,2)}, v{vBT0+t} offset:{self.b_slot(p)+ks*2048+h*1024}" for h in range(2)],
                                toks, after=(lambda: self.btok[p] if len(self.btok[p]) == 4 else None) if ks + t == 0 else None))
        self.blast[p] = out[-1]
        return out

    def gelu_two(self, acc, soff, n, packed):
        pe = self.pe
        T = vTMP + 12
        U = [acc + 2 * n, acc + 2 * n + 2]
        R = [T, T + 2]
        if packed:
            for u, r in zip(U, R):
                pe(f"v_pk_mul_f32 {v(r,2)}, {v(u,2)}, {v(u,2)}")
                pe(f"v_pk_fma_f32 {v(r,2)}, {v(r,2)}, {s(sK2,2)}, {v(vK1,2)} op_sel_hi:[1,1,0]")
                pe(f"v_pk_mul_f32 {v(r,2)}, {v(r,2)}, {v(u,2)}")
            for k in range(4):
                pe(f"v_exp_f32 v{T+k}, v{T+k}")
            for r in R:
                pe(f"v_pk_add_f32 {v(r,2)}, {v(r,2)}, 1.0 op_sel_hi:[1,0]")
            for k in range(4):
                pe(f"v_rcp_f32 v{T+k}, v{T+k}")
            for u, r in zip(U, R):
                pe(f"v_pk_mul_f32 {v(r,2)}, {v(r,2)}, {v(u,2)}")
        else:
            u = U[0]
            for k in range(4):
                pe(f"v_mul_f32 v{T+k}, v{u+k}, v{u+k}")
                pe(f"v_fma_f32 v{T+k}, v{T+k}, s{sK2}, v{vK1}")
                pe(f"v_mul_f32 v{T+k}, v{T+k}, v{u+k}")
            for k in range(4):
                pe(f"v_exp_f32 v{T+k}, v{T+k}")
            for k in range(4):
                pe(f"v_add_f32 v{T+k}, 1.0, v{T+k}")
            for k in range(4):
                pe(f"v_rcp_f32 v{T+k}, v{T+k}")
            for k in range(4):
                pe(f"v_mul_f32 v{T+k}, v{T+k}, v{u+k}")
        for d in range(2):
            pe(f"v_cvt_pk_bf16_f32 v{acc+n+d}, v{T+2*d}, v{T+2*d+1}")
        if n % 4 == 2:
            fr = n // 4
            self.push(lambda: self.C.append(Item(
                f"buffer_store_dwordx4 {v(acc+4*fr,4)}, v{vLIN}, {s(S_WS,4)}, s{soff} offen offset:{fr*1024} sc1", self.tH)), 0)

    def ffn(self, unit):
        e = self.e
        acc0 = vACC + 48 if unit == 0 else vACC
        for sidx in range(28):
            g = 28 * unit + sidx
            if sidx % 4 == 0:
                self.stamp(group=2)
            self.hook(f"ffn{unit}_{sidx}")
            self.a.need(*self.ftok[g])
            for t in range(2):
                acc = v(acc0 + 16 * t, 16)
                e(f"{MFMA} {acc}, {v(vWR+8*(g%3)+4*t,4)}, {v(vX+4*sidx,4)}, {acc}")
                if t == 0 and sidx % 4 == 2:
                    if sidx < 26:
                        k = (unit, sidx // 4 + 1)
                        self.sync(self.C, self.wlast[k], self.wtok[k], drain_lds=False)
                    elif unit == 0:
                        self.drain("biasb")
                        self.sync(self.C, self.wlast[(1, 0)], self.wtok[(1, 0)])
                        e(f"v_add_u32 v{vTRF0}, {R_B-R_A}, v{vTRF0}")
                        e(f"v_add_u32 v{vTRF1}, {R_B-R_A}, v{vTRF1}")
                        self.add_w1(1, 6)
                        self.B.extend(self.b_dma(3) + self.b_dma(4) + self.b_dma(5))
                        for p in range(12):
                            self.B.extend(self.b_read(p) + self.b_dma(p + 6))
                        for p in range(12, 16):
                            self.B.extend(self.b_read(p))
                if g + 2 < 56:
                    self.rd_f(g + 2, t)
                self.gap((16, 12)[t])

    def phase1(self):
        e, pe, m = self.e, self.pe, self.m
        self.btok, self.btr, self.blast = {}, {}, {}
        self.tQKV, self.tH, tG = [], [], []
        self.qkv()
        self.stamp("qkv done")
        e(f"s_cmp_lt_u32 s{sLOC}, 28")
        e(f"s_cselect_b32 s{S_W2+2}, {1792*896}, 0")
        e(f"s_cselect_b32 s{S_WO+2}, {448*896}, 0")
        self.add_w1(1, 0)
        self.qkv_pack(2)
        self.push(lambda: self.add_w1(1, 1), 0)
        self.qkv_pack(1)
        self.qkv_pack(0)
        self.push(lambda: [self.add_w1(1, k) for k in range(2, 6)], 0)
        self.bias_init(vACC, TB1 + 128)
        pe(f"v_add_u32 v{vT}, {TAG_STEP}, v{vT}")
        self.mark("biasb")
        self.B.extend(self.b_dma(0) + self.b_dma(1) + self.b_dma(2))
        self.ffn(0)
        self.force(self.C, self.lastS)
        self.stamp("ffn a done")
        accA = vACC + 48
        pub1 = self.publish(sF1, self.tQKV, 6)
        pe(f"v_mul_f32 v{vGATE}, {fbits(-math.log2(math.e))}, v{accA}")
        pe(f"v_exp_f32 v{vGATE}, v{vGATE}")
        pe(f"v_and_b32 v{vGA}, 31, v{vL}")
        pe(f"v_add_f32 v{vGATE}, 1.0, v{vGATE}")
        pe(f"v_lshlrev_b32 v{vGA}, 2, v{vGA}")
        pe(f"v_rcp_f32 v{vGATE}, v{vGATE}")
        pe(f"v_mov_b32 v{vTMP}, {OOB}")
        pe(f"v_cndmask_b32 v{vTMP}, v{vGA}, v{vTMP}, {s(sHI,2)}")
        self.push(lambda: self.C.appendleft(Item(f"buffer_store_dword v{vGATE}, v{vTMP}, {s(S_WS,4)}, s{sGS} offen sc1", tG)), 0)
        self.push(lambda: self.publish(sF0P, tG, 1), 0)
        ga = deque(range(0, 16, 2))
        while ga and ga[0] < OPT["npairs"]:
            self.gelu_two(accA, sHA, ga.popleft(), False)
        self.hooks[f"ffn1_{OPT['pub1']}"] = lambda: self.force(self.P, pub1)
        self.hooks[f"ffn1_{OPT['poll1']}"] = lambda: self.poll_item(vF1A, 0)
        self.ffn(1)
        self.poll_check(vF1A, 0)
        e("s_barrier")
        self.att_loads()
        self.stamp("ffn b done")
        m(f"v_lshlrev_b32 v{vTMP+1}, 2, v{vL}")
        self.tB2 = []
        self.C.append(Item(f"buffer_load_dword v{vTMP+1}, {s(S_B2,4)}, s{sCB} offen lds", self.tB2,
                           pre=[f"s_lshl_b32 s{sCB}, s{sCT}, 7"], m0=(None, TB2), lat=OPT["miss"]))
        self.drain()
        for acc, soff, todo in ((accA, sHA, ga), (vACC, sHB, range(0, 16, 2))):
            for n in todo:
                self.gelu_two(acc, soff, n, True)
        self.drain()
        self.stamp("gelu done")

    def att_loads(self):
        self.tKV = []
        items = []
        for bb in range(3):
            for part in range(2):
                pre = ([f"s_add_u32 s{sCA}, s{sKOFF}, {16*64*2048+2048*bb}", f"s_cmp_lt_i32 s{sKV0}, {-bb}", f"s_cselect_b32 s{sCA}, {OOB}, s{sCA}"]
                       if part == 0 else [f"s_add_u32 s{sCA}, s{sCA}, {16*64*2048}"])
                for k in range(2):
                    items.append(Item(f"buffer_load_dwordx4 v{vLIN}, {s(S_WS,4)}, s{sCA} offen" + (" offset:1024" if k else "") + " sc1 lds",
                                      self.tKV, pre=pre if k == 0 else (), m0=(sMKV, KV + 24576 * part + 2048 * bb), lat=OPT["miss"]))
        for k in range(2):
            items.append(Item(f"buffer_load_dwordx4 {v(vQ+4*k,4)}, v{vLIN}, {s(S_WS,4)}, s{sQOFF} offen offset:{1024*k} sc1", self.tKV, lat=OPT["miss"]))
        self.C.extendleft(reversed(items))
        self.kvlast = items[-1]

    def rd_k(self, n):
        for k in range(2):
            self.m(f"ds_read_b128 {v(vKR+8*(n%3)+4*k,4)}, v{vKA} offset:{(n%9)*2048+k*1024}")

    def rd_v(self, i, st):
        for h in range(2):
            self.e(f"ds_read_b64_tr_b16 {v(vVR+4*st+2*h,2)}, v{vVA} offset:{i*2048+256*(2*st+h)}")

    def qk(self, i, k):
        S = v(vS + 16 * (i & 1), 16)
        C = S if k else v(vM0 if i == 0 else vM8 if i == 8 else vCD, 16)
        self.e(f"{MFMA} {S}, {v(vKR+8*(i%3)+4*k,4)}, {v(vQ+4*k,4)}, {C}")

    def patch(self, i, src):
        if not 2 <= i <= 7:
            return
        self.nlab += 1
        n = self.nlab
        self.e(f"s_cmp_eq_u32 s{sFIRST}, {i}")
        self.e(f"s_cbranch_scc1 L_pat{n}")
        self.a.label(f"L_patb{n}")
        self.tail += [f"L_pat{n}:", "s_nop 7"] + [f"v_mov_b32 v{vCD+k}, {src}" for k in range(16)] + ["s_nop 1", f"s_branch L_patb{n}"]

    def attention(self):
        e, pe, m = self.e, self.pe, self.m
        m(f"v_and_b32 v26, 31, v{vL}")
        m(f"v_lshrrev_b32 v27, 5, v{vL}")
        m(f"v_lshlrev_b32 v28, 2, v27")
        m(f"v_sub_u32 v26, v26, v28")
        m(f"s_cmp_gt_u32 s{sFIRST}, 0")
        m(f"s_cselect_b32 s{sT0}, {NINF}, 0")
        m(f"v_mov_b32 v28, s{sT0}")
        m(f"v_mov_b32 v29, {NINF}")
        m(f"s_cmp_gt_u32 s{sFIRST}, 1")
        m(f"s_cselect_b32 s{sT0}, {NINF}, 0")
        prs = (sM, sM3)
        for j0 in range(0, 16, 2):
            for d in range(2):
                jj = j0 + d
                m(f"v_cmp_le_i32 {s(prs[d],2)}, {(jj&3)+8*(jj>>2)}, v26")
            for d in range(2):
                m(f"v_mov_b32 v{vCD+j0+d}, s{sT0}")
            for d in range(2):
                jj = j0 + d
                m(f"v_cndmask_b32 v{vM8+jj}, v29, 0, {s(prs[d],2)}")
                m(f"v_cndmask_b32 v{vM0+jj}, v28, v29, {s(prs[d],2)}")
        m(f"s_lshl_b32 s{sT1}, s{sW}, 11")
        m(f"s_add_u32 s{sT1}, s{sT1}, {KV}")
        m(f"v_add_u32 v{vKA}, s{sT1}, v{vLIN}")
        m(f"v_bfe_u32 v28, v{vL}, 4, 1")
        m(f"v_xor_b32 v27, v27, v28")
        m(f"v_bfe_u32 v29, v{vL}, 2, 2")
        m(f"v_lshl_add_u32 v29, v27, 3, v29")
        m(f"v_and_b32 v27, 1, v{vL}")
        m(f"v_lshl_add_u32 v29, v27, 2, v29")
        m(f"v_lshlrev_b32 v29, 4, v29")
        m(f"v_lshl_add_u32 v29, v28, 10, v29")
        m(f"v_bfe_u32 v27, v{vL}, 1, 1")
        m(f"v_lshl_add_u32 v29, v27, 3, v29")
        m(f"s_add_u32 s{sT1}, s{sT1}, 24576")
        m(f"v_add_u32 v{vVA}, s{sT1}, v29")
        m(f"v_mov_b32 v{vMX}, {NINF}")
        m(f"v_mov_b32 v{vMX+1}, {NINF}")
        m(f"v_mov_b32 v{vF1A}, 0")
        m(f"v_add_u32 v{vA1H}, {112*1024}, v{vLIN}")
        m(f"v_add_u32 v{vA1O}, {32*1024}, v{vLIN}")
        self.sync(self.C, self.kvlast, self.tKV, drain_lds=False)
        self.stamp("kv in")
        self.poll_item(vF1A, f"s{sF0R}")
        pub2 = self.publish(sT3, self.tH, 8, pre=[f"s_add_u32 s{sT3}, s{sF1}, {F2-F1}"])
        self.rd_k(0)
        self.rd_k(1)
        for i in range(10):
            if i % 2 == 0:
                self.stamp(group=4)
            if i < 9:
                self.patch(i, "0")
                self.qk(i, 0)
                self.rd_k(i + 2)
                self.qk(i, 1)
            if i > 0:
                S = vS + 16 * ((i - 1) & 1)
                for k in range(8):
                    (m if k % 4 == 3 else e)(f"v_max3_f32 v{vMX+(k&1)}, v{S+2*k}, v{S+2*k+1}, v{vMX+(k&1)}")
        m(f"v_max_f32 v{vMX}, v{vMX}, v{vMX+1}")
        m(f"v_mov_b32 v{vMX+1}, v{vMX}")
        self.force(self.C)
        self.poll_check(vF1A, f"s{sF0R}")
        self.C.append(Item(f"buffer_load_dword v{vGATE}, v{vGA}, {s(S_WS,4)}, s{sGQ} offen sc1", lat=OPT["miss"]))
        m(f"v_permlane32_swap_b32 v{vMX}, v{vMX+1}")
        m(f"v_max_f32 v{vMX}, v{vMX}, v{vMX+1}")
        m(f"v_sub_f32 v{vMX}, 0, v{vMX}")
        for k in range(16):
            m(f"v_add_f32 v{vM0+k}, v{vM0+k}, v{vMX}")
        self.qk(0, 0)
        self.rd_k(2)
        self.qk(0, 1)
        m(f"v_add_f32 v{vMX+1}, s{sT0}, v{vMX}")
        for k in range(16):
            m(f"v_mov_b32 v{vCD+k}, v{vMX+1}")
        for k in range(16):
            m(f"v_add_f32 v{vM8+k}, v{vM8+k}, v{vMX}")
        self.stamp("pass 1 done")
        O = v(vO, 16)
        for i in range(9):
            S = vS + 16 * (i & 1)
            ex = lambda k: m(f"v_exp_f32 v{S+k}, v{S+k}")
            cv = lambda k: e(f"v_cvt_pk_bf16_f32 v{vP+k}, v{S+2*k}, v{S+2*k+1}")
            self.stamp(group=4)
            if i == OPT["poll2"]:
                self.poll_item(vF23A, f"s{sF2O}")
            if i == OPT["chk2"]:
                self.de_start()
            if i < 8:
                self.patch(i + 1, f"v{vMX}")
                self.qk(i + 1, 0)
            self.rd_v(i, 0)
            for k in range(3):
                ex(k)
            if i < 8:
                self.qk(i + 1, 1)
            self.rd_v(i, 1)
            for k in range(3, 9):
                ex(k)
            for k in range(4):
                cv(k)
            ex(9)
            ex(10)
            e(f"{MFMA} {O}, {v(vVR,4)}, {v(vP,4)}, {O if i else 0}")
            if i < 6:
                self.rd_k(i + 3)
            for k in range(11, 16):
                ex(k)
            for k in range(4, 8):
                cv(k)
            self.side()
            e(f"{MFMA} {O}, {v(vVR+4,4)}, {v(vP+4,4)}, {O}")
        self.a.need(*self.tB2)
        m(f"v_subrev_u32 v{vTBL}, {(TB1 - TB1 % 2048) - (TB2 - TB2 % 2048)}, v{vTBL}")
        m(f"s_cmp_eq_u32 s{sW}, 0")
        m(f"s_cselect_b32 s{sM}, 1.0, 0")
        m(f"s_mov_b32 s{sM+1}, s{sM}")
        self.bias_init(vCD, TB2, factor=s(sM, 2))
        for _ in range(12):
            self.q.popleft()[0]()
        m(f"v_mov_b32 v{vMX}, v{vO+12}")
        m(f"v_mov_b32 v{vMX+1}, v{vO+12}")
        m(f"v_permlane32_swap_b32 v{vMX}, v{vMX+1}")
        m(f"v_rcp_f32 v{vMX}, v{vMX+1}")
        m(f"v_mul_f32 v{vMX}, v{vMX}, v{vGATE}")
        for k in range(8):
            m(f"v_pk_mul_f32 {v(vO+2*k,2)}, {v(vO+2*k,2)}, {v(vMX,2)} op_sel_hi:[1,0]")
        self.tO = []
        for k in range(8):
            m(f"v_cvt_pk_bf16_f32 v{vP+k}, v{vO+2*k}, v{vO+2*k+1}")
            if k == 3:
                self.P.append(Item(f"buffer_store_dwordx4 {v(vP,4)}, v{vLIN}, {s(S_WS,4)}, s{sOS} offen sc1", self.tO))
        m(f"v_cndmask_b32 v{vP+6}, v{vP+6}, 0, {s(sHI,2)}")
        self.P.append(Item(f"buffer_store_dwordx4 {v(vP+4,4)}, v{vLIN}, {s(S_WS,4)}, s{sOS} offen offset:1024 sc1", self.tO))
        self.drain()
        self.force(self.P)
        self.stamp("attention done")

    def ar(self, p, k):
        return (64, 80, 104, 120)[p % 4] + 4 * k

    def a_load(self, p):
        pre = []
        if p == 14:
            pre = [f"s_lshl_b32 s{sAOFF}, s{sRB0}, 2", f"s_add_u32 s{sAOFF}, s{sAOFF}, s{sW}",
                   f"s_lshl_b32 s{sAOFF}, s{sAOFF}, 13", f"s_add_u32 s{sAOFF}, s{sAOFF}, {O_BASE}"]
        post = [f"s_add_u32 s{sAOFF}, s{sAOFF}, 2048"]
        if p < 13:
            post += [f"s_cmp_eq_u32 s{sAOFF}, s{sAEND}", f"s_cselect_b32 s{sCB}, {28*1024}, 0", f"s_sub_u32 s{sAOFF}, s{sAOFF}, s{sCB}"]
        for n in range(4):
            ks, rb = n >> 1, n & 1
            ad = vLIN if rb == 0 else (vA1H if p < 14 else vA1O)
            self.C.append(Item(f"buffer_load_dwordx4 {v(self.ar(p,n),4)}, v{ad}, {s(S_WS,4)}, s{sAOFF} offen offset:{1024*ks} sc1",
                               self.atok.setdefault(p, []), pre=pre if n == 0 else (), post=post if n == 3 else (), lat=OPT["miss"] if p < 2 or p in (14, 15) else None))
        self.alast[p] = self.C[-1]

    def de_start(self):
        e = self.e
        self.alast, self.atok = {}, {}
        self.nlab += 1
        n = self.nlab
        self.force_p()
        self.await_([k for k, r in self.a.vm if f"v{vPOLL}" in r])
        e(f"s_cmp_ge_u32 s{sLOC}, 28")
        e(f"s_cbranch_scc1 L_nopoll{n}")
        self.poll_check(vF23A, f"s{sF2O}")
        self.a.label(f"L_nopoll{n}")
        for p in range(4):
            self.a_load(p)
        for rb in range(2):
            self.C.append(Item(f"buffer_load_dword v{vG+rb}, v{vGA}, {s(S_WS,4)}, s{sGD} offen offset:{128*rb} sc1", lat=OPT["miss"]))

    def de(self):
        e, pe, m = self.e, self.pe, self.m
        e(f"s_cmp_ge_u32 s{sLOC}, 28")
        e("s_cbranch_scc1 L_idle")
        self.publish(sF3P, self.tO, 2)
        vBI = vCD

        def mm(p, ks, qd):
            rb, t = qd >> 1, qd & 1
            acc = v(vAB + 16 * qd, 16)
            C = v(vBI + 16 * t, 16) if p == 0 and ks == 0 else acc
            e(f"{MFMA} {acc}, {a_(16*(p%16)+8*ks+4*t,4)}, {v(self.ar(p,2*ks+rb),4)}, {C}")

        def scale(qd, half):
            for k in range(8 * half, 8 * half + 8):
                e(f"v_mul_f32 v{vAB+16*qd+k}, v{vG+(qd>>1)}, v{vAB+16*qd+k}")

        for p in range(17):
            self.force(self.C, self.alast[p])
            while not self.blast[p].done:
                if not self.B[0].vm and self.B[0].after:
                    keep, self.B = self.B, deque()
                    self.await_(keep[0].after())
                    self.B = keep
                self.emit_item(self.B)
            self.await_(self.atok[p][:2])
            if p in (1, 2):
                self.B.extend(self.b_read(15 + p))
            if p == OPT["poll3"]:
                e(f"s_add_u32 s{sF2O}, s{sF2O}, {F3-F2}")
                self.poll_item(vF23A, f"s{sF2O}")
            if p == 11:
                for rb in range(2):
                    e(f"v_sub_f32 v{vG+rb}, 1.0, v{vG+rb}")
            if p in (13, 14):
                for n in range(8):
                    mm(p, n & 1, n >> 1)
                    k = n - 4 + 8 * (p - 13)
                    self.side()
                    if 0 <= k < 8:
                        scale(k >> 1, k & 1)
            else:
                for ks in range(2):
                    for qd in range(4):
                        mm(p, ks, qd)
                        self.side()
            if p + 4 < 18:
                if p + 4 == 14:
                    self.poll_check(vF23A, f"s{sF2O}")
                self.a_load(p + 4)
        self.force(self.C)
        self.force(self.B)
        self.stamp("pair 16 done")
        e(f"v_add_u32 v24, s{sRING}, v{vLIN}")
        for d in range(1, 4):
            e(f"s_sub_u32 s{sT0}, s{sW}, {d}")
            e(f"s_and_b32 s{sT0}, s{sT0}, 3")
            e(f"s_mul_i32 s{sT0}, s{sT0}, 12288")
            e(f"s_add_u32 s{sT0}, s{sT0}, {RED+(d-1)*4096}")
            e(f"v_add_u32 v{24+d}, s{sT0}, v{vLIN}")
        e(f"v_and_b32 v28, 31, v{vL}")
        e(f"v_mul_u32_u24 v28, 896, v28")
        e(f"v_lshrrev_b32 v29, 5, v{vL}")
        e(f"v_lshl_add_u32 v28, v29, 4, v28")
        self.a.need(*[k for k, _ in self.a.vm + self.a.lg])
        for w in range(4):
            clk = self.a.clk, self.a.mf_free, self.a.lds_free
            if w:
                self.a.label(f"L_wr{w}")
            if w < 3:
                e(f"s_cmp_lg_u32 s{sW}, {w}")
                e(f"s_cbranch_scc1 L_wr{w+1}")
            order = [(w + d) & 3 for d in (1, 2, 3, 4)]
            for n, qd in enumerate(order):
                mm(17, 0, qd)
                mm(17, 1, qd)
                if n >= 2:
                    for k in range(4):
                        e(f"ds_write_b128 v24, {v(vAB+16*order[n-2]+4*k,4)} offset:{(n-2)*4096+k*1024}")
            for k in range(4):
                e(f"ds_write_b128 v24, {v(vAB+16*order[2]+4*k,4)} offset:{2*4096+k*1024}")
            for k in range(8):
                e(f"v_mov_b64 {v(64+2*k,2)}, {v(vAB+16*w+2*k,2)}")
            e("s_waitcnt lgkmcnt(0)")
            if w < 3:
                e("s_branch L_wrdone")
                self.a.clk, self.a.mf_free, self.a.lds_free = clk
        self.a.label("L_wrdone")
        e("s_barrier")
        for d in range(1, 4):
            for k in range(4):
                e(f"ds_read_b128 {v(64+16*d+4*k,4)}, v{24+d} offset:{k*1024}")
        for d in range(1, 4):
            for k in range(8):
                e(f"v_pk_add_f32 {v(64+2*k,2)}, {v(64+2*k,2)}, {v(64+16*d+2*k,2)}")
        for k in range(8):
            e(f"v_cvt_pk_bf16_f32 v{32+k}, v{64+2*k}, v{64+2*k+1}")
        for hh in range(2):
            for d in range(2):
                e(f"v_permlane32_swap_b32 v{32+4*hh+d}, v{32+4*hh+2+d}")
            e(f"buffer_store_dwordx4 {v(32+4*hh,4)}, v28, {s(S_OUT,4)}, s{sOUT} offen offset:{32*hh}")
        self.stamp("end")
        self.write_stamps()
        e("s_endpgm")
        self.a.label("L_idle")
        e("s_waitcnt vmcnt(0)")
        e(self.pub_text(sF3P))
        e("s_cmp_lg_u32 s2, 248")
        e("s_cbranch_scc1 L_end")
        e(f"s_cmp_lg_u32 s{sW}, 0")
        e("s_cbranch_scc1 L_end")
        e(f"v_lshlrev_b32 v24, 7, v{vL}")
        e(f"s_mov_b32 s{sSPIN}, 0")
        self.a.label("L_ep")
        for k in range(16):
            e(f"s_mov_b32 s{sT0}, {F1+8192*k}")
            e(f"buffer_load_dword v{40+k}, v24, {s(S_WS,4)}, s{sT0} offen sc1")
        e(f"s_add_u32 s{sSPIN}, s{sSPIN}, 1")
        e("s_waitcnt vmcnt(0)")
        for k in range(16):
            e(f"v_xor_b32 v{40+k}, v{vT}, v{40+k}")
        for k in range(1, 16):
            e(f"v_or_b32 v40, v40, v{40+k}")
        e(f"v_cmp_ne_u32 vcc, 0, v40")
        e(f"s_cmp_gt_u32 s{sSPIN}, 0x8000")
        e("s_cbranch_scc1 L_epd")
        e("s_cbranch_vccnz L_ep")
        self.a.label("L_epd")
        e(f"s_mov_b32 s{sT0}, {E_OFF}")
        e(self.pub_text(sT0))

    def write_stamps(self):
        e = self.e
        if OPT["probe"]:
            e(f"s_sub_u32 s{sT0}, s{sP0+1}, s{sP0}")
            e(f"s_lshl_b32 s{sT0}, s{sT0}, 2")
            e(f"s_add_u32 s{sT0}, s{sT0}, 72000")
            self.a.label("L_probe")
            e(f"s_memtime {s(sM3,2)}")
            e("s_waitcnt lgkmcnt(0)")
            e(f"s_sub_u32 s{sT1}, s{sM3}, s{sP0}")
            e(f"s_cmp_lt_u32 s{sT1}, s{sT0}")
            e("s_cbranch_scc1 L_probe")
        if not OPT["stamps"]:
            return
        e(f"s_lshl_b32 s{sT0}, s2, 2")
        e(f"s_add_u32 s{sT0}, s{sT0}, s{sW}")
        e(f"s_lshl_b32 s{sT1}, s{sT0}, 7")
        e(f"s_add_u32 s{sT1}, s{sT1}, {ST_BASE}")
        e(f"s_mov_b32 s{sT2}, {self.nst}")
        e(f"v_lshlrev_b32 v40, 2, v{vL}")
        e(f"v_writelane_b32 v{vST}, s{sT2}, 31")
        e(f"v_writelane_b32 v{vST}, s{sP0}, 30")
        e("s_memrealtime s[88:89]")
        e("s_waitcnt lgkmcnt(0)")
        e(f"v_writelane_b32 v{vST}, s88, 28")
        e(f"v_cmp_gt_u32 vcc, 32, v{vL}")
        e(f"v_mov_b32 v41, {OOB}")
        e(f"v_cndmask_b32 v40, v41, v40, vcc")
        e(f"buffer_store_dword v{vST}, v40, {s(S_WS,4)}, s{sT1} offen")

    def build(self):
        self.prologue()
        self.phase1()
        self.attention()
        self.de()
        self.a.label("L_end")
        self.e("s_endpgm")
        if OPT["strip"]:
            keep, pro = [], True
            for i in self.a.ins:
                if i.kind == "barrier":
                    pro = False
                drop = i.kind in ("mfma", "trans", "dsread", "dswrite") or (
                    not pro and i.kind == "valu" and any(r[0] == "v" and r != "vcc" and int(r[1:]) >= 30 for r in i.w) and "v40" not in i.w and "v41" not in i.w)
                if OPT["strip"] == 2 and i.kind == "vstore" and "x4" in i.mn:
                    i = Ins(i.text.replace("offen", "offen").replace(f"v{vLIN},", f"v{vL0},").replace("v24,", f"v{vL0},").replace("v25,", f"v{vL0},").replace("v26,", f"v{vL0},").replace("v27,", f"v{vL0},"))
                if not drop:
                    keep.append(i)
            self.a.ins = keep
        self.a.finalize()
        body = self.a.text() + "\n" + "\n".join(t if t.endswith(":") else "    " + t for t in self.tail) + "\nL_code_end:\n    s_endpgm\n"
        head = f"""; Fused gated mix: sliding-window attention branch + GELU FFN branch, one persistent launch.
; @launch grid=(256,1,1) block=(256,1,1) lds={LDS_SIZE}
.amdgcn_target "amdgcn-amd-amdhsa--gfx950"
.text
.globl {NAME}_kernel
.p2align 8
.type {NAME}_kernel,@function
{NAME}_kernel:
"""
        foot = f""".section .rodata,"a"
.p2align 6
.amdhsa_kernel {NAME}_kernel
  .amdhsa_next_free_vgpr 512
  .amdhsa_next_free_sgpr 102
  .amdhsa_accum_offset 256
  .amdhsa_group_segment_fixed_size 0
  .amdhsa_kernarg_size 96
  .amdhsa_user_sgpr_count 2
  .amdhsa_user_sgpr_kernarg_segment_ptr 1
  .amdhsa_system_sgpr_workgroup_id_x 1
  .amdhsa_float_denorm_mode_32 3
.end_amdhsa_kernel
"""
        return head + body + foot


if __name__ == "__main__":
    g = Gen()
    txt = g.build()
    out = sys.argv[1] if len(sys.argv) > 1 else f"cdna_kernels/{NAME}.s"
    open(out, "w").write(txt)
    kinds = {}
    for i in g.a.ins:
        kinds[i.kind] = kinds.get(i.kind, 0) + 1
    print(out, g.a.stats, kinds)
    if OPT["log"]:
        print("\n".join(g.a.log))
        print("model stalls", g.a.stall, "pipe busy", g.a.busy)
```

```python
import math, struct, sys
from collections import deque
sys.path.insert(0, "tools")
from asmlib import Asm, Ins, v, a_, s

NAME = "gated_mix__sliding_block__dense_activation_gelu__prompt"
OPT = dict(stamps=0, dbg=0, npairs=6, probe=0, poll1=20, poll2=4, chk2=7, poll3=7, norot=0, log=0,
           miss=480, pub1=13, svc=64, st=160, lat=480, win=8, strip=0, rot1=3, rot2=2, cpf=1, nt=0, split=1, wpf=1, wsoff=0, rt=0, ldsq=24, pfa0=4, pfa1=14, pfb0=12, pfb1=28, miss2=480, chk0=1, ipf=1, pa0=7, pb0=6, stlat=800)
for arg in sys.argv[2:]:
    k, val = arg.split("=")
    assert k in OPT, k
    OPT[k] = int(val)


def fbits(x):
    return struct.unpack("<I", struct.pack("<f", x))[0]


QKV_BASE, H_BASE, O_BASE, G_BASE = 0, 0x600000, 0xD00000, 0xF00000
F_BASE, E_OFF, ST_BASE, WS_SIZE = 0xF10000, 0xF80000, 0xFA0000, 0x1000000
F1, F2, F3, F0 = F_BASE, F_BASE + 1024 * 128, F_BASE + 2048 * 128, F_BASE + 3072 * 128
OOB = 0x40000000
TAG_STEP = 0x6B43A9B7
R_A, R_Q, R_B, RING = 0, 57344, 106496, 57344
KV = R_B
XST = 106496
TB1, DUMMY, TB2, RED = 163328, 159744, 0, 8192
LDS_SIZE = 163840
S_CODE, S_X, S_WQ, S_W1, S_WS, S_W2, S_WO, S_OUT, S_B1, S_B2, S_GW, S_DBG = 4, 8, 12, 16, 20, 24, 28, 32, 36, 40, 44, 8
sMX = 3
sW, sC, sLIGHT, sUA, sUB, sJ, sRB0, sCT, sLOC, sRB, sQB, sFIRST = range(48, 60)
sT0, sT1, sT2, sT3 = 60, 61, 62, 63
sHI, sM, sG = 64, 66, 68
sCA, sCB, sBT = 75, 76, 77
sMQ, sMA, sMAS, sMB, sRING = 78, 79, 80, 81, 82
sBOFF, sBEND, sAOFF, sAEND, sKV0 = 83, 84, 85, 86, 87
sM3, sF2O, sSPIN = 88, 90, 91
sQS, sHA, sHB, sF1, sGS, sF0P = 0, 1, 4, 5, 6, 7
sKOFF, sMKV, sQOFF, sOS, sF3P, sF0R, sK2 = 36, 37, 38, 39, 44, 45, 46
sGQ, sGD, sNQ, sOUT = 92, 93, 94, 95
sPF1, sPF2, sSLA, sSLB = 96, 97, 98, 99
sP0 = 100
vL, vLIN, vT, vL0, vK1, vST = 0, 1, 2, 3, 4, 5
vTRQ, vTRF0, vTRF1 = 6, 7, 8
vW1A0, vW1A1, vPV = 9, 10, 11
vBD = 12
vBT0, vBT1 = 16, 17
vF1A, vF23A = 18, 19
vWQ = 20
vPOLL, vGA, vGATE = 20, 21, 22
vTBL = 23
vTMP = 24
vXD, vXR = 32, 36
vWR = 40
vACC = 64
vX = 144
vQ, vS, vCD, vM0, vM8, vO, vP, vMX = 96, 144, 176, 192, 208, 224, 240, 248
vKR, vVR, vKA, vVA = 40, 136, 6, 7
vAB, vBI, vA1H, vA1O, vG = 144, 208, 8, 9, 10

C_GELU = -2.0 * math.sqrt(2.0 / math.pi) * math.log2(math.e)
K1, K2 = fbits(C_GELU), fbits(C_GELU * 0.044715)
QSCALE = fbits(math.log2(math.e) / math.sqrt(28.0))
NINF = 0xFF800000
MFMA = "v_mfma_f32_32x32x16_bf16"


def NT(bit):
    return " nt" if OPT["nt"] & bit else ""


class Item:
    def __init__(self, text, sink=None, pre=(), post=(), m0=None, after=None, lat=None, pre0=()):
        self.pre0 = pre0
        self.text = [text] if isinstance(text, str) else text
        self.sink, self.pre, self.post, self.m0, self.after, self.lat = sink, pre, post, m0, after, lat
        self.vm = self.text[0].startswith("buffer")
        self.done = False
        self.due = 0


class Gen:
    def __init__(self):
        self.a = Asm()
        self.a.verbose = OPT['log'] > 1
        self.a.p_svc, self.a.p_st, self.a.p_lat, self.a.p_win = OPT['svc'], OPT['st'], OPT['lat'], OPT['win']
        self.a.p_stlat = OPT['stlat']
        self.q = deque()
        self.P, self.C, self.B, self.D = deque(), deque(), deque(), deque()
        self.tail = []
        self.nst = self.nlab = self.nmark = 0
        self.marks = set()
        self.m0 = None
        self.hooks = {}
        self.bfirst = False

    def e(self, t):
        return self.a.e(t)

    def emit_item(self, st):
        it = st.popleft()
        c0 = len(self.a.ins)
        if it.after:
            toks = it.after()
            assert toks is not None, "forced item whose producers are not emitted: " + it.text[0]
            self.a.need(*toks)
        for t in it.pre0:
            self.e(t)
        if it.m0 and it.m0 != self.m0:
            reg, imm = it.m0[:2]
            self.e(f"s_mov_b32 m0, {imm}" if reg is None else f"s_add_u32 m0, s{reg}, {imm}" if imm else f"s_mov_b32 m0, s{reg}")
            self.m0 = it.m0
        for t in it.pre:
            self.e(t)
        for t in it.text:
            self.a.next_lat = it.lat
            k = self.e(t)
            if it.sink is not None:
                it.sink.append(k)
        for t in it.post:
            self.e(t)
        it.done = True
        return 4 * (len(self.a.ins) - c0) + (4 if it.vm else 0)

    def vm_streams(self):
        if self.bfirst and self.B and self.C and self.B[0].due < self.C[0].due:
            return (self.P, self.B, self.C)
        return (self.P, self.C, self.B)

    def ready(self, it):
        if it.after:
            toks = it.after()
            return toks is not None and self.a.est(toks) <= self.a.clk
        return True

    def side(self, both=True):
        a = self.a
        cost = 0
        if a.vm_free():
            for st in self.vm_streams():
                if st and self.ready(st[0]):
                    cost = self.emit_item(st)
                    break
        if (both or not cost) and self.D and a.lds_free - a.clk <= OPT["ldsq"] and self.ready(self.D[0]):
            cost += self.emit_item(self.D)
        return cost

    def force(self, st, it=None):
        while st and (it is None or not it.done):
            self.emit_item(st)

    def m(self, t):
        k = self.e(t)
        if not t.startswith(("s_cmp", "s_cselect", "v_cmp")):
            self.side(False)
        return k

    def push(self, fn, cost=4):
        self.q.append((fn, cost))

    def pe(self, t):
        cost = 8 if Ins(t).kind == "trans" else 4
        if t.startswith("s_cselect"):
            fn, c = self.q.pop()
            assert getattr(fn, "scc", False), "s_cselect must follow its s_cmp directly: " + t
            g = lambda fn=fn, t=t: (fn(), self.e(t))
            g.scc = True
            self.q.append((g, c + cost))
            return
        f = lambda t=t: self.e(t)
        f.scc = t.startswith("s_cmp")
        self.q.append((f, cost))

    def gap(self, budget):
        budget -= self.side(budget >= 24)
        while self.q and budget >= min(self.q[0][1], 8):
            fn, c = self.q.popleft()
            fn()
            budget -= c

    def drain(self, name=None):
        while (self.q if name is None else name not in self.marks):
            self.q.popleft()[0]()
            self.side()

    def mark(self, name):
        self.push(lambda: self.marks.add(name), 0)

    def hook(self, name):
        fn = self.hooks.pop(name, None)
        if fn:
            fn()

    def stamp(self, name="", group=1):
        if group == 1:
            self.a.log.append(f"{self.a.clk:6d} {name}  (pipe busy {self.a.busy} idle {self.a.idle} ops {self.a.nvm}; left C {len(self.C)} B {len(self.B)} D {len(self.D)})")
        if (OPT["stamps"] == group or (OPT["stamps"] and self.nst == 0)) and self.nst < 16:
            clk = self.a.clk
            self.e(f"{'s_memrealtime' if OPT['rt'] else 's_memtime'} {s(sM3,2)}")
            self.e("s_waitcnt lgkmcnt(0)")
            self.e(f"v_writelane_b32 v{vST}, s{sM3}, {self.nst}")
            self.a.clk = clk
            self.nst += 1
        if group == 1:
            self.nmark += 1
            if OPT["probe"] == self.nmark:
                self.e(f"s_memtime {s(sM3,2)}")
                self.e("s_waitcnt lgkmcnt(0)")
                self.e(f"s_mov_b32 s{sP0+1}, s{sM3}")

    def poll_item(self, addr, soff):
        it = Item(f"buffer_load_dword {v(vPOLL)}, {v(addr)}, {s(S_WS,4)}, {soff} offen sc1", lat=OPT["miss"])
        self.P.append(it)
        return it

    def poll_check(self, addr, soff):
        self.force_p()
        self.await_([k for k, r in self.a.vm if f"v{vPOLL}" in r])
        self.nlab += 1
        n = self.nlab
        if OPT["stamps"]:
            self.e(f"s_mov_b32 s{sSPIN}, 0")
        self.e(f"v_cmp_ne_u32 vcc, {v(vT)}, {v(vPOLL)}")
        self.e(f"s_cbranch_vccnz L_slow{n}")
        self.a.label(f"L_back{n}")
        if OPT["stamps"]:
            self.npoll = getattr(self, "npoll", 0) + 1
            self.e(f"v_writelane_b32 v{vST}, s{sSPIN}, {15 + self.npoll}")
        self.tail += [f"L_slow{n}:", f"s_mov_b32 s{sSPIN}, 0", f"L_spin{n}:",
                      f"buffer_load_dword {v(vPOLL)}, {v(addr)}, {s(S_WS,4)}, {soff} offen sc1",
                      f"s_add_u32 s{sSPIN}, s{sSPIN}, 1",
                      "s_waitcnt vmcnt(0)",
                      f"v_cmp_ne_u32 vcc, {v(vT)}, {v(vPOLL)}",
                      f"s_cmp_gt_u32 s{sSPIN}, 0x20000",
                      f"s_cbranch_scc1 L_back{n}",
                      f"s_cbranch_vccnz L_spin{n}",
                      f"s_branch L_back{n}"]

    def pub_text(self, soff):
        return f"buffer_store_dword {v(vT)}, {v(vL0)}, {s(S_WS,4)}, s{soff} offen sc1"

    def publish(self, soff, toks, n, pre=()):
        it = Item(self.pub_text(soff), pre=pre, after=lambda: toks if len(toks) == n else None)
        self.P.append(it)
        return it

    def prologue(self):
        e, m = self.e, self.m
        e("s_cmp_ge_u32 s2, 256")
        e("s_cbranch_scc1 L_end")
        if OPT["probe"] or OPT["stamps"]:
            e(f"s_memtime {s(sP0,2)}")
        if OPT["stamps"]:
            e("s_memrealtime s[88:89]")
        def kargs(base):
            for srd, off in ((S_X, 0), (S_WQ, 8), (S_WS, 88), (S_GW, 64), (S_B1, 40), (S_W1, 32), (S_W2, 48), (S_WO, 16), (S_B2, 56), (S_OUT, 72)):
                e(f"s_load_dwordx2 {s(srd,2)}, {base}, {off}")
        if OPT["probe"] == 102:
            e("s_mov_b64 s[98:99], s[0:1]")
        else:
            kargs("s[0:1]")
        if OPT["probe"] == 101:
            e("s_waitcnt lgkmcnt(0)")
            e(f"s_memtime {s(sM3,2)}")
            e("s_waitcnt lgkmcnt(0)")
            e(f"s_mov_b32 s{sP0+1}, s{sM3}")
        e(f"s_getpc_b64 {s(S_CODE,2)}")
        self.a.label("L_pc")
        e(f"s_lshr_b32 s{sLOC}, s2, 3")
        e(f"v_lshrrev_b32 v1, 6, v0")
        e(f"v_and_b32 v{vL}, 63, v0")
        e(f"s_and_b32 s{sT0}, s{sLOC}, 7")
        e(f"v_readfirstlane_b32 s{sW}, v1")
        e(f"s_mov_b32 s{S_CODE+2}, L_code_end-L_pc")
        e(f"s_mov_b32 s{S_CODE+3}, 0x20000")
        e(f"v_and_b32 v24, 7, v{vL}")
        e(f"v_lshl_add_u32 v24, v1, 3, v24")
        e(f"v_lshlrev_b32 v24, 7, v24")
        e(f"s_lshl_b32 s{sT1}, s{sT0}, 12")
        if OPT["cpf"]:
            e(f"buffer_load_dword v250, v24, {s(S_CODE,4)}, 0 offen")
        e(f"buffer_load_dword v251, v24, {s(S_CODE,4)}, s{sT1} offen")
        e(f"s_lshr_b32 s{sT1}, s{sLOC}, 3")
        e(f"s_bfe_u32 s{sRB}, s2, 0x20001")
        e(f"s_lshl_b32 s{sRB}, s{sRB}, 2")
        e(f"s_add_u32 s{sRB}, s{sRB}, s{sT1}")
        e(f"s_and_b32 s{sC}, s2, 1")
        e(f"s_lshl_b32 s{sC}, s{sC}, 3")
        e(f"s_add_u32 s{sC}, s{sC}, s{sT0}")
        e(f"s_lshl_b32 s{sT1}, s{sT1}, 1")
        e(f"s_add_u32 s{sT0}, s{sT0}, s{sT1}")
        e(f"s_sub_u32 s{sT1}, s{sT0}, 7")
        e(f"s_cmp_ge_u32 s{sT0}, 7")
        e(f"s_cselect_b32 s{sG}, s{sT1}, s{sT0}")
        if OPT["rot1"] == 3:
            e(f"s_bfe_u32 s{sT0}, s2, 0x20001")
            e(f"s_add_u32 s{sT0}, s{sT0}, s{sG}")
            e(f"s_sub_u32 s{sT1}, s{sT0}, 7")
            e(f"s_cmp_ge_u32 s{sT0}, 7")
            e(f"s_cselect_b32 s{sG}, s{sT1}, s{sT0}")
        if OPT["rot1"] == 0:
            e(f"s_mov_b32 s{sG}, 0")
        if OPT["rot1"] == 2:
            e(f"s_and_b32 s{sT0}, s2, 7")
            e(f"s_cmp_eq_u32 s{sT0}, 7")
            e(f"s_cselect_b32 s{sG}, 0, s{sT0}")
        e(f"s_lshl_b32 s{sRB}, s{sRB}, 2")
        e(f"s_add_u32 s{sRB}, s{sRB}, s{sW}")
        for srd, size in ((S_X, 2048 * 896), (S_WQ, 448 * 2688)):
            e(f"s_mov_b32 s{srd+2}, {size}")
            e(f"s_mov_b32 s{srd+3}, 0x20000")
        e(f"v_lshrrev_b32 v24, 3, v{vL}")
        e(f"s_lshl_b32 s{sT0}, s{sRB}, 5")
        e(f"v_add_u32 v24, s{sT0}, v24")
        e(f"v_mul_u32_u24 v24, 896, v24")
        e(f"v_lshrrev_b32 v26, 4, v{vL}")
        e(f"v_and_b32 v27, 7, v{vL}")
        e(f"v_xor_b32 v26, v26, v27")
        e(f"v_lshl_add_u32 v{vXD}, v26, 4, v24")
        e(f"v_xor_b32 v{vXD+1}, 64, v{vXD}")
        e(f"v_add_u32 v{vXD+2}, {2*(7168-1024)}, v{vXD}")
        e(f"v_add_u32 v{vXD+3}, {3*(7168-1024)}, v{vXD+1}")
        e(f"v_add_u32 v{vXD+1}, {7168-1024}, v{vXD+1}")
        e(f"s_mul_i32 s{sMX}, s{sW}, 12288")
        e(f"s_add_u32 s{sRING}, s{sMX}, {RED}")
        e(f"s_add_u32 s{sMX}, s{sMX}, {XST}")
        e(f"s_mul_i32 s{sT0}, s{sC}, 168")
        e(f"s_and_b32 s{sT0}, s{sT0}, 0xfffffff0")
        e(f"s_mul_i32 s{sT1}, s{sW}, {16*2688}")
        e(f"s_add_u32 s{sT0}, s{sT0}, s{sT1}")
        e(f"s_movk_i32 s{sT1}, 2688")
        for i in range(3):
            q = vL
            if i:
                q = 24
                e(f"v_add_u32 v24, {64*i}, v{vL}")
            e(f"v_mul_u32_u24 v26, 171, v{q}")
            e(f"v_lshrrev_b32 v26, 11, v26")
            e(f"v_mad_i32_i24 v24, v26, -12, v{q}")
            e(f"v_min_u32 v24, 10, v24")
            e(f"v_lshl_add_u32 v24, v24, 4, s{sT0}")
            e(f"v_mad_u32_u24 v{vWQ+i}, v26, s{sT1}, v24")
            if i < 2:
                e(f"s_sub_u32 s{sT0}, s{sT0}, 1024")
        e(f"s_mul_i32 s{sMQ}, s{sW}, {16*192}")
        e(f"s_add_u32 s{sMQ}, s{sMQ}, {R_Q}")
        if OPT["probe"] == 102:
            e("s_waitcnt lgkmcnt(0)")
            e(f"s_memtime {s(sM3,2)}")
            e("s_waitcnt lgkmcnt(0)")
            e(f"s_mov_b32 s{sP0+1}, s{sM3}")
            kargs("s[98:99]")
        e("s_waitcnt lgkmcnt(0)")
        self.a.clk = self.a.pipe_free = 0
        self.a.allv = []
        self.a.done = {k: 0 for k in self.a.done}
        if OPT["wsoff"]:
            e(f"s_add_u32 s{S_WS}, s{S_WS}, {OPT['wsoff'] << 20}")
            e(f"s_addc_u32 s{S_WS+1}, s{S_WS+1}, 0")
        if OPT["stamps"]:
            e(f"v_writelane_b32 v{vST}, s88, 29")
        self.stamp("kernarg")
        self.ctok, self.wtok, self.xrd, self.ftok = {}, {}, {}, {}
        self.add_chunk(0)
        self.force(self.C)
        for i in range(1, 7):
            e(f"s_add_u32 s{sT0}, s{sG+i-1}, 1")
            e(f"s_cmp_eq_u32 s{sT0}, 7")
            e(f"s_cselect_b32 s{sG+i}, 0, s{sT0}")
        self.add_chunk(1)
        self.add_chunk(2)
        for srd, size in ((S_WS, WS_SIZE), (S_GW, 896), (S_B1, 3584), (S_W1, 448 * 3584), (S_B2, 896), (S_OUT, 2048 * 896)):
            m(f"s_mov_b32 s{srd+2}, {size}")
            m(f"s_mov_b32 s{srd+3}, 0x20000")
        m(f"s_lshr_b32 s{sLIGHT}, 0x1248, s{sC}")
        m(f"s_and_b32 s{sLIGHT}, s{sLIGHT}, 1")
        m(f"s_bfm_b32 s{sT0}, s{sC}, 0")
        m(f"s_and_b32 s{sT0}, s{sT0}, 0x1248")
        m(f"s_bcnt1_i32_b32 s{sT0}, s{sT0}")
        m(f"s_lshl_b32 s{sUA}, s{sC}, 1")
        m(f"s_sub_u32 s{sUA}, s{sUA}, s{sT0}")
        m(f"s_add_u32 s{sUB}, s{sUA}, 1")
        m(f"s_sub_u32 s{sUB}, s{sUB}, s{sLIGHT}")
        m(f"s_lshl_b32 s{sT0}, s{sW}, 6")
        m(f"v_add_u32 v26, s{sT0}, v{vL}")
        m(f"s_lshl_b32 s{sT1}, s{sG}, 6")
        for h in range(2):
            m(f"v_add_u32 v27, s{sT1}, v26")
            if h:
                m(f"v_add_u32 v27, 256, v27")
            m(f"v_subrev_u32 v28, 448, v27")
            m(f"v_min_u32 v27, v27, v28")
            m(f"v_lshlrev_b32 v{42+h}, 1, v27")
        m(f"s_lshl_b32 s{sT0}, s{sUA}, 7")
        m(f"s_cmp_eq_u32 s{sLIGHT}, 1")
        m(f"s_cselect_b32 s{sT0}, {OOB}, s{sT0}")
        m(f"s_lshl_b32 s{sT1}, s{sUB}, 7")
        m(f"s_sub_u32 s{sT1}, s{sT1}, 128")
        m(f"s_mov_b32 s{sHI}, 0")
        m(f"s_mov_b32 s{sHI+1}, -1")
        m(f"v_mov_b32 v27, s{sT0}")
        m(f"v_mov_b32 v28, s{sT1}")
        m(f"v_cndmask_b32 v27, v27, v28, {s(sHI,2)}")
        m(f"v_lshl_add_u32 v44, v{vL}, 2, v27")
        m(f"v_mov_b32 v45, {E_OFF}")
        self.a.next_lat = OPT["miss"]
        e(f"buffer_load_dword v{vT}, v45, {s(S_WS,4)}, 0 offen sc1")
        for h in range(2):
            e(f"buffer_load_ushort v{30+h}, v{42+h}, {s(S_GW,4)}, 0 offen")
        e(f"s_mov_b32 m0, {TB1}")
        self.m0 = None
        self.tB1 = e(f"buffer_load_dword v44, {s(S_B1,4)}, 0 offen lds")
        m(f"v_lshlrev_b32 v{vLIN}, 4, v{vL}")
        m(f"v_bfe_u32 v24, v{vL}, 2, 2")
        m(f"v_lshrrev_b32 v27, 5, v{vL}")
        m(f"v_bfe_u32 v28, v{vL}, 4, 1")
        m(f"v_and_b32 v29, 3, v{vL}")
        m(f"v_lshlrev_b32 v29, 3, v29")
        m(f"v_lshl_add_u32 v29, v28, 5, v29")
        m(f"v_lshl_add_u32 v40, v27, 3, v24")
        m(f"v_mul_u32_u24 v41, 192, v40")
        m(f"s_and_b32 s{sT0}, s{sC}, 1")
        m(f"s_lshl_b32 s{sT0}, s{sT0}, 3")
        m(f"s_add_u32 s{sT0}, s{sT0}, {R_Q}")
        m(f"v_add3_u32 v{vTRQ}, v41, v29, s{sT0}")
        m(f"v_lshrrev_b32 v41, 1, v24")
        m(f"v_lshl_add_u32 v29, v41, 6, v29")
        m(f"v_lshl_add_u32 v{vTRF0}, v40, 7, v29")
        m(f"v_xor_b32 v{vTRF1}, 64, v{vTRF0}")
        m(f"v_lshl_add_u32 v40, v27, 2, v24")
        m(f"v_lshl_add_u32 v40, v40, 7, v29")
        m(f"s_lshl_b32 s{sT0}, s{sW}, 3")
        m(f"s_lshr_b32 s{sT0}, 0x60204000, s{sT0}")
        m(f"s_and_b32 s{sOUT}, s{sT0}, 0xff")
        m(f"v_xor_b32 v40, s{sOUT}, v40")
        m(f"v_add_u32 v{vBT0}, s{sRING}, v40")
        m(f"v_xor_b32 v{vBT1}, 64, v{vBT0}")
        m(f"v_and_b32 v40, 31, v{vL}")
        m(f"v_bfe_u32 v41, v{vL}, 1, 3")
        m(f"v_xor_b32 v41, v41, v27")
        m(f"v_lshlrev_b32 v41, 4, v41")
        m(f"v_lshl_add_u32 v40, v40, 7, v41")
        m(f"v_add_u32 v{vXR}, s{sMX}, v40")
        for k in range(1, 4):
            m(f"v_xor_b32 v{vXR+k}, {32*k}, v{vXR}")
        m(f"v_lshlrev_b32 v{vTBL}, 3, v27")
        m(f"v_add_u32 v{vTBL}, {TB1 - TB1 % 2048}, v{vTBL}")
        m(f"v_and_b32 v40, 3, v{vL}")
        m(f"v_lshl_add_u32 v40, v27, 2, v40")
        m(f"v_bfe_u32 v41, v{vL}, 2, 3")
        m(f"v_lshl_add_u32 v40, v41, 3, v40")
        m(f"v_lshlrev_b32 v{vPV}, 4, v40")
        m(f"v_cmp_eq_u32 vcc, 0, v{vL}")
        m(f"v_mov_b32 v40, {OOB}")
        m(f"v_mov_b32 v{vK1}, {K1}")
        m(f"v_cndmask_b32 v{vL0}, v40, 0, vcc")
        m(f"s_lshl_b32 s{sT0}, s2, 2")
        m(f"s_add_u32 s{sT0}, s{sT0}, s{sW}")
        m(f"s_mul_i32 s{sT0}, s{sT0}, 49")
        m(f"s_lshr_b32 s{sPF1}, s{sT0}, 2")
        m(f"s_lshl_b32 s{sPF1}, s{sPF1}, 7")
        m(f"s_lshr_b32 s{sPF2}, s{sT0}, 4")
        m(f"s_lshl_b32 s{sPF2}, s{sPF2}, 7")
        m(f"s_mul_i32 s{sSLA}, s2, {OPT['pfa1'] - OPT['pfa0']}")
        m(f"s_lshr_b32 s{sSLA}, s{sSLA}, 8")
        m(f"s_mul_i32 s{sSLB}, s2, {OPT['pfb1'] - OPT['pfb0']}")
        m(f"s_lshr_b32 s{sSLB}, s{sSLB}, 8")
        for srd, size in ((S_W2, 1792 * 896), (S_WO, 448 * 896)):
            m(f"s_mov_b32 s{srd+2}, {size}")
            m(f"s_mov_b32 s{srd+3}, 0x20000")
        self.setup_later()
        m(f"s_lshl_b32 s{sT1}, s{sQB}, 4")
        m(f"s_add_u32 s{sT1}, s{sT1}, s{sJ}")
        m(f"s_lshl_b32 s{sF3P}, s{sT1}, 7")
        m(f"s_add_u32 s{sF3P}, s{sF3P}, {F3}")
        m(f"s_lshl_b32 s{sOS}, s{sT1}, 11")
        m(f"s_add_u32 s{sOS}, s{sOS}, {O_BASE}")
        m(f"s_lshl_b32 s{sT0}, s{sJ}, 6")
        m(f"s_add_u32 s{sKOFF}, s{sT0}, s{sKV0}")
        m(f"s_lshl_b32 s{sKOFF}, s{sKOFF}, 11")
        m(f"s_add_u32 s{sQOFF}, s{sT0}, s{sQB}")
        m(f"s_lshl_b32 s{sQOFF}, s{sQOFF}, 11")
        m(f"s_mul_i32 s{sMKV}, s{sW}, 6144")
        m(f"s_lshl_b32 s{sT0}, s{sQB}, 7")
        m(f"s_add_u32 s{sF0R}, s{sT0}, {F0}")
        m(f"s_add_u32 s{sGQ}, s{sT0}, {G_BASE}")
        m(f"s_mov_b32 s{sK2}, {K2}")
        m(f"s_mov_b32 s{sK2+1}, {K2}")

    def setup_later(self):
        m = self.m
        m(f"s_and_b32 s{sT0}, s2, 7")
        m(f"s_and_b32 s{sT1}, s{sLOC}, 1")
        m(f"s_lshl_b32 s{sJ}, s{sT0}, 1")
        m(f"s_add_u32 s{sJ}, s{sJ}, s{sT1}")
        m(f"s_mul_i32 s{sT1}, s{sLOC}, 37")
        m(f"s_lshr_b32 s{sT1}, s{sT1}, 8")
        m(f"s_mul_i32 s{sCT}, s{sT1}, 7")
        m(f"s_sub_u32 s{sCT}, s{sLOC}, s{sCT}")
        m(f"s_cmp_lt_u32 s{sLOC}, 28")
        m(f"s_cselect_b32 s{sT1}, s{sT1}, s{sCT}")
        m(f"s_lshl_b32 s{sRB0}, s{sT0}, 2")
        m(f"s_add_u32 s{sRB0}, s{sRB0}, s{sT1}")
        m(f"s_lshl_b32 s{sRB0}, s{sRB0}, 1")
        m(f"s_mul_i32 s{sBOFF}, s{sW}, {448*896}")
        m(f"s_mul_i32 s{sAOFF}, s{sRB0}, 112")
        m(f"s_mul_i32 s{sT0}, s{sW}, 28")
        m(f"s_add_u32 s{sAOFF}, s{sAOFF}, s{sT0}")
        m(f"s_lshl_b32 s{sAOFF}, s{sAOFF}, 10")
        m(f"s_add_u32 s{sAOFF}, s{sAOFF}, {H_BASE}")
        m(f"s_lshl_b32 s{sAEND}, s{sRB0}, 2")
        m(f"s_add_u32 s{sAEND}, s{sAEND}, s{sW}")
        m(f"s_lshl_b32 s{sAEND}, s{sAEND}, 13")
        m(f"s_add_u32 s{sAEND}, s{sAEND}, {O_BASE}")
        m(f"s_mul_i32 s{sBEND}, s{sW}, {112*896}")
        m(f"s_lshl_b32 s{sGD}, s{sRB0}, 7")
        m(f"s_add_u32 s{sGD}, s{sGD}, {G_BASE}")
        m(f"s_lshl_b32 s{sT0}, s{sCT}, 12")
        m(f"s_add_u32 s{sT0}, s{sT0}, {32*896*OPT['pb0']}")
        m(f"s_cmp_lt_u32 s{sLOC}, 28")
        m(f"s_cselect_b32 s{sT0}, 0, s{sT0}")
        m(f"s_cselect_b32 s{sT1}, 0, {2048*OPT['pa0'] if OPT['ipf'] else OOB}")
        m(f"s_cselect_b32 s{sBT}, {32*896}, 0x4000" if False else f"s_cselect_b32 s{sBT}, 7, 4")
        m(f"s_cselect_b64 {s(sM3,2)}, -1, 0")
        m(f"s_lshl_b32 s{sBT}, s{sBT}, 12")
        m(f"s_add_u32 s{sBOFF}, s{sBOFF}, s{sT0}")
        m(f"s_add_u32 s{sAOFF}, s{sAOFF}, s{sT1}")
        m(f"s_lshl_b32 s{sF2O}, s{sRB0}, 11")
        m(f"s_add_u32 s{sF2O}, s{sF2O}, {F2}")
        m(f"v_lshrrev_b32 v24, 3, v{vL}")
        m(f"v_lshlrev_b32 v28, 2, v28")
        m(f"v_and_b32 v29, 7, v{vL}")
        m(f"v_xor_b32 v28, v28, v29")
        m(f"v_lshlrev_b32 v28, 4, v28")
        m(f"v_mul_u32_u24 v29, 3584, v24")
        m(f"s_mul_i32 s{sT0}, s{sW}, {16*3584}")
        m(f"v_add3_u32 v{vW1A0}, v29, v28, s{sT0}")
        m(f"v_add_u32 v{vW1A1}, {8*3584-1024}, v{vW1A0}")
        m(f"v_mul_u32_u24 v29, 896, v24")
        m(f"s_lshl_b32 s{sT0}, s{sCT}, 7")
        m(f"v_add3_u32 v{vBD}, v29, v28, s{sT0}")
        for k in range(1, 4):
            m(f"v_add_u32 v{vBD+k}, {k*(7168-1024)}, v{vBD}")
        for k in range(4):
            m(f"v_cndmask_b32 v{vBD+k}, v{vLIN}, v{vBD+k}, {s(sM3,2)}")
        m(f"s_lshl_b32 s{sMB}, s{sW}, 11")
        m(f"s_sub_u32 s{sMA}, s{sMB}, {64*128 - R_A}")
        m(f"s_add_u32 s{sMB}, s{sMB}, {R_B}")
        m(f"s_mul_i32 s{sT0}, s{sC}, 3")
        m(f"s_sub_u32 s{sNQ}, 16, s{sT0}")
        m(f"s_lshl_b32 s{sT0}, s{sT0}, 6")
        m(f"s_add_u32 s{sT0}, s{sT0}, s{sRB}")
        m(f"s_lshl_b32 s{sQS}, s{sT0}, 11")
        m(f"s_mul_i32 s{sT1}, s{sRB}, 28")
        m(f"s_add_u32 s{sT0}, s{sT1}, s{sUB}")
        m(f"s_lshl_b32 s{sT0}, s{sT0}, 12")
        m(f"s_add_u32 s{sHB}, s{sT0}, {H_BASE}")
        m(f"s_sub_u32 s{sHA}, s{sHB}, 4096")
        m(f"s_lshl_b32 s{sUA}, s{sUA}, 7")
        m(f"s_lshl_b32 s{sUB}, s{sUB}, 7")
        m(f"s_cmp_eq_u32 s{sLIGHT}, 1")
        m(f"s_cselect_b32 s{sHA}, {OOB}, s{sHA}")
        m(f"s_cselect_b32 s{sUA}, {OOB}, s{sUA}")
        m(f"s_cselect_b32 s{sMA}, {DUMMY}, s{sMA}")
        m(f"s_cselect_b32 s{sMAS}, 0, {64*128}")
        m(f"s_lshl_b32 s{sT0}, s{sRB}, 4")
        m(f"s_add_u32 s{sT0}, s{sT0}, s{sC}")
        m(f"s_lshl_b32 s{sT0}, s{sT0}, 7")
        m(f"s_add_u32 s{sF1}, s{sT0}, {F1}")
        m(f"s_lshl_b32 s{sT0}, s{sRB}, 7")
        m(f"s_add_u32 s{sGS}, s{sT0}, {G_BASE}")
        m(f"s_add_u32 s{sF0P}, s{sT0}, {F0}")
        m(f"s_cmp_eq_u32 s{sC}, 3")
        m(f"s_cselect_b32 s{sGS}, s{sGS}, {OOB}")
        m(f"s_cselect_b32 s{sF0P}, s{sF0P}, {OOB}")
        m(f"s_lshr_b32 s{sT0}, s{sLOC}, 1")
        m(f"s_lshl_b32 s{sT0}, s{sT0}, 2")
        m(f"s_add_u32 s{sQB}, s{sT0}, s{sW}")
        m(f"s_sub_u32 s{sFIRST}, 8, s{sQB}")
        m(f"s_max_i32 s{sFIRST}, s{sFIRST}, 0")
        m(f"s_mul_i32 s{sT1}, s{sW}, 3")
        m(f"s_add_u32 s{sT0}, s{sT0}, s{sT1}")
        m(f"s_sub_u32 s{sKV0}, s{sT0}, 8")
        m(f"s_mul_i32 s{sT2}, s{sJ}, 43")
        m(f"s_lshr_b32 s{sT2}, s{sT2}, 7")
        m(f"s_lshl_b32 s{sT1}, s{sQB}, 4")
        m(f"s_add_u32 s{sT2}, s{sT1}, s{sT2}")
        m(f"v_mov_b32 v{vF1A}, s{sT2}")
        for part, add in ((0, 16), (1, 32)):
            m(f"s_add_u32 s{sT2}, s{sJ}, {add}")
            m(f"s_mul_i32 s{sT2}, s{sT2}, 43")
            m(f"s_lshr_b32 s{sT2}, s{sT2}, 7")
            m(f"v_subrev_u32 v40, {3*part}, v{vL}")
            m(f"v_add_u32 v41, s{sKV0}, v40")
            m(f"v_cmp_gt_u32 {s(sM,2)}, 3, v40")
            m(f"v_cmp_le_i32 vcc, 0, v41")
            m(f"v_lshl_add_u32 v41, v41, 4, s{sT2}")
            m(f"s_and_b64 {s(sM,2)}, {s(sM,2)}, vcc")
            m(f"v_cndmask_b32 v{vF1A}, v{vF1A}, v41, {s(sM,2)}")
        m(f"v_lshlrev_b32 v{vF1A}, 7, v{vF1A}")
        m(f"v_add_u32 v{vF1A}, {F1}, v{vF1A}")
        m(f"v_bfe_u32 v40, v{vL}, 2, 1")
        m(f"v_and_b32 v41, 3, v{vL}")
        m(f"s_lshl_b32 s{sT0}, s{sW}, 2")
        m(f"v_add_u32 v41, s{sT0}, v41")
        m(f"v_cmp_gt_u32 vcc, 8, v{vL}")
        m(f"v_lshl_add_u32 v41, v40, 4, v41")
        m(f"v_and_b32 v40, 1, v{vL}")
        m(f"v_lshl_add_u32 v40, v40, 4, 3")
        m(f"v_cndmask_b32 v{vF23A}, v40, v41, vcc")
        m(f"v_lshlrev_b32 v{vF23A}, 7, v{vF23A}")
        m(f"s_mul_i32 s{sT0}, s{sRB0}, {32*896}")
        m(f"s_lshl_b32 s{sT1}, s{sCT}, 7")
        m(f"s_add_u32 s{sT0}, s{sT0}, s{sT1}")
        m(f"s_add_u32 s{sOUT}, s{sOUT}, s{sT0}")

    def add_chunk(self, i):
        toks = self.ctok[i] = []
        lx = OPT["miss"] + 300 if i < 1 else None
        lw = OPT["miss"] + 300 if i < 2 else None
        xs, ws = [], []
        for k in range(4):
            xs.append(Item(f"buffer_load_dwordx4 v{vXD+k}, {s(S_X,4)}, s{sCA} offen" + (f" offset:{1024*k}" if k else "") + NT(1) + " lds", toks,
                           pre=[f"s_lshl_b32 s{sCA}, s{sG+i}, 7"] if k == 0 else (), m0=(sMX, (i % 3) * 4096), lat=lx,
                           after=(lambda: self.xrd[i - 3] if len(self.xrd.get(i - 3, ())) == 4 else None) if i >= 3 and k == 0 else None))
        for k in range(3):
            ws.append(Item(f"buffer_load_dwordx4 v{vWQ+k}, {s(S_WQ,4)}, s{sCB} offen" + (f" offset:{1024*k}" if k else "") + NT(2) + " lds", toks,
                           pre=[f"s_mul_i32 s{sCB}, s{sG+i}, {64*2688}"] if k == 0 else (), m0=(sMQ, (i % 4) * 64 * 192), lat=lw))
        self.C.extend(xs + ws if i == 0 else ws + xs)
        self.clast = getattr(self, "clast", {})
        self.clast[i] = self.C[-1]

    def add_w1(self, unit, i):
        toks = self.wtok[(unit, i)] = []
        pre = [f"s_mul_i32 s{sCB}, s{sG+i}, {64*3584}", f"s_add_u32 s{sCB}, s{sCB}, s{sUA+unit}"]
        pre0 = [f"s_add_u32 s{sMA}, s{sMA}, s{sMAS}"] if unit == 0 else []
        for k in range(2):
            self.C.append(Item(f"buffer_load_dwordx4 v{vW1A0+k}, {s(S_W1,4)}, s{sCB} offen" + (" offset:1024" if k else "") + NT(4) + " lds", toks,
                               pre=pre if k == 0 else (), pre0=pre0 if k == 0 else (), m0=(sMB, i * 8192) if unit else (sMA, 0, i),
                               lat=OPT["miss"] if i < 4 else None))
        self.wlast = getattr(self, "wlast", {})
        self.wlast[(unit, i)] = self.C[-1]

    def gate_write(self):
        pe = self.pe
        pe(f"s_cmp_eq_u32 s{sLIGHT}, 1")
        pe(f"s_cselect_b64 {s(sM,2)}, -1, 0")
        pe(f"v_bfe_u32 v27, v26, 1, 1")
        pe(f"v_lshlrev_b32 v28, 7, v26")
        pe(f"v_lshl_add_u32 v28, v27, 6, v28")
        pe(f"v_mov_b32 v29, {DUMMY+2048}")
        pe(f"v_cndmask_b32 v27, v29, v28, {s(sM,2)}")
        pe(f"v_cmp_gt_u32 vcc, 192, v26")
        pe(f"v_add_u32 v28, {256*128}, v28")
        pe(f"s_and_b64 {s(sM,2)}, {s(sM,2)}, vcc")
        pe(f"ds_write_b16 v27, v30")
        pe(f"v_cndmask_b32 v28, v29, v28, {s(sM,2)}")
        pe(f"ds_write_b16 v28, v31")

    def store_addr(self):
        pe = self.pe
        for n, lim in ((0, 11), (1, 10)):
            pe(f"s_cmp_ge_u32 s{sC}, {lim}")
            pe(f"s_cselect_b64 {s(sM,2)}, -1, 0")
            pe(f"s_cselect_b32 s{sT0}, 128, 0")
            pe(f"v_cndmask_b32 v{24+2*n}, v{vLIN}, v{vPV}, {s(sM,2)}")
            pe(f"v_xor_b32 v{25+2*n}, s{sT0}, v{24+2*n}")

    def bias_init(self, acc, tbl, factor=None):
        for t in range(2):
            for mm in range(2):
                o = (tbl % 2048) // 8 + 8 * t + 4 * mm
                self.pe(f"ds_read2_b64 {v(acc+16*t+8+4*mm,4)}, v{vTBL} offset0:{o} offset1:{o+2}")
        for t in range(2):
            for k in range(8):
                src, dst = acc + 16 * t + 8 + k, acc + 16 * t + 2 * k
                self.pe(f"v_lshlrev_b32 v{dst}, 16, v{src}")
                self.pe(f"v_and_b32 v{dst+1}, 0xffff0000, v{src}")
        if factor:
            for k in range(16):
                self.pe(f"v_pk_mul_f32 {v(acc+2*k,2)}, {v(acc+2*k,2)}, {factor}")

    def rd_q(self, sidx, t):
        base = vWR + 12 * (sidx & 1) + 4 * t
        o = 56 * t + (sidx % 16) * 3072
        return [self.e(f"ds_read_b64_tr_b16 {v(base+2*h,2)}, v{vTRQ} offset:{o+768*h}") for h in range(2)]

    def rd_f(self, g, t):
        base = vWR + 8 * (g % 3) + 4 * t
        toks = self.ftok.setdefault(g, [])
        for h in range(2):
            toks.append(self.e(f"ds_read_b64_tr_b16 {v(base+2*h,2)}, v{vTRF0+t} offset:{(g%28)*2048+512*h}"))

    def rd_x(self, sidx):
        self.xrd.setdefault(sidx // 4, []).append(self.e(f"ds_read_b128 {v(vX+4*sidx,4)}, v{vXR+sidx%4} offset:{(sidx//4%3)*4096}"))

    def sync(self, st, last, toks, drain_lds=True):
        self.force(st, last)
        self.await_(toks)
        if drain_lds and self.a.lg:
            self.e("s_waitcnt lgkmcnt(0)")
        self.e("s_barrier")

    def await_(self, toks):
        while self.a.est(toks) > self.a.clk + 8 and self.side_wait(self.a.est(toks)):
            pass
        self.a.need(*toks)

    def force_p(self):
        while self.P:
            it = self.P[0]
            keep, self.P = self.P, deque()
            if it.after:
                self.await_(it.after())
            self.P = keep
            self.emit_item(self.P)

    def side_wait(self, until):
        a = self.a
        best = None
        for st in self.vm_streams() + (self.D,):
            if not st:
                continue
            it = st[0]
            t = a.allv[-1][0] if it.vm else a.clk
            if it.after:
                toks = it.after()
                if toks is None:
                    continue
                t = max(t, a.est(toks))
            t = max(t, a.clk)
            if t + 8 <= until and (best is None or t < best[0]):
                best = (t, st)
        if best:
            self.emit_item(best[1])
        return bool(best)

    def force_read(self, p):
        while not self.blast[p].done:
            it = self.D[0]
            if it.after:
                while it.after() is None:
                    if self.B[0].after:
                        self.a.need(*self.B[0].after())
                    self.emit_item(self.B)
                keep, self.D = self.D, deque()
                self.await_(it.after())
                self.D = keep
            self.emit_item(self.D)

    def prefetch_slot(self, sidx):
        if not OPT["wpf"]:
            return
        for reg, lo, hi, loads in ((sSLA, OPT["pfa0"], OPT["pfa1"], ((S_W1, 12, sPF1),)), (sSLB, OPT["pfb0"], OPT["pfb1"], ((S_W2, 12, sPF1), (S_WO, 3, sPF2)))):
            if lo <= sidx < hi:
                self.nlab += 1
                n = self.nlab
                self.e(f"s_cmp_eq_u32 s{reg}, {sidx - lo}")
                self.e(f"s_cbranch_scc1 L_pf{n}")
                self.a.label(f"L_pfb{n}")
                self.tail += [f"L_pf{n}:"]
                for srd, top, off in loads:
                    self.tail += [f"v_min_u32 v30, {top}, v{vL}", "v_lshlrev_b32 v30, 7, v30", f"buffer_load_dword v31, v30, {s(srd,4)}, s{off} offen"]
                self.tail += [f"s_branch L_pfb{n}"]

    def qkv(self):
        e = self.e
        qtok = {}
        self.sync(self.C, self.clast[0], self.ctok[0])
        self.stamp("chunk 0")
        self.add_chunk(3)
        self.rd_x(0)
        self.rd_x(1)
        for t in range(3):
            qtok[(0, t)] = self.rd_q(0, t)
        for sidx in range(28):
            i = sidx // 4
            if sidx % 2 == 0:
                self.stamp(group=3)
            if sidx == 0:
                self.gate_write()
            if sidx == 4:
                self.push(lambda: self.a.need(self.tB1), 0)
                self.bias_init(vACC + 48, TB1)
            if sidx == 8:
                self.store_addr()
            self.prefetch_slot(sidx)
            for t in range(3):
                if t == 0:
                    self.a.need(*qtok[(sidx, 0)], *qtok[(sidx, 1)])
                acc = v(vACC + 16 * t, 16)
                e(f"{MFMA} {acc}, {v(vWR+12*(sidx&1)+4*t,4)}, {v(vX+4*sidx,4)}, {acc if sidx else 0}")
                if t == 0 and sidx % 4 == 3:
                    self.drain()
                    if sidx < 27:
                        self.sync(self.C, self.clast[i + 1], self.ctok[i + 1])
                        if i + 4 < 7:
                            self.add_chunk(i + 4)
                        if i + 4 == 6:
                            for k in range(7):
                                self.add_w1(0, k)
                    else:
                        self.sync(self.C, self.wlast[(0, 0)], self.wtok[(0, 0)])
                if sidx % 4 == 3 and sidx < 27 and t < 2:
                    self.rd_x(sidx + 1 + t)
                if sidx % 4 == 0 and t < 2:
                    self.rd_x(sidx + 2 + t)
                if sidx < 27:
                    qtok[(sidx + 1, t)] = self.rd_q(sidx + 1, t)
                elif t < 2:
                    self.rd_f(0, t)
                self.gap((12, 16, 12)[t] if sidx % 4 in (1, 2) else (4, 8, 12)[t])
        self.rd_f(1, 0)
        self.rd_f(1, 1)

    QPK = (vTMP + 8, vACC + 40, vACC + 32)

    def qkv_pack(self, t):
        pe = self.pe
        acc, dst = vACC + 16 * t, self.QPK[t]
        pe(f"s_cmp_gt_i32 s{sNQ}, {t-16}")
        pe(f"s_cselect_b32 s{sT0}, 0x3f803f80, s{sT3}")
        pe(f"s_cselect_b32 s{sT2}, s{sT3}, 0")
        pe(f"s_cmp_gt_i32 s{sNQ}, {t}")
        pe(f"s_cselect_b32 s{sT1}, {QSCALE}, 1.0")
        pe(f"s_cselect_b32 s{sT0}, 0, s{sT0}")
        pe(f"s_cselect_b32 s{sT2}, 0, s{sT2}")
        pe(f"v_mov_b32 v28, s{sT0}")
        pe(f"v_mov_b32 v29, s{sT2}")
        for k in range(16):
            pe(f"v_mul_f32 v{acc+k}, s{sT1}, v{acc+k}")
        def store(half):
            pre = [f"s_add_u32 s{sCA}, s{sQS}, {t*64*2048}"] if half == 0 else ()
            self.C.append(Item(f"buffer_store_dwordx4 {v(dst+4*half,4)}, v{24+2*(t>>1)+half}, {s(S_WS,4)}, s{sCA} offen offset:{1024*half} sc1",
                               self.tQKV, pre=pre))
            self.lastS = self.C[-1]
        for k in range(8):
            pe(f"v_cvt_pk_bf16_f32 v{dst+k}, v{acc+2*k}, v{acc+2*k+1}")
            if k == 3:
                self.push(lambda: store(0), 0)
        pe(f"v_cndmask_b32 v{dst+6}, v{dst+6}, v28, {s(sHI,2)}")
        pe(f"v_cndmask_b32 v{dst+7}, v{dst+7}, v29, {s(sHI,2)}")
        self.push(lambda: store(1), 0)

    def b_slot(self, p):
        return (RING - RED) + (p % 6) * 4096 if p % 6 < 3 else (p % 6 - 3) * 4096

    def b_dma(self, p):
        toks = self.btok[p] = []
        out = []
        off = sBOFF if p < 14 else sBEND
        pre = [] if p in (0, 14) else [f"s_add_u32 s{off}, s{off}, " + (f"s{sBT}" if p < 14 else f"{28*896}")]
        post = []
        for k in range(4):
            out.append(Item(f"buffer_load_dwordx4 v{vBD+k}, {s(S_W2 if p < 14 else S_WO,4)}, s{off} offen" + (f" offset:{1024*k}" if k else "") + NT(8) + " lds",
                            toks, pre=pre if k == 0 else (), post=post if k == 3 else (), m0=(sRING, self.b_slot(p)),
                            lat=OPT["miss"] if p < 4 or p >= 14 else None,
                            after=(lambda: self.btr[p - 6] if len(self.btr.get(p - 6, ())) == 8 else None) if k == 0 and p >= 6 else None))
            out[-1].due = min(p, 14 + (p - 14) // 2) - 5
        return out

    def b_read(self, p):
        toks = self.btr[p] = []
        out = []
        for ks in range(2):
            for t in range(2):
                out.append(Item([f"ds_read_b64_tr_b16 {a_(16*(p%16)+8*ks+4*t+2*h,2)}, v{vBT0+t} offset:{self.b_slot(p)+ks*2048+h*1024}" for h in range(2)],
                                toks, after=(lambda: self.btok[p] if len(self.btok[p]) == 4 else None) if ks + t == 0 else None))
        self.blast[p] = out[-1]
        return out

    def gelu_two(self, acc, soff, n, packed):
        pe = self.pe
        T = vTMP + 12
        U = [acc + 2 * n, acc + 2 * n + 2]
        R = [T, T + 2]
        if packed:
            for u, r in zip(U, R):
                pe(f"v_pk_mul_f32 {v(r,2)}, {v(u,2)}, {v(u,2)}")
                pe(f"v_pk_fma_f32 {v(r,2)}, {v(r,2)}, {s(sK2,2)}, {v(vK1,2)} op_sel_hi:[1,1,0]")
                pe(f"v_pk_mul_f32 {v(r,2)}, {v(r,2)}, {v(u,2)}")
            for k in range(4):
                pe(f"v_exp_f32 v{T+k}, v{T+k}")
            for r in R:
                pe(f"v_pk_add_f32 {v(r,2)}, {v(r,2)}, 1.0 op_sel_hi:[1,0]")
            for k in range(4):
                pe(f"v_rcp_f32 v{T+k}, v{T+k}")
            for u, r in zip(U, R):
                pe(f"v_pk_mul_f32 {v(r,2)}, {v(r,2)}, {v(u,2)}")
        else:
            u = U[0]
            for k in range(4):
                pe(f"v_mul_f32 v{T+k}, v{u+k}, v{u+k}")
                pe(f"v_fma_f32 v{T+k}, v{T+k}, s{sK2}, v{vK1}")
                pe(f"v_mul_f32 v{T+k}, v{T+k}, v{u+k}")
            for k in range(4):
                pe(f"v_exp_f32 v{T+k}, v{T+k}")
            for k in range(4):
                pe(f"v_add_f32 v{T+k}, 1.0, v{T+k}")
            for k in range(4):
                pe(f"v_rcp_f32 v{T+k}, v{T+k}")
            for k in range(4):
                pe(f"v_mul_f32 v{T+k}, v{T+k}, v{u+k}")
        for d in range(2):
            pe(f"v_cvt_pk_bf16_f32 v{acc+n+d}, v{T+2*d}, v{T+2*d+1}")
        if n % 4 == 2:
            fr = n // 4
            self.push(lambda: self.C.append(Item(
                f"buffer_store_dwordx4 {v(acc+4*fr,4)}, v{vLIN}, {s(S_WS,4)}, s{soff} offen offset:{fr*1024} sc1", self.tH)), 0)

    def ffn(self, unit):
        e = self.e
        acc0 = vACC + 48 if unit == 0 else vACC
        for sidx in range(28):
            g = 28 * unit + sidx
            if sidx % 4 == 0:
                self.stamp(group=2)
            self.hook(f"ffn{unit}_{sidx}")
            self.a.need(*self.ftok[g])
            for t in range(2):
                acc = v(acc0 + 16 * t, 16)
                e(f"{MFMA} {acc}, {v(vWR+8*(g%3)+4*t,4)}, {v(vX+4*sidx,4)}, {acc}")
                if t == 0 and sidx % 4 == 2:
                    if sidx < 26:
                        k = (unit, sidx // 4 + 1)
                        self.sync(self.C, self.wlast[k], self.wtok[k], drain_lds=False)
                    elif unit == 0:
                        self.drain("biasb")
                        self.sync(self.C, self.wlast[(1, 0)], self.wtok[(1, 0)])
                        e(f"v_add_u32 v{vTRF0}, {R_B-R_A}, v{vTRF0}")
                        e(f"v_add_u32 v{vTRF1}, {R_B-R_A}, v{vTRF1}")
                        self.add_w1(1, 6)
                        self.B.extend(self.b_dma(3) + self.b_dma(4) + self.b_dma(5))
                        for p in range(12):
                            self.B.extend(self.b_dma(p + 6))
                        for p in range(16):
                            self.D.extend(self.b_read(p))
                if g + 2 < 56:
                    self.rd_f(g + 2, t)
                self.gap((16, 12)[t])

    def phase1(self):
        e, pe, m = self.e, self.pe, self.m
        self.btok, self.btr, self.blast = {}, {}, {}
        self.tQKV, self.tH, tG = [], [], []
        self.qkv()
        self.stamp("qkv done")
        e(f"s_cmp_lt_u32 s{sLOC}, 28")
        if not OPT["ipf"]:
            e(f"s_cselect_b32 s{S_W2+2}, {1792*896}, 0")
        e(f"s_cselect_b32 s{S_WO+2}, {448*896}, 0")
        self.add_w1(1, 0)
        pe(f"s_movk_i32 s{sT3}, 0x3f80")
        self.qkv_pack(2)
        self.push(lambda: self.add_w1(1, 1), 0)
        self.qkv_pack(1)
        self.qkv_pack(0)
        self.push(lambda: [self.add_w1(1, k) for k in range(2, 6)], 0)
        self.bias_init(vACC, TB1 + 128)
        pe(f"v_add_u32 v{vT}, {TAG_STEP}, v{vT}")
        self.mark("biasb")
        self.B.extend(self.b_dma(0) + self.b_dma(1) + self.b_dma(2))
        self.ffn(0)
        self.force(self.C, self.lastS)
        self.stamp("ffn a done")
        accA = vACC + 48
        pub1 = self.publish(sF1, self.tQKV, 6)
        pe(f"v_mul_f32 v{vGATE}, {fbits(-math.log2(math.e))}, v{accA}")
        pe(f"v_exp_f32 v{vGATE}, v{vGATE}")
        pe(f"v_and_b32 v{vGA}, 31, v{vL}")
        pe(f"v_add_f32 v{vGATE}, 1.0, v{vGATE}")
        pe(f"v_lshlrev_b32 v{vGA}, 2, v{vGA}")
        pe(f"v_rcp_f32 v{vGATE}, v{vGATE}")
        pe(f"v_mov_b32 v{vTMP}, {OOB}")
        pe(f"v_cndmask_b32 v{vTMP}, v{vGA}, v{vTMP}, {s(sHI,2)}")
        self.push(lambda: self.C.appendleft(Item(f"buffer_store_dword v{vGATE}, v{vTMP}, {s(S_WS,4)}, s{sGS} offen sc1", tG)), 0)
        self.push(lambda: self.publish(sF0P, tG, 1), 0)
        ga = deque(range(0, 16, 2))
        while ga and ga[0] < OPT["npairs"]:
            self.gelu_two(accA, sHA, ga.popleft(), False)
        self.hooks[f"ffn1_{OPT['pub1']}"] = lambda: self.force(self.P, pub1)
        self.hooks[f"ffn1_{OPT['poll1']}"] = lambda: self.poll_item(vF1A, 0)
        self.ffn(1)
        self.poll_check(vF1A, 0)
        e("s_barrier")
        self.att_loads()
        self.stamp("ffn b done")
        m(f"v_lshlrev_b32 v{vTMP+1}, 2, v{vL}")
        self.tB2 = []
        self.C.append(Item(f"buffer_load_dword v{vTMP+1}, {s(S_B2,4)}, s{sCB} offen lds", self.tB2,
                           pre=[f"s_lshl_b32 s{sCB}, s{sCT}, 7"], m0=(None, TB2), lat=OPT["miss"]))
        self.b2item = self.C[-1]
        self.drain()
        for acc, soff, todo in ((accA, sHA, ga), (vACC, sHB, range(0, 16, 2))):
            for n in todo:
                self.gelu_two(acc, soff, n, True)
        self.drain()
        self.stamp("gelu done")

    def att_loads(self):
        self.tKV = []
        items = []
        for bb in range(3):
            for part in range(2):
                pre = ([f"s_add_u32 s{sCA}, s{sKOFF}, {16*64*2048+2048*bb}", f"s_cmp_lt_i32 s{sKV0}, {-bb}", f"s_cselect_b32 s{sCA}, {OOB}, s{sCA}"]
                       if part == 0 else [f"s_add_u32 s{sCA}, s{sCA}, {16*64*2048}"])
                for k in range(2):
                    items.append(Item(f"buffer_load_dwordx4 v{vLIN}, {s(S_WS,4)}, s{sCA} offen" + (" offset:1024" if k else "") + " sc1 lds",
                                      self.tKV, pre=pre if k == 0 else (), m0=(sMKV, KV + 24576 * part + 2048 * bb), lat=OPT["miss"]))
        for k in range(2):
            items.append(Item(f"buffer_load_dwordx4 {v(vQ+4*k,4)}, v{vLIN}, {s(S_WS,4)}, s{sQOFF} offen offset:{1024*k} sc1", self.tKV, lat=OPT["miss"]))
        self.C.extendleft(reversed(items))
        self.kvlast = items[-1]

    def rd_k(self, n):
        for k in range(2):
            self.m(f"ds_read_b128 {v(vKR+8*(n%3)+4*k,4)}, v{vKA} offset:{(n%9)*2048+k*1024}")

    def rd_v(self, i, st):
        for h in range(2):
            self.e(f"ds_read_b64_tr_b16 {v(vVR+4*st+2*h,2)}, v{vVA} offset:{i*2048+256*(2*st+h)}")

    def qk(self, i, k):
        S = v(vS + 16 * (i & 1), 16)
        C = S if k else v(vM0 if i == 0 else vM8 if i == 8 else vCD, 16)
        self.e(f"{MFMA} {S}, {v(vKR+8*(i%3)+4*k,4)}, {v(vQ+4*k,4)}, {C}")

    def patch(self, i, src):
        if not 2 <= i <= 7 and src == "0":
            return
        self.nlab += 1
        n = self.nlab
        self.e(f"s_cmp_eq_u32 s{sFIRST}, {i}" if src == "0" else f"s_cmp_gt_u32 s{sFIRST}, 1")
        self.e(f"s_cbranch_scc1 L_pat{n}")
        self.a.label(f"L_patb{n}")
        self.tail += [f"L_pat{n}:", "s_nop 7"] + [f"v_mov_b32 v{vCD+k}, {src}" for k in range(16)] + ["s_nop 1", f"s_branch L_patb{n}"]

    def attention(self):
        e, pe, m = self.e, self.pe, self.m
        m(f"v_and_b32 v26, 31, v{vL}")
        m(f"v_lshrrev_b32 v27, 5, v{vL}")
        m(f"v_lshlrev_b32 v28, 2, v27")
        m(f"v_sub_u32 v26, v26, v28")
        m(f"s_cmp_gt_u32 s{sFIRST}, 0")
        m(f"s_cselect_b32 s{sT0}, {NINF}, 0")
        m(f"v_mov_b32 v28, s{sT0}")
        m(f"v_mov_b32 v29, {NINF}")
        m(f"s_cmp_gt_u32 s{sFIRST}, 1")
        m(f"s_cselect_b32 s{sT0}, {NINF}, 0")
        prs = (sM, sM3)
        for j0 in range(0, 16, 2):
            for d in range(2):
                jj = j0 + d
                m(f"v_cmp_le_i32 {s(prs[d],2)}, {(jj&3)+8*(jj>>2)}, v26")
            for d in range(2):
                m(f"v_mov_b32 v{vCD+j0+d}, s{sT0}")
            for d in range(2):
                jj = j0 + d
                m(f"v_cndmask_b32 v{vM8+jj}, v29, 0, {s(prs[d],2)}")
                m(f"v_cndmask_b32 v{vM0+jj}, v28, v29, {s(prs[d],2)}")
        m(f"s_lshl_b32 s{sT1}, s{sW}, 11")
        m(f"s_add_u32 s{sT1}, s{sT1}, {KV}")
        m(f"v_add_u32 v{vKA}, s{sT1}, v{vLIN}")
        m(f"v_bfe_u32 v28, v{vL}, 4, 1")
        m(f"v_xor_b32 v27, v27, v28")
        m(f"v_bfe_u32 v26, v{vL}, 2, 2")
        m(f"v_lshl_add_u32 v26, v27, 3, v26")
        m(f"v_and_b32 v27, 1, v{vL}")
        m(f"v_lshl_add_u32 v26, v27, 2, v26")
        m(f"v_lshlrev_b32 v26, 4, v26")
        m(f"v_lshl_add_u32 v26, v28, 10, v26")
        m(f"v_bfe_u32 v27, v{vL}, 1, 1")
        m(f"v_lshl_add_u32 v26, v27, 3, v26")
        m(f"s_add_u32 s{sT1}, s{sT1}, 24576")
        m(f"v_add_u32 v{vVA}, s{sT1}, v26")
        m(f"v_mov_b32 v{vMX}, {NINF}")
        m(f"v_mov_b32 v{vMX+1}, {NINF}")
        m(f"v_mov_b32 v{vF1A}, 0")
        m(f"v_add_u32 v{vA1H}, {112*1024}, v{vLIN}")
        self.sync(self.C, self.kvlast, self.tKV, drain_lds=False)
        self.stamp("kv in")
        self.poll_item(vF1A, f"s{sF0R}")
        pub2 = self.publish(sT3, self.tH, 8, pre=[f"s_add_u32 s{sT3}, s{sF1}, {F2-F1}"])
        self.rd_k(0)
        self.rd_k(1)
        for i in range(10):
            if i % 2 == 0:
                self.stamp(group=4)
            if i < 9:
                self.patch(i, "0")
                self.qk(i, 0)
                self.rd_k(i + 2)
                self.qk(i, 1)
            if i > 0:
                S = vS + 16 * ((i - 1) & 1)
                for k in range(8):
                    (m if k % 4 == 3 else e)(f"v_max3_f32 v{vMX+(k&1)}, v{S+2*k}, v{S+2*k+1}, v{vMX+(k&1)}")
        m(f"v_max_f32 v{vMX}, v{vMX}, v{vMX+1}")
        m(f"v_mov_b32 v{vMX+1}, v{vMX}")
        m(f"v_permlane32_swap_b32 v{vMX}, v{vMX+1}")
        m(f"v_max_f32 v{vMX}, v{vMX}, v{vMX+1}")
        m(f"v_cvt_pk_bf16_f32 v26, -v{vMX}, -v{vMX}")
        m(f"v_lshlrev_b32 v26, 16, v26")
        m(f"v_sub_f32 v26, -v{vMX}, v26")
        m(f"v_cvt_pk_bf16_f32 v27, -v{vMX}, v26")
        m(f"v_and_b32 v28, 0xffff0000, v27")
        m(f"v_sub_f32 v26, v26, v28")
        m(f"v_cndmask_b32 v{vQ+6}, v{vQ+6}, v27, {s(sHI,2)}")
        m(f"v_cvt_pk_bf16_f32 v26, v26, 0")
        self.patch(1, "v29")
        m(f"v_cndmask_b32 v{vQ+7}, v{vQ+7}, v26, {s(sHI,2)}")
        self.qk(0, 0)
        self.rd_k(2)
        self.qk(0, 1)
        self.stamp("pass 1 done")
        O = v(vO, 16)
        for i in range(9):
            S = vS + 16 * (i & 1)
            ex = lambda k: m(f"v_exp_f32 v{S+k}, v{S+k}")
            cv = lambda k: e(f"v_cvt_pk_bf16_f32 v{vP+k}, v{S+2*k}, v{S+2*k+1}")
            self.stamp(group=4)
            if i == OPT["chk0"]:
                self.force(self.C)
                self.poll_check(vF1A, f"s{sF0R}")
                self.C.append(Item(f"buffer_load_dword v{vGATE}, v{vGA}, {s(S_WS,4)}, s{sGQ} offen sc1", lat=OPT["miss"]))
            if i == OPT["poll2"]:
                self.poll_item(vF23A, f"s{sF2O}")
            if i == OPT["chk2"]:
                self.de_start()
            if i < 8:
                self.patch(i + 1, "0")
                self.qk(i + 1, 0)
            self.rd_v(i, 0)
            for k in range(3):
                ex(k)
            if i < 8:
                self.qk(i + 1, 1)
            self.rd_v(i, 1)
            for k in range(3, 9):
                ex(k)
            for k in range(4):
                cv(k)
            ex(9)
            ex(10)
            e(f"{MFMA} {O}, {v(vVR,4)}, {v(vP,4)}, {O if i else 0}")
            if i < 6:
                self.rd_k(i + 3)
            for k in range(11, 16):
                ex(k)
            for k in range(4, 8):
                cv(k)
            self.side()
            e(f"{MFMA} {O}, {v(vVR+4,4)}, {v(vP+4,4)}, {O}")
        self.force(self.C, self.b2item)
        self.a.need(*self.tB2)
        m(f"v_lshrrev_b32 v26, 1, v{vGA}")
        m(f"ds_read_u16 v{vBI}, v26 offset:{TB2}")
        m(f"ds_read_u16 v{vBI+4}, v26 offset:{TB2+64}")
        m(f"s_cmp_eq_u32 s{sW}, 0")
        m(f"s_cselect_b32 s{sT0}, 0x3f80, 0")
        m(f"v_mov_b32 v26, s{sT0}")
        for k in (1, 2, 3, 5, 6, 7, 9, 10, 11):
            m(f"v_mov_b32 v{vBI+k}, 0")
        m(f"v_cndmask_b32 v{vBI+8}, v26, 0, {s(sHI,2)}")
        m(f"v_mov_b32 v{vMX}, v{vO+12}")
        m(f"v_mov_b32 v{vMX+1}, v{vO+12}")
        m(f"v_permlane32_swap_b32 v{vMX}, v{vMX+1}")
        m(f"v_rcp_f32 v{vMX}, v{vMX+1}")
        m(f"v_mul_f32 v{vMX}, v{vMX}, v{vGATE}")
        for k in range(8):
            m(f"v_pk_mul_f32 {v(vO+2*k,2)}, {v(vO+2*k,2)}, {v(vMX,2)} op_sel_hi:[1,0]")
        self.tO = []
        for k in range(8):
            m(f"v_cvt_pk_bf16_f32 v{vP+k}, v{vO+2*k}, v{vO+2*k+1}")
            if k == 3:
                self.P.append(Item(f"buffer_store_dwordx4 {v(vP,4)}, v{vLIN}, {s(S_WS,4)}, s{sOS} offen sc1", self.tO))
        m(f"v_cndmask_b32 v{vP+6}, v{vP+6}, 0, {s(sHI,2)}")
        self.P.append(Item(f"buffer_store_dwordx4 {v(vP+4,4)}, v{vLIN}, {s(S_WS,4)}, s{sOS} offen offset:1024 sc1", self.tO))
        self.drain()
        self.force(self.P)
        self.stamp("attention done")

    def ar(self, p, k):
        return (64, 80, 104, 120)[p % 4] + 4 * k

    def a_load(self, p):
        for n in range(4):
            if p < 14:
                ad, so, imm = (vLIN, vA1H)[n & 1], sAOFF, 1024 * (n >> 1)
                pre = [f"s_add_u32 s{sAOFF}, s{sAOFF}, 2048"] if p and n == 0 else ()
            else:
                ad, so, imm = vLIN, sAEND, 1024 * n
                pre = [f"s_add_u32 s{sAEND}, s{sAEND}, {(0, 4096, 32768-4096, 4096)[p-14]}"] if p > 14 and n == 0 else ()
            self.C.append(Item(f"buffer_load_dwordx4 {v(self.ar(p,n),4)}, v{ad}, {s(S_WS,4)}, s{so} offen offset:{imm} sc1",
                               self.atok.setdefault(p, []), pre=pre, lat=OPT["miss2"]))
            self.C[-1].due = p - 3
        self.alast[p] = self.C[-1]

    def de_start(self):
        e = self.e
        self.alast, self.atok = {}, {}
        self.poll_check(vF23A, f"s{sF2O}")
        for p in range(4):
            self.a_load(p)
        for rb in range(2):
            self.C.append(Item(f"buffer_load_dword v{vG+rb}, v{vGA}, {s(S_WS,4)}, s{sGD} offen offset:{128*rb} sc1", lat=OPT["miss"]))
            self.C[-1].due = 1

    def de(self):
        e, pe, m = self.e, self.pe, self.m
        e(f"s_cmp_ge_u32 s{sLOC}, 28")
        e("s_cbranch_scc1 L_idle")
        started = sum(1 for p in range(4) if self.atok.get(p))
        self.bfirst = True
        self.publish(sF3P, self.tO, 2)

        def mm(p, n):
            if p < 14:
                ks, qd = (n & 1, n >> 1) if p == 13 else (n >> 2, n & 3)
                B, A = 16 * p + 8 * ks + 4 * (qd & 1), self.ar(p, 2 * ks + (qd >> 1))
            else:
                fr, t = (n >> 1, n & 1) if p in (14, 16) else (n & 3, 1 - (n >> 2))
                qd = 2 * ((p - 14) >> 1) + t
                B, A = (16 * (14 + 2 * (p & 1)) + 8 * fr + 4 * t) % 256, self.ar(p, fr)
            acc = v(vAB + 16 * qd, 16)
            e(f"{MFMA} {acc}, {a_(B,4)}, {v(A,4)}, {0 if p == 0 and n < 4 else acc}")

        def scale(qd):
            for k in range(16):
                pe(f"v_mul_f32 v{vAB+16*qd+k}, v{vG+(qd>>1)}, v{vAB+16*qd+k}")

        def put(rb, i):
            h, k = (1, 3, 2)[i >> 1], i & 1
            e(f"ds_write_b128 v24, {v(vAB+32*rb+16*(h&1)+8*(h>>1)+4*k,4)} offset:{rb*(RING-RED)+h*2048+k*1024}")

        def get(rb):
            R, S = 208, vAB + 32 * rb
            for h in range(1, 4):
                for k in range(2):
                    pe(f"ds_read_b128 {v(R+8*h+4*k,4)}, v{24+h} offset:{rb*(RING-RED)+k*1024}")
            for h in range(1, 4):
                if rb:
                    for k in range(4):
                        pe(f"v_pk_add_f32 {v(S+2*k,2)}, {v(S+2*k,2)}, {v(R+8*h+2*k,2)}")
                else:
                    for k in range(8):
                        pe(f"v_add_f32 v{S+k}, v{S+k}, v{R+8*h+k}")
            for k in range(4):
                pe(f"v_cvt_pk_bf16_f32 v{32+4*rb+k}, v{S+2*k}, v{S+2*k+1}")
            if rb:
                pe(f"s_add_u32 s{sOUT}, s{sOUT}, {32*896}")
            for d in range(2):
                pe(f"v_permlane32_swap_b32 v{32+4*rb+d}, v{32+4*rb+2+d}")
            pe(f"buffer_store_dwordx4 {v(32+4*rb,4)}, v28, {s(S_OUT,4)}, s{sOUT} offen")

        for p in range(18):
            if p < 14 or p == 16:
                self.stamp(group=5)
            self.force(self.C, self.alast[p])
            for pb in ([p] if p < 14 else [14 + 2 * (p & 1), 15 + 2 * (p & 1)]):
                self.force_read(pb)
            self.await_(self.atok[p][:2])
            if p in (1, 2):
                self.D.extend(self.b_read(15 + p))
            if p == 3:
                for qd in range(4):
                    acc = v(vAB + 16 * qd, 16)
                    e(f"{MFMA} {acc}, {v(vBI+4*(qd&1),4)}, {v(vBI+8,4)}, {acc}")
                    self.side()
                pe(f"v_add_u32 v24, s{sRING}, v{vLIN}")
                for h in range(1, 4):
                    pe(f"s_xor_b32 s{sT0}, s{sW}, {h}")
                    pe(f"s_mul_i32 s{sT0}, s{sT0}, 12288")
                    pe(f"s_add_u32 s{sT0}, s{sT0}, {RED+2048*h}")
                    pe(f"v_add_u32 v{24+h}, s{sT0}, v{vLIN}")
                pe(f"v_and_b32 v28, 31, v{vL}")
                pe(f"v_mul_u32_u24 v28, 896, v28")
                pe(f"v_lshrrev_b32 v29, 5, v{vL}")
                pe(f"v_lshl_add_u32 v28, v29, 4, v28")
            if p == OPT["poll3"]:
                e(f"s_add_u32 s{sF2O}, s{sF2O}, {F3-F2}")
                self.poll_item(vF23A, f"s{sF2O}")
            if p == 11:
                for rb in range(2):
                    pe(f"v_sub_f32 v{vG+rb}, 1.0, v{vG+rb}")
            if p == 14:
                self.drain()
            if p == 16:
                self.drain()
            for n in range(8):
                mm(p, n)
                if p == 13 and n in (3, 5):
                    scale((n - 3) >> 1)
                if p == 14 and n == 0:
                    scale(2)
                    scale(3)
                if p in (15, 17) and n >= 6:
                    put(p >> 4, n - 6)
                elif p == 16 and n < 4:
                    put(0, n + 2)
                if p == 16 and n == 5:
                    e("s_waitcnt lgkmcnt(0)")
                    e("s_barrier")
                    get(0)
                self.gap(32 if p == 13 else 8 if p == 16 and n < 7 else 24)
            if p + 4 < 18:
                if p + 4 == 14:
                    self.poll_check(vF23A, f"s{sF2O}")
                self.a_load(p + 4)
        self.stamp("pair 17 done")
        assert not self.q
        for i in range(2, 6):
            put(1, i)
        e("s_waitcnt lgkmcnt(0)")
        e("s_barrier")
        get(1)
        self.drain()
        self.stamp("end")
        self.write_stamps()
        e("s_endpgm")
        self.a.label("L_idle")
        self.a.vm, self.a.lg = [], []
        n = 0
        todo = range(started, 14 - OPT["pa0"]) if OPT["ipf"] else []
        for q in todo:
            e(f"s_add_u32 s{sAOFF}, s{sAOFF}, 2048")
            for k in range(4):
                self.a._push(Ins(f"buffer_load_dwordx4 {v(64+4*k,4)}, v{(vLIN, vA1H)[k & 1]}, {s(S_WS,4)}, s{sAOFF} offen offset:{1024*(k>>1)} sc1"))
                n += 1
            if n == 8:
                e(f"s_waitcnt vmcnt({n})")
                e(self.pub_text(sF3P))
        if n < 8:
            e(f"s_waitcnt vmcnt({n})")
            e(self.pub_text(sF3P))
        if OPT["ipf"]:
            e(f"s_add_u32 s{sF2O}, s{sF2O}, {F3-F2}")
            e(f"buffer_load_dword {v(vPOLL)}, {v(vF23A)}, {s(S_WS,4)}, s{sF2O} offen sc1")
            self.poll_check(vF23A, f"s{sF2O}")
            for q in range(4):
                for k in range(4):
                    self.a._push(Ins(f"buffer_load_dwordx4 {v(64+4*k,4)}, v{vLIN}, {s(S_WS,4)}, s{sAEND} offen offset:{1024*k} sc1"))
                if q < 3:
                    e(f"s_add_u32 s{sAEND}, s{sAEND}, {(4096, 32768-4096, 4096)[q]}")
        e("s_cmp_lg_u32 s2, 248")
        e("s_cbranch_scc1 L_end")
        e(f"s_cmp_lg_u32 s{sW}, 0")
        e("s_cbranch_scc1 L_end")
        e(f"v_lshlrev_b32 v24, 7, v{vL}")
        e(f"s_mov_b32 s{sSPIN}, 0")
        self.a.label("L_ep")
        for k in range(16):
            e(f"s_mov_b32 s{sT0}, {F1+8192*k}")
            e(f"buffer_load_dword v{40+k}, v24, {s(S_WS,4)}, s{sT0} offen sc1")
        e(f"s_add_u32 s{sSPIN}, s{sSPIN}, 1")
        e("s_waitcnt vmcnt(0)")
        for k in range(16):
            e(f"v_xor_b32 v{40+k}, v{vT}, v{40+k}")
        for k in range(1, 16):
            e(f"v_or_b32 v40, v40, v{40+k}")
        e(f"v_cmp_ne_u32 vcc, 0, v40")
        e(f"s_cmp_gt_u32 s{sSPIN}, 0x8000")
        e("s_cbranch_scc1 L_epd")
        e("s_cbranch_vccnz L_ep")
        self.a.label("L_epd")
        e(f"s_mov_b32 s{sT0}, {E_OFF}")
        e(self.pub_text(sT0))

    def write_stamps(self):
        e = self.e
        if OPT["probe"]:
            e(f"s_sub_u32 s{sT0}, s{sP0+1}, s{sP0}")
            e(f"s_lshl_b32 s{sT0}, s{sT0}, 2")
            e(f"s_add_u32 s{sT0}, s{sT0}, 72000")
            self.a.label("L_probe")
            e(f"s_memtime {s(sM3,2)}")
            e("s_waitcnt lgkmcnt(0)")
            e(f"s_sub_u32 s{sT1}, s{sM3}, s{sP0}")
            e(f"s_cmp_lt_u32 s{sT1}, s{sT0}")
            e("s_cbranch_scc1 L_probe")
        if not OPT["stamps"]:
            return
        e(f"s_lshl_b32 s{sT0}, s2, 2")
        e(f"s_add_u32 s{sT0}, s{sT0}, s{sW}")
        e(f"s_lshl_b32 s{sT1}, s{sT0}, 7")
        e(f"s_add_u32 s{sT1}, s{sT1}, {ST_BASE}")
        e(f"s_mov_b32 s{sT2}, {self.nst}")
        e(f"v_lshlrev_b32 v40, 2, v{vL}")
        e(f"v_writelane_b32 v{vST}, s{sT2}, 31")
        e(f"v_writelane_b32 v{vST}, s{sP0}, 30")
        e("s_memrealtime s[88:89]")
        e("s_waitcnt lgkmcnt(0)")
        e(f"v_writelane_b32 v{vST}, s88, 28")
        e(f"v_cmp_gt_u32 vcc, 32, v{vL}")
        e(f"v_mov_b32 v41, {OOB}")
        e(f"v_cndmask_b32 v40, v41, v40, vcc")
        e(f"buffer_store_dword v{vST}, v40, {s(S_WS,4)}, s{sT1} offen")

    def build(self):
        self.prologue()
        self.phase1()
        self.attention()
        self.de()
        self.a.label("L_end")
        self.e("s_endpgm")
        if OPT["strip"]:
            keep, pro = [], True
            for i in self.a.ins:
                if i.kind == "barrier":
                    pro = False
                drop = i.kind in ("mfma", "trans", "dsread", "dswrite") or (
                    not pro and i.kind == "valu" and any(r[0] == "v" and r != "vcc" and int(r[1:]) >= 30 for r in i.w) and "v40" not in i.w and "v41" not in i.w)
                if OPT["strip"] == 2 and i.kind == "vstore" and "x4" in i.mn:
                    i = Ins(i.text.replace("offen", "offen").replace(f"v{vLIN},", f"v{vL0},").replace("v24,", f"v{vL0},").replace("v25,", f"v{vL0},").replace("v26,", f"v{vL0},").replace("v27,", f"v{vL0},"))
                if not drop:
                    keep.append(i)
            self.a.ins = keep
        self.a.finalize()
        body = self.a.text() + "\n" + "\n".join(t if t.endswith(":") else "    " + t for t in self.tail) + "\nL_code_end:\n    s_endpgm\n"
        head = f"""; Fused gated mix: sliding-window attention branch + GELU FFN branch, one persistent launch.
; @launch grid=(256,1,1) block=(256,1,1) lds={LDS_SIZE}
.amdgcn_target "amdgcn-amd-amdhsa--gfx950"
.text
.globl {NAME}_kernel
.p2align 8
.type {NAME}_kernel,@function
{NAME}_kernel:
"""
        foot = f""".section .rodata,"a"
.p2align 6
.amdhsa_kernel {NAME}_kernel
  .amdhsa_next_free_vgpr 512
  .amdhsa_next_free_sgpr 102
  .amdhsa_accum_offset 256
  .amdhsa_group_segment_fixed_size 0
  .amdhsa_kernarg_size 96
  .amdhsa_user_sgpr_count 2
  .amdhsa_user_sgpr_kernarg_segment_ptr 1
  .amdhsa_system_sgpr_workgroup_id_x 1
  .amdhsa_float_denorm_mode_32 3
.end_amdhsa_kernel
"""
        return head + body + foot


if __name__ == "__main__":
    g = Gen()
    txt = g.build()
    out = sys.argv[1] if len(sys.argv) > 1 else f"cdna_kernels/{NAME}.s"
    open(out, "w").write(txt)
    kinds = {}
    for i in g.a.ins:
        kinds[i.kind] = kinds.get(i.kind, 0) + 1
    print(out, g.a.stats, kinds)
    if OPT["log"]:
        print("\n".join(g.a.log))
        print("model stalls", g.a.stall, "pipe busy", g.a.busy)
```

```python
import re

REG_RE = re.compile(r"^(-|abs\()?([vas])(\d+|\[(\d+):(\d+)\])\)?$")
TRANS = ("v_exp_f32", "v_log_f32", "v_rcp_f32", "v_rsq_f32", "v_sqrt_f32", "v_sin_f32", "v_cos_f32")


def regs_of(op):
    op = op.strip()
    if op == "vcc":
        return {"vcc"}
    if op in ("exec", "m0"):
        return {op}
    m = REG_RE.match(op)
    if not m:
        return set()
    k = m.group(2)
    if m.group(4) is not None:
        return {f"{k}{i}" for i in range(int(m.group(4)), int(m.group(5)) + 1)}
    return {f"{k}{int(m.group(3))}"}


class Ins:
    __slots__ = ("text", "mn", "kind", "w", "r", "a", "b", "c", "states", "skippable", "wide", "note")

    def __init__(self, text):
        self.text = text
        self.skippable = False
        self.note = ""
        t = text.split(";")[0].strip()
        self.w, self.r = set(), set()
        self.a = self.b = self.c = set()
        self.states = 1
        self.wide = False
        if t.endswith(":"):
            self.mn, self.kind, self.states = t, "label", 0
            return
        if t.startswith("."):
            self.mn, self.kind, self.states = t, "dir", 0
            return
        parts = t.split(None, 1)
        mn = parts[0]
        self.mn = mn
        rest = parts[1] if len(parts) > 1 else ""
        ops = [o.strip() for o in rest.split(",")] if rest else []
        mods = ""
        if ops:
            sp = ops[-1].split(None, 1)
            ops[-1] = sp[0]
            mods = sp[1] if len(sp) > 1 else ""
        R = [regs_of(o) for o in ops]
        base = re.sub(r"_e(32|64)$", "", mn)
        if mn.startswith("v_mfma"):
            self.kind = "mfma"
            self.w = R[0]
            self.a, self.b, self.c = R[1], R[2], R[3]
            self.r = R[1] | R[2] | R[3]
        elif mn.startswith("v_cmp"):
            self.kind = "valu"
            self.w = R[0]
            self.r = set().union(*R[1:])
        elif base in ("v_readfirstlane_b32", "v_readlane_b32"):
            self.kind = "valu"
            self.w = R[0]
            self.r = set().union(*R[1:])
        elif base.startswith("v_permlane"):
            self.kind = "valu"
            self.w = R[0] | R[1]
            self.r = R[0] | R[1]
        elif mn.startswith("v_"):
            self.kind = "trans" if base in TRANS else "valu"
            if base == "v_nop":
                return
            self.w = set(R[0])
            self.r = set().union(*R[1:]) if len(R) > 1 else set()
            if base.startswith(("v_fmac", "v_pk_fmac", "v_dot2c", "v_writelane")):
                self.r |= R[0]
            if base in ("v_add_co_u32", "v_sub_co_u32", "v_addc_co_u32"):
                self.w |= R[1]
        elif mn.startswith("buffer_load"):
            if re.search(r"\blds\b", mods):
                self.kind = "dma"
                self.r = R[0] | R[1] | R[2] | {"m0"}
            else:
                self.kind = "vload"
                self.w = R[0]
                self.r = R[1] | R[2] | R[3]
        elif mn.startswith("buffer_store"):
            self.kind = "vstore"
            self.r = R[0] | R[1] | R[2] | R[3]
            self.a = R[0]
            self.wide = mn.endswith(("x3", "x4"))
        elif mn.startswith("ds_read"):
            self.kind = "dsread"
            self.w = R[0]
            self.r = R[1]
        elif mn.startswith("ds_write"):
            self.kind = "dswrite"
            self.r = set().union(*R)
        elif mn == "s_waitcnt":
            self.kind = "wait"
        elif mn == "s_nop":
            self.kind = "nop"
            self.states = int(ops[0]) + 1
        elif mn == "s_barrier":
            self.kind = "barrier"
        elif mn.startswith(("s_branch", "s_cbranch")):
            self.kind = "branch"
            if "vcc" in mn:
                self.r = {"vcc"}
        elif mn in ("s_endpgm", "s_sleep", "s_setprio"):
            self.kind = "salu"
        elif mn.startswith(("s_load", "s_memtime", "s_memrealtime")):
            self.kind = "smem"
            self.w = R[0]
            self.r = set().union(*R[1:]) if len(R) > 1 else set()
        elif mn.startswith(("s_cmp", "s_bitcmp")):
            self.kind = "salu"
            self.r = set().union(*R)
        elif mn.startswith("s_"):
            self.kind = "salu"
            self.w = R[0]
            self.r = set().union(*R[1:]) if len(R) > 1 else set()
        else:
            raise ValueError("unknown instruction: " + text)


def _isv(s):
    return {x for x in s if x[0] in "va" and x != "vcc"}


def _iss(s):
    return {x for x in s if x == "vcc" or (x[0] == "s")}


def hazard(p, c):
    need = 0
    pv = p.kind in ("valu", "trans")
    cv = c.kind in ("valu", "trans")
    cmem = c.kind in ("vload", "vstore", "dma", "dsread", "dswrite")
    if pv:
        wv, ws = _isv(p.w), _iss(p.w)
        if c.kind == "mfma" and wv & c.r:
            need = max(need, 2)
        if cv and c.mn.startswith(("v_readfirstlane", "v_readlane")) and wv & c.r:
            need = max(need, 1)
        if cv and c.mn.startswith("v_permlane") and wv & c.r:
            need = max(need, 2)
        if p.kind == "trans" and (c.kind == "valu" or cmem) and wv & c.r:
            need = max(need, 1)
        if ws:
            if c.kind in ("vload", "vstore", "dma") and ws & c.r:
                need = max(need, 5)
            if cv and ws & c.r:
                need = max(need, 2)
            if c.kind in ("salu", "branch") and ws & c.r:
                need = max(need, 1)
    if p.kind == "mfma":
        if c.kind == "mfma":
            if p.w & (c.a | c.b):
                need = max(need, 12)
            if p.w & c.c and p.w != c.c:
                need = max(need, 10)
            if p.w & c.w and not (p.w == c.w and c.c == c.w):
                need = max(need, 10)
        elif cv or cmem:
            if p.w & (c.r | c.w):
                need = max(need, 12)
            if p.c & c.w:
                need = max(need, 7)
    if p.kind == "salu" and "m0" in p.w and c.kind == "dma":
        need = max(need, 1)
    if p.kind == "vstore" and p.wide and p.a & c.w:
        need = max(need, 2)
    return need


class Asm:
    def __init__(self):
        self.ins = []
        self.vm = []
        self.lg = []
        self.ntok = 0
        self.skip = False
        self.stats = {"vmwait": 0, "lgwait": 0}
        self.clk = 0
        self.mf_free = 0
        self.pipe_free = 0
        self.lds_free = 0
        self.allv = []
        self.done = {}
        self.next_lat = None
        self.stall = {}
        self.busy = 0
        self.idle = 0
        self.nvm = 0
        self.vend = -100
        self.verbose = False
        self.log = []
        self.p_svc, self.p_st, self.p_lat, self.p_win = 72, 220, 560, 8
        self.p_stlat = 800
        self.wq = 's[12:15]'

    def _st(self, kind, until, text):
        d = until - self.clk
        if d > 0:
            self.stall[kind] = self.stall.get(kind, 0) + d
            if d >= 120:
                self.log.append(f"   t={self.clk:6d} stall {d:5d} {kind:6s} {text[:100]}")
            self.clk = until

    def vm_free(self):
        return not self.allv or self.allv[-1][0] <= self.clk

    def est(self, toks):
        return max([self.done.get(k, 0) for k in toks if k is not None] or [0])

    def _model(self, i, tok):
        k = i.kind
        if k == "mfma":
            self.clk = max(self.clk, self.mf_free)
            self.mf_free = self.clk + 32
            self.clk += 8
        elif k == "trans":
            self.clk += 8
            self.vend = self.clk
        elif k == "valu":
            if i.mn.startswith("v_pk"):
                self.clk = max(self.clk, self.mf_free + 12)
            self.clk += 4
            self.vend = self.clk
        elif k in ("vload", "dma", "vstore"):
            self.clk = max(self.clk, self.vend + 8)
            wide = "x4" in i.mn
            store = k == "vstore"
            svc = (self.p_st if store else self.p_svc) if wide else (30 if store else 20)
            if self.wq in i.text:
                svc = self.p_svc * 4 // 3
            lat = self.next_lat or (self.p_stlat if store else self.p_lat)
            self.next_lat = None
            if self.allv:
                self._st("vissue", self.allv[-1][0], i.text)
            start = max(self.clk, self.pipe_free)
            big = [x for x in self.allv[-40:] if x[2]]
            if wide and len(big) >= self.p_win:
                start = max(start, big[-self.p_win][1])
            if start - self.pipe_free >= 100 and self.verbose:
                self.log.append(f"      pipe idle {start - self.pipe_free:5d} before t={start} {i.text[:70]}")
            self.idle += max(0, start - self.pipe_free)
            self.nvm += 1
            self.pipe_free = start + svc
            self.busy += svc
            comp = max(start + lat, (self.allv[-1][1] + (0 if store else svc)) if self.allv else 0)
            self.allv.append((start, comp, wide))
            self.done[tok] = comp
            self.clk += 6
        elif k in ("dsread", "dswrite"):
            self.clk = max(self.clk, self.vend + 8)
            svc = 16 if "b128" in i.mn or "read2" in i.mn else 8
            if k == "dswrite" and "b128" in i.mn:
                svc = 52
            self._st("lds", self.lds_free - 2 * svc, i.text)
            s0 = max(self.clk, self.lds_free)
            self.lds_free = s0 + svc
            self.done[tok] = s0 + svc + 56
            self.clk += 4
        elif k == "barrier":
            self.clk += 40
        elif k == "nop":
            self.clk += 4 * i.states
        elif k not in ("label", "dir", "wait"):
            self.clk += 4

    def _push(self, i):
        i.skippable = self.skip
        self.ins.append(i)

    def _wait(self, vm=None, lg=None):
        parts = []
        if vm is not None:
            vm = min(vm, 63)
            if vm < len(self.vm):
                self._st("vmwait", self.done[self.vm[len(self.vm) - vm - 1][0]], f"vmcnt({vm})")
                self.vm = self.vm[len(self.vm) - vm:] if vm else []
                parts.append(f"vmcnt({vm})")
                self.stats["vmwait"] += 1
        if lg is not None:
            lg = min(lg, 15)
            if lg < len(self.lg):
                self._st("lgwait", self.done[self.lg[len(self.lg) - lg - 1][0]], f"lgkmcnt({lg})")
                self.lg = self.lg[len(self.lg) - lg:] if lg else []
                parts.append(f"lgkmcnt({lg})")
                self.stats["lgwait"] += 1
        if parts:
            assert not self.skip, "wait inside a skippable region"
            last = self.ins[-1] if self.ins else None
            if last is not None and last.kind == "wait" and last.note == "auto":
                old = dict(re.findall(r"(vmcnt|lgkmcnt)\((\d+)\)", last.text))
                for k, v in re.findall(r"(vmcnt|lgkmcnt)\((\d+)\)", " ".join(parts)):
                    old[k] = min(int(v), int(old.get(k, 99)))
                last.text = "s_waitcnt " + " ".join(f"{k}({v})" for k, v in old.items())
                return
            w = Ins("s_waitcnt " + " ".join(parts))
            w.note = "auto"
            self._push(w)
            self.clk += 4

    def _after(self, q, pred):
        for n, e in enumerate(reversed(q)):
            if pred(e):
                return n
        return None

    def e(self, text):
        i = Ins(text)
        touch = i.r | i.w
        if touch and i.kind != "smem":
            self._wait(self._after(self.vm, lambda e: e[1] & touch), self._after(self.lg, lambda e: e[1] & touch))
        self._push(i)
        tok = None
        if i.kind in ("vload", "vstore", "dma"):
            assert not self.skip
            self.ntok += 1
            tok = self.ntok
            self.vm.append((tok, set(i.w)))
            assert len(self.vm) <= 58, "too many vector-memory ops outstanding"
            self.stats["maxvm"] = max(self.stats.get("maxvm", 0), len(self.vm))
        elif i.kind in ("dsread", "dswrite"):
            assert not self.skip
            self.ntok += 1
            tok = self.ntok
            self.lg.append((tok, set(i.w)))
        elif i.kind == "wait":
            m = re.search(r"vmcnt\((\d+)\)", text)
            if m:
                n = int(m.group(1))
                if n < len(self.vm):
                    self._st("vmwait", self.done[self.vm[len(self.vm) - n - 1][0]], text)
                self.vm = self.vm[max(0, len(self.vm) - n):] if n else []
            m = re.search(r"lgkmcnt\((\d+)\)", text)
            if m:
                n = int(m.group(1))
                if n < len(self.lg):
                    self._st("lgwait", self.done[self.lg[len(self.lg) - n - 1][0]], text)
                self.lg = self.lg[max(0, len(self.lg) - n):] if n else []
            self.clk += 4
        self._model(i, tok)
        return tok

    def need(self, *toks):
        s = {t for t in toks if t is not None}
        self._wait(self._after(self.vm, lambda e: e[0] in s), self._after(self.lg, lambda e: e[0] in s))

    def label(self, name):
        self._push(Ins(name + ":"))

    def comment(self, t):
        i = Ins(".p2align 0")
        i.text = "; " + t
        self._push(i)

    def finalize(self):
        out = []
        nops = 0
        for c in self.ins:
            if c.kind in ("label", "dir"):
                out.append(c)
                continue
            need = 0
            for view in (0, 1):
                dist = 0
                for p in reversed(out):
                    if dist >= 20:
                        break
                    if view == 1 and p.skippable and not c.skippable:
                        continue
                    h = hazard(p, c) if p.kind not in ("label", "dir") else 0
                    if h > dist:
                        need = max(need, h - dist)
                    dist += p.states
            while need > 0:
                n = min(need, 16)
                np_ = Ins(f"s_nop {n-1}")
                np_.skippable = c.skippable
                np_.note = "haz"
                out.append(np_)
                nops += n
                need -= n
            out.append(c)
        self.stats["nop_states"] = nops
        self.ins = out
        return out

    def text(self):
        return "\n".join(("" if i.kind == "label" else "    ") + i.text for i in self.ins)


def v(a, n=1):
    return f"v{a}" if n == 1 else f"v[{a}:{a+n-1}]"


def a_(a, n=1):
    return f"a{a}" if n == 1 else f"a[{a}:{a+n-1}]"


def s(a, n=1):
    return f"s{a}" if n == 1 else f"s[{a}:{a+n-1}]"
```

```python
import math, struct, sys
from collections import deque
sys.path.insert(0, "tools")
from asmlib import Asm, Ins, v, a_, s

NAME = "gated_mix__sliding_block__dense_activation_gelu__prompt"
OPT = dict(stamps=0, dbg=0, npairs=2, probe=0, poll1=20, poll2=3, chk2=6, poll3=7, norot=0, log=0,
           miss=480, pub1=6, svc=64, st=160, lat=480, win=8, strip=0, rot1=3, rot2=2, cpf=1, nt=0, split=1, wpf=1, wsoff=0, rt=0, ldsq=24, pfa0=4, pfa1=14, pfb0=12, pfb1=28, miss2=480, chk0=1, ipf=0, pa0=7, pb0=6, stlat=800, lat0=2400, bstart=0, null=0, gev=10)
for arg in sys.argv[2:]:
    k, val = arg.split("=")
    assert k in OPT, k
    OPT[k] = int(val)


def fbits(x):
    return struct.unpack("<I", struct.pack("<f", x))[0]


QKV_BASE, H_BASE, O_BASE, G_BASE = 0, 0x600000, 0xD00000, 0xF00000
F_BASE, E_OFF, ST_BASE, WS_SIZE = 0xF10000, 0xF80000, 0xFA0000, 0x1000000
F1, F2, F3, F0 = F_BASE, F_BASE + 1024 * 128, F_BASE + 2048 * 128, F_BASE + 3072 * 128
OOB = 0x40000000
TAG_STEP = 0x6B43A9B7
R_A, R_Q, R_B, RING = 0, 57344, 106496, 57344
KV = R_B
XST = 106496
TB1, DUMMY, TB2, RED = 163328, 159744, 0, 8192
LDS_SIZE = 163840
S_CODE, S_X, S_WQ, S_W1, S_WS, S_W2, S_WO, S_OUT, S_B1, S_B2, S_GW, S_DBG = 4, 8, 12, 16, 20, 24, 28, 32, 36, 40, 44, 8
sMX = 3
sW, sC, sLIGHT, sUA, sUB, sJ, sRB0, sCT, sLOC, sRB, sQB, sFIRST = range(48, 60)
sT0, sT1, sT2, sT3 = 60, 61, 62, 63
sHI, sM, sG = 64, 66, 68
sCA, sCB, sBT = 75, 76, 77
sMQ, sMA, sMAS, sMB, sRING = 78, 79, 80, 81, 82
sBOFF, sBEND, sAOFF, sAEND, sKV0 = 83, 84, 85, 86, 87
sM3, sF2O, sSPIN = 88, 90, 91
sQS, sHA, sHB, sF1, sGS, sF0P = 0, 1, 4, 5, 6, 7
sKOFF, sMKV, sQOFF, sOS, sF3P, sF0R, sK2 = 36, 37, 38, 39, 44, 45, 46
sGQ, sGD, sNQ, sOUT = 92, 93, 94, 95
sPF1, sPF2, sSLA, sSLB = 96, 97, 98, 99
sP0 = 100
vL, vLIN, vT, vL0, vK1, vST = 0, 1, 2, 3, 4, 5
vTRQ, vTRF0, vTRF1 = 6, 7, 8
vW1A0, vW1A1, vPV = 9, 10, 11
vBD = 12
vBT0, vBT1 = 16, 17
vF1A, vF23A = 18, 19
vWQ = 20
vPOLL, vGA, vGATE = 20, 21, 22
vTBL = 23
vTMP = 24
vXD, vXR = 32, 36
vWR = 40
vACC = 64
vX = 144
vQ, vS, vCD, vM0, vM8, vO, vP, vMX = 96, 144, 176, 192, 208, 224, 240, 248
vKR, vVR, vKA, vVA = 40, 136, 6, 11
vAB, vBI, vA1H, vG = 144, 208, 8, 9

C_GELU = -2.0 * math.sqrt(2.0 / math.pi) * math.log2(math.e)
K1, K2 = fbits(C_GELU), fbits(C_GELU * 0.044715)
QSCALE = fbits(math.log2(math.e) / math.sqrt(28.0))
NINF = 0xFF800000
MFMA = "v_mfma_f32_32x32x16_bf16"


def NT(bit):
    return " nt" if OPT["nt"] & bit else ""


class Item:
    def __init__(self, text, sink=None, pre=(), post=(), m0=None, after=None, lat=None, pre0=()):
        self.pre0 = pre0
        self.text = [text] if isinstance(text, str) else text
        self.sink, self.pre, self.post, self.m0, self.after, self.lat = sink, pre, post, m0, after, lat
        self.vm = self.text[0].startswith("buffer")
        self.done = False
        self.due = 0


class Gen:
    def __init__(self):
        self.a = Asm()
        self.a.verbose = OPT['log'] > 1
        self.a.p_svc, self.a.p_st, self.a.p_lat, self.a.p_win = OPT['svc'], OPT['st'], OPT['lat'], OPT['win']
        self.a.p_stlat = OPT['stlat']
        self.q = deque()
        self.P, self.C, self.B, self.D = deque(), deque(), deque(), deque()
        self.tail = []
        self.nst = self.nlab = self.nmark = 0
        self.marks = set()
        self.m0 = None
        self.hooks = {}
        self.bfirst = False

    def e(self, t):
        return self.a.e(t)

    def emit_item(self, st):
        it = st.popleft()
        c0 = len(self.a.ins)
        if it.after:
            toks = it.after()
            assert toks is not None, "forced item whose producers are not emitted: " + it.text[0]
            self.a.need(*toks)
        for t in it.pre0:
            self.e(t)
        if it.m0 and it.m0 != self.m0:
            reg, imm = it.m0[:2]
            self.e(f"s_mov_b32 m0, {imm}" if reg is None else f"s_add_u32 m0, s{reg}, {imm}" if imm else f"s_mov_b32 m0, s{reg}")
            self.m0 = it.m0
        for t in it.pre:
            self.e(t)
        for t in it.text:
            self.a.next_lat = it.lat
            k = self.e(t)
            if it.sink is not None:
                it.sink.append(k)
        for t in it.post:
            self.e(t)
        it.done = True
        return 4 * (len(self.a.ins) - c0) + (4 if it.vm else 0)

    def vm_streams(self):
        if self.bfirst and self.B and self.C and self.B[0].due < self.C[0].due:
            return (self.P, self.B, self.C)
        return (self.P, self.C, self.B)

    def ready(self, it):
        if it.after:
            toks = it.after()
            return toks is not None and self.a.est(toks) <= self.a.clk
        return True

    def side(self, both=True):
        a = self.a
        cost = 0
        if a.vm_free():
            for st in self.vm_streams():
                if st and self.ready(st[0]):
                    cost = self.emit_item(st)
                    break
        if (both or not cost) and self.D and a.lds_free - a.clk <= OPT["ldsq"] and self.ready(self.D[0]):
            cost += self.emit_item(self.D)
        return cost

    def force(self, st, it=None):
        while st and (it is None or not it.done):
            self.emit_item(st)

    def m(self, t):
        k = self.e(t)
        if not t.startswith(("s_cmp", "s_cselect", "v_cmp")):
            self.side(False)
        return k

    def push(self, fn, cost=4):
        self.q.append((fn, cost))

    def pe(self, t):
        cost = 8 if Ins(t).kind == "trans" else 4
        if t.startswith("s_cselect"):
            fn, c = self.q.pop()
            assert getattr(fn, "scc", False), "s_cselect must follow its s_cmp directly: " + t
            g = lambda fn=fn, t=t: (fn(), self.e(t))
            g.scc = True
            self.q.append((g, c + cost))
            return
        f = lambda t=t: self.e(t)
        f.scc = t.startswith("s_cmp")
        self.q.append((f, cost))

    def gap(self, budget):
        budget -= self.side(budget >= 24)
        while self.q and budget >= min(self.q[0][1], 8):
            fn, c = self.q.popleft()
            fn()
            budget -= c

    def cluster(self, nd=2):
        self.side(True)
        for _ in range(nd - 1):
            if self.D and self.ready(self.D[0]):
                self.emit_item(self.D)

    def drain(self, name=None, every=1):
        n = 0
        while (self.q if name is None else name not in self.marks):
            self.q.popleft()[0]()
            n += 1
            if n % every == 0:
                self.cluster()

    def mark(self, name):
        self.push(lambda: self.marks.add(name), 0)

    def hook(self, name):
        fn = self.hooks.pop(name, None)
        if fn:
            fn()

    def stamp(self, name="", group=1):
        if group == 1:
            self.a.log.append(f"{self.a.clk:6d} {name}  (pipe busy {self.a.busy} idle {self.a.idle} ops {self.a.nvm}; left C {len(self.C)} B {len(self.B)} D {len(self.D)})")
        if (OPT["stamps"] == group or (OPT["stamps"] and (self.nst == 0 or name == "end" or (name == "chunk 0" and OPT["stamps"] == 9)))) and self.nst < 16:
            clk = self.a.clk
            self.e(f"{'s_memrealtime' if OPT['rt'] else 's_memtime'} {s(sM3,2)}")
            self.e("s_waitcnt lgkmcnt(0)")
            self.e(f"v_writelane_b32 v{vST}, s{sM3}, {self.nst}")
            self.a.clk = clk
            self.nst += 1
        if group == 1:
            self.nmark += 1
            if OPT["probe"] == self.nmark:
                self.e(f"s_memtime {s(sM3,2)}")
                self.e("s_waitcnt lgkmcnt(0)")
                self.e(f"s_mov_b32 s{sP0+1}, s{sM3}")

    def poll_item(self, addr, soff):
        it = Item(f"buffer_load_dword {v(vPOLL)}, {v(addr)}, {s(S_WS,4)}, {soff} offen sc1", lat=OPT["miss"])
        self.P.append(it)
        return it

    def poll_check(self, addr, soff):
        self.force_p()
        self.await_([k for k, r in self.a.vm if f"v{vPOLL}" in r])
        self.nlab += 1
        n = self.nlab
        if OPT["stamps"]:
            self.e(f"s_mov_b32 s{sSPIN}, 0")
        self.e(f"v_cmp_ne_u32 vcc, {v(vT)}, {v(vPOLL)}")
        self.e(f"s_cbranch_vccnz L_slow{n}")
        self.a.label(f"L_back{n}")
        if OPT["stamps"]:
            self.npoll = getattr(self, "npoll", 0) + 1
            self.e(f"v_writelane_b32 v{vST}, s{sSPIN}, {15 + self.npoll}")
        self.tail += [f"L_slow{n}:", f"s_mov_b32 s{sSPIN}, 0", f"L_spin{n}:",
                      f"buffer_load_dword {v(vPOLL)}, {v(addr)}, {s(S_WS,4)}, {soff} offen sc1",
                      f"s_add_u32 s{sSPIN}, s{sSPIN}, 1",
                      "s_waitcnt vmcnt(0)",
                      f"v_cmp_ne_u32 vcc, {v(vT)}, {v(vPOLL)}",
                      f"s_cmp_gt_u32 s{sSPIN}, 0x20000",
                      f"s_cbranch_scc1 L_back{n}",
                      f"s_cbranch_vccnz L_spin{n}",
                      f"s_branch L_back{n}"]

    def pub_text(self, soff):
        return f"buffer_store_dword {v(vT)}, {v(vL0)}, {s(S_WS,4)}, s{soff} offen sc1"

    def publish(self, soff, toks, n, pre=()):
        it = Item(self.pub_text(soff), pre=pre, after=lambda: toks if len(toks) == n else None)
        self.P.append(it)
        return it

    def prologue(self):
        e, m = self.e, self.m
        e("s_cmp_ge_u32 s2, 256")
        e("s_cbranch_scc1 L_end")
        if OPT["probe"] or OPT["stamps"]:
            e(f"s_memtime {s(sP0,2)}")
        if OPT["stamps"]:
            e("s_memrealtime s[88:89]")
        def kargs(base):
            for srd, off in ((S_X, 0), (S_WQ, 8), (S_WS, 88), (S_GW, 64), (S_B1, 40), (S_W1, 32), (S_W2, 48), (S_WO, 16), (S_B2, 56), (S_OUT, 72)):
                e(f"s_load_dwordx2 {s(srd,2)}, {base}, {off}")
        if OPT["probe"] == 102:
            e("s_mov_b64 s[98:99], s[0:1]")
        else:
            kargs("s[0:1]")
        if OPT["probe"] == 101:
            e("s_waitcnt lgkmcnt(0)")
            e(f"s_memtime {s(sM3,2)}")
            e("s_waitcnt lgkmcnt(0)")
            e(f"s_mov_b32 s{sP0+1}, s{sM3}")
        e(f"s_getpc_b64 {s(S_CODE,2)}")
        self.a.label("L_pc")
        e(f"s_lshr_b32 s{sLOC}, s2, 3")
        e(f"v_lshrrev_b32 v1, 6, v0")
        e(f"v_and_b32 v{vL}, 63, v0")
        e(f"s_and_b32 s{sT0}, s{sLOC}, 7")
        e(f"v_readfirstlane_b32 s{sW}, v1")
        e(f"s_mov_b32 s{S_CODE+2}, L_code_end-L_pc")
        e(f"s_mov_b32 s{S_CODE+3}, 0x20000")
        e(f"v_and_b32 v24, 7, v{vL}")
        e(f"v_lshl_add_u32 v24, v1, 3, v24")
        e(f"v_lshlrev_b32 v24, 7, v24")
        e(f"s_lshl_b32 s{sT1}, s{sT0}, 12")
        if OPT["cpf"]:
            e(f"buffer_load_dword v250, v24, {s(S_CODE,4)}, 0 offen")
        e(f"buffer_load_dword v251, v24, {s(S_CODE,4)}, s{sT1} offen")
        e(f"s_lshr_b32 s{sT1}, s{sLOC}, 3")
        e(f"s_bfe_u32 s{sRB}, s2, 0x20001")
        e(f"s_lshl_b32 s{sRB}, s{sRB}, 2")
        e(f"s_add_u32 s{sRB}, s{sRB}, s{sT1}")
        e(f"s_and_b32 s{sC}, s2, 1")
        e(f"s_lshl_b32 s{sC}, s{sC}, 3")
        e(f"s_add_u32 s{sC}, s{sC}, s{sT0}")
        e(f"s_lshl_b32 s{sT1}, s{sT1}, 1")
        e(f"s_add_u32 s{sT0}, s{sT0}, s{sT1}")
        e(f"s_sub_u32 s{sT1}, s{sT0}, 7")
        e(f"s_cmp_ge_u32 s{sT0}, 7")
        e(f"s_cselect_b32 s{sG}, s{sT1}, s{sT0}")
        if OPT["rot1"] == 3:
            e(f"s_bfe_u32 s{sT0}, s2, 0x20001")
            e(f"s_add_u32 s{sT0}, s{sT0}, s{sG}")
            e(f"s_sub_u32 s{sT1}, s{sT0}, 7")
            e(f"s_cmp_ge_u32 s{sT0}, 7")
            e(f"s_cselect_b32 s{sG}, s{sT1}, s{sT0}")
        if OPT["rot1"] == 0:
            e(f"s_mov_b32 s{sG}, 0")
        if OPT["rot1"] == 2:
            e(f"s_and_b32 s{sT0}, s2, 7")
            e(f"s_cmp_eq_u32 s{sT0}, 7")
            e(f"s_cselect_b32 s{sG}, 0, s{sT0}")
        e(f"s_lshl_b32 s{sRB}, s{sRB}, 2")
        e(f"s_add_u32 s{sRB}, s{sRB}, s{sW}")
        for srd, size in ((S_X, 2048 * 896), (S_WQ, 448 * 2688)):
            e(f"s_mov_b32 s{srd+2}, {size}")
            e(f"s_mov_b32 s{srd+3}, 0x20000")
        e(f"v_lshrrev_b32 v24, 3, v{vL}")
        e(f"s_lshl_b32 s{sT0}, s{sRB}, 5")
        e(f"v_add_u32 v24, s{sT0}, v24")
        e(f"v_mul_u32_u24 v24, 896, v24")
        e(f"v_lshrrev_b32 v26, 4, v{vL}")
        e(f"v_and_b32 v27, 7, v{vL}")
        e(f"v_xor_b32 v26, v26, v27")
        e(f"v_lshl_add_u32 v{vXD}, v26, 4, v24")
        e(f"v_xor_b32 v{vXD+1}, 64, v{vXD}")
        e(f"v_add_u32 v{vXD+2}, {2*(7168-1024)}, v{vXD}")
        e(f"v_add_u32 v{vXD+3}, {3*(7168-1024)}, v{vXD+1}")
        e(f"v_add_u32 v{vXD+1}, {7168-1024}, v{vXD+1}")
        e(f"s_mul_i32 s{sMX}, s{sW}, 12288")
        e(f"s_add_u32 s{sRING}, s{sMX}, {RED}")
        e(f"s_add_u32 s{sMX}, s{sMX}, {XST}")
        e(f"s_mul_i32 s{sT0}, s{sC}, 168")
        e(f"s_and_b32 s{sT0}, s{sT0}, 0xfffffff0")
        e(f"s_mul_i32 s{sT1}, s{sW}, {16*2688}")
        e(f"s_add_u32 s{sT0}, s{sT0}, s{sT1}")
        e(f"s_movk_i32 s{sT1}, 2688")
        for i in range(3):
            q = vL
            if i:
                q = 24
                e(f"v_add_u32 v24, {64*i}, v{vL}")
            e(f"v_mul_u32_u24 v26, 171, v{q}")
            e(f"v_lshrrev_b32 v26, 11, v26")
            e(f"v_mad_i32_i24 v24, v26, -12, v{q}")
            e(f"v_min_u32 v24, 10, v24")
            e(f"v_lshl_add_u32 v24, v24, 4, s{sT0}")
            e(f"v_mad_u32_u24 v{vWQ+i}, v26, s{sT1}, v24")
            if i < 2:
                e(f"s_sub_u32 s{sT0}, s{sT0}, 1024")
        e(f"s_mul_i32 s{sMQ}, s{sW}, {16*192}")
        e(f"s_add_u32 s{sMQ}, s{sMQ}, {R_Q}")
        if OPT["probe"] == 102:
            e("s_waitcnt lgkmcnt(0)")
            e(f"s_memtime {s(sM3,2)}")
            e("s_waitcnt lgkmcnt(0)")
            e(f"s_mov_b32 s{sP0+1}, s{sM3}")
            kargs("s[98:99]")
        e("s_waitcnt lgkmcnt(0)")
        self.a.clk = self.a.pipe_free = 0
        self.a.allv = []
        self.a.done = {k: 0 for k in self.a.done}
        if OPT["wsoff"]:
            e(f"s_add_u32 s{S_WS}, s{S_WS}, {OPT['wsoff'] << 20}")
            e(f"s_addc_u32 s{S_WS+1}, s{S_WS+1}, 0")
        if OPT["stamps"]:
            e(f"v_writelane_b32 v{vST}, s88, 29")
        self.stamp("kernarg")
        self.ctok, self.wtok, self.xrd, self.ftok = {}, {}, {}, {}
        self.add_chunk(0)
        self.force(self.C)
        for i in range(1, 7):
            e(f"s_add_u32 s{sT0}, s{sG+i-1}, 1")
            e(f"s_cmp_eq_u32 s{sT0}, 7")
            e(f"s_cselect_b32 s{sG+i}, 0, s{sT0}")
        self.add_chunk(1)
        for srd, size in ((S_WS, WS_SIZE), (S_GW, 896), (S_B1, 3584), (S_W1, 448 * 3584), (S_B2, 896), (S_OUT, 2048 * 896)):
            m(f"s_mov_b32 s{srd+2}, {size}")
            m(f"s_mov_b32 s{srd+3}, 0x20000")
        m(f"s_lshr_b32 s{sLIGHT}, 0x1248, s{sC}")
        m(f"s_and_b32 s{sLIGHT}, s{sLIGHT}, 1")
        m(f"s_bfm_b32 s{sT0}, s{sC}, 0")
        m(f"s_and_b32 s{sT0}, s{sT0}, 0x1248")
        m(f"s_bcnt1_i32_b32 s{sT0}, s{sT0}")
        m(f"s_lshl_b32 s{sUA}, s{sC}, 1")
        m(f"s_sub_u32 s{sUA}, s{sUA}, s{sT0}")
        m(f"s_add_u32 s{sUB}, s{sUA}, 1")
        m(f"s_sub_u32 s{sUB}, s{sUB}, s{sLIGHT}")
        m(f"s_lshl_b32 s{sT0}, s{sW}, 6")
        m(f"v_add_u32 v244, s{sT0}, v{vL}")
        m(f"s_lshl_b32 s{sT1}, s{sG}, 6")
        for h in range(2):
            m(f"v_add_u32 v27, s{sT1}, v244")
            if h:
                m(f"v_add_u32 v27, 256, v27")
            m(f"v_subrev_u32 v28, 448, v27")
            m(f"v_min_u32 v27, v27, v28")
            m(f"v_lshlrev_b32 v{52+h}, 1, v27")
        m(f"s_lshl_b32 s{sT0}, s{sUA}, 7")
        m(f"s_cmp_eq_u32 s{sLIGHT}, 1")
        m(f"s_cselect_b32 s{sT0}, {OOB}, s{sT0}")
        m(f"s_lshl_b32 s{sT1}, s{sUB}, 7")
        m(f"s_sub_u32 s{sT1}, s{sT1}, 128")
        m(f"s_mov_b32 s{sHI}, 0")
        m(f"s_mov_b32 s{sHI+1}, -1")
        m(f"v_mov_b32 v27, s{sT0}")
        m(f"v_mov_b32 v28, s{sT1}")
        m(f"v_cndmask_b32 v27, v27, v28, {s(sHI,2)}")
        m(f"v_lshl_add_u32 v54, v{vL}, 2, v27")
        m(f"v_mov_b32 v55, {E_OFF}")
        m(f"v_lshlrev_b32 v{vLIN}, 4, v{vL}")
        m(f"v_bfe_u32 v24, v{vL}, 2, 2")
        m(f"v_lshrrev_b32 v27, 5, v{vL}")
        m(f"v_bfe_u32 v28, v{vL}, 4, 1")
        m(f"v_and_b32 v29, 3, v{vL}")
        m(f"v_lshlrev_b32 v29, 3, v29")
        m(f"v_lshl_add_u32 v29, v28, 5, v29")
        m(f"v_lshl_add_u32 v40, v27, 3, v24")
        m(f"v_mul_u32_u24 v41, 192, v40")
        m(f"s_and_b32 s{sT0}, s{sC}, 1")
        m(f"s_lshl_b32 s{sT0}, s{sT0}, 3")
        m(f"s_add_u32 s{sT0}, s{sT0}, {R_Q}")
        m(f"v_add3_u32 v{vTRQ}, v41, v29, s{sT0}")
        m(f"v_lshrrev_b32 v41, 1, v24")
        m(f"v_lshl_add_u32 v29, v41, 6, v29")
        m(f"v_lshl_add_u32 v{vTRF0}, v40, 7, v29")
        m(f"v_xor_b32 v{vTRF1}, 64, v{vTRF0}")
        m(f"v_lshl_add_u32 v40, v27, 2, v24")
        m(f"v_lshl_add_u32 v40, v40, 7, v29")
        m(f"s_lshl_b32 s{sT0}, s{sW}, 3")
        m(f"s_lshr_b32 s{sT0}, 0x60204000, s{sT0}")
        m(f"s_and_b32 s{sOUT}, s{sT0}, 0xff")
        m(f"v_xor_b32 v40, s{sOUT}, v40")
        m(f"v_add_u32 v{vBT0}, s{sRING}, v40")
        m(f"v_xor_b32 v{vBT1}, 64, v{vBT0}")
        m(f"v_and_b32 v40, 31, v{vL}")
        m(f"v_bfe_u32 v41, v{vL}, 1, 3")
        m(f"v_xor_b32 v41, v41, v27")
        m(f"v_lshlrev_b32 v41, 4, v41")
        m(f"v_lshl_add_u32 v40, v40, 7, v41")
        m(f"v_add_u32 v{vXR}, s{sMX}, v40")
        for k in range(1, 4):
            m(f"v_xor_b32 v{vXR+k}, {32*k}, v{vXR}")
        m(f"v_lshlrev_b32 v{vTBL}, 3, v27")
        m(f"v_add_u32 v{vTBL}, {TB1 - TB1 % 2048}, v{vTBL}")
        m(f"v_and_b32 v40, 3, v{vL}")
        m(f"v_lshl_add_u32 v40, v27, 2, v40")
        m(f"v_bfe_u32 v41, v{vL}, 2, 3")
        m(f"v_lshl_add_u32 v40, v41, 3, v40")
        m(f"v_lshlrev_b32 v{vPV}, 4, v40")
        m(f"v_cmp_eq_u32 vcc, 0, v{vL}")
        m(f"v_mov_b32 v40, {OOB}")
        m(f"v_mov_b32 v{vK1}, {K1}")
        m(f"v_cndmask_b32 v{vL0}, v40, 0, vcc")
        m(f"s_lshl_b32 s{sT0}, s2, 2")
        m(f"s_add_u32 s{sT0}, s{sT0}, s{sW}")
        m(f"s_mul_i32 s{sT0}, s{sT0}, 49")
        m(f"s_lshr_b32 s{sPF1}, s{sT0}, 2")
        m(f"s_lshl_b32 s{sPF1}, s{sPF1}, 7")
        m(f"s_lshr_b32 s{sPF2}, s{sT0}, 4")
        m(f"s_lshl_b32 s{sPF2}, s{sPF2}, 7")
        m(f"s_mul_i32 s{sSLA}, s2, {OPT['pfa1'] - OPT['pfa0']}")
        m(f"s_lshr_b32 s{sSLA}, s{sSLA}, 8")
        m(f"s_mul_i32 s{sSLB}, s2, {OPT['pfb1'] - OPT['pfb0']}")
        m(f"s_lshr_b32 s{sSLB}, s{sSLB}, 8")
        for srd, size in ((S_W2, 1792 * 896), (S_WO, 448 * 896)):
            m(f"s_mov_b32 s{srd+2}, {size}")
            m(f"s_mov_b32 s{srd+3}, 0x20000")
        self.setup_later()
        self.store_addr()
        self.drain()
        m(f"v_lshrrev_b32 v41, 5, v{vL}")
        m(f"v_bfe_u32 v42, v{vL}, 4, 1")
        m(f"v_xor_b32 v41, v41, v42")
        m(f"v_bfe_u32 v40, v{vL}, 2, 2")
        m(f"v_lshl_add_u32 v40, v41, 3, v40")
        m(f"v_and_b32 v41, 1, v{vL}")
        m(f"v_lshl_add_u32 v40, v41, 2, v40")
        m(f"v_lshlrev_b32 v40, 4, v40")
        m(f"v_lshl_add_u32 v40, v42, 10, v40")
        m(f"v_bfe_u32 v41, v{vL}, 1, 1")
        m(f"v_lshl_add_u32 v40, v41, 3, v40")
        m(f"s_lshl_b32 s{sT1}, s{sW}, 11")
        m(f"s_add_u32 s{sT1}, s{sT1}, {KV+24576}")
        m(f"v_add_u32 v{vVA}, s{sT1}, v40")
        self.force(self.C)
        self.a.next_lat = OPT["miss"]
        e(f"buffer_load_dword v{vT}, v55, {s(S_WS,4)}, 0 offen sc1")
        for h in range(2):
            e(f"buffer_load_ushort v{245+h}, v{52+h}, {s(S_GW,4)}, 0 offen")
        e(f"s_mov_b32 m0, {TB1}")
        self.m0 = None
        self.tB1 = e(f"buffer_load_dword v54, {s(S_B1,4)}, 0 offen lds")
        m(f"s_lshl_b32 s{sT1}, s{sQB}, 4")
        m(f"s_add_u32 s{sT1}, s{sT1}, s{sJ}")
        m(f"s_lshl_b32 s{sF3P}, s{sT1}, 7")
        m(f"s_add_u32 s{sF3P}, s{sF3P}, {F3}")
        m(f"s_lshl_b32 s{sOS}, s{sT1}, 11")
        m(f"s_add_u32 s{sOS}, s{sOS}, {O_BASE}")
        m(f"s_lshl_b32 s{sT0}, s{sJ}, 6")
        m(f"s_add_u32 s{sKOFF}, s{sT0}, s{sKV0}")
        m(f"s_lshl_b32 s{sKOFF}, s{sKOFF}, 11")
        m(f"s_add_u32 s{sQOFF}, s{sT0}, s{sQB}")
        m(f"s_lshl_b32 s{sQOFF}, s{sQOFF}, 11")
        m(f"s_mul_i32 s{sMKV}, s{sW}, 6144")
        m(f"s_lshl_b32 s{sT0}, s{sQB}, 7")
        m(f"s_add_u32 s{sF0R}, s{sT0}, {F0}")
        m(f"s_add_u32 s{sGQ}, s{sT0}, {G_BASE}")
        m(f"s_mov_b32 s{sK2}, {K2}")
        m(f"s_mov_b32 s{sK2+1}, {K2}")

    def setup_later(self):
        m = self.m
        m(f"s_and_b32 s{sT0}, s2, 7")
        m(f"s_and_b32 s{sT1}, s{sLOC}, 1")
        m(f"s_lshl_b32 s{sJ}, s{sT0}, 1")
        m(f"s_add_u32 s{sJ}, s{sJ}, s{sT1}")
        m(f"s_mul_i32 s{sT1}, s{sLOC}, 37")
        m(f"s_lshr_b32 s{sT1}, s{sT1}, 8")
        m(f"s_mul_i32 s{sCT}, s{sT1}, 7")
        m(f"s_sub_u32 s{sCT}, s{sLOC}, s{sCT}")
        m(f"s_cmp_lt_u32 s{sLOC}, 28")
        m(f"s_cselect_b32 s{sT1}, s{sT1}, s{sCT}")
        m(f"s_lshl_b32 s{sRB0}, s{sT0}, 2")
        m(f"s_add_u32 s{sRB0}, s{sRB0}, s{sT1}")
        m(f"s_lshl_b32 s{sRB0}, s{sRB0}, 1")
        m(f"s_mul_i32 s{sBOFF}, s{sW}, {448*896}")
        m(f"s_mul_i32 s{sAOFF}, s{sRB0}, 112")
        m(f"s_mul_i32 s{sT0}, s{sW}, 28")
        m(f"s_add_u32 s{sAOFF}, s{sAOFF}, s{sT0}")
        m(f"s_lshl_b32 s{sAOFF}, s{sAOFF}, 10")
        m(f"s_add_u32 s{sAOFF}, s{sAOFF}, {H_BASE}")
        m(f"s_lshl_b32 s{sAEND}, s{sRB0}, 2")
        m(f"s_add_u32 s{sAEND}, s{sAEND}, s{sW}")
        m(f"s_lshl_b32 s{sAEND}, s{sAEND}, 13")
        m(f"s_add_u32 s{sAEND}, s{sAEND}, {O_BASE}")
        m(f"s_mul_i32 s{sBEND}, s{sW}, {112*896}")
        m(f"s_lshl_b32 s{sGD}, s{sRB0}, 7")
        m(f"s_add_u32 s{sGD}, s{sGD}, {G_BASE}")
        m(f"s_lshl_b32 s{sT0}, s{sCT}, 12")
        m(f"s_add_u32 s{sT0}, s{sT0}, {32*896*OPT['pb0']}")
        m(f"s_cmp_lt_u32 s{sLOC}, 28")
        m(f"s_cselect_b32 s{sT0}, 0, s{sT0}")
        m(f"s_cselect_b32 s{sT1}, 0, {2048*OPT['pa0'] if OPT['ipf'] else OOB}")
        m(f"s_cselect_b32 s{sBT}, {32*896}, 0x4000" if False else f"s_cselect_b32 s{sBT}, 7, 4")
        m(f"s_cselect_b64 {s(sM3,2)}, -1, 0")
        m(f"s_lshl_b32 s{sBT}, s{sBT}, 12")
        m(f"s_add_u32 s{sBOFF}, s{sBOFF}, s{sT0}")
        m(f"s_add_u32 s{sAOFF}, s{sAOFF}, s{sT1}")
        m(f"s_lshl_b32 s{sF2O}, s{sRB0}, 11")
        m(f"s_add_u32 s{sF2O}, s{sF2O}, {F2}")
        m(f"v_lshrrev_b32 v24, 3, v{vL}")
        m(f"v_lshlrev_b32 v28, 2, v28")
        m(f"v_and_b32 v29, 7, v{vL}")
        m(f"v_xor_b32 v28, v28, v29")
        m(f"v_lshlrev_b32 v28, 4, v28")
        m(f"v_mul_u32_u24 v29, 3584, v24")
        m(f"s_mul_i32 s{sT0}, s{sW}, {16*3584}")
        m(f"v_add3_u32 v{vW1A0}, v29, v28, s{sT0}")
        m(f"v_add_u32 v{vW1A1}, {8*3584-1024}, v{vW1A0}")
        m(f"v_mul_u32_u24 v29, 896, v24")
        m(f"s_lshl_b32 s{sT0}, s{sCT}, 7")
        m(f"v_add3_u32 v{vBD}, v29, v28, s{sT0}")
        for k in range(1, 4):
            m(f"v_add_u32 v{vBD+k}, {k*(7168-1024)}, v{vBD}")
        for k in range(4):
            m(f"v_cndmask_b32 v{vBD+k}, v{vLIN}, v{vBD+k}, {s(sM3,2)}")
        m(f"s_lshl_b32 s{sMB}, s{sW}, 11")
        m(f"s_sub_u32 s{sMA}, s{sMB}, {64*128 - R_A}")
        m(f"s_add_u32 s{sMB}, s{sMB}, {R_B}")
        m(f"s_mul_i32 s{sT0}, s{sC}, 3")
        m(f"s_sub_u32 s{sNQ}, 16, s{sT0}")
        m(f"s_lshl_b32 s{sT0}, s{sT0}, 6")
        m(f"s_add_u32 s{sT0}, s{sT0}, s{sRB}")
        m(f"s_lshl_b32 s{sQS}, s{sT0}, 11")
        m(f"s_mul_i32 s{sT1}, s{sRB}, 28")
        m(f"s_add_u32 s{sT0}, s{sT1}, s{sUB}")
        m(f"s_lshl_b32 s{sT0}, s{sT0}, 12")
        m(f"s_add_u32 s{sHB}, s{sT0}, {H_BASE}")
        m(f"s_sub_u32 s{sHA}, s{sHB}, 4096")
        m(f"s_lshl_b32 s{sUA}, s{sUA}, 7")
        m(f"s_lshl_b32 s{sUB}, s{sUB}, 7")
        m(f"s_cmp_eq_u32 s{sLIGHT}, 1")
        m(f"s_cselect_b32 s{sHA}, {OOB}, s{sHA}")
        m(f"s_cselect_b32 s{sUA}, {OOB}, s{sUA}")
        m(f"s_cselect_b32 s{sMA}, {DUMMY}, s{sMA}")
        m(f"s_cselect_b32 s{sMAS}, 0, {64*128}")
        m(f"s_lshl_b32 s{sT0}, s{sRB}, 4")
        m(f"s_add_u32 s{sT0}, s{sT0}, s{sC}")
        m(f"s_lshl_b32 s{sT0}, s{sT0}, 7")
        m(f"s_add_u32 s{sF1}, s{sT0}, {F1}")
        m(f"s_lshl_b32 s{sT0}, s{sRB}, 7")
        m(f"s_add_u32 s{sGS}, s{sT0}, {G_BASE}")
        m(f"s_add_u32 s{sF0P}, s{sT0}, {F0}")
        m(f"s_cmp_eq_u32 s{sC}, 3")
        m(f"s_cselect_b32 s{sGS}, s{sGS}, {OOB}")
        m(f"s_cselect_b32 s{sF0P}, s{sF0P}, {OOB}")
        m(f"s_lshr_b32 s{sT0}, s{sLOC}, 1")
        m(f"s_lshl_b32 s{sT0}, s{sT0}, 2")
        m(f"s_add_u32 s{sQB}, s{sT0}, s{sW}")
        m(f"s_sub_u32 s{sFIRST}, 8, s{sQB}")
        m(f"s_max_i32 s{sFIRST}, s{sFIRST}, 0")
        m(f"s_mul_i32 s{sT1}, s{sW}, 3")
        m(f"s_add_u32 s{sT0}, s{sT0}, s{sT1}")
        m(f"s_sub_u32 s{sKV0}, s{sT0}, 8")
        m(f"s_mul_i32 s{sT2}, s{sJ}, 43")
        m(f"s_lshr_b32 s{sT2}, s{sT2}, 7")
        m(f"s_lshl_b32 s{sT1}, s{sQB}, 4")
        m(f"s_add_u32 s{sT2}, s{sT1}, s{sT2}")
        m(f"v_mov_b32 v{vF1A}, s{sT2}")
        for part, add in ((0, 16), (1, 32)):
            m(f"s_add_u32 s{sT2}, s{sJ}, {add}")
            m(f"s_mul_i32 s{sT2}, s{sT2}, 43")
            m(f"s_lshr_b32 s{sT2}, s{sT2}, 7")
            m(f"v_subrev_u32 v40, {3*part}, v{vL}")
            m(f"v_add_u32 v41, s{sKV0}, v40")
            m(f"v_cmp_gt_u32 {s(sM,2)}, 3, v40")
            m(f"v_cmp_le_i32 vcc, 0, v41")
            m(f"v_lshl_add_u32 v41, v41, 4, s{sT2}")
            m(f"s_and_b64 {s(sM,2)}, {s(sM,2)}, vcc")
            m(f"v_cndmask_b32 v{vF1A}, v{vF1A}, v41, {s(sM,2)}")
        m(f"v_lshlrev_b32 v{vF1A}, 7, v{vF1A}")
        m(f"v_add_u32 v{vF1A}, {F1}, v{vF1A}")
        m(f"v_bfe_u32 v40, v{vL}, 2, 1")
        m(f"v_and_b32 v41, 3, v{vL}")
        m(f"s_lshl_b32 s{sT0}, s{sW}, 2")
        m(f"v_add_u32 v41, s{sT0}, v41")
        m(f"v_cmp_gt_u32 vcc, 8, v{vL}")
        m(f"v_lshl_add_u32 v41, v40, 4, v41")
        m(f"v_and_b32 v40, 1, v{vL}")
        m(f"v_lshl_add_u32 v40, v40, 4, 3")
        m(f"v_cndmask_b32 v{vF23A}, v40, v41, vcc")
        m(f"v_lshlrev_b32 v{vF23A}, 7, v{vF23A}")
        m(f"s_mul_i32 s{sT0}, s{sRB0}, {32*896}")
        m(f"s_lshl_b32 s{sT1}, s{sCT}, 7")
        m(f"s_add_u32 s{sT0}, s{sT0}, s{sT1}")
        m(f"s_add_u32 s{sOUT}, s{sOUT}, s{sT0}")

    def add_chunk(self, i):
        toks = self.ctok[i] = []
        lx = lw = OPT["lat0"] if i < 1 else None
        xs, ws = [], []
        for k in range(4):
            xs.append(Item(f"buffer_load_dwordx4 v{vXD+k}, {s(S_X,4)}, s{sCA} offen" + (f" offset:{1024*k}" if k else "") + NT(1) + " lds", toks,
                           pre=[f"s_lshl_b32 s{sCA}, s{sG+i}, 7"] if k == 0 else (), m0=(sMX, (i % 3) * 4096), lat=lx,
                           after=(lambda: self.xrd[i - 3] if len(self.xrd.get(i - 3, ())) == 4 else None) if i >= 3 and k == 0 else None))
        for k in range(3):
            ws.append(Item(f"buffer_load_dwordx4 v{vWQ+k}, {s(S_WQ,4)}, s{sCB} offen" + (f" offset:{1024*k}" if k else "") + NT(2) + " lds", toks,
                           pre=[f"s_mul_i32 s{sCB}, s{sG+i}, {64*2688}"] if k == 0 else (), m0=(sMQ, (i % 4) * 64 * 192), lat=lw))
        self.C.extend(xs + ws if i == 0 else ws + xs)
        self.clast = getattr(self, "clast", {})
        self.clast[i] = self.C[-1]

    def add_w1(self, unit, i):
        toks = self.wtok[(unit, i)] = []
        pre = [f"s_mul_i32 s{sCB}, s{sG+i}, {64*3584}", f"s_add_u32 s{sCB}, s{sCB}, s{sUA+unit}"]
        pre0 = [f"s_add_u32 s{sMA}, s{sMA}, s{sMAS}"] if unit == 0 else []
        for k in range(2):
            self.C.append(Item(f"buffer_load_dwordx4 v{vW1A0+k}, {s(S_W1,4)}, s{sCB} offen" + (" offset:1024" if k else "") + NT(4) + " lds", toks,
                               pre=pre if k == 0 else (), pre0=pre0 if k == 0 else (), m0=(sMB, i * 8192) if unit else (sMA, 0, i),
                               lat=OPT["miss"] if i < 4 else None))
        self.wlast = getattr(self, "wlast", {})
        self.wlast[(unit, i)] = self.C[-1]

    def gate_write(self):
        pe = self.pe
        pe(f"s_cmp_eq_u32 s{sLIGHT}, 1")
        pe(f"s_cselect_b64 {s(sM,2)}, -1, 0")
        pe(f"v_bfe_u32 v247, v244, 1, 1")
        pe(f"v_lshlrev_b32 v248, 7, v244")
        pe(f"v_lshl_add_u32 v248, v247, 6, v248")
        pe(f"v_mov_b32 v249, {DUMMY+2048}")
        pe(f"v_cndmask_b32 v247, v249, v248, {s(sM,2)}")
        pe(f"v_cmp_gt_u32 vcc, 192, v244")
        pe(f"v_add_u32 v248, {256*128}, v248")
        pe(f"s_and_b64 {s(sM,2)}, {s(sM,2)}, vcc")
        pe(f"ds_write_b16 v247, v245")
        pe(f"v_cndmask_b32 v248, v249, v248, {s(sM,2)}")
        pe(f"ds_write_b16 v248, v246")

    def store_addr(self):
        pe = self.pe
        for n, lim in ((0, 11), (1, 10)):
            pe(f"s_cmp_ge_u32 s{sC}, {lim}")
            pe(f"s_cselect_b64 {s(sM,2)}, -1, 0")
            pe(f"s_cselect_b32 s{sT0}, 128, 0")
            pe(f"v_cndmask_b32 v{24+2*n}, v{vLIN}, v{vPV}, {s(sM,2)}")
            pe(f"v_xor_b32 v{25+2*n}, s{sT0}, v{24+2*n}")

    def bias_init(self, acc, tbl, factor=None):
        for t in range(2):
            for mm in range(2):
                o = (tbl % 2048) // 8 + 8 * t + 4 * mm
                self.pe(f"ds_read2_b64 {v(acc+16*t+8+4*mm,4)}, v{vTBL} offset0:{o} offset1:{o+2}")
        for t in range(2):
            for k in range(8):
                src, dst = acc + 16 * t + 8 + k, acc + 16 * t + 2 * k
                self.pe(f"v_lshlrev_b32 v{dst}, 16, v{src}")
                self.pe(f"v_and_b32 v{dst+1}, 0xffff0000, v{src}")
        if factor:
            for k in range(16):
                self.pe(f"v_pk_mul_f32 {v(acc+2*k,2)}, {v(acc+2*k,2)}, {factor}")

    def rd_q(self, sidx, t):
        base = vWR + 12 * (sidx & 1) + 4 * t
        o = 56 * t + (sidx % 16) * 3072
        return [self.e(f"ds_read_b64_tr_b16 {v(base+2*h,2)}, v{vTRQ} offset:{o+768*h}") for h in range(2)]

    def rd_f(self, g, t):
        base = vWR + 8 * (g % 3) + 4 * t
        toks = self.ftok.setdefault(g, [])
        for h in range(2):
            toks.append(self.e(f"ds_read_b64_tr_b16 {v(base+2*h,2)}, v{vTRF0+t} offset:{(g%28)*2048+512*h}"))

    def rd_x(self, sidx):
        self.xrd.setdefault(sidx // 4, []).append(self.e(f"ds_read_b128 {v(vX+4*sidx,4)}, v{vXR+sidx%4} offset:{(sidx//4%3)*4096}"))

    def sync(self, st, last, toks, drain_lds=True):
        self.force(st, last)
        self.await_(toks)
        if drain_lds and self.a.lg:
            self.e("s_waitcnt lgkmcnt(0)")
        self.e("s_barrier")

    def await_(self, toks):
        while self.a.est(toks) > self.a.clk + 8 and self.side_wait(self.a.est(toks)):
            pass
        self.a.need(*toks)

    def force_p(self):
        while self.P:
            it = self.P[0]
            keep, self.P = self.P, deque()
            if it.after:
                self.await_(it.after())
            self.P = keep
            self.emit_item(self.P)

    def side_wait(self, until):
        a = self.a
        best = None
        for st in self.vm_streams() + (self.D,):
            if not st:
                continue
            it = st[0]
            t = a.allv[-1][0] if it.vm else a.clk
            if it.after:
                toks = it.after()
                if toks is None:
                    continue
                t = max(t, a.est(toks))
            t = max(t, a.clk)
            if t + 8 <= until and (best is None or t < best[0]):
                best = (t, st)
        if best:
            self.emit_item(best[1])
        return bool(best)

    def force_read(self, p):
        while not self.blast[p].done:
            it = self.D[0]
            if it.after:
                while it.after() is None:
                    if self.B[0].after:
                        self.a.need(*self.B[0].after())
                    self.emit_item(self.B)
                keep, self.D = self.D, deque()
                self.await_(it.after())
                self.D = keep
            self.emit_item(self.D)

    def prefetch_slot(self, sidx):
        if not OPT["wpf"]:
            return
        for reg, lo, hi, loads in ((sSLA, OPT["pfa0"], OPT["pfa1"], ((S_W1, 12, sPF1),)), (sSLB, OPT["pfb0"], OPT["pfb1"], ((S_W2, 12, sPF1), (S_WO, 3, sPF2)))):
            if lo <= sidx < hi:
                self.nlab += 1
                n = self.nlab
                self.e(f"s_cmp_eq_u32 s{reg}, {sidx - lo}")
                self.e(f"s_cbranch_scc1 L_pf{n}")
                self.a.label(f"L_pfb{n}")
                self.tail += [f"L_pf{n}:"]
                for srd, top, off in loads:
                    self.tail += [f"v_min_u32 v30, {top}, v{vL}", "v_lshlrev_b32 v30, 7, v30", f"buffer_load_dword a255, v30, {s(srd,4)}, s{off} offen"]
                self.tail += [f"s_branch L_pfb{n}"]

    def qkv(self):
        e = self.e
        qtok = {}
        self.sync(self.C, self.clast[1], self.ctok[0])
        self.stamp("chunk 0")
        self.add_chunk(2)
        self.rd_x(0)
        self.rd_x(1)
        for t in range(3):
            qtok[(0, t)] = self.rd_q(0, t)
        for sidx in range(28):
            i = sidx // 4
            if sidx % 2 == 0:
                self.stamp(group=3)
            if sidx == 8:
                self.gate_write()
            if sidx == 12:
                self.push(lambda: self.a.need(self.tB1), 0)
                self.bias_init(vACC + 48, TB1)
            if sidx == 8:
                self.pe(f"v_add_u32 v{vT}, {TAG_STEP}, v{vT}")
            self.prefetch_slot(sidx)
            for t in range(3):
                if t == 0:
                    self.a.need(*qtok[(sidx, 0)], *qtok[(sidx, 1)])
                acc = v(vACC + 16 * t, 16)
                e(f"{MFMA} {acc}, {v(vWR+12*(sidx&1)+4*t,4)}, {v(vX+4*sidx,4)}, {acc if sidx else 0}")
                if t == 0 and sidx % 4 == 3:
                    self.drain()
                    if sidx < 27:
                        self.sync(self.C, self.clast[i + 2] if i < 5 else self.wlast[(0, 2)], self.ctok[i + 1])
                        if i + 3 < 7:
                            self.add_chunk(i + 3)
                        if i + 3 == 6:
                            for k in range(7):
                                self.add_w1(0, k)
                    else:
                        self.sync(self.C, self.wlast[(0, 2)], self.wtok[(0, 2)])
                if sidx % 4 == 3 and sidx < 27 and t < 2:
                    self.rd_x(sidx + 1 + t)
                if sidx % 4 == 0 and t < 2:
                    self.rd_x(sidx + 2 + t)
                if sidx < 27:
                    qtok[(sidx + 1, t)] = self.rd_q(sidx + 1, t)
                elif t < 2:
                    self.rd_f(0, t)
                self.gap((12, 16, 12)[t] if sidx % 4 in (1, 2) else (4, 8, 12)[t])
        self.rd_f(1, 0)
        self.rd_f(1, 1)

    QPK = (vTMP + 8, vACC + 40, vACC + 32)

    def qkv_pack(self, t):
        pe = self.pe
        acc, dst = vACC + 16 * t, self.QPK[t]
        pe(f"s_cmp_gt_i32 s{sNQ}, {t-16}")
        pe(f"s_cselect_b32 s{sT0}, 0x3f803f80, s{sT3}")
        pe(f"s_cselect_b32 s{sT2}, s{sT3}, 0")
        pe(f"s_cmp_gt_i32 s{sNQ}, {t}")
        pe(f"s_cselect_b32 s{sT1}, {QSCALE}, 1.0")
        pe(f"s_cselect_b32 s{sT0}, 0, s{sT0}")
        pe(f"s_cselect_b32 s{sT2}, 0, s{sT2}")
        pe(f"v_mov_b32 v28, s{sT0}")
        pe(f"v_mov_b32 v29, s{sT2}")
        for k in range(16):
            pe(f"v_mul_f32 v{acc+k}, s{sT1}, v{acc+k}")
        def store(half):
            pre = [f"s_add_u32 s{sCA}, s{sQS}, {t*64*2048}"] if half == 0 else ()
            self.C.append(Item(f"buffer_store_dwordx4 {v(dst+4*half,4)}, v{24+2*(t>>1)+half}, {s(S_WS,4)}, s{sCA} offen offset:{1024*half} sc1",
                               self.tQKV, pre=pre))
            self.lastS = self.C[-1]
        for k in range(8):
            pe(f"v_cvt_pk_bf16_f32 v{dst+k}, v{acc+2*k}, v{acc+2*k+1}")
            if k == 3:
                self.push(lambda: store(0), 0)
        pe(f"v_cndmask_b32 v{dst+6}, v{dst+6}, v28, {s(sHI,2)}")
        pe(f"v_cndmask_b32 v{dst+7}, v{dst+7}, v29, {s(sHI,2)}")
        self.push(lambda: store(1), 0)

    def b_slot(self, p):
        return (RING - RED) + (p % 6) * 4096 if p % 6 < 3 else (p % 6 - 3) * 4096

    def b_dma(self, p):
        toks = self.btok[p] = []
        out = []
        off = sBOFF if p < 14 else sBEND
        pre = [] if p in (0, 14) else [f"s_add_u32 s{off}, s{off}, " + (f"s{sBT}" if p < 14 else f"{28*896}")]
        post = []
        for k in range(4):
            out.append(Item(f"buffer_load_dwordx4 v{vBD+k}, {s(S_W2 if p < 14 else S_WO,4)}, s{off} offen" + (f" offset:{1024*k}" if k else "") + NT(8) + " lds",
                            toks, pre=pre if k == 0 else (), post=post if k == 3 else (), m0=(sRING, self.b_slot(p)),
                            lat=OPT["miss"] if p < 4 or p >= 14 else None,
                            after=(lambda: self.btr[p - 6] if len(self.btr.get(p - 6, ())) == 8 else None) if k == 0 and p >= 6 else None))
            out[-1].due = min(p, 14 + (p - 14) // 2) - 5
        return out

    def b_read(self, p):
        toks = self.btr[p] = []
        out = []
        for ks in range(2):
            for t in range(2):
                out.append(Item([f"ds_read_b64_tr_b16 {a_(16*(p%16)+8*ks+4*t+2*h,2)}, v{vBT0+t} offset:{self.b_slot(p)+ks*2048+h*1024}" for h in range(2)],
                                toks, after=(lambda: self.btok[p] if len(self.btok[p]) == 4 else None) if ks + t == 0 else None))
        self.blast[p] = out[-1]
        return out

    def gelu_two(self, acc, soff, n, packed):
        pe = self.pe
        T = vTMP + 12
        U = [acc + 2 * n, acc + 2 * n + 2]
        R = [T, T + 2]
        if packed:
            for u, r in zip(U, R):
                pe(f"v_pk_mul_f32 {v(r,2)}, {v(u,2)}, {v(u,2)}")
                pe(f"v_pk_fma_f32 {v(r,2)}, {v(r,2)}, {s(sK2,2)}, {v(vK1,2)} op_sel_hi:[1,1,0]")
                pe(f"v_pk_mul_f32 {v(r,2)}, {v(r,2)}, {v(u,2)}")
            for k in range(4):
                pe(f"v_exp_f32 v{T+k}, v{T+k}")
            for r in R:
                pe(f"v_pk_add_f32 {v(r,2)}, {v(r,2)}, 1.0 op_sel_hi:[1,0]")
            for k in range(4):
                pe(f"v_rcp_f32 v{T+k}, v{T+k}")
            for u, r in zip(U, R):
                pe(f"v_pk_mul_f32 {v(r,2)}, {v(r,2)}, {v(u,2)}")
        else:
            u = U[0]
            for k in range(4):
                pe(f"v_mul_f32 v{T+k}, v{u+k}, v{u+k}")
                pe(f"v_fma_f32 v{T+k}, v{T+k}, s{sK2}, v{vK1}")
                pe(f"v_mul_f32 v{T+k}, v{T+k}, v{u+k}")
            for k in range(4):
                pe(f"v_exp_f32 v{T+k}, v{T+k}")
            for k in range(4):
                pe(f"v_add_f32 v{T+k}, 1.0, v{T+k}")
            for k in range(4):
                pe(f"v_rcp_f32 v{T+k}, v{T+k}")
            for k in range(4):
                pe(f"v_mul_f32 v{T+k}, v{T+k}, v{u+k}")
        for d in range(2):
            pe(f"v_cvt_pk_bf16_f32 v{acc+n+d}, v{T+2*d}, v{T+2*d+1}")
        if n % 4 == 2:
            fr = n // 4
            self.push(lambda: self.C.append(Item(
                f"buffer_store_dwordx4 {v(acc+4*fr,4)}, v{vLIN}, {s(S_WS,4)}, s{soff} offen offset:{fr*1024} sc1", self.tH)), 0)

    def ffn(self, unit):
        e = self.e
        acc0 = vACC + 48 if unit == 0 else vACC
        for sidx in range(28):
            g = 28 * unit + sidx
            if sidx % 4 == 0:
                self.stamp(group=2)
            self.hook(f"ffn{unit}_{sidx}")
            self.a.need(*self.ftok[g])
            for t in range(2):
                acc = v(acc0 + 16 * t, 16)
                e(f"{MFMA} {acc}, {v(vWR+8*(g%3)+4*t,4)}, {v(vX+4*sidx,4)}, {acc}")
                if t == 0 and g in (10, 34, 42):
                    k = {10: (0, 6), 34: (1, 3), 42: (1, 6)}[g]
                    self.sync(self.C, self.wlast[k], self.wtok[k], drain_lds=False)
                if t == 0 and g == 26:
                    if True:
                        self.drain("biasb")
                        self.sync(self.C, self.wlast[(1, 1)], self.wtok[(1, 1)])
                        e(f"v_add_u32 v{vTRF0}, {R_B-R_A}, v{vTRF0}")
                        e(f"v_add_u32 v{vTRF1}, {R_B-R_A}, v{vTRF1}")
                        self.add_w1(1, 6)
                        self.B.extend(self.b_dma(3) + self.b_dma(4) + self.b_dma(5))
                        for p in range(12):
                            self.B.extend(self.b_dma(p + 6))
                        for p in range(16):
                            self.D.extend(self.b_read(p))
                if g + 2 < 56:
                    self.rd_f(g + 2, t)
                self.gap(12)

    def phase1(self):
        e, pe, m = self.e, self.pe, self.m
        self.btok, self.btr, self.blast = {}, {}, {}
        self.tQKV, self.tH, tG = [], [], []
        self.qkv()
        self.stamp("qkv done")
        e(f"s_cmp_lt_u32 s{sLOC}, 28")
        if not OPT["ipf"]:
            e(f"s_cselect_b32 s{S_W2+2}, {1792*896}, 0")
        e(f"s_cselect_b32 s{S_WO+2}, {448*896}, 0")
        if OPT["null"] & 1:
            e(f"s_mov_b32 s{S_W2+2}, 0")
            e(f"s_mov_b32 s{S_WO+2}, 0")
        if OPT["null"] & 2:
            e(f"s_mov_b32 s{sAOFF}, {OOB}")
            e(f"s_mov_b32 s{sAEND}, {OOB}")
        if OPT["null"] & 4:
            e(f"s_mov_b32 s{sHA}, {OOB}")
            e(f"s_mov_b32 s{sHB}, {OOB}")
            e(f"s_mov_b32 s{sQS}, {OOB}")
            e(f"s_mov_b32 s{sOS}, {OOB}")
        if OPT["null"] & 8:
            e(f"s_mov_b32 s{sKOFF}, {OOB}")
            e(f"s_mov_b32 s{sQOFF}, {OOB}")
        if OPT["null"] & 16:
            e(f"s_mov_b32 s{S_W1+2}, 0")
        pub1 = self.publish(sF1, self.tQKV, 6)
        self.add_w1(1, 0)
        pe(f"s_movk_i32 s{sT3}, 0x3f80")
        self.qkv_pack(2)
        self.push(lambda: self.add_w1(1, 1), 0)
        self.qkv_pack(1)
        self.qkv_pack(0)
        self.push(lambda: [self.add_w1(1, k) for k in range(2, 6)], 0)
        self.bias_init(vACC, TB1 + 128)
        self.mark("biasb")
        b012 = self.b_dma(0) + self.b_dma(1) + self.b_dma(2)
        self.hooks[f"ffn0_{OPT['bstart']}"] = lambda: self.B.extend(b012)
        self.ffn(0)
        self.force(self.C, self.lastS)
        self.stamp("ffn a done")
        accA = vACC + 48
        pe(f"v_mul_f32 v{vGATE}, {fbits(-math.log2(math.e))}, v{accA}")
        pe(f"v_exp_f32 v{vGATE}, v{vGATE}")
        pe(f"v_and_b32 v{vGA}, 31, v{vL}")
        pe(f"v_add_f32 v{vGATE}, 1.0, v{vGATE}")
        pe(f"v_lshlrev_b32 v{vGA}, 2, v{vGA}")
        pe(f"v_rcp_f32 v{vGATE}, v{vGATE}")
        pe(f"v_mov_b32 v{vTMP}, {OOB}")
        pe(f"v_cndmask_b32 v{vTMP}, v{vGA}, v{vTMP}, {s(sHI,2)}")
        self.push(lambda: self.C.appendleft(Item(f"buffer_store_dword v{vGATE}, v{vTMP}, {s(S_WS,4)}, s{sGS} offen sc1", tG)), 0)
        self.push(lambda: self.publish(sF0P, tG, 1), 0)
        ga = deque(range(0, 16, 2))
        while ga and ga[0] < OPT["npairs"]:
            self.gelu_two(accA, sHA, ga.popleft(), False)
        self.hooks[f"ffn1_{OPT['pub1']}"] = lambda: self.force(self.P, pub1)
        self.hooks[f"ffn1_{OPT['poll1']}"] = lambda: self.poll_item(vF1A, 0)
        self.ffn(1)
        self.poll_check(vF1A, 0)
        e("s_barrier")
        self.att_loads()
        self.stamp("ffn b done")
        m(f"v_lshlrev_b32 v{vTMP+1}, 2, v{vL}")
        self.tB2 = []
        self.C.append(Item(f"buffer_load_dword v{vTMP+1}, {s(S_B2,4)}, s{sCB} offen lds", self.tB2,
                           pre=[f"s_lshl_b32 s{sCB}, s{sCT}, 7"], m0=(None, TB2), lat=OPT["miss"]))
        self.b2item = self.C[-1]
        self.drain()
        for acc, soff, todo in ((accA, sHA, ga), (vACC, sHB, range(0, 16, 2))):
            for n in todo:
                self.gelu_two(acc, soff, n, True)
        self.drain(every=OPT["gev"])
        self.stamp("gelu done")

    def att_loads(self):
        self.tKV = []
        items = []
        for bb in range(3):
            for part in range(2):
                pre = ([f"s_add_u32 s{sCA}, s{sKOFF}, {16*64*2048+2048*bb}", f"s_cmp_lt_i32 s{sKV0}, {-bb}", f"s_cselect_b32 s{sCA}, {OOB}, s{sCA}"]
                       if part == 0 else [f"s_add_u32 s{sCA}, s{sCA}, {16*64*2048}"])
                for k in range(2):
                    items.append(Item(f"buffer_load_dwordx4 v{vLIN}, {s(S_WS,4)}, s{sCA} offen" + (" offset:1024" if k else "") + " sc1 lds",
                                      self.tKV, pre=pre if k == 0 else (), m0=(sMKV, KV + 24576 * part + 2048 * bb), lat=OPT["miss"]))
        for k in range(2):
            items.append(Item(f"buffer_load_dwordx4 {v(vQ+4*k,4)}, v{vLIN}, {s(S_WS,4)}, s{sQOFF} offen offset:{1024*k} sc1", self.tKV, lat=OPT["miss"]))
        self.C.extendleft(reversed(items))
        self.kvlast = items[-1]

    def rd_k(self, n, em=None):
        for k in range(2):
            (em or self.m)(f"ds_read_b128 {v(vKR+8*(n%3)+4*k,4)}, v{vKA} offset:{(n%9)*2048+k*1024}")

    def rd_v(self, i, st):
        for h in range(2):
            self.e(f"ds_read_b64_tr_b16 {v(vVR+4*st+2*h,2)}, v{vVA} offset:{i*2048+256*(2*st+h)}")

    def qk(self, i, k):
        S = v(vS + 16 * (i & 1), 16)
        C = S if k else v(vM0 if i == 0 else vM8 if i == 8 else vCD, 16)
        self.e(f"{MFMA} {S}, {v(vKR+8*(i%3)+4*k,4)}, {v(vQ+4*k,4)}, {C}")

    def patch(self, i, src):
        if not 2 <= i <= 7 and src == "0":
            return
        self.nlab += 1
        n = self.nlab
        self.e(f"s_cmp_eq_u32 s{sFIRST}, {i}" if src == "0" else f"s_cmp_gt_u32 s{sFIRST}, 1")
        self.e(f"s_cbranch_scc1 L_pat{n}")
        self.a.label(f"L_patb{n}")
        self.tail += [f"L_pat{n}:", "s_nop 7"] + [f"v_mov_b32 v{vCD+k}, {src}" for k in range(16)] + ["s_nop 1", f"s_branch L_patb{n}"]

    def attention(self):
        e, pe, m = self.e, self.pe, self.m
        m(f"v_and_b32 v26, 31, v{vL}")
        m(f"v_lshrrev_b32 v27, 5, v{vL}")
        m(f"v_lshlrev_b32 v28, 2, v27")
        m(f"v_sub_u32 v26, v26, v28")
        m(f"s_cmp_gt_u32 s{sFIRST}, 0")
        m(f"s_cselect_b32 s{sT0}, {NINF}, 0")
        m(f"v_mov_b32 v28, s{sT0}")
        m(f"v_mov_b32 v29, {NINF}")
        m(f"s_cmp_gt_u32 s{sFIRST}, 1")
        m(f"s_cselect_b32 s{sT0}, {NINF}, 0")
        prs = (sM, sM3)
        for j0 in range(0, 16, 2):
            for d in range(2):
                jj = j0 + d
                m(f"v_cmp_le_i32 {s(prs[d],2)}, {(jj&3)+8*(jj>>2)}, v26")
            for d in range(2):
                m(f"v_mov_b32 v{vCD+j0+d}, s{sT0}")
            for d in range(2):
                jj = j0 + d
                m(f"v_cndmask_b32 v{vM8+jj}, v29, 0, {s(prs[d],2)}")
                m(f"v_cndmask_b32 v{vM0+jj}, v28, v29, {s(prs[d],2)}")
        m(f"s_lshl_b32 s{sT1}, s{sW}, 11")
        m(f"s_add_u32 s{sT1}, s{sT1}, {KV}")
        m(f"v_add_u32 v{vKA}, s{sT1}, v{vLIN}")
        m(f"v_mov_b32 v{vMX}, {NINF}")
        m(f"v_mov_b32 v{vMX+1}, {NINF}")
        m(f"v_mov_b32 v{vF1A}, 0")
        m(f"v_add_u32 v{vA1H}, {112*1024}, v{vLIN}")
        self.sync(self.C, self.kvlast, self.tKV, drain_lds=False)
        self.stamp("kv in")
        self.poll_item(vF1A, f"s{sF0R}")
        pub2 = self.publish(sT3, self.tH, 8, pre=[f"s_add_u32 s{sT3}, s{sF1}, {F2-F1}"])
        self.rd_k(0)
        self.rd_k(1)
        for i in range(10):
            if i % 2 == 0:
                self.stamp(group=4)
            if i < 9:
                self.patch(i, "0")
                self.qk(i, 0)
                self.rd_k(i + 2, e)
                self.qk(i, 1)
                self.cluster()
            if i > 0:
                S = vS + 16 * ((i - 1) & 1)
                for k in range(8):
                    e(f"v_max3_f32 v{vMX+(k&1)}, v{S+2*k}, v{S+2*k+1}, v{vMX+(k&1)}")
        m(f"v_max_f32 v{vMX}, v{vMX}, v{vMX+1}")
        m(f"v_mov_b32 v{vMX+1}, v{vMX}")
        m(f"v_permlane32_swap_b32 v{vMX}, v{vMX+1}")
        m(f"v_max_f32 v{vMX}, v{vMX}, v{vMX+1}")
        m(f"v_cvt_pk_bf16_f32 v26, -v{vMX}, -v{vMX}")
        m(f"v_lshlrev_b32 v26, 16, v26")
        m(f"v_sub_f32 v26, -v{vMX}, v26")
        m(f"v_cvt_pk_bf16_f32 v27, -v{vMX}, v26")
        m(f"v_and_b32 v28, 0xffff0000, v27")
        m(f"v_sub_f32 v26, v26, v28")
        m(f"v_cndmask_b32 v{vQ+6}, v{vQ+6}, v27, {s(sHI,2)}")
        m(f"v_cvt_pk_bf16_f32 v26, v26, 0")
        self.patch(1, "v29")
        m(f"v_cndmask_b32 v{vQ+7}, v{vQ+7}, v26, {s(sHI,2)}")
        self.qk(0, 0)
        self.rd_k(2)
        self.qk(0, 1)
        self.stamp("pass 1 done")
        O = v(vO, 16)
        for i in range(9):
            S = vS + 16 * (i & 1)
            ex = lambda k: e(f"v_exp_f32 v{S+k}, v{S+k}")
            cv = lambda k: e(f"v_cvt_pk_bf16_f32 v{vP+k}, v{S+2*k}, v{S+2*k+1}")
            self.stamp(group=4)
            if i == OPT["chk0"]:
                self.force(self.C)
                self.poll_check(vF1A, f"s{sF0R}")
                self.C.append(Item(f"buffer_load_dword v{vGATE}, v{vGA}, {s(S_WS,4)}, s{sGQ} offen sc1", lat=OPT["miss"]))
            if i == OPT["poll2"]:
                self.poll_item(vF23A, f"s{sF2O}")
            if i == OPT["chk2"]:
                self.de_start()
            if i < 8:
                self.patch(i + 1, "0")
                self.qk(i + 1, 0)
            self.rd_v(i, 0)
            self.rd_v(i, 1)
            self.cluster(1)
            for k in range(4):
                ex(k)
            if i < 8:
                self.qk(i + 1, 1)
            self.cluster()
            for k in range(4, 9):
                ex(k)
            for k in range(4):
                cv(k)
            ex(9)
            ex(10)
            e(f"{MFMA} {O}, {v(vVR,4)}, {v(vP,4)}, {O if i else 0}")
            if i < 6:
                self.rd_k(i + 3, e)
            self.cluster(1)
            for k in range(11, 16):
                ex(k)
            for k in range(4, 8):
                cv(k)
            self.cluster()
            e(f"{MFMA} {O}, {v(vVR+4,4)}, {v(vP+4,4)}, {O}")
        self.force(self.C, self.b2item)
        self.a.need(*self.tB2)
        m(f"v_lshrrev_b32 v26, 1, v{vGA}")
        m(f"ds_read_u16 v{vBI}, v26 offset:{TB2}")
        m(f"ds_read_u16 v{vBI+4}, v26 offset:{TB2+64}")
        m(f"s_cmp_eq_u32 s{sW}, 0")
        m(f"s_cselect_b32 s{sT0}, 0x3f80, 0")
        m(f"v_mov_b32 v26, s{sT0}")
        for k in (1, 2, 3, 5, 6, 7, 9, 10, 11):
            m(f"v_mov_b32 v{vBI+k}, 0")
        m(f"v_cndmask_b32 v{vBI+8}, v26, 0, {s(sHI,2)}")
        m(f"v_mov_b32 v{vMX}, v{vO+12}")
        m(f"v_mov_b32 v{vMX+1}, v{vO+12}")
        m(f"v_permlane32_swap_b32 v{vMX}, v{vMX+1}")
        m(f"v_rcp_f32 v{vMX}, v{vMX+1}")
        m(f"v_mul_f32 v{vMX}, v{vMX}, v{vGATE}")
        for k in range(8):
            m(f"v_pk_mul_f32 {v(vO+2*k,2)}, {v(vO+2*k,2)}, {v(vMX,2)} op_sel_hi:[1,0]")
        self.tO = []
        for k in range(8):
            m(f"v_cvt_pk_bf16_f32 v{vP+k}, v{vO+2*k}, v{vO+2*k+1}")
            if k == 3:
                self.P.append(Item(f"buffer_store_dwordx4 {v(vP,4)}, v{vLIN}, {s(S_WS,4)}, s{sOS} offen sc1", self.tO))
        m(f"v_cndmask_b32 v{vP+6}, v{vP+6}, 0, {s(sHI,2)}")
        self.P.append(Item(f"buffer_store_dwordx4 {v(vP+4,4)}, v{vLIN}, {s(S_WS,4)}, s{sOS} offen offset:1024 sc1", self.tO))
        self.drain()
        self.force(self.P)
        self.stamp("attention done")

    def ar(self, p, k):
        return (64, 80, 104, 120)[p % 4] + 4 * k

    def a_load(self, p):
        for n in range(4):
            if p < 14:
                ad, so, imm = (vLIN, vA1H)[n & 1], sAOFF, 1024 * (n >> 1)
                pre = [f"s_add_u32 s{sAOFF}, s{sAOFF}, 2048"] if p and n == 0 else ()
            else:
                ad, so, imm = vLIN, sAEND, 1024 * n
                pre = [f"s_add_u32 s{sAEND}, s{sAEND}, {(0, 4096, 32768-4096, 4096)[p-14]}"] if p > 14 and n == 0 else ()
            self.C.append(Item(f"buffer_load_dwordx4 {v(self.ar(p,n),4)}, v{ad}, {s(S_WS,4)}, s{so} offen offset:{imm} sc1",
                               self.atok.setdefault(p, []), pre=pre, lat=OPT["miss2"]))
            self.C[-1].due = p - 3
        self.alast[p] = self.C[-1]

    def de_start(self):
        e = self.e
        self.alast, self.atok = {}, {}
        self.poll_check(vF23A, f"s{sF2O}")
        for p in range(4):
            self.a_load(p)
        for rb in range(2):
            self.C.append(Item(f"buffer_load_dword v{vG+rb}, v{vGA}, {s(S_WS,4)}, s{sGD} offen offset:{128*rb} sc1", lat=OPT["miss"]))
            self.C[-1].due = 1

    def de(self):
        e, pe, m = self.e, self.pe, self.m
        e(f"s_cmp_ge_u32 s{sLOC}, 28")
        e("s_cbranch_scc1 L_idle")
        started = sum(1 for p in range(4) if self.atok.get(p))
        self.bfirst = True
        self.publish(sF3P, self.tO, 2)

        def mm(p, n):
            if p < 14:
                ks, qd = (n & 1, n >> 1) if p == 13 else (n >> 2, n & 3)
                B, A = 16 * p + 8 * ks + 4 * (qd & 1), self.ar(p, 2 * ks + (qd >> 1))
            else:
                fr, t = (n >> 1, n & 1) if p in (14, 16) else (n & 3, 1 - (n >> 2))
                qd = 2 * ((p - 14) >> 1) + t
                B, A = (16 * (14 + 2 * (p & 1)) + 8 * fr + 4 * t) % 256, self.ar(p, fr)
            acc = v(vAB + 16 * qd, 16)
            e(f"{MFMA} {acc}, {a_(B,4)}, {v(A,4)}, {0 if p == 0 and n < 4 else acc}")

        def scale(qd):
            for k in range(16):
                pe(f"v_mul_f32 v{vAB+16*qd+k}, v{vG+(qd>>1)}, v{vAB+16*qd+k}")

        def put(rb, i):
            h, k = (1, 3, 2)[i >> 1], i & 1
            e(f"ds_write_b128 v24, {v(vAB+32*rb+16*(h&1)+8*(h>>1)+4*k,4)} offset:{rb*(RING-RED)+h*2048+k*1024}")

        def get(rb):
            R, S = 208, vAB + 32 * rb
            for h in range(1, 4):
                for k in range(2):
                    pe(f"ds_read_b128 {v(R+8*h+4*k,4)}, v{24+h} offset:{rb*(RING-RED)+k*1024}")
            for h in range(1, 4):
                if rb:
                    for k in range(4):
                        pe(f"v_pk_add_f32 {v(S+2*k,2)}, {v(S+2*k,2)}, {v(R+8*h+2*k,2)}")
                else:
                    for k in range(8):
                        pe(f"v_add_f32 v{S+k}, v{S+k}, v{R+8*h+k}")
            for k in range(4):
                pe(f"v_cvt_pk_bf16_f32 v{32+4*rb+k}, v{S+2*k}, v{S+2*k+1}")
            if rb:
                pe(f"s_add_u32 s{sOUT}, s{sOUT}, {32*896}")
            for d in range(2):
                pe(f"v_permlane32_swap_b32 v{32+4*rb+d}, v{32+4*rb+2+d}")
            pe(f"buffer_store_dwordx4 {v(32+4*rb,4)}, v28, {s(S_OUT,4)}, s{sOUT} offen")

        for p in range(18):
            if p < 6 or p >= 9:
                self.stamp(group=5)
            self.force(self.C, self.alast[p])
            for pb in ([p] if p < 14 else [14 + 2 * (p & 1), 15 + 2 * (p & 1)]):
                self.force_read(pb)
            self.await_(self.atok[p][:2])
            if p in (1, 2):
                self.D.extend(self.b_read(15 + p))
            if p == 3:
                for qd in range(4):
                    acc = v(vAB + 16 * qd, 16)
                    e(f"{MFMA} {acc}, {v(vBI+4*(qd&1),4)}, {v(vBI+8,4)}, {acc}")
                    self.side()
                pe(f"v_add_u32 v24, s{sRING}, v{vLIN}")
                for h in range(1, 4):
                    pe(f"s_xor_b32 s{sT0}, s{sW}, {h}")
                    pe(f"s_mul_i32 s{sT0}, s{sT0}, 12288")
                    pe(f"s_add_u32 s{sT0}, s{sT0}, {RED+2048*h}")
                    pe(f"v_add_u32 v{24+h}, s{sT0}, v{vLIN}")
                pe(f"v_and_b32 v28, 31, v{vL}")
                pe(f"v_mul_u32_u24 v28, 896, v28")
                pe(f"v_lshrrev_b32 v29, 5, v{vL}")
                pe(f"v_lshl_add_u32 v28, v29, 4, v28")
            if p == OPT["poll3"]:
                e(f"s_add_u32 s{sF2O}, s{sF2O}, {F3-F2}")
                self.poll_item(vF23A, f"s{sF2O}")
            if p == 11:
                for rb in range(2):
                    pe(f"v_sub_f32 v{vG+rb}, 1.0, v{vG+rb}")
            if p == 14:
                self.drain()
            if p == 16:
                self.drain()
            for n in range(8):
                mm(p, n)
                if p == 13 and n in (3, 5):
                    scale((n - 3) >> 1)
                if p == 14 and n == 0:
                    scale(2)
                    scale(3)
                if p in (15, 17) and n >= 6:
                    put(p >> 4, n - 6)
                elif p == 16 and n < 4:
                    put(0, n + 2)
                if p == 16 and n == 5:
                    e("s_waitcnt lgkmcnt(0)")
                    e("s_barrier")
                    get(0)
                self.gap(32 if p == 13 else 8 if p == 16 and n < 7 else 24)
            if p + 4 < 18:
                if p + 4 == 14:
                    self.poll_check(vF23A, f"s{sF2O}")
                self.a_load(p + 4)
        self.stamp("pair 17 done")
        assert not self.q
        for i in range(2, 6):
            put(1, i)
        e("s_waitcnt lgkmcnt(0)")
        e("s_barrier")
        get(1)
        self.drain()
        self.stamp("end")
        self.write_stamps()
        e("s_endpgm")
        self.a.label("L_idle")
        self.a.vm, self.a.lg = [], []
        n = 0
        todo = range(started, 14 - OPT["pa0"]) if OPT["ipf"] else []
        for q in todo:
            e(f"s_add_u32 s{sAOFF}, s{sAOFF}, 2048")
            for k in range(4):
                self.a._push(Ins(f"buffer_load_dwordx4 {v(64+4*k,4)}, v{(vLIN, vA1H)[k & 1]}, {s(S_WS,4)}, s{sAOFF} offen offset:{1024*(k>>1)} sc1"))
                n += 1
            if n == 8:
                e(f"s_waitcnt vmcnt({n})")
                e(self.pub_text(sF3P))
        if n < 8:
            e(f"s_waitcnt vmcnt({n})")
            e(self.pub_text(sF3P))
        if OPT["ipf"]:
            e(f"s_add_u32 s{sF2O}, s{sF2O}, {F3-F2}")
            e(f"buffer_load_dword {v(vPOLL)}, {v(vF23A)}, {s(S_WS,4)}, s{sF2O} offen sc1")
            self.poll_check(vF23A, f"s{sF2O}")
            for q in range(4):
                for k in range(4):
                    self.a._push(Ins(f"buffer_load_dwordx4 {v(64+4*k,4)}, v{vLIN}, {s(S_WS,4)}, s{sAEND} offen offset:{1024*k} sc1"))
                if q < 3:
                    e(f"s_add_u32 s{sAEND}, s{sAEND}, {(4096, 32768-4096, 4096)[q]}")
        e("s_cmp_lg_u32 s2, 248")
        e("s_cbranch_scc1 L_end")
        e(f"s_cmp_lg_u32 s{sW}, 0")
        e("s_cbranch_scc1 L_end")
        e(f"v_lshlrev_b32 v24, 7, v{vL}")
        e(f"s_mov_b32 s{sSPIN}, 0")
        self.a.label("L_ep")
        for k in range(16):
            e(f"s_mov_b32 s{sT0}, {F1+8192*k}")
            e(f"buffer_load_dword v{40+k}, v24, {s(S_WS,4)}, s{sT0} offen sc1")
        e(f"s_add_u32 s{sSPIN}, s{sSPIN}, 1")
        e("s_waitcnt vmcnt(0)")
        for k in range(16):
            e(f"v_xor_b32 v{40+k}, v{vT}, v{40+k}")
        for k in range(1, 16):
            e(f"v_or_b32 v40, v40, v{40+k}")
        e(f"v_cmp_ne_u32 vcc, 0, v40")
        e(f"s_cmp_gt_u32 s{sSPIN}, 0x8000")
        e("s_cbranch_scc1 L_epd")
        e("s_cbranch_vccnz L_ep")
        self.a.label("L_epd")
        e(f"s_mov_b32 s{sT0}, {E_OFF}")
        e(self.pub_text(sT0))

    def write_stamps(self):
        e = self.e
        if OPT["probe"]:
            e(f"s_sub_u32 s{sT0}, s{sP0+1}, s{sP0}")
            e(f"s_lshl_b32 s{sT0}, s{sT0}, 2")
            e(f"s_add_u32 s{sT0}, s{sT0}, 72000")
            self.a.label("L_probe")
            e(f"s_memtime {s(sM3,2)}")
            e("s_waitcnt lgkmcnt(0)")
            e(f"s_sub_u32 s{sT1}, s{sM3}, s{sP0}")
            e(f"s_cmp_lt_u32 s{sT1}, s{sT0}")
            e("s_cbranch_scc1 L_probe")
        if not OPT["stamps"]:
            return
        e(f"s_lshl_b32 s{sT0}, s2, 2")
        e(f"s_add_u32 s{sT0}, s{sT0}, s{sW}")
        e(f"s_lshl_b32 s{sT1}, s{sT0}, 7")
        e(f"s_add_u32 s{sT1}, s{sT1}, {ST_BASE}")
        e(f"s_mov_b32 s{sT2}, {self.nst}")
        e(f"v_lshlrev_b32 v40, 2, v{vL}")
        e(f"v_writelane_b32 v{vST}, s{sT2}, 31")
        e(f"v_writelane_b32 v{vST}, s{sP0}, 30")
        e("s_memrealtime s[88:89]")
        e("s_waitcnt lgkmcnt(0)")
        e(f"v_writelane_b32 v{vST}, s88, 28")
        e(f"v_cmp_gt_u32 vcc, 32, v{vL}")
        e(f"v_mov_b32 v41, {OOB}")
        e(f"v_cndmask_b32 v40, v41, v40, vcc")
        e(f"buffer_store_dword v{vST}, v40, {s(S_WS,4)}, s{sT1} offen")

    def build(self):
        self.prologue()
        self.phase1()
        self.attention()
        self.de()
        self.a.label("L_end")
        self.e("s_endpgm")
        if OPT["strip"]:
            keep, pro = [], True
            for i in self.a.ins:
                if i.kind == "barrier":
                    pro = False
                drop = i.kind in ("mfma", "trans", "dsread", "dswrite") or (
                    not pro and i.kind == "valu" and any(r[0] == "v" and r != "vcc" and int(r[1:]) >= 30 for r in i.w) and "v40" not in i.w and "v41" not in i.w)
                if OPT["strip"] == 2 and i.kind == "vstore" and "x4" in i.mn:
                    i = Ins(i.text.replace("offen", "offen").replace(f"v{vLIN},", f"v{vL0},").replace("v24,", f"v{vL0},").replace("v25,", f"v{vL0},").replace("v26,", f"v{vL0},").replace("v27,", f"v{vL0},"))
                if not drop:
                    keep.append(i)
            self.a.ins = keep
        self.a.finalize()
        body = self.a.text() + "\n" + "\n".join(t if t.endswith(":") else "    " + t for t in self.tail) + "\nL_code_end:\n    s_endpgm\n"
        head = f"""; Fused gated mix: sliding-window attention branch + GELU FFN branch, one persistent launch.
; @launch grid=(256,1,1) block=(256,1,1) lds={LDS_SIZE}
.amdgcn_target "amdgcn-amd-amdhsa--gfx950"
.text
.globl {NAME}_kernel
.p2align 8
.type {NAME}_kernel,@function
{NAME}_kernel:
"""
        foot = f""".section .rodata,"a"
.p2align 6
.amdhsa_kernel {NAME}_kernel
  .amdhsa_next_free_vgpr 512
  .amdhsa_next_free_sgpr 102
  .amdhsa_accum_offset 256
  .amdhsa_group_segment_fixed_size 0
  .amdhsa_kernarg_size 96
  .amdhsa_user_sgpr_count 2
  .amdhsa_user_sgpr_kernarg_segment_ptr 1
  .amdhsa_system_sgpr_workgroup_id_x 1
  .amdhsa_float_denorm_mode_32 3
.end_amdhsa_kernel
"""
        return head + body + foot


if __name__ == "__main__":
    g = Gen()
    txt = g.build()
    out = sys.argv[1] if len(sys.argv) > 1 else f"cdna_kernels/{NAME}.s"
    open(out, "w").write(txt)
    kinds = {}
    for i in g.a.ins:
        kinds[i.kind] = kinds.get(i.kind, 0) + 1
    print(out, g.a.stats, kinds)
    if OPT["log"]:
        print("\n".join(g.a.log))
        print("model stalls", g.a.stall, "pipe busy", g.a.busy)
```

```python
import math, struct, sys
from collections import deque
sys.path.insert(0, "tools")
from asmlib import Asm, Ins, v, a_, s

NAME = "gated_mix__sliding_block__dense_activation_gelu__prompt"
OPT = dict(stamps=0, dbg=0, npairs=2, probe=0, poll1=20, poll2=3, chk2=6, poll3=7, norot=0, log=0,
           miss=480, pub1=6, svc=64, st=160, lat=480, win=8, strip=0, rot1=3, rot2=2, cpf=1, nt=0, split=1, wpf=1, wsoff=0, rt=0, ldsq=24, pfa0=4, pfa1=14, pfb0=12, pfb1=28, miss2=480, chk0=1, ipf=0, pa0=7, pb0=6, stlat=800, lat0=2400, bstart=0, null=0, gev=10)
for arg in sys.argv[2:]:
    k, val = arg.split("=")
    assert k in OPT, k
    OPT[k] = int(val)


def fbits(x):
    return struct.unpack("<I", struct.pack("<f", x))[0]


QKV_BASE, H_BASE, O_BASE, G_BASE = 0, 0x600000, 0xD00000, 0xF00000
F_BASE, E_OFF, ST_BASE, WS_SIZE = 0xF10000, 0xF80000, 0xFA0000, 0x1000000
F1, F2, F3, F0 = F_BASE, F_BASE + 1024 * 128, F_BASE + 2048 * 128, F_BASE + 3072 * 128
OOB = 0x40000000
TAG_STEP = 0x6B43A9B7
R_A, R_Q, R_B, RING = 0, 57344, 106496, 57344
KV = R_B
XST = 106496
TB1, DUMMY, TB2, RED = 163328, 159744, 0, 8192
LDS_SIZE = 163840
S_CODE, S_X, S_WO, S_W1, S_W2, S_GW, S_WS, S_WQ, S_B1, S_B2, S_OUT = 4, 8, 12, 16, 20, 24, 28, 32, 36, 40, 44
sMX = 3
sW, sC, sLIGHT, sUA, sUB, sJ, sRB0, sCT, sLOC, sRB, sQB, sFIRST = range(48, 60)
sT0, sT1, sT2, sT3 = 60, 61, 62, 63
sHI, sM, sG = 64, 66, 68
sCA, sCB, sBT = 75, 76, 77
sMQ, sMA, sMAS, sMB, sRING = 78, 79, 80, 81, 82
sBOFF, sBEND, sAOFF, sAEND, sKV0 = 83, 84, 85, 86, 87
sM3, sF2O, sSPIN = 88, 90, 91
sQS, sHA, sHB, sF1, sGS, sF0P = 0, 1, 4, 5, 6, 7
sKOFF, sMKV, sQOFF, sOS, sF3P, sF0R, sK2 = 36, 37, 38, 39, 24, 25, 26
sGQ, sGD, sNQ, sOUT = 92, 93, 94, 95
sPF1, sPF2, sSLA, sSLB = 96, 97, 98, 99
sP0 = 100
vL, vLIN, vT, vL0, vK1, vST = 0, 1, 2, 3, 4, 5
vTRQ, vTRF0, vTRF1 = 6, 7, 8
vW1A0, vW1A1, vPV = 9, 10, 11
vBD = 12
vBT0, vBT1 = 16, 17
vF1A, vF23A = 18, 19
vWQ = 20
vPOLL, vGA, vGATE = 20, 21, 22
vTBL = 23
vTMP = 24
vXD, vXR = 32, 36
vWR = 40
vACC = 64
vX = 144
vQ, vS, vCD, vM0, vM8, vO, vP, vMX = 96, 144, 176, 192, 208, 224, 240, 248
vKR, vVR, vKA, vVA = 40, 136, 6, 11
vAB, vBI, vA1H, vG = 144, 208, 8, 9

C_GELU = -2.0 * math.sqrt(2.0 / math.pi) * math.log2(math.e)
K1, K2 = fbits(C_GELU), fbits(C_GELU * 0.044715)
QSCALE = fbits(math.log2(math.e) / math.sqrt(28.0))
NINF = 0xFF800000
MFMA = "v_mfma_f32_32x32x16_bf16"


def NT(bit):
    return " nt" if OPT["nt"] & bit else ""


class Item:
    def __init__(self, text, sink=None, pre=(), post=(), m0=None, after=None, lat=None, pre0=()):
        self.pre0 = pre0
        self.text = [text] if isinstance(text, str) else text
        self.sink, self.pre, self.post, self.m0, self.after, self.lat = sink, pre, post, m0, after, lat
        self.vm = self.text[0].startswith("buffer")
        self.done = False
        self.due = 0


class Gen:
    def __init__(self):
        self.a = Asm()
        self.a.verbose = OPT['log'] > 1
        self.a.p_svc, self.a.p_st, self.a.p_lat, self.a.p_win = OPT['svc'], OPT['st'], OPT['lat'], OPT['win']
        self.a.p_stlat = OPT['stlat']
        self.a.wq = s(S_WQ, 4)
        self.q = deque()
        self.P, self.C, self.B, self.D = deque(), deque(), deque(), deque()
        self.tail = []
        self.nst = self.nlab = self.nmark = 0
        self.marks = set()
        self.m0 = None
        self.hooks = {}
        self.bfirst = False

    def e(self, t):
        return self.a.e(t)

    def emit_item(self, st):
        it = st.popleft()
        c0 = len(self.a.ins)
        if it.after:
            toks = it.after()
            assert toks is not None, "forced item whose producers are not emitted: " + it.text[0]
            self.a.need(*toks)
        for t in it.pre0:
            self.e(t)
        if it.m0 and it.m0 != self.m0:
            reg, imm = it.m0[:2]
            self.e(f"s_mov_b32 m0, {imm}" if reg is None else f"s_add_u32 m0, s{reg}, {imm}" if imm else f"s_mov_b32 m0, s{reg}")
            self.m0 = it.m0
        for t in it.pre:
            self.e(t)
        for t in it.text:
            self.a.next_lat = it.lat
            k = self.e(t)
            if it.sink is not None:
                it.sink.append(k)
        for t in it.post:
            self.e(t)
        it.done = True
        return 4 * (len(self.a.ins) - c0) + (4 if it.vm else 0)

    def vm_streams(self):
        if self.bfirst and self.B and self.C and self.B[0].due < self.C[0].due:
            return (self.P, self.B, self.C)
        return (self.P, self.C, self.B)

    def ready(self, it):
        if it.after:
            toks = it.after()
            return toks is not None and self.a.est(toks) <= self.a.clk
        return True

    def side(self, both=True):
        a = self.a
        cost = 0
        if a.vm_free():
            for st in self.vm_streams():
                if st and self.ready(st[0]):
                    cost = self.emit_item(st)
                    break
        if (both or not cost) and self.D and a.lds_free - a.clk <= OPT["ldsq"] and self.ready(self.D[0]):
            cost += self.emit_item(self.D)
        return cost

    def force(self, st, it=None):
        while st and (it is None or not it.done):
            self.emit_item(st)

    def m(self, t):
        k = self.e(t)
        if not t.startswith(("s_cmp", "s_cselect", "v_cmp")):
            self.side(False)
        return k

    def push(self, fn, cost=4):
        self.q.append((fn, cost))

    def pe(self, t):
        cost = 8 if Ins(t).kind == "trans" else 4
        if t.startswith("s_cselect"):
            fn, c = self.q.pop()
            assert getattr(fn, "scc", False), "s_cselect must follow its s_cmp directly: " + t
            g = lambda fn=fn, t=t: (fn(), self.e(t))
            g.scc = True
            self.q.append((g, c + cost))
            return
        f = lambda t=t: self.e(t)
        f.scc = t.startswith("s_cmp")
        self.q.append((f, cost))

    def gap(self, budget):
        budget -= self.side(budget >= 24)
        while self.q and budget >= min(self.q[0][1], 8):
            fn, c = self.q.popleft()
            fn()
            budget -= c

    def cluster(self, nd=2):
        self.side(True)
        for _ in range(nd - 1):
            if self.D and self.ready(self.D[0]):
                self.emit_item(self.D)

    def drain(self, name=None, every=1):
        n = 0
        while (self.q if name is None else name not in self.marks):
            self.q.popleft()[0]()
            n += 1
            if n % every == 0:
                self.cluster()

    def mark(self, name):
        self.push(lambda: self.marks.add(name), 0)

    def hook(self, name):
        fn = self.hooks.pop(name, None)
        if fn:
            fn()

    def stamp(self, name="", group=1):
        if group == 1:
            self.a.log.append(f"{self.a.clk:6d} {name}  (pipe busy {self.a.busy} idle {self.a.idle} ops {self.a.nvm}; left C {len(self.C)} B {len(self.B)} D {len(self.D)})")
        if (OPT["stamps"] == group or (OPT["stamps"] and (self.nst == 0 or name == "end" or (name == "chunk 0" and OPT["stamps"] == 9)))) and self.nst < 16:
            clk = self.a.clk
            self.e(f"{'s_memrealtime' if OPT['rt'] else 's_memtime'} {s(sM3,2)}")
            self.e("s_waitcnt lgkmcnt(0)")
            self.e(f"v_writelane_b32 v{vST}, s{sM3}, {self.nst}")
            self.a.clk = clk
            self.nst += 1
        if group == 1:
            self.nmark += 1
            if OPT["probe"] == self.nmark:
                self.e(f"s_memtime {s(sM3,2)}")
                self.e("s_waitcnt lgkmcnt(0)")
                self.e(f"s_mov_b32 s{sP0+1}, s{sM3}")

    def poll_item(self, addr, soff):
        it = Item(f"buffer_load_dword {v(vPOLL)}, {v(addr)}, {s(S_WS,4)}, {soff} offen sc1", lat=OPT["miss"])
        self.P.append(it)
        return it

    def poll_check(self, addr, soff):
        self.force_p()
        self.await_([k for k, r in self.a.vm if f"v{vPOLL}" in r])
        self.nlab += 1
        n = self.nlab
        if OPT["stamps"]:
            self.e(f"s_mov_b32 s{sSPIN}, 0")
        self.e(f"v_cmp_ne_u32 vcc, {v(vT)}, {v(vPOLL)}")
        self.e(f"s_cbranch_vccnz L_slow{n}")
        self.a.label(f"L_back{n}")
        if OPT["stamps"]:
            self.npoll = getattr(self, "npoll", 0) + 1
            self.e(f"v_writelane_b32 v{vST}, s{sSPIN}, {15 + self.npoll}")
        self.tail += [f"L_slow{n}:", f"s_mov_b32 s{sSPIN}, 0", f"L_spin{n}:",
                      f"buffer_load_dword {v(vPOLL)}, {v(addr)}, {s(S_WS,4)}, {soff} offen sc1",
                      f"s_add_u32 s{sSPIN}, s{sSPIN}, 1",
                      "s_waitcnt vmcnt(0)",
                      f"v_cmp_ne_u32 vcc, {v(vT)}, {v(vPOLL)}",
                      f"s_cmp_gt_u32 s{sSPIN}, 0x20000",
                      f"s_cbranch_scc1 L_back{n}",
                      f"s_cbranch_vccnz L_spin{n}",
                      f"s_branch L_back{n}"]

    def pub_text(self, soff):
        return f"buffer_store_dword {v(vT)}, {v(vL0)}, {s(S_WS,4)}, s{soff} offen sc1"

    def publish(self, soff, toks, n, pre=()):
        it = Item(self.pub_text(soff), pre=pre, after=lambda: toks if len(toks) == n else None)
        self.P.append(it)
        return it

    def prologue(self):
        e, m = self.e, self.m
        if OPT["probe"] or OPT["stamps"]:
            e(f"s_memtime {s(sP0,2)}")
        if OPT["stamps"]:
            e("s_memrealtime s[88:89]")
        e("s_load_dwordx16 s[8:23], s[0:1], 0")
        e("s_load_dwordx8 s[24:31], s[0:1], 64")
        e("s_cmp_ge_u32 s2, 256")
        e("s_cbranch_scc1 L_end")
        e(f"s_getpc_b64 {s(S_CODE,2)}")
        self.a.label("L_pc")
        e(f"s_lshr_b32 s{sLOC}, s2, 3")
        e(f"v_lshrrev_b32 v1, 6, v0")
        e(f"v_and_b32 v{vL}, 63, v0")
        e(f"s_and_b32 s{sT0}, s{sLOC}, 7")
        e(f"v_readfirstlane_b32 s{sW}, v1")
        e(f"s_mov_b32 s{S_CODE+2}, L_code_end-L_pc")
        e(f"s_mov_b32 s{S_CODE+3}, 0x20000")
        e(f"v_and_b32 v24, 7, v{vL}")
        e(f"v_lshl_add_u32 v24, v1, 3, v24")
        e(f"v_lshlrev_b32 v24, 7, v24")
        e(f"s_lshl_b32 s{sT1}, s{sT0}, 12")
        if OPT["cpf"]:
            e(f"buffer_load_dword v250, v24, {s(S_CODE,4)}, 0 offen")
        e(f"buffer_load_dword v251, v24, {s(S_CODE,4)}, s{sT1} offen")
        e(f"s_lshr_b32 s{sT1}, s{sLOC}, 3")
        e(f"s_bfe_u32 s{sRB}, s2, 0x20001")
        e(f"s_lshl_b32 s{sRB}, s{sRB}, 2")
        e(f"s_add_u32 s{sRB}, s{sRB}, s{sT1}")
        e(f"s_and_b32 s{sC}, s2, 1")
        e(f"s_lshl_b32 s{sC}, s{sC}, 3")
        e(f"s_add_u32 s{sC}, s{sC}, s{sT0}")
        e(f"s_lshl_b32 s{sT1}, s{sT1}, 1")
        e(f"s_add_u32 s{sT0}, s{sT0}, s{sT1}")
        e(f"s_sub_u32 s{sT1}, s{sT0}, 7")
        e(f"s_cmp_ge_u32 s{sT0}, 7")
        e(f"s_cselect_b32 s{sG}, s{sT1}, s{sT0}")
        if OPT["rot1"] == 3:
            e(f"s_bfe_u32 s{sT0}, s2, 0x20001")
            e(f"s_add_u32 s{sT0}, s{sT0}, s{sG}")
            e(f"s_sub_u32 s{sT1}, s{sT0}, 7")
            e(f"s_cmp_ge_u32 s{sT0}, 7")
            e(f"s_cselect_b32 s{sG}, s{sT1}, s{sT0}")
        if OPT["rot1"] == 0:
            e(f"s_mov_b32 s{sG}, 0")
        if OPT["rot1"] == 2:
            e(f"s_and_b32 s{sT0}, s2, 7")
            e(f"s_cmp_eq_u32 s{sT0}, 7")
            e(f"s_cselect_b32 s{sG}, 0, s{sT0}")
        e(f"s_lshl_b32 s{sRB}, s{sRB}, 2")
        e(f"s_add_u32 s{sRB}, s{sRB}, s{sW}")
        e(f"s_mov_b32 s{S_WQ+2}, {448*2688}")
        e(f"s_mov_b32 s{S_WQ+3}, 0x20000")
        e(f"v_lshrrev_b32 v24, 3, v{vL}")
        e(f"s_lshl_b32 s{sT0}, s{sRB}, 5")
        e(f"v_add_u32 v24, s{sT0}, v24")
        e(f"v_mul_u32_u24 v24, 896, v24")
        e(f"v_lshrrev_b32 v26, 4, v{vL}")
        e(f"v_and_b32 v27, 7, v{vL}")
        e(f"v_xor_b32 v26, v26, v27")
        e(f"v_lshl_add_u32 v{vXD}, v26, 4, v24")
        e(f"v_xor_b32 v{vXD+1}, 64, v{vXD}")
        e(f"v_add_u32 v{vXD+2}, {2*(7168-1024)}, v{vXD}")
        e(f"v_add_u32 v{vXD+3}, {3*(7168-1024)}, v{vXD+1}")
        e(f"v_add_u32 v{vXD+1}, {7168-1024}, v{vXD+1}")
        e(f"s_mul_i32 s{sMX}, s{sW}, 12288")
        e(f"s_add_u32 s{sRING}, s{sMX}, {RED}")
        e(f"s_add_u32 s{sMX}, s{sMX}, {XST}")
        e(f"s_mul_i32 s{sT0}, s{sC}, 168")
        e(f"s_and_b32 s{sT0}, s{sT0}, 0xfffffff0")
        e(f"s_mul_i32 s{sT1}, s{sW}, {16*2688}")
        e(f"s_add_u32 s{sT0}, s{sT0}, s{sT1}")
        e(f"s_movk_i32 s{sT1}, 2688")
        for i in range(3):
            q = vL
            if i:
                q = 24
                e(f"v_add_u32 v24, {64*i}, v{vL}")
            e(f"v_mul_u32_u24 v26, 171, v{q}")
            e(f"v_lshrrev_b32 v26, 11, v26")
            e(f"v_mad_i32_i24 v24, v26, -12, v{q}")
            e(f"v_min_u32 v24, 10, v24")
            e(f"v_lshl_add_u32 v24, v24, 4, s{sT0}")
            e(f"v_mad_u32_u24 v{vWQ+i}, v26, s{sT1}, v24")
            if i < 2:
                e(f"s_sub_u32 s{sT0}, s{sT0}, 1024")
        e(f"s_mul_i32 s{sMQ}, s{sW}, {16*192}")
        e(f"s_add_u32 s{sMQ}, s{sMQ}, {R_Q}")
        e("s_waitcnt lgkmcnt(0)")
        e(f"s_mov_b64 {s(S_WQ,2)}, s[10:11]")
        e(f"s_mov_b32 s{S_X+2}, {2048*896}")
        e(f"s_mov_b32 s{S_X+3}, 0x20000")
        self.a.clk = self.a.pipe_free = 0
        self.a.allv = []
        self.a.done = {k: 0 for k in self.a.done}
        if OPT["stamps"]:
            e(f"v_writelane_b32 v{vST}, s88, 29")
        self.stamp("kernarg")
        self.ctok, self.wtok, self.xrd, self.ftok = {}, {}, {}, {}
        self.add_chunk(0)
        self.force(self.C)
        for i in range(1, 7):
            e(f"s_add_u32 s{sT0}, s{sG+i-1}, 1")
            e(f"s_cmp_eq_u32 s{sT0}, 7")
            e(f"s_cselect_b32 s{sG+i}, 0, s{sT0}")
        self.add_chunk(1)
        for srd, src in ((S_B1, 18), (S_B2, 22), (S_OUT, 26), (S_WS, 30)):
            m(f"s_mov_b64 {s(srd,2)}, {s(src,2)}")
        for srd, size in ((S_WS, WS_SIZE), (S_GW, 896), (S_B1, 3584), (S_W1, 448 * 3584), (S_B2, 896), (S_OUT, 2048 * 896)):
            m(f"s_mov_b32 s{srd+2}, {size}")
            m(f"s_mov_b32 s{srd+3}, 0x20000")
        m(f"s_lshr_b32 s{sLIGHT}, 0x1248, s{sC}")
        m(f"s_and_b32 s{sLIGHT}, s{sLIGHT}, 1")
        m(f"s_bfm_b32 s{sT0}, s{sC}, 0")
        m(f"s_and_b32 s{sT0}, s{sT0}, 0x1248")
        m(f"s_bcnt1_i32_b32 s{sT0}, s{sT0}")
        m(f"s_lshl_b32 s{sUA}, s{sC}, 1")
        m(f"s_sub_u32 s{sUA}, s{sUA}, s{sT0}")
        m(f"s_add_u32 s{sUB}, s{sUA}, 1")
        m(f"s_sub_u32 s{sUB}, s{sUB}, s{sLIGHT}")
        m(f"s_lshl_b32 s{sT0}, s{sW}, 6")
        m(f"v_add_u32 v244, s{sT0}, v{vL}")
        m(f"s_lshl_b32 s{sT1}, s{sG}, 6")
        for h in range(2):
            m(f"v_add_u32 v27, s{sT1}, v244")
            if h:
                m(f"v_add_u32 v27, 256, v27")
            m(f"v_subrev_u32 v28, 448, v27")
            m(f"v_min_u32 v27, v27, v28")
            m(f"v_lshlrev_b32 v{52+h}, 1, v27")
        m(f"s_lshl_b32 s{sT0}, s{sUA}, 7")
        m(f"s_cmp_eq_u32 s{sLIGHT}, 1")
        m(f"s_cselect_b32 s{sT0}, {OOB}, s{sT0}")
        m(f"s_lshl_b32 s{sT1}, s{sUB}, 7")
        m(f"s_sub_u32 s{sT1}, s{sT1}, 128")
        m(f"s_mov_b32 s{sHI}, 0")
        m(f"s_mov_b32 s{sHI+1}, -1")
        m(f"v_mov_b32 v27, s{sT0}")
        m(f"v_mov_b32 v28, s{sT1}")
        m(f"v_cndmask_b32 v27, v27, v28, {s(sHI,2)}")
        m(f"v_lshl_add_u32 v54, v{vL}, 2, v27")
        m(f"v_mov_b32 v55, {E_OFF}")
        m(f"v_lshlrev_b32 v{vLIN}, 4, v{vL}")
        m(f"v_bfe_u32 v24, v{vL}, 2, 2")
        m(f"v_lshrrev_b32 v27, 5, v{vL}")
        m(f"v_bfe_u32 v28, v{vL}, 4, 1")
        m(f"v_and_b32 v29, 3, v{vL}")
        m(f"v_lshlrev_b32 v29, 3, v29")
        m(f"v_lshl_add_u32 v29, v28, 5, v29")
        m(f"v_lshl_add_u32 v40, v27, 3, v24")
        m(f"v_mul_u32_u24 v41, 192, v40")
        m(f"s_and_b32 s{sT0}, s{sC}, 1")
        m(f"s_lshl_b32 s{sT0}, s{sT0}, 3")
        m(f"s_add_u32 s{sT0}, s{sT0}, {R_Q}")
        m(f"v_add3_u32 v{vTRQ}, v41, v29, s{sT0}")
        m(f"v_lshrrev_b32 v41, 1, v24")
        m(f"v_lshl_add_u32 v29, v41, 6, v29")
        m(f"v_lshl_add_u32 v{vTRF0}, v40, 7, v29")
        m(f"v_xor_b32 v{vTRF1}, 64, v{vTRF0}")
        m(f"v_lshl_add_u32 v40, v27, 2, v24")
        m(f"v_lshl_add_u32 v40, v40, 7, v29")
        m(f"s_lshl_b32 s{sT0}, s{sW}, 3")
        m(f"s_lshr_b32 s{sT0}, 0x60204000, s{sT0}")
        m(f"s_and_b32 s{sOUT}, s{sT0}, 0xff")
        m(f"v_xor_b32 v40, s{sOUT}, v40")
        m(f"v_add_u32 v{vBT0}, s{sRING}, v40")
        m(f"v_xor_b32 v{vBT1}, 64, v{vBT0}")
        m(f"v_and_b32 v40, 31, v{vL}")
        m(f"v_bfe_u32 v41, v{vL}, 1, 3")
        m(f"v_xor_b32 v41, v41, v27")
        m(f"v_lshlrev_b32 v41, 4, v41")
        m(f"v_lshl_add_u32 v40, v40, 7, v41")
        m(f"v_add_u32 v{vXR}, s{sMX}, v40")
        for k in range(1, 4):
            m(f"v_xor_b32 v{vXR+k}, {32*k}, v{vXR}")
        m(f"v_lshlrev_b32 v{vTBL}, 3, v27")
        m(f"v_add_u32 v{vTBL}, {TB1 - TB1 % 2048}, v{vTBL}")
        m(f"v_and_b32 v40, 3, v{vL}")
        m(f"v_lshl_add_u32 v40, v27, 2, v40")
        m(f"v_bfe_u32 v41, v{vL}, 2, 3")
        m(f"v_lshl_add_u32 v40, v41, 3, v40")
        m(f"v_lshlrev_b32 v{vPV}, 4, v40")
        m(f"v_cmp_eq_u32 vcc, 0, v{vL}")
        m(f"v_mov_b32 v40, {OOB}")
        m(f"v_mov_b32 v{vK1}, {K1}")
        m(f"v_cndmask_b32 v{vL0}, v40, 0, vcc")
        m(f"s_lshl_b32 s{sT0}, s2, 2")
        m(f"s_add_u32 s{sT0}, s{sT0}, s{sW}")
        m(f"s_mul_i32 s{sT0}, s{sT0}, 49")
        m(f"s_lshr_b32 s{sPF1}, s{sT0}, 2")
        m(f"s_lshl_b32 s{sPF1}, s{sPF1}, 7")
        m(f"s_lshr_b32 s{sPF2}, s{sT0}, 4")
        m(f"s_lshl_b32 s{sPF2}, s{sPF2}, 7")
        m(f"s_mul_i32 s{sSLA}, s2, {OPT['pfa1'] - OPT['pfa0']}")
        m(f"s_lshr_b32 s{sSLA}, s{sSLA}, 8")
        m(f"s_mul_i32 s{sSLB}, s2, {OPT['pfb1'] - OPT['pfb0']}")
        m(f"s_lshr_b32 s{sSLB}, s{sSLB}, 8")
        for srd, size in ((S_W2, 1792 * 896), (S_WO, 448 * 896)):
            m(f"s_mov_b32 s{srd+2}, {size}")
            m(f"s_mov_b32 s{srd+3}, 0x20000")
        self.setup_later()
        self.store_addr()
        self.drain()
        m(f"v_lshrrev_b32 v41, 5, v{vL}")
        m(f"v_bfe_u32 v42, v{vL}, 4, 1")
        m(f"v_xor_b32 v41, v41, v42")
        m(f"v_bfe_u32 v40, v{vL}, 2, 2")
        m(f"v_lshl_add_u32 v40, v41, 3, v40")
        m(f"v_and_b32 v41, 1, v{vL}")
        m(f"v_lshl_add_u32 v40, v41, 2, v40")
        m(f"v_lshlrev_b32 v40, 4, v40")
        m(f"v_lshl_add_u32 v40, v42, 10, v40")
        m(f"v_bfe_u32 v41, v{vL}, 1, 1")
        m(f"v_lshl_add_u32 v40, v41, 3, v40")
        m(f"s_lshl_b32 s{sT1}, s{sW}, 11")
        m(f"s_add_u32 s{sT1}, s{sT1}, {KV+24576}")
        m(f"v_add_u32 v{vVA}, s{sT1}, v40")
        self.force(self.C)
        self.a.next_lat = OPT["miss"]
        e(f"buffer_load_dword v{vT}, v55, {s(S_WS,4)}, 0 offen sc1")
        for h in range(2):
            e(f"buffer_load_ushort v{245+h}, v{52+h}, {s(S_GW,4)}, 0 offen")
        e(f"s_mov_b32 m0, {TB1}")
        self.m0 = None
        self.tB1 = e(f"buffer_load_dword v54, {s(S_B1,4)}, 0 offen lds")
        m(f"s_lshl_b32 s{sT1}, s{sQB}, 4")
        m(f"s_add_u32 s{sT1}, s{sT1}, s{sJ}")
        m(f"s_lshl_b32 s{sF3P}, s{sT1}, 7")
        m(f"s_add_u32 s{sF3P}, s{sF3P}, {F3}")
        m(f"s_lshl_b32 s{sOS}, s{sT1}, 11")
        m(f"s_add_u32 s{sOS}, s{sOS}, {O_BASE}")
        m(f"s_lshl_b32 s{sT0}, s{sJ}, 6")
        m(f"s_add_u32 s{sKOFF}, s{sT0}, s{sKV0}")
        m(f"s_lshl_b32 s{sKOFF}, s{sKOFF}, 11")
        m(f"s_add_u32 s{sQOFF}, s{sT0}, s{sQB}")
        m(f"s_lshl_b32 s{sQOFF}, s{sQOFF}, 11")
        m(f"s_mul_i32 s{sMKV}, s{sW}, 6144")
        m(f"s_lshl_b32 s{sT0}, s{sQB}, 7")
        m(f"s_add_u32 s{sF0R}, s{sT0}, {F0}")
        m(f"s_add_u32 s{sGQ}, s{sT0}, {G_BASE}")
        m(f"s_mov_b32 s{sK2}, {K2}")
        m(f"s_mov_b32 s{sK2+1}, {K2}")

    def setup_later(self):
        m = self.m
        m(f"s_and_b32 s{sT0}, s2, 7")
        m(f"s_and_b32 s{sT1}, s{sLOC}, 1")
        m(f"s_lshl_b32 s{sJ}, s{sT0}, 1")
        m(f"s_add_u32 s{sJ}, s{sJ}, s{sT1}")
        m(f"s_mul_i32 s{sT1}, s{sLOC}, 37")
        m(f"s_lshr_b32 s{sT1}, s{sT1}, 8")
        m(f"s_mul_i32 s{sCT}, s{sT1}, 7")
        m(f"s_sub_u32 s{sCT}, s{sLOC}, s{sCT}")
        m(f"s_cmp_lt_u32 s{sLOC}, 28")
        m(f"s_cselect_b32 s{sT1}, s{sT1}, s{sCT}")
        m(f"s_lshl_b32 s{sRB0}, s{sT0}, 2")
        m(f"s_add_u32 s{sRB0}, s{sRB0}, s{sT1}")
        m(f"s_lshl_b32 s{sRB0}, s{sRB0}, 1")
        m(f"s_mul_i32 s{sBOFF}, s{sW}, {448*896}")
        m(f"s_mul_i32 s{sAOFF}, s{sRB0}, 112")
        m(f"s_mul_i32 s{sT0}, s{sW}, 28")
        m(f"s_add_u32 s{sAOFF}, s{sAOFF}, s{sT0}")
        m(f"s_lshl_b32 s{sAOFF}, s{sAOFF}, 10")
        m(f"s_add_u32 s{sAOFF}, s{sAOFF}, {H_BASE}")
        m(f"s_lshl_b32 s{sAEND}, s{sRB0}, 2")
        m(f"s_add_u32 s{sAEND}, s{sAEND}, s{sW}")
        m(f"s_lshl_b32 s{sAEND}, s{sAEND}, 13")
        m(f"s_add_u32 s{sAEND}, s{sAEND}, {O_BASE}")
        m(f"s_mul_i32 s{sBEND}, s{sW}, {112*896}")
        m(f"s_lshl_b32 s{sGD}, s{sRB0}, 7")
        m(f"s_add_u32 s{sGD}, s{sGD}, {G_BASE}")
        m(f"s_lshl_b32 s{sT0}, s{sCT}, 12")
        m(f"s_add_u32 s{sT0}, s{sT0}, {32*896*OPT['pb0']}")
        m(f"s_cmp_lt_u32 s{sLOC}, 28")
        m(f"s_cselect_b32 s{sT0}, 0, s{sT0}")
        m(f"s_cselect_b32 s{sT1}, 0, {2048*OPT['pa0'] if OPT['ipf'] else OOB}")
        m(f"s_cselect_b32 s{sBT}, {32*896}, 0x4000" if False else f"s_cselect_b32 s{sBT}, 7, 4")
        m(f"s_cselect_b64 {s(sM3,2)}, -1, 0")
        m(f"s_lshl_b32 s{sBT}, s{sBT}, 12")
        m(f"s_add_u32 s{sBOFF}, s{sBOFF}, s{sT0}")
        m(f"s_add_u32 s{sAOFF}, s{sAOFF}, s{sT1}")
        m(f"s_lshl_b32 s{sF2O}, s{sRB0}, 11")
        m(f"s_add_u32 s{sF2O}, s{sF2O}, {F2}")
        m(f"v_lshrrev_b32 v24, 3, v{vL}")
        m(f"v_lshlrev_b32 v28, 2, v28")
        m(f"v_and_b32 v29, 7, v{vL}")
        m(f"v_xor_b32 v28, v28, v29")
        m(f"v_lshlrev_b32 v28, 4, v28")
        m(f"v_mul_u32_u24 v29, 3584, v24")
        m(f"s_mul_i32 s{sT0}, s{sW}, {16*3584}")
        m(f"v_add3_u32 v{vW1A0}, v29, v28, s{sT0}")
        m(f"v_add_u32 v{vW1A1}, {8*3584-1024}, v{vW1A0}")
        m(f"v_mul_u32_u24 v29, 896, v24")
        m(f"s_lshl_b32 s{sT0}, s{sCT}, 7")
        m(f"v_add3_u32 v{vBD}, v29, v28, s{sT0}")
        for k in range(1, 4):
            m(f"v_add_u32 v{vBD+k}, {k*(7168-1024)}, v{vBD}")
        for k in range(4):
            m(f"v_cndmask_b32 v{vBD+k}, v{vLIN}, v{vBD+k}, {s(sM3,2)}")
        m(f"s_lshl_b32 s{sMB}, s{sW}, 11")
        m(f"s_sub_u32 s{sMA}, s{sMB}, {64*128 - R_A}")
        m(f"s_add_u32 s{sMB}, s{sMB}, {R_B}")
        m(f"s_mul_i32 s{sT0}, s{sC}, 3")
        m(f"s_sub_u32 s{sNQ}, 16, s{sT0}")
        m(f"s_lshl_b32 s{sT0}, s{sT0}, 6")
        m(f"s_add_u32 s{sT0}, s{sT0}, s{sRB}")
        m(f"s_lshl_b32 s{sQS}, s{sT0}, 11")
        m(f"s_mul_i32 s{sT1}, s{sRB}, 28")
        m(f"s_add_u32 s{sT0}, s{sT1}, s{sUB}")
        m(f"s_lshl_b32 s{sT0}, s{sT0}, 12")
        m(f"s_add_u32 s{sHB}, s{sT0}, {H_BASE}")
        m(f"s_sub_u32 s{sHA}, s{sHB}, 4096")
        m(f"s_lshl_b32 s{sUA}, s{sUA}, 7")
        m(f"s_lshl_b32 s{sUB}, s{sUB}, 7")
        m(f"s_cmp_eq_u32 s{sLIGHT}, 1")
        m(f"s_cselect_b32 s{sHA}, {OOB}, s{sHA}")
        m(f"s_cselect_b32 s{sUA}, {OOB}, s{sUA}")
        m(f"s_cselect_b32 s{sMA}, {DUMMY}, s{sMA}")
        m(f"s_cselect_b32 s{sMAS}, 0, {64*128}")
        m(f"s_lshl_b32 s{sT0}, s{sRB}, 4")
        m(f"s_add_u32 s{sT0}, s{sT0}, s{sC}")
        m(f"s_lshl_b32 s{sT0}, s{sT0}, 7")
        m(f"s_add_u32 s{sF1}, s{sT0}, {F1}")
        m(f"s_lshl_b32 s{sT0}, s{sRB}, 7")
        m(f"s_add_u32 s{sGS}, s{sT0}, {G_BASE}")
        m(f"s_add_u32 s{sF0P}, s{sT0}, {F0}")
        m(f"s_cmp_eq_u32 s{sC}, 3")
        m(f"s_cselect_b32 s{sGS}, s{sGS}, {OOB}")
        m(f"s_cselect_b32 s{sF0P}, s{sF0P}, {OOB}")
        m(f"s_lshr_b32 s{sT0}, s{sLOC}, 1")
        m(f"s_lshl_b32 s{sT0}, s{sT0}, 2")
        m(f"s_add_u32 s{sQB}, s{sT0}, s{sW}")
        m(f"s_sub_u32 s{sFIRST}, 8, s{sQB}")
        m(f"s_max_i32 s{sFIRST}, s{sFIRST}, 0")
        m(f"s_mul_i32 s{sT1}, s{sW}, 3")
        m(f"s_add_u32 s{sT0}, s{sT0}, s{sT1}")
        m(f"s_sub_u32 s{sKV0}, s{sT0}, 8")
        m(f"s_mul_i32 s{sT2}, s{sJ}, 43")
        m(f"s_lshr_b32 s{sT2}, s{sT2}, 7")
        m(f"s_lshl_b32 s{sT1}, s{sQB}, 4")
        m(f"s_add_u32 s{sT2}, s{sT1}, s{sT2}")
        m(f"v_mov_b32 v{vF1A}, s{sT2}")
        for part, add in ((0, 16), (1, 32)):
            m(f"s_add_u32 s{sT2}, s{sJ}, {add}")
            m(f"s_mul_i32 s{sT2}, s{sT2}, 43")
            m(f"s_lshr_b32 s{sT2}, s{sT2}, 7")
            m(f"v_subrev_u32 v40, {3*part}, v{vL}")
            m(f"v_add_u32 v41, s{sKV0}, v40")
            m(f"v_cmp_gt_u32 {s(sM,2)}, 3, v40")
            m(f"v_cmp_le_i32 vcc, 0, v41")
            m(f"v_lshl_add_u32 v41, v41, 4, s{sT2}")
            m(f"s_and_b64 {s(sM,2)}, {s(sM,2)}, vcc")
            m(f"v_cndmask_b32 v{vF1A}, v{vF1A}, v41, {s(sM,2)}")
        m(f"v_lshlrev_b32 v{vF1A}, 7, v{vF1A}")
        m(f"v_add_u32 v{vF1A}, {F1}, v{vF1A}")
        m(f"v_bfe_u32 v40, v{vL}, 2, 1")
        m(f"v_and_b32 v41, 3, v{vL}")
        m(f"s_lshl_b32 s{sT0}, s{sW}, 2")
        m(f"v_add_u32 v41, s{sT0}, v41")
        m(f"v_cmp_gt_u32 vcc, 8, v{vL}")
        m(f"v_lshl_add_u32 v41, v40, 4, v41")
        m(f"v_and_b32 v40, 1, v{vL}")
        m(f"v_lshl_add_u32 v40, v40, 4, 3")
        m(f"v_cndmask_b32 v{vF23A}, v40, v41, vcc")
        m(f"v_lshlrev_b32 v{vF23A}, 7, v{vF23A}")
        m(f"s_mul_i32 s{sT0}, s{sRB0}, {32*896}")
        m(f"s_lshl_b32 s{sT1}, s{sCT}, 7")
        m(f"s_add_u32 s{sT0}, s{sT0}, s{sT1}")
        m(f"s_add_u32 s{sOUT}, s{sOUT}, s{sT0}")

    def add_chunk(self, i):
        toks = self.ctok[i] = []
        lx = lw = OPT["lat0"] if i < 1 else None
        xs, ws = [], []
        for k in range(4):
            xs.append(Item(f"buffer_load_dwordx4 v{vXD+k}, {s(S_X,4)}, s{sCA} offen" + (f" offset:{1024*k}" if k else "") + NT(1) + " lds", toks,
                           pre=[f"s_lshl_b32 s{sCA}, s{sG+i}, 7"] if k == 0 else (), m0=(sMX, (i % 3) * 4096), lat=lx,
                           after=(lambda: self.xrd[i - 3] if len(self.xrd.get(i - 3, ())) == 4 else None) if i >= 3 and k == 0 else None))
        for k in range(3):
            ws.append(Item(f"buffer_load_dwordx4 v{vWQ+k}, {s(S_WQ,4)}, s{sCB} offen" + (f" offset:{1024*k}" if k else "") + NT(2) + " lds", toks,
                           pre=[f"s_mul_i32 s{sCB}, s{sG+i}, {64*2688}"] if k == 0 else (), m0=(sMQ, (i % 4) * 64 * 192), lat=lw))
        self.C.extend(xs + ws if i == 0 else ws + xs)
        self.clast = getattr(self, "clast", {})
        self.clast[i] = self.C[-1]

    def add_w1(self, unit, i):
        toks = self.wtok[(unit, i)] = []
        pre = [f"s_mul_i32 s{sCB}, s{sG+i}, {64*3584}", f"s_add_u32 s{sCB}, s{sCB}, s{sUA+unit}"]
        pre0 = [f"s_add_u32 s{sMA}, s{sMA}, s{sMAS}"] if unit == 0 else []
        for k in range(2):
            self.C.append(Item(f"buffer_load_dwordx4 v{vW1A0+k}, {s(S_W1,4)}, s{sCB} offen" + (" offset:1024" if k else "") + NT(4) + " lds", toks,
                               pre=pre if k == 0 else (), pre0=pre0 if k == 0 else (), m0=(sMB, i * 8192) if unit else (sMA, 0, i),
                               lat=OPT["miss"] if i < 4 else None))
        self.wlast = getattr(self, "wlast", {})
        self.wlast[(unit, i)] = self.C[-1]

    def gate_write(self):
        pe = self.pe
        pe(f"s_cmp_eq_u32 s{sLIGHT}, 1")
        pe(f"s_cselect_b64 {s(sM,2)}, -1, 0")
        pe(f"v_bfe_u32 v247, v244, 1, 1")
        pe(f"v_lshlrev_b32 v248, 7, v244")
        pe(f"v_lshl_add_u32 v248, v247, 6, v248")
        pe(f"v_mov_b32 v249, {DUMMY+2048}")
        pe(f"v_cndmask_b32 v247, v249, v248, {s(sM,2)}")
        pe(f"v_cmp_gt_u32 vcc, 192, v244")
        pe(f"v_add_u32 v248, {256*128}, v248")
        pe(f"s_and_b64 {s(sM,2)}, {s(sM,2)}, vcc")
        pe(f"ds_write_b16 v247, v245")
        pe(f"v_cndmask_b32 v248, v249, v248, {s(sM,2)}")
        pe(f"ds_write_b16 v248, v246")

    def store_addr(self):
        pe = self.pe
        for n, lim in ((0, 11), (1, 10)):
            pe(f"s_cmp_ge_u32 s{sC}, {lim}")
            pe(f"s_cselect_b64 {s(sM,2)}, -1, 0")
            pe(f"s_cselect_b32 s{sT0}, 128, 0")
            pe(f"v_cndmask_b32 v{24+2*n}, v{vLIN}, v{vPV}, {s(sM,2)}")
            pe(f"v_xor_b32 v{25+2*n}, s{sT0}, v{24+2*n}")

    def bias_init(self, acc, tbl, factor=None):
        for t in range(2):
            for mm in range(2):
                o = (tbl % 2048) // 8 + 8 * t + 4 * mm
                self.pe(f"ds_read2_b64 {v(acc+16*t+8+4*mm,4)}, v{vTBL} offset0:{o} offset1:{o+2}")
        for t in range(2):
            for k in range(8):
                src, dst = acc + 16 * t + 8 + k, acc + 16 * t + 2 * k
                self.pe(f"v_lshlrev_b32 v{dst}, 16, v{src}")
                self.pe(f"v_and_b32 v{dst+1}, 0xffff0000, v{src}")
        if factor:
            for k in range(16):
                self.pe(f"v_pk_mul_f32 {v(acc+2*k,2)}, {v(acc+2*k,2)}, {factor}")

    def rd_q(self, sidx, t):
        base = vWR + 12 * (sidx & 1) + 4 * t
        o = 56 * t + (sidx % 16) * 3072
        return [self.e(f"ds_read_b64_tr_b16 {v(base+2*h,2)}, v{vTRQ} offset:{o+768*h}") for h in range(2)]

    def rd_f(self, g, t):
        base = vWR + 8 * (g % 3) + 4 * t
        toks = self.ftok.setdefault(g, [])
        for h in range(2):
            toks.append(self.e(f"ds_read_b64_tr_b16 {v(base+2*h,2)}, v{vTRF0+t} offset:{(g%28)*2048+512*h}"))

    def rd_x(self, sidx):
        self.xrd.setdefault(sidx // 4, []).append(self.e(f"ds_read_b128 {v(vX+4*sidx,4)}, v{vXR+sidx%4} offset:{(sidx//4%3)*4096}"))

    def sync(self, st, last, toks, drain_lds=True):
        self.force(st, last)
        self.await_(toks)
        if drain_lds and self.a.lg:
            self.e("s_waitcnt lgkmcnt(0)")
        self.e("s_barrier")

    def await_(self, toks):
        while self.a.est(toks) > self.a.clk + 8 and self.side_wait(self.a.est(toks)):
            pass
        self.a.need(*toks)

    def force_p(self):
        while self.P:
            it = self.P[0]
            keep, self.P = self.P, deque()
            if it.after:
                self.await_(it.after())
            self.P = keep
            self.emit_item(self.P)

    def side_wait(self, until):
        a = self.a
        best = None
        for st in self.vm_streams() + (self.D,):
            if not st:
                continue
            it = st[0]
            t = a.allv[-1][0] if it.vm else a.clk
            if it.after:
                toks = it.after()
                if toks is None:
                    continue
                t = max(t, a.est(toks))
            t = max(t, a.clk)
            if t + 8 <= until and (best is None or t < best[0]):
                best = (t, st)
        if best:
            self.emit_item(best[1])
        return bool(best)

    def force_read(self, p):
        while not self.blast[p].done:
            it = self.D[0]
            if it.after:
                while it.after() is None:
                    if self.B[0].after:
                        self.a.need(*self.B[0].after())
                    self.emit_item(self.B)
                keep, self.D = self.D, deque()
                self.await_(it.after())
                self.D = keep
            self.emit_item(self.D)

    def prefetch_slot(self, sidx):
        if not OPT["wpf"]:
            return
        for reg, lo, hi, loads in ((sSLA, OPT["pfa0"], OPT["pfa1"], ((S_W1, 12, sPF1),)), (sSLB, OPT["pfb0"], OPT["pfb1"], ((S_W2, 12, sPF1), (S_WO, 3, sPF2)))):
            if lo <= sidx < hi:
                self.nlab += 1
                n = self.nlab
                self.e(f"s_cmp_eq_u32 s{reg}, {sidx - lo}")
                self.e(f"s_cbranch_scc1 L_pf{n}")
                self.a.label(f"L_pfb{n}")
                self.tail += [f"L_pf{n}:"]
                for srd, top, off in loads:
                    self.tail += [f"v_min_u32 v30, {top}, v{vL}", "v_lshlrev_b32 v30, 7, v30", f"buffer_load_dword a255, v30, {s(srd,4)}, s{off} offen"]
                self.tail += [f"s_branch L_pfb{n}"]

    def qkv(self):
        e = self.e
        qtok = {}
        self.sync(self.C, self.clast[1], self.ctok[0])
        self.stamp("chunk 0")
        self.add_chunk(2)
        self.rd_x(0)
        self.rd_x(1)
        for t in range(3):
            qtok[(0, t)] = self.rd_q(0, t)
        for sidx in range(28):
            i = sidx // 4
            if sidx % 2 == 0:
                self.stamp(group=3)
            if sidx == 8:
                self.gate_write()
            if sidx == 12:
                self.push(lambda: self.a.need(self.tB1), 0)
                self.bias_init(vACC + 48, TB1)
            if sidx == 8:
                self.pe(f"v_add_u32 v{vT}, {TAG_STEP}, v{vT}")
            self.prefetch_slot(sidx)
            for t in range(3):
                if t == 0:
                    self.a.need(*qtok[(sidx, 0)], *qtok[(sidx, 1)])
                acc = v(vACC + 16 * t, 16)
                e(f"{MFMA} {acc}, {v(vWR+12*(sidx&1)+4*t,4)}, {v(vX+4*sidx,4)}, {acc if sidx else 0}")
                if t == 0 and sidx % 4 == 3:
                    self.drain()
                    if sidx < 27:
                        self.sync(self.C, self.clast[i + 2] if i < 5 else self.wlast[(0, 2)], self.ctok[i + 1])
                        if i + 3 < 7:
                            self.add_chunk(i + 3)
                        if i + 3 == 6:
                            for k in range(7):
                                self.add_w1(0, k)
                    else:
                        self.sync(self.C, self.wlast[(0, 2)], self.wtok[(0, 2)])
                if sidx % 4 == 3 and sidx < 27 and t < 2:
                    self.rd_x(sidx + 1 + t)
                if sidx % 4 == 0 and t < 2:
                    self.rd_x(sidx + 2 + t)
                if sidx < 27:
                    qtok[(sidx + 1, t)] = self.rd_q(sidx + 1, t)
                elif t < 2:
                    self.rd_f(0, t)
                self.gap((12, 16, 12)[t] if sidx % 4 in (1, 2) else (4, 8, 12)[t])
        self.rd_f(1, 0)
        self.rd_f(1, 1)

    QPK = (vTMP + 8, vACC + 40, vACC + 32)

    def qkv_pack(self, t):
        pe = self.pe
        acc, dst = vACC + 16 * t, self.QPK[t]
        pe(f"s_cmp_gt_i32 s{sNQ}, {t-16}")
        pe(f"s_cselect_b32 s{sT0}, 0x3f803f80, s{sT3}")
        pe(f"s_cselect_b32 s{sT2}, s{sT3}, 0")
        pe(f"s_cmp_gt_i32 s{sNQ}, {t}")
        pe(f"s_cselect_b32 s{sT1}, {QSCALE}, 1.0")
        pe(f"s_cselect_b32 s{sT0}, 0, s{sT0}")
        pe(f"s_cselect_b32 s{sT2}, 0, s{sT2}")
        pe(f"v_mov_b32 v28, s{sT0}")
        pe(f"v_mov_b32 v29, s{sT2}")
        for k in range(16):
            pe(f"v_mul_f32 v{acc+k}, s{sT1}, v{acc+k}")
        def store(half):
            pre = [f"s_add_u32 s{sCA}, s{sQS}, {t*64*2048}"] if half == 0 else ()
            self.C.append(Item(f"buffer_store_dwordx4 {v(dst+4*half,4)}, v{24+2*(t>>1)+half}, {s(S_WS,4)}, s{sCA} offen offset:{1024*half} sc1",
                               self.tQKV, pre=pre))
            self.lastS = self.C[-1]
        for k in range(8):
            pe(f"v_cvt_pk_bf16_f32 v{dst+k}, v{acc+2*k}, v{acc+2*k+1}")
            if k == 3:
                self.push(lambda: store(0), 0)
        pe(f"v_cndmask_b32 v{dst+6}, v{dst+6}, v28, {s(sHI,2)}")
        pe(f"v_cndmask_b32 v{dst+7}, v{dst+7}, v29, {s(sHI,2)}")
        self.push(lambda: store(1), 0)

    def b_slot(self, p):
        return (RING - RED) + (p % 6) * 4096 if p % 6 < 3 else (p % 6 - 3) * 4096

    def b_dma(self, p):
        toks = self.btok[p] = []
        out = []
        off = sBOFF if p < 14 else sBEND
        pre = [] if p in (0, 14) else [f"s_add_u32 s{off}, s{off}, " + (f"s{sBT}" if p < 14 else f"{28*896}")]
        post = []
        for k in range(4):
            out.append(Item(f"buffer_load_dwordx4 v{vBD+k}, {s(S_W2 if p < 14 else S_WO,4)}, s{off} offen" + (f" offset:{1024*k}" if k else "") + NT(8) + " lds",
                            toks, pre=pre if k == 0 else (), post=post if k == 3 else (), m0=(sRING, self.b_slot(p)),
                            lat=OPT["miss"] if p < 4 or p >= 14 else None,
                            after=(lambda: self.btr[p - 6] if len(self.btr.get(p - 6, ())) == 8 else None) if k == 0 and p >= 6 else None))
            out[-1].due = min(p, 14 + (p - 14) // 2) - 5
        return out

    def b_read(self, p):
        toks = self.btr[p] = []
        out = []
        for ks in range(2):
            for t in range(2):
                out.append(Item([f"ds_read_b64_tr_b16 {a_(16*(p%16)+8*ks+4*t+2*h,2)}, v{vBT0+t} offset:{self.b_slot(p)+ks*2048+h*1024}" for h in range(2)],
                                toks, after=(lambda: self.btok[p] if len(self.btok[p]) == 4 else None) if ks + t == 0 else None))
        self.blast[p] = out[-1]
        return out

    def gelu_two(self, acc, soff, n, packed):
        pe = self.pe
        T = vTMP + 12
        U = [acc + 2 * n, acc + 2 * n + 2]
        R = [T, T + 2]
        if packed:
            for u, r in zip(U, R):
                pe(f"v_pk_mul_f32 {v(r,2)}, {v(u,2)}, {v(u,2)}")
                pe(f"v_pk_fma_f32 {v(r,2)}, {v(r,2)}, {s(sK2,2)}, {v(vK1,2)} op_sel_hi:[1,1,0]")
                pe(f"v_pk_mul_f32 {v(r,2)}, {v(r,2)}, {v(u,2)}")
            for k in range(4):
                pe(f"v_exp_f32 v{T+k}, v{T+k}")
            for r in R:
                pe(f"v_pk_add_f32 {v(r,2)}, {v(r,2)}, 1.0 op_sel_hi:[1,0]")
            for k in range(4):
                pe(f"v_rcp_f32 v{T+k}, v{T+k}")
            for u, r in zip(U, R):
                pe(f"v_pk_mul_f32 {v(r,2)}, {v(r,2)}, {v(u,2)}")
        else:
            u = U[0]
            for k in range(4):
                pe(f"v_mul_f32 v{T+k}, v{u+k}, v{u+k}")
                pe(f"v_fma_f32 v{T+k}, v{T+k}, s{sK2}, v{vK1}")
                pe(f"v_mul_f32 v{T+k}, v{T+k}, v{u+k}")
            for k in range(4):
                pe(f"v_exp_f32 v{T+k}, v{T+k}")
            for k in range(4):
                pe(f"v_add_f32 v{T+k}, 1.0, v{T+k}")
            for k in range(4):
                pe(f"v_rcp_f32 v{T+k}, v{T+k}")
            for k in range(4):
                pe(f"v_mul_f32 v{T+k}, v{T+k}, v{u+k}")
        for d in range(2):
            pe(f"v_cvt_pk_bf16_f32 v{acc+n+d}, v{T+2*d}, v{T+2*d+1}")
        if n % 4 == 2:
            fr = n // 4
            self.push(lambda: self.C.append(Item(
                f"buffer_store_dwordx4 {v(acc+4*fr,4)}, v{vLIN}, {s(S_WS,4)}, s{soff} offen offset:{fr*1024} sc1", self.tH)), 0)

    def ffn(self, unit):
        e = self.e
        acc0 = vACC + 48 if unit == 0 else vACC
        for sidx in range(28):
            g = 28 * unit + sidx
            if sidx % 4 == 0:
                self.stamp(group=2)
            self.hook(f"ffn{unit}_{sidx}")
            self.a.need(*self.ftok[g])
            for t in range(2):
                acc = v(acc0 + 16 * t, 16)
                e(f"{MFMA} {acc}, {v(vWR+8*(g%3)+4*t,4)}, {v(vX+4*sidx,4)}, {acc}")
                if t == 0 and g in (10, 34, 42):
                    k = {10: (0, 6), 34: (1, 3), 42: (1, 6)}[g]
                    self.sync(self.C, self.wlast[k], self.wtok[k], drain_lds=False)
                if t == 0 and g == 26:
                    if True:
                        self.drain("biasb")
                        self.sync(self.C, self.wlast[(1, 1)], self.wtok[(1, 1)])
                        e(f"v_add_u32 v{vTRF0}, {R_B-R_A}, v{vTRF0}")
                        e(f"v_add_u32 v{vTRF1}, {R_B-R_A}, v{vTRF1}")
                        self.add_w1(1, 6)
                        self.B.extend(self.b_dma(3) + self.b_dma(4) + self.b_dma(5))
                        for p in range(12):
                            self.B.extend(self.b_dma(p + 6))
                        for p in range(16):
                            self.D.extend(self.b_read(p))
                if g + 2 < 56:
                    self.rd_f(g + 2, t)
                self.gap(12)

    def phase1(self):
        e, pe, m = self.e, self.pe, self.m
        self.btok, self.btr, self.blast = {}, {}, {}
        self.tQKV, self.tH, tG = [], [], []
        self.qkv()
        self.stamp("qkv done")
        e(f"s_cmp_lt_u32 s{sLOC}, 28")
        if not OPT["ipf"]:
            e(f"s_cselect_b32 s{S_W2+2}, {1792*896}, 0")
        e(f"s_cselect_b32 s{S_WO+2}, {448*896}, 0")
        if OPT["null"] & 1:
            e(f"s_mov_b32 s{S_W2+2}, 0")
            e(f"s_mov_b32 s{S_WO+2}, 0")
        if OPT["null"] & 2:
            e(f"s_mov_b32 s{sAOFF}, {OOB}")
            e(f"s_mov_b32 s{sAEND}, {OOB}")
        if OPT["null"] & 4:
            e(f"s_mov_b32 s{sHA}, {OOB}")
            e(f"s_mov_b32 s{sHB}, {OOB}")
            e(f"s_mov_b32 s{sQS}, {OOB}")
            e(f"s_mov_b32 s{sOS}, {OOB}")
        if OPT["null"] & 8:
            e(f"s_mov_b32 s{sKOFF}, {OOB}")
            e(f"s_mov_b32 s{sQOFF}, {OOB}")
        if OPT["null"] & 16:
            e(f"s_mov_b32 s{S_W1+2}, 0")
        pub1 = self.publish(sF1, self.tQKV, 6)
        self.add_w1(1, 0)
        pe(f"s_movk_i32 s{sT3}, 0x3f80")
        self.qkv_pack(2)
        self.push(lambda: self.add_w1(1, 1), 0)
        self.qkv_pack(1)
        self.qkv_pack(0)
        self.push(lambda: [self.add_w1(1, k) for k in range(2, 6)], 0)
        self.bias_init(vACC, TB1 + 128)
        self.mark("biasb")
        b012 = self.b_dma(0) + self.b_dma(1) + self.b_dma(2)
        self.hooks[f"ffn0_{OPT['bstart']}"] = lambda: self.B.extend(b012)
        self.ffn(0)
        self.force(self.C, self.lastS)
        self.stamp("ffn a done")
        accA = vACC + 48
        pe(f"v_mul_f32 v{vGATE}, {fbits(-math.log2(math.e))}, v{accA}")
        pe(f"v_exp_f32 v{vGATE}, v{vGATE}")
        pe(f"v_and_b32 v{vGA}, 31, v{vL}")
        pe(f"v_add_f32 v{vGATE}, 1.0, v{vGATE}")
        pe(f"v_lshlrev_b32 v{vGA}, 2, v{vGA}")
        pe(f"v_rcp_f32 v{vGATE}, v{vGATE}")
        pe(f"v_mov_b32 v{vTMP}, {OOB}")
        pe(f"v_cndmask_b32 v{vTMP}, v{vGA}, v{vTMP}, {s(sHI,2)}")
        self.push(lambda: self.C.appendleft(Item(f"buffer_store_dword v{vGATE}, v{vTMP}, {s(S_WS,4)}, s{sGS} offen sc1", tG)), 0)
        self.push(lambda: self.publish(sF0P, tG, 1), 0)
        ga = deque(range(0, 16, 2))
        while ga and ga[0] < OPT["npairs"]:
            self.gelu_two(accA, sHA, ga.popleft(), False)
        self.hooks[f"ffn1_{OPT['pub1']}"] = lambda: self.force(self.P, pub1)
        self.hooks[f"ffn1_{OPT['poll1']}"] = lambda: self.poll_item(vF1A, 0)
        self.ffn(1)
        self.poll_check(vF1A, 0)
        e("s_barrier")
        self.att_loads()
        self.stamp("ffn b done")
        m(f"v_lshlrev_b32 v{vTMP+1}, 2, v{vL}")
        self.tB2 = []
        self.C.append(Item(f"buffer_load_dword v{vTMP+1}, {s(S_B2,4)}, s{sCB} offen lds", self.tB2,
                           pre=[f"s_lshl_b32 s{sCB}, s{sCT}, 7"], m0=(None, TB2), lat=OPT["miss"]))
        self.b2item = self.C[-1]
        self.drain()
        for acc, soff, todo in ((accA, sHA, ga), (vACC, sHB, range(0, 16, 2))):
            for n in todo:
                self.gelu_two(acc, soff, n, True)
        self.drain(every=OPT["gev"])
        self.stamp("gelu done")

    def att_loads(self):
        self.tKV = []
        items = []
        for bb in range(3):
            for part in range(2):
                pre = ([f"s_add_u32 s{sCA}, s{sKOFF}, {16*64*2048+2048*bb}", f"s_cmp_lt_i32 s{sKV0}, {-bb}", f"s_cselect_b32 s{sCA}, {OOB}, s{sCA}"]
                       if part == 0 else [f"s_add_u32 s{sCA}, s{sCA}, {16*64*2048}"])
                for k in range(2):
                    items.append(Item(f"buffer_load_dwordx4 v{vLIN}, {s(S_WS,4)}, s{sCA} offen" + (" offset:1024" if k else "") + " sc1 lds",
                                      self.tKV, pre=pre if k == 0 else (), m0=(sMKV, KV + 24576 * part + 2048 * bb), lat=OPT["miss"]))
        for k in range(2):
            items.append(Item(f"buffer_load_dwordx4 {v(vQ+4*k,4)}, v{vLIN}, {s(S_WS,4)}, s{sQOFF} offen offset:{1024*k} sc1", self.tKV, lat=OPT["miss"]))
        self.C.extendleft(reversed(items))
        self.kvlast = items[-1]

    def rd_k(self, n, em=None):
        for k in range(2):
            (em or self.m)(f"ds_read_b128 {v(vKR+8*(n%3)+4*k,4)}, v{vKA} offset:{(n%9)*2048+k*1024}")

    def rd_v(self, i, st):
        for h in range(2):
            self.e(f"ds_read_b64_tr_b16 {v(vVR+4*st+2*h,2)}, v{vVA} offset:{i*2048+256*(2*st+h)}")

    def qk(self, i, k):
        S = v(vS + 16 * (i & 1), 16)
        C = S if k else v(vM0 if i == 0 else vM8 if i == 8 else vCD, 16)
        self.e(f"{MFMA} {S}, {v(vKR+8*(i%3)+4*k,4)}, {v(vQ+4*k,4)}, {C}")

    def patch(self, i, src):
        if not 2 <= i <= 7 and src == "0":
            return
        self.nlab += 1
        n = self.nlab
        self.e(f"s_cmp_eq_u32 s{sFIRST}, {i}" if src == "0" else f"s_cmp_gt_u32 s{sFIRST}, 1")
        self.e(f"s_cbranch_scc1 L_pat{n}")
        self.a.label(f"L_patb{n}")
        self.tail += [f"L_pat{n}:", "s_nop 7"] + [f"v_mov_b32 v{vCD+k}, {src}" for k in range(16)] + ["s_nop 1", f"s_branch L_patb{n}"]

    def attention(self):
        e, pe, m = self.e, self.pe, self.m
        m(f"v_and_b32 v26, 31, v{vL}")
        m(f"v_lshrrev_b32 v27, 5, v{vL}")
        m(f"v_lshlrev_b32 v28, 2, v27")
        m(f"v_sub_u32 v26, v26, v28")
        m(f"s_cmp_gt_u32 s{sFIRST}, 0")
        m(f"s_cselect_b32 s{sT0}, {NINF}, 0")
        m(f"v_mov_b32 v28, s{sT0}")
        m(f"v_mov_b32 v29, {NINF}")
        m(f"s_cmp_gt_u32 s{sFIRST}, 1")
        m(f"s_cselect_b32 s{sT0}, {NINF}, 0")
        prs = (sM, sM3)
        for j0 in range(0, 16, 2):
            for d in range(2):
                jj = j0 + d
                m(f"v_cmp_le_i32 {s(prs[d],2)}, {(jj&3)+8*(jj>>2)}, v26")
            for d in range(2):
                m(f"v_mov_b32 v{vCD+j0+d}, s{sT0}")
            for d in range(2):
                jj = j0 + d
                m(f"v_cndmask_b32 v{vM8+jj}, v29, 0, {s(prs[d],2)}")
                m(f"v_cndmask_b32 v{vM0+jj}, v28, v29, {s(prs[d],2)}")
        m(f"s_lshl_b32 s{sT1}, s{sW}, 11")
        m(f"s_add_u32 s{sT1}, s{sT1}, {KV}")
        m(f"v_add_u32 v{vKA}, s{sT1}, v{vLIN}")
        m(f"v_mov_b32 v{vMX}, {NINF}")
        m(f"v_mov_b32 v{vMX+1}, {NINF}")
        m(f"v_mov_b32 v{vF1A}, 0")
        m(f"v_add_u32 v{vA1H}, {112*1024}, v{vLIN}")
        self.sync(self.C, self.kvlast, self.tKV, drain_lds=False)
        self.stamp("kv in")
        self.poll_item(vF1A, f"s{sF0R}")
        pub2 = self.publish(sT3, self.tH, 8, pre=[f"s_add_u32 s{sT3}, s{sF1}, {F2-F1}"])
        self.rd_k(0)
        self.rd_k(1)
        for i in range(10):
            if i % 2 == 0:
                self.stamp(group=4)
            if i < 9:
                self.patch(i, "0")
                self.qk(i, 0)
                self.rd_k(i + 2, e)
                self.qk(i, 1)
                self.cluster()
            if i > 0:
                S = vS + 16 * ((i - 1) & 1)
                for k in range(8):
                    e(f"v_max3_f32 v{vMX+(k&1)}, v{S+2*k}, v{S+2*k+1}, v{vMX+(k&1)}")
        m(f"v_max_f32 v{vMX}, v{vMX}, v{vMX+1}")
        m(f"v_mov_b32 v{vMX+1}, v{vMX}")
        m(f"v_permlane32_swap_b32 v{vMX}, v{vMX+1}")
        m(f"v_max_f32 v{vMX}, v{vMX}, v{vMX+1}")
        m(f"v_cvt_pk_bf16_f32 v26, -v{vMX}, -v{vMX}")
        m(f"v_lshlrev_b32 v26, 16, v26")
        m(f"v_sub_f32 v26, -v{vMX}, v26")
        m(f"v_cvt_pk_bf16_f32 v27, -v{vMX}, v26")
        m(f"v_and_b32 v28, 0xffff0000, v27")
        m(f"v_sub_f32 v26, v26, v28")
        m(f"v_cndmask_b32 v{vQ+6}, v{vQ+6}, v27, {s(sHI,2)}")
        m(f"v_cvt_pk_bf16_f32 v26, v26, 0")
        self.patch(1, "v29")
        m(f"v_cndmask_b32 v{vQ+7}, v{vQ+7}, v26, {s(sHI,2)}")
        self.qk(0, 0)
        self.rd_k(2)
        self.qk(0, 1)
        self.stamp("pass 1 done")
        O = v(vO, 16)
        for i in range(9):
            S = vS + 16 * (i & 1)
            ex = lambda k: e(f"v_exp_f32 v{S+k}, v{S+k}")
            cv = lambda k: e(f"v_cvt_pk_bf16_f32 v{vP+k}, v{S+2*k}, v{S+2*k+1}")
            self.stamp(group=4)
            if i == OPT["chk0"]:
                self.force(self.C)
                self.poll_check(vF1A, f"s{sF0R}")
                self.C.append(Item(f"buffer_load_dword v{vGATE}, v{vGA}, {s(S_WS,4)}, s{sGQ} offen sc1", lat=OPT["miss"]))
            if i == OPT["poll2"]:
                self.poll_item(vF23A, f"s{sF2O}")
            if i == OPT["chk2"]:
                self.de_start()
            if i < 8:
                self.patch(i + 1, "0")
                self.qk(i + 1, 0)
            self.rd_v(i, 0)
            self.rd_v(i, 1)
            self.cluster(1)
            for k in range(4):
                ex(k)
            if i < 8:
                self.qk(i + 1, 1)
            self.cluster()
            for k in range(4, 9):
                ex(k)
            for k in range(4):
                cv(k)
            ex(9)
            ex(10)
            e(f"{MFMA} {O}, {v(vVR,4)}, {v(vP,4)}, {O if i else 0}")
            if i < 6:
                self.rd_k(i + 3, e)
            self.cluster(1)
            for k in range(11, 16):
                ex(k)
            for k in range(4, 8):
                cv(k)
            self.cluster()
            e(f"{MFMA} {O}, {v(vVR+4,4)}, {v(vP+4,4)}, {O}")
        self.force(self.C, self.b2item)
        self.a.need(*self.tB2)
        m(f"v_lshrrev_b32 v26, 1, v{vGA}")
        m(f"ds_read_u16 v{vBI}, v26 offset:{TB2}")
        m(f"ds_read_u16 v{vBI+4}, v26 offset:{TB2+64}")
        m(f"s_cmp_eq_u32 s{sW}, 0")
        m(f"s_cselect_b32 s{sT0}, 0x3f80, 0")
        m(f"v_mov_b32 v26, s{sT0}")
        for k in (1, 2, 3, 5, 6, 7, 9, 10, 11):
            m(f"v_mov_b32 v{vBI+k}, 0")
        m(f"v_cndmask_b32 v{vBI+8}, v26, 0, {s(sHI,2)}")
        m(f"v_mov_b32 v{vMX}, v{vO+12}")
        m(f"v_mov_b32 v{vMX+1}, v{vO+12}")
        m(f"v_permlane32_swap_b32 v{vMX}, v{vMX+1}")
        m(f"v_rcp_f32 v{vMX}, v{vMX+1}")
        m(f"v_mul_f32 v{vMX}, v{vMX}, v{vGATE}")
        for k in range(8):
            m(f"v_pk_mul_f32 {v(vO+2*k,2)}, {v(vO+2*k,2)}, {v(vMX,2)} op_sel_hi:[1,0]")
        self.tO = []
        for k in range(8):
            m(f"v_cvt_pk_bf16_f32 v{vP+k}, v{vO+2*k}, v{vO+2*k+1}")
            if k == 3:
                self.P.append(Item(f"buffer_store_dwordx4 {v(vP,4)}, v{vLIN}, {s(S_WS,4)}, s{sOS} offen sc1", self.tO))
        m(f"v_cndmask_b32 v{vP+6}, v{vP+6}, 0, {s(sHI,2)}")
        self.P.append(Item(f"buffer_store_dwordx4 {v(vP+4,4)}, v{vLIN}, {s(S_WS,4)}, s{sOS} offen offset:1024 sc1", self.tO))
        self.drain()
        self.force(self.P)
        self.stamp("attention done")

    def ar(self, p, k):
        return (64, 80, 104, 120)[p % 4] + 4 * k

    def a_load(self, p):
        for n in range(4):
            if p < 14:
                ad, so, imm = (vLIN, vA1H)[n & 1], sAOFF, 1024 * (n >> 1)
                pre = [f"s_add_u32 s{sAOFF}, s{sAOFF}, 2048"] if p and n == 0 else ()
            else:
                ad, so, imm = vLIN, sAEND, 1024 * n
                pre = [f"s_add_u32 s{sAEND}, s{sAEND}, {(0, 4096, 32768-4096, 4096)[p-14]}"] if p > 14 and n == 0 else ()
            self.C.append(Item(f"buffer_load_dwordx4 {v(self.ar(p,n),4)}, v{ad}, {s(S_WS,4)}, s{so} offen offset:{imm} sc1",
                               self.atok.setdefault(p, []), pre=pre, lat=OPT["miss2"]))
            self.C[-1].due = p - 3
        self.alast[p] = self.C[-1]

    def de_start(self):
        e = self.e
        self.alast, self.atok = {}, {}
        self.poll_check(vF23A, f"s{sF2O}")
        for p in range(4):
            self.a_load(p)
        for rb in range(2):
            self.C.append(Item(f"buffer_load_dword v{vG+rb}, v{vGA}, {s(S_WS,4)}, s{sGD} offen offset:{128*rb} sc1", lat=OPT["miss"]))
            self.C[-1].due = 1

    def de(self):
        e, pe, m = self.e, self.pe, self.m
        e(f"s_cmp_ge_u32 s{sLOC}, 28")
        e("s_cbranch_scc1 L_idle")
        started = sum(1 for p in range(4) if self.atok.get(p))
        self.bfirst = True
        self.publish(sF3P, self.tO, 2)

        def mm(p, n):
            if p < 14:
                ks, qd = (n & 1, n >> 1) if p == 13 else (n >> 2, n & 3)
                B, A = 16 * p + 8 * ks + 4 * (qd & 1), self.ar(p, 2 * ks + (qd >> 1))
            else:
                fr, t = (n >> 1, n & 1) if p in (14, 16) else (n & 3, 1 - (n >> 2))
                qd = 2 * ((p - 14) >> 1) + t
                B, A = (16 * (14 + 2 * (p & 1)) + 8 * fr + 4 * t) % 256, self.ar(p, fr)
            acc = v(vAB + 16 * qd, 16)
            e(f"{MFMA} {acc}, {a_(B,4)}, {v(A,4)}, {0 if p == 0 and n < 4 else acc}")

        def scale(qd):
            for k in range(16):
                pe(f"v_mul_f32 v{vAB+16*qd+k}, v{vG+(qd>>1)}, v{vAB+16*qd+k}")

        def put(rb, i):
            h, k = (1, 3, 2)[i >> 1], i & 1
            e(f"ds_write_b128 v24, {v(vAB+32*rb+16*(h&1)+8*(h>>1)+4*k,4)} offset:{rb*(RING-RED)+h*2048+k*1024}")

        def get(rb):
            R, S = 208, vAB + 32 * rb
            for h in range(1, 4):
                for k in range(2):
                    pe(f"ds_read_b128 {v(R+8*h+4*k,4)}, v{24+h} offset:{rb*(RING-RED)+k*1024}")
            for h in range(1, 4):
                if rb:
                    for k in range(4):
                        pe(f"v_pk_add_f32 {v(S+2*k,2)}, {v(S+2*k,2)}, {v(R+8*h+2*k,2)}")
                else:
                    for k in range(8):
                        pe(f"v_add_f32 v{S+k}, v{S+k}, v{R+8*h+k}")
            for k in range(4):
                pe(f"v_cvt_pk_bf16_f32 v{32+4*rb+k}, v{S+2*k}, v{S+2*k+1}")
            if rb:
                pe(f"s_add_u32 s{sOUT}, s{sOUT}, {32*896}")
            for d in range(2):
                pe(f"v_permlane32_swap_b32 v{32+4*rb+d}, v{32+4*rb+2+d}")
            pe(f"buffer_store_dwordx4 {v(32+4*rb,4)}, v28, {s(S_OUT,4)}, s{sOUT} offen")

        for p in range(18):
            if p < 6 or p >= 9:
                self.stamp(group=5)
            self.force(self.C, self.alast[p])
            for pb in ([p] if p < 14 else [14 + 2 * (p & 1), 15 + 2 * (p & 1)]):
                self.force_read(pb)
            self.await_(self.atok[p][:2])
            if p in (1, 2):
                self.D.extend(self.b_read(15 + p))
            if p == 3:
                for qd in range(4):
                    acc = v(vAB + 16 * qd, 16)
                    e(f"{MFMA} {acc}, {v(vBI+4*(qd&1),4)}, {v(vBI+8,4)}, {acc}")
                    self.side()
                pe(f"v_add_u32 v24, s{sRING}, v{vLIN}")
                for h in range(1, 4):
                    pe(f"s_xor_b32 s{sT0}, s{sW}, {h}")
                    pe(f"s_mul_i32 s{sT0}, s{sT0}, 12288")
                    pe(f"s_add_u32 s{sT0}, s{sT0}, {RED+2048*h}")
                    pe(f"v_add_u32 v{24+h}, s{sT0}, v{vLIN}")
                pe(f"v_and_b32 v28, 31, v{vL}")
                pe(f"v_mul_u32_u24 v28, 896, v28")
                pe(f"v_lshrrev_b32 v29, 5, v{vL}")
                pe(f"v_lshl_add_u32 v28, v29, 4, v28")
            if p == OPT["poll3"]:
                e(f"s_add_u32 s{sF2O}, s{sF2O}, {F3-F2}")
                self.poll_item(vF23A, f"s{sF2O}")
            if p == 11:
                for rb in range(2):
                    pe(f"v_sub_f32 v{vG+rb}, 1.0, v{vG+rb}")
            if p == 14:
                self.drain()
            if p == 16:
                self.drain()
            for n in range(8):
                mm(p, n)
                if p == 13 and n in (3, 5):
                    scale((n - 3) >> 1)
                if p == 14 and n == 0:
                    scale(2)
                    scale(3)
                if p in (15, 17) and n >= 6:
                    put(p >> 4, n - 6)
                elif p == 16 and n < 4:
                    put(0, n + 2)
                if p == 16 and n == 5:
                    e("s_waitcnt lgkmcnt(0)")
                    e("s_barrier")
                    get(0)
                self.gap(32 if p == 13 else 8 if p == 16 and n < 7 else 24)
            if p + 4 < 18:
                if p + 4 == 14:
                    self.poll_check(vF23A, f"s{sF2O}")
                self.a_load(p + 4)
        self.stamp("pair 17 done")
        assert not self.q
        for i in range(2, 6):
            put(1, i)
        e("s_waitcnt lgkmcnt(0)")
        e("s_barrier")
        get(1)
        self.drain()
        self.stamp("end")
        self.write_stamps()
        e("s_endpgm")
        self.a.label("L_idle")
        self.a.vm, self.a.lg = [], []
        n = 0
        todo = range(started, 14 - OPT["pa0"]) if OPT["ipf"] else []
        for q in todo:
            e(f"s_add_u32 s{sAOFF}, s{sAOFF}, 2048")
            for k in range(4):
                self.a._push(Ins(f"buffer_load_dwordx4 {v(64+4*k,4)}, v{(vLIN, vA1H)[k & 1]}, {s(S_WS,4)}, s{sAOFF} offen offset:{1024*(k>>1)} sc1"))
                n += 1
            if n == 8:
                e(f"s_waitcnt vmcnt({n})")
                e(self.pub_text(sF3P))
        if n < 8:
            e(f"s_waitcnt vmcnt({n})")
            e(self.pub_text(sF3P))
        if OPT["ipf"]:
            e(f"s_add_u32 s{sF2O}, s{sF2O}, {F3-F2}")
            e(f"buffer_load_dword {v(vPOLL)}, {v(vF23A)}, {s(S_WS,4)}, s{sF2O} offen sc1")
            self.poll_check(vF23A, f"s{sF2O}")
            for q in range(4):
                for k in range(4):
                    self.a._push(Ins(f"buffer_load_dwordx4 {v(64+4*k,4)}, v{vLIN}, {s(S_WS,4)}, s{sAEND} offen offset:{1024*k} sc1"))
                if q < 3:
                    e(f"s_add_u32 s{sAEND}, s{sAEND}, {(4096, 32768-4096, 4096)[q]}")
        e("s_cmp_lg_u32 s2, 248")
        e("s_cbranch_scc1 L_end")
        e(f"s_cmp_lg_u32 s{sW}, 0")
        e("s_cbranch_scc1 L_end")
        e(f"v_lshlrev_b32 v24, 7, v{vL}")
        e(f"s_mov_b32 s{sSPIN}, 0")
        self.a.label("L_ep")
        for k in range(16):
            e(f"s_mov_b32 s{sT0}, {F1+8192*k}")
            e(f"buffer_load_dword v{40+k}, v24, {s(S_WS,4)}, s{sT0} offen sc1")
        e(f"s_add_u32 s{sSPIN}, s{sSPIN}, 1")
        e("s_waitcnt vmcnt(0)")
        for k in range(16):
            e(f"v_xor_b32 v{40+k}, v{vT}, v{40+k}")
        for k in range(1, 16):
            e(f"v_or_b32 v40, v40, v{40+k}")
        e(f"v_cmp_ne_u32 vcc, 0, v40")
        e(f"s_cmp_gt_u32 s{sSPIN}, 0x8000")
        e("s_cbranch_scc1 L_epd")
        e("s_cbranch_vccnz L_ep")
        self.a.label("L_epd")
        e(f"s_mov_b32 s{sT0}, {E_OFF}")
        e(self.pub_text(sT0))

    def write_stamps(self):
        e = self.e
        if OPT["probe"]:
            e(f"s_sub_u32 s{sT0}, s{sP0+1}, s{sP0}")
            e(f"s_lshl_b32 s{sT0}, s{sT0}, 2")
            e(f"s_add_u32 s{sT0}, s{sT0}, 72000")
            self.a.label("L_probe")
            e(f"s_memtime {s(sM3,2)}")
            e("s_waitcnt lgkmcnt(0)")
            e(f"s_sub_u32 s{sT1}, s{sM3}, s{sP0}")
            e(f"s_cmp_lt_u32 s{sT1}, s{sT0}")
            e("s_cbranch_scc1 L_probe")
        if not OPT["stamps"]:
            return
        e(f"s_lshl_b32 s{sT0}, s2, 2")
        e(f"s_add_u32 s{sT0}, s{sT0}, s{sW}")
        e(f"s_lshl_b32 s{sT1}, s{sT0}, 7")
        e(f"s_add_u32 s{sT1}, s{sT1}, {ST_BASE}")
        e(f"s_mov_b32 s{sT2}, {self.nst}")
        e(f"v_lshlrev_b32 v40, 2, v{vL}")
        e(f"v_writelane_b32 v{vST}, s{sT2}, 31")
        e(f"v_writelane_b32 v{vST}, s{sP0}, 30")
        e("s_memrealtime s[88:89]")
        e("s_waitcnt lgkmcnt(0)")
        e(f"v_writelane_b32 v{vST}, s88, 28")
        e(f"v_cmp_gt_u32 vcc, 32, v{vL}")
        e(f"v_mov_b32 v41, {OOB}")
        e(f"v_cndmask_b32 v40, v41, v40, vcc")
        e(f"buffer_store_dword v{vST}, v40, {s(S_WS,4)}, s{sT1} offen")

    def build(self):
        self.prologue()
        self.phase1()
        self.attention()
        self.de()
        self.a.label("L_end")
        self.e("s_endpgm")
        if OPT["strip"]:
            keep, pro = [], True
            for i in self.a.ins:
                if i.kind == "barrier":
                    pro = False
                drop = i.kind in ("mfma", "trans", "dsread", "dswrite") or (
                    not pro and i.kind == "valu" and any(r[0] == "v" and r != "vcc" and int(r[1:]) >= 30 for r in i.w) and "v40" not in i.w and "v41" not in i.w)
                if OPT["strip"] == 2 and i.kind == "vstore" and "x4" in i.mn:
                    i = Ins(i.text.replace("offen", "offen").replace(f"v{vLIN},", f"v{vL0},").replace("v24,", f"v{vL0},").replace("v25,", f"v{vL0},").replace("v26,", f"v{vL0},").replace("v27,", f"v{vL0},"))
                if not drop:
                    keep.append(i)
            self.a.ins = keep
        self.a.finalize()
        body = self.a.text() + "\n" + "\n".join(t if t.endswith(":") else "    " + t for t in self.tail) + "\nL_code_end:\n    s_endpgm\n"
        head = f"""; Fused gated mix: sliding-window attention branch + GELU FFN branch, one persistent launch.
; @launch grid=(256,1,1) block=(256,1,1) lds={LDS_SIZE}
.amdgcn_target "amdgcn-amd-amdhsa--gfx950"
.text
.globl {NAME}_kernel
.p2align 8
.type {NAME}_kernel,@function
{NAME}_kernel:
"""
        foot = f""".section .rodata,"a"
.p2align 6
.amdhsa_kernel {NAME}_kernel
  .amdhsa_next_free_vgpr 512
  .amdhsa_next_free_sgpr 102
  .amdhsa_accum_offset 256
  .amdhsa_group_segment_fixed_size 0
  .amdhsa_kernarg_size 96
  .amdhsa_user_sgpr_count 2
  .amdhsa_user_sgpr_kernarg_segment_ptr 1
  .amdhsa_system_sgpr_workgroup_id_x 1
  .amdhsa_float_denorm_mode_32 3
.end_amdhsa_kernel
"""
        return head + body + foot


if __name__ == "__main__":
    g = Gen()
    txt = g.build()
    out = sys.argv[1] if len(sys.argv) > 1 else f"cdna_kernels/{NAME}.s"
    open(out, "w").write(txt)
    kinds = {}
    for i in g.a.ins:
        kinds[i.kind] = kinds.get(i.kind, 0) + 1
    print(out, g.a.stats, kinds)
    if OPT["log"]:
        print("\n".join(g.a.log))
        print("model stalls", g.a.stall, "pipe busy", g.a.busy)
```

```python
import math, struct, sys
from collections import deque
sys.path.insert(0, "tools")
from asmlib import Asm, Ins, v, a_, s

NAME = "gated_mix__sliding_block__dense_activation_gelu__prompt"
OPT = dict(stamps=0, dbg=0, npairs=2, probe=0, poll1=22, poll2=3, chk2=6, poll3=7, norot=0, log=0,
           miss=480, pub1=10, svc=64, st=160, lat=480, win=8, strip=0, rot1=3, rot2=2, cpf=1, nt=0, split=1, wpf=1, wsoff=0, rt=0, ldsq=24, pfa0=2, pfa1=7, pfb0=7, pfb1=14, miss2=480, chk0=1, ipf=0, pa0=7, pb0=6, stlat=800, lat0=1800, bstart=0, null=0, gev=10, wbfirst=2, chk1=2, bpre=18, depth=5, chk3=9)
for arg in sys.argv[2:]:
    k, val = arg.split("=")
    assert k in OPT, k
    OPT[k] = int(val)


def fbits(x):
    return struct.unpack("<I", struct.pack("<f", x))[0]


QKV_BASE, H_BASE, O_BASE, G_BASE = 0, 0x600000, 0xD00000, 0xF00000
F_BASE, E_OFF, ST_BASE, WS_SIZE = 0xF10000, 0xF80000, 0xFA0000, 0x1000000
F1, F2, F3, F0 = F_BASE, F_BASE + 1024 * 128, F_BASE + 2048 * 128, F_BASE + 3072 * 128
OOB = 0x40000000
TAG_STEP = 0x6B43A9B7
R_A, R_Q, R_B, RING = 0, 57344, 106496, 57344
KV = R_B
XST = 106496
TB1, DUMMY, TB2, RED = 163328, 159744, 0, 8192
LDS_SIZE = 163840
S_CODE, S_X, S_WO, S_W1, S_W2, S_GW, S_WS, S_WQ, S_B1, S_B2, S_OUT = 4, 8, 12, 16, 20, 24, 28, 32, 36, 40, 44
sMX = 3
sW, sC, sLIGHT, sUA, sUB, sJ, sRB0, sCT, sLOC, sRB, sQB, sFIRST = range(48, 60)
sT0, sT1, sT2, sT3 = 60, 61, 62, 63
sHI, sM, sG = 64, 66, 68
sCA, sCB, sBT = 75, 76, 77
sMQ, sMA, sMAS, sMB, sRING = 78, 79, 80, 81, 82
sBOFF, sBEND, sAOFF, sAEND, sKV0 = 83, 84, 85, 86, 87
sM3, sF2O, sSPIN = 88, 90, 91
sQS, sHA, sHB, sF1, sGS, sF0P = 0, 1, 4, 5, 6, 7
sKOFF, sMKV, sQOFF, sOS, sF3P, sF0R, sK2 = 36, 37, 38, 39, 24, 25, 26
sGQ, sGD, sNQ, sOUT = 92, 93, 94, 95
sPF1, sPF2, sSLA, sSLB = 96, 97, 98, 99
sP0 = 100
vL, vLIN, vT, vL0, vK1, vST = 0, 1, 2, 3, 4, 5
vTRQ, vTRF0, vTRF1 = 6, 7, 8
vW1A0, vW1A1, vPV = 9, 10, 11
vBD = 12
vBT0, vBT1 = 16, 17
vF1A, vF23A = 18, 19
vWQ = 20
vPOLL, vGA, vGATE = 20, 21, 22
vTBL = 23
vTMP = 24
vXD, vXR = 32, 36
vWR = 40
vACC = 64
vX = 144
vQ, vS, vCD, vM0, vM8, vO, vP, vMX = 96, 144, 176, 192, 208, 224, 240, 248
vKR, vVR, vKA, vVA = 40, 136, 6, 11
vAB, vBI, vA1H, vG = 144, 208, 8, 9

C_GELU = -2.0 * math.sqrt(2.0 / math.pi) * math.log2(math.e)
K1, K2 = fbits(C_GELU), fbits(C_GELU * 0.044715)
QSCALE = fbits(math.log2(math.e) / math.sqrt(28.0))
NINF = 0xFF800000
MFMA = "v_mfma_f32_32x32x16_bf16"


def NT(bit):
    return " nt" if OPT["nt"] & bit else ""


class Item:
    def __init__(self, text, sink=None, pre=(), post=(), m0=None, after=None, lat=None, pre0=()):
        self.pre0 = pre0
        self.text = [text] if isinstance(text, str) else text
        self.sink, self.pre, self.post, self.m0, self.after, self.lat = sink, pre, post, m0, after, lat
        self.vm = self.text[0].startswith("buffer")
        self.done = False
        self.due = 0


class Gen:
    def __init__(self):
        self.a = Asm()
        self.a.verbose = OPT['log'] > 1
        self.a.p_svc, self.a.p_st, self.a.p_lat, self.a.p_win = OPT['svc'], OPT['st'], OPT['lat'], OPT['win']
        self.a.p_stlat = OPT['stlat']
        self.a.wq = s(S_WQ, 4)
        self.q = deque()
        self.P, self.C, self.B, self.D = deque(), deque(), deque(), deque()
        self.tail = []
        self.nst = self.nlab = self.nmark = 0
        self.marks = set()
        self.m0 = None
        self.hooks = {}
        self.bfirst = False

    def e(self, t):
        return self.a.e(t)

    def emit_item(self, st):
        it = st.popleft()
        c0 = len(self.a.ins)
        if it.after:
            toks = it.after()
            assert toks is not None, "forced item whose producers are not emitted: " + it.text[0]
            self.a.need(*toks)
        for t in it.pre0:
            self.e(t)
        if it.m0 and it.m0 != self.m0:
            reg, imm = it.m0[:2]
            self.e(f"s_mov_b32 m0, {imm}" if reg is None else f"s_add_u32 m0, s{reg}, {imm}" if imm else f"s_mov_b32 m0, s{reg}")
            self.m0 = it.m0
        for t in it.pre:
            self.e(t)
        for t in it.text:
            self.a.next_lat = it.lat
            k = self.e(t)
            if it.sink is not None:
                it.sink.append(k)
        for t in it.post:
            self.e(t)
        it.done = True
        return 4 * (len(self.a.ins) - c0) + (4 if it.vm else 0)

    def vm_streams(self):
        if self.bfirst and self.B and self.C and self.B[0].due < self.C[0].due:
            return (self.P, self.B, self.C)
        return (self.P, self.C, self.B)

    def ready(self, it):
        if it.after:
            toks = it.after()
            return toks is not None and self.a.est(toks) <= self.a.clk
        return True

    def side(self, both=True):
        a = self.a
        cost = 0
        if a.vm_free():
            for st in self.vm_streams():
                if st and self.ready(st[0]):
                    cost = self.emit_item(st)
                    break
        if (both or not cost) and self.D and a.lds_free - a.clk <= OPT["ldsq"] and self.ready(self.D[0]):
            cost += self.emit_item(self.D)
        return cost

    def force(self, st, it=None):
        while st and (it is None or not it.done):
            self.emit_item(st)

    def m(self, t):
        k = self.e(t)
        if not t.startswith(("s_cmp", "s_cselect", "v_cmp")):
            self.side(False)
        return k

    def push(self, fn, cost=4):
        self.q.append((fn, cost))

    def pe(self, t):
        cost = 8 if Ins(t).kind == "trans" else 4
        if t.startswith("s_cselect"):
            fn, c = self.q.pop()
            assert getattr(fn, "scc", False), "s_cselect must follow its s_cmp directly: " + t
            g = lambda fn=fn, t=t: (fn(), self.e(t))
            g.scc = True
            self.q.append((g, c + cost))
            return
        f = lambda t=t: self.e(t)
        f.scc = t.startswith("s_cmp")
        self.q.append((f, cost))

    def gap(self, budget):
        budget -= self.side(budget >= 24)
        while self.q and budget >= min(self.q[0][1], 8):
            fn, c = self.q.popleft()
            fn()
            budget -= c

    def cluster(self, nd=2):
        self.side(True)
        for _ in range(nd - 1):
            if self.D and self.ready(self.D[0]):
                self.emit_item(self.D)

    def drain(self, name=None, every=1):
        n = 0
        while (self.q if name is None else name not in self.marks):
            self.q.popleft()[0]()
            n += 1
            if n % every == 0:
                self.cluster()

    def mark(self, name):
        self.push(lambda: self.marks.add(name), 0)

    def hook(self, name):
        fn = self.hooks.pop(name, None)
        if fn:
            fn()

    def stamp(self, name="", group=1):
        if group == 1:
            self.a.log.append(f"{self.a.clk:6d} {name}  (pipe busy {self.a.busy} idle {self.a.idle} ops {self.a.nvm}; left C {len(self.C)} B {len(self.B)} D {len(self.D)})")
        if (OPT["stamps"] == group or (OPT["stamps"] and (self.nst == 0 or name == "end" or (name == "chunk 0" and OPT["stamps"] == 9)))) and self.nst < 16:
            clk = self.a.clk
            self.e(f"{'s_memrealtime' if OPT['rt'] else 's_memtime'} {s(sM3,2)}")
            self.e("s_waitcnt lgkmcnt(0)")
            self.e(f"v_writelane_b32 v{vST}, s{sM3}, {self.nst}")
            self.a.clk = clk
            self.nst += 1
        if group == 1:
            self.nmark += 1
            if OPT["probe"] == self.nmark:
                self.e(f"s_memtime {s(sM3,2)}")
                self.e("s_waitcnt lgkmcnt(0)")
                self.e(f"s_mov_b32 s{sP0+1}, s{sM3}")

    def poll_item(self, addr, soff):
        it = Item(f"buffer_load_dword {v(vPOLL)}, {v(addr)}, {s(S_WS,4)}, {soff} offen sc1", lat=OPT["miss"])
        self.P.append(it)
        return it

    def poll_check(self, addr, soff):
        self.force_p()
        self.await_([k for k, r in self.a.vm if f"v{vPOLL}" in r])
        self.nlab += 1
        n = self.nlab
        if OPT["stamps"]:
            self.e(f"s_mov_b32 s{sSPIN}, 0")
        self.e(f"v_cmp_ne_u32 vcc, {v(vT)}, {v(vPOLL)}")
        self.e(f"s_cbranch_vccnz L_slow{n}")
        self.a.label(f"L_back{n}")
        if OPT["stamps"]:
            self.npoll = getattr(self, "npoll", 0) + 1
            self.e(f"v_writelane_b32 v{vST}, s{sSPIN}, {15 + self.npoll}")
        self.tail += [f"L_slow{n}:", f"s_mov_b32 s{sSPIN}, 0", f"L_spin{n}:",
                      f"buffer_load_dword {v(vPOLL)}, {v(addr)}, {s(S_WS,4)}, {soff} offen sc1",
                      f"s_add_u32 s{sSPIN}, s{sSPIN}, 1",
                      "s_waitcnt vmcnt(0)",
                      f"v_cmp_ne_u32 vcc, {v(vT)}, {v(vPOLL)}",
                      f"s_cmp_gt_u32 s{sSPIN}, 0x20000",
                      f"s_cbranch_scc1 L_back{n}",
                      f"s_cbranch_vccnz L_spin{n}",
                      f"s_branch L_back{n}"]

    def pub_text(self, soff):
        return f"buffer_store_dword {v(vT)}, {v(vL0)}, {s(S_WS,4)}, s{soff} offen sc1"

    def publish(self, soff, toks, n, pre=()):
        it = Item(self.pub_text(soff), pre=pre, after=lambda: toks if len(toks) == n else None)
        self.P.append(it)
        return it

    def prologue(self):
        e, m = self.e, self.m
        if OPT["probe"] or OPT["stamps"]:
            e(f"s_memtime {s(sP0,2)}")
        if OPT["stamps"]:
            e("s_memrealtime s[88:89]")
        e("s_load_dwordx16 s[8:23], s[0:1], 0")
        e("s_load_dwordx8 s[24:31], s[0:1], 64")
        e("s_cmp_ge_u32 s2, 256")
        e("s_cbranch_scc1 L_end")
        e(f"s_getpc_b64 {s(S_CODE,2)}")
        self.a.label("L_pc")
        e(f"s_lshr_b32 s{sLOC}, s2, 3")
        e(f"v_lshrrev_b32 v1, 6, v0")
        e(f"v_and_b32 v{vL}, 63, v0")
        e(f"s_and_b32 s{sT0}, s{sLOC}, 7")
        e(f"v_readfirstlane_b32 s{sW}, v1")
        e(f"s_mov_b32 s{S_CODE+2}, L_code_end-L_pc")
        e(f"s_mov_b32 s{S_CODE+3}, 0x20000")
        e(f"v_and_b32 v24, 7, v{vL}")
        e(f"v_lshl_add_u32 v24, v1, 3, v24")
        e(f"v_lshlrev_b32 v24, 7, v24")
        e(f"s_lshl_b32 s{sT1}, s{sT0}, 12")
        if OPT["cpf"]:
            e(f"buffer_load_dword v250, v24, {s(S_CODE,4)}, 0 offen")
        e(f"buffer_load_dword v251, v24, {s(S_CODE,4)}, s{sT1} offen")
        e(f"s_lshr_b32 s{sT1}, s{sLOC}, 3")
        e(f"s_bfe_u32 s{sRB}, s2, 0x20001")
        e(f"s_lshl_b32 s{sRB}, s{sRB}, 2")
        e(f"s_add_u32 s{sRB}, s{sRB}, s{sT1}")
        e(f"s_and_b32 s{sC}, s2, 1")
        e(f"s_lshl_b32 s{sC}, s{sC}, 3")
        e(f"s_add_u32 s{sC}, s{sC}, s{sT0}")
        e(f"s_lshl_b32 s{sT1}, s{sT1}, 1")
        e(f"s_add_u32 s{sT0}, s{sT0}, s{sT1}")
        e(f"s_sub_u32 s{sT1}, s{sT0}, 7")
        e(f"s_cmp_ge_u32 s{sT0}, 7")
        e(f"s_cselect_b32 s{sG}, s{sT1}, s{sT0}")
        if OPT["rot1"] == 3:
            e(f"s_bfe_u32 s{sT0}, s2, 0x20001")
            e(f"s_add_u32 s{sT0}, s{sT0}, s{sG}")
            e(f"s_sub_u32 s{sT1}, s{sT0}, 7")
            e(f"s_cmp_ge_u32 s{sT0}, 7")
            e(f"s_cselect_b32 s{sG}, s{sT1}, s{sT0}")
        if OPT["rot1"] == 0:
            e(f"s_mov_b32 s{sG}, 0")
        if OPT["rot1"] == 2:
            e(f"s_and_b32 s{sT0}, s2, 7")
            e(f"s_cmp_eq_u32 s{sT0}, 7")
            e(f"s_cselect_b32 s{sG}, 0, s{sT0}")
        e(f"s_lshl_b32 s{sRB}, s{sRB}, 2")
        e(f"s_add_u32 s{sRB}, s{sRB}, s{sW}")
        e(f"s_mov_b32 s{S_WQ+2}, {448*2688}")
        e(f"s_mov_b32 s{S_WQ+3}, 0x20000")
        e(f"v_lshrrev_b32 v24, 3, v{vL}")
        e(f"s_lshl_b32 s{sT0}, s{sRB}, 5")
        e(f"v_add_u32 v24, s{sT0}, v24")
        e(f"v_mul_u32_u24 v24, 896, v24")
        e(f"v_lshrrev_b32 v26, 4, v{vL}")
        e(f"v_and_b32 v27, 7, v{vL}")
        e(f"v_xor_b32 v26, v26, v27")
        e(f"v_lshl_add_u32 v{vXD}, v26, 4, v24")
        e(f"v_xor_b32 v{vXD+1}, 64, v{vXD}")
        e(f"v_add_u32 v{vXD+2}, {2*(7168-1024)}, v{vXD}")
        e(f"v_add_u32 v{vXD+3}, {3*(7168-1024)}, v{vXD+1}")
        e(f"v_add_u32 v{vXD+1}, {7168-1024}, v{vXD+1}")
        e(f"s_mul_i32 s{sMX}, s{sW}, 12288")
        e(f"s_add_u32 s{sRING}, s{sMX}, {RED}")
        e(f"s_add_u32 s{sMX}, s{sMX}, {XST}")
        e(f"s_mul_i32 s{sT0}, s{sC}, 168")
        e(f"s_and_b32 s{sT0}, s{sT0}, 0xfffffff0")
        e(f"s_mul_i32 s{sT1}, s{sW}, {16*2688}")
        e(f"s_add_u32 s{sT0}, s{sT0}, s{sT1}")
        e(f"s_movk_i32 s{sT1}, 2688")
        for i in range(3):
            q = vL
            if i:
                q = 24
                e(f"v_add_u32 v24, {64*i}, v{vL}")
            e(f"v_mul_u32_u24 v26, 171, v{q}")
            e(f"v_lshrrev_b32 v26, 11, v26")
            e(f"v_mad_i32_i24 v24, v26, -12, v{q}")
            e(f"v_min_u32 v24, 10, v24")
            e(f"v_lshl_add_u32 v24, v24, 4, s{sT0}")
            e(f"v_mad_u32_u24 v{vWQ+i}, v26, s{sT1}, v24")
            if i < 2:
                e(f"s_sub_u32 s{sT0}, s{sT0}, 1024")
        e(f"s_mul_i32 s{sMQ}, s{sW}, {16*192}")
        e(f"s_add_u32 s{sMQ}, s{sMQ}, {R_Q}")
        e("s_waitcnt lgkmcnt(0)")
        e(f"s_mov_b64 {s(S_WQ,2)}, s[10:11]")
        e(f"s_mov_b32 s{S_X+2}, {2048*896}")
        e(f"s_mov_b32 s{S_X+3}, 0x20000")
        self.a.clk = self.a.pipe_free = 0
        self.a.allv = []
        self.a.done = {k: 0 for k in self.a.done}
        if OPT["stamps"]:
            e(f"v_writelane_b32 v{vST}, s88, 29")
        self.stamp("kernarg")
        self.ctok, self.wtok, self.xrd, self.ftok = {}, {}, {}, {}
        self.add_chunk(0)
        self.force(self.C)
        for i in range(1, 7):
            e(f"s_add_u32 s{sT0}, s{sG+i-1}, 1")
            e(f"s_cmp_eq_u32 s{sT0}, 7")
            e(f"s_cselect_b32 s{sG+i}, 0, s{sT0}")
        self.add_chunk(1)
        for srd, src in ((S_B1, 18), (S_B2, 22), (S_OUT, 26), (S_WS, 30)):
            m(f"s_mov_b64 {s(srd,2)}, {s(src,2)}")
        for srd, size in ((S_WS, WS_SIZE), (S_GW, 896), (S_B1, 3584), (S_W1, 448 * 3584), (S_B2, 896), (S_OUT, 2048 * 896)):
            m(f"s_mov_b32 s{srd+2}, {size}")
            m(f"s_mov_b32 s{srd+3}, 0x20000")
        m(f"s_lshr_b32 s{sLIGHT}, 0x1248, s{sC}")
        m(f"s_and_b32 s{sLIGHT}, s{sLIGHT}, 1")
        m(f"s_bfm_b32 s{sT0}, s{sC}, 0")
        m(f"s_and_b32 s{sT0}, s{sT0}, 0x1248")
        m(f"s_bcnt1_i32_b32 s{sT0}, s{sT0}")
        m(f"s_lshl_b32 s{sUA}, s{sC}, 1")
        m(f"s_sub_u32 s{sUA}, s{sUA}, s{sT0}")
        m(f"s_add_u32 s{sUB}, s{sUA}, 1")
        m(f"s_sub_u32 s{sUB}, s{sUB}, s{sLIGHT}")
        m(f"s_lshl_b32 s{sT0}, s{sW}, 6")
        m(f"v_add_u32 v244, s{sT0}, v{vL}")
        m(f"s_lshl_b32 s{sT1}, s{sG}, 6")
        for h in range(2):
            m(f"v_add_u32 v27, s{sT1}, v244")
            if h:
                m(f"v_add_u32 v27, 256, v27")
            m(f"v_subrev_u32 v28, 448, v27")
            m(f"v_min_u32 v27, v27, v28")
            m(f"v_lshlrev_b32 v{52+h}, 1, v27")
        m(f"s_lshl_b32 s{sT0}, s{sUA}, 7")
        m(f"s_cmp_eq_u32 s{sLIGHT}, 1")
        m(f"s_cselect_b32 s{sT0}, {OOB}, s{sT0}")
        m(f"s_lshl_b32 s{sT1}, s{sUB}, 7")
        m(f"s_sub_u32 s{sT1}, s{sT1}, 128")
        m(f"s_mov_b32 s{sHI}, 0")
        m(f"s_mov_b32 s{sHI+1}, -1")
        m(f"v_mov_b32 v27, s{sT0}")
        m(f"v_mov_b32 v28, s{sT1}")
        m(f"v_cndmask_b32 v27, v27, v28, {s(sHI,2)}")
        m(f"v_lshl_add_u32 v54, v{vL}, 2, v27")
        m(f"v_mov_b32 v55, {E_OFF}")
        m(f"v_lshlrev_b32 v{vLIN}, 4, v{vL}")
        m(f"v_bfe_u32 v24, v{vL}, 2, 2")
        m(f"v_lshrrev_b32 v27, 5, v{vL}")
        m(f"v_bfe_u32 v28, v{vL}, 4, 1")
        m(f"v_and_b32 v29, 3, v{vL}")
        m(f"v_lshlrev_b32 v29, 3, v29")
        m(f"v_lshl_add_u32 v29, v28, 5, v29")
        m(f"v_lshl_add_u32 v40, v27, 3, v24")
        m(f"v_mul_u32_u24 v41, 192, v40")
        m(f"s_and_b32 s{sT0}, s{sC}, 1")
        m(f"s_lshl_b32 s{sT0}, s{sT0}, 3")
        m(f"s_add_u32 s{sT0}, s{sT0}, {R_Q}")
        m(f"v_add3_u32 v{vTRQ}, v41, v29, s{sT0}")
        m(f"v_lshrrev_b32 v41, 1, v24")
        m(f"v_lshl_add_u32 v29, v41, 6, v29")
        m(f"v_lshl_add_u32 v{vTRF0}, v40, 7, v29")
        m(f"v_xor_b32 v{vTRF1}, 64, v{vTRF0}")
        m(f"v_lshl_add_u32 v40, v27, 2, v24")
        m(f"v_lshl_add_u32 v40, v40, 7, v29")
        m(f"s_lshl_b32 s{sT0}, s{sW}, 3")
        m(f"s_lshr_b32 s{sT0}, 0x60204000, s{sT0}")
        m(f"s_and_b32 s{sOUT}, s{sT0}, 0xff")
        m(f"v_xor_b32 v40, s{sOUT}, v40")
        m(f"v_add_u32 v{vBT0}, s{sRING}, v40")
        m(f"v_xor_b32 v{vBT1}, 64, v{vBT0}")
        m(f"v_and_b32 v40, 31, v{vL}")
        m(f"v_bfe_u32 v41, v{vL}, 1, 3")
        m(f"v_xor_b32 v41, v41, v27")
        m(f"v_lshlrev_b32 v41, 4, v41")
        m(f"v_lshl_add_u32 v40, v40, 7, v41")
        m(f"v_add_u32 v{vXR}, s{sMX}, v40")
        for k in range(1, 4):
            m(f"v_xor_b32 v{vXR+k}, {32*k}, v{vXR}")
        m(f"v_lshlrev_b32 v{vTBL}, 3, v27")
        m(f"v_add_u32 v{vTBL}, {TB1 - TB1 % 2048}, v{vTBL}")
        m(f"v_and_b32 v40, 3, v{vL}")
        m(f"v_lshl_add_u32 v40, v27, 2, v40")
        m(f"v_bfe_u32 v41, v{vL}, 2, 3")
        m(f"v_lshl_add_u32 v40, v41, 3, v40")
        m(f"v_lshlrev_b32 v{vPV}, 4, v40")
        m(f"v_cmp_eq_u32 vcc, 0, v{vL}")
        m(f"v_mov_b32 v40, {OOB}")
        m(f"v_mov_b32 v{vK1}, {K1}")
        m(f"v_cndmask_b32 v{vL0}, v40, 0, vcc")
        m(f"s_lshl_b32 s{sT0}, s2, 2")
        m(f"s_add_u32 s{sT0}, s{sT0}, s{sW}")
        m(f"s_mul_i32 s{sT0}, s{sT0}, 49")
        m(f"s_lshr_b32 s{sPF1}, s{sT0}, 2")
        m(f"s_lshl_b32 s{sPF1}, s{sPF1}, 7")
        m(f"s_lshr_b32 s{sPF2}, s{sT0}, 4")
        m(f"s_lshl_b32 s{sPF2}, s{sPF2}, 7")
        m(f"s_mul_i32 s{sSLA}, s2, {OPT['pfa1'] - OPT['pfa0']}")
        m(f"s_lshr_b32 s{sSLA}, s{sSLA}, 8")
        m(f"s_mul_i32 s{sSLB}, s2, {OPT['pfb1'] - OPT['pfb0']}")
        m(f"s_lshr_b32 s{sSLB}, s{sSLB}, 8")
        for srd, size in ((S_W2, 1792 * 896), (S_WO, 448 * 896)):
            m(f"s_mov_b32 s{srd+2}, {size}")
            m(f"s_mov_b32 s{srd+3}, 0x20000")
        self.setup_later()
        self.store_addr()
        self.drain()
        m(f"v_lshrrev_b32 v41, 5, v{vL}")
        m(f"v_bfe_u32 v42, v{vL}, 4, 1")
        m(f"v_xor_b32 v41, v41, v42")
        m(f"v_bfe_u32 v40, v{vL}, 2, 2")
        m(f"v_lshl_add_u32 v40, v41, 3, v40")
        m(f"v_and_b32 v41, 1, v{vL}")
        m(f"v_lshl_add_u32 v40, v41, 2, v40")
        m(f"v_lshlrev_b32 v40, 4, v40")
        m(f"v_lshl_add_u32 v40, v42, 10, v40")
        m(f"v_bfe_u32 v41, v{vL}, 1, 1")
        m(f"v_lshl_add_u32 v40, v41, 3, v40")
        m(f"s_lshl_b32 s{sT1}, s{sW}, 11")
        m(f"s_add_u32 s{sT1}, s{sT1}, {KV+24576}")
        m(f"v_add_u32 v{vVA}, s{sT1}, v40")
        self.force(self.C)
        self.a.next_lat = OPT["miss"]
        e(f"buffer_load_dword v{vT}, v55, {s(S_WS,4)}, 0 offen sc1")
        for h in range(2):
            e(f"buffer_load_ushort v{245+h}, v{52+h}, {s(S_GW,4)}, 0 offen")
        e(f"s_mov_b32 m0, {TB1}")
        self.m0 = None
        self.tB1 = e(f"buffer_load_dword v54, {s(S_B1,4)}, 0 offen lds")
        m(f"s_lshl_b32 s{sT1}, s{sQB}, 4")
        m(f"s_add_u32 s{sT1}, s{sT1}, s{sJ}")
        m(f"s_lshl_b32 s{sF3P}, s{sT1}, 7")
        m(f"s_add_u32 s{sF3P}, s{sF3P}, {F3}")
        m(f"s_lshl_b32 s{sOS}, s{sT1}, 11")
        m(f"s_add_u32 s{sOS}, s{sOS}, {O_BASE}")
        m(f"s_lshl_b32 s{sT0}, s{sJ}, 6")
        m(f"s_add_u32 s{sKOFF}, s{sT0}, s{sKV0}")
        m(f"s_lshl_b32 s{sKOFF}, s{sKOFF}, 11")
        m(f"s_add_u32 s{sQOFF}, s{sT0}, s{sQB}")
        m(f"s_lshl_b32 s{sQOFF}, s{sQOFF}, 11")
        m(f"s_mul_i32 s{sMKV}, s{sW}, 6144")
        m(f"s_lshl_b32 s{sT0}, s{sQB}, 7")
        m(f"s_add_u32 s{sGQ}, s{sT0}, {G_BASE}")
        m(f"s_mov_b32 s{sK2}, {K2}")
        m(f"s_mov_b32 s{sK2+1}, {K2}")

    def setup_later(self):
        m = self.m
        m(f"s_and_b32 s{sT0}, s2, 7")
        m(f"s_and_b32 s{sT1}, s{sLOC}, 1")
        m(f"s_lshl_b32 s{sJ}, s{sT0}, 1")
        m(f"s_add_u32 s{sJ}, s{sJ}, s{sT1}")
        m(f"s_mul_i32 s{sT1}, s{sLOC}, 37")
        m(f"s_lshr_b32 s{sT1}, s{sT1}, 8")
        m(f"s_mul_i32 s{sCT}, s{sT1}, 7")
        m(f"s_sub_u32 s{sCT}, s{sLOC}, s{sCT}")
        m(f"s_cmp_lt_u32 s{sLOC}, 28")
        m(f"s_cselect_b32 s{sT1}, s{sT1}, s{sCT}")
        m(f"s_lshl_b32 s{sRB0}, s{sT0}, 2")
        m(f"s_add_u32 s{sRB0}, s{sRB0}, s{sT1}")
        m(f"s_lshl_b32 s{sRB0}, s{sRB0}, 1")
        m(f"s_mul_i32 s{sBOFF}, s{sW}, {448*896}")
        m(f"s_mul_i32 s{sAOFF}, s{sRB0}, 112")
        m(f"s_mul_i32 s{sT0}, s{sW}, 28")
        m(f"s_add_u32 s{sAOFF}, s{sAOFF}, s{sT0}")
        m(f"s_lshl_b32 s{sAOFF}, s{sAOFF}, 10")
        m(f"s_add_u32 s{sAOFF}, s{sAOFF}, {H_BASE}")
        m(f"s_lshl_b32 s{sAEND}, s{sRB0}, 2")
        m(f"s_add_u32 s{sAEND}, s{sAEND}, s{sW}")
        m(f"s_lshl_b32 s{sAEND}, s{sAEND}, 13")
        m(f"s_add_u32 s{sAEND}, s{sAEND}, {O_BASE}")
        m(f"s_mul_i32 s{sBEND}, s{sW}, {112*896}")
        m(f"s_lshl_b32 s{sGD}, s{sRB0}, 7")
        m(f"s_add_u32 s{sGD}, s{sGD}, {G_BASE}")
        m(f"s_lshl_b32 s{sT0}, s{sCT}, 12")
        m(f"s_add_u32 s{sT0}, s{sT0}, {32*896*OPT['pb0']}")
        m(f"s_cmp_lt_u32 s{sLOC}, 28")
        m(f"s_cselect_b32 s{sT0}, 0, s{sT0}")
        m(f"s_cselect_b32 s{sT1}, 0, {2048*OPT['pa0'] if OPT['ipf'] else OOB}")
        m(f"s_cselect_b32 s{sBT}, {32*896}, 0x4000" if False else f"s_cselect_b32 s{sBT}, 7, 4")
        m(f"s_cselect_b64 {s(sM3,2)}, -1, 0")
        m(f"s_lshl_b32 s{sBT}, s{sBT}, 12")
        m(f"s_add_u32 s{sBOFF}, s{sBOFF}, s{sT0}")
        m(f"s_add_u32 s{sAOFF}, s{sAOFF}, s{sT1}")
        m(f"s_lshl_b32 s{sF2O}, s{sRB0}, 11")
        m(f"s_add_u32 s{sF2O}, s{sF2O}, {F2}")
        m(f"v_lshrrev_b32 v24, 3, v{vL}")
        m(f"v_lshlrev_b32 v28, 2, v28")
        m(f"v_and_b32 v29, 7, v{vL}")
        m(f"v_xor_b32 v28, v28, v29")
        m(f"v_lshlrev_b32 v28, 4, v28")
        m(f"v_mul_u32_u24 v29, 3584, v24")
        m(f"s_mul_i32 s{sT0}, s{sW}, {16*3584}")
        m(f"v_add3_u32 v{vW1A0}, v29, v28, s{sT0}")
        m(f"v_add_u32 v{vW1A1}, {8*3584-1024}, v{vW1A0}")
        m(f"v_mul_u32_u24 v29, 896, v24")
        m(f"s_lshl_b32 s{sT0}, s{sCT}, 7")
        m(f"v_add3_u32 v{vBD}, v29, v28, s{sT0}")
        for k in range(1, 4):
            m(f"v_add_u32 v{vBD+k}, {k*(7168-1024)}, v{vBD}")
        for k in range(4):
            m(f"v_cndmask_b32 v{vBD+k}, v{vLIN}, v{vBD+k}, {s(sM3,2)}")
        m(f"s_lshl_b32 s{sMB}, s{sW}, 11")
        m(f"s_sub_u32 s{sMA}, s{sMB}, {64*128 - R_A}")
        m(f"s_add_u32 s{sMB}, s{sMB}, {R_B}")
        m(f"s_mul_i32 s{sT0}, s{sC}, 3")
        m(f"s_sub_u32 s{sNQ}, 16, s{sT0}")
        m(f"s_lshl_b32 s{sT0}, s{sT0}, 6")
        m(f"s_add_u32 s{sT0}, s{sT0}, s{sRB}")
        m(f"s_lshl_b32 s{sQS}, s{sT0}, 11")
        m(f"s_mul_i32 s{sT1}, s{sRB}, 28")
        m(f"s_add_u32 s{sT0}, s{sT1}, s{sUB}")
        m(f"s_lshl_b32 s{sT0}, s{sT0}, 12")
        m(f"s_add_u32 s{sHB}, s{sT0}, {H_BASE}")
        m(f"s_sub_u32 s{sHA}, s{sHB}, 4096")
        m(f"s_lshl_b32 s{sUA}, s{sUA}, 7")
        m(f"s_lshl_b32 s{sUB}, s{sUB}, 7")
        m(f"s_cmp_eq_u32 s{sLIGHT}, 1")
        m(f"s_cselect_b32 s{sHA}, {OOB}, s{sHA}")
        m(f"s_cselect_b32 s{sUA}, {OOB}, s{sUA}")
        m(f"s_cselect_b32 s{sMA}, {DUMMY}, s{sMA}")
        m(f"s_cselect_b32 s{sMAS}, 0, {64*128}")
        m(f"s_lshl_b32 s{sT0}, s{sRB}, 4")
        m(f"s_add_u32 s{sT0}, s{sT0}, s{sC}")
        m(f"s_lshl_b32 s{sT0}, s{sT0}, 7")
        m(f"s_add_u32 s{sF1}, s{sT0}, {F1}")
        m(f"s_lshl_b32 s{sT0}, s{sRB}, 7")
        m(f"s_add_u32 s{sGS}, s{sT0}, {G_BASE}")
        m(f"s_cmp_eq_u32 s{sC}, 3")
        m(f"s_cselect_b32 s{sGS}, s{sGS}, {OOB}")
        m(f"s_lshr_b32 s{sT0}, s{sLOC}, 1")
        m(f"s_lshl_b32 s{sT0}, s{sT0}, 2")
        m(f"s_add_u32 s{sQB}, s{sT0}, s{sW}")
        m(f"s_sub_u32 s{sFIRST}, 8, s{sQB}")
        m(f"s_max_i32 s{sFIRST}, s{sFIRST}, 0")
        m(f"s_mul_i32 s{sT1}, s{sW}, 3")
        m(f"s_add_u32 s{sT0}, s{sT0}, s{sT1}")
        m(f"s_sub_u32 s{sKV0}, s{sT0}, 8")
        m(f"s_mul_i32 s{sT2}, s{sJ}, 43")
        m(f"s_lshr_b32 s{sT2}, s{sT2}, 7")
        m(f"s_lshl_b32 s{sT1}, s{sQB}, 4")
        m(f"s_add_u32 s{sT2}, s{sT1}, s{sT2}")
        m(f"v_mov_b32 v{vF1A}, s{sT2}")
        for part, add in ((0, 16), (1, 32)):
            m(f"s_add_u32 s{sT2}, s{sJ}, {add}")
            m(f"s_mul_i32 s{sT2}, s{sT2}, 43")
            m(f"s_lshr_b32 s{sT2}, s{sT2}, 7")
            m(f"v_subrev_u32 v40, {3*part}, v{vL}")
            m(f"v_add_u32 v41, s{sKV0}, v40")
            m(f"v_cmp_gt_u32 {s(sM,2)}, 3, v40")
            m(f"v_cmp_le_i32 vcc, 0, v41")
            m(f"v_lshl_add_u32 v41, v41, 4, s{sT2}")
            m(f"s_and_b64 {s(sM,2)}, {s(sM,2)}, vcc")
            m(f"v_cndmask_b32 v{vF1A}, v{vF1A}, v41, {s(sM,2)}")
        m(f"v_lshlrev_b32 v{vF1A}, 7, v{vF1A}")
        m(f"v_add_u32 v{vF1A}, {F1}, v{vF1A}")
        m(f"v_bfe_u32 v40, v{vL}, 2, 1")
        m(f"v_and_b32 v41, 3, v{vL}")
        m(f"s_lshl_b32 s{sT0}, s{sW}, 2")
        m(f"v_add_u32 v41, s{sT0}, v41")
        m(f"v_cmp_gt_u32 vcc, 8, v{vL}")
        m(f"v_lshl_add_u32 v41, v40, 4, v41")
        m(f"v_and_b32 v40, 1, v{vL}")
        m(f"v_lshl_add_u32 v40, v40, 4, 3")
        m(f"v_cndmask_b32 v{vF23A}, v40, v41, vcc")
        m(f"s_sub_u32 s{sT0}, s{sQB}, s{sRB0}")
        m(f"s_lshl_b32 s{sT0}, s{sT0}, 4")
        m(f"s_add_u32 s{sT0}, s{sT0}, 3")
        m(f"v_cmp_gt_u32 vcc, 10, v{vL}")
        m(f"v_mov_b32 v40, s{sT0}")
        m(f"s_nop 0")
        m(f"v_cndmask_b32 v{vF23A}, v40, v{vF23A}, vcc")
        m(f"v_lshlrev_b32 v{vF23A}, 7, v{vF23A}")
        m(f"v_add_u32 v{vF23A}, s{sF2O}, v{vF23A}")
        m(f"s_mov_b32 s{sF2O}, 0")
        m(f"s_mul_i32 s{sT0}, s{sRB0}, {32*896}")
        m(f"s_lshl_b32 s{sT1}, s{sCT}, 7")
        m(f"s_add_u32 s{sT0}, s{sT0}, s{sT1}")
        m(f"s_add_u32 s{sOUT}, s{sOUT}, s{sT0}")

    def add_chunk(self, i):
        toks = self.ctok[i] = []
        lx = lw = OPT["lat0"] if i < 1 else None
        xs, ws = [], []
        for k in range(4):
            xs.append(Item(f"buffer_load_dwordx4 v{vXD+k}, {s(S_X,4)}, s{sCA} offen" + (f" offset:{1024*k}" if k else "") + NT(1) + " lds", toks,
                           pre=[f"s_lshl_b32 s{sCA}, s{sG+i}, 7"] if k == 0 else (), m0=(sMX, (i % 3) * 4096), lat=lx,
                           after=(lambda: self.xrd[i - 3] if len(self.xrd.get(i - 3, ())) == 4 else None) if i >= 3 and k == 0 else None))
        for k in range(3):
            ws.append(Item(f"buffer_load_dwordx4 v{vWQ+k}, {s(S_WQ,4)}, s{sCB} offen" + (f" offset:{1024*k}" if k else "") + NT(2) + " lds", toks,
                           pre=[f"s_mul_i32 s{sCB}, s{sG+i}, {64*2688}"] if k == 0 else (), m0=(sMQ, (i % 4) * 64 * 192), lat=lw))
        self.C.extend(xs + ws if i == 0 else ws + xs)
        self.clast = getattr(self, "clast", {})
        self.clast[i] = self.C[-1]

    def add_w1(self, unit, i):
        toks = self.wtok[(unit, i)] = []
        pre = [f"s_mul_i32 s{sCB}, s{sG+i}, {64*3584}", f"s_add_u32 s{sCB}, s{sCB}, s{sUA+unit}"]
        pre0 = [f"s_add_u32 s{sMA}, s{sMA}, s{sMAS}"] if unit == 0 else []
        for k in range(2):
            self.C.append(Item(f"buffer_load_dwordx4 v{vW1A0+k}, {s(S_W1,4)}, s{sCB} offen" + (" offset:1024" if k else "") + NT(4) + " lds", toks,
                               pre=pre if k == 0 else (), pre0=pre0 if k == 0 else (), m0=(sMB, i * 8192) if unit else (sMA, 0, i),
                               lat=OPT["miss"] if i < 4 else None))
        self.wlast = getattr(self, "wlast", {})
        self.wlast[(unit, i)] = self.C[-1]

    def gate_write(self):
        pe = self.pe
        pe(f"s_cmp_eq_u32 s{sLIGHT}, 1")
        pe(f"s_cselect_b64 {s(sM,2)}, -1, 0")
        pe(f"v_bfe_u32 v247, v244, 1, 1")
        pe(f"v_lshlrev_b32 v248, 7, v244")
        pe(f"v_lshl_add_u32 v248, v247, 6, v248")
        pe(f"v_mov_b32 v249, {DUMMY+2048}")
        pe(f"v_cndmask_b32 v247, v249, v248, {s(sM,2)}")
        pe(f"v_cmp_gt_u32 vcc, 192, v244")
        pe(f"v_add_u32 v248, {256*128}, v248")
        pe(f"s_and_b64 {s(sM,2)}, {s(sM,2)}, vcc")
        pe(f"ds_write_b16 v247, v245")
        pe(f"v_cndmask_b32 v248, v249, v248, {s(sM,2)}")
        pe(f"ds_write_b16 v248, v246")

    def store_addr(self):
        pe = self.pe
        for n, lim in ((0, 11), (1, 10)):
            pe(f"s_cmp_ge_u32 s{sC}, {lim}")
            pe(f"s_cselect_b64 {s(sM,2)}, -1, 0")
            pe(f"s_cselect_b32 s{sT0}, 128, 0")
            pe(f"v_cndmask_b32 v{24+2*n}, v{vLIN}, v{vPV}, {s(sM,2)}")
            pe(f"v_xor_b32 v{25+2*n}, s{sT0}, v{24+2*n}")

    def bias_init(self, acc, tbl, factor=None):
        for t in range(2):
            for mm in range(2):
                o = (tbl % 2048) // 8 + 8 * t + 4 * mm
                self.pe(f"ds_read2_b64 {v(acc+16*t+8+4*mm,4)}, v{vTBL} offset0:{o} offset1:{o+2}")
        for t in range(2):
            for k in range(8):
                src, dst = acc + 16 * t + 8 + k, acc + 16 * t + 2 * k
                self.pe(f"v_lshlrev_b32 v{dst}, 16, v{src}")
                self.pe(f"v_and_b32 v{dst+1}, 0xffff0000, v{src}")
        if factor:
            for k in range(16):
                self.pe(f"v_pk_mul_f32 {v(acc+2*k,2)}, {v(acc+2*k,2)}, {factor}")

    def rd_q(self, sidx, t):
        base = vWR + 12 * (sidx & 1) + 4 * t
        o = 56 * t + (sidx % 16) * 3072
        return [self.e(f"ds_read_b64_tr_b16 {v(base+2*h,2)}, v{vTRQ} offset:{o+768*h}") for h in range(2)]

    def rd_f(self, g, t):
        base = vWR + 8 * (g % 3) + 4 * t
        toks = self.ftok.setdefault(g, [])
        for h in range(2):
            toks.append(self.e(f"ds_read_b64_tr_b16 {v(base+2*h,2)}, v{vTRF0+t} offset:{(g%28)*2048+512*h}"))

    def rd_x(self, sidx):
        self.xrd.setdefault(sidx // 4, []).append(self.e(f"ds_read_b128 {v(vX+4*sidx,4)}, v{vXR+sidx%4} offset:{(sidx//4%3)*4096}"))

    def sync(self, st, last, toks, drain_lds=True):
        self.force(st, last)
        self.await_(toks)
        if drain_lds and self.a.lg:
            self.e("s_waitcnt lgkmcnt(0)")
        self.e("s_barrier")

    def await_(self, toks):
        while self.a.est(toks) > self.a.clk + 8 and self.side_wait(self.a.est(toks)):
            pass
        self.a.need(*toks)

    def force_p(self):
        while self.P:
            it = self.P[0]
            keep, self.P = self.P, deque()
            if it.after:
                self.await_(it.after())
            self.P = keep
            self.emit_item(self.P)

    def side_wait(self, until):
        a = self.a
        best = None
        for st in self.vm_streams() + (self.D,):
            if not st:
                continue
            it = st[0]
            t = a.allv[-1][0] if it.vm else a.clk
            if it.after:
                toks = it.after()
                if toks is None:
                    continue
                t = max(t, a.est(toks))
            t = max(t, a.clk)
            if t + 8 <= until and (best is None or t < best[0]):
                best = (t, st)
        if best:
            self.emit_item(best[1])
        return bool(best)

    def force_read(self, p):
        while not self.blast[p].done:
            it = self.D[0]
            if it.after:
                while it.after() is None:
                    if self.B[0].after:
                        self.a.need(*self.B[0].after())
                    self.emit_item(self.B)
                keep, self.D = self.D, deque()
                self.await_(it.after())
                self.D = keep
            self.emit_item(self.D)

    def prefetch_slot(self, sidx):
        if not OPT["wpf"]:
            return
        for reg, lo, hi, loads in ((sSLA, OPT["pfa0"], OPT["pfa1"], ((S_W1, 12, sPF1),)), (sSLB, OPT["pfb0"], OPT["pfb1"], ((S_W2, 12, sPF1), (S_WO, 3, sPF2)))):
            if lo <= sidx < hi:
                self.nlab += 1
                n = self.nlab
                self.e(f"s_cmp_eq_u32 s{reg}, {sidx - lo}")
                self.e(f"s_cbranch_scc1 L_pf{n}")
                self.a.label(f"L_pfb{n}")
                self.tail += [f"L_pf{n}:"]
                for srd, top, off in loads:
                    self.tail += [f"v_min_u32 v30, {top}, v{vL}", "v_lshlrev_b32 v30, 7, v30", f"buffer_load_dword a255, v30, {s(srd,4)}, s{off} offen"]
                self.tail += [f"s_branch L_pfb{n}"]

    def qkv(self):
        e = self.e
        qtok = {}
        self.sync(self.C, self.clast[1], self.ctok[0])
        self.stamp("chunk 0")
        self.add_chunk(2)
        self.rd_x(0)
        for n in range(4):
            qtok[n] = self.rd_q(*divmod(n, 3))
        self.rd_x(1)
        xq = deque([2, 3])
        for sidx in range(28):
            i = sidx // 4
            if sidx % 2 == 0:
                self.stamp(group=3)
            if sidx == 8:
                self.pe(f"v_add_u32 v{vT}, {TAG_STEP}, v{vT}")
                self.gate_write()
                self.push(lambda: self.a.need(self.tB1), 0)
                self.bias_init(vACC + 48, TB1)
            if sidx % 2 == 0:
                self.prefetch_slot(sidx // 2)
            self.a.need(*qtok[3 * sidx], *qtok[3 * sidx + 1], *qtok[3 * sidx + 2])
            for t in range(3):
                acc = v(vACC + 16 * t, 16)
                e(f"{MFMA} {acc}, {v(vWR+12*(sidx&1)+4*t,4)}, {v(vX+4*sidx,4)}, {acc if sidx else 0}")
                if t == 2 and sidx % 4 == 2:
                    if sidx < 26:
                        self.sync(self.C, self.clast[i + 2] if i < 5 else self.wlast[(0, 2)], self.ctok[i + 1], drain_lds=False)
                        if i + 3 < 7:
                            self.add_chunk(i + 3)
                        if i + 3 == 6:
                            for k in range(7):
                                self.add_w1(0, k)
                        xq.extend(range(4 * i + 4, 4 * i + 8))
                    else:
                        self.drain()
                        self.sync(self.C, self.wlast[(0, 2)], self.wtok[(0, 2)])
                n = 3 * sidx + t + 4
                if n < 84:
                    qtok[n] = self.rd_q(*divmod(n, 3))
                else:
                    self.rd_f((n - 84) >> 1, (n - 84) & 1)
                x = bool(xq)
                if x:
                    self.rd_x(xq.popleft())
                self.gap(8 if x else 12)

    QPK = (vTMP + 8, vACC + 40, vACC + 32)

    def qkv_pack(self, t):
        pe = self.pe
        acc, dst = vACC + 16 * t, self.QPK[t]
        pe(f"s_cmp_gt_i32 s{sNQ}, {t-16}")
        pe(f"s_cselect_b32 s{sT0}, 0x3f803f80, s{sT3}")
        pe(f"s_cselect_b32 s{sT2}, s{sT3}, 0")
        pe(f"s_cmp_gt_i32 s{sNQ}, {t}")
        pe(f"s_cselect_b32 s{sT1}, {QSCALE}, 1.0")
        pe(f"s_cselect_b32 s{sT0}, 0, s{sT0}")
        pe(f"s_cselect_b32 s{sT2}, 0, s{sT2}")
        pe(f"v_mov_b32 v28, s{sT0}")
        pe(f"v_mov_b32 v29, s{sT2}")
        for k in range(16):
            pe(f"v_mul_f32 v{acc+k}, s{sT1}, v{acc+k}")
        def store(half):
            pre = [f"s_add_u32 s{sCA}, s{sQS}, {t*64*2048}"] if half == 0 else ()
            self.C.append(Item(f"buffer_store_dwordx4 {v(dst+4*half,4)}, v{24+2*(t>>1)+half}, {s(S_WS,4)}, s{sCA} offen offset:{1024*half} sc1",
                               self.tQKV, pre=pre))
            self.lastS = self.C[-1]
        for k in range(8):
            pe(f"v_cvt_pk_bf16_f32 v{dst+k}, v{acc+2*k}, v{acc+2*k+1}")
            if k == 3:
                self.push(lambda: store(0), 0)
        pe(f"v_cndmask_b32 v{dst+6}, v{dst+6}, v28, {s(sHI,2)}")
        pe(f"v_cndmask_b32 v{dst+7}, v{dst+7}, v29, {s(sHI,2)}")
        self.push(lambda: store(1), 0)

    def b_slot(self, p):
        return (RING - RED) + (p % 6) * 4096 if p % 6 < 3 else (p % 6 - 3) * 4096

    def b_dma(self, p):
        toks = self.btok[p] = []
        out = []
        off = sBOFF if p < 14 else sBEND
        pre = [] if p in (0, 14) else [f"s_add_u32 s{off}, s{off}, " + (f"s{sBT}" if p < 14 else f"{28*896}")]
        post = []
        for k in range(4):
            out.append(Item(f"buffer_load_dwordx4 v{vBD+k}, {s(S_W2 if p < 14 else S_WO,4)}, s{off} offen" + (f" offset:{1024*k}" if k else "") + NT(8) + " lds",
                            toks, pre=pre if k == 0 else (), post=post if k == 3 else (), m0=(sRING, self.b_slot(p)),
                            lat=OPT["miss"] if p < 4 or p >= 14 else None,
                            after=(lambda: self.btr[p - 6] if len(self.btr.get(p - 6, ())) == 8 else None) if k == 0 and p >= 6 else None))
            out[-1].due = min(p, 14 + (p - 14) // 2) - 5
        return out

    def b_read(self, p):
        toks = self.btr[p] = []
        out = []
        for ks in range(2):
            for t in range(2):
                out.append(Item([f"ds_read_b64_tr_b16 {a_(16*(p%16)+8*ks+4*t+2*h,2)}, v{vBT0+t} offset:{self.b_slot(p)+ks*2048+h*1024}" for h in range(2)],
                                toks, after=(lambda: self.btok[p] if len(self.btok[p]) == 4 else None) if ks + t == 0 else None))
        self.blast[p] = out[-1]
        return out

    def gelu_two(self, acc, soff, n, packed):
        pe = self.pe
        T = vTMP + 12
        U = [acc + 2 * n, acc + 2 * n + 2]
        R = [T, T + 2]
        if packed:
            for u, r in zip(U, R):
                pe(f"v_pk_mul_f32 {v(r,2)}, {v(u,2)}, {v(u,2)}")
                pe(f"v_pk_fma_f32 {v(r,2)}, {v(r,2)}, {s(sK2,2)}, {v(vK1,2)} op_sel_hi:[1,1,0]")
                pe(f"v_pk_mul_f32 {v(r,2)}, {v(r,2)}, {v(u,2)}")
            for k in range(4):
                pe(f"v_exp_f32 v{T+k}, v{T+k}")
            for r in R:
                pe(f"v_pk_add_f32 {v(r,2)}, {v(r,2)}, 1.0 op_sel_hi:[1,0]")
            for k in range(4):
                pe(f"v_rcp_f32 v{T+k}, v{T+k}")
            for u, r in zip(U, R):
                pe(f"v_pk_mul_f32 {v(r,2)}, {v(r,2)}, {v(u,2)}")
        else:
            u = U[0]
            for k in range(4):
                pe(f"v_mul_f32 v{T+k}, v{u+k}, v{u+k}")
                pe(f"v_fma_f32 v{T+k}, v{T+k}, s{sK2}, v{vK1}")
                pe(f"v_mul_f32 v{T+k}, v{T+k}, v{u+k}")
            for k in range(4):
                pe(f"v_exp_f32 v{T+k}, v{T+k}")
            for k in range(4):
                pe(f"v_add_f32 v{T+k}, 1.0, v{T+k}")
            for k in range(4):
                pe(f"v_rcp_f32 v{T+k}, v{T+k}")
            for k in range(4):
                pe(f"v_mul_f32 v{T+k}, v{T+k}, v{u+k}")
        for d in range(2):
            pe(f"v_cvt_pk_bf16_f32 v{acc+n+d}, v{T+2*d}, v{T+2*d+1}")
        if n % 4 == 2:
            fr = n // 4
            self.push(lambda: self.C.append(Item(
                f"buffer_store_dwordx4 {v(acc+4*fr,4)}, v{vLIN}, {s(S_WS,4)}, s{soff} offen offset:{fr*1024} sc1", self.tH)), 0)

    def ffn(self, unit):
        e = self.e
        acc0 = vACC + 48 if unit == 0 else vACC
        for sidx in range(28):
            g = 28 * unit + sidx
            if sidx % 4 == 0:
                self.stamp(group=2)
            self.hook(f"ffn{unit}_{sidx}")
            self.a.need(*self.ftok[g])
            for t in range(2):
                acc = v(acc0 + 16 * t, 16)
                e(f"{MFMA} {acc}, {v(vWR+8*(g%3)+4*t,4)}, {v(vX+4*sidx,4)}, {acc}")
                if t == 0 and g in (10, 34, 42):
                    k = {10: (0, 6), 34: (1, 3), 42: (1, 6)}[g]
                    self.sync(self.C, self.wlast[k], self.wtok[k], drain_lds=False)
                if t == 0 and g == 26:
                    if True:
                        self.drain("biasb")
                        self.sync(self.C, self.wlast[(1, 1)], self.wtok[(1, 1)])
                        e(f"v_add_u32 v{vTRF0}, {R_B-R_A}, v{vTRF0}")
                        e(f"v_add_u32 v{vTRF1}, {R_B-R_A}, v{vTRF1}")
                        self.add_w1(1, 6)
                        self.B.extend(self.b_dma(3) + self.b_dma(4) + self.b_dma(5))
                        for p in range(6, OPT["bpre"]):
                            self.B.extend(self.b_dma(p))
                        for p in range(OPT["bpre"] - 6):
                            self.D.extend(self.b_read(p))
                if g + 2 < 56:
                    self.rd_f(g + 2, t)
                self.gap(12)

    def phase1(self):
        e, pe, m = self.e, self.pe, self.m
        self.btok, self.btr, self.blast = {}, {}, {}
        self.tQKV, self.tH, tG = [], [], []
        self.qkv()
        self.stamp("qkv done")
        e(f"s_cmp_lt_u32 s{sLOC}, 28")
        if not OPT["ipf"]:
            e(f"s_cselect_b32 s{S_W2+2}, {1792*896}, 0")
        e(f"s_cselect_b32 s{S_WO+2}, {448*896}, 0")
        if OPT["null"] & 1:
            e(f"s_mov_b32 s{S_W2+2}, 0")
            e(f"s_mov_b32 s{S_WO+2}, 0")
        if OPT["null"] & 2:
            e(f"s_mov_b32 s{sAOFF}, {OOB}")
            e(f"s_mov_b32 s{sAEND}, {OOB}")
        if OPT["null"] & 4:
            e(f"s_mov_b32 s{sHA}, {OOB}")
            e(f"s_mov_b32 s{sHB}, {OOB}")
            e(f"s_mov_b32 s{sQS}, {OOB}")
            e(f"s_mov_b32 s{sOS}, {OOB}")
        if OPT["null"] & 8:
            e(f"s_mov_b32 s{sKOFF}, {OOB}")
            e(f"s_mov_b32 s{sQOFF}, {OOB}")
        if OPT["null"] & 16:
            e(f"s_mov_b32 s{S_W1+2}, 0")
        pub1 = self.publish(sF1, self.tQKV, 6)
        nw = OPT["wbfirst"]
        for k in range(nw):
            self.add_w1(1, k)
        pe(f"s_movk_i32 s{sT3}, 0x3f80")
        self.qkv_pack(2)
        if nw < 2:
            self.push(lambda: self.add_w1(1, 1), 0)
        self.qkv_pack(1)
        self.qkv_pack(0)
        self.push(lambda: [self.add_w1(1, k) for k in range(max(nw, 2), 6)], 0)
        self.bias_init(vACC, TB1 + 128)
        self.mark("biasb")
        b012 = self.b_dma(0) + self.b_dma(1) + self.b_dma(2)
        self.hooks[f"ffn0_{OPT['bstart']}"] = lambda: self.B.extend(b012)
        self.ffn(0)
        self.force(self.C, self.lastS)
        self.stamp("ffn a done")
        accA = vACC + 48
        pe(f"v_mul_f32 v{vGATE}, {fbits(-math.log2(math.e))}, v{accA}")
        pe(f"v_exp_f32 v{vGATE}, v{vGATE}")
        pe(f"v_and_b32 v{vGA}, 31, v{vL}")
        pe(f"v_add_f32 v{vGATE}, 1.0, v{vGATE}")
        pe(f"v_lshlrev_b32 v{vGA}, 2, v{vGA}")
        pe(f"v_rcp_f32 v{vGATE}, v{vGATE}")
        pe(f"v_mov_b32 v{vTMP}, {OOB}")
        pe(f"v_cndmask_b32 v{vTMP}, v{vGA}, v{vTMP}, {s(sHI,2)}")
        self.push(lambda: self.C.append(Item(f"buffer_store_dword v{vGATE}, v{vTMP}, {s(S_WS,4)}, s{sGS} offen sc1", self.tH)), 0)
        ga = deque(range(0, 16, 2))
        while ga and ga[0] < OPT["npairs"]:
            self.gelu_two(accA, sHA, ga.popleft(), False)
        self.hooks[f"ffn1_{OPT['pub1']}"] = lambda: self.force(self.P, pub1)
        self.hooks[f"ffn1_{OPT['poll1']}"] = lambda: self.poll_item(vF1A, 0)
        self.ffn(1)
        self.hook("ffn1_28")
        e("s_barrier")
        self.stamp("ffn b done")
        m(f"v_lshlrev_b32 v{vTMP+1}, 2, v{vL}")
        self.tB2 = []
        self.C.append(Item(f"buffer_load_dword v{vTMP+1}, {s(S_B2,4)}, s{sCB} offen lds", self.tB2,
                           pre=[f"s_lshl_b32 s{sCB}, s{sCT}, 7"], m0=(None, TB2), lat=OPT["miss"]))
        self.b2item = self.C[-1]
        self.drain()
        k = 0
        for acc, soff, todo in ((accA, sHA, ga), (vACC, sHB, range(0, 16, 2))):
            for n in todo:
                if k == OPT["chk1"]:
                    self.drain(every=OPT["gev"])
                    self.poll_check(vF1A, 0)
                    self.att_loads()
                self.gelu_two(acc, soff, n, True)
                k += 1
        self.drain(every=OPT["gev"])
        self.stamp("gelu done")

    def att_loads(self):
        self.tKV = []
        items = []
        for bb in range(3):
            for part in range(2):
                pre = ([f"s_add_u32 s{sCA}, s{sKOFF}, {16*64*2048+2048*bb}", f"s_cmp_lt_i32 s{sKV0}, {-bb}", f"s_cselect_b32 s{sCA}, {OOB}, s{sCA}"]
                       if part == 0 else [f"s_add_u32 s{sCA}, s{sCA}, {16*64*2048}"])
                for k in range(2):
                    items.append(Item(f"buffer_load_dwordx4 v{vLIN}, {s(S_WS,4)}, s{sCA} offen" + (" offset:1024" if k else "") + " sc1 lds",
                                      self.tKV, pre=pre if k == 0 else (), m0=(sMKV, KV + 24576 * part + 2048 * bb), lat=OPT["miss"]))
        for k in range(2):
            items.append(Item(f"buffer_load_dwordx4 {v(vQ+4*k,4)}, v{vLIN}, {s(S_WS,4)}, s{sQOFF} offen offset:{1024*k} sc1", self.tKV, lat=OPT["miss"]))
        self.C.extendleft(reversed(items))
        self.kvlast = items[-1]

    def rd_k(self, n, em=None):
        for k in range(2):
            (em or self.m)(f"ds_read_b128 {v(vKR+8*(n%3)+4*k,4)}, v{vKA} offset:{(n%9)*2048+k*1024}")

    def rd_v(self, i, st):
        for h in range(2):
            self.e(f"ds_read_b64_tr_b16 {v(vVR+4*st+2*h,2)}, v{vVA} offset:{i*2048+256*(2*st+h)}")

    def qk(self, i, k):
        S = v(vS + 16 * (i & 1), 16)
        C = S if k else v(vM0 if i == 0 else vM8 if i == 8 else vCD, 16)
        self.e(f"{MFMA} {S}, {v(vKR+8*(i%3)+4*k,4)}, {v(vQ+4*k,4)}, {C}")

    def patch(self, i, src):
        if not 2 <= i <= 7 and src == "0":
            return
        self.nlab += 1
        n = self.nlab
        self.e(f"s_cmp_eq_u32 s{sFIRST}, {i}" if src == "0" else f"s_cmp_gt_u32 s{sFIRST}, 1")
        self.e(f"s_cbranch_scc1 L_pat{n}")
        self.a.label(f"L_patb{n}")
        self.tail += [f"L_pat{n}:", "s_nop 7"] + [f"v_mov_b32 v{vCD+k}, {src}" for k in range(16)] + ["s_nop 1", f"s_branch L_patb{n}"]

    def attention(self):
        e, pe, m = self.e, self.pe, self.m
        m(f"v_and_b32 v26, 31, v{vL}")
        m(f"v_lshrrev_b32 v27, 5, v{vL}")
        m(f"v_lshlrev_b32 v28, 2, v27")
        m(f"v_sub_u32 v26, v26, v28")
        m(f"s_cmp_gt_u32 s{sFIRST}, 0")
        m(f"s_cselect_b32 s{sT0}, {NINF}, 0")
        m(f"v_mov_b32 v28, s{sT0}")
        m(f"v_mov_b32 v29, {NINF}")
        m(f"s_cmp_gt_u32 s{sFIRST}, 1")
        m(f"s_cselect_b32 s{sT0}, {NINF}, 0")
        prs = (sM, sM3)
        for j0 in range(0, 16, 2):
            for d in range(2):
                jj = j0 + d
                m(f"v_cmp_le_i32 {s(prs[d],2)}, {(jj&3)+8*(jj>>2)}, v26")
            for d in range(2):
                m(f"v_mov_b32 v{vCD+j0+d}, s{sT0}")
            for d in range(2):
                jj = j0 + d
                m(f"v_cndmask_b32 v{vM8+jj}, v29, 0, {s(prs[d],2)}")
                m(f"v_cndmask_b32 v{vM0+jj}, v28, v29, {s(prs[d],2)}")
        m(f"s_lshl_b32 s{sT1}, s{sW}, 11")
        m(f"s_add_u32 s{sT1}, s{sT1}, {KV}")
        m(f"v_add_u32 v{vKA}, s{sT1}, v{vLIN}")
        m(f"v_mov_b32 v{vMX}, {NINF}")
        m(f"v_mov_b32 v{vMX+1}, {NINF}")
        m(f"v_add_u32 v{vA1H}, {112*1024}, v{vLIN}")
        self.sync(self.C, self.kvlast, self.tKV, drain_lds=False)
        self.stamp("kv in")
        pub2 = self.publish(sT3, self.tH, 9, pre=[f"s_add_u32 s{sT3}, s{sF1}, {F2-F1}"])
        self.rd_k(0)
        self.rd_k(1)
        for i in range(10):
            if i % 2 == 0:
                self.stamp(group=4)
            if i < 9:
                self.patch(i, "0")
                self.qk(i, 0)
                self.rd_k(i + 2, e)
                self.qk(i, 1)
                self.cluster()
            if i > 0:
                S = vS + 16 * ((i - 1) & 1)
                for k in range(8):
                    e(f"v_max3_f32 v{vMX+(k&1)}, v{S+2*k}, v{S+2*k+1}, v{vMX+(k&1)}")
        m(f"v_max_f32 v{vMX}, v{vMX}, v{vMX+1}")
        m(f"v_mov_b32 v{vMX+1}, v{vMX}")
        m(f"v_permlane32_swap_b32 v{vMX}, v{vMX+1}")
        m(f"v_max_f32 v{vMX}, v{vMX}, v{vMX+1}")
        m(f"v_cvt_pk_bf16_f32 v26, -v{vMX}, -v{vMX}")
        m(f"v_lshlrev_b32 v26, 16, v26")
        m(f"v_sub_f32 v26, -v{vMX}, v26")
        m(f"v_cvt_pk_bf16_f32 v27, -v{vMX}, v26")
        m(f"v_and_b32 v28, 0xffff0000, v27")
        m(f"v_sub_f32 v26, v26, v28")
        m(f"v_cndmask_b32 v{vQ+6}, v{vQ+6}, v27, {s(sHI,2)}")
        m(f"v_cvt_pk_bf16_f32 v26, v26, 0")
        self.patch(1, "v29")
        m(f"v_cndmask_b32 v{vQ+7}, v{vQ+7}, v26, {s(sHI,2)}")
        self.qk(0, 0)
        self.rd_k(2)
        self.qk(0, 1)
        self.stamp("pass 1 done")
        O = v(vO, 16)
        for i in range(9):
            S = vS + 16 * (i & 1)
            ex = lambda k: e(f"v_exp_f32 v{S+k}, v{S+k}")
            cv = lambda k: e(f"v_cvt_pk_bf16_f32 v{vP+k}, v{S+2*k}, v{S+2*k+1}")
            self.stamp(group=4)
            if i == OPT["chk0"]:
                self.force(self.C)
                self.force_p()
            if i == OPT["poll2"]:
                self.poll_item(vF23A, f"s{sF2O}")
            if i == OPT["chk2"]:
                self.de_start()
            if i < 8:
                self.patch(i + 1, "0")
                self.qk(i + 1, 0)
            self.rd_v(i, 0)
            self.rd_v(i, 1)
            self.cluster(1)
            for k in range(4):
                ex(k)
            if i < 8:
                self.qk(i + 1, 1)
            self.cluster()
            for k in range(4, 9):
                ex(k)
            for k in range(4):
                cv(k)
            ex(9)
            ex(10)
            e(f"{MFMA} {O}, {v(vVR,4)}, {v(vP,4)}, {O if i else 0}")
            if i < 6:
                self.rd_k(i + 3, e)
            self.cluster(1)
            for k in range(11, 16):
                ex(k)
            for k in range(4, 8):
                cv(k)
            self.cluster()
            e(f"{MFMA} {O}, {v(vVR+4,4)}, {v(vP+4,4)}, {O}")
        self.force(self.C, self.b2item)
        self.a.need(*self.tB2)
        m(f"v_lshrrev_b32 v26, 1, v{vGA}")
        m(f"ds_read_u16 v{vBI}, v26 offset:{TB2}")
        m(f"ds_read_u16 v{vBI+4}, v26 offset:{TB2+64}")
        m(f"s_cmp_eq_u32 s{sW}, 0")
        m(f"s_cselect_b32 s{sT0}, 0x3f80, 0")
        m(f"v_mov_b32 v26, s{sT0}")
        for k in (1, 2, 3, 5, 6, 7, 9, 10, 11):
            m(f"v_mov_b32 v{vBI+k}, 0")
        m(f"v_cndmask_b32 v{vBI+8}, v26, 0, {s(sHI,2)}")
        self.force(self.C, self.gitem)
        m(f"v_mov_b32 v{vMX}, v{vO+12}")
        m(f"v_mov_b32 v{vMX+1}, v{vO+12}")
        m(f"v_permlane32_swap_b32 v{vMX}, v{vMX+1}")
        m(f"v_rcp_f32 v{vMX}, v{vMX+1}")
        m(f"v_mul_f32 v{vMX}, v{vMX}, v{vGATE}")
        for k in range(8):
            m(f"v_pk_mul_f32 {v(vO+2*k,2)}, {v(vO+2*k,2)}, {v(vMX,2)} op_sel_hi:[1,0]")
        self.tO = []
        for k in range(8):
            m(f"v_cvt_pk_bf16_f32 v{vP+k}, v{vO+2*k}, v{vO+2*k+1}")
            if k == 3:
                self.P.append(Item(f"buffer_store_dwordx4 {v(vP,4)}, v{vLIN}, {s(S_WS,4)}, s{sOS} offen sc1", self.tO))
        m(f"v_cndmask_b32 v{vP+6}, v{vP+6}, 0, {s(sHI,2)}")
        self.P.append(Item(f"buffer_store_dwordx4 {v(vP+4,4)}, v{vLIN}, {s(S_WS,4)}, s{sOS} offen offset:1024 sc1", self.tO))
        self.drain()
        self.force(self.P)
        self.stamp("attention done")

    def ar(self, p, k):
        if p >= 14:
            return a_(32 + 16 * (p - 14) + 4 * k, 4)
        return v((64, 80, 104, 120, 24)[p % OPT["depth"]] + 4 * k, 4)

    def a_load(self, p):
        for n in range(4):
            if p < 14:
                ad, so, imm = (vLIN, vA1H)[n & 1], sAOFF, 1024 * (n >> 1)
                pre = [f"s_add_u32 s{sAOFF}, s{sAOFF}, 2048"] if p and n == 0 else ()
            else:
                ad, so, imm = vLIN, sAEND, 1024 * n
                pre = [f"s_add_u32 s{sAEND}, s{sAEND}, {(0, 4096, 32768-4096, 4096)[p-14]}"] if p > 14 and n == 0 else ()
            self.C.append(Item(f"buffer_load_dwordx4 {self.ar(p,n)}, v{ad}, {s(S_WS,4)}, s{so} offen offset:{imm} sc1",
                               self.atok.setdefault(p, []), pre=pre, lat=OPT["miss2"]))
            self.C[-1].due = p - 3 if p < 14 else p - 4
        self.alast[p] = self.C[-1]

    def de_start(self):
        e = self.e
        self.alast, self.atok = {}, {}
        self.poll_check(vF23A, f"s{sF2O}")
        for p in range(OPT["depth"]):
            self.a_load(p)
        self.C.append(Item(f"buffer_load_dword v{vGATE}, v{vGA}, {s(S_WS,4)}, s{sGQ} offen sc1", lat=OPT["miss"]))
        self.C.rotate(1)
        self.gitem = self.C[0]
        for rb in range(2):
            self.C.append(Item(f"buffer_load_dword v{vG+rb}, v{vGA}, {s(S_WS,4)}, s{sGD} offen offset:{128*rb} sc1", lat=OPT["miss"]))
            self.C[-1].due = 1

    def de(self):
        e, pe, m = self.e, self.pe, self.m
        e(f"s_cmp_ge_u32 s{sLOC}, 28")
        e("s_cbranch_scc1 L_idle")
        started = sum(1 for p in range(4) if self.atok.get(p))
        self.bfirst = True
        for p in range(OPT["bpre"], 18):
            self.B.extend(self.b_dma(p))
        for p in range(OPT["bpre"] - 6, 16):
            self.D.extend(self.b_read(p))
        self.publish(sF3P, self.tO, 2)

        def mm(p, n):
            if p < 14:
                ks, qd = (n & 1, n >> 1) if p == 13 else (n >> 2, n & 3)
                B, A = 16 * p + 8 * ks + 4 * (qd & 1), self.ar(p, 2 * ks + (qd >> 1))
            else:
                fr, t = (n >> 1, n & 1) if p in (14, 16) else (n & 3, 1 - (n >> 2))
                qd = 2 * ((p - 14) >> 1) + t
                B, A = (16 * (14 + 2 * (p & 1)) + 8 * fr + 4 * t) % 256, self.ar(p, fr)
            acc = v(vAB + 16 * qd, 16)
            e(f"{MFMA} {acc}, {a_(B,4)}, {A}, {0 if p == 0 and n < 4 else acc}")

        def scale(qd):
            for k in range(16):
                pe(f"v_mul_f32 v{vAB+16*qd+k}, v{vG+(qd>>1)}, v{vAB+16*qd+k}")

        def put(rb, i):
            h, k = (1, 3, 2)[i >> 1], i & 1
            e(f"ds_write_b128 v24, {v(vAB+32*rb+16*(h&1)+8*(h>>1)+4*k,4)} offset:{rb*(RING-RED)+h*2048+k*1024}")

        def get(rb):
            R, S = 208, vAB + 32 * rb
            for h in range(1, 4):
                for k in range(2):
                    pe(f"ds_read_b128 {v(R+8*h+4*k,4)}, v{24+h} offset:{rb*(RING-RED)+k*1024}")
            for h in range(1, 4):
                if rb:
                    for k in range(4):
                        pe(f"v_pk_add_f32 {v(S+2*k,2)}, {v(S+2*k,2)}, {v(R+8*h+2*k,2)}")
                else:
                    for k in range(8):
                        pe(f"v_add_f32 v{S+k}, v{S+k}, v{R+8*h+k}")
            for k in range(4):
                pe(f"v_cvt_pk_bf16_f32 v{32+4*rb+k}, v{S+2*k}, v{S+2*k+1}")
            if rb:
                pe(f"s_add_u32 s{sOUT}, s{sOUT}, {32*896}")
            for d in range(2):
                pe(f"v_permlane32_swap_b32 v{32+4*rb+d}, v{32+4*rb+2+d}")
            pe(f"buffer_store_dwordx4 {v(32+4*rb,4)}, v28, {s(S_OUT,4)}, s{sOUT} offen")

        for p in range(18):
            if p < 6 or p >= 9:
                self.stamp(group=5)
            self.force(self.C if p < 14 else self.B, self.alast[p])
            for pb in ([p] if p < 14 else [14 + 2 * (p & 1), 15 + 2 * (p & 1)]):
                self.force_read(pb)
            self.await_(self.atok[p][:2])
            if p in (1, 2):
                self.D.extend(self.b_read(15 + p))
            if p == 3:
                for qd in range(4):
                    acc = v(vAB + 16 * qd, 16)
                    e(f"{MFMA} {acc}, {v(vBI+4*(qd&1),4)}, {v(vBI+8,4)}, {acc}")
                    self.side()
            if p == OPT["poll3"]:
                e(f"s_add_u32 s{sF2O}, s{sF2O}, {F3-F2}")
                self.poll_item(vF23A, f"s{sF2O}")
            if p == 11:
                pe(f"v_add_u32 v24, s{sRING}, v{vLIN}")
                for h in range(1, 4):
                    pe(f"s_xor_b32 s{sT0}, s{sW}, {h}")
                    pe(f"s_mul_i32 s{sT0}, s{sT0}, 12288")
                    pe(f"s_add_u32 s{sT0}, s{sT0}, {RED+2048*h}")
                    pe(f"v_add_u32 v{24+h}, s{sT0}, v{vLIN}")
                pe(f"v_and_b32 v28, 31, v{vL}")
                pe(f"v_mul_u32_u24 v28, 896, v28")
                pe(f"v_lshrrev_b32 v29, 5, v{vL}")
                pe(f"v_lshl_add_u32 v28, v29, 4, v28")
                for rb in range(2):
                    pe(f"v_sub_f32 v{vG+rb}, 1.0, v{vG+rb}")
            if p == 14:
                self.drain()
            if p == 16:
                self.drain()
            for n in range(8):
                mm(p, n)
                if p == 13 and n in (3, 5):
                    scale((n - 3) >> 1)
                if p == 14 and n == 0:
                    scale(2)
                    scale(3)
                if p in (15, 17) and n >= 6:
                    put(p >> 4, n - 6)
                elif p == 16 and n < 4:
                    put(0, n + 2)
                if p == 16 and n == 5:
                    e("s_waitcnt lgkmcnt(0)")
                    e("s_barrier")
                    get(0)
                self.gap(32 if p == 13 else 8 if p == 16 and n < 7 else 24)
            if p + OPT["depth"] < 14:
                self.a_load(p + OPT["depth"])
            if p == OPT["chk3"]:
                self.poll_check(vF23A, f"s{sF2O}")
                keep, self.C = self.C, deque()
                for q in range(14, 18):
                    self.a_load(q)
                self.B.extend(self.C)
                self.C = keep
        self.stamp("pair 17 done")
        assert not self.q
        for i in range(2, 6):
            put(1, i)
        e("s_waitcnt lgkmcnt(0)")
        e("s_barrier")
        get(1)
        self.drain()
        self.stamp("end")
        self.write_stamps()
        e("s_endpgm")
        self.a.label("L_idle")
        self.a.vm, self.a.lg = [], []
        n = 0
        todo = range(started, 14 - OPT["pa0"]) if OPT["ipf"] else []
        for q in todo:
            e(f"s_add_u32 s{sAOFF}, s{sAOFF}, 2048")
            for k in range(4):
                self.a._push(Ins(f"buffer_load_dwordx4 {v(64+4*k,4)}, v{(vLIN, vA1H)[k & 1]}, {s(S_WS,4)}, s{sAOFF} offen offset:{1024*(k>>1)} sc1"))
                n += 1
            if n == 8:
                e(f"s_waitcnt vmcnt({n})")
                e(self.pub_text(sF3P))
        if n < 8:
            e(f"s_waitcnt vmcnt({n})")
            e(self.pub_text(sF3P))
        if OPT["ipf"]:
            e(f"s_add_u32 s{sF2O}, s{sF2O}, {F3-F2}")
            e(f"buffer_load_dword {v(vPOLL)}, {v(vF23A)}, {s(S_WS,4)}, s{sF2O} offen sc1")
            self.poll_check(vF23A, f"s{sF2O}")
            for q in range(4):
                for k in range(4):
                    self.a._push(Ins(f"buffer_load_dwordx4 {v(64+4*k,4)}, v{vLIN}, {s(S_WS,4)}, s{sAEND} offen offset:{1024*k} sc1"))
                if q < 3:
                    e(f"s_add_u32 s{sAEND}, s{sAEND}, {(4096, 32768-4096, 4096)[q]}")
        e("s_cmp_lg_u32 s2, 248")
        e("s_cbranch_scc1 L_end")
        e(f"s_cmp_lg_u32 s{sW}, 0")
        e("s_cbranch_scc1 L_end")
        e(f"v_lshlrev_b32 v24, 7, v{vL}")
        e(f"s_mov_b32 s{sSPIN}, 0")
        self.a.label("L_ep")
        for k in range(16):
            e(f"s_mov_b32 s{sT0}, {F1+8192*k}")
            e(f"buffer_load_dword v{40+k}, v24, {s(S_WS,4)}, s{sT0} offen sc1")
        e(f"s_add_u32 s{sSPIN}, s{sSPIN}, 1")
        e("s_waitcnt vmcnt(0)")
        for k in range(16):
            e(f"v_xor_b32 v{40+k}, v{vT}, v{40+k}")
        for k in range(1, 16):
            e(f"v_or_b32 v40, v40, v{40+k}")
        e(f"v_cmp_ne_u32 vcc, 0, v40")
        e(f"s_cmp_gt_u32 s{sSPIN}, 0x8000")
        e("s_cbranch_scc1 L_epd")
        e("s_cbranch_vccnz L_ep")
        self.a.label("L_epd")
        e(f"s_mov_b32 s{sT0}, {E_OFF}")
        e(self.pub_text(sT0))

    def write_stamps(self):
        e = self.e
        if OPT["probe"]:
            e(f"s_sub_u32 s{sT0}, s{sP0+1}, s{sP0}")
            e(f"s_lshl_b32 s{sT0}, s{sT0}, 2")
            e(f"s_add_u32 s{sT0}, s{sT0}, 72000")
            self.a.label("L_probe")
            e(f"s_memtime {s(sM3,2)}")
            e("s_waitcnt lgkmcnt(0)")
            e(f"s_sub_u32 s{sT1}, s{sM3}, s{sP0}")
            e(f"s_cmp_lt_u32 s{sT1}, s{sT0}")
            e("s_cbranch_scc1 L_probe")
        if not OPT["stamps"]:
            return
        e(f"s_lshl_b32 s{sT0}, s2, 2")
        e(f"s_add_u32 s{sT0}, s{sT0}, s{sW}")
        e(f"s_lshl_b32 s{sT1}, s{sT0}, 7")
        e(f"s_add_u32 s{sT1}, s{sT1}, {ST_BASE}")
        e(f"s_mov_b32 s{sT2}, {self.nst}")
        e(f"v_lshlrev_b32 v40, 2, v{vL}")
        e(f"v_writelane_b32 v{vST}, s{sT2}, 31")
        e(f"v_writelane_b32 v{vST}, s{sP0}, 30")
        e("s_memrealtime s[88:89]")
        e("s_waitcnt lgkmcnt(0)")
        e(f"v_writelane_b32 v{vST}, s88, 28")
        e(f"v_cmp_gt_u32 vcc, 32, v{vL}")
        e(f"v_mov_b32 v41, {OOB}")
        e(f"v_cndmask_b32 v40, v41, v40, vcc")
        e(f"buffer_store_dword v{vST}, v40, {s(S_WS,4)}, s{sT1} offen")

    def build(self):
        self.prologue()
        self.phase1()
        self.attention()
        self.de()
        self.a.label("L_end")
        self.e("s_endpgm")
        if OPT["strip"]:
            keep, pro = [], True
            for i in self.a.ins:
                if i.kind == "barrier":
                    pro = False
                drop = i.kind in ("mfma", "trans", "dsread", "dswrite") or (
                    not pro and i.kind == "valu" and any(r[0] == "v" and r != "vcc" and int(r[1:]) >= 30 for r in i.w) and "v40" not in i.w and "v41" not in i.w)
                if OPT["strip"] == 2 and i.kind == "vstore" and "x4" in i.mn:
                    i = Ins(i.text.replace("offen", "offen").replace(f"v{vLIN},", f"v{vL0},").replace("v24,", f"v{vL0},").replace("v25,", f"v{vL0},").replace("v26,", f"v{vL0},").replace("v27,", f"v{vL0},"))
                if not drop:
                    keep.append(i)
            self.a.ins = keep
        self.a.finalize()
        body = self.a.text() + "\n" + "\n".join(t if t.endswith(":") else "    " + t for t in self.tail) + "\nL_code_end:\n    s_endpgm\n"
        head = f"""; Fused gated mix: sliding-window attention branch + GELU FFN branch, one persistent launch.
; @launch grid=(256,1,1) block=(256,1,1) lds={LDS_SIZE}
.amdgcn_target "amdgcn-amd-amdhsa--gfx950"
.text
.globl {NAME}_kernel
.p2align 8
.type {NAME}_kernel,@function
{NAME}_kernel:
"""
        foot = f""".section .rodata,"a"
.p2align 6
.amdhsa_kernel {NAME}_kernel
  .amdhsa_next_free_vgpr 512
  .amdhsa_next_free_sgpr 102
  .amdhsa_accum_offset 256
  .amdhsa_group_segment_fixed_size 0
  .amdhsa_kernarg_size 96
  .amdhsa_user_sgpr_count 2
  .amdhsa_user_sgpr_kernarg_segment_ptr 1
  .amdhsa_system_sgpr_workgroup_id_x 1
  .amdhsa_float_denorm_mode_32 3
.end_amdhsa_kernel
"""
        return head + body + foot


if __name__ == "__main__":
    g = Gen()
    txt = g.build()
    out = sys.argv[1] if len(sys.argv) > 1 else f"cdna_kernels/{NAME}.s"
    open(out, "w").write(txt)
    kinds = {}
    for i in g.a.ins:
        kinds[i.kind] = kinds.get(i.kind, 0) + 1
    print(out, g.a.stats, kinds)
    if OPT["log"]:
        print("\n".join(g.a.log))
        print("model stalls", g.a.stall, "pipe busy", g.a.busy)
```

```python
import math, struct, sys
from collections import deque
sys.path.insert(0, "tools")
from asmlib import Asm, Ins, v, a_, s

NAME = "gated_mix__sliding_block__dense_activation_gelu__prompt"
OPT = dict(stamps=0, dbg=0, npairs=2, probe=0, poll1=22, poll2=3, chk2=6, poll3=7, norot=0, log=0,
           miss=480, pub1=10, svc=64, st=160, lat=480, win=8, strip=0, rot1=3, rot2=2, cpf=1, nt=0, split=1, wpf=1, wsoff=0, rt=0, ldsq=24, pfa0=2, pfa1=7, pfb0=7, pfb1=14, miss2=480, chk0=1, ipf=0, pa0=7, pb0=6, stlat=800, lat0=1800, bstart=0, null=0, gev=10, wbfirst=2, chk1=2, bpre=18, depth=5, chk3=9, lvar=0, karg2=0)
for arg in sys.argv[2:]:
    k, val = arg.split("=")
    assert k in OPT, k
    OPT[k] = int(val)


def fbits(x):
    return struct.unpack("<I", struct.pack("<f", x))[0]


QKV_BASE, H_BASE, O_BASE, G_BASE = 0, 0x600000, 0xD00000, 0xF00000
F_BASE, E_OFF, ST_BASE, WS_SIZE = 0xF10000, 0xF80000, 0xFA0000, 0x1000000
F1, F2, F3, F0 = F_BASE, F_BASE + 1024 * 128, F_BASE + 2048 * 128, F_BASE + 3072 * 128
OOB = 0x40000000
TAG_STEP = 0x6B43A9B7
R_A, R_Q, R_B, RING = 0, 57344, 106496, 57344
KV = R_B
XST = 106496
TB1, DUMMY, TB2, RED = 163328, 159744, 0, 8192
LDS_SIZE = 163840
S_CODE, S_X, S_WO, S_W1, S_W2, S_GW, S_WS, S_WQ, S_B1, S_B2, S_OUT = 4, 8, 12, 16, 20, 24, 28, 32, 36, 40, 44
sMX = 3
sW, sC, sLIGHT, sUA, sUB, sJ, sRB0, sCT, sLOC, sRB, sQB, sFIRST = range(48, 60)
sT0, sT1, sT2, sT3 = 60, 61, 62, 63
sHI, sM, sG = 64, 66, 68
sCA, sCB, sBT = 75, 76, 77
sMQ, sMA, sMAS, sMB, sRING = 78, 79, 80, 81, 82
sBOFF, sBEND, sAOFF, sAEND, sKV0 = 83, 84, 85, 86, 87
sM3, sF2O, sSPIN = 88, 90, 91
sQS, sHA, sHB, sF1, sGS, sF0P = 0, 1, 4, 5, 6, 7
sKOFF, sMKV, sQOFF, sOS, sF3P, sF0R, sK2 = 36, 37, 38, 39, 24, 25, 26
sGQ, sGD, sNQ, sOUT = 92, 93, 94, 95
sPF1, sPF2, sSLA, sSLB = 96, 97, 98, 99
sP0 = 100
vL, vLIN, vT, vL0, vK1, vST = 0, 1, 2, 3, 4, 5
vTRQ, vTRF0, vTRF1 = 6, 7, 8
vW1A0, vW1A1, vPV = 9, 10, 11
vBD = 12
vBT0, vBT1 = 16, 17
vF1A, vF23A = 18, 19
vWQ = 20
vPOLL, vGA, vGATE = 20, 21, 22
vTBL = 23
vTMP = 24
vXD, vXR = 32, 36
vWR = 40
vACC = 64
vX = 144
vQ, vS, vCD, vM0, vM8, vO, vP, vMX = 96, 144, 176, 192, 208, 224, 240, 248
vKR, vVR, vKA, vVA = 40, 136, 6, 11
vAB, vBI, vA1H, vG = 144, 208, 8, 9

C_GELU = -2.0 * math.sqrt(2.0 / math.pi) * math.log2(math.e)
K1, K2 = fbits(C_GELU), fbits(C_GELU * 0.044715)
QSCALE = fbits(math.log2(math.e) / math.sqrt(28.0))
NINF = 0xFF800000
MFMA = "v_mfma_f32_32x32x16_bf16"


def NT(bit):
    return " nt" if OPT["nt"] & bit else ""


class Item:
    def __init__(self, text, sink=None, pre=(), post=(), m0=None, after=None, lat=None, pre0=()):
        self.pre0 = pre0
        self.text = [text] if isinstance(text, str) else text
        self.sink, self.pre, self.post, self.m0, self.after, self.lat = sink, pre, post, m0, after, lat
        self.vm = self.text[0].startswith("buffer")
        self.done = False
        self.due = 0


class Gen:
    def __init__(self):
        self.a = Asm()
        self.a.verbose = OPT['log'] > 1
        self.a.p_svc, self.a.p_st, self.a.p_lat, self.a.p_win = OPT['svc'], OPT['st'], OPT['lat'], OPT['win']
        self.a.p_stlat = OPT['stlat']
        self.a.wq = s(S_WQ, 4)
        self.q = deque()
        self.P, self.C, self.B, self.D = deque(), deque(), deque(), deque()
        self.tail = []
        self.nst = self.nlab = self.nmark = 0
        self.marks = set()
        self.m0 = None
        self.hooks = {}
        self.bfirst = False

    def e(self, t):
        return self.a.e(t)

    def emit_item(self, st):
        it = st.popleft()
        c0 = len(self.a.ins)
        if it.after:
            toks = it.after()
            assert toks is not None, "forced item whose producers are not emitted: " + it.text[0]
            self.a.need(*toks)
        for t in it.pre0:
            self.e(t)
        if it.m0 and it.m0 != self.m0:
            reg, imm = it.m0[:2]
            self.e(f"s_mov_b32 m0, {imm}" if reg is None else f"s_add_u32 m0, s{reg}, {imm}" if imm else f"s_mov_b32 m0, s{reg}")
            self.m0 = it.m0
        for t in it.pre:
            self.e(t)
        for t in it.text:
            self.a.next_lat = it.lat
            k = self.e(t)
            if it.sink is not None:
                it.sink.append(k)
        for t in it.post:
            self.e(t)
        if getattr(it, "opt", False):
            for i in self.a.ins[c0:]:
                if i.kind != "wait":
                    i.note = "opt"
        it.done = True
        return 4 * (len(self.a.ins) - c0) + (4 if it.vm else 0)

    def vm_streams(self):
        if self.bfirst and self.B and self.C and self.B[0].due < self.C[0].due:
            return (self.P, self.B, self.C)
        return (self.P, self.C, self.B)

    def ready(self, it):
        if it.after:
            toks = it.after()
            return toks is not None and self.a.est(toks) <= self.a.clk
        return True

    def side(self, both=True):
        a = self.a
        cost = 0
        if a.vm_free():
            for st in self.vm_streams():
                if st and self.ready(st[0]):
                    cost = self.emit_item(st)
                    break
        if (both or not cost) and self.D and a.lds_free - a.clk <= OPT["ldsq"] and self.ready(self.D[0]):
            cost += self.emit_item(self.D)
        return cost

    def force(self, st, it=None):
        while st and (it is None or not it.done):
            self.emit_item(st)

    def m(self, t):
        k = self.e(t)
        if not t.startswith(("s_cmp", "s_cselect", "v_cmp")):
            self.side(False)
        return k

    def push(self, fn, cost=4):
        self.q.append((fn, cost))

    def pe(self, t):
        cost = 8 if Ins(t).kind == "trans" else 4
        if t.startswith("s_cselect"):
            fn, c = self.q.pop()
            assert getattr(fn, "scc", False), "s_cselect must follow its s_cmp directly: " + t
            g = lambda fn=fn, t=t: (fn(), self.e(t))
            g.scc = True
            self.q.append((g, c + cost))
            return
        f = lambda t=t: self.e(t)
        f.scc = t.startswith("s_cmp")
        self.q.append((f, cost))

    def gap(self, budget):
        budget -= self.side(budget >= 24)
        while self.q and budget >= min(self.q[0][1], 8):
            fn, c = self.q.popleft()
            fn()
            budget -= c

    def cluster(self, nd=2):
        self.side(True)
        for _ in range(nd - 1):
            if self.D and self.ready(self.D[0]):
                self.emit_item(self.D)

    def drain(self, name=None, every=1):
        n = 0
        while (self.q if name is None else name not in self.marks):
            self.q.popleft()[0]()
            n += 1
            if n % every == 0:
                self.cluster()

    def mark(self, name):
        self.push(lambda: self.marks.add(name), 0)

    def hook(self, name):
        fn = self.hooks.pop(name, None)
        if fn:
            fn()

    def stamp(self, name="", group=1):
        if group == 1:
            self.a.log.append(f"{self.a.clk:6d} {name}  (pipe busy {self.a.busy} idle {self.a.idle} ops {self.a.nvm}; left C {len(self.C)} B {len(self.B)} D {len(self.D)})")
        if (OPT["stamps"] == group or (OPT["stamps"] and (self.nst == 0 or name == "end" or (name == "chunk 0" and OPT["stamps"] == 9)))) and self.nst < 16:
            clk = self.a.clk
            self.e(f"{'s_memrealtime' if OPT['rt'] else 's_memtime'} {s(sM3,2)}")
            self.e("s_waitcnt lgkmcnt(0)")
            self.e(f"v_writelane_b32 v{vST}, s{sM3}, {self.nst}")
            self.a.clk = clk
            self.nst += 1
        if group == 1:
            self.nmark += 1
            if OPT["probe"] == self.nmark:
                self.e(f"s_memtime {s(sM3,2)}")
                self.e("s_waitcnt lgkmcnt(0)")
                self.e(f"s_mov_b32 s{sP0+1}, s{sM3}")

    def poll_item(self, addr, soff):
        it = Item(f"buffer_load_dword {v(vPOLL)}, {v(addr)}, {s(S_WS,4)}, {soff} offen sc1", lat=OPT["miss"])
        self.P.append(it)
        return it

    def poll_check(self, addr, soff):
        self.force_p()
        self.await_([k for k, r in self.a.vm if f"v{vPOLL}" in r])
        self.nlab += 1
        n = self.nlab
        if OPT["stamps"]:
            self.e(f"s_mov_b32 s{sSPIN}, 0")
        self.e(f"v_cmp_ne_u32 vcc, {v(vT)}, {v(vPOLL)}")
        self.e(f"s_cbranch_vccnz L_slow{n}")
        self.a.label(f"L_back{n}")
        if OPT["stamps"]:
            self.npoll = getattr(self, "npoll", 0) + 1
            self.e(f"v_writelane_b32 v{vST}, s{sSPIN}, {15 + self.npoll}")
        self.tail += [f"L_slow{n}:", f"s_mov_b32 s{sSPIN}, 0", f"L_spin{n}:",
                      f"buffer_load_dword {v(vPOLL)}, {v(addr)}, {s(S_WS,4)}, {soff} offen sc1",
                      f"s_add_u32 s{sSPIN}, s{sSPIN}, 1",
                      "s_waitcnt vmcnt(0)",
                      f"v_cmp_ne_u32 vcc, {v(vT)}, {v(vPOLL)}",
                      f"s_cmp_gt_u32 s{sSPIN}, 0x20000",
                      f"s_cbranch_scc1 L_back{n}",
                      f"s_cbranch_vccnz L_spin{n}",
                      f"s_branch L_back{n}"]

    def pub_text(self, soff):
        return f"buffer_store_dword {v(vT)}, {v(vL0)}, {s(S_WS,4)}, s{soff} offen sc1"

    def publish(self, soff, toks, n, pre=()):
        it = Item(self.pub_text(soff), pre=pre, after=lambda: toks if len(toks) == n else None)
        self.P.append(it)
        return it

    def prologue(self):
        e, m = self.e, self.m
        if OPT["probe"] or OPT["stamps"]:
            e(f"s_memtime {s(sP0,2)}")
        if OPT["stamps"]:
            e("s_memrealtime s[88:89]")
        e("s_load_dwordx16 s[8:23], s[0:1], 0")
        if not OPT["karg2"]:
            e("s_load_dwordx8 s[24:31], s[0:1], 64")
        e("s_cmp_ge_u32 s2, 256")
        e("s_cbranch_scc1 L_end")
        e(f"s_getpc_b64 {s(S_CODE,2)}")
        self.a.label("L_pc")
        e(f"s_lshr_b32 s{sLOC}, s2, 3")
        e(f"v_lshrrev_b32 v1, 6, v0")
        e(f"v_and_b32 v{vL}, 63, v0")
        e(f"s_and_b32 s{sT0}, s{sLOC}, 7")
        e(f"v_readfirstlane_b32 s{sW}, v1")
        e(f"s_mov_b32 s{S_CODE+2}, L_code_end-L_pc")
        e(f"s_mov_b32 s{S_CODE+3}, 0x20000")
        e(f"v_and_b32 v24, 7, v{vL}")
        e(f"v_lshl_add_u32 v24, v1, 3, v24")
        e(f"v_lshlrev_b32 v24, 7, v24")
        e(f"s_lshl_b32 s{sT1}, s{sT0}, 12")
        if OPT["cpf"]:
            e(f"buffer_load_dword v250, v24, {s(S_CODE,4)}, 0 offen")
        e(f"buffer_load_dword v251, v24, {s(S_CODE,4)}, s{sT1} offen")
        e(f"s_lshr_b32 s{sT1}, s{sLOC}, 3")
        e(f"s_bfe_u32 s{sRB}, s2, 0x20001")
        e(f"s_lshl_b32 s{sRB}, s{sRB}, 2")
        e(f"s_add_u32 s{sRB}, s{sRB}, s{sT1}")
        e(f"s_and_b32 s{sC}, s2, 1")
        e(f"s_lshl_b32 s{sC}, s{sC}, 3")
        e(f"s_add_u32 s{sC}, s{sC}, s{sT0}")
        e(f"s_lshl_b32 s{sT1}, s{sT1}, 1")
        e(f"s_add_u32 s{sT0}, s{sT0}, s{sT1}")
        e(f"s_sub_u32 s{sT1}, s{sT0}, 7")
        e(f"s_cmp_ge_u32 s{sT0}, 7")
        e(f"s_cselect_b32 s{sG}, s{sT1}, s{sT0}")
        if OPT["rot1"] == 3:
            e(f"s_bfe_u32 s{sT0}, s2, 0x20001")
            e(f"s_add_u32 s{sT0}, s{sT0}, s{sG}")
            e(f"s_sub_u32 s{sT1}, s{sT0}, 7")
            e(f"s_cmp_ge_u32 s{sT0}, 7")
            e(f"s_cselect_b32 s{sG}, s{sT1}, s{sT0}")
        if OPT["rot1"] == 0:
            e(f"s_mov_b32 s{sG}, 0")
        if OPT["rot1"] == 2:
            e(f"s_and_b32 s{sT0}, s2, 7")
            e(f"s_cmp_eq_u32 s{sT0}, 7")
            e(f"s_cselect_b32 s{sG}, 0, s{sT0}")
        e(f"s_lshl_b32 s{sRB}, s{sRB}, 2")
        e(f"s_add_u32 s{sRB}, s{sRB}, s{sW}")
        e(f"s_mov_b32 s{S_WQ+2}, {448*2688}")
        e(f"s_mov_b32 s{S_WQ+3}, 0x20000")
        e(f"v_lshrrev_b32 v24, 3, v{vL}")
        e(f"s_lshl_b32 s{sT0}, s{sRB}, 5")
        e(f"v_add_u32 v24, s{sT0}, v24")
        e(f"v_mul_u32_u24 v24, 896, v24")
        e(f"v_lshrrev_b32 v26, 4, v{vL}")
        e(f"v_and_b32 v27, 7, v{vL}")
        e(f"v_xor_b32 v26, v26, v27")
        e(f"v_lshl_add_u32 v{vXD}, v26, 4, v24")
        e(f"v_xor_b32 v{vXD+1}, 64, v{vXD}")
        e(f"v_add_u32 v{vXD+2}, {2*(7168-1024)}, v{vXD}")
        e(f"v_add_u32 v{vXD+3}, {3*(7168-1024)}, v{vXD+1}")
        e(f"v_add_u32 v{vXD+1}, {7168-1024}, v{vXD+1}")
        e(f"s_mul_i32 s{sMX}, s{sW}, 12288")
        e(f"s_add_u32 s{sRING}, s{sMX}, {RED}")
        e(f"s_add_u32 s{sMX}, s{sMX}, {XST}")
        e(f"s_mul_i32 s{sT0}, s{sC}, 168")
        e(f"s_and_b32 s{sT0}, s{sT0}, 0xfffffff0")
        e(f"s_mul_i32 s{sT1}, s{sW}, {16*2688}")
        e(f"s_add_u32 s{sT0}, s{sT0}, s{sT1}")
        e(f"s_movk_i32 s{sT1}, 2688")
        for i in range(3):
            q = vL
            if i:
                q = 24
                e(f"v_add_u32 v24, {64*i}, v{vL}")
            e(f"v_mul_u32_u24 v26, 171, v{q}")
            e(f"v_lshrrev_b32 v26, 11, v26")
            e(f"v_mad_i32_i24 v24, v26, -12, v{q}")
            e(f"v_min_u32 v24, 10, v24")
            e(f"v_lshl_add_u32 v24, v24, 4, s{sT0}")
            e(f"v_mad_u32_u24 v{vWQ+i}, v26, s{sT1}, v24")
            if i < 2:
                e(f"s_sub_u32 s{sT0}, s{sT0}, 1024")
        e(f"s_mul_i32 s{sMQ}, s{sW}, {16*192}")
        e(f"s_add_u32 s{sMQ}, s{sMQ}, {R_Q}")
        e("s_waitcnt lgkmcnt(0)")
        if OPT["karg2"]:
            e("s_load_dwordx8 s[24:31], s[0:1], 64")
        e(f"s_mov_b64 {s(S_WQ,2)}, s[10:11]")
        e(f"s_mov_b32 s{S_X+2}, {2048*896}")
        e(f"s_mov_b32 s{S_X+3}, 0x20000")
        self.a.clk = self.a.pipe_free = 0
        self.a.allv = []
        self.a.done = {k: 0 for k in self.a.done}
        if OPT["stamps"]:
            e(f"v_writelane_b32 v{vST}, s88, 29")
        self.stamp("kernarg")
        self.ctok, self.wtok, self.xrd, self.ftok = {}, {}, {}, {}
        self.add_chunk(0)
        self.force(self.C)
        for i in range(1, 7):
            e(f"s_add_u32 s{sT0}, s{sG+i-1}, 1")
            e(f"s_cmp_eq_u32 s{sT0}, 7")
            e(f"s_cselect_b32 s{sG+i}, 0, s{sT0}")
        self.add_chunk(1)
        def srds(moves, sizes):
            for srd, src in moves:
                m(f"s_mov_b64 {s(srd,2)}, {s(src,2)}")
            for srd, size in sizes:
                m(f"s_mov_b32 s{srd+2}, {size}")
                m(f"s_mov_b32 s{srd+3}, 0x20000")
        srds(((S_B1, 18), (S_B2, 22)), ((S_B1, 3584), (S_W1, 448 * 3584), (S_B2, 896)))
        late_srds = lambda: srds(((S_OUT, 26), (S_WS, 30)), ((S_WS, WS_SIZE), (S_GW, 896), (S_OUT, 2048 * 896)))
        if not OPT["karg2"]:
            late_srds()
        m(f"s_lshr_b32 s{sLIGHT}, 0x1248, s{sC}")
        m(f"s_and_b32 s{sLIGHT}, s{sLIGHT}, 1")
        m(f"s_bfm_b32 s{sT0}, s{sC}, 0")
        m(f"s_and_b32 s{sT0}, s{sT0}, 0x1248")
        m(f"s_bcnt1_i32_b32 s{sT0}, s{sT0}")
        m(f"s_lshl_b32 s{sUA}, s{sC}, 1")
        m(f"s_sub_u32 s{sUA}, s{sUA}, s{sT0}")
        m(f"s_add_u32 s{sUB}, s{sUA}, 1")
        m(f"s_sub_u32 s{sUB}, s{sUB}, s{sLIGHT}")
        m(f"s_lshl_b32 s{sT0}, s{sW}, 6")
        m(f"v_add_u32 v244, s{sT0}, v{vL}")
        m(f"s_lshl_b32 s{sT1}, s{sG}, 6")
        for h in range(2):
            m(f"v_add_u32 v27, s{sT1}, v244")
            if h:
                m(f"v_add_u32 v27, 256, v27")
            m(f"v_subrev_u32 v28, 448, v27")
            m(f"v_min_u32 v27, v27, v28")
            m(f"v_lshlrev_b32 v{52+h}, 1, v27")
        m(f"s_lshl_b32 s{sT0}, s{sUA}, 7")
        m(f"s_cmp_eq_u32 s{sLIGHT}, 1")
        m(f"s_cselect_b32 s{sT0}, {OOB}, s{sT0}")
        m(f"s_lshl_b32 s{sT1}, s{sUB}, 7")
        m(f"s_sub_u32 s{sT1}, s{sT1}, 128")
        m(f"s_mov_b32 s{sHI}, 0")
        m(f"s_mov_b32 s{sHI+1}, -1")
        m(f"v_mov_b32 v27, s{sT0}")
        m(f"v_mov_b32 v28, s{sT1}")
        m(f"v_cndmask_b32 v27, v27, v28, {s(sHI,2)}")
        m(f"v_lshl_add_u32 v54, v{vL}, 2, v27")
        m(f"v_mov_b32 v55, {E_OFF}")
        m(f"v_lshlrev_b32 v{vLIN}, 4, v{vL}")
        m(f"v_bfe_u32 v24, v{vL}, 2, 2")
        m(f"v_lshrrev_b32 v27, 5, v{vL}")
        m(f"v_bfe_u32 v28, v{vL}, 4, 1")
        m(f"v_and_b32 v29, 3, v{vL}")
        m(f"v_lshlrev_b32 v29, 3, v29")
        m(f"v_lshl_add_u32 v29, v28, 5, v29")
        m(f"v_lshl_add_u32 v40, v27, 3, v24")
        m(f"v_mul_u32_u24 v41, 192, v40")
        m(f"s_and_b32 s{sT0}, s{sC}, 1")
        m(f"s_lshl_b32 s{sT0}, s{sT0}, 3")
        m(f"s_add_u32 s{sT0}, s{sT0}, {R_Q}")
        m(f"v_add3_u32 v{vTRQ}, v41, v29, s{sT0}")
        m(f"v_lshrrev_b32 v41, 1, v24")
        m(f"v_lshl_add_u32 v29, v41, 6, v29")
        m(f"v_lshl_add_u32 v{vTRF0}, v40, 7, v29")
        m(f"v_xor_b32 v{vTRF1}, 64, v{vTRF0}")
        m(f"v_lshl_add_u32 v40, v27, 2, v24")
        m(f"v_lshl_add_u32 v40, v40, 7, v29")
        m(f"s_lshl_b32 s{sT0}, s{sW}, 3")
        m(f"s_lshr_b32 s{sT0}, 0x60204000, s{sT0}")
        m(f"s_and_b32 s{sOUT}, s{sT0}, 0xff")
        m(f"v_xor_b32 v40, s{sOUT}, v40")
        m(f"v_add_u32 v{vBT0}, s{sRING}, v40")
        m(f"v_xor_b32 v{vBT1}, 64, v{vBT0}")
        m(f"v_and_b32 v40, 31, v{vL}")
        m(f"v_bfe_u32 v41, v{vL}, 1, 3")
        m(f"v_xor_b32 v41, v41, v27")
        m(f"v_lshlrev_b32 v41, 4, v41")
        m(f"v_lshl_add_u32 v40, v40, 7, v41")
        m(f"v_add_u32 v{vXR}, s{sMX}, v40")
        for k in range(1, 4):
            m(f"v_xor_b32 v{vXR+k}, {32*k}, v{vXR}")
        m(f"v_lshlrev_b32 v{vTBL}, 3, v27")
        m(f"v_add_u32 v{vTBL}, {TB1 - TB1 % 2048}, v{vTBL}")
        m(f"v_and_b32 v40, 3, v{vL}")
        m(f"v_lshl_add_u32 v40, v27, 2, v40")
        m(f"v_bfe_u32 v41, v{vL}, 2, 3")
        m(f"v_lshl_add_u32 v40, v41, 3, v40")
        m(f"v_lshlrev_b32 v{vPV}, 4, v40")
        m(f"v_cmp_eq_u32 vcc, 0, v{vL}")
        m(f"v_mov_b32 v40, {OOB}")
        m(f"v_mov_b32 v{vK1}, {K1}")
        m(f"v_cndmask_b32 v{vL0}, v40, 0, vcc")
        m(f"s_lshl_b32 s{sT0}, s2, 2")
        m(f"s_add_u32 s{sT0}, s{sT0}, s{sW}")
        m(f"s_mul_i32 s{sT0}, s{sT0}, 49")
        m(f"s_lshr_b32 s{sPF1}, s{sT0}, 2")
        m(f"s_lshl_b32 s{sPF1}, s{sPF1}, 7")
        m(f"s_lshr_b32 s{sPF2}, s{sT0}, 4")
        m(f"s_lshl_b32 s{sPF2}, s{sPF2}, 7")
        m(f"s_mul_i32 s{sSLA}, s2, {OPT['pfa1'] - OPT['pfa0']}")
        m(f"s_lshr_b32 s{sSLA}, s{sSLA}, 8")
        m(f"s_mul_i32 s{sSLB}, s2, {OPT['pfb1'] - OPT['pfb0']}")
        m(f"s_lshr_b32 s{sSLB}, s{sSLB}, 8")
        for srd, size in ((S_W2, 1792 * 896), (S_WO, 448 * 896)):
            m(f"s_mov_b32 s{srd+2}, {size}")
            m(f"s_mov_b32 s{srd+3}, 0x20000")
        self.setup_later()
        self.store_addr()
        self.drain()
        m(f"v_lshrrev_b32 v41, 5, v{vL}")
        m(f"v_bfe_u32 v42, v{vL}, 4, 1")
        m(f"v_xor_b32 v41, v41, v42")
        m(f"v_bfe_u32 v40, v{vL}, 2, 2")
        m(f"v_lshl_add_u32 v40, v41, 3, v40")
        m(f"v_and_b32 v41, 1, v{vL}")
        m(f"v_lshl_add_u32 v40, v41, 2, v40")
        m(f"v_lshlrev_b32 v40, 4, v40")
        m(f"v_lshl_add_u32 v40, v42, 10, v40")
        m(f"v_bfe_u32 v41, v{vL}, 1, 1")
        m(f"v_lshl_add_u32 v40, v41, 3, v40")
        m(f"s_lshl_b32 s{sT1}, s{sW}, 11")
        m(f"s_add_u32 s{sT1}, s{sT1}, {KV+24576}")
        m(f"v_add_u32 v{vVA}, s{sT1}, v40")
        if OPT["karg2"]:
            e("s_waitcnt lgkmcnt(0)")
            late_srds()
        self.force(self.C)
        self.a.next_lat = OPT["miss"]
        e(f"buffer_load_dword v{vT}, v55, {s(S_WS,4)}, 0 offen sc1")
        for h in range(2):
            e(f"buffer_load_ushort v{245+h}, v{52+h}, {s(S_GW,4)}, 0 offen")
        e(f"s_mov_b32 m0, {TB1}")
        self.m0 = None
        self.tB1 = e(f"buffer_load_dword v54, {s(S_B1,4)}, 0 offen lds")
        m(f"s_lshl_b32 s{sT1}, s{sQB}, 4")
        m(f"s_add_u32 s{sT1}, s{sT1}, s{sJ}")
        m(f"s_lshl_b32 s{sF3P}, s{sT1}, 7")
        m(f"s_add_u32 s{sF3P}, s{sF3P}, {F3}")
        m(f"s_lshl_b32 s{sOS}, s{sT1}, 11")
        m(f"s_add_u32 s{sOS}, s{sOS}, {O_BASE}")
        m(f"s_lshl_b32 s{sT0}, s{sJ}, 6")
        m(f"s_add_u32 s{sKOFF}, s{sT0}, s{sKV0}")
        m(f"s_lshl_b32 s{sKOFF}, s{sKOFF}, 11")
        m(f"s_add_u32 s{sQOFF}, s{sT0}, s{sQB}")
        m(f"s_lshl_b32 s{sQOFF}, s{sQOFF}, 11")
        m(f"s_mul_i32 s{sMKV}, s{sW}, 6144")
        m(f"s_lshl_b32 s{sT0}, s{sQB}, 7")
        m(f"s_add_u32 s{sGQ}, s{sT0}, {G_BASE}")
        m(f"s_mov_b32 s{sK2}, {K2}")
        m(f"s_mov_b32 s{sK2+1}, {K2}")

    def setup_later(self):
        m = self.m
        m(f"s_and_b32 s{sT0}, s2, 7")
        m(f"s_and_b32 s{sT1}, s{sLOC}, 1")
        m(f"s_lshl_b32 s{sJ}, s{sT0}, 1")
        m(f"s_add_u32 s{sJ}, s{sJ}, s{sT1}")
        m(f"s_mul_i32 s{sT1}, s{sLOC}, 37")
        m(f"s_lshr_b32 s{sT1}, s{sT1}, 8")
        m(f"s_mul_i32 s{sCT}, s{sT1}, 7")
        m(f"s_sub_u32 s{sCT}, s{sLOC}, s{sCT}")
        m(f"s_cmp_lt_u32 s{sLOC}, 28")
        m(f"s_cselect_b32 s{sT1}, s{sT1}, s{sCT}")
        m(f"s_lshl_b32 s{sRB0}, s{sT0}, 2")
        m(f"s_add_u32 s{sRB0}, s{sRB0}, s{sT1}")
        m(f"s_lshl_b32 s{sRB0}, s{sRB0}, 1")
        m(f"s_mul_i32 s{sBOFF}, s{sW}, {448*896}")
        m(f"s_mul_i32 s{sAOFF}, s{sRB0}, 112")
        m(f"s_mul_i32 s{sT0}, s{sW}, 28")
        m(f"s_add_u32 s{sAOFF}, s{sAOFF}, s{sT0}")
        m(f"s_lshl_b32 s{sAOFF}, s{sAOFF}, 10")
        m(f"s_add_u32 s{sAOFF}, s{sAOFF}, {H_BASE}")
        m(f"s_lshl_b32 s{sAEND}, s{sRB0}, 2")
        m(f"s_add_u32 s{sAEND}, s{sAEND}, s{sW}")
        m(f"s_lshl_b32 s{sAEND}, s{sAEND}, 13")
        m(f"s_add_u32 s{sAEND}, s{sAEND}, {O_BASE}")
        m(f"s_mul_i32 s{sBEND}, s{sW}, {112*896}")
        m(f"s_lshl_b32 s{sGD}, s{sRB0}, 7")
        m(f"s_add_u32 s{sGD}, s{sGD}, {G_BASE}")
        m(f"s_lshl_b32 s{sT0}, s{sCT}, 12")
        m(f"s_add_u32 s{sT0}, s{sT0}, {32*896*OPT['pb0']}")
        m(f"s_cmp_lt_u32 s{sLOC}, 28")
        m(f"s_cselect_b32 s{sT0}, 0, s{sT0}")
        m(f"s_cselect_b32 s{sT1}, 0, {2048*OPT['pa0'] if OPT['ipf'] else OOB}")
        m(f"s_cselect_b32 s{sBT}, {32*896}, 0x4000" if False else f"s_cselect_b32 s{sBT}, 7, 4")
        m(f"s_cselect_b64 {s(sM3,2)}, -1, 0")
        m(f"s_lshl_b32 s{sBT}, s{sBT}, 12")
        m(f"s_add_u32 s{sBOFF}, s{sBOFF}, s{sT0}")
        m(f"s_add_u32 s{sAOFF}, s{sAOFF}, s{sT1}")
        m(f"s_lshl_b32 s{sF2O}, s{sRB0}, 11")
        m(f"s_add_u32 s{sF2O}, s{sF2O}, {F2}")
        m(f"v_lshrrev_b32 v24, 3, v{vL}")
        m(f"v_lshlrev_b32 v28, 2, v28")
        m(f"v_and_b32 v29, 7, v{vL}")
        m(f"v_xor_b32 v28, v28, v29")
        m(f"v_lshlrev_b32 v28, 4, v28")
        m(f"v_mul_u32_u24 v29, 3584, v24")
        m(f"s_mul_i32 s{sT0}, s{sW}, {16*3584}")
        m(f"v_add3_u32 v{vW1A0}, v29, v28, s{sT0}")
        m(f"v_add_u32 v{vW1A1}, {8*3584-1024}, v{vW1A0}")
        m(f"v_mul_u32_u24 v29, 896, v24")
        m(f"s_lshl_b32 s{sT0}, s{sCT}, 7")
        m(f"v_add3_u32 v{vBD}, v29, v28, s{sT0}")
        for k in range(1, 4):
            m(f"v_add_u32 v{vBD+k}, {k*(7168-1024)}, v{vBD}")
        for k in range(4):
            m(f"v_cndmask_b32 v{vBD+k}, v{vLIN}, v{vBD+k}, {s(sM3,2)}")
        m(f"s_lshl_b32 s{sMB}, s{sW}, 11")
        m(f"s_sub_u32 s{sMA}, s{sMB}, {64*128 - R_A}")
        m(f"s_add_u32 s{sMB}, s{sMB}, {R_B}")
        m(f"s_mul_i32 s{sT0}, s{sC}, 3")
        m(f"s_sub_u32 s{sNQ}, 16, s{sT0}")
        m(f"s_lshl_b32 s{sT0}, s{sT0}, 6")
        m(f"s_add_u32 s{sT0}, s{sT0}, s{sRB}")
        m(f"s_lshl_b32 s{sQS}, s{sT0}, 11")
        m(f"s_mul_i32 s{sT1}, s{sRB}, 28")
        m(f"s_add_u32 s{sT0}, s{sT1}, s{sUB}")
        m(f"s_lshl_b32 s{sT0}, s{sT0}, 12")
        m(f"s_add_u32 s{sHB}, s{sT0}, {H_BASE}")
        m(f"s_sub_u32 s{sHA}, s{sHB}, 4096")
        m(f"s_lshl_b32 s{sUA}, s{sUA}, 7")
        m(f"s_lshl_b32 s{sUB}, s{sUB}, 7")
        m(f"s_cmp_eq_u32 s{sLIGHT}, 1")
        m(f"s_cselect_b32 s{sHA}, {OOB}, s{sHA}")
        m(f"s_cselect_b32 s{sUA}, {OOB}, s{sUA}")
        m(f"s_cselect_b32 s{sMA}, {DUMMY}, s{sMA}")
        m(f"s_cselect_b32 s{sMAS}, 0, {64*128}")
        m(f"s_lshl_b32 s{sT0}, s{sRB}, 4")
        m(f"s_add_u32 s{sT0}, s{sT0}, s{sC}")
        m(f"s_lshl_b32 s{sT0}, s{sT0}, 7")
        m(f"s_add_u32 s{sF1}, s{sT0}, {F1}")
        m(f"s_lshl_b32 s{sT0}, s{sRB}, 7")
        m(f"s_add_u32 s{sGS}, s{sT0}, {G_BASE}")
        m(f"s_cmp_eq_u32 s{sC}, 3")
        m(f"s_cselect_b32 s{sGS}, s{sGS}, {OOB}")
        m(f"s_lshr_b32 s{sT0}, s{sLOC}, 1")
        m(f"s_lshl_b32 s{sT0}, s{sT0}, 2")
        m(f"s_add_u32 s{sQB}, s{sT0}, s{sW}")
        m(f"s_sub_u32 s{sFIRST}, 8, s{sQB}")
        m(f"s_max_i32 s{sFIRST}, s{sFIRST}, 0")
        m(f"s_mul_i32 s{sT1}, s{sW}, 3")
        m(f"s_add_u32 s{sT0}, s{sT0}, s{sT1}")
        m(f"s_sub_u32 s{sKV0}, s{sT0}, 8")
        m(f"s_mul_i32 s{sT2}, s{sJ}, 43")
        m(f"s_lshr_b32 s{sT2}, s{sT2}, 7")
        m(f"s_lshl_b32 s{sT1}, s{sQB}, 4")
        m(f"s_add_u32 s{sT2}, s{sT1}, s{sT2}")
        m(f"v_mov_b32 v{vF1A}, s{sT2}")
        for part, add in ((0, 16), (1, 32)):
            m(f"s_add_u32 s{sT2}, s{sJ}, {add}")
            m(f"s_mul_i32 s{sT2}, s{sT2}, 43")
            m(f"s_lshr_b32 s{sT2}, s{sT2}, 7")
            m(f"v_subrev_u32 v40, {3*part}, v{vL}")
            m(f"v_add_u32 v41, s{sKV0}, v40")
            m(f"v_cmp_gt_u32 {s(sM,2)}, 3, v40")
            m(f"v_cmp_le_i32 vcc, 0, v41")
            m(f"v_lshl_add_u32 v41, v41, 4, s{sT2}")
            m(f"s_and_b64 {s(sM,2)}, {s(sM,2)}, vcc")
            m(f"v_cndmask_b32 v{vF1A}, v{vF1A}, v41, {s(sM,2)}")
        m(f"v_lshlrev_b32 v{vF1A}, 7, v{vF1A}")
        m(f"v_add_u32 v{vF1A}, {F1}, v{vF1A}")
        m(f"v_bfe_u32 v40, v{vL}, 2, 1")
        m(f"v_and_b32 v41, 3, v{vL}")
        m(f"s_lshl_b32 s{sT0}, s{sW}, 2")
        m(f"v_add_u32 v41, s{sT0}, v41")
        m(f"v_cmp_gt_u32 vcc, 8, v{vL}")
        m(f"v_lshl_add_u32 v41, v40, 4, v41")
        m(f"v_and_b32 v40, 1, v{vL}")
        m(f"v_lshl_add_u32 v40, v40, 4, 3")
        m(f"v_cndmask_b32 v{vF23A}, v40, v41, vcc")
        m(f"s_sub_u32 s{sT0}, s{sQB}, s{sRB0}")
        m(f"s_lshl_b32 s{sT0}, s{sT0}, 4")
        m(f"s_add_u32 s{sT0}, s{sT0}, 3")
        m(f"v_cmp_gt_u32 vcc, 10, v{vL}")
        m(f"v_mov_b32 v40, s{sT0}")
        m(f"s_nop 0")
        m(f"v_cndmask_b32 v{vF23A}, v40, v{vF23A}, vcc")
        m(f"v_lshlrev_b32 v{vF23A}, 7, v{vF23A}")
        m(f"v_add_u32 v{vF23A}, s{sF2O}, v{vF23A}")
        m(f"s_mov_b32 s{sF2O}, 0")
        m(f"s_mul_i32 s{sT0}, s{sRB0}, {32*896}")
        m(f"s_lshl_b32 s{sT1}, s{sCT}, 7")
        m(f"s_add_u32 s{sT0}, s{sT0}, s{sT1}")
        m(f"s_add_u32 s{sOUT}, s{sOUT}, s{sT0}")

    def add_chunk(self, i):
        toks = self.ctok[i] = []
        lx = lw = OPT["lat0"] if i < 1 else None
        xs, ws = [], []
        for k in range(4):
            xs.append(Item(f"buffer_load_dwordx4 v{vXD+k}, {s(S_X,4)}, s{sCA} offen" + (f" offset:{1024*k}" if k else "") + NT(1) + " lds", toks,
                           pre=[f"s_lshl_b32 s{sCA}, s{sG+i}, 7"] if k == 0 else (), m0=(sMX, (i % 3) * 4096), lat=lx,
                           after=(lambda: self.xrd[i - 3] if len(self.xrd.get(i - 3, ())) == 4 else None) if i >= 3 and k == 0 else None))
        for k in range(3):
            ws.append(Item(f"buffer_load_dwordx4 v{vWQ+k}, {s(S_WQ,4)}, s{sCB} offen" + (f" offset:{1024*k}" if k else "") + NT(2) + " lds", toks,
                           pre=[f"s_mul_i32 s{sCB}, s{sG+i}, {64*2688}"] if k == 0 else (), m0=(sMQ, (i % 4) * 64 * 192), lat=lw))
        self.C.extend(xs + ws if i == 0 else ws + xs)
        self.clast = getattr(self, "clast", {})
        self.clast[i] = self.C[-1]

    def add_w1(self, unit, i):
        toks = self.wtok[(unit, i)] = []
        pre = [f"s_mul_i32 s{sCB}, s{sG+i}, {64*3584}", f"s_add_u32 s{sCB}, s{sCB}, s{sUA+unit}"]
        pre0 = [f"s_add_u32 s{sMA}, s{sMA}, s{sMAS}"] if unit == 0 else []
        for k in range(2):
            self.C.append(Item(f"buffer_load_dwordx4 v{vW1A0+k}, {s(S_W1,4)}, s{sCB} offen" + (" offset:1024" if k else "") + NT(4) + " lds", toks,
                               pre=pre if k == 0 else (), pre0=pre0 if k == 0 else (), m0=(sMB, i * 8192) if unit else (sMA, 0, i),
                               lat=OPT["miss"] if i < 4 else None))
            self.C[-1].opt = unit == 0
        self.wlast = getattr(self, "wlast", {})
        self.wlast[(unit, i)] = self.C[-1]

    def gate_write(self):
        pe = self.pe
        pe(f"s_cmp_eq_u32 s{sLIGHT}, 1")
        pe(f"s_cselect_b64 {s(sM,2)}, -1, 0")
        pe(f"v_bfe_u32 v247, v244, 1, 1")
        pe(f"v_lshlrev_b32 v248, 7, v244")
        pe(f"v_lshl_add_u32 v248, v247, 6, v248")
        pe(f"v_mov_b32 v249, {DUMMY+2048}")
        pe(f"v_cndmask_b32 v247, v249, v248, {s(sM,2)}")
        pe(f"v_cmp_gt_u32 vcc, 192, v244")
        pe(f"v_add_u32 v248, {256*128}, v248")
        pe(f"s_and_b64 {s(sM,2)}, {s(sM,2)}, vcc")
        pe(f"ds_write_b16 v247, v245")
        pe(f"v_cndmask_b32 v248, v249, v248, {s(sM,2)}")
        pe(f"ds_write_b16 v248, v246")

    def store_addr(self):
        pe = self.pe
        for n, lim in ((0, 11), (1, 10)):
            pe(f"s_cmp_ge_u32 s{sC}, {lim}")
            pe(f"s_cselect_b64 {s(sM,2)}, -1, 0")
            pe(f"s_cselect_b32 s{sT0}, 128, 0")
            pe(f"v_cndmask_b32 v{24+2*n}, v{vLIN}, v{vPV}, {s(sM,2)}")
            pe(f"v_xor_b32 v{25+2*n}, s{sT0}, v{24+2*n}")

    def bias_init(self, acc, tbl, factor=None):
        for t in range(2):
            for mm in range(2):
                o = (tbl % 2048) // 8 + 8 * t + 4 * mm
                self.pe(f"ds_read2_b64 {v(acc+16*t+8+4*mm,4)}, v{vTBL} offset0:{o} offset1:{o+2}")
        for t in range(2):
            for k in range(8):
                src, dst = acc + 16 * t + 8 + k, acc + 16 * t + 2 * k
                self.pe(f"v_lshlrev_b32 v{dst}, 16, v{src}")
                self.pe(f"v_and_b32 v{dst+1}, 0xffff0000, v{src}")
        if factor:
            for k in range(16):
                self.pe(f"v_pk_mul_f32 {v(acc+2*k,2)}, {v(acc+2*k,2)}, {factor}")

    def rd_q(self, sidx, t):
        base = vWR + 12 * (sidx & 1) + 4 * t
        o = 56 * t + (sidx % 16) * 3072
        return [self.e(f"ds_read_b64_tr_b16 {v(base+2*h,2)}, v{vTRQ} offset:{o+768*h}") for h in range(2)]

    def rd_f(self, g, t):
        base = vWR + 8 * (g % 3) + 4 * t
        toks = self.ftok.setdefault(g, [])
        for h in range(2):
            toks.append(self.e(f"ds_read_b64_tr_b16 {v(base+2*h,2)}, v{vTRF0+t} offset:{(g%28)*2048+512*h}"))

    def rd_x(self, sidx):
        self.xrd.setdefault(sidx // 4, []).append(self.e(f"ds_read_b128 {v(vX+4*sidx,4)}, v{vXR+sidx%4} offset:{(sidx//4%3)*4096}"))

    def sync(self, st, last, toks, drain_lds=True):
        self.force(st, last)
        self.await_(toks)
        if drain_lds and self.a.lg:
            self.e("s_waitcnt lgkmcnt(0)")
        self.e("s_barrier")

    def await_(self, toks):
        while self.a.est(toks) > self.a.clk + 8 and self.side_wait(self.a.est(toks)):
            pass
        self.a.need(*toks)

    def force_p(self):
        while self.P:
            it = self.P[0]
            keep, self.P = self.P, deque()
            if it.after:
                self.await_(it.after())
            self.P = keep
            self.emit_item(self.P)

    def side_wait(self, until):
        a = self.a
        best = None
        for st in self.vm_streams() + (self.D,):
            if not st:
                continue
            it = st[0]
            t = a.allv[-1][0] if it.vm else a.clk
            if it.after:
                toks = it.after()
                if toks is None:
                    continue
                t = max(t, a.est(toks))
            t = max(t, a.clk)
            if t + 8 <= until and (best is None or t < best[0]):
                best = (t, st)
        if best:
            self.emit_item(best[1])
        return bool(best)

    def force_read(self, p):
        while not self.blast[p].done:
            it = self.D[0]
            if it.after:
                while it.after() is None:
                    if self.B[0].after:
                        self.a.need(*self.B[0].after())
                    self.emit_item(self.B)
                keep, self.D = self.D, deque()
                self.await_(it.after())
                self.D = keep
            self.emit_item(self.D)

    def seg_start(self):
        if OPT["lvar"]:
            self.e(f"s_cmp_eq_u32 s{sMAS}, 0")
            self.e("s_cbranch_scc1 L_light")
            self.seg = (len(self.a.ins), len(self.a.vm), len(self.a.lg), len(self.tail))

    def seg_end(self):
        if not OPT["lvar"]:
            return
        import re
        i0, nvm, nlg, t0 = self.seg
        assert not self.a.lg
        q = {"vmcnt": list(range(-nvm, 0)), "lgkmcnt": list(range(-nlg, 0))}
        q2 = {k: list(x) for k, x in q.items()}
        b = Asm()
        b.ins = [Ins(i.text) for i in self.a.ins[i0 - 24:i0] if i.kind not in ("label", "dir")]
        npre = len(b.ins)
        b.ins.append(Ins("L_light:"))
        ren = lambda x: re.sub(r"(L_pfb?\d+)", r"\1l", x)
        for n, i in enumerate(self.a.ins[i0:]):
            drop = i.note == "opt" or (i.kind == "mfma" and f"v{vACC+64}" in i.w) or (i.kind == "dsread" and f"v{vTRF1}" in i.r)
            if i.kind == "wait":
                parts = []
                for k, c in re.findall(r"(vmcnt|lgkmcnt)\((\d+)\)", i.text):
                    c = int(c)
                    q[k] = q[k][max(0, len(q[k]) - c):] if c else []
                    left = [x for x in q2[k] if x in q[k]]
                    if len(left) < len(q2[k]) or c == 0:
                        parts.append(f"{k}({len(left)})")
                    q2[k] = left
                if parts:
                    b.ins.append(Ins("s_waitcnt " + " ".join(parts)))
                continue
            k = "vmcnt" if i.kind in ("vload", "vstore", "dma") else "lgkmcnt" if i.kind in ("dsread", "dswrite") else None
            if k:
                q[k].append(n)
                if not drop:
                    q2[k].append(n)
            if not drop and i.kind != "dir":
                b.ins.append(Ins(ren(i.text)))
        assert q["vmcnt"] == q2["vmcnt"]
        b.ins.append(Ins("s_branch L_heavy"))
        b.finalize()
        k = [n for n, i in enumerate(b.ins) if i.text == "L_light:"][0]
        self.tail += [ren(x) for x in self.tail[t0:]] + [i.text for i in b.ins[k:]]
        self.a.label("L_heavy")

    def prefetch_slot(self, sidx):
        if not OPT["wpf"]:
            return
        for reg, lo, hi, loads in ((sSLA, OPT["pfa0"], OPT["pfa1"], ((S_W1, 12, sPF1),)), (sSLB, OPT["pfb0"], OPT["pfb1"], ((S_W2, 12, sPF1), (S_WO, 3, sPF2)))):
            if lo <= sidx < hi:
                self.nlab += 1
                n = self.nlab
                self.e(f"s_cmp_eq_u32 s{reg}, {sidx - lo}")
                self.e(f"s_cbranch_scc1 L_pf{n}")
                self.a.label(f"L_pfb{n}")
                self.tail += [f"L_pf{n}:"]
                for srd, top, off in loads:
                    self.tail += [f"v_min_u32 v30, {top}, v{vL}", "v_lshlrev_b32 v30, 7, v30", f"buffer_load_dword a255, v30, {s(srd,4)}, s{off} offen"]
                self.tail += [f"s_branch L_pfb{n}"]

    def qkv(self):
        e = self.e
        qtok = {}
        self.sync(self.C, self.clast[1], self.ctok[0])
        self.stamp("chunk 0")
        self.add_chunk(2)
        self.rd_x(0)
        for n in range(4):
            qtok[n] = self.rd_q(*divmod(n, 3))
        self.rd_x(1)
        xq = deque([2, 3])
        for sidx in range(28):
            i = sidx // 4
            if sidx % 2 == 0:
                self.stamp(group=3)
            if sidx == 8:
                self.pe(f"v_add_u32 v{vT}, {TAG_STEP}, v{vT}")
                self.gate_write()
                self.push(lambda: self.a.need(self.tB1), 0)
                self.bias_init(vACC + 48, TB1)
            if sidx % 2 == 0:
                self.prefetch_slot(sidx // 2)
            self.a.need(*qtok[3 * sidx], *qtok[3 * sidx + 1], *qtok[3 * sidx + 2])
            for t in range(3):
                acc = v(vACC + 16 * t, 16)
                e(f"{MFMA} {acc}, {v(vWR+12*(sidx&1)+4*t,4)}, {v(vX+4*sidx,4)}, {acc if sidx else 0}")
                if t == 2 and sidx % 4 == 2:
                    if sidx < 26:
                        self.sync(self.C, self.clast[i + 2] if i < 5 else self.wlast[(0, 2)], self.ctok[i + 1], drain_lds=False)
                        if i + 3 < 7:
                            self.add_chunk(i + 3)
                        if i + 3 == 6:
                            for k in range(7):
                                self.add_w1(0, k)
                            self.seg_start()
                        xq.extend(range(4 * i + 4, 4 * i + 8))
                    else:
                        self.drain()
                        self.sync(self.C, self.wlast[(0, 2)], self.wtok[(0, 2)])
                n = 3 * sidx + t + 4
                if n < 84:
                    qtok[n] = self.rd_q(*divmod(n, 3))
                else:
                    self.rd_f((n - 84) >> 1, (n - 84) & 1)
                x = bool(xq)
                if x:
                    self.rd_x(xq.popleft())
                self.gap(8 if x else 12)

    QPK = (vTMP + 8, vACC + 40, vACC + 32)

    def qkv_pack(self, t):
        pe = self.pe
        acc, dst = vACC + 16 * t, self.QPK[t]
        pe(f"s_cmp_gt_i32 s{sNQ}, {t-16}")
        pe(f"s_cselect_b32 s{sT0}, 0x3f803f80, s{sT3}")
        pe(f"s_cselect_b32 s{sT2}, s{sT3}, 0")
        pe(f"s_cmp_gt_i32 s{sNQ}, {t}")
        pe(f"s_cselect_b32 s{sT1}, {QSCALE}, 1.0")
        pe(f"s_cselect_b32 s{sT0}, 0, s{sT0}")
        pe(f"s_cselect_b32 s{sT2}, 0, s{sT2}")
        pe(f"v_mov_b32 v28, s{sT0}")
        pe(f"v_mov_b32 v29, s{sT2}")
        for k in range(16):
            pe(f"v_mul_f32 v{acc+k}, s{sT1}, v{acc+k}")
        def store(half):
            pre = [f"s_add_u32 s{sCA}, s{sQS}, {t*64*2048}"] if half == 0 else ()
            self.C.append(Item(f"buffer_store_dwordx4 {v(dst+4*half,4)}, v{24+2*(t>>1)+half}, {s(S_WS,4)}, s{sCA} offen offset:{1024*half} sc1",
                               self.tQKV, pre=pre))
            self.lastS = self.C[-1]
        for k in range(8):
            pe(f"v_cvt_pk_bf16_f32 v{dst+k}, v{acc+2*k}, v{acc+2*k+1}")
            if k == 3:
                self.push(lambda: store(0), 0)
        pe(f"v_cndmask_b32 v{dst+6}, v{dst+6}, v28, {s(sHI,2)}")
        pe(f"v_cndmask_b32 v{dst+7}, v{dst+7}, v29, {s(sHI,2)}")
        self.push(lambda: store(1), 0)

    def b_slot(self, p):
        return (RING - RED) + (p % 6) * 4096 if p % 6 < 3 else (p % 6 - 3) * 4096

    def b_dma(self, p):
        toks = self.btok[p] = []
        out = []
        off = sBOFF if p < 14 else sBEND
        pre = [] if p in (0, 14) else [f"s_add_u32 s{off}, s{off}, " + (f"s{sBT}" if p < 14 else f"{28*896}")]
        post = []
        for k in range(4):
            out.append(Item(f"buffer_load_dwordx4 v{vBD+k}, {s(S_W2 if p < 14 else S_WO,4)}, s{off} offen" + (f" offset:{1024*k}" if k else "") + NT(8) + " lds",
                            toks, pre=pre if k == 0 else (), post=post if k == 3 else (), m0=(sRING, self.b_slot(p)),
                            lat=OPT["miss"] if p < 4 or p >= 14 else None,
                            after=(lambda: self.btr[p - 6] if len(self.btr.get(p - 6, ())) == 8 else None) if k == 0 and p >= 6 else None))
            out[-1].due = min(p, 14 + (p - 14) // 2) - 5
        return out

    def b_read(self, p):
        toks = self.btr[p] = []
        out = []
        for ks in range(2):
            for t in range(2):
                out.append(Item([f"ds_read_b64_tr_b16 {a_(16*(p%16)+8*ks+4*t+2*h,2)}, v{vBT0+t} offset:{self.b_slot(p)+ks*2048+h*1024}" for h in range(2)],
                                toks, after=(lambda: self.btok[p] if len(self.btok[p]) == 4 else None) if ks + t == 0 else None))
        self.blast[p] = out[-1]
        return out

    def gelu_two(self, acc, soff, n, packed):
        pe = self.pe
        T = vTMP + 12
        U = [acc + 2 * n, acc + 2 * n + 2]
        R = [T, T + 2]
        if packed:
            for u, r in zip(U, R):
                pe(f"v_pk_mul_f32 {v(r,2)}, {v(u,2)}, {v(u,2)}")
                pe(f"v_pk_fma_f32 {v(r,2)}, {v(r,2)}, {s(sK2,2)}, {v(vK1,2)} op_sel_hi:[1,1,0]")
                pe(f"v_pk_mul_f32 {v(r,2)}, {v(r,2)}, {v(u,2)}")
            for k in range(4):
                pe(f"v_exp_f32 v{T+k}, v{T+k}")
            for r in R:
                pe(f"v_pk_add_f32 {v(r,2)}, {v(r,2)}, 1.0 op_sel_hi:[1,0]")
            for k in range(4):
                pe(f"v_rcp_f32 v{T+k}, v{T+k}")
            for u, r in zip(U, R):
                pe(f"v_pk_mul_f32 {v(r,2)}, {v(r,2)}, {v(u,2)}")
        else:
            u = U[0]
            for k in range(4):
                pe(f"v_mul_f32 v{T+k}, v{u+k}, v{u+k}")
                pe(f"v_fma_f32 v{T+k}, v{T+k}, s{sK2}, v{vK1}")
                pe(f"v_mul_f32 v{T+k}, v{T+k}, v{u+k}")
            for k in range(4):
                pe(f"v_exp_f32 v{T+k}, v{T+k}")
            for k in range(4):
                pe(f"v_add_f32 v{T+k}, 1.0, v{T+k}")
            for k in range(4):
                pe(f"v_rcp_f32 v{T+k}, v{T+k}")
            for k in range(4):
                pe(f"v_mul_f32 v{T+k}, v{T+k}, v{u+k}")
        for d in range(2):
            pe(f"v_cvt_pk_bf16_f32 v{acc+n+d}, v{T+2*d}, v{T+2*d+1}")
        if n % 4 == 2:
            fr = n // 4
            self.push(lambda: self.C.append(Item(
                f"buffer_store_dwordx4 {v(acc+4*fr,4)}, v{vLIN}, {s(S_WS,4)}, s{soff} offen offset:{fr*1024} sc1", self.tH)), 0)

    def ffn(self, unit):
        e = self.e
        acc0 = vACC + 48 if unit == 0 else vACC
        for sidx in range(28):
            g = 28 * unit + sidx
            if sidx % 4 == 0:
                self.stamp(group=2)
            self.hook(f"ffn{unit}_{sidx}")
            self.a.need(*self.ftok[g])
            for t in range(2):
                acc = v(acc0 + 16 * t, 16)
                e(f"{MFMA} {acc}, {v(vWR+8*(g%3)+4*t,4)}, {v(vX+4*sidx,4)}, {acc}")
                if t == 0 and g in (10, 34, 42):
                    k = {10: (0, 6), 34: (1, 3), 42: (1, 6)}[g]
                    self.sync(self.C, self.wlast[k], self.wtok[k], drain_lds=False)
                if t == 0 and g == 26:
                    if True:
                        self.drain("biasb")
                        self.sync(self.C, self.wlast[(1, 1)], self.wtok[(1, 1)])
                        self.seg_end()
                        e(f"v_add_u32 v{vTRF0}, {R_B-R_A}, v{vTRF0}")
                        e(f"v_add_u32 v{vTRF1}, {R_B-R_A}, v{vTRF1}")
                        self.add_w1(1, 6)
                        self.B.extend(self.b_dma(3) + self.b_dma(4) + self.b_dma(5))
                        for p in range(6, OPT["bpre"]):
                            self.B.extend(self.b_dma(p))
                        for p in range(OPT["bpre"] - 6):
                            self.D.extend(self.b_read(p))
                if g + 2 < 56:
                    self.rd_f(g + 2, t)
                self.gap(12)

    def phase1(self):
        e, pe, m = self.e, self.pe, self.m
        self.btok, self.btr, self.blast = {}, {}, {}
        self.tQKV, self.tH, tG = [], [], []
        self.qkv()
        self.stamp("qkv done")
        e(f"s_cmp_lt_u32 s{sLOC}, 28")
        if not OPT["ipf"]:
            e(f"s_cselect_b32 s{S_W2+2}, {1792*896}, 0")
        e(f"s_cselect_b32 s{S_WO+2}, {448*896}, 0")
        if OPT["null"] & 1:
            e(f"s_mov_b32 s{S_W2+2}, 0")
            e(f"s_mov_b32 s{S_WO+2}, 0")
        if OPT["null"] & 2:
            e(f"s_mov_b32 s{sAOFF}, {OOB}")
            e(f"s_mov_b32 s{sAEND}, {OOB}")
        if OPT["null"] & 4:
            e(f"s_mov_b32 s{sHA}, {OOB}")
            e(f"s_mov_b32 s{sHB}, {OOB}")
            e(f"s_mov_b32 s{sQS}, {OOB}")
            e(f"s_mov_b32 s{sOS}, {OOB}")
        if OPT["null"] & 8:
            e(f"s_mov_b32 s{sKOFF}, {OOB}")
            e(f"s_mov_b32 s{sQOFF}, {OOB}")
        if OPT["null"] & 16:
            e(f"s_mov_b32 s{S_W1+2}, 0")
        pub1 = self.publish(sF1, self.tQKV, 6)
        nw = OPT["wbfirst"]
        for k in range(nw):
            self.add_w1(1, k)
        pe(f"s_movk_i32 s{sT3}, 0x3f80")
        self.qkv_pack(2)
        if nw < 2:
            self.push(lambda: self.add_w1(1, 1), 0)
        self.qkv_pack(1)
        self.qkv_pack(0)
        self.push(lambda: [self.add_w1(1, k) for k in range(max(nw, 2), 6)], 0)
        self.bias_init(vACC, TB1 + 128)
        self.mark("biasb")
        b012 = self.b_dma(0) + self.b_dma(1) + self.b_dma(2)
        self.hooks[f"ffn0_{OPT['bstart']}"] = lambda: self.B.extend(b012)
        self.ffn(0)
        self.force(self.C, self.lastS)
        self.stamp("ffn a done")
        accA = vACC + 48
        pe(f"v_mul_f32 v{vGATE}, {fbits(-math.log2(math.e))}, v{accA}")
        pe(f"v_exp_f32 v{vGATE}, v{vGATE}")
        pe(f"v_and_b32 v{vGA}, 31, v{vL}")
        pe(f"v_add_f32 v{vGATE}, 1.0, v{vGATE}")
        pe(f"v_lshlrev_b32 v{vGA}, 2, v{vGA}")
        pe(f"v_rcp_f32 v{vGATE}, v{vGATE}")
        pe(f"v_mov_b32 v{vTMP}, {OOB}")
        pe(f"v_cndmask_b32 v{vTMP}, v{vGA}, v{vTMP}, {s(sHI,2)}")
        self.push(lambda: self.C.append(Item(f"buffer_store_dword v{vGATE}, v{vTMP}, {s(S_WS,4)}, s{sGS} offen sc1", self.tH)), 0)
        ga = deque(range(0, 16, 2))
        while ga and ga[0] < OPT["npairs"]:
            self.gelu_two(accA, sHA, ga.popleft(), False)
        self.hooks[f"ffn1_{OPT['pub1']}"] = lambda: self.force(self.P, pub1)
        self.hooks[f"ffn1_{OPT['poll1']}"] = lambda: self.poll_item(vF1A, 0)
        self.ffn(1)
        self.hook("ffn1_28")
        e("s_barrier")
        self.stamp("ffn b done")
        m(f"v_lshlrev_b32 v{vTMP+1}, 2, v{vL}")
        self.tB2 = []
        self.C.append(Item(f"buffer_load_dword v{vTMP+1}, {s(S_B2,4)}, s{sCB} offen lds", self.tB2,
                           pre=[f"s_lshl_b32 s{sCB}, s{sCT}, 7"], m0=(None, TB2), lat=OPT["miss"]))
        self.b2item = self.C[-1]
        self.drain()
        k = 0
        for acc, soff, todo in ((accA, sHA, ga), (vACC, sHB, range(0, 16, 2))):
            for n in todo:
                if k == OPT["chk1"]:
                    self.drain(every=OPT["gev"])
                    self.poll_check(vF1A, 0)
                    self.att_loads()
                self.gelu_two(acc, soff, n, True)
                k += 1
        self.drain(every=OPT["gev"])
        self.stamp("gelu done")

    def att_loads(self):
        self.tKV = []
        items = []
        for bb in range(3):
            for part in range(2):
                pre = ([f"s_add_u32 s{sCA}, s{sKOFF}, {16*64*2048+2048*bb}", f"s_cmp_lt_i32 s{sKV0}, {-bb}", f"s_cselect_b32 s{sCA}, {OOB}, s{sCA}"]
                       if part == 0 else [f"s_add_u32 s{sCA}, s{sCA}, {16*64*2048}"])
                for k in range(2):
                    items.append(Item(f"buffer_load_dwordx4 v{vLIN}, {s(S_WS,4)}, s{sCA} offen" + (" offset:1024" if k else "") + " sc1 lds",
                                      self.tKV, pre=pre if k == 0 else (), m0=(sMKV, KV + 24576 * part + 2048 * bb), lat=OPT["miss"]))
        for k in range(2):
            items.append(Item(f"buffer_load_dwordx4 {v(vQ+4*k,4)}, v{vLIN}, {s(S_WS,4)}, s{sQOFF} offen offset:{1024*k} sc1", self.tKV, lat=OPT["miss"]))
        self.C.extendleft(reversed(items))
        self.kvlast = items[-1]

    def rd_k(self, n, em=None):
        for k in range(2):
            (em or self.m)(f"ds_read_b128 {v(vKR+8*(n%3)+4*k,4)}, v{vKA} offset:{(n%9)*2048+k*1024}")

    def rd_v(self, i, st):
        for h in range(2):
            self.e(f"ds_read_b64_tr_b16 {v(vVR+4*st+2*h,2)}, v{vVA} offset:{i*2048+256*(2*st+h)}")

    def qk(self, i, k):
        S = v(vS + 16 * (i & 1), 16)
        C = S if k else v(vM0 if i == 0 else vM8 if i == 8 else vCD, 16)
        self.e(f"{MFMA} {S}, {v(vKR+8*(i%3)+4*k,4)}, {v(vQ+4*k,4)}, {C}")

    def patch(self, i, src):
        if not 2 <= i <= 7 and src == "0":
            return
        self.nlab += 1
        n = self.nlab
        self.e(f"s_cmp_eq_u32 s{sFIRST}, {i}" if src == "0" else f"s_cmp_gt_u32 s{sFIRST}, 1")
        self.e(f"s_cbranch_scc1 L_pat{n}")
        self.a.label(f"L_patb{n}")
        self.tail += [f"L_pat{n}:", "s_nop 7"] + [f"v_mov_b32 v{vCD+k}, {src}" for k in range(16)] + ["s_nop 1", f"s_branch L_patb{n}"]

    def attention(self):
        e, pe, m = self.e, self.pe, self.m
        m(f"v_and_b32 v26, 31, v{vL}")
        m(f"v_lshrrev_b32 v27, 5, v{vL}")
        m(f"v_lshlrev_b32 v28, 2, v27")
        m(f"v_sub_u32 v26, v26, v28")
        m(f"s_cmp_gt_u32 s{sFIRST}, 0")
        m(f"s_cselect_b32 s{sT0}, {NINF}, 0")
        m(f"v_mov_b32 v28, s{sT0}")
        m(f"v_mov_b32 v29, {NINF}")
        m(f"s_cmp_gt_u32 s{sFIRST}, 1")
        m(f"s_cselect_b32 s{sT0}, {NINF}, 0")
        prs = (sM, sM3)
        for j0 in range(0, 16, 2):
            for d in range(2):
                jj = j0 + d
                m(f"v_cmp_le_i32 {s(prs[d],2)}, {(jj&3)+8*(jj>>2)}, v26")
            for d in range(2):
                m(f"v_mov_b32 v{vCD+j0+d}, s{sT0}")
            for d in range(2):
                jj = j0 + d
                m(f"v_cndmask_b32 v{vM8+jj}, v29, 0, {s(prs[d],2)}")
                m(f"v_cndmask_b32 v{vM0+jj}, v28, v29, {s(prs[d],2)}")
        m(f"s_lshl_b32 s{sT1}, s{sW}, 11")
        m(f"s_add_u32 s{sT1}, s{sT1}, {KV}")
        m(f"v_add_u32 v{vKA}, s{sT1}, v{vLIN}")
        m(f"v_mov_b32 v{vMX}, {NINF}")
        m(f"v_mov_b32 v{vMX+1}, {NINF}")
        m(f"v_add_u32 v{vA1H}, {112*1024}, v{vLIN}")
        self.sync(self.C, self.kvlast, self.tKV, drain_lds=False)
        self.stamp("kv in")
        pub2 = self.publish(sT3, self.tH, 9, pre=[f"s_add_u32 s{sT3}, s{sF1}, {F2-F1}"])
        self.rd_k(0)
        self.rd_k(1)
        for i in range(10):
            if i % 2 == 0:
                self.stamp(group=4)
            if i < 9:
                self.patch(i, "0")
                self.qk(i, 0)
                self.rd_k(i + 2, e)
                self.qk(i, 1)
                self.cluster()
            if i > 0:
                S = vS + 16 * ((i - 1) & 1)
                for k in range(8):
                    e(f"v_max3_f32 v{vMX+(k&1)}, v{S+2*k}, v{S+2*k+1}, v{vMX+(k&1)}")
        m(f"v_max_f32 v{vMX}, v{vMX}, v{vMX+1}")
        m(f"v_mov_b32 v{vMX+1}, v{vMX}")
        m(f"v_permlane32_swap_b32 v{vMX}, v{vMX+1}")
        m(f"v_max_f32 v{vMX}, v{vMX}, v{vMX+1}")
        m(f"v_cvt_pk_bf16_f32 v26, -v{vMX}, -v{vMX}")
        m(f"v_lshlrev_b32 v26, 16, v26")
        m(f"v_sub_f32 v26, -v{vMX}, v26")
        m(f"v_cvt_pk_bf16_f32 v27, -v{vMX}, v26")
        m(f"v_and_b32 v28, 0xffff0000, v27")
        m(f"v_sub_f32 v26, v26, v28")
        m(f"v_cndmask_b32 v{vQ+6}, v{vQ+6}, v27, {s(sHI,2)}")
        m(f"v_cvt_pk_bf16_f32 v26, v26, 0")
        self.patch(1, "v29")
        m(f"v_cndmask_b32 v{vQ+7}, v{vQ+7}, v26, {s(sHI,2)}")
        self.qk(0, 0)
        self.rd_k(2)
        self.qk(0, 1)
        self.stamp("pass 1 done")
        O = v(vO, 16)
        for i in range(9):
            S = vS + 16 * (i & 1)
            ex = lambda k: e(f"v_exp_f32 v{S+k}, v{S+k}")
            cv = lambda k: e(f"v_cvt_pk_bf16_f32 v{vP+k}, v{S+2*k}, v{S+2*k+1}")
            self.stamp(group=4)
            if i == OPT["chk0"]:
                self.force(self.C)
                self.force_p()
            if i == OPT["poll2"]:
                self.poll_item(vF23A, f"s{sF2O}")
            if i == OPT["chk2"]:
                self.de_start()
            if i < 8:
                self.patch(i + 1, "0")
                self.qk(i + 1, 0)
            self.rd_v(i, 0)
            self.rd_v(i, 1)
            self.cluster(1)
            for k in range(4):
                ex(k)
            if i < 8:
                self.qk(i + 1, 1)
            self.cluster()
            for k in range(4, 9):
                ex(k)
            for k in range(4):
                cv(k)
            ex(9)
            ex(10)
            e(f"{MFMA} {O}, {v(vVR,4)}, {v(vP,4)}, {O if i else 0}")
            if i < 6:
                self.rd_k(i + 3, e)
            self.cluster(1)
            for k in range(11, 16):
                ex(k)
            for k in range(4, 8):
                cv(k)
            self.cluster()
            e(f"{MFMA} {O}, {v(vVR+4,4)}, {v(vP+4,4)}, {O}")
        self.force(self.C, self.b2item)
        self.a.need(*self.tB2)
        m(f"v_lshrrev_b32 v26, 1, v{vGA}")
        m(f"ds_read_u16 v{vBI}, v26 offset:{TB2}")
        m(f"ds_read_u16 v{vBI+4}, v26 offset:{TB2+64}")
        m(f"s_cmp_eq_u32 s{sW}, 0")
        m(f"s_cselect_b32 s{sT0}, 0x3f80, 0")
        m(f"v_mov_b32 v26, s{sT0}")
        for k in (1, 2, 3, 5, 6, 7, 9, 10, 11):
            m(f"v_mov_b32 v{vBI+k}, 0")
        m(f"v_cndmask_b32 v{vBI+8}, v26, 0, {s(sHI,2)}")
        self.force(self.C, self.gitem)
        m(f"v_mov_b32 v{vMX}, v{vO+12}")
        m(f"v_mov_b32 v{vMX+1}, v{vO+12}")
        m(f"v_permlane32_swap_b32 v{vMX}, v{vMX+1}")
        m(f"v_rcp_f32 v{vMX}, v{vMX+1}")
        m(f"v_mul_f32 v{vMX}, v{vMX}, v{vGATE}")
        for k in range(8):
            m(f"v_pk_mul_f32 {v(vO+2*k,2)}, {v(vO+2*k,2)}, {v(vMX,2)} op_sel_hi:[1,0]")
        self.tO = []
        for k in range(8):
            m(f"v_cvt_pk_bf16_f32 v{vP+k}, v{vO+2*k}, v{vO+2*k+1}")
            if k == 3:
                self.P.append(Item(f"buffer_store_dwordx4 {v(vP,4)}, v{vLIN}, {s(S_WS,4)}, s{sOS} offen sc1", self.tO))
        m(f"v_cndmask_b32 v{vP+6}, v{vP+6}, 0, {s(sHI,2)}")
        self.P.append(Item(f"buffer_store_dwordx4 {v(vP+4,4)}, v{vLIN}, {s(S_WS,4)}, s{sOS} offen offset:1024 sc1", self.tO))
        self.drain()
        self.force(self.P)
        self.stamp("attention done")

    def ar(self, p, k):
        if p >= 14:
            return a_(32 + 16 * (p - 14) + 4 * k, 4)
        return v((64, 80, 104, 120, 24)[p % OPT["depth"]] + 4 * k, 4)

    def a_load(self, p):
        for n in range(4):
            if p < 14:
                ad, so, imm = (vLIN, vA1H)[n & 1], sAOFF, 1024 * (n >> 1)
                pre = [f"s_add_u32 s{sAOFF}, s{sAOFF}, 2048"] if p and n == 0 else ()
            else:
                ad, so, imm = vLIN, sAEND, 1024 * n
                pre = [f"s_add_u32 s{sAEND}, s{sAEND}, {(0, 4096, 32768-4096, 4096)[p-14]}"] if p > 14 and n == 0 else ()
            self.C.append(Item(f"buffer_load_dwordx4 {self.ar(p,n)}, v{ad}, {s(S_WS,4)}, s{so} offen offset:{imm} sc1",
                               self.atok.setdefault(p, []), pre=pre, lat=OPT["miss2"]))
            self.C[-1].due = p - 3 if p < 14 else p - 4
        self.alast[p] = self.C[-1]

    def de_start(self):
        e = self.e
        self.alast, self.atok = {}, {}
        self.poll_check(vF23A, f"s{sF2O}")
        for p in range(OPT["depth"]):
            self.a_load(p)
        self.C.append(Item(f"buffer_load_dword v{vGATE}, v{vGA}, {s(S_WS,4)}, s{sGQ} offen sc1", lat=OPT["miss"]))
        self.C.rotate(1)
        self.gitem = self.C[0]
        for rb in range(2):
            self.C.append(Item(f"buffer_load_dword v{vG+rb}, v{vGA}, {s(S_WS,4)}, s{sGD} offen offset:{128*rb} sc1", lat=OPT["miss"]))
            self.C[-1].due = 1

    def de(self):
        e, pe, m = self.e, self.pe, self.m
        e(f"s_cmp_ge_u32 s{sLOC}, 28")
        e("s_cbranch_scc1 L_idle")
        started = sum(1 for p in range(4) if self.atok.get(p))
        self.bfirst = True
        for p in range(OPT["bpre"], 18):
            self.B.extend(self.b_dma(p))
        for p in range(OPT["bpre"] - 6, 16):
            self.D.extend(self.b_read(p))
        self.publish(sF3P, self.tO, 2)

        def mm(p, n):
            if p < 14:
                ks, qd = (n & 1, n >> 1) if p == 13 else (n >> 2, n & 3)
                B, A = 16 * p + 8 * ks + 4 * (qd & 1), self.ar(p, 2 * ks + (qd >> 1))
            else:
                fr, t = (n >> 1, n & 1) if p in (14, 16) else (n & 3, 1 - (n >> 2))
                qd = 2 * ((p - 14) >> 1) + t
                B, A = (16 * (14 + 2 * (p & 1)) + 8 * fr + 4 * t) % 256, self.ar(p, fr)
            acc = v(vAB + 16 * qd, 16)
            e(f"{MFMA} {acc}, {a_(B,4)}, {A}, {0 if p == 0 and n < 4 else acc}")

        def scale(qd):
            for k in range(16):
                pe(f"v_mul_f32 v{vAB+16*qd+k}, v{vG+(qd>>1)}, v{vAB+16*qd+k}")

        def put(rb, i):
            h, k = (1, 3, 2)[i >> 1], i & 1
            e(f"ds_write_b128 v24, {v(vAB+32*rb+16*(h&1)+8*(h>>1)+4*k,4)} offset:{rb*(RING-RED)+h*2048+k*1024}")

        def get(rb):
            R, S = 208, vAB + 32 * rb
            for h in range(1, 4):
                for k in range(2):
                    pe(f"ds_read_b128 {v(R+8*h+4*k,4)}, v{24+h} offset:{rb*(RING-RED)+k*1024}")
            for h in range(1, 4):
                if rb:
                    for k in range(4):
                        pe(f"v_pk_add_f32 {v(S+2*k,2)}, {v(S+2*k,2)}, {v(R+8*h+2*k,2)}")
                else:
                    for k in range(8):
                        pe(f"v_add_f32 v{S+k}, v{S+k}, v{R+8*h+k}")
            for k in range(4):
                pe(f"v_cvt_pk_bf16_f32 v{32+4*rb+k}, v{S+2*k}, v{S+2*k+1}")
            if rb:
                pe(f"s_add_u32 s{sOUT}, s{sOUT}, {32*896}")
            for d in range(2):
                pe(f"v_permlane32_swap_b32 v{32+4*rb+d}, v{32+4*rb+2+d}")
            pe(f"buffer_store_dwordx4 {v(32+4*rb,4)}, v28, {s(S_OUT,4)}, s{sOUT} offen")

        for p in range(18):
            if p < 6 or p >= 9:
                self.stamp(group=5)
            self.force(self.C if p < 14 else self.B, self.alast[p])
            for pb in ([p] if p < 14 else [14 + 2 * (p & 1), 15 + 2 * (p & 1)]):
                self.force_read(pb)
            self.await_(self.atok[p][:2])
            if p in (1, 2):
                self.D.extend(self.b_read(15 + p))
            if p == 3:
                for qd in range(4):
                    acc = v(vAB + 16 * qd, 16)
                    e(f"{MFMA} {acc}, {v(vBI+4*(qd&1),4)}, {v(vBI+8,4)}, {acc}")
                    self.side()
            if p == OPT["poll3"]:
                e(f"s_add_u32 s{sF2O}, s{sF2O}, {F3-F2}")
                self.poll_item(vF23A, f"s{sF2O}")
            if p == 11:
                pe(f"v_add_u32 v24, s{sRING}, v{vLIN}")
                for h in range(1, 4):
                    pe(f"s_xor_b32 s{sT0}, s{sW}, {h}")
                    pe(f"s_mul_i32 s{sT0}, s{sT0}, 12288")
                    pe(f"s_add_u32 s{sT0}, s{sT0}, {RED+2048*h}")
                    pe(f"v_add_u32 v{24+h}, s{sT0}, v{vLIN}")
                pe(f"v_and_b32 v28, 31, v{vL}")
                pe(f"v_mul_u32_u24 v28, 896, v28")
                pe(f"v_lshrrev_b32 v29, 5, v{vL}")
                pe(f"v_lshl_add_u32 v28, v29, 4, v28")
                for rb in range(2):
                    pe(f"v_sub_f32 v{vG+rb}, 1.0, v{vG+rb}")
            if p == 14:
                self.drain()
            if p == 16:
                self.drain()
            for n in range(8):
                mm(p, n)
                if p == 13 and n in (3, 5):
                    scale((n - 3) >> 1)
                if p == 14 and n == 0:
                    scale(2)
                    scale(3)
                if p in (15, 17) and n >= 6:
                    put(p >> 4, n - 6)
                elif p == 16 and n < 4:
                    put(0, n + 2)
                if p == 16 and n == 5:
                    e("s_waitcnt lgkmcnt(0)")
                    e("s_barrier")
                    get(0)
                self.gap(32 if p == 13 else 8 if p == 16 and n < 7 else 24)
            if p + OPT["depth"] < 14:
                self.a_load(p + OPT["depth"])
            if p == OPT["chk3"]:
                self.poll_check(vF23A, f"s{sF2O}")
                keep, self.C = self.C, deque()
                for q in range(14, 18):
                    self.a_load(q)
                self.B.extend(self.C)
                self.C = keep
        self.stamp("pair 17 done")
        assert not self.q
        for i in range(2, 6):
            put(1, i)
        e("s_waitcnt lgkmcnt(0)")
        e("s_barrier")
        get(1)
        self.drain()
        self.stamp("end")
        self.write_stamps()
        e("s_endpgm")
        self.a.label("L_idle")
        self.a.vm, self.a.lg = [], []
        n = 0
        todo = range(started, 14 - OPT["pa0"]) if OPT["ipf"] else []
        for q in todo:
            e(f"s_add_u32 s{sAOFF}, s{sAOFF}, 2048")
            for k in range(4):
                self.a._push(Ins(f"buffer_load_dwordx4 {v(64+4*k,4)}, v{(vLIN, vA1H)[k & 1]}, {s(S_WS,4)}, s{sAOFF} offen offset:{1024*(k>>1)} sc1"))
                n += 1
            if n == 8:
                e(f"s_waitcnt vmcnt({n})")
                e(self.pub_text(sF3P))
        if n < 8:
            e(f"s_waitcnt vmcnt({n})")
            e(self.pub_text(sF3P))
        if OPT["ipf"]:
            e(f"s_add_u32 s{sF2O}, s{sF2O}, {F3-F2}")
            e(f"buffer_load_dword {v(vPOLL)}, {v(vF23A)}, {s(S_WS,4)}, s{sF2O} offen sc1")
            self.poll_check(vF23A, f"s{sF2O}")
            for q in range(4):
                for k in range(4):
                    self.a._push(Ins(f"buffer_load_dwordx4 {v(64+4*k,4)}, v{vLIN}, {s(S_WS,4)}, s{sAEND} offen offset:{1024*k} sc1"))
                if q < 3:
                    e(f"s_add_u32 s{sAEND}, s{sAEND}, {(4096, 32768-4096, 4096)[q]}")
        e("s_cmp_lg_u32 s2, 248")
        e("s_cbranch_scc1 L_end")
        e(f"s_cmp_lg_u32 s{sW}, 0")
        e("s_cbranch_scc1 L_end")
        e(f"v_lshlrev_b32 v24, 7, v{vL}")
        e(f"s_mov_b32 s{sSPIN}, 0")
        self.a.label("L_ep")
        for k in range(16):
            e(f"s_mov_b32 s{sT0}, {F1+8192*k}")
            e(f"buffer_load_dword v{40+k}, v24, {s(S_WS,4)}, s{sT0} offen sc1")
        e(f"s_add_u32 s{sSPIN}, s{sSPIN}, 1")
        e("s_waitcnt vmcnt(0)")
        for k in range(16):
            e(f"v_xor_b32 v{40+k}, v{vT}, v{40+k}")
        for k in range(1, 16):
            e(f"v_or_b32 v40, v40, v{40+k}")
        e(f"v_cmp_ne_u32 vcc, 0, v40")
        e(f"s_cmp_gt_u32 s{sSPIN}, 0x8000")
        e("s_cbranch_scc1 L_epd")
        e("s_cbranch_vccnz L_ep")
        self.a.label("L_epd")
        e(f"s_mov_b32 s{sT0}, {E_OFF}")
        e(self.pub_text(sT0))

    def write_stamps(self):
        e = self.e
        if OPT["probe"]:
            e(f"s_sub_u32 s{sT0}, s{sP0+1}, s{sP0}")
            e(f"s_lshl_b32 s{sT0}, s{sT0}, 2")
            e(f"s_add_u32 s{sT0}, s{sT0}, 72000")
            self.a.label("L_probe")
            e(f"s_memtime {s(sM3,2)}")
            e("s_waitcnt lgkmcnt(0)")
            e(f"s_sub_u32 s{sT1}, s{sM3}, s{sP0}")
            e(f"s_cmp_lt_u32 s{sT1}, s{sT0}")
            e("s_cbranch_scc1 L_probe")
        if not OPT["stamps"]:
            return
        e(f"s_lshl_b32 s{sT0}, s2, 2")
        e(f"s_add_u32 s{sT0}, s{sT0}, s{sW}")
        e(f"s_lshl_b32 s{sT1}, s{sT0}, 7")
        e(f"s_add_u32 s{sT1}, s{sT1}, {ST_BASE}")
        e(f"s_mov_b32 s{sT2}, {self.nst}")
        e(f"v_lshlrev_b32 v40, 2, v{vL}")
        e(f"v_writelane_b32 v{vST}, s{sT2}, 31")
        e(f"v_writelane_b32 v{vST}, s{sP0}, 30")
        e("s_memrealtime s[88:89]")
        e("s_waitcnt lgkmcnt(0)")
        e(f"v_writelane_b32 v{vST}, s88, 28")
        e(f"v_cmp_gt_u32 vcc, 32, v{vL}")
        e(f"v_mov_b32 v41, {OOB}")
        e(f"v_cndmask_b32 v40, v41, v40, vcc")
        e(f"buffer_store_dword v{vST}, v40, {s(S_WS,4)}, s{sT1} offen")

    def build(self):
        self.prologue()
        self.phase1()
        self.attention()
        self.de()
        self.a.label("L_end")
        self.e("s_endpgm")
        if OPT["strip"]:
            keep, pro = [], True
            for i in self.a.ins:
                if i.kind == "barrier":
                    pro = False
                drop = i.kind in ("mfma", "trans", "dsread", "dswrite") or (
                    not pro and i.kind == "valu" and any(r[0] == "v" and r != "vcc" and int(r[1:]) >= 30 for r in i.w) and "v40" not in i.w and "v41" not in i.w)
                if OPT["strip"] == 2 and i.kind == "vstore" and "x4" in i.mn:
                    i = Ins(i.text.replace("offen", "offen").replace(f"v{vLIN},", f"v{vL0},").replace("v24,", f"v{vL0},").replace("v25,", f"v{vL0},").replace("v26,", f"v{vL0},").replace("v27,", f"v{vL0},"))
                if not drop:
                    keep.append(i)
            self.a.ins = keep
        self.a.finalize()
        body = self.a.text() + "\n" + "\n".join(t if t.endswith(":") else "    " + t for t in self.tail) + "\nL_code_end:\n    s_endpgm\n"
        head = f"""; Fused gated mix: sliding-window attention branch + GELU FFN branch, one persistent launch.
; @launch grid=(256,1,1) block=(256,1,1) lds={LDS_SIZE}
.amdgcn_target "amdgcn-amd-amdhsa--gfx950"
.text
.globl {NAME}_kernel
.p2align 8
.type {NAME}_kernel,@function
{NAME}_kernel:
"""
        foot = f""".section .rodata,"a"
.p2align 6
.amdhsa_kernel {NAME}_kernel
  .amdhsa_next_free_vgpr 512
  .amdhsa_next_free_sgpr 102
  .amdhsa_accum_offset 256
  .amdhsa_group_segment_fixed_size 0
  .amdhsa_kernarg_size 96
  .amdhsa_user_sgpr_count 2
  .amdhsa_user_sgpr_kernarg_segment_ptr 1
  .amdhsa_system_sgpr_workgroup_id_x 1
  .amdhsa_float_denorm_mode_32 3
.end_amdhsa_kernel
"""
        return head + body + foot


if __name__ == "__main__":
    g = Gen()
    txt = g.build()
    out = sys.argv[1] if len(sys.argv) > 1 else f"cdna_kernels/{NAME}.s"
    open(out, "w").write(txt)
    kinds = {}
    for i in g.a.ins:
        kinds[i.kind] = kinds.get(i.kind, 0) + 1
    print(out, g.a.stats, kinds)
    if OPT["log"]:
        print("\n".join(g.a.log))
        print("model stalls", g.a.stall, "pipe busy", g.a.busy)
```

```python
import math, struct, sys
from collections import deque
sys.path.insert(0, "tools")
from asmlib import Asm, Ins, v, a_, s

NAME = "gated_mix__sliding_block__dense_activation_gelu__prompt"
OPT = dict(stamps=0, dbg=0, npairs=2, probe=0, poll1=22, poll2=3, chk2=6, poll3=7, norot=0, log=0,
           miss=480, pub1=10, svc=64, st=160, lat=480, win=8, strip=0, rot1=3, rot2=2, cpf=1, nt=0, split=1, wpf=1, wsoff=0, rt=0, ldsq=24, pfa0=2, pfa1=7, pfb0=7, pfb1=14, miss2=480, chk0=1, ipf=0, pa0=7, pb0=6, stlat=800, lat0=1800, bstart=0, null=0, gev=10, wbfirst=2, chk1=2, bpre=18, depth=5, chk3=9, lvar=0, karg2=0)
for arg in sys.argv[2:]:
    k, val = arg.split("=")
    assert k in OPT, k
    OPT[k] = int(val)


def fbits(x):
    return struct.unpack("<I", struct.pack("<f", x))[0]


QKV_BASE, H_BASE, O_BASE, G_BASE = 0, 0x600000, 0xD00000, 0xF00000
F_BASE, E_OFF, ST_BASE, WS_SIZE = 0xF10000, 0xF80000, 0xFA0000, 0x1000000
F1, F2, F3, F0 = F_BASE, F_BASE + 1024 * 128, F_BASE + 2048 * 128, F_BASE + 3072 * 128
OOB = 0x40000000
TAG_STEP = 0x6B43A9B7
R_A, R_Q, R_B, RING = 0, 57344, 106496, 57344
KV = R_B
XST = 106496
TB1, DUMMY, TB2, RED = 163328, 159744, 0, 8192
LDS_SIZE = 163840
S_CODE, S_X, S_WO, S_W1, S_W2, S_GW, S_WS, S_WQ, S_B1, S_B2, S_OUT = 4, 8, 12, 16, 20, 24, 28, 32, 36, 40, 44
sMX = 3
sW, sC, sLIGHT, sUA, sUB, sJ, sRB0, sCT, sLOC, sRB, sQB, sFIRST = range(48, 60)
sT0, sT1, sT2, sT3 = 60, 61, 62, 63
sHI, sM, sG = 64, 66, 68
sCA, sCB, sBT = 75, 76, 77
sMQ, sMA, sMAS, sMB, sRING = 78, 79, 80, 81, 82
sBOFF, sBEND, sAOFF, sAEND, sKV0 = 83, 84, 85, 86, 87
sM3, sF2O, sSPIN = 88, 90, 91
sQS, sHA, sHB, sF1, sGS, sF0P = 0, 1, 4, 5, 6, 7
sKOFF, sMKV, sQOFF, sOS, sF3P, sF0R, sK2 = 36, 37, 38, 39, 24, 25, 26
sGQ, sGD, sNQ, sOUT = 92, 93, 94, 95
sPF1, sPF2, sSLA, sSLB = 96, 97, 98, 99
sP0 = 100
vL, vLIN, vT, vL0, vK1, vST = 0, 1, 2, 3, 4, 5
vTRQ, vTRF0, vTRF1 = 6, 7, 8
vW1A0, vW1A1, vPV = 9, 10, 11
vBD = 12
vBT0, vBT1 = 16, 17
vF1A, vF23A = 18, 19
vWQ = 20
vPOLL, vGA, vGATE = 20, 21, 22
vTBL = 23
vTMP = 24
vXD, vXR = 32, 36
vWR = 40
vACC = 64
vX = 144
vQ, vS, vCD, vM0, vM8, vO, vP, vMX = 96, 144, 176, 192, 208, 224, 240, 248
vKR, vVR, vKA, vVA = 40, 136, 6, 11
vAB, vBI, vA1H, vG = 144, 208, 8, 9

C_GELU = -2.0 * math.sqrt(2.0 / math.pi) * math.log2(math.e)
K1, K2 = fbits(C_GELU), fbits(C_GELU * 0.044715)
QSCALE = fbits(math.log2(math.e) / math.sqrt(28.0))
NINF = 0xFF800000
MFMA = "v_mfma_f32_32x32x16_bf16"


def NT(bit):
    return " nt" if OPT["nt"] & bit else ""


class Item:
    def __init__(self, text, sink=None, pre=(), post=(), m0=None, after=None, lat=None, pre0=()):
        self.pre0 = pre0
        self.text = [text] if isinstance(text, str) else text
        self.sink, self.pre, self.post, self.m0, self.after, self.lat = sink, pre, post, m0, after, lat
        self.vm = self.text[0].startswith("buffer")
        self.done = False
        self.due = 0


class Gen:
    def __init__(self):
        self.a = Asm()
        self.a.verbose = OPT['log'] > 1
        self.a.p_svc, self.a.p_st, self.a.p_lat, self.a.p_win = OPT['svc'], OPT['st'], OPT['lat'], OPT['win']
        self.a.p_stlat = OPT['stlat']
        self.a.wq = s(S_WQ, 4)
        self.q = deque()
        self.P, self.C, self.B, self.D = deque(), deque(), deque(), deque()
        self.tail = []
        self.nst = self.nlab = self.nmark = 0
        self.marks = set()
        self.m0 = None
        self.hooks = {}
        self.bfirst = False

    def e(self, t):
        return self.a.e(t)

    def emit_item(self, st):
        it = st.popleft()
        c0 = len(self.a.ins)
        if it.after:
            toks = it.after()
            assert toks is not None, "forced item whose producers are not emitted: " + it.text[0]
            self.a.need(*toks)
        for t in it.pre0:
            self.e(t)
        if it.m0 and it.m0 != self.m0:
            reg, imm = it.m0[:2]
            self.e(f"s_mov_b32 m0, {imm}" if reg is None else f"s_add_u32 m0, s{reg}, {imm}" if imm else f"s_mov_b32 m0, s{reg}")
            self.m0 = it.m0
        for t in it.pre:
            self.e(t)
        for t in it.text:
            self.a.next_lat = it.lat
            k = self.e(t)
            if it.sink is not None:
                it.sink.append(k)
        for t in it.post:
            self.e(t)
        if getattr(it, "opt", False):
            for i in self.a.ins[c0:]:
                if i.kind != "wait":
                    i.note = "opt"
        it.done = True
        return 4 * (len(self.a.ins) - c0) + (4 if it.vm else 0)

    def vm_streams(self):
        if self.bfirst and self.B and self.C and self.B[0].due < self.C[0].due:
            return (self.P, self.B, self.C)
        return (self.P, self.C, self.B)

    def ready(self, it):
        if it.after:
            toks = it.after()
            return toks is not None and self.a.est(toks) <= self.a.clk
        return True

    def side(self, both=True):
        a = self.a
        cost = 0
        if a.vm_free():
            for st in self.vm_streams():
                if st and self.ready(st[0]):
                    cost = self.emit_item(st)
                    break
        if (both or not cost) and self.D and a.lds_free - a.clk <= OPT["ldsq"] and self.ready(self.D[0]):
            cost += self.emit_item(self.D)
        return cost

    def force(self, st, it=None):
        while st and (it is None or not it.done):
            self.emit_item(st)

    def m(self, t):
        k = self.e(t)
        if not t.startswith(("s_cmp", "s_cselect", "v_cmp")):
            self.side(False)
        return k

    def push(self, fn, cost=4):
        self.q.append((fn, cost))

    def pe(self, t):
        cost = 8 if Ins(t).kind == "trans" else 4
        if t.startswith("s_cselect"):
            fn, c = self.q.pop()
            assert getattr(fn, "scc", False), "s_cselect must follow its s_cmp directly: " + t
            g = lambda fn=fn, t=t: (fn(), self.e(t))
            g.scc = True
            self.q.append((g, c + cost))
            return
        f = lambda t=t: self.e(t)
        f.scc = t.startswith("s_cmp")
        self.q.append((f, cost))

    def gap(self, budget):
        budget -= self.side(budget >= 24)
        while self.q and budget >= min(self.q[0][1], 8):
            fn, c = self.q.popleft()
            fn()
            budget -= c

    def cluster(self, nd=2):
        self.side(True)
        for _ in range(nd - 1):
            if self.D and self.ready(self.D[0]):
                self.emit_item(self.D)

    def drain(self, name=None, every=1):
        n = 0
        while (self.q if name is None else name not in self.marks):
            self.q.popleft()[0]()
            n += 1
            if n % every == 0:
                self.cluster()

    def mark(self, name):
        self.push(lambda: self.marks.add(name), 0)

    def hook(self, name):
        fn = self.hooks.pop(name, None)
        if fn:
            fn()

    def stamp(self, name="", group=1):
        if group == 1:
            self.a.log.append(f"{self.a.clk:6d} {name}  (pipe busy {self.a.busy} idle {self.a.idle} ops {self.a.nvm}; left C {len(self.C)} B {len(self.B)} D {len(self.D)})")
        if (OPT["stamps"] == group or (OPT["stamps"] and (self.nst == 0 or name == "end" or (name == "chunk 0" and OPT["stamps"] == 9)))) and self.nst < 16:
            clk = self.a.clk
            self.e(f"{'s_memrealtime' if OPT['rt'] else 's_memtime'} {s(sM3,2)}")
            self.e("s_waitcnt lgkmcnt(0)")
            self.e(f"v_writelane_b32 v{vST}, s{sM3}, {self.nst}")
            self.a.clk = clk
            self.nst += 1
        if group == 1:
            self.nmark += 1
            if OPT["probe"] == self.nmark:
                self.e(f"s_memtime {s(sM3,2)}")
                self.e("s_waitcnt lgkmcnt(0)")
                self.e(f"s_mov_b32 s{sP0+1}, s{sM3}")

    def poll_item(self, addr, soff):
        it = Item(f"buffer_load_dword {v(vPOLL)}, {v(addr)}, {s(S_WS,4)}, {soff} offen sc1", lat=OPT["miss"])
        self.P.append(it)
        return it

    def poll_check(self, addr, soff):
        self.force_p()
        self.await_([k for k, r in self.a.vm if f"v{vPOLL}" in r])
        self.nlab += 1
        n = self.nlab
        if OPT["stamps"]:
            self.e(f"s_mov_b32 s{sSPIN}, 0")
        self.e(f"v_cmp_ne_u32 vcc, {v(vT)}, {v(vPOLL)}")
        self.e(f"s_cbranch_vccnz L_slow{n}")
        self.a.label(f"L_back{n}")
        if OPT["stamps"]:
            self.npoll = getattr(self, "npoll", 0) + 1
            self.e(f"v_writelane_b32 v{vST}, s{sSPIN}, {15 + self.npoll}")
        self.tail += [f"L_slow{n}:", f"s_mov_b32 s{sSPIN}, 0", f"L_spin{n}:",
                      f"buffer_load_dword {v(vPOLL)}, {v(addr)}, {s(S_WS,4)}, {soff} offen sc1",
                      f"s_add_u32 s{sSPIN}, s{sSPIN}, 1",
                      "s_waitcnt vmcnt(0)",
                      f"v_cmp_ne_u32 vcc, {v(vT)}, {v(vPOLL)}",
                      f"s_cmp_gt_u32 s{sSPIN}, 0x20000",
                      f"s_cbranch_scc1 L_back{n}",
                      f"s_cbranch_vccnz L_spin{n}",
                      f"s_branch L_back{n}"]

    def pub_text(self, soff):
        return f"buffer_store_dword {v(vT)}, {v(vL0)}, {s(S_WS,4)}, s{soff} offen sc1"

    def publish(self, soff, toks, n, pre=()):
        it = Item(self.pub_text(soff), pre=pre, after=lambda: toks if len(toks) == n else None)
        self.P.append(it)
        return it

    def prologue(self):
        e, m = self.e, self.m
        if OPT["probe"] or OPT["stamps"]:
            e(f"s_memtime {s(sP0,2)}")
        if OPT["stamps"]:
            e("s_memrealtime s[88:89]")
        e("s_load_dwordx16 s[8:23], s[0:1], 0")
        if not OPT["karg2"]:
            e("s_load_dwordx8 s[24:31], s[0:1], 64")
        if OPT["probe"] == 101:
            e("s_waitcnt lgkmcnt(0)")
            e(f"s_memtime {s(sM3,2)}")
            e("s_waitcnt lgkmcnt(0)")
            e(f"s_mov_b32 s{sP0+1}, s{sM3}")
        e("s_cmp_ge_u32 s2, 256")
        e("s_cbranch_scc1 L_end")
        e(f"s_getpc_b64 {s(S_CODE,2)}")
        self.a.label("L_pc")
        e(f"s_lshr_b32 s{sLOC}, s2, 3")
        e(f"v_lshrrev_b32 v1, 6, v0")
        e(f"v_and_b32 v{vL}, 63, v0")
        e(f"s_and_b32 s{sT0}, s{sLOC}, 7")
        e(f"v_readfirstlane_b32 s{sW}, v1")
        e(f"s_mov_b32 s{S_CODE+2}, L_code_end-L_pc")
        e(f"s_mov_b32 s{S_CODE+3}, 0x20000")
        e(f"v_and_b32 v24, 7, v{vL}")
        e(f"v_lshl_add_u32 v24, v1, 3, v24")
        e(f"v_lshlrev_b32 v24, 7, v24")
        e(f"s_lshl_b32 s{sT1}, s{sT0}, 12")
        if OPT["cpf"]:
            e(f"buffer_load_dword v250, v24, {s(S_CODE,4)}, 0 offen")
        e(f"buffer_load_dword v251, v24, {s(S_CODE,4)}, s{sT1} offen")
        e(f"s_lshr_b32 s{sT1}, s{sLOC}, 3")
        e(f"s_bfe_u32 s{sRB}, s2, 0x20001")
        e(f"s_lshl_b32 s{sRB}, s{sRB}, 2")
        e(f"s_add_u32 s{sRB}, s{sRB}, s{sT1}")
        e(f"s_and_b32 s{sC}, s2, 1")
        e(f"s_lshl_b32 s{sC}, s{sC}, 3")
        e(f"s_add_u32 s{sC}, s{sC}, s{sT0}")
        e(f"s_lshl_b32 s{sT1}, s{sT1}, 1")
        e(f"s_add_u32 s{sT0}, s{sT0}, s{sT1}")
        e(f"s_sub_u32 s{sT1}, s{sT0}, 7")
        e(f"s_cmp_ge_u32 s{sT0}, 7")
        e(f"s_cselect_b32 s{sG}, s{sT1}, s{sT0}")
        if OPT["rot1"] == 3:
            e(f"s_bfe_u32 s{sT0}, s2, 0x20001")
            e(f"s_add_u32 s{sT0}, s{sT0}, s{sG}")
            e(f"s_sub_u32 s{sT1}, s{sT0}, 7")
            e(f"s_cmp_ge_u32 s{sT0}, 7")
            e(f"s_cselect_b32 s{sG}, s{sT1}, s{sT0}")
        if OPT["rot1"] == 0:
            e(f"s_mov_b32 s{sG}, 0")
        if OPT["rot1"] == 2:
            e(f"s_and_b32 s{sT0}, s2, 7")
            e(f"s_cmp_eq_u32 s{sT0}, 7")
            e(f"s_cselect_b32 s{sG}, 0, s{sT0}")
        e(f"s_lshl_b32 s{sRB}, s{sRB}, 2")
        e(f"s_add_u32 s{sRB}, s{sRB}, s{sW}")
        e(f"s_mov_b32 s{S_WQ+2}, {448*2688}")
        e(f"s_mov_b32 s{S_WQ+3}, 0x20000")
        if OPT["probe"] == 103:
            e("s_waitcnt lgkmcnt(0)")
            e(f"s_memtime {s(sM3,2)}")
            e("s_waitcnt lgkmcnt(0)")
            e(f"s_mov_b32 s{sP0+1}, s{sM3}")
        e(f"v_lshrrev_b32 v24, 3, v{vL}")
        e(f"s_lshl_b32 s{sT0}, s{sRB}, 5")
        e(f"v_add_u32 v24, s{sT0}, v24")
        e(f"v_mul_u32_u24 v24, 896, v24")
        e(f"v_lshrrev_b32 v26, 4, v{vL}")
        e(f"v_and_b32 v27, 7, v{vL}")
        e(f"v_xor_b32 v26, v26, v27")
        e(f"v_lshl_add_u32 v{vXD}, v26, 4, v24")
        e(f"v_xor_b32 v{vXD+1}, 64, v{vXD}")
        e(f"v_add_u32 v{vXD+2}, {2*(7168-1024)}, v{vXD}")
        e(f"v_add_u32 v{vXD+3}, {3*(7168-1024)}, v{vXD+1}")
        e(f"v_add_u32 v{vXD+1}, {7168-1024}, v{vXD+1}")
        e(f"s_mul_i32 s{sMX}, s{sW}, 12288")
        e(f"s_add_u32 s{sRING}, s{sMX}, {RED}")
        e(f"s_add_u32 s{sMX}, s{sMX}, {XST}")
        e(f"s_mul_i32 s{sT0}, s{sC}, 168")
        e(f"s_and_b32 s{sT0}, s{sT0}, 0xfffffff0")
        e(f"s_mul_i32 s{sT1}, s{sW}, {16*2688}")
        e(f"s_add_u32 s{sT0}, s{sT0}, s{sT1}")
        e(f"s_movk_i32 s{sT1}, 2688")
        for i in range(3):
            q = vL
            if i:
                q = 24
                e(f"v_add_u32 v24, {64*i}, v{vL}")
            e(f"v_mul_u32_u24 v26, 171, v{q}")
            e(f"v_lshrrev_b32 v26, 11, v26")
            e(f"v_mad_i32_i24 v24, v26, -12, v{q}")
            e(f"v_min_u32 v24, 10, v24")
            e(f"v_lshl_add_u32 v24, v24, 4, s{sT0}")
            e(f"v_mad_u32_u24 v{vWQ+i}, v26, s{sT1}, v24")
            if i < 2:
                e(f"s_sub_u32 s{sT0}, s{sT0}, 1024")
        e(f"s_mul_i32 s{sMQ}, s{sW}, {16*192}")
        e(f"s_add_u32 s{sMQ}, s{sMQ}, {R_Q}")
        e("s_waitcnt lgkmcnt(0)")
        if OPT["karg2"]:
            e("s_load_dwordx8 s[24:31], s[0:1], 64")
        e(f"s_mov_b64 {s(S_WQ,2)}, s[10:11]")
        e(f"s_mov_b32 s{S_X+2}, {2048*896}")
        e(f"s_mov_b32 s{S_X+3}, 0x20000")
        self.a.clk = self.a.pipe_free = 0
        self.a.allv = []
        self.a.done = {k: 0 for k in self.a.done}
        if OPT["stamps"]:
            e(f"v_writelane_b32 v{vST}, s88, 29")
        self.stamp("kernarg")
        self.ctok, self.wtok, self.xrd, self.ftok = {}, {}, {}, {}
        self.add_chunk(0)
        self.force(self.C)
        for i in range(1, 7):
            e(f"s_add_u32 s{sT0}, s{sG+i-1}, 1")
            e(f"s_cmp_eq_u32 s{sT0}, 7")
            e(f"s_cselect_b32 s{sG+i}, 0, s{sT0}")
        self.add_chunk(1)
        def srds(moves, sizes):
            for srd, src in moves:
                m(f"s_mov_b64 {s(srd,2)}, {s(src,2)}")
            for srd, size in sizes:
                m(f"s_mov_b32 s{srd+2}, {size}")
                m(f"s_mov_b32 s{srd+3}, 0x20000")
        srds(((S_B1, 18), (S_B2, 22)), ((S_B1, 3584), (S_W1, 448 * 3584), (S_B2, 896)))
        late_srds = lambda: srds(((S_OUT, 26), (S_WS, 30)), ((S_WS, WS_SIZE), (S_GW, 896), (S_OUT, 2048 * 896)))
        if not OPT["karg2"]:
            late_srds()
        m(f"s_lshr_b32 s{sLIGHT}, 0x1248, s{sC}")
        m(f"s_and_b32 s{sLIGHT}, s{sLIGHT}, 1")
        m(f"s_bfm_b32 s{sT0}, s{sC}, 0")
        m(f"s_and_b32 s{sT0}, s{sT0}, 0x1248")
        m(f"s_bcnt1_i32_b32 s{sT0}, s{sT0}")
        m(f"s_lshl_b32 s{sUA}, s{sC}, 1")
        m(f"s_sub_u32 s{sUA}, s{sUA}, s{sT0}")
        m(f"s_add_u32 s{sUB}, s{sUA}, 1")
        m(f"s_sub_u32 s{sUB}, s{sUB}, s{sLIGHT}")
        m(f"s_lshl_b32 s{sT0}, s{sW}, 6")
        m(f"v_add_u32 v244, s{sT0}, v{vL}")
        m(f"s_lshl_b32 s{sT1}, s{sG}, 6")
        for h in range(2):
            m(f"v_add_u32 v27, s{sT1}, v244")
            if h:
                m(f"v_add_u32 v27, 256, v27")
            m(f"v_subrev_u32 v28, 448, v27")
            m(f"v_min_u32 v27, v27, v28")
            m(f"v_lshlrev_b32 v{52+h}, 1, v27")
        m(f"s_lshl_b32 s{sT0}, s{sUA}, 7")
        m(f"s_cmp_eq_u32 s{sLIGHT}, 1")
        m(f"s_cselect_b32 s{sT0}, {OOB}, s{sT0}")
        m(f"s_lshl_b32 s{sT1}, s{sUB}, 7")
        m(f"s_sub_u32 s{sT1}, s{sT1}, 128")
        m(f"s_mov_b32 s{sHI}, 0")
        m(f"s_mov_b32 s{sHI+1}, -1")
        m(f"v_mov_b32 v27, s{sT0}")
        m(f"v_mov_b32 v28, s{sT1}")
        m(f"v_cndmask_b32 v27, v27, v28, {s(sHI,2)}")
        m(f"v_lshl_add_u32 v54, v{vL}, 2, v27")
        m(f"v_mov_b32 v55, {E_OFF}")
        m(f"v_lshlrev_b32 v{vLIN}, 4, v{vL}")
        m(f"v_bfe_u32 v24, v{vL}, 2, 2")
        m(f"v_lshrrev_b32 v27, 5, v{vL}")
        m(f"v_bfe_u32 v28, v{vL}, 4, 1")
        m(f"v_and_b32 v29, 3, v{vL}")
        m(f"v_lshlrev_b32 v29, 3, v29")
        m(f"v_lshl_add_u32 v29, v28, 5, v29")
        m(f"v_lshl_add_u32 v40, v27, 3, v24")
        m(f"v_mul_u32_u24 v41, 192, v40")
        m(f"s_and_b32 s{sT0}, s{sC}, 1")
        m(f"s_lshl_b32 s{sT0}, s{sT0}, 3")
        m(f"s_add_u32 s{sT0}, s{sT0}, {R_Q}")
        m(f"v_add3_u32 v{vTRQ}, v41, v29, s{sT0}")
        m(f"v_lshrrev_b32 v41, 1, v24")
        m(f"v_lshl_add_u32 v29, v41, 6, v29")
        m(f"v_lshl_add_u32 v{vTRF0}, v40, 7, v29")
        m(f"v_xor_b32 v{vTRF1}, 64, v{vTRF0}")
        m(f"v_lshl_add_u32 v40, v27, 2, v24")
        m(f"v_lshl_add_u32 v40, v40, 7, v29")
        m(f"s_lshl_b32 s{sT0}, s{sW}, 3")
        m(f"s_lshr_b32 s{sT0}, 0x60204000, s{sT0}")
        m(f"s_and_b32 s{sOUT}, s{sT0}, 0xff")
        m(f"v_xor_b32 v40, s{sOUT}, v40")
        m(f"v_add_u32 v{vBT0}, s{sRING}, v40")
        m(f"v_xor_b32 v{vBT1}, 64, v{vBT0}")
        m(f"v_and_b32 v40, 31, v{vL}")
        m(f"v_bfe_u32 v41, v{vL}, 1, 3")
        m(f"v_xor_b32 v41, v41, v27")
        m(f"v_lshlrev_b32 v41, 4, v41")
        m(f"v_lshl_add_u32 v40, v40, 7, v41")
        m(f"v_add_u32 v{vXR}, s{sMX}, v40")
        for k in range(1, 4):
            m(f"v_xor_b32 v{vXR+k}, {32*k}, v{vXR}")
        m(f"v_lshlrev_b32 v{vTBL}, 3, v27")
        m(f"v_add_u32 v{vTBL}, {TB1 - TB1 % 2048}, v{vTBL}")
        m(f"v_and_b32 v40, 3, v{vL}")
        m(f"v_lshl_add_u32 v40, v27, 2, v40")
        m(f"v_bfe_u32 v41, v{vL}, 2, 3")
        m(f"v_lshl_add_u32 v40, v41, 3, v40")
        m(f"v_lshlrev_b32 v{vPV}, 4, v40")
        m(f"v_cmp_eq_u32 vcc, 0, v{vL}")
        m(f"v_mov_b32 v40, {OOB}")
        m(f"v_mov_b32 v{vK1}, {K1}")
        m(f"v_cndmask_b32 v{vL0}, v40, 0, vcc")
        m(f"s_lshl_b32 s{sT0}, s2, 2")
        m(f"s_add_u32 s{sT0}, s{sT0}, s{sW}")
        m(f"s_mul_i32 s{sT0}, s{sT0}, 49")
        m(f"s_lshr_b32 s{sPF1}, s{sT0}, 2")
        m(f"s_lshl_b32 s{sPF1}, s{sPF1}, 7")
        m(f"s_lshr_b32 s{sPF2}, s{sT0}, 4")
        m(f"s_lshl_b32 s{sPF2}, s{sPF2}, 7")
        m(f"s_mul_i32 s{sSLA}, s2, {OPT['pfa1'] - OPT['pfa0']}")
        m(f"s_lshr_b32 s{sSLA}, s{sSLA}, 8")
        m(f"s_mul_i32 s{sSLB}, s2, {OPT['pfb1'] - OPT['pfb0']}")
        m(f"s_lshr_b32 s{sSLB}, s{sSLB}, 8")
        for srd, size in ((S_W2, 1792 * 896), (S_WO, 448 * 896)):
            m(f"s_mov_b32 s{srd+2}, {size}")
            m(f"s_mov_b32 s{srd+3}, 0x20000")
        self.setup_later()
        self.store_addr()
        self.drain()
        m(f"v_lshrrev_b32 v41, 5, v{vL}")
        m(f"v_bfe_u32 v42, v{vL}, 4, 1")
        m(f"v_xor_b32 v41, v41, v42")
        m(f"v_bfe_u32 v40, v{vL}, 2, 2")
        m(f"v_lshl_add_u32 v40, v41, 3, v40")
        m(f"v_and_b32 v41, 1, v{vL}")
        m(f"v_lshl_add_u32 v40, v41, 2, v40")
        m(f"v_lshlrev_b32 v40, 4, v40")
        m(f"v_lshl_add_u32 v40, v42, 10, v40")
        m(f"v_bfe_u32 v41, v{vL}, 1, 1")
        m(f"v_lshl_add_u32 v40, v41, 3, v40")
        m(f"s_lshl_b32 s{sT1}, s{sW}, 11")
        m(f"s_add_u32 s{sT1}, s{sT1}, {KV+24576}")
        m(f"v_add_u32 v{vVA}, s{sT1}, v40")
        if OPT["karg2"]:
            e("s_waitcnt lgkmcnt(0)")
            late_srds()
        self.force(self.C)
        self.a.next_lat = OPT["miss"]
        e(f"buffer_load_dword v{vT}, v55, {s(S_WS,4)}, 0 offen sc1")
        for h in range(2):
            e(f"buffer_load_ushort v{245+h}, v{52+h}, {s(S_GW,4)}, 0 offen")
        e(f"s_mov_b32 m0, {TB1}")
        self.m0 = None
        self.tB1 = e(f"buffer_load_dword v54, {s(S_B1,4)}, 0 offen lds")
        m(f"s_lshl_b32 s{sT1}, s{sQB}, 4")
        m(f"s_add_u32 s{sT1}, s{sT1}, s{sJ}")
        m(f"s_lshl_b32 s{sF3P}, s{sT1}, 7")
        m(f"s_add_u32 s{sF3P}, s{sF3P}, {F3}")
        m(f"s_lshl_b32 s{sOS}, s{sT1}, 11")
        m(f"s_add_u32 s{sOS}, s{sOS}, {O_BASE}")
        m(f"s_lshl_b32 s{sT0}, s{sJ}, 6")
        m(f"s_add_u32 s{sKOFF}, s{sT0}, s{sKV0}")
        m(f"s_lshl_b32 s{sKOFF}, s{sKOFF}, 11")
        m(f"s_add_u32 s{sQOFF}, s{sT0}, s{sQB}")
        m(f"s_lshl_b32 s{sQOFF}, s{sQOFF}, 11")
        m(f"s_mul_i32 s{sMKV}, s{sW}, 6144")
        m(f"s_lshl_b32 s{sT0}, s{sQB}, 7")
        m(f"s_add_u32 s{sGQ}, s{sT0}, {G_BASE}")
        m(f"s_mov_b32 s{sK2}, {K2}")
        m(f"s_mov_b32 s{sK2+1}, {K2}")

    def setup_later(self):
        m = self.m
        m(f"s_and_b32 s{sT0}, s2, 7")
        m(f"s_and_b32 s{sT1}, s{sLOC}, 1")
        m(f"s_lshl_b32 s{sJ}, s{sT0}, 1")
        m(f"s_add_u32 s{sJ}, s{sJ}, s{sT1}")
        m(f"s_mul_i32 s{sT1}, s{sLOC}, 37")
        m(f"s_lshr_b32 s{sT1}, s{sT1}, 8")
        m(f"s_mul_i32 s{sCT}, s{sT1}, 7")
        m(f"s_sub_u32 s{sCT}, s{sLOC}, s{sCT}")
        m(f"s_cmp_lt_u32 s{sLOC}, 28")
        m(f"s_cselect_b32 s{sT1}, s{sT1}, s{sCT}")
        m(f"s_lshl_b32 s{sRB0}, s{sT0}, 2")
        m(f"s_add_u32 s{sRB0}, s{sRB0}, s{sT1}")
        m(f"s_lshl_b32 s{sRB0}, s{sRB0}, 1")
        m(f"s_mul_i32 s{sBOFF}, s{sW}, {448*896}")
        m(f"s_mul_i32 s{sAOFF}, s{sRB0}, 112")
        m(f"s_mul_i32 s{sT0}, s{sW}, 28")
        m(f"s_add_u32 s{sAOFF}, s{sAOFF}, s{sT0}")
        m(f"s_lshl_b32 s{sAOFF}, s{sAOFF}, 10")
        m(f"s_add_u32 s{sAOFF}, s{sAOFF}, {H_BASE}")
        m(f"s_lshl_b32 s{sAEND}, s{sRB0}, 2")
        m(f"s_add_u32 s{sAEND}, s{sAEND}, s{sW}")
        m(f"s_lshl_b32 s{sAEND}, s{sAEND}, 13")
        m(f"s_add_u32 s{sAEND}, s{sAEND}, {O_BASE}")
        m(f"s_mul_i32 s{sBEND}, s{sW}, {112*896}")
        m(f"s_lshl_b32 s{sGD}, s{sRB0}, 7")
        m(f"s_add_u32 s{sGD}, s{sGD}, {G_BASE}")
        m(f"s_lshl_b32 s{sT0}, s{sCT}, 12")
        m(f"s_add_u32 s{sT0}, s{sT0}, {32*896*OPT['pb0']}")
        m(f"s_cmp_lt_u32 s{sLOC}, 28")
        m(f"s_cselect_b32 s{sT0}, 0, s{sT0}")
        m(f"s_cselect_b32 s{sT1}, 0, {2048*OPT['pa0'] if OPT['ipf'] else OOB}")
        m(f"s_cselect_b32 s{sBT}, {32*896}, 0x4000" if False else f"s_cselect_b32 s{sBT}, 7, 4")
        m(f"s_cselect_b64 {s(sM3,2)}, -1, 0")
        m(f"s_lshl_b32 s{sBT}, s{sBT}, 12")
        m(f"s_add_u32 s{sBOFF}, s{sBOFF}, s{sT0}")
        m(f"s_add_u32 s{sAOFF}, s{sAOFF}, s{sT1}")
        m(f"s_lshl_b32 s{sF2O}, s{sRB0}, 11")
        m(f"s_add_u32 s{sF2O}, s{sF2O}, {F2}")
        m(f"v_lshrrev_b32 v24, 3, v{vL}")
        m(f"v_lshlrev_b32 v28, 2, v28")
        m(f"v_and_b32 v29, 7, v{vL}")
        m(f"v_xor_b32 v28, v28, v29")
        m(f"v_lshlrev_b32 v28, 4, v28")
        m(f"v_mul_u32_u24 v29, 3584, v24")
        m(f"s_mul_i32 s{sT0}, s{sW}, {16*3584}")
        m(f"v_add3_u32 v{vW1A0}, v29, v28, s{sT0}")
        m(f"v_add_u32 v{vW1A1}, {8*3584-1024}, v{vW1A0}")
        m(f"v_mul_u32_u24 v29, 896, v24")
        m(f"s_lshl_b32 s{sT0}, s{sCT}, 7")
        m(f"v_add3_u32 v{vBD}, v29, v28, s{sT0}")
        for k in range(1, 4):
            m(f"v_add_u32 v{vBD+k}, {k*(7168-1024)}, v{vBD}")
        for k in range(4):
            m(f"v_cndmask_b32 v{vBD+k}, v{vLIN}, v{vBD+k}, {s(sM3,2)}")
        m(f"s_lshl_b32 s{sMB}, s{sW}, 11")
        m(f"s_sub_u32 s{sMA}, s{sMB}, {64*128 - R_A}")
        m(f"s_add_u32 s{sMB}, s{sMB}, {R_B}")
        m(f"s_mul_i32 s{sT0}, s{sC}, 3")
        m(f"s_sub_u32 s{sNQ}, 16, s{sT0}")
        m(f"s_lshl_b32 s{sT0}, s{sT0}, 6")
        m(f"s_add_u32 s{sT0}, s{sT0}, s{sRB}")
        m(f"s_lshl_b32 s{sQS}, s{sT0}, 11")
        m(f"s_mul_i32 s{sT1}, s{sRB}, 28")
        m(f"s_add_u32 s{sT0}, s{sT1}, s{sUB}")
        m(f"s_lshl_b32 s{sT0}, s{sT0}, 12")
        m(f"s_add_u32 s{sHB}, s{sT0}, {H_BASE}")
        m(f"s_sub_u32 s{sHA}, s{sHB}, 4096")
        m(f"s_lshl_b32 s{sUA}, s{sUA}, 7")
        m(f"s_lshl_b32 s{sUB}, s{sUB}, 7")
        m(f"s_cmp_eq_u32 s{sLIGHT}, 1")
        m(f"s_cselect_b32 s{sHA}, {OOB}, s{sHA}")
        m(f"s_cselect_b32 s{sUA}, {OOB}, s{sUA}")
        m(f"s_cselect_b32 s{sMA}, {DUMMY}, s{sMA}")
        m(f"s_cselect_b32 s{sMAS}, 0, {64*128}")
        m(f"s_lshl_b32 s{sT0}, s{sRB}, 4")
        m(f"s_add_u32 s{sT0}, s{sT0}, s{sC}")
        m(f"s_lshl_b32 s{sT0}, s{sT0}, 7")
        m(f"s_add_u32 s{sF1}, s{sT0}, {F1}")
        m(f"s_lshl_b32 s{sT0}, s{sRB}, 7")
        m(f"s_add_u32 s{sGS}, s{sT0}, {G_BASE}")
        m(f"s_cmp_eq_u32 s{sC}, 3")
        m(f"s_cselect_b32 s{sGS}, s{sGS}, {OOB}")
        m(f"s_lshr_b32 s{sT0}, s{sLOC}, 1")
        m(f"s_lshl_b32 s{sT0}, s{sT0}, 2")
        m(f"s_add_u32 s{sQB}, s{sT0}, s{sW}")
        m(f"s_sub_u32 s{sFIRST}, 8, s{sQB}")
        m(f"s_max_i32 s{sFIRST}, s{sFIRST}, 0")
        m(f"s_mul_i32 s{sT1}, s{sW}, 3")
        m(f"s_add_u32 s{sT0}, s{sT0}, s{sT1}")
        m(f"s_sub_u32 s{sKV0}, s{sT0}, 8")
        m(f"s_mul_i32 s{sT2}, s{sJ}, 43")
        m(f"s_lshr_b32 s{sT2}, s{sT2}, 7")
        m(f"s_lshl_b32 s{sT1}, s{sQB}, 4")
        m(f"s_add_u32 s{sT2}, s{sT1}, s{sT2}")
        m(f"v_mov_b32 v{vF1A}, s{sT2}")
        for part, add in ((0, 16), (1, 32)):
            m(f"s_add_u32 s{sT2}, s{sJ}, {add}")
            m(f"s_mul_i32 s{sT2}, s{sT2}, 43")
            m(f"s_lshr_b32 s{sT2}, s{sT2}, 7")
            m(f"v_subrev_u32 v40, {3*part}, v{vL}")
            m(f"v_add_u32 v41, s{sKV0}, v40")
            m(f"v_cmp_gt_u32 {s(sM,2)}, 3, v40")
            m(f"v_cmp_le_i32 vcc, 0, v41")
            m(f"v_lshl_add_u32 v41, v41, 4, s{sT2}")
            m(f"s_and_b64 {s(sM,2)}, {s(sM,2)}, vcc")
            m(f"v_cndmask_b32 v{vF1A}, v{vF1A}, v41, {s(sM,2)}")
        m(f"v_lshlrev_b32 v{vF1A}, 7, v{vF1A}")
        m(f"v_add_u32 v{vF1A}, {F1}, v{vF1A}")
        m(f"v_bfe_u32 v40, v{vL}, 2, 1")
        m(f"v_and_b32 v41, 3, v{vL}")
        m(f"s_lshl_b32 s{sT0}, s{sW}, 2")
        m(f"v_add_u32 v41, s{sT0}, v41")
        m(f"v_cmp_gt_u32 vcc, 8, v{vL}")
        m(f"v_lshl_add_u32 v41, v40, 4, v41")
        m(f"v_and_b32 v40, 1, v{vL}")
        m(f"v_lshl_add_u32 v40, v40, 4, 3")
        m(f"v_cndmask_b32 v{vF23A}, v40, v41, vcc")
        m(f"s_sub_u32 s{sT0}, s{sQB}, s{sRB0}")
        m(f"s_lshl_b32 s{sT0}, s{sT0}, 4")
        m(f"s_add_u32 s{sT0}, s{sT0}, 3")
        m(f"v_cmp_gt_u32 vcc, 10, v{vL}")
        m(f"v_mov_b32 v40, s{sT0}")
        m(f"s_nop 0")
        m(f"v_cndmask_b32 v{vF23A}, v40, v{vF23A}, vcc")
        m(f"v_lshlrev_b32 v{vF23A}, 7, v{vF23A}")
        m(f"v_add_u32 v{vF23A}, s{sF2O}, v{vF23A}")
        m(f"s_mov_b32 s{sF2O}, 0")
        m(f"s_mul_i32 s{sT0}, s{sRB0}, {32*896}")
        m(f"s_lshl_b32 s{sT1}, s{sCT}, 7")
        m(f"s_add_u32 s{sT0}, s{sT0}, s{sT1}")
        m(f"s_add_u32 s{sOUT}, s{sOUT}, s{sT0}")

    def add_chunk(self, i):
        toks = self.ctok[i] = []
        lx = lw = OPT["lat0"] if i < 1 else None
        xs, ws = [], []
        for k in range(4):
            xs.append(Item(f"buffer_load_dwordx4 v{vXD+k}, {s(S_X,4)}, s{sCA} offen" + (f" offset:{1024*k}" if k else "") + NT(1) + " lds", toks,
                           pre=[f"s_lshl_b32 s{sCA}, s{sG+i}, 7"] if k == 0 else (), m0=(sMX, (i % 3) * 4096), lat=lx,
                           after=(lambda: self.xrd[i - 3] if len(self.xrd.get(i - 3, ())) == 4 else None) if i >= 3 and k == 0 else None))
        for k in range(3):
            ws.append(Item(f"buffer_load_dwordx4 v{vWQ+k}, {s(S_WQ,4)}, s{sCB} offen" + (f" offset:{1024*k}" if k else "") + NT(2) + " lds", toks,
                           pre=[f"s_mul_i32 s{sCB}, s{sG+i}, {64*2688}"] if k == 0 else (), m0=(sMQ, (i % 4) * 64 * 192), lat=lw))
        self.C.extend(xs + ws if i == 0 else ws + xs)
        self.clast = getattr(self, "clast", {})
        self.clast[i] = self.C[-1]

    def add_w1(self, unit, i):
        toks = self.wtok[(unit, i)] = []
        pre = [f"s_mul_i32 s{sCB}, s{sG+i}, {64*3584}", f"s_add_u32 s{sCB}, s{sCB}, s{sUA+unit}"]
        pre0 = [f"s_add_u32 s{sMA}, s{sMA}, s{sMAS}"] if unit == 0 else []
        for k in range(2):
            self.C.append(Item(f"buffer_load_dwordx4 v{vW1A0+k}, {s(S_W1,4)}, s{sCB} offen" + (" offset:1024" if k else "") + NT(4) + " lds", toks,
                               pre=pre if k == 0 else (), pre0=pre0 if k == 0 else (), m0=(sMB, i * 8192) if unit else (sMA, 0, i),
                               lat=OPT["miss"] if i < 4 else None))
            self.C[-1].opt = unit == 0
        self.wlast = getattr(self, "wlast", {})
        self.wlast[(unit, i)] = self.C[-1]

    def gate_write(self):
        pe = self.pe
        pe(f"s_cmp_eq_u32 s{sLIGHT}, 1")
        pe(f"s_cselect_b64 {s(sM,2)}, -1, 0")
        pe(f"v_bfe_u32 v247, v244, 1, 1")
        pe(f"v_lshlrev_b32 v248, 7, v244")
        pe(f"v_lshl_add_u32 v248, v247, 6, v248")
        pe(f"v_mov_b32 v249, {DUMMY+2048}")
        pe(f"v_cndmask_b32 v247, v249, v248, {s(sM,2)}")
        pe(f"v_cmp_gt_u32 vcc, 192, v244")
        pe(f"v_add_u32 v248, {256*128}, v248")
        pe(f"s_and_b64 {s(sM,2)}, {s(sM,2)}, vcc")
        pe(f"ds_write_b16 v247, v245")
        pe(f"v_cndmask_b32 v248, v249, v248, {s(sM,2)}")
        pe(f"ds_write_b16 v248, v246")

    def store_addr(self):
        pe = self.pe
        for n, lim in ((0, 11), (1, 10)):
            pe(f"s_cmp_ge_u32 s{sC}, {lim}")
            pe(f"s_cselect_b64 {s(sM,2)}, -1, 0")
            pe(f"s_cselect_b32 s{sT0}, 128, 0")
            pe(f"v_cndmask_b32 v{24+2*n}, v{vLIN}, v{vPV}, {s(sM,2)}")
            pe(f"v_xor_b32 v{25+2*n}, s{sT0}, v{24+2*n}")

    def bias_init(self, acc, tbl, factor=None):
        for t in range(2):
            for mm in range(2):
                o = (tbl % 2048) // 8 + 8 * t + 4 * mm
                self.pe(f"ds_read2_b64 {v(acc+16*t+8+4*mm,4)}, v{vTBL} offset0:{o} offset1:{o+2}")
        for t in range(2):
            for k in range(8):
                src, dst = acc + 16 * t + 8 + k, acc + 16 * t + 2 * k
                self.pe(f"v_lshlrev_b32 v{dst}, 16, v{src}")
                self.pe(f"v_and_b32 v{dst+1}, 0xffff0000, v{src}")
        if factor:
            for k in range(16):
                self.pe(f"v_pk_mul_f32 {v(acc+2*k,2)}, {v(acc+2*k,2)}, {factor}")

    def rd_q(self, sidx, t):
        base = vWR + 12 * (sidx & 1) + 4 * t
        o = 56 * t + (sidx % 16) * 3072
        return [self.e(f"ds_read_b64_tr_b16 {v(base+2*h,2)}, v{vTRQ} offset:{o+768*h}") for h in range(2)]

    def rd_f(self, g, t):
        base = vWR + 8 * (g % 3) + 4 * t
        toks = self.ftok.setdefault(g, [])
        for h in range(2):
            toks.append(self.e(f"ds_read_b64_tr_b16 {v(base+2*h,2)}, v{vTRF0+t} offset:{(g%28)*2048+512*h}"))

    def rd_x(self, sidx):
        self.xrd.setdefault(sidx // 4, []).append(self.e(f"ds_read_b128 {v(vX+4*sidx,4)}, v{vXR+sidx%4} offset:{(sidx//4%3)*4096}"))

    def sync(self, st, last, toks, drain_lds=True):
        self.force(st, last)
        self.await_(toks)
        if drain_lds and self.a.lg:
            self.e("s_waitcnt lgkmcnt(0)")
        self.e("s_barrier")

    def await_(self, toks):
        while self.a.est(toks) > self.a.clk + 8 and self.side_wait(self.a.est(toks)):
            pass
        self.a.need(*toks)

    def force_p(self):
        while self.P:
            it = self.P[0]
            keep, self.P = self.P, deque()
            if it.after:
                self.await_(it.after())
            self.P = keep
            self.emit_item(self.P)

    def side_wait(self, until):
        a = self.a
        best = None
        for st in self.vm_streams() + (self.D,):
            if not st:
                continue
            it = st[0]
            t = a.allv[-1][0] if it.vm else a.clk
            if it.after:
                toks = it.after()
                if toks is None:
                    continue
                t = max(t, a.est(toks))
            t = max(t, a.clk)
            if t + 8 <= until and (best is None or t < best[0]):
                best = (t, st)
        if best:
            self.emit_item(best[1])
        return bool(best)

    def force_read(self, p):
        while not self.blast[p].done:
            it = self.D[0]
            if it.after:
                while it.after() is None:
                    if self.B[0].after:
                        self.a.need(*self.B[0].after())
                    self.emit_item(self.B)
                keep, self.D = self.D, deque()
                self.await_(it.after())
                self.D = keep
            self.emit_item(self.D)

    def seg_start(self):
        if OPT["lvar"]:
            self.e(f"s_cmp_eq_u32 s{sMAS}, 0")
            self.e("s_cbranch_scc1 L_light")
            self.seg = (len(self.a.ins), len(self.a.vm), len(self.a.lg), len(self.tail))

    def seg_end(self):
        if not OPT["lvar"]:
            return
        import re
        i0, nvm, nlg, t0 = self.seg
        assert not self.a.lg
        q = {"vmcnt": list(range(-nvm, 0)), "lgkmcnt": list(range(-nlg, 0))}
        q2 = {k: list(x) for k, x in q.items()}
        b = Asm()
        b.ins = [Ins(i.text) for i in self.a.ins[i0 - 24:i0] if i.kind not in ("label", "dir")]
        npre = len(b.ins)
        b.ins.append(Ins("L_light:"))
        ren = lambda x: re.sub(r"(L_pfb?\d+)", r"\1l", x)
        for n, i in enumerate(self.a.ins[i0:]):
            drop = i.note == "opt" or (i.kind == "mfma" and f"v{vACC+64}" in i.w) or (i.kind == "dsread" and f"v{vTRF1}" in i.r)
            if i.kind == "wait":
                parts = []
                for k, c in re.findall(r"(vmcnt|lgkmcnt)\((\d+)\)", i.text):
                    c = int(c)
                    q[k] = q[k][max(0, len(q[k]) - c):] if c else []
                    left = [x for x in q2[k] if x in q[k]]
                    if len(left) < len(q2[k]) or c == 0:
                        parts.append(f"{k}({len(left)})")
                    q2[k] = left
                if parts:
                    b.ins.append(Ins("s_waitcnt " + " ".join(parts)))
                continue
            k = "vmcnt" if i.kind in ("vload", "vstore", "dma") else "lgkmcnt" if i.kind in ("dsread", "dswrite") else None
            if k:
                q[k].append(n)
                if not drop:
                    q2[k].append(n)
            if not drop and i.kind != "dir":
                b.ins.append(Ins(ren(i.text)))
        assert q["vmcnt"] == q2["vmcnt"]
        b.ins.append(Ins("s_branch L_heavy"))
        b.finalize()
        k = [n for n, i in enumerate(b.ins) if i.text == "L_light:"][0]
        self.tail += [ren(x) for x in self.tail[t0:]] + [i.text for i in b.ins[k:]]
        self.a.label("L_heavy")

    def prefetch_slot(self, sidx):
        if not OPT["wpf"]:
            return
        for reg, lo, hi, loads in ((sSLA, OPT["pfa0"], OPT["pfa1"], ((S_W1, 12, sPF1),)), (sSLB, OPT["pfb0"], OPT["pfb1"], ((S_W2, 12, sPF1), (S_WO, 3, sPF2)))):
            if lo <= sidx < hi:
                self.nlab += 1
                n = self.nlab
                self.e(f"s_cmp_eq_u32 s{reg}, {sidx - lo}")
                self.e(f"s_cbranch_scc1 L_pf{n}")
                self.a.label(f"L_pfb{n}")
                self.tail += [f"L_pf{n}:"]
                for srd, top, off in loads:
                    self.tail += [f"v_min_u32 v30, {top}, v{vL}", "v_lshlrev_b32 v30, 7, v30", f"buffer_load_dword a255, v30, {s(srd,4)}, s{off} offen"]
                self.tail += [f"s_branch L_pfb{n}"]

    def qkv(self):
        e = self.e
        qtok = {}
        self.sync(self.C, self.clast[1], self.ctok[0])
        self.stamp("chunk 0")
        self.add_chunk(2)
        self.rd_x(0)
        for n in range(4):
            qtok[n] = self.rd_q(*divmod(n, 3))
        self.rd_x(1)
        xq = deque([2, 3])
        for sidx in range(28):
            i = sidx // 4
            if sidx % 2 == 0:
                self.stamp(group=3)
            if sidx == 8:
                self.pe(f"v_add_u32 v{vT}, {TAG_STEP}, v{vT}")
                self.gate_write()
                self.push(lambda: self.a.need(self.tB1), 0)
                self.bias_init(vACC + 48, TB1)
            if sidx % 2 == 0:
                self.prefetch_slot(sidx // 2)
            self.a.need(*qtok[3 * sidx], *qtok[3 * sidx + 1], *qtok[3 * sidx + 2])
            for t in range(3):
                acc = v(vACC + 16 * t, 16)
                e(f"{MFMA} {acc}, {v(vWR+12*(sidx&1)+4*t,4)}, {v(vX+4*sidx,4)}, {acc if sidx else 0}")
                if t == 2 and sidx % 4 == 2:
                    if sidx < 26:
                        self.sync(self.C, self.clast[i + 2] if i < 5 else self.wlast[(0, 2)], self.ctok[i + 1], drain_lds=False)
                        if i + 3 < 7:
                            self.add_chunk(i + 3)
                        if i + 3 == 6:
                            for k in range(7):
                                self.add_w1(0, k)
                            self.seg_start()
                        xq.extend(range(4 * i + 4, 4 * i + 8))
                    else:
                        self.drain()
                        self.sync(self.C, self.wlast[(0, 2)], self.wtok[(0, 2)])
                n = 3 * sidx + t + 4
                if n < 84:
                    qtok[n] = self.rd_q(*divmod(n, 3))
                else:
                    self.rd_f((n - 84) >> 1, (n - 84) & 1)
                x = bool(xq)
                if x:
                    self.rd_x(xq.popleft())
                self.gap(8 if x else 12)

    QPK = (vTMP + 8, vACC + 40, vACC + 32)

    def qkv_pack(self, t):
        pe = self.pe
        acc, dst = vACC + 16 * t, self.QPK[t]
        pe(f"s_cmp_gt_i32 s{sNQ}, {t-16}")
        pe(f"s_cselect_b32 s{sT0}, 0x3f803f80, s{sT3}")
        pe(f"s_cselect_b32 s{sT2}, s{sT3}, 0")
        pe(f"s_cmp_gt_i32 s{sNQ}, {t}")
        pe(f"s_cselect_b32 s{sT1}, {QSCALE}, 1.0")
        pe(f"s_cselect_b32 s{sT0}, 0, s{sT0}")
        pe(f"s_cselect_b32 s{sT2}, 0, s{sT2}")
        pe(f"v_mov_b32 v28, s{sT0}")
        pe(f"v_mov_b32 v29, s{sT2}")
        for k in range(16):
            pe(f"v_mul_f32 v{acc+k}, s{sT1}, v{acc+k}")
        def store(half):
            pre = [f"s_add_u32 s{sCA}, s{sQS}, {t*64*2048}"] if half == 0 else ()
            self.C.append(Item(f"buffer_store_dwordx4 {v(dst+4*half,4)}, v{24+2*(t>>1)+half}, {s(S_WS,4)}, s{sCA} offen offset:{1024*half} sc1",
                               self.tQKV, pre=pre))
            self.lastS = self.C[-1]
        for k in range(8):
            pe(f"v_cvt_pk_bf16_f32 v{dst+k}, v{acc+2*k}, v{acc+2*k+1}")
            if k == 3:
                self.push(lambda: store(0), 0)
        pe(f"v_cndmask_b32 v{dst+6}, v{dst+6}, v28, {s(sHI,2)}")
        pe(f"v_cndmask_b32 v{dst+7}, v{dst+7}, v29, {s(sHI,2)}")
        self.push(lambda: store(1), 0)

    def b_slot(self, p):
        return (RING - RED) + (p % 6) * 4096 if p % 6 < 3 else (p % 6 - 3) * 4096

    def b_dma(self, p):
        toks = self.btok[p] = []
        out = []
        off = sBOFF if p < 14 else sBEND
        pre = [] if p in (0, 14) else [f"s_add_u32 s{off}, s{off}, " + (f"s{sBT}" if p < 14 else f"{28*896}")]
        post = []
        for k in range(4):
            out.append(Item(f"buffer_load_dwordx4 v{vBD+k}, {s(S_W2 if p < 14 else S_WO,4)}, s{off} offen" + (f" offset:{1024*k}" if k else "") + NT(8) + " lds",
                            toks, pre=pre if k == 0 else (), post=post if k == 3 else (), m0=(sRING, self.b_slot(p)),
                            lat=OPT["miss"] if p < 4 or p >= 14 else None,
                            after=(lambda: self.btr[p - 6] if len(self.btr.get(p - 6, ())) == 8 else None) if k == 0 and p >= 6 else None))
            out[-1].due = min(p, 14 + (p - 14) // 2) - 5
        return out

    def b_read(self, p):
        toks = self.btr[p] = []
        out = []
        for ks in range(2):
            for t in range(2):
                out.append(Item([f"ds_read_b64_tr_b16 {a_(16*(p%16)+8*ks+4*t+2*h,2)}, v{vBT0+t} offset:{self.b_slot(p)+ks*2048+h*1024}" for h in range(2)],
                                toks, after=(lambda: self.btok[p] if len(self.btok[p]) == 4 else None) if ks + t == 0 else None))
        self.blast[p] = out[-1]
        return out

    def gelu_two(self, acc, soff, n, packed):
        pe = self.pe
        T = vTMP + 12
        U = [acc + 2 * n, acc + 2 * n + 2]
        R = [T, T + 2]
        if packed:
            for u, r in zip(U, R):
                pe(f"v_pk_mul_f32 {v(r,2)}, {v(u,2)}, {v(u,2)}")
                pe(f"v_pk_fma_f32 {v(r,2)}, {v(r,2)}, {s(sK2,2)}, {v(vK1,2)} op_sel_hi:[1,1,0]")
                pe(f"v_pk_mul_f32 {v(r,2)}, {v(r,2)}, {v(u,2)}")
            for k in range(4):
                pe(f"v_exp_f32 v{T+k}, v{T+k}")
            for r in R:
                pe(f"v_pk_add_f32 {v(r,2)}, {v(r,2)}, 1.0 op_sel_hi:[1,0]")
            for k in range(4):
                pe(f"v_rcp_f32 v{T+k}, v{T+k}")
            for u, r in zip(U, R):
                pe(f"v_pk_mul_f32 {v(r,2)}, {v(r,2)}, {v(u,2)}")
        else:
            u = U[0]
            for k in range(4):
                pe(f"v_mul_f32 v{T+k}, v{u+k}, v{u+k}")
                pe(f"v_fma_f32 v{T+k}, v{T+k}, s{sK2}, v{vK1}")
                pe(f"v_mul_f32 v{T+k}, v{T+k}, v{u+k}")
            for k in range(4):
                pe(f"v_exp_f32 v{T+k}, v{T+k}")
            for k in range(4):
                pe(f"v_add_f32 v{T+k}, 1.0, v{T+k}")
            for k in range(4):
                pe(f"v_rcp_f32 v{T+k}, v{T+k}")
            for k in range(4):
                pe(f"v_mul_f32 v{T+k}, v{T+k}, v{u+k}")
        for d in range(2):
            pe(f"v_cvt_pk_bf16_f32 v{acc+n+d}, v{T+2*d}, v{T+2*d+1}")
        if n % 4 == 2:
            fr = n // 4
            self.push(lambda: self.C.append(Item(
                f"buffer_store_dwordx4 {v(acc+4*fr,4)}, v{vLIN}, {s(S_WS,4)}, s{soff} offen offset:{fr*1024} sc1", self.tH)), 0)

    def ffn(self, unit):
        e = self.e
        acc0 = vACC + 48 if unit == 0 else vACC
        for sidx in range(28):
            g = 28 * unit + sidx
            if sidx % 4 == 0:
                self.stamp(group=2)
            self.hook(f"ffn{unit}_{sidx}")
            self.a.need(*self.ftok[g])
            for t in range(2):
                acc = v(acc0 + 16 * t, 16)
                e(f"{MFMA} {acc}, {v(vWR+8*(g%3)+4*t,4)}, {v(vX+4*sidx,4)}, {acc}")
                if t == 0 and g in (10, 34, 42):
                    k = {10: (0, 6), 34: (1, 3), 42: (1, 6)}[g]
                    self.sync(self.C, self.wlast[k], self.wtok[k], drain_lds=False)
                if t == 0 and g == 26:
                    if True:
                        self.drain("biasb")
                        self.sync(self.C, self.wlast[(1, 1)], self.wtok[(1, 1)])
                        self.seg_end()
                        e(f"v_add_u32 v{vTRF0}, {R_B-R_A}, v{vTRF0}")
                        e(f"v_add_u32 v{vTRF1}, {R_B-R_A}, v{vTRF1}")
                        self.add_w1(1, 6)
                        self.B.extend(self.b_dma(3) + self.b_dma(4) + self.b_dma(5))
                        for p in range(6, OPT["bpre"]):
                            self.B.extend(self.b_dma(p))
                        for p in range(OPT["bpre"] - 6):
                            self.D.extend(self.b_read(p))
                if g + 2 < 56:
                    self.rd_f(g + 2, t)
                self.gap(12)

    def phase1(self):
        e, pe, m = self.e, self.pe, self.m
        self.btok, self.btr, self.blast = {}, {}, {}
        self.tQKV, self.tH, tG = [], [], []
        self.qkv()
        self.stamp("qkv done")
        e(f"s_cmp_lt_u32 s{sLOC}, 28")
        if not OPT["ipf"]:
            e(f"s_cselect_b32 s{S_W2+2}, {1792*896}, 0")
        e(f"s_cselect_b32 s{S_WO+2}, {448*896}, 0")
        if OPT["null"] & 1:
            e(f"s_mov_b32 s{S_W2+2}, 0")
            e(f"s_mov_b32 s{S_WO+2}, 0")
        if OPT["null"] & 2:
            e(f"s_mov_b32 s{sAOFF}, {OOB}")
            e(f"s_mov_b32 s{sAEND}, {OOB}")
        if OPT["null"] & 4:
            e(f"s_mov_b32 s{sHA}, {OOB}")
            e(f"s_mov_b32 s{sHB}, {OOB}")
            e(f"s_mov_b32 s{sQS}, {OOB}")
            e(f"s_mov_b32 s{sOS}, {OOB}")
        if OPT["null"] & 8:
            e(f"s_mov_b32 s{sKOFF}, {OOB}")
            e(f"s_mov_b32 s{sQOFF}, {OOB}")
        if OPT["null"] & 16:
            e(f"s_mov_b32 s{S_W1+2}, 0")
        pub1 = self.publish(sF1, self.tQKV, 6)
        nw = OPT["wbfirst"]
        for k in range(nw):
            self.add_w1(1, k)
        pe(f"s_movk_i32 s{sT3}, 0x3f80")
        self.qkv_pack(2)
        if nw < 2:
            self.push(lambda: self.add_w1(1, 1), 0)
        self.qkv_pack(1)
        self.qkv_pack(0)
        self.push(lambda: [self.add_w1(1, k) for k in range(max(nw, 2), 6)], 0)
        self.bias_init(vACC, TB1 + 128)
        self.mark("biasb")
        b012 = self.b_dma(0) + self.b_dma(1) + self.b_dma(2)
        self.hooks[f"ffn0_{OPT['bstart']}"] = lambda: self.B.extend(b012)
        self.ffn(0)
        self.force(self.C, self.lastS)
        self.stamp("ffn a done")
        accA = vACC + 48
        pe(f"v_mul_f32 v{vGATE}, {fbits(-math.log2(math.e))}, v{accA}")
        pe(f"v_exp_f32 v{vGATE}, v{vGATE}")
        pe(f"v_and_b32 v{vGA}, 31, v{vL}")
        pe(f"v_add_f32 v{vGATE}, 1.0, v{vGATE}")
        pe(f"v_lshlrev_b32 v{vGA}, 2, v{vGA}")
        pe(f"v_rcp_f32 v{vGATE}, v{vGATE}")
        pe(f"v_mov_b32 v{vTMP}, {OOB}")
        pe(f"v_cndmask_b32 v{vTMP}, v{vGA}, v{vTMP}, {s(sHI,2)}")
        self.push(lambda: self.C.append(Item(f"buffer_store_dword v{vGATE}, v{vTMP}, {s(S_WS,4)}, s{sGS} offen sc1", self.tH)), 0)
        ga = deque(range(0, 16, 2))
        while ga and ga[0] < OPT["npairs"]:
            self.gelu_two(accA, sHA, ga.popleft(), False)
        self.hooks[f"ffn1_{OPT['pub1']}"] = lambda: self.force(self.P, pub1)
        self.hooks[f"ffn1_{OPT['poll1']}"] = lambda: self.poll_item(vF1A, 0)
        self.ffn(1)
        self.hook("ffn1_28")
        e("s_barrier")
        self.stamp("ffn b done")
        m(f"v_lshlrev_b32 v{vTMP+1}, 2, v{vL}")
        self.tB2 = []
        self.C.append(Item(f"buffer_load_dword v{vTMP+1}, {s(S_B2,4)}, s{sCB} offen lds", self.tB2,
                           pre=[f"s_lshl_b32 s{sCB}, s{sCT}, 7"], m0=(None, TB2), lat=OPT["miss"]))
        self.b2item = self.C[-1]
        self.drain()
        k = 0
        for acc, soff, todo in ((accA, sHA, ga), (vACC, sHB, range(0, 16, 2))):
            for n in todo:
                if k == OPT["chk1"]:
                    self.drain(every=OPT["gev"])
                    self.poll_check(vF1A, 0)
                    self.att_loads()
                self.gelu_two(acc, soff, n, True)
                k += 1
        self.drain(every=OPT["gev"])
        self.stamp("gelu done")

    def att_loads(self):
        self.tKV = []
        items = []
        for bb in range(3):
            for part in range(2):
                pre = ([f"s_add_u32 s{sCA}, s{sKOFF}, {16*64*2048+2048*bb}", f"s_cmp_lt_i32 s{sKV0}, {-bb}", f"s_cselect_b32 s{sCA}, {OOB}, s{sCA}"]
                       if part == 0 else [f"s_add_u32 s{sCA}, s{sCA}, {16*64*2048}"])
                for k in range(2):
                    items.append(Item(f"buffer_load_dwordx4 v{vLIN}, {s(S_WS,4)}, s{sCA} offen" + (" offset:1024" if k else "") + " sc1 lds",
                                      self.tKV, pre=pre if k == 0 else (), m0=(sMKV, KV + 24576 * part + 2048 * bb), lat=OPT["miss"]))
        for k in range(2):
            items.append(Item(f"buffer_load_dwordx4 {v(vQ+4*k,4)}, v{vLIN}, {s(S_WS,4)}, s{sQOFF} offen offset:{1024*k} sc1", self.tKV, lat=OPT["miss"]))
        self.C.extendleft(reversed(items))
        self.kvlast = items[-1]

    def rd_k(self, n, em=None):
        for k in range(2):
            (em or self.m)(f"ds_read_b128 {v(vKR+8*(n%3)+4*k,4)}, v{vKA} offset:{(n%9)*2048+k*1024}")

    def rd_v(self, i, st):
        for h in range(2):
            self.e(f"ds_read_b64_tr_b16 {v(vVR+4*st+2*h,2)}, v{vVA} offset:{i*2048+256*(2*st+h)}")

    def qk(self, i, k):
        S = v(vS + 16 * (i & 1), 16)
        C = S if k else v(vM0 if i == 0 else vM8 if i == 8 else vCD, 16)
        self.e(f"{MFMA} {S}, {v(vKR+8*(i%3)+4*k,4)}, {v(vQ+4*k,4)}, {C}")

    def patch(self, i, src):
        if not 2 <= i <= 7 and src == "0":
            return
        self.nlab += 1
        n = self.nlab
        self.e(f"s_cmp_eq_u32 s{sFIRST}, {i}" if src == "0" else f"s_cmp_gt_u32 s{sFIRST}, 1")
        self.e(f"s_cbranch_scc1 L_pat{n}")
        self.a.label(f"L_patb{n}")
        self.tail += [f"L_pat{n}:", "s_nop 7"] + [f"v_mov_b32 v{vCD+k}, {src}" for k in range(16)] + ["s_nop 1", f"s_branch L_patb{n}"]

    def attention(self):
        e, pe, m = self.e, self.pe, self.m
        m(f"v_and_b32 v26, 31, v{vL}")
        m(f"v_lshrrev_b32 v27, 5, v{vL}")
        m(f"v_lshlrev_b32 v28, 2, v27")
        m(f"v_sub_u32 v26, v26, v28")
        m(f"s_cmp_gt_u32 s{sFIRST}, 0")
        m(f"s_cselect_b32 s{sT0}, {NINF}, 0")
        m(f"v_mov_b32 v28, s{sT0}")
        m(f"v_mov_b32 v29, {NINF}")
        m(f"s_cmp_gt_u32 s{sFIRST}, 1")
        m(f"s_cselect_b32 s{sT0}, {NINF}, 0")
        prs = (sM, sM3)
        for j0 in range(0, 16, 2):
            for d in range(2):
                jj = j0 + d
                m(f"v_cmp_le_i32 {s(prs[d],2)}, {(jj&3)+8*(jj>>2)}, v26")
            for d in range(2):
                m(f"v_mov_b32 v{vCD+j0+d}, s{sT0}")
            for d in range(2):
                jj = j0 + d
                m(f"v_cndmask_b32 v{vM8+jj}, v29, 0, {s(prs[d],2)}")
                m(f"v_cndmask_b32 v{vM0+jj}, v28, v29, {s(prs[d],2)}")
        m(f"s_lshl_b32 s{sT1}, s{sW}, 11")
        m(f"s_add_u32 s{sT1}, s{sT1}, {KV}")
        m(f"v_add_u32 v{vKA}, s{sT1}, v{vLIN}")
        m(f"v_mov_b32 v{vMX}, {NINF}")
        m(f"v_mov_b32 v{vMX+1}, {NINF}")
        m(f"v_add_u32 v{vA1H}, {112*1024}, v{vLIN}")
        self.sync(self.C, self.kvlast, self.tKV, drain_lds=False)
        self.stamp("kv in")
        pub2 = self.publish(sT3, self.tH, 9, pre=[f"s_add_u32 s{sT3}, s{sF1}, {F2-F1}"])
        self.rd_k(0)
        self.rd_k(1)
        for i in range(10):
            if i % 2 == 0:
                self.stamp(group=4)
            if i < 9:
                self.patch(i, "0")
                self.qk(i, 0)
                self.rd_k(i + 2, e)
                self.qk(i, 1)
                self.cluster()
            if i > 0:
                S = vS + 16 * ((i - 1) & 1)
                for k in range(8):
                    e(f"v_max3_f32 v{vMX+(k&1)}, v{S+2*k}, v{S+2*k+1}, v{vMX+(k&1)}")
        m(f"v_max_f32 v{vMX}, v{vMX}, v{vMX+1}")
        m(f"v_mov_b32 v{vMX+1}, v{vMX}")
        m(f"v_permlane32_swap_b32 v{vMX}, v{vMX+1}")
        m(f"v_max_f32 v{vMX}, v{vMX}, v{vMX+1}")
        m(f"v_cvt_pk_bf16_f32 v26, -v{vMX}, -v{vMX}")
        m(f"v_lshlrev_b32 v26, 16, v26")
        m(f"v_sub_f32 v26, -v{vMX}, v26")
        m(f"v_cvt_pk_bf16_f32 v27, -v{vMX}, v26")
        m(f"v_and_b32 v28, 0xffff0000, v27")
        m(f"v_sub_f32 v26, v26, v28")
        m(f"v_cndmask_b32 v{vQ+6}, v{vQ+6}, v27, {s(sHI,2)}")
        m(f"v_cvt_pk_bf16_f32 v26, v26, 0")
        self.patch(1, "v29")
        m(f"v_cndmask_b32 v{vQ+7}, v{vQ+7}, v26, {s(sHI,2)}")
        self.qk(0, 0)
        self.rd_k(2)
        self.qk(0, 1)
        self.stamp("pass 1 done")
        O = v(vO, 16)
        for i in range(9):
            S = vS + 16 * (i & 1)
            ex = lambda k: e(f"v_exp_f32 v{S+k}, v{S+k}")
            cv = lambda k: e(f"v_cvt_pk_bf16_f32 v{vP+k}, v{S+2*k}, v{S+2*k+1}")
            self.stamp(group=4)
            if i == OPT["chk0"]:
                self.force(self.C)
                self.force_p()
            if i == OPT["poll2"]:
                self.poll_item(vF23A, f"s{sF2O}")
            if i == OPT["chk2"]:
                self.de_start()
            if i < 8:
                self.patch(i + 1, "0")
                self.qk(i + 1, 0)
            self.rd_v(i, 0)
            self.rd_v(i, 1)
            self.cluster(1)
            for k in range(4):
                ex(k)
            if i < 8:
                self.qk(i + 1, 1)
            self.cluster()
            for k in range(4, 9):
                ex(k)
            for k in range(4):
                cv(k)
            ex(9)
            ex(10)
            e(f"{MFMA} {O}, {v(vVR,4)}, {v(vP,4)}, {O if i else 0}")
            if i < 6:
                self.rd_k(i + 3, e)
            self.cluster(1)
            for k in range(11, 16):
                ex(k)
            for k in range(4, 8):
                cv(k)
            self.cluster()
            e(f"{MFMA} {O}, {v(vVR+4,4)}, {v(vP+4,4)}, {O}")
        self.force(self.C, self.b2item)
        self.a.need(*self.tB2)
        m(f"v_lshrrev_b32 v26, 1, v{vGA}")
        m(f"ds_read_u16 v{vBI}, v26 offset:{TB2}")
        m(f"ds_read_u16 v{vBI+4}, v26 offset:{TB2+64}")
        m(f"s_cmp_eq_u32 s{sW}, 0")
        m(f"s_cselect_b32 s{sT0}, 0x3f80, 0")
        m(f"v_mov_b32 v26, s{sT0}")
        for k in (1, 2, 3, 5, 6, 7, 9, 10, 11):
            m(f"v_mov_b32 v{vBI+k}, 0")
        m(f"v_cndmask_b32 v{vBI+8}, v26, 0, {s(sHI,2)}")
        self.force(self.C, self.gitem)
        m(f"v_mov_b32 v{vMX}, v{vO+12}")
        m(f"v_mov_b32 v{vMX+1}, v{vO+12}")
        m(f"v_permlane32_swap_b32 v{vMX}, v{vMX+1}")
        m(f"v_rcp_f32 v{vMX}, v{vMX+1}")
        m(f"v_mul_f32 v{vMX}, v{vMX}, v{vGATE}")
        for k in range(8):
            m(f"v_pk_mul_f32 {v(vO+2*k,2)}, {v(vO+2*k,2)}, {v(vMX,2)} op_sel_hi:[1,0]")
        self.tO = []
        for k in range(8):
            m(f"v_cvt_pk_bf16_f32 v{vP+k}, v{vO+2*k}, v{vO+2*k+1}")
            if k == 3:
                self.P.append(Item(f"buffer_store_dwordx4 {v(vP,4)}, v{vLIN}, {s(S_WS,4)}, s{sOS} offen sc1", self.tO))
        m(f"v_cndmask_b32 v{vP+6}, v{vP+6}, 0, {s(sHI,2)}")
        self.P.append(Item(f"buffer_store_dwordx4 {v(vP+4,4)}, v{vLIN}, {s(S_WS,4)}, s{sOS} offen offset:1024 sc1", self.tO))
        self.drain()
        self.force(self.P)
        self.stamp("attention done")

    def ar(self, p, k):
        if p >= 14:
            return a_(32 + 16 * (p - 14) + 4 * k, 4)
        return v((64, 80, 104, 120, 24)[p % OPT["depth"]] + 4 * k, 4)

    def a_load(self, p):
        for n in range(4):
            if p < 14:
                ad, so, imm = (vLIN, vA1H)[n & 1], sAOFF, 1024 * (n >> 1)
                pre = [f"s_add_u32 s{sAOFF}, s{sAOFF}, 2048"] if p and n == 0 else ()
            else:
                ad, so, imm = vLIN, sAEND, 1024 * n
                pre = [f"s_add_u32 s{sAEND}, s{sAEND}, {(0, 4096, 32768-4096, 4096)[p-14]}"] if p > 14 and n == 0 else ()
            self.C.append(Item(f"buffer_load_dwordx4 {self.ar(p,n)}, v{ad}, {s(S_WS,4)}, s{so} offen offset:{imm} sc1",
                               self.atok.setdefault(p, []), pre=pre, lat=OPT["miss2"]))
            self.C[-1].due = p - 3 if p < 14 else p - 4
        self.alast[p] = self.C[-1]

    def de_start(self):
        e = self.e
        self.alast, self.atok = {}, {}
        self.poll_check(vF23A, f"s{sF2O}")
        for p in range(OPT["depth"]):
            self.a_load(p)
        self.C.append(Item(f"buffer_load_dword v{vGATE}, v{vGA}, {s(S_WS,4)}, s{sGQ} offen sc1", lat=OPT["miss"]))
        self.C.rotate(1)
        self.gitem = self.C[0]
        for rb in range(2):
            self.C.append(Item(f"buffer_load_dword v{vG+rb}, v{vGA}, {s(S_WS,4)}, s{sGD} offen offset:{128*rb} sc1", lat=OPT["miss"]))
            self.C[-1].due = 1

    def de(self):
        e, pe, m = self.e, self.pe, self.m
        e(f"s_cmp_ge_u32 s{sLOC}, 28")
        e("s_cbranch_scc1 L_idle")
        started = sum(1 for p in range(4) if self.atok.get(p))
        self.bfirst = True
        for p in range(OPT["bpre"], 18):
            self.B.extend(self.b_dma(p))
        for p in range(OPT["bpre"] - 6, 16):
            self.D.extend(self.b_read(p))
        self.publish(sF3P, self.tO, 2)

        def mm(p, n):
            if p < 14:
                ks, qd = (n & 1, n >> 1) if p == 13 else (n >> 2, n & 3)
                B, A = 16 * p + 8 * ks + 4 * (qd & 1), self.ar(p, 2 * ks + (qd >> 1))
            else:
                fr, t = (n >> 1, n & 1) if p in (14, 16) else (n & 3, 1 - (n >> 2))
                qd = 2 * ((p - 14) >> 1) + t
                B, A = (16 * (14 + 2 * (p & 1)) + 8 * fr + 4 * t) % 256, self.ar(p, fr)
            acc = v(vAB + 16 * qd, 16)
            e(f"{MFMA} {acc}, {a_(B,4)}, {A}, {0 if p == 0 and n < 4 else acc}")

        def scale(qd):
            for k in range(16):
                pe(f"v_mul_f32 v{vAB+16*qd+k}, v{vG+(qd>>1)}, v{vAB+16*qd+k}")

        def put(rb, i):
            h, k = (1, 3, 2)[i >> 1], i & 1
            e(f"ds_write_b128 v24, {v(vAB+32*rb+16*(h&1)+8*(h>>1)+4*k,4)} offset:{rb*(RING-RED)+h*2048+k*1024}")

        def get(rb):
            R, S = 208, vAB + 32 * rb
            for h in range(1, 4):
                for k in range(2):
                    pe(f"ds_read_b128 {v(R+8*h+4*k,4)}, v{24+h} offset:{rb*(RING-RED)+k*1024}")
            for h in range(1, 4):
                if rb:
                    for k in range(4):
                        pe(f"v_pk_add_f32 {v(S+2*k,2)}, {v(S+2*k,2)}, {v(R+8*h+2*k,2)}")
                else:
                    for k in range(8):
                        pe(f"v_add_f32 v{S+k}, v{S+k}, v{R+8*h+k}")
            for k in range(4):
                pe(f"v_cvt_pk_bf16_f32 v{32+4*rb+k}, v{S+2*k}, v{S+2*k+1}")
            if rb:
                pe(f"s_add_u32 s{sOUT}, s{sOUT}, {32*896}")
            for d in range(2):
                pe(f"v_permlane32_swap_b32 v{32+4*rb+d}, v{32+4*rb+2+d}")
            pe(f"buffer_store_dwordx4 {v(32+4*rb,4)}, v28, {s(S_OUT,4)}, s{sOUT} offen")

        for p in range(18):
            if p < 6 or p >= 9:
                self.stamp(group=5)
            self.force(self.C if p < 14 else self.B, self.alast[p])
            for pb in ([p] if p < 14 else [14 + 2 * (p & 1), 15 + 2 * (p & 1)]):
                self.force_read(pb)
            self.await_(self.atok[p][:2])
            if p in (1, 2):
                self.D.extend(self.b_read(15 + p))
            if p == 3:
                for qd in range(4):
                    acc = v(vAB + 16 * qd, 16)
                    e(f"{MFMA} {acc}, {v(vBI+4*(qd&1),4)}, {v(vBI+8,4)}, {acc}")
                    self.side()
            if p == OPT["poll3"]:
                e(f"s_add_u32 s{sF2O}, s{sF2O}, {F3-F2}")
                self.poll_item(vF23A, f"s{sF2O}")
            if p == 11:
                pe(f"v_add_u32 v24, s{sRING}, v{vLIN}")
                for h in range(1, 4):
                    pe(f"s_xor_b32 s{sT0}, s{sW}, {h}")
                    pe(f"s_mul_i32 s{sT0}, s{sT0}, 12288")
                    pe(f"s_add_u32 s{sT0}, s{sT0}, {RED+2048*h}")
                    pe(f"v_add_u32 v{24+h}, s{sT0}, v{vLIN}")
                pe(f"v_and_b32 v28, 31, v{vL}")
                pe(f"v_mul_u32_u24 v28, 896, v28")
                pe(f"v_lshrrev_b32 v29, 5, v{vL}")
                pe(f"v_lshl_add_u32 v28, v29, 4, v28")
                for rb in range(2):
                    pe(f"v_sub_f32 v{vG+rb}, 1.0, v{vG+rb}")
            if p == 14:
                self.drain()
            if p == 16:
                self.drain()
            for n in range(8):
                mm(p, n)
                if p == 13 and n in (3, 5):
                    scale((n - 3) >> 1)
                if p == 14 and n == 0:
                    scale(2)
                    scale(3)
                if p in (15, 17) and n >= 6:
                    put(p >> 4, n - 6)
                elif p == 16 and n < 4:
                    put(0, n + 2)
                if p == 16 and n == 5:
                    e("s_waitcnt lgkmcnt(0)")
                    e("s_barrier")
                    get(0)
                self.gap(32 if p == 13 else 8 if p == 16 and n < 7 else 24)
            if p + OPT["depth"] < 14:
                self.a_load(p + OPT["depth"])
            if p == OPT["chk3"]:
                self.poll_check(vF23A, f"s{sF2O}")
                keep, self.C = self.C, deque()
                for q in range(14, 18):
                    self.a_load(q)
                self.B.extend(self.C)
                self.C = keep
        self.stamp("pair 17 done")
        assert not self.q
        for i in range(2, 6):
            put(1, i)
        e("s_waitcnt lgkmcnt(0)")
        e("s_barrier")
        get(1)
        self.drain()
        self.stamp("end")
        self.write_stamps()
        e("s_endpgm")
        self.a.label("L_idle")
        self.a.vm, self.a.lg = [], []
        n = 0
        todo = range(started, 14 - OPT["pa0"]) if OPT["ipf"] else []
        for q in todo:
            e(f"s_add_u32 s{sAOFF}, s{sAOFF}, 2048")
            for k in range(4):
                self.a._push(Ins(f"buffer_load_dwordx4 {v(64+4*k,4)}, v{(vLIN, vA1H)[k & 1]}, {s(S_WS,4)}, s{sAOFF} offen offset:{1024*(k>>1)} sc1"))
                n += 1
            if n == 8:
                e(f"s_waitcnt vmcnt({n})")
                e(self.pub_text(sF3P))
        if n < 8:
            e(f"s_waitcnt vmcnt({n})")
            e(self.pub_text(sF3P))
        if OPT["ipf"]:
            e(f"s_add_u32 s{sF2O}, s{sF2O}, {F3-F2}")
            e(f"buffer_load_dword {v(vPOLL)}, {v(vF23A)}, {s(S_WS,4)}, s{sF2O} offen sc1")
            self.poll_check(vF23A, f"s{sF2O}")
            for q in range(4):
                for k in range(4):
                    self.a._push(Ins(f"buffer_load_dwordx4 {v(64+4*k,4)}, v{vLIN}, {s(S_WS,4)}, s{sAEND} offen offset:{1024*k} sc1"))
                if q < 3:
                    e(f"s_add_u32 s{sAEND}, s{sAEND}, {(4096, 32768-4096, 4096)[q]}")
        e("s_cmp_lg_u32 s2, 248")
        e("s_cbranch_scc1 L_end")
        e(f"s_cmp_lg_u32 s{sW}, 0")
        e("s_cbranch_scc1 L_end")
        e(f"v_lshlrev_b32 v24, 7, v{vL}")
        e(f"s_mov_b32 s{sSPIN}, 0")
        self.a.label("L_ep")
        for k in range(16):
            e(f"s_mov_b32 s{sT0}, {F1+8192*k}")
            e(f"buffer_load_dword v{40+k}, v24, {s(S_WS,4)}, s{sT0} offen sc1")
        e(f"s_add_u32 s{sSPIN}, s{sSPIN}, 1")
        e("s_waitcnt vmcnt(0)")
        for k in range(16):
            e(f"v_xor_b32 v{40+k}, v{vT}, v{40+k}")
        for k in range(1, 16):
            e(f"v_or_b32 v40, v40, v{40+k}")
        e(f"v_cmp_ne_u32 vcc, 0, v40")
        e(f"s_cmp_gt_u32 s{sSPIN}, 0x8000")
        e("s_cbranch_scc1 L_epd")
        e("s_cbranch_vccnz L_ep")
        self.a.label("L_epd")
        e(f"s_mov_b32 s{sT0}, {E_OFF}")
        e(self.pub_text(sT0))

    def write_stamps(self):
        e = self.e
        if OPT["probe"]:
            e(f"s_sub_u32 s{sT0}, s{sP0+1}, s{sP0}")
            e(f"s_lshl_b32 s{sT0}, s{sT0}, 2")
            e(f"s_add_u32 s{sT0}, s{sT0}, 72000")
            self.a.label("L_probe")
            e(f"s_memtime {s(sM3,2)}")
            e("s_waitcnt lgkmcnt(0)")
            e(f"s_sub_u32 s{sT1}, s{sM3}, s{sP0}")
            e(f"s_cmp_lt_u32 s{sT1}, s{sT0}")
            e("s_cbranch_scc1 L_probe")
        if not OPT["stamps"]:
            return
        e(f"s_lshl_b32 s{sT0}, s2, 2")
        e(f"s_add_u32 s{sT0}, s{sT0}, s{sW}")
        e(f"s_lshl_b32 s{sT1}, s{sT0}, 7")
        e(f"s_add_u32 s{sT1}, s{sT1}, {ST_BASE}")
        e(f"s_mov_b32 s{sT2}, {self.nst}")
        e(f"v_lshlrev_b32 v40, 2, v{vL}")
        e(f"v_writelane_b32 v{vST}, s{sT2}, 31")
        e(f"v_writelane_b32 v{vST}, s{sP0}, 30")
        e("s_memrealtime s[88:89]")
        e("s_waitcnt lgkmcnt(0)")
        e(f"v_writelane_b32 v{vST}, s88, 28")
        e(f"v_cmp_gt_u32 vcc, 32, v{vL}")
        e(f"v_mov_b32 v41, {OOB}")
        e(f"v_cndmask_b32 v40, v41, v40, vcc")
        e(f"buffer_store_dword v{vST}, v40, {s(S_WS,4)}, s{sT1} offen")

    def build(self):
        self.prologue()
        self.phase1()
        self.attention()
        self.de()
        self.a.label("L_end")
        self.e("s_endpgm")
        if OPT["strip"]:
            keep, pro = [], True
            for i in self.a.ins:
                if i.kind == "barrier":
                    pro = False
                drop = i.kind in ("mfma", "trans", "dsread", "dswrite") or (
                    not pro and i.kind == "valu" and any(r[0] == "v" and r != "vcc" and int(r[1:]) >= 30 for r in i.w) and "v40" not in i.w and "v41" not in i.w)
                if OPT["strip"] == 2 and i.kind == "vstore" and "x4" in i.mn:
                    i = Ins(i.text.replace("offen", "offen").replace(f"v{vLIN},", f"v{vL0},").replace("v24,", f"v{vL0},").replace("v25,", f"v{vL0},").replace("v26,", f"v{vL0},").replace("v27,", f"v{vL0},"))
                if not drop:
                    keep.append(i)
            self.a.ins = keep
        self.a.finalize()
        body = self.a.text() + "\n" + "\n".join(t if t.endswith(":") else "    " + t for t in self.tail) + "\nL_code_end:\n    s_endpgm\n"
        head = f"""; Fused gated mix: sliding-window attention branch + GELU FFN branch, one persistent launch.
; @launch grid=(256,1,1) block=(256,1,1) lds={LDS_SIZE}
.amdgcn_target "amdgcn-amd-amdhsa--gfx950"
.text
.globl {NAME}_kernel
.p2align 8
.type {NAME}_kernel,@function
{NAME}_kernel:
"""
        foot = f""".section .rodata,"a"
.p2align 6
.amdhsa_kernel {NAME}_kernel
  .amdhsa_next_free_vgpr 512
  .amdhsa_next_free_sgpr 102
  .amdhsa_accum_offset 256
  .amdhsa_group_segment_fixed_size 0
  .amdhsa_kernarg_size 96
  .amdhsa_user_sgpr_count 2
  .amdhsa_user_sgpr_kernarg_segment_ptr 1
  .amdhsa_system_sgpr_workgroup_id_x 1
  .amdhsa_float_denorm_mode_32 3
.end_amdhsa_kernel
"""
        return head + body + foot


if __name__ == "__main__":
    g = Gen()
    txt = g.build()
    out = sys.argv[1] if len(sys.argv) > 1 else f"cdna_kernels/{NAME}.s"
    open(out, "w").write(txt)
    kinds = {}
    for i in g.a.ins:
        kinds[i.kind] = kinds.get(i.kind, 0) + 1
    print(out, g.a.stats, kinds)
    if OPT["log"]:
        print("\n".join(g.a.log))
        print("model stalls", g.a.stall, "pipe busy", g.a.busy)
```

```python
import math, struct, sys
from collections import deque
sys.path.insert(0, "tools")
from asmlib import Asm, Ins, v, a_, s

NAME = "gated_mix__sliding_block__dense_activation_gelu__prompt"
OPT = dict(stamps=0, dbg=0, npairs=2, probe=0, poll1=22, poll2=3, chk2=6, poll3=7, norot=0, log=0,
           miss=480, pub1=10, svc=64, st=160, lat=480, win=8, strip=0, rot1=3, rot2=2, cpf=1, nt=0, split=1, wpf=1, wsoff=0, rt=0, ldsq=24, pfa0=2, pfa1=7, pfb0=7, pfb1=14, miss2=480, chk0=1, ipf=0, pa0=7, pb0=6, stlat=800, lat0=1800, bstart=0, null=0, gev=10, wbfirst=2, chk1=2, bpre=18, depth=5, chk3=9, lvar=0, karg2=0)
for arg in sys.argv[2:]:
    k, val = arg.split("=")
    assert k in OPT, k
    OPT[k] = int(val)


def fbits(x):
    return struct.unpack("<I", struct.pack("<f", x))[0]


QKV_BASE, H_BASE, O_BASE, G_BASE = 0, 0x600000, 0xD00000, 0xF00000
F_BASE, E_OFF, ST_BASE, WS_SIZE = 0xF10000, 0xF80000, 0xFA0000, 0x1000000
F1, F2, F3, F0 = F_BASE, F_BASE + 1024 * 128, F_BASE + 2048 * 128, F_BASE + 3072 * 128
OOB = 0x40000000
TAG_STEP = 0x6B43A9B7
R_A, R_Q, R_B, RING = 0, 57344, 106496, 57344
KV = R_B
XST = 106496
TB1, DUMMY, TB2, RED = 163328, 159744, 0, 8192
LDS_SIZE = 163840
S_CODE, S_X, S_WO, S_W1, S_W2, S_GW, S_WS, S_WQ, S_B1, S_B2, S_OUT = 4, 8, 12, 16, 20, 24, 28, 32, 36, 40, 44
sMX = 3
sW, sC, sLIGHT, sUA, sUB, sJ, sRB0, sCT, sLOC, sRB, sQB, sFIRST = range(48, 60)
sT0, sT1, sT2, sT3 = 60, 61, 62, 63
sHI, sM, sG = 64, 66, 68
sCA, sCB, sBT = 75, 76, 77
sMQ, sMA, sMAS, sMB, sRING = 78, 79, 80, 81, 82
sBOFF, sBEND, sAOFF, sAEND, sKV0 = 83, 84, 85, 86, 87
sM3, sF2O, sSPIN = 88, 90, 91
sQS, sHA, sHB, sF1, sGS, sF0P = 0, 1, 4, 5, 6, 7
sKOFF, sMKV, sQOFF, sOS, sF3P, sF0R, sK2 = 36, 37, 38, 39, 24, 25, 26
sGQ, sGD, sNQ, sOUT = 92, 93, 94, 95
sPF1, sPF2, sSLA, sSLB = 96, 97, 98, 99
sP0 = 100
vL, vLIN, vT, vL0, vK1, vST = 0, 1, 2, 3, 4, 5
vTRQ, vTRF0, vTRF1 = 6, 7, 8
vW1A0, vW1A1, vPV = 9, 10, 11
vBD = 12
vBT0, vBT1 = 16, 17
vF1A, vF23A = 18, 19
vWQ = 20
vPOLL, vGA, vGATE = 20, 21, 22
vTBL = 23
vTMP = 24
vXD, vXR = 32, 36
vWR = 40
vACC = 64
vX = 144
vQ, vS, vCD, vM0, vM8, vO, vP, vMX = 96, 144, 176, 192, 208, 224, 240, 248
vKR, vVR, vKA, vVA = 40, 136, 6, 11
vAB, vBI, vA1H, vG = 144, 208, 8, 9

C_GELU = -2.0 * math.sqrt(2.0 / math.pi) * math.log2(math.e)
K1, K2 = fbits(C_GELU), fbits(C_GELU * 0.044715)
QSCALE = fbits(math.log2(math.e) / math.sqrt(28.0))
NINF = 0xFF800000
MFMA = "v_mfma_f32_32x32x16_bf16"


def NT(bit):
    return " nt" if OPT["nt"] & bit else ""


class Item:
    def __init__(self, text, sink=None, pre=(), post=(), m0=None, after=None, lat=None, pre0=()):
        self.pre0 = pre0
        self.text = [text] if isinstance(text, str) else text
        self.sink, self.pre, self.post, self.m0, self.after, self.lat = sink, pre, post, m0, after, lat
        self.vm = self.text[0].startswith("buffer")
        self.done = False
        self.due = 0


class Gen:
    def __init__(self):
        self.a = Asm()
        self.a.verbose = OPT['log'] > 1
        self.a.p_svc, self.a.p_st, self.a.p_lat, self.a.p_win = OPT['svc'], OPT['st'], OPT['lat'], OPT['win']
        self.a.p_stlat = OPT['stlat']
        self.a.wq = s(S_WQ, 4)
        self.q = deque()
        self.P, self.C, self.B, self.D = deque(), deque(), deque(), deque()
        self.tail = []
        self.nst = self.nlab = self.nmark = 0
        self.marks = set()
        self.m0 = None
        self.hooks = {}
        self.bfirst = False

    def e(self, t):
        return self.a.e(t)

    def emit_item(self, st):
        it = st.popleft()
        c0 = len(self.a.ins)
        if it.after:
            toks = it.after()
            assert toks is not None, "forced item whose producers are not emitted: " + it.text[0]
            self.a.need(*toks)
        for t in it.pre0:
            self.e(t)
        if it.m0 and it.m0 != self.m0:
            reg, imm = it.m0[:2]
            self.e(f"s_mov_b32 m0, {imm}" if reg is None else f"s_add_u32 m0, s{reg}, {imm}" if imm else f"s_mov_b32 m0, s{reg}")
            self.m0 = it.m0
        for t in it.pre:
            self.e(t)
        for t in it.text:
            self.a.next_lat = it.lat
            k = self.e(t)
            if it.sink is not None:
                it.sink.append(k)
        for t in it.post:
            self.e(t)
        if getattr(it, "opt", False):
            for i in self.a.ins[c0:]:
                if i.kind != "wait":
                    i.note = "opt"
        it.done = True
        return 4 * (len(self.a.ins) - c0) + (4 if it.vm else 0)

    def vm_streams(self):
        if self.bfirst and self.B and self.C and self.B[0].due < self.C[0].due:
            return (self.P, self.B, self.C)
        return (self.P, self.C, self.B)

    def ready(self, it):
        if it.after:
            toks = it.after()
            return toks is not None and self.a.est(toks) <= self.a.clk
        return True

    def side(self, both=True):
        a = self.a
        cost = 0
        if a.vm_free():
            for st in self.vm_streams():
                if st and self.ready(st[0]):
                    cost = self.emit_item(st)
                    break
        if (both or not cost) and self.D and a.lds_free - a.clk <= OPT["ldsq"] and self.ready(self.D[0]):
            cost += self.emit_item(self.D)
        return cost

    def force(self, st, it=None):
        while st and (it is None or not it.done):
            self.emit_item(st)

    def m(self, t):
        k = self.e(t)
        if not t.startswith(("s_cmp", "s_cselect", "v_cmp")):
            self.side(False)
        return k

    def push(self, fn, cost=4):
        self.q.append((fn, cost))

    def pe(self, t):
        cost = 8 if Ins(t).kind == "trans" else 4
        if t.startswith("s_cselect"):
            fn, c = self.q.pop()
            assert getattr(fn, "scc", False), "s_cselect must follow its s_cmp directly: " + t
            g = lambda fn=fn, t=t: (fn(), self.e(t))
            g.scc = True
            self.q.append((g, c + cost))
            return
        f = lambda t=t: self.e(t)
        f.scc = t.startswith("s_cmp")
        self.q.append((f, cost))

    def gap(self, budget):
        budget -= self.side(budget >= 24)
        while self.q and budget >= min(self.q[0][1], 8):
            fn, c = self.q.popleft()
            fn()
            budget -= c

    def cluster(self, nd=2):
        self.side(True)
        for _ in range(nd - 1):
            if self.D and self.ready(self.D[0]):
                self.emit_item(self.D)

    def drain(self, name=None, every=1):
        n = 0
        while (self.q if name is None else name not in self.marks):
            self.q.popleft()[0]()
            n += 1
            if n % every == 0:
                self.cluster()

    def mark(self, name):
        self.push(lambda: self.marks.add(name), 0)

    def hook(self, name):
        fn = self.hooks.pop(name, None)
        if fn:
            fn()

    def stamp(self, name="", group=1):
        if group == 1:
            self.a.log.append(f"{self.a.clk:6d} {name}  (pipe busy {self.a.busy} idle {self.a.idle} ops {self.a.nvm}; left C {len(self.C)} B {len(self.B)} D {len(self.D)})")
        if (OPT["stamps"] == group or (OPT["stamps"] and (self.nst == 0 or name == "end" or (name == "chunk 0" and OPT["stamps"] == 9)))) and self.nst < 16:
            clk = self.a.clk
            self.e(f"{'s_memrealtime' if OPT['rt'] else 's_memtime'} {s(sM3,2)}")
            self.e("s_waitcnt lgkmcnt(0)")
            self.e(f"v_writelane_b32 v{vST}, s{sM3}, {self.nst}")
            self.a.clk = clk
            self.nst += 1
        if group == 1:
            self.nmark += 1
            if OPT["probe"] == self.nmark:
                self.e(f"s_memtime {s(sM3,2)}")
                self.e("s_waitcnt lgkmcnt(0)")
                self.e(f"s_mov_b32 s{sP0+1}, s{sM3}")

    def poll_item(self, addr, soff):
        it = Item(f"buffer_load_dword {v(vPOLL)}, {v(addr)}, {s(S_WS,4)}, {soff} offen sc1", lat=OPT["miss"])
        self.P.append(it)
        return it

    def poll_check(self, addr, soff):
        self.force_p()
        self.await_([k for k, r in self.a.vm if f"v{vPOLL}" in r])
        self.nlab += 1
        n = self.nlab
        if OPT["stamps"]:
            self.e(f"s_mov_b32 s{sSPIN}, 0")
        self.e(f"v_cmp_ne_u32 vcc, {v(vT)}, {v(vPOLL)}")
        self.e(f"s_cbranch_vccnz L_slow{n}")
        self.a.label(f"L_back{n}")
        if OPT["stamps"]:
            self.npoll = getattr(self, "npoll", 0) + 1
            self.e(f"v_writelane_b32 v{vST}, s{sSPIN}, {15 + self.npoll}")
        self.tail += [f"L_slow{n}:", f"s_mov_b32 s{sSPIN}, 0", f"L_spin{n}:",
                      f"buffer_load_dword {v(vPOLL)}, {v(addr)}, {s(S_WS,4)}, {soff} offen sc1",
                      f"s_add_u32 s{sSPIN}, s{sSPIN}, 1",
                      "s_waitcnt vmcnt(0)",
                      f"v_cmp_ne_u32 vcc, {v(vT)}, {v(vPOLL)}",
                      f"s_cmp_gt_u32 s{sSPIN}, 0x20000",
                      f"s_cbranch_scc1 L_back{n}",
                      f"s_cbranch_vccnz L_spin{n}",
                      f"s_branch L_back{n}"]

    def pub_text(self, soff):
        return f"buffer_store_dword {v(vT)}, {v(vL0)}, {s(S_WS,4)}, s{soff} offen sc1"

    def publish(self, soff, toks, n, pre=()):
        it = Item(self.pub_text(soff), pre=pre, after=lambda: toks if len(toks) == n else None)
        self.P.append(it)
        return it

    def prologue(self):
        e, m = self.e, self.m
        if OPT["probe"] or OPT["stamps"]:
            e(f"s_memtime {s(sP0,2)}")
        if OPT["stamps"]:
            e("s_memrealtime s[88:89]")
        e("s_load_dwordx16 s[8:23], s[0:1], 0")
        if not OPT["karg2"]:
            e("s_load_dwordx8 s[24:31], s[0:1], 64")
        if OPT["probe"] == 101:
            e("s_waitcnt lgkmcnt(0)")
            e(f"s_memtime {s(sM3,2)}")
            e("s_waitcnt lgkmcnt(0)")
            e(f"s_mov_b32 s{sP0+1}, s{sM3}")
        e("s_cmp_ge_u32 s2, 256")
        e("s_cbranch_scc1 L_end")
        e(f"s_getpc_b64 {s(S_CODE,2)}")
        self.a.label("L_pc")
        e(f"s_lshr_b32 s{sLOC}, s2, 3")
        e(f"v_lshrrev_b32 v1, 6, v0")
        e(f"v_and_b32 v{vL}, 63, v0")
        e(f"s_and_b32 s{sT0}, s{sLOC}, 7")
        e(f"v_readfirstlane_b32 s{sW}, v1")
        e(f"s_mov_b32 s{S_CODE+2}, L_code_end-L_pc")
        e(f"s_mov_b32 s{S_CODE+3}, 0x20000")
        e(f"v_and_b32 v24, 7, v{vL}")
        e(f"v_lshl_add_u32 v24, v1, 3, v24")
        e(f"v_lshlrev_b32 v24, 7, v24")
        e(f"s_lshl_b32 s{sT1}, s{sT0}, 12")
        if OPT["cpf"]:
            e(f"buffer_load_dword v250, v24, {s(S_CODE,4)}, 0 offen")
        e(f"buffer_load_dword v251, v24, {s(S_CODE,4)}, s{sT1} offen")
        e(f"s_lshr_b32 s{sT1}, s{sLOC}, 3")
        e(f"s_bfe_u32 s{sRB}, s2, 0x20001")
        e(f"s_lshl_b32 s{sRB}, s{sRB}, 2")
        e(f"s_add_u32 s{sRB}, s{sRB}, s{sT1}")
        e(f"s_and_b32 s{sC}, s2, 1")
        e(f"s_lshl_b32 s{sC}, s{sC}, 3")
        e(f"s_add_u32 s{sC}, s{sC}, s{sT0}")
        e(f"s_lshl_b32 s{sT1}, s{sT1}, 1")
        e(f"s_add_u32 s{sT0}, s{sT0}, s{sT1}")
        e(f"s_sub_u32 s{sT1}, s{sT0}, 7")
        e(f"s_cmp_ge_u32 s{sT0}, 7")
        e(f"s_cselect_b32 s{sG}, s{sT1}, s{sT0}")
        if OPT["rot1"] == 3:
            e(f"s_bfe_u32 s{sT0}, s2, 0x20001")
            e(f"s_add_u32 s{sT0}, s{sT0}, s{sG}")
            e(f"s_sub_u32 s{sT1}, s{sT0}, 7")
            e(f"s_cmp_ge_u32 s{sT0}, 7")
            e(f"s_cselect_b32 s{sG}, s{sT1}, s{sT0}")
        if OPT["rot1"] == 0:
            e(f"s_mov_b32 s{sG}, 0")
        if OPT["rot1"] == 2:
            e(f"s_and_b32 s{sT0}, s2, 7")
            e(f"s_cmp_eq_u32 s{sT0}, 7")
            e(f"s_cselect_b32 s{sG}, 0, s{sT0}")
        e(f"s_lshl_b32 s{sRB}, s{sRB}, 2")
        e(f"s_add_u32 s{sRB}, s{sRB}, s{sW}")
        if OPT["probe"] == 103:
            e("s_waitcnt lgkmcnt(0)")
            e(f"s_memtime {s(sM3,2)}")
            e("s_waitcnt lgkmcnt(0)")
            e(f"s_mov_b32 s{sP0+1}, s{sM3}")
        e(f"v_lshrrev_b32 v24, 3, v{vL}")
        e(f"s_lshl_b32 s{sT0}, s{sRB}, 5")
        e(f"v_add_u32 v24, s{sT0}, v24")
        e(f"v_mul_u32_u24 v24, 896, v24")
        e(f"v_lshrrev_b32 v26, 4, v{vL}")
        e(f"v_and_b32 v27, 7, v{vL}")
        e(f"v_xor_b32 v26, v26, v27")
        e(f"v_lshl_add_u32 v{vXD}, v26, 4, v24")
        e(f"v_xor_b32 v{vXD+1}, 64, v{vXD}")
        e(f"v_add_u32 v{vXD+2}, {2*(7168-1024)}, v{vXD}")
        e(f"v_add_u32 v{vXD+3}, {3*(7168-1024)}, v{vXD+1}")
        e(f"v_add_u32 v{vXD+1}, {7168-1024}, v{vXD+1}")
        e(f"s_mul_i32 s{sMX}, s{sW}, 12288")
        e(f"s_add_u32 s{sRING}, s{sMX}, {RED}")
        e(f"s_add_u32 s{sMX}, s{sMX}, {XST}")
        e("s_waitcnt lgkmcnt(0)")
        if OPT["karg2"]:
            e("s_load_dwordx8 s[24:31], s[0:1], 64")
        e(f"s_mov_b64 {s(S_WQ,2)}, s[10:11]")
        e(f"s_mov_b32 s{S_X+2}, {2048*896}")
        e(f"s_mov_b32 s{S_X+3}, 0x20000")
        self.a.clk = self.a.pipe_free = 0
        self.a.allv = []
        self.a.done = {k: 0 for k in self.a.done}
        if OPT["stamps"]:
            e(f"v_writelane_b32 v{vST}, s88, 29")
        self.stamp("kernarg")
        self.ctok, self.wtok, self.xrd, self.ftok = {}, {}, {}, {}
        self.add_chunk(0)
        for _ in range(4):
            self.emit_item(self.C)
        e(f"s_mov_b32 s{S_WQ+2}, {448*2688}")
        e(f"s_mov_b32 s{S_WQ+3}, 0x20000")
        e(f"s_mul_i32 s{sT0}, s{sC}, 168")
        e(f"s_and_b32 s{sT0}, s{sT0}, 0xfffffff0")
        e(f"s_mul_i32 s{sT1}, s{sW}, {16*2688}")
        e(f"s_add_u32 s{sT0}, s{sT0}, s{sT1}")
        e(f"s_movk_i32 s{sT1}, 2688")
        for i in range(3):
            q = vL
            if i:
                q = 24
                e(f"v_add_u32 v24, {64*i}, v{vL}")
            e(f"v_mul_u32_u24 v26, 171, v{q}")
            e(f"v_lshrrev_b32 v26, 11, v26")
            e(f"v_mad_i32_i24 v24, v26, -12, v{q}")
            e(f"v_min_u32 v24, 10, v24")
            e(f"v_lshl_add_u32 v24, v24, 4, s{sT0}")
            e(f"v_mad_u32_u24 v{vWQ+i}, v26, s{sT1}, v24")
            if i < 2:
                e(f"s_sub_u32 s{sT0}, s{sT0}, 1024")
        e(f"s_mul_i32 s{sMQ}, s{sW}, {16*192}")
        e(f"s_add_u32 s{sMQ}, s{sMQ}, {R_Q}")
        self.force(self.C)
        for i in range(1, 7):
            e(f"s_add_u32 s{sT0}, s{sG+i-1}, 1")
            e(f"s_cmp_eq_u32 s{sT0}, 7")
            e(f"s_cselect_b32 s{sG+i}, 0, s{sT0}")
        self.add_chunk(1)
        def srds(moves, sizes):
            for srd, src in moves:
                m(f"s_mov_b64 {s(srd,2)}, {s(src,2)}")
            for srd, size in sizes:
                m(f"s_mov_b32 s{srd+2}, {size}")
                m(f"s_mov_b32 s{srd+3}, 0x20000")
        srds(((S_B1, 18), (S_B2, 22)), ((S_B1, 3584), (S_W1, 448 * 3584), (S_B2, 896)))
        late_srds = lambda: srds(((S_OUT, 26), (S_WS, 30)), ((S_WS, WS_SIZE), (S_GW, 896), (S_OUT, 2048 * 896)))
        if not OPT["karg2"]:
            late_srds()
        m(f"s_lshr_b32 s{sLIGHT}, 0x1248, s{sC}")
        m(f"s_and_b32 s{sLIGHT}, s{sLIGHT}, 1")
        m(f"s_bfm_b32 s{sT0}, s{sC}, 0")
        m(f"s_and_b32 s{sT0}, s{sT0}, 0x1248")
        m(f"s_bcnt1_i32_b32 s{sT0}, s{sT0}")
        m(f"s_lshl_b32 s{sUA}, s{sC}, 1")
        m(f"s_sub_u32 s{sUA}, s{sUA}, s{sT0}")
        m(f"s_add_u32 s{sUB}, s{sUA}, 1")
        m(f"s_sub_u32 s{sUB}, s{sUB}, s{sLIGHT}")
        m(f"s_lshl_b32 s{sT0}, s{sW}, 6")
        m(f"v_add_u32 v244, s{sT0}, v{vL}")
        m(f"s_lshl_b32 s{sT1}, s{sG}, 6")
        for h in range(2):
            m(f"v_add_u32 v27, s{sT1}, v244")
            if h:
                m(f"v_add_u32 v27, 256, v27")
            m(f"v_subrev_u32 v28, 448, v27")
            m(f"v_min_u32 v27, v27, v28")
            m(f"v_lshlrev_b32 v{52+h}, 1, v27")
        m(f"s_lshl_b32 s{sT0}, s{sUA}, 7")
        m(f"s_cmp_eq_u32 s{sLIGHT}, 1")
        m(f"s_cselect_b32 s{sT0}, {OOB}, s{sT0}")
        m(f"s_lshl_b32 s{sT1}, s{sUB}, 7")
        m(f"s_sub_u32 s{sT1}, s{sT1}, 128")
        m(f"s_mov_b32 s{sHI}, 0")
        m(f"s_mov_b32 s{sHI+1}, -1")
        m(f"v_mov_b32 v27, s{sT0}")
        m(f"v_mov_b32 v28, s{sT1}")
        m(f"v_cndmask_b32 v27, v27, v28, {s(sHI,2)}")
        m(f"v_lshl_add_u32 v54, v{vL}, 2, v27")
        m(f"v_mov_b32 v55, {E_OFF}")
        m(f"v_lshlrev_b32 v{vLIN}, 4, v{vL}")
        m(f"v_bfe_u32 v24, v{vL}, 2, 2")
        m(f"v_lshrrev_b32 v27, 5, v{vL}")
        m(f"v_bfe_u32 v28, v{vL}, 4, 1")
        m(f"v_and_b32 v29, 3, v{vL}")
        m(f"v_lshlrev_b32 v29, 3, v29")
        m(f"v_lshl_add_u32 v29, v28, 5, v29")
        m(f"v_lshl_add_u32 v40, v27, 3, v24")
        m(f"v_mul_u32_u24 v41, 192, v40")
        m(f"s_and_b32 s{sT0}, s{sC}, 1")
        m(f"s_lshl_b32 s{sT0}, s{sT0}, 3")
        m(f"s_add_u32 s{sT0}, s{sT0}, {R_Q}")
        m(f"v_add3_u32 v{vTRQ}, v41, v29, s{sT0}")
        m(f"v_lshrrev_b32 v41, 1, v24")
        m(f"v_lshl_add_u32 v29, v41, 6, v29")
        m(f"v_lshl_add_u32 v{vTRF0}, v40, 7, v29")
        m(f"v_xor_b32 v{vTRF1}, 64, v{vTRF0}")
        m(f"v_lshl_add_u32 v40, v27, 2, v24")
        m(f"v_lshl_add_u32 v40, v40, 7, v29")
        m(f"s_lshl_b32 s{sT0}, s{sW}, 3")
        m(f"s_lshr_b32 s{sT0}, 0x60204000, s{sT0}")
        m(f"s_and_b32 s{sOUT}, s{sT0}, 0xff")
        m(f"v_xor_b32 v40, s{sOUT}, v40")
        m(f"v_add_u32 v{vBT0}, s{sRING}, v40")
        m(f"v_xor_b32 v{vBT1}, 64, v{vBT0}")
        m(f"v_and_b32 v40, 31, v{vL}")
        m(f"v_bfe_u32 v41, v{vL}, 1, 3")
        m(f"v_xor_b32 v41, v41, v27")
        m(f"v_lshlrev_b32 v41, 4, v41")
        m(f"v_lshl_add_u32 v40, v40, 7, v41")
        m(f"v_add_u32 v{vXR}, s{sMX}, v40")
        for k in range(1, 4):
            m(f"v_xor_b32 v{vXR+k}, {32*k}, v{vXR}")
        m(f"v_lshlrev_b32 v{vTBL}, 3, v27")
        m(f"v_add_u32 v{vTBL}, {TB1 - TB1 % 2048}, v{vTBL}")
        m(f"v_and_b32 v40, 3, v{vL}")
        m(f"v_lshl_add_u32 v40, v27, 2, v40")
        m(f"v_bfe_u32 v41, v{vL}, 2, 3")
        m(f"v_lshl_add_u32 v40, v41, 3, v40")
        m(f"v_lshlrev_b32 v{vPV}, 4, v40")
        m(f"v_cmp_eq_u32 vcc, 0, v{vL}")
        m(f"v_mov_b32 v40, {OOB}")
        m(f"v_mov_b32 v{vK1}, {K1}")
        m(f"v_cndmask_b32 v{vL0}, v40, 0, vcc")
        m(f"s_lshl_b32 s{sT0}, s2, 2")
        m(f"s_add_u32 s{sT0}, s{sT0}, s{sW}")
        m(f"s_mul_i32 s{sT0}, s{sT0}, 49")
        m(f"s_lshr_b32 s{sPF1}, s{sT0}, 2")
        m(f"s_lshl_b32 s{sPF1}, s{sPF1}, 7")
        m(f"s_lshr_b32 s{sPF2}, s{sT0}, 4")
        m(f"s_lshl_b32 s{sPF2}, s{sPF2}, 7")
        m(f"s_mul_i32 s{sSLA}, s2, {OPT['pfa1'] - OPT['pfa0']}")
        m(f"s_lshr_b32 s{sSLA}, s{sSLA}, 8")
        m(f"s_mul_i32 s{sSLB}, s2, {OPT['pfb1'] - OPT['pfb0']}")
        m(f"s_lshr_b32 s{sSLB}, s{sSLB}, 8")
        for srd, size in ((S_W2, 1792 * 896), (S_WO, 448 * 896)):
            m(f"s_mov_b32 s{srd+2}, {size}")
            m(f"s_mov_b32 s{srd+3}, 0x20000")
        self.setup_later()
        self.store_addr()
        self.drain()
        m(f"v_lshrrev_b32 v41, 5, v{vL}")
        m(f"v_bfe_u32 v42, v{vL}, 4, 1")
        m(f"v_xor_b32 v41, v41, v42")
        m(f"v_bfe_u32 v40, v{vL}, 2, 2")
        m(f"v_lshl_add_u32 v40, v41, 3, v40")
        m(f"v_and_b32 v41, 1, v{vL}")
        m(f"v_lshl_add_u32 v40, v41, 2, v40")
        m(f"v_lshlrev_b32 v40, 4, v40")
        m(f"v_lshl_add_u32 v40, v42, 10, v40")
        m(f"v_bfe_u32 v41, v{vL}, 1, 1")
        m(f"v_lshl_add_u32 v40, v41, 3, v40")
        m(f"s_lshl_b32 s{sT1}, s{sW}, 11")
        m(f"s_add_u32 s{sT1}, s{sT1}, {KV+24576}")
        m(f"v_add_u32 v{vVA}, s{sT1}, v40")
        if OPT["karg2"]:
            e("s_waitcnt lgkmcnt(0)")
            late_srds()
        self.force(self.C)
        self.a.next_lat = OPT["miss"]
        e(f"buffer_load_dword v{vT}, v55, {s(S_WS,4)}, 0 offen sc1")
        for h in range(2):
            e(f"buffer_load_ushort v{245+h}, v{52+h}, {s(S_GW,4)}, 0 offen")
        e(f"s_mov_b32 m0, {TB1}")
        self.m0 = None
        self.tB1 = e(f"buffer_load_dword v54, {s(S_B1,4)}, 0 offen lds")
        m(f"s_lshl_b32 s{sT1}, s{sQB}, 4")
        m(f"s_add_u32 s{sT1}, s{sT1}, s{sJ}")
        m(f"s_lshl_b32 s{sF3P}, s{sT1}, 7")
        m(f"s_add_u32 s{sF3P}, s{sF3P}, {F3}")
        m(f"s_lshl_b32 s{sOS}, s{sT1}, 11")
        m(f"s_add_u32 s{sOS}, s{sOS}, {O_BASE}")
        m(f"s_lshl_b32 s{sT0}, s{sJ}, 6")
        m(f"s_add_u32 s{sKOFF}, s{sT0}, s{sKV0}")
        m(f"s_lshl_b32 s{sKOFF}, s{sKOFF}, 11")
        m(f"s_add_u32 s{sQOFF}, s{sT0}, s{sQB}")
        m(f"s_lshl_b32 s{sQOFF}, s{sQOFF}, 11")
        m(f"s_mul_i32 s{sMKV}, s{sW}, 6144")
        m(f"s_lshl_b32 s{sT0}, s{sQB}, 7")
        m(f"s_add_u32 s{sGQ}, s{sT0}, {G_BASE}")
        m(f"s_mov_b32 s{sK2}, {K2}")
        m(f"s_mov_b32 s{sK2+1}, {K2}")

    def setup_later(self):
        m = self.m
        m(f"s_and_b32 s{sT0}, s2, 7")
        m(f"s_and_b32 s{sT1}, s{sLOC}, 1")
        m(f"s_lshl_b32 s{sJ}, s{sT0}, 1")
        m(f"s_add_u32 s{sJ}, s{sJ}, s{sT1}")
        m(f"s_mul_i32 s{sT1}, s{sLOC}, 37")
        m(f"s_lshr_b32 s{sT1}, s{sT1}, 8")
        m(f"s_mul_i32 s{sCT}, s{sT1}, 7")
        m(f"s_sub_u32 s{sCT}, s{sLOC}, s{sCT}")
        m(f"s_cmp_lt_u32 s{sLOC}, 28")
        m(f"s_cselect_b32 s{sT1}, s{sT1}, s{sCT}")
        m(f"s_lshl_b32 s{sRB0}, s{sT0}, 2")
        m(f"s_add_u32 s{sRB0}, s{sRB0}, s{sT1}")
        m(f"s_lshl_b32 s{sRB0}, s{sRB0}, 1")
        m(f"s_mul_i32 s{sBOFF}, s{sW}, {448*896}")
        m(f"s_mul_i32 s{sAOFF}, s{sRB0}, 112")
        m(f"s_mul_i32 s{sT0}, s{sW}, 28")
        m(f"s_add_u32 s{sAOFF}, s{sAOFF}, s{sT0}")
        m(f"s_lshl_b32 s{sAOFF}, s{sAOFF}, 10")
        m(f"s_add_u32 s{sAOFF}, s{sAOFF}, {H_BASE}")
        m(f"s_lshl_b32 s{sAEND}, s{sRB0}, 2")
        m(f"s_add_u32 s{sAEND}, s{sAEND}, s{sW}")
        m(f"s_lshl_b32 s{sAEND}, s{sAEND}, 13")
        m(f"s_add_u32 s{sAEND}, s{sAEND}, {O_BASE}")
        m(f"s_mul_i32 s{sBEND}, s{sW}, {112*896}")
        m(f"s_lshl_b32 s{sGD}, s{sRB0}, 7")
        m(f"s_add_u32 s{sGD}, s{sGD}, {G_BASE}")
        m(f"s_lshl_b32 s{sT0}, s{sCT}, 12")
        m(f"s_add_u32 s{sT0}, s{sT0}, {32*896*OPT['pb0']}")
        m(f"s_cmp_lt_u32 s{sLOC}, 28")
        m(f"s_cselect_b32 s{sT0}, 0, s{sT0}")
        m(f"s_cselect_b32 s{sT1}, 0, {2048*OPT['pa0'] if OPT['ipf'] else OOB}")
        m(f"s_cselect_b32 s{sBT}, {32*896}, 0x4000" if False else f"s_cselect_b32 s{sBT}, 7, 4")
        m(f"s_cselect_b64 {s(sM3,2)}, -1, 0")
        m(f"s_lshl_b32 s{sBT}, s{sBT}, 12")
        m(f"s_add_u32 s{sBOFF}, s{sBOFF}, s{sT0}")
        m(f"s_add_u32 s{sAOFF}, s{sAOFF}, s{sT1}")
        m(f"s_lshl_b32 s{sF2O}, s{sRB0}, 11")
        m(f"s_add_u32 s{sF2O}, s{sF2O}, {F2}")
        m(f"v_lshrrev_b32 v24, 3, v{vL}")
        m(f"v_lshlrev_b32 v28, 2, v28")
        m(f"v_and_b32 v29, 7, v{vL}")
        m(f"v_xor_b32 v28, v28, v29")
        m(f"v_lshlrev_b32 v28, 4, v28")
        m(f"v_mul_u32_u24 v29, 3584, v24")
        m(f"s_mul_i32 s{sT0}, s{sW}, {16*3584}")
        m(f"v_add3_u32 v{vW1A0}, v29, v28, s{sT0}")
        m(f"v_add_u32 v{vW1A1}, {8*3584-1024}, v{vW1A0}")
        m(f"v_mul_u32_u24 v29, 896, v24")
        m(f"s_lshl_b32 s{sT0}, s{sCT}, 7")
        m(f"v_add3_u32 v{vBD}, v29, v28, s{sT0}")
        for k in range(1, 4):
            m(f"v_add_u32 v{vBD+k}, {k*(7168-1024)}, v{vBD}")
        for k in range(4):
            m(f"v_cndmask_b32 v{vBD+k}, v{vLIN}, v{vBD+k}, {s(sM3,2)}")
        m(f"s_lshl_b32 s{sMB}, s{sW}, 11")
        m(f"s_sub_u32 s{sMA}, s{sMB}, {64*128 - R_A}")
        m(f"s_add_u32 s{sMB}, s{sMB}, {R_B}")
        m(f"s_mul_i32 s{sT0}, s{sC}, 3")
        m(f"s_sub_u32 s{sNQ}, 16, s{sT0}")
        m(f"s_lshl_b32 s{sT0}, s{sT0}, 6")
        m(f"s_add_u32 s{sT0}, s{sT0}, s{sRB}")
        m(f"s_lshl_b32 s{sQS}, s{sT0}, 11")
        m(f"s_mul_i32 s{sT1}, s{sRB}, 28")
        m(f"s_add_u32 s{sT0}, s{sT1}, s{sUB}")
        m(f"s_lshl_b32 s{sT0}, s{sT0}, 12")
        m(f"s_add_u32 s{sHB}, s{sT0}, {H_BASE}")
        m(f"s_sub_u32 s{sHA}, s{sHB}, 4096")
        m(f"s_lshl_b32 s{sUA}, s{sUA}, 7")
        m(f"s_lshl_b32 s{sUB}, s{sUB}, 7")
        m(f"s_cmp_eq_u32 s{sLIGHT}, 1")
        m(f"s_cselect_b32 s{sHA}, {OOB}, s{sHA}")
        m(f"s_cselect_b32 s{sUA}, {OOB}, s{sUA}")
        m(f"s_cselect_b32 s{sMA}, {DUMMY}, s{sMA}")
        m(f"s_cselect_b32 s{sMAS}, 0, {64*128}")
        m(f"s_lshl_b32 s{sT0}, s{sRB}, 4")
        m(f"s_add_u32 s{sT0}, s{sT0}, s{sC}")
        m(f"s_lshl_b32 s{sT0}, s{sT0}, 7")
        m(f"s_add_u32 s{sF1}, s{sT0}, {F1}")
        m(f"s_lshl_b32 s{sT0}, s{sRB}, 7")
        m(f"s_add_u32 s{sGS}, s{sT0}, {G_BASE}")
        m(f"s_cmp_eq_u32 s{sC}, 3")
        m(f"s_cselect_b32 s{sGS}, s{sGS}, {OOB}")
        m(f"s_lshr_b32 s{sT0}, s{sLOC}, 1")
        m(f"s_lshl_b32 s{sT0}, s{sT0}, 2")
        m(f"s_add_u32 s{sQB}, s{sT0}, s{sW}")
        m(f"s_sub_u32 s{sFIRST}, 8, s{sQB}")
        m(f"s_max_i32 s{sFIRST}, s{sFIRST}, 0")
        m(f"s_mul_i32 s{sT1}, s{sW}, 3")
        m(f"s_add_u32 s{sT0}, s{sT0}, s{sT1}")
        m(f"s_sub_u32 s{sKV0}, s{sT0}, 8")
        m(f"s_mul_i32 s{sT2}, s{sJ}, 43")
        m(f"s_lshr_b32 s{sT2}, s{sT2}, 7")
        m(f"s_lshl_b32 s{sT1}, s{sQB}, 4")
        m(f"s_add_u32 s{sT2}, s{sT1}, s{sT2}")
        m(f"v_mov_b32 v{vF1A}, s{sT2}")
        for part, add in ((0, 16), (1, 32)):
            m(f"s_add_u32 s{sT2}, s{sJ}, {add}")
            m(f"s_mul_i32 s{sT2}, s{sT2}, 43")
            m(f"s_lshr_b32 s{sT2}, s{sT2}, 7")
            m(f"v_subrev_u32 v40, {3*part}, v{vL}")
            m(f"v_add_u32 v41, s{sKV0}, v40")
            m(f"v_cmp_gt_u32 {s(sM,2)}, 3, v40")
            m(f"v_cmp_le_i32 vcc, 0, v41")
            m(f"v_lshl_add_u32 v41, v41, 4, s{sT2}")
            m(f"s_and_b64 {s(sM,2)}, {s(sM,2)}, vcc")
            m(f"v_cndmask_b32 v{vF1A}, v{vF1A}, v41, {s(sM,2)}")
        m(f"v_lshlrev_b32 v{vF1A}, 7, v{vF1A}")
        m(f"v_add_u32 v{vF1A}, {F1}, v{vF1A}")
        m(f"v_bfe_u32 v40, v{vL}, 2, 1")
        m(f"v_and_b32 v41, 3, v{vL}")
        m(f"s_lshl_b32 s{sT0}, s{sW}, 2")
        m(f"v_add_u32 v41, s{sT0}, v41")
        m(f"v_cmp_gt_u32 vcc, 8, v{vL}")
        m(f"v_lshl_add_u32 v41, v40, 4, v41")
        m(f"v_and_b32 v40, 1, v{vL}")
        m(f"v_lshl_add_u32 v40, v40, 4, 3")
        m(f"v_cndmask_b32 v{vF23A}, v40, v41, vcc")
        m(f"s_sub_u32 s{sT0}, s{sQB}, s{sRB0}")
        m(f"s_lshl_b32 s{sT0}, s{sT0}, 4")
        m(f"s_add_u32 s{sT0}, s{sT0}, 3")
        m(f"v_cmp_gt_u32 vcc, 10, v{vL}")
        m(f"v_mov_b32 v40, s{sT0}")
        m(f"s_nop 0")
        m(f"v_cndmask_b32 v{vF23A}, v40, v{vF23A}, vcc")
        m(f"v_lshlrev_b32 v{vF23A}, 7, v{vF23A}")
        m(f"v_add_u32 v{vF23A}, s{sF2O}, v{vF23A}")
        m(f"s_mov_b32 s{sF2O}, 0")
        m(f"s_mul_i32 s{sT0}, s{sRB0}, {32*896}")
        m(f"s_lshl_b32 s{sT1}, s{sCT}, 7")
        m(f"s_add_u32 s{sT0}, s{sT0}, s{sT1}")
        m(f"s_add_u32 s{sOUT}, s{sOUT}, s{sT0}")

    def add_chunk(self, i):
        toks = self.ctok[i] = []
        lx = lw = OPT["lat0"] if i < 1 else None
        xs, ws = [], []
        for k in range(4):
            xs.append(Item(f"buffer_load_dwordx4 v{vXD+k}, {s(S_X,4)}, s{sCA} offen" + (f" offset:{1024*k}" if k else "") + NT(1) + " lds", toks,
                           pre=[f"s_lshl_b32 s{sCA}, s{sG+i}, 7"] if k == 0 else (), m0=(sMX, (i % 3) * 4096), lat=lx,
                           after=(lambda: self.xrd[i - 3] if len(self.xrd.get(i - 3, ())) == 4 else None) if i >= 3 and k == 0 else None))
        for k in range(3):
            ws.append(Item(f"buffer_load_dwordx4 v{vWQ+k}, {s(S_WQ,4)}, s{sCB} offen" + (f" offset:{1024*k}" if k else "") + NT(2) + " lds", toks,
                           pre=[f"s_mul_i32 s{sCB}, s{sG+i}, {64*2688}"] if k == 0 else (), m0=(sMQ, (i % 4) * 64 * 192), lat=lw))
        self.C.extend(xs + ws if i == 0 else ws + xs)
        self.clast = getattr(self, "clast", {})
        self.clast[i] = self.C[-1]

    def add_w1(self, unit, i):
        toks = self.wtok[(unit, i)] = []
        pre = [f"s_mul_i32 s{sCB}, s{sG+i}, {64*3584}", f"s_add_u32 s{sCB}, s{sCB}, s{sUA+unit}"]
        pre0 = [f"s_add_u32 s{sMA}, s{sMA}, s{sMAS}"] if unit == 0 else []
        for k in range(2):
            self.C.append(Item(f"buffer_load_dwordx4 v{vW1A0+k}, {s(S_W1,4)}, s{sCB} offen" + (" offset:1024" if k else "") + NT(4) + " lds", toks,
                               pre=pre if k == 0 else (), pre0=pre0 if k == 0 else (), m0=(sMB, i * 8192) if unit else (sMA, 0, i),
                               lat=OPT["miss"] if i < 4 else None))
            self.C[-1].opt = unit == 0
        self.wlast = getattr(self, "wlast", {})
        self.wlast[(unit, i)] = self.C[-1]

    def gate_write(self):
        pe = self.pe
        pe(f"s_cmp_eq_u32 s{sLIGHT}, 1")
        pe(f"s_cselect_b64 {s(sM,2)}, -1, 0")
        pe(f"v_bfe_u32 v247, v244, 1, 1")
        pe(f"v_lshlrev_b32 v248, 7, v244")
        pe(f"v_lshl_add_u32 v248, v247, 6, v248")
        pe(f"v_mov_b32 v249, {DUMMY+2048}")
        pe(f"v_cndmask_b32 v247, v249, v248, {s(sM,2)}")
        pe(f"v_cmp_gt_u32 vcc, 192, v244")
        pe(f"v_add_u32 v248, {256*128}, v248")
        pe(f"s_and_b64 {s(sM,2)}, {s(sM,2)}, vcc")
        pe(f"ds_write_b16 v247, v245")
        pe(f"v_cndmask_b32 v248, v249, v248, {s(sM,2)}")
        pe(f"ds_write_b16 v248, v246")

    def store_addr(self):
        pe = self.pe
        for n, lim in ((0, 11), (1, 10)):
            pe(f"s_cmp_ge_u32 s{sC}, {lim}")
            pe(f"s_cselect_b64 {s(sM,2)}, -1, 0")
            pe(f"s_cselect_b32 s{sT0}, 128, 0")
            pe(f"v_cndmask_b32 v{24+2*n}, v{vLIN}, v{vPV}, {s(sM,2)}")
            pe(f"v_xor_b32 v{25+2*n}, s{sT0}, v{24+2*n}")

    def bias_init(self, acc, tbl, factor=None):
        for t in range(2):
            for mm in range(2):
                o = (tbl % 2048) // 8 + 8 * t + 4 * mm
                self.pe(f"ds_read2_b64 {v(acc+16*t+8+4*mm,4)}, v{vTBL} offset0:{o} offset1:{o+2}")
        for t in range(2):
            for k in range(8):
                src, dst = acc + 16 * t + 8 + k, acc + 16 * t + 2 * k
                self.pe(f"v_lshlrev_b32 v{dst}, 16, v{src}")
                self.pe(f"v_and_b32 v{dst+1}, 0xffff0000, v{src}")
        if factor:
            for k in range(16):
                self.pe(f"v_pk_mul_f32 {v(acc+2*k,2)}, {v(acc+2*k,2)}, {factor}")

    def rd_q(self, sidx, t):
        base = vWR + 12 * (sidx & 1) + 4 * t
        o = 56 * t + (sidx % 16) * 3072
        return [self.e(f"ds_read_b64_tr_b16 {v(base+2*h,2)}, v{vTRQ} offset:{o+768*h}") for h in range(2)]

    def rd_f(self, g, t):
        base = vWR + 8 * (g % 3) + 4 * t
        toks = self.ftok.setdefault(g, [])
        for h in range(2):
            toks.append(self.e(f"ds_read_b64_tr_b16 {v(base+2*h,2)}, v{vTRF0+t} offset:{(g%28)*2048+512*h}"))

    def rd_x(self, sidx):
        self.xrd.setdefault(sidx // 4, []).append(self.e(f"ds_read_b128 {v(vX+4*sidx,4)}, v{vXR+sidx%4} offset:{(sidx//4%3)*4096}"))

    def sync(self, st, last, toks, drain_lds=True):
        self.force(st, last)
        self.await_(toks)
        if drain_lds and self.a.lg:
            self.e("s_waitcnt lgkmcnt(0)")
        self.e("s_barrier")

    def await_(self, toks):
        while self.a.est(toks) > self.a.clk + 8 and self.side_wait(self.a.est(toks)):
            pass
        self.a.need(*toks)

    def force_p(self):
        while self.P:
            it = self.P[0]
            keep, self.P = self.P, deque()
            if it.after:
                self.await_(it.after())
            self.P = keep
            self.emit_item(self.P)

    def side_wait(self, until):
        a = self.a
        best = None
        for st in self.vm_streams() + (self.D,):
            if not st:
                continue
            it = st[0]
            t = a.allv[-1][0] if it.vm else a.clk
            if it.after:
                toks = it.after()
                if toks is None:
                    continue
                t = max(t, a.est(toks))
            t = max(t, a.clk)
            if t + 8 <= until and (best is None or t < best[0]):
                best = (t, st)
        if best:
            self.emit_item(best[1])
        return bool(best)

    def force_read(self, p):
        while not self.blast[p].done:
            it = self.D[0]
            if it.after:
                while it.after() is None:
                    if self.B[0].after:
                        self.a.need(*self.B[0].after())
                    self.emit_item(self.B)
                keep, self.D = self.D, deque()
                self.await_(it.after())
                self.D = keep
            self.emit_item(self.D)

    def seg_start(self):
        if OPT["lvar"]:
            self.e(f"s_cmp_eq_u32 s{sMAS}, 0")
            self.e("s_cbranch_scc1 L_light")
            self.seg = (len(self.a.ins), len(self.a.vm), len(self.a.lg), len(self.tail))

    def seg_end(self):
        if not OPT["lvar"]:
            return
        import re
        i0, nvm, nlg, t0 = self.seg
        assert not self.a.lg
        q = {"vmcnt": list(range(-nvm, 0)), "lgkmcnt": list(range(-nlg, 0))}
        q2 = {k: list(x) for k, x in q.items()}
        b = Asm()
        b.ins = [Ins(i.text) for i in self.a.ins[i0 - 24:i0] if i.kind not in ("label", "dir")]
        npre = len(b.ins)
        b.ins.append(Ins("L_light:"))
        ren = lambda x: re.sub(r"(L_pfb?\d+)", r"\1l", x)
        for n, i in enumerate(self.a.ins[i0:]):
            drop = i.note == "opt" or (i.kind == "mfma" and f"v{vACC+64}" in i.w) or (i.kind == "dsread" and f"v{vTRF1}" in i.r)
            if i.kind == "wait":
                parts = []
                for k, c in re.findall(r"(vmcnt|lgkmcnt)\((\d+)\)", i.text):
                    c = int(c)
                    q[k] = q[k][max(0, len(q[k]) - c):] if c else []
                    left = [x for x in q2[k] if x in q[k]]
                    if len(left) < len(q2[k]) or c == 0:
                        parts.append(f"{k}({len(left)})")
                    q2[k] = left
                if parts:
                    b.ins.append(Ins("s_waitcnt " + " ".join(parts)))
                continue
            k = "vmcnt" if i.kind in ("vload", "vstore", "dma") else "lgkmcnt" if i.kind in ("dsread", "dswrite") else None
            if k:
                q[k].append(n)
                if not drop:
                    q2[k].append(n)
            if not drop and i.kind != "dir":
                b.ins.append(Ins(ren(i.text)))
        assert q["vmcnt"] == q2["vmcnt"]
        b.ins.append(Ins("s_branch L_heavy"))
        b.finalize()
        k = [n for n, i in enumerate(b.ins) if i.text == "L_light:"][0]
        self.tail += [ren(x) for x in self.tail[t0:]] + [i.text for i in b.ins[k:]]
        self.a.label("L_heavy")

    def prefetch_slot(self, sidx):
        if not OPT["wpf"]:
            return
        for reg, lo, hi, loads in ((sSLA, OPT["pfa0"], OPT["pfa1"], ((S_W1, 12, sPF1),)), (sSLB, OPT["pfb0"], OPT["pfb1"], ((S_W2, 12, sPF1), (S_WO, 3, sPF2)))):
            if lo <= sidx < hi:
                self.nlab += 1
                n = self.nlab
                self.e(f"s_cmp_eq_u32 s{reg}, {sidx - lo}")
                self.e(f"s_cbranch_scc1 L_pf{n}")
                self.a.label(f"L_pfb{n}")
                self.tail += [f"L_pf{n}:"]
                for srd, top, off in loads:
                    self.tail += [f"v_min_u32 v30, {top}, v{vL}", "v_lshlrev_b32 v30, 7, v30", f"buffer_load_dword a255, v30, {s(srd,4)}, s{off} offen"]
                self.tail += [f"s_branch L_pfb{n}"]

    def qkv(self):
        e = self.e
        qtok = {}
        self.sync(self.C, self.clast[1], self.ctok[0])
        self.stamp("chunk 0")
        self.add_chunk(2)
        self.rd_x(0)
        for n in range(4):
            qtok[n] = self.rd_q(*divmod(n, 3))
        self.rd_x(1)
        xq = deque([2, 3])
        for sidx in range(28):
            i = sidx // 4
            if sidx % 2 == 0:
                self.stamp(group=3)
            if sidx == 8:
                self.pe(f"v_add_u32 v{vT}, {TAG_STEP}, v{vT}")
                self.gate_write()
                self.push(lambda: self.a.need(self.tB1), 0)
                self.bias_init(vACC + 48, TB1)
            if sidx % 2 == 0:
                self.prefetch_slot(sidx // 2)
            self.a.need(*qtok[3 * sidx], *qtok[3 * sidx + 1], *qtok[3 * sidx + 2])
            for t in range(3):
                acc = v(vACC + 16 * t, 16)
                e(f"{MFMA} {acc}, {v(vWR+12*(sidx&1)+4*t,4)}, {v(vX+4*sidx,4)}, {acc if sidx else 0}")
                if t == 2 and sidx % 4 == 2:
                    if sidx < 26:
                        self.sync(self.C, self.clast[i + 2] if i < 5 else self.wlast[(0, 2)], self.ctok[i + 1], drain_lds=False)
                        if i + 3 < 7:
                            self.add_chunk(i + 3)
                        if i + 3 == 6:
                            for k in range(7):
                                self.add_w1(0, k)
                            self.seg_start()
                        xq.extend(range(4 * i + 4, 4 * i + 8))
                    else:
                        self.drain()
                        self.sync(self.C, self.wlast[(0, 2)], self.wtok[(0, 2)])
                n = 3 * sidx + t + 4
                if n < 84:
                    qtok[n] = self.rd_q(*divmod(n, 3))
                else:
                    self.rd_f((n - 84) >> 1, (n - 84) & 1)
                x = bool(xq)
                if x:
                    self.rd_x(xq.popleft())
                self.gap(8 if x else 12)

    QPK = (vTMP + 8, vACC + 40, vACC + 32)

    def qkv_pack(self, t):
        pe = self.pe
        acc, dst = vACC + 16 * t, self.QPK[t]
        pe(f"s_cmp_gt_i32 s{sNQ}, {t-16}")
        pe(f"s_cselect_b32 s{sT0}, 0x3f803f80, s{sT3}")
        pe(f"s_cselect_b32 s{sT2}, s{sT3}, 0")
        pe(f"s_cmp_gt_i32 s{sNQ}, {t}")
        pe(f"s_cselect_b32 s{sT1}, {QSCALE}, 1.0")
        pe(f"s_cselect_b32 s{sT0}, 0, s{sT0}")
        pe(f"s_cselect_b32 s{sT2}, 0, s{sT2}")
        pe(f"v_mov_b32 v28, s{sT0}")
        pe(f"v_mov_b32 v29, s{sT2}")
        for k in range(16):
            pe(f"v_mul_f32 v{acc+k}, s{sT1}, v{acc+k}")
        def store(half):
            pre = [f"s_add_u32 s{sCA}, s{sQS}, {t*64*2048}"] if half == 0 else ()
            self.C.append(Item(f"buffer_store_dwordx4 {v(dst+4*half,4)}, v{24+2*(t>>1)+half}, {s(S_WS,4)}, s{sCA} offen offset:{1024*half} sc1",
                               self.tQKV, pre=pre))
            self.lastS = self.C[-1]
        for k in range(8):
            pe(f"v_cvt_pk_bf16_f32 v{dst+k}, v{acc+2*k}, v{acc+2*k+1}")
            if k == 3:
                self.push(lambda: store(0), 0)
        pe(f"v_cndmask_b32 v{dst+6}, v{dst+6}, v28, {s(sHI,2)}")
        pe(f"v_cndmask_b32 v{dst+7}, v{dst+7}, v29, {s(sHI,2)}")
        self.push(lambda: store(1), 0)

    def b_slot(self, p):
        return (RING - RED) + (p % 6) * 4096 if p % 6 < 3 else (p % 6 - 3) * 4096

    def b_dma(self, p):
        toks = self.btok[p] = []
        out = []
        off = sBOFF if p < 14 else sBEND
        pre = [] if p in (0, 14) else [f"s_add_u32 s{off}, s{off}, " + (f"s{sBT}" if p < 14 else f"{28*896}")]
        post = []
        for k in range(4):
            out.append(Item(f"buffer_load_dwordx4 v{vBD+k}, {s(S_W2 if p < 14 else S_WO,4)}, s{off} offen" + (f" offset:{1024*k}" if k else "") + NT(8) + " lds",
                            toks, pre=pre if k == 0 else (), post=post if k == 3 else (), m0=(sRING, self.b_slot(p)),
                            lat=OPT["miss"] if p < 4 or p >= 14 else None,
                            after=(lambda: self.btr[p - 6] if len(self.btr.get(p - 6, ())) == 8 else None) if k == 0 and p >= 6 else None))
            out[-1].due = min(p, 14 + (p - 14) // 2) - 5
        return out

    def b_read(self, p):
        toks = self.btr[p] = []
        out = []
        for ks in range(2):
            for t in range(2):
                out.append(Item([f"ds_read_b64_tr_b16 {a_(16*(p%16)+8*ks+4*t+2*h,2)}, v{vBT0+t} offset:{self.b_slot(p)+ks*2048+h*1024}" for h in range(2)],
                                toks, after=(lambda: self.btok[p] if len(self.btok[p]) == 4 else None) if ks + t == 0 else None))
        self.blast[p] = out[-1]
        return out

    def gelu_two(self, acc, soff, n, packed):
        pe = self.pe
        T = vTMP + 12
        U = [acc + 2 * n, acc + 2 * n + 2]
        R = [T, T + 2]
        if packed:
            for u, r in zip(U, R):
                pe(f"v_pk_mul_f32 {v(r,2)}, {v(u,2)}, {v(u,2)}")
                pe(f"v_pk_fma_f32 {v(r,2)}, {v(r,2)}, {s(sK2,2)}, {v(vK1,2)} op_sel_hi:[1,1,0]")
                pe(f"v_pk_mul_f32 {v(r,2)}, {v(r,2)}, {v(u,2)}")
            for k in range(4):
                pe(f"v_exp_f32 v{T+k}, v{T+k}")
            for r in R:
                pe(f"v_pk_add_f32 {v(r,2)}, {v(r,2)}, 1.0 op_sel_hi:[1,0]")
            for k in range(4):
                pe(f"v_rcp_f32 v{T+k}, v{T+k}")
            for u, r in zip(U, R):
                pe(f"v_pk_mul_f32 {v(r,2)}, {v(r,2)}, {v(u,2)}")
        else:
            u = U[0]
            for k in range(4):
                pe(f"v_mul_f32 v{T+k}, v{u+k}, v{u+k}")
                pe(f"v_fma_f32 v{T+k}, v{T+k}, s{sK2}, v{vK1}")
                pe(f"v_mul_f32 v{T+k}, v{T+k}, v{u+k}")
            for k in range(4):
                pe(f"v_exp_f32 v{T+k}, v{T+k}")
            for k in range(4):
                pe(f"v_add_f32 v{T+k}, 1.0, v{T+k}")
            for k in range(4):
                pe(f"v_rcp_f32 v{T+k}, v{T+k}")
            for k in range(4):
                pe(f"v_mul_f32 v{T+k}, v{T+k}, v{u+k}")
        for d in range(2):
            pe(f"v_cvt_pk_bf16_f32 v{acc+n+d}, v{T+2*d}, v{T+2*d+1}")
        if n % 4 == 2:
            fr = n // 4
            self.push(lambda: self.C.append(Item(
                f"buffer_store_dwordx4 {v(acc+4*fr,4)}, v{vLIN}, {s(S_WS,4)}, s{soff} offen offset:{fr*1024} sc1", self.tH)), 0)

    def ffn(self, unit):
        e = self.e
        acc0 = vACC + 48 if unit == 0 else vACC
        for sidx in range(28):
            g = 28 * unit + sidx
            if sidx % 4 == 0:
                self.stamp(group=2)
            self.hook(f"ffn{unit}_{sidx}")
            self.a.need(*self.ftok[g])
            for t in range(2):
                acc = v(acc0 + 16 * t, 16)
                e(f"{MFMA} {acc}, {v(vWR+8*(g%3)+4*t,4)}, {v(vX+4*sidx,4)}, {acc}")
                if t == 0 and g in (10, 34, 42):
                    k = {10: (0, 6), 34: (1, 3), 42: (1, 6)}[g]
                    self.sync(self.C, self.wlast[k], self.wtok[k], drain_lds=False)
                if t == 0 and g == 26:
                    if True:
                        self.drain("biasb")
                        self.sync(self.C, self.wlast[(1, 1)], self.wtok[(1, 1)])
                        self.seg_end()
                        e(f"v_add_u32 v{vTRF0}, {R_B-R_A}, v{vTRF0}")
                        e(f"v_add_u32 v{vTRF1}, {R_B-R_A}, v{vTRF1}")
                        self.add_w1(1, 6)
                        self.B.extend(self.b_dma(3) + self.b_dma(4) + self.b_dma(5))
                        for p in range(6, OPT["bpre"]):
                            self.B.extend(self.b_dma(p))
                        for p in range(OPT["bpre"] - 6):
                            self.D.extend(self.b_read(p))
                if g + 2 < 56:
                    self.rd_f(g + 2, t)
                self.gap(12)

    def phase1(self):
        e, pe, m = self.e, self.pe, self.m
        self.btok, self.btr, self.blast = {}, {}, {}
        self.tQKV, self.tH, tG = [], [], []
        self.qkv()
        self.stamp("qkv done")
        e(f"s_cmp_lt_u32 s{sLOC}, 28")
        if not OPT["ipf"]:
            e(f"s_cselect_b32 s{S_W2+2}, {1792*896}, 0")
        e(f"s_cselect_b32 s{S_WO+2}, {448*896}, 0")
        if OPT["null"] & 1:
            e(f"s_mov_b32 s{S_W2+2}, 0")
            e(f"s_mov_b32 s{S_WO+2}, 0")
        if OPT["null"] & 2:
            e(f"s_mov_b32 s{sAOFF}, {OOB}")
            e(f"s_mov_b32 s{sAEND}, {OOB}")
        if OPT["null"] & 4:
            e(f"s_mov_b32 s{sHA}, {OOB}")
            e(f"s_mov_b32 s{sHB}, {OOB}")
            e(f"s_mov_b32 s{sQS}, {OOB}")
            e(f"s_mov_b32 s{sOS}, {OOB}")
        if OPT["null"] & 8:
            e(f"s_mov_b32 s{sKOFF}, {OOB}")
            e(f"s_mov_b32 s{sQOFF}, {OOB}")
        if OPT["null"] & 16:
            e(f"s_mov_b32 s{S_W1+2}, 0")
        pub1 = self.publish(sF1, self.tQKV, 6)
        nw = OPT["wbfirst"]
        for k in range(nw):
            self.add_w1(1, k)
        pe(f"s_movk_i32 s{sT3}, 0x3f80")
        self.qkv_pack(2)
        if nw < 2:
            self.push(lambda: self.add_w1(1, 1), 0)
        self.qkv_pack(1)
        self.qkv_pack(0)
        self.push(lambda: [self.add_w1(1, k) for k in range(max(nw, 2), 6)], 0)
        self.bias_init(vACC, TB1 + 128)
        self.mark("biasb")
        b012 = self.b_dma(0) + self.b_dma(1) + self.b_dma(2)
        self.hooks[f"ffn0_{OPT['bstart']}"] = lambda: self.B.extend(b012)
        self.ffn(0)
        self.force(self.C, self.lastS)
        self.stamp("ffn a done")
        accA = vACC + 48
        pe(f"v_mul_f32 v{vGATE}, {fbits(-math.log2(math.e))}, v{accA}")
        pe(f"v_exp_f32 v{vGATE}, v{vGATE}")
        pe(f"v_and_b32 v{vGA}, 31, v{vL}")
        pe(f"v_add_f32 v{vGATE}, 1.0, v{vGATE}")
        pe(f"v_lshlrev_b32 v{vGA}, 2, v{vGA}")
        pe(f"v_rcp_f32 v{vGATE}, v{vGATE}")
        pe(f"v_mov_b32 v{vTMP}, {OOB}")
        pe(f"v_cndmask_b32 v{vTMP}, v{vGA}, v{vTMP}, {s(sHI,2)}")
        self.push(lambda: self.C.append(Item(f"buffer_store_dword v{vGATE}, v{vTMP}, {s(S_WS,4)}, s{sGS} offen sc1", self.tH)), 0)
        ga = deque(range(0, 16, 2))
        while ga and ga[0] < OPT["npairs"]:
            self.gelu_two(accA, sHA, ga.popleft(), False)
        self.hooks[f"ffn1_{OPT['pub1']}"] = lambda: self.force(self.P, pub1)
        self.hooks[f"ffn1_{OPT['poll1']}"] = lambda: self.poll_item(vF1A, 0)
        self.ffn(1)
        self.hook("ffn1_28")
        e("s_barrier")
        self.stamp("ffn b done")
        m(f"v_lshlrev_b32 v{vTMP+1}, 2, v{vL}")
        self.tB2 = []
        self.C.append(Item(f"buffer_load_dword v{vTMP+1}, {s(S_B2,4)}, s{sCB} offen lds", self.tB2,
                           pre=[f"s_lshl_b32 s{sCB}, s{sCT}, 7"], m0=(None, TB2), lat=OPT["miss"]))
        self.b2item = self.C[-1]
        self.drain()
        k = 0
        for acc, soff, todo in ((accA, sHA, ga), (vACC, sHB, range(0, 16, 2))):
            for n in todo:
                if k == OPT["chk1"]:
                    self.drain(every=OPT["gev"])
                    self.poll_check(vF1A, 0)
                    self.att_loads()
                self.gelu_two(acc, soff, n, True)
                k += 1
        self.drain(every=OPT["gev"])
        self.stamp("gelu done")

    def att_loads(self):
        self.tKV = []
        items = []
        for bb in range(3):
            for part in range(2):
                pre = ([f"s_add_u32 s{sCA}, s{sKOFF}, {16*64*2048+2048*bb}", f"s_cmp_lt_i32 s{sKV0}, {-bb}", f"s_cselect_b32 s{sCA}, {OOB}, s{sCA}"]
                       if part == 0 else [f"s_add_u32 s{sCA}, s{sCA}, {16*64*2048}"])
                for k in range(2):
                    items.append(Item(f"buffer_load_dwordx4 v{vLIN}, {s(S_WS,4)}, s{sCA} offen" + (" offset:1024" if k else "") + " sc1 lds",
                                      self.tKV, pre=pre if k == 0 else (), m0=(sMKV, KV + 24576 * part + 2048 * bb), lat=OPT["miss"]))
        for k in range(2):
            items.append(Item(f"buffer_load_dwordx4 {v(vQ+4*k,4)}, v{vLIN}, {s(S_WS,4)}, s{sQOFF} offen offset:{1024*k} sc1", self.tKV, lat=OPT["miss"]))
        self.C.extendleft(reversed(items))
        self.kvlast = items[-1]

    def rd_k(self, n, em=None):
        for k in range(2):
            (em or self.m)(f"ds_read_b128 {v(vKR+8*(n%3)+4*k,4)}, v{vKA} offset:{(n%9)*2048+k*1024}")

    def rd_v(self, i, st):
        for h in range(2):
            self.e(f"ds_read_b64_tr_b16 {v(vVR+4*st+2*h,2)}, v{vVA} offset:{i*2048+256*(2*st+h)}")

    def qk(self, i, k):
        S = v(vS + 16 * (i & 1), 16)
        C = S if k else v(vM0 if i == 0 else vM8 if i == 8 else vCD, 16)
        self.e(f"{MFMA} {S}, {v(vKR+8*(i%3)+4*k,4)}, {v(vQ+4*k,4)}, {C}")

    def patch(self, i, src):
        if not 2 <= i <= 7 and src == "0":
            return
        self.nlab += 1
        n = self.nlab
        self.e(f"s_cmp_eq_u32 s{sFIRST}, {i}" if src == "0" else f"s_cmp_gt_u32 s{sFIRST}, 1")
        self.e(f"s_cbranch_scc1 L_pat{n}")
        self.a.label(f"L_patb{n}")
        self.tail += [f"L_pat{n}:", "s_nop 7"] + [f"v_mov_b32 v{vCD+k}, {src}" for k in range(16)] + ["s_nop 1", f"s_branch L_patb{n}"]

    def attention(self):
        e, pe, m = self.e, self.pe, self.m
        m(f"v_and_b32 v26, 31, v{vL}")
        m(f"v_lshrrev_b32 v27, 5, v{vL}")
        m(f"v_lshlrev_b32 v28, 2, v27")
        m(f"v_sub_u32 v26, v26, v28")
        m(f"s_cmp_gt_u32 s{sFIRST}, 0")
        m(f"s_cselect_b32 s{sT0}, {NINF}, 0")
        m(f"v_mov_b32 v28, s{sT0}")
        m(f"v_mov_b32 v29, {NINF}")
        m(f"s_cmp_gt_u32 s{sFIRST}, 1")
        m(f"s_cselect_b32 s{sT0}, {NINF}, 0")
        prs = (sM, sM3)
        for j0 in range(0, 16, 2):
            for d in range(2):
                jj = j0 + d
                m(f"v_cmp_le_i32 {s(prs[d],2)}, {(jj&3)+8*(jj>>2)}, v26")
            for d in range(2):
                m(f"v_mov_b32 v{vCD+j0+d}, s{sT0}")
            for d in range(2):
                jj = j0 + d
                m(f"v_cndmask_b32 v{vM8+jj}, v29, 0, {s(prs[d],2)}")
                m(f"v_cndmask_b32 v{vM0+jj}, v28, v29, {s(prs[d],2)}")
        m(f"s_lshl_b32 s{sT1}, s{sW}, 11")
        m(f"s_add_u32 s{sT1}, s{sT1}, {KV}")
        m(f"v_add_u32 v{vKA}, s{sT1}, v{vLIN}")
        m(f"v_mov_b32 v{vMX}, {NINF}")
        m(f"v_mov_b32 v{vMX+1}, {NINF}")
        m(f"v_add_u32 v{vA1H}, {112*1024}, v{vLIN}")
        self.sync(self.C, self.kvlast, self.tKV, drain_lds=False)
        self.stamp("kv in")
        pub2 = self.publish(sT3, self.tH, 9, pre=[f"s_add_u32 s{sT3}, s{sF1}, {F2-F1}"])
        self.rd_k(0)
        self.rd_k(1)
        for i in range(10):
            if i % 2 == 0:
                self.stamp(group=4)
            if i < 9:
                self.patch(i, "0")
                self.qk(i, 0)
                self.rd_k(i + 2, e)
                self.qk(i, 1)
                self.cluster()
            if i > 0:
                S = vS + 16 * ((i - 1) & 1)
                for k in range(8):
                    e(f"v_max3_f32 v{vMX+(k&1)}, v{S+2*k}, v{S+2*k+1}, v{vMX+(k&1)}")
        m(f"v_max_f32 v{vMX}, v{vMX}, v{vMX+1}")
        m(f"v_mov_b32 v{vMX+1}, v{vMX}")
        m(f"v_permlane32_swap_b32 v{vMX}, v{vMX+1}")
        m(f"v_max_f32 v{vMX}, v{vMX}, v{vMX+1}")
        m(f"v_cvt_pk_bf16_f32 v26, -v{vMX}, -v{vMX}")
        m(f"v_lshlrev_b32 v26, 16, v26")
        m(f"v_sub_f32 v26, -v{vMX}, v26")
        m(f"v_cvt_pk_bf16_f32 v27, -v{vMX}, v26")
        m(f"v_and_b32 v28, 0xffff0000, v27")
        m(f"v_sub_f32 v26, v26, v28")
        m(f"v_cndmask_b32 v{vQ+6}, v{vQ+6}, v27, {s(sHI,2)}")
        m(f"v_cvt_pk_bf16_f32 v26, v26, 0")
        self.patch(1, "v29")
        m(f"v_cndmask_b32 v{vQ+7}, v{vQ+7}, v26, {s(sHI,2)}")
        self.qk(0, 0)
        self.rd_k(2)
        self.qk(0, 1)
        self.stamp("pass 1 done")
        O = v(vO, 16)
        for i in range(9):
            S = vS + 16 * (i & 1)
            ex = lambda k: e(f"v_exp_f32 v{S+k}, v{S+k}")
            cv = lambda k: e(f"v_cvt_pk_bf16_f32 v{vP+k}, v{S+2*k}, v{S+2*k+1}")
            self.stamp(group=4)
            if i == OPT["chk0"]:
                self.force(self.C)
                self.force_p()
            if i == OPT["poll2"]:
                self.poll_item(vF23A, f"s{sF2O}")
            if i == OPT["chk2"]:
                self.de_start()
            if i < 8:
                self.patch(i + 1, "0")
                self.qk(i + 1, 0)
            self.rd_v(i, 0)
            self.rd_v(i, 1)
            self.cluster(1)
            for k in range(4):
                ex(k)
            if i < 8:
                self.qk(i + 1, 1)
            self.cluster()
            for k in range(4, 9):
                ex(k)
            for k in range(4):
                cv(k)
            ex(9)
            ex(10)
            e(f"{MFMA} {O}, {v(vVR,4)}, {v(vP,4)}, {O if i else 0}")
            if i < 6:
                self.rd_k(i + 3, e)
            self.cluster(1)
            for k in range(11, 16):
                ex(k)
            for k in range(4, 8):
                cv(k)
            self.cluster()
            e(f"{MFMA} {O}, {v(vVR+4,4)}, {v(vP+4,4)}, {O}")
        self.force(self.C, self.b2item)
        self.a.need(*self.tB2)
        m(f"v_lshrrev_b32 v26, 1, v{vGA}")
        m(f"ds_read_u16 v{vBI}, v26 offset:{TB2}")
        m(f"ds_read_u16 v{vBI+4}, v26 offset:{TB2+64}")
        m(f"s_cmp_eq_u32 s{sW}, 0")
        m(f"s_cselect_b32 s{sT0}, 0x3f80, 0")
        m(f"v_mov_b32 v26, s{sT0}")
        for k in (1, 2, 3, 5, 6, 7, 9, 10, 11):
            m(f"v_mov_b32 v{vBI+k}, 0")
        m(f"v_cndmask_b32 v{vBI+8}, v26, 0, {s(sHI,2)}")
        self.force(self.C, self.gitem)
        m(f"v_mov_b32 v{vMX}, v{vO+12}")
        m(f"v_mov_b32 v{vMX+1}, v{vO+12}")
        m(f"v_permlane32_swap_b32 v{vMX}, v{vMX+1}")
        m(f"v_rcp_f32 v{vMX}, v{vMX+1}")
        m(f"v_mul_f32 v{vMX}, v{vMX}, v{vGATE}")
        for k in range(8):
            m(f"v_pk_mul_f32 {v(vO+2*k,2)}, {v(vO+2*k,2)}, {v(vMX,2)} op_sel_hi:[1,0]")
        self.tO = []
        for k in range(8):
            m(f"v_cvt_pk_bf16_f32 v{vP+k}, v{vO+2*k}, v{vO+2*k+1}")
            if k == 3:
                self.P.append(Item(f"buffer_store_dwordx4 {v(vP,4)}, v{vLIN}, {s(S_WS,4)}, s{sOS} offen sc1", self.tO))
        m(f"v_cndmask_b32 v{vP+6}, v{vP+6}, 0, {s(sHI,2)}")
        self.P.append(Item(f"buffer_store_dwordx4 {v(vP+4,4)}, v{vLIN}, {s(S_WS,4)}, s{sOS} offen offset:1024 sc1", self.tO))
        self.drain()
        self.force(self.P)
        self.stamp("attention done")

    def ar(self, p, k):
        if p >= 14:
            return a_(32 + 16 * (p - 14) + 4 * k, 4)
        return v((64, 80, 104, 120, 24)[p % OPT["depth"]] + 4 * k, 4)

    def a_load(self, p):
        for n in range(4):
            if p < 14:
                ad, so, imm = (vLIN, vA1H)[n & 1], sAOFF, 1024 * (n >> 1)
                pre = [f"s_add_u32 s{sAOFF}, s{sAOFF}, 2048"] if p and n == 0 else ()
            else:
                ad, so, imm = vLIN, sAEND, 1024 * n
                pre = [f"s_add_u32 s{sAEND}, s{sAEND}, {(0, 4096, 32768-4096, 4096)[p-14]}"] if p > 14 and n == 0 else ()
            self.C.append(Item(f"buffer_load_dwordx4 {self.ar(p,n)}, v{ad}, {s(S_WS,4)}, s{so} offen offset:{imm} sc1",
                               self.atok.setdefault(p, []), pre=pre, lat=OPT["miss2"]))
            self.C[-1].due = p - 3 if p < 14 else p - 4
        self.alast[p] = self.C[-1]

    def de_start(self):
        e = self.e
        self.alast, self.atok = {}, {}
        self.poll_check(vF23A, f"s{sF2O}")
        for p in range(OPT["depth"]):
            self.a_load(p)
        self.C.append(Item(f"buffer_load_dword v{vGATE}, v{vGA}, {s(S_WS,4)}, s{sGQ} offen sc1", lat=OPT["miss"]))
        self.C.rotate(1)
        self.gitem = self.C[0]
        for rb in range(2):
            self.C.append(Item(f"buffer_load_dword v{vG+rb}, v{vGA}, {s(S_WS,4)}, s{sGD} offen offset:{128*rb} sc1", lat=OPT["miss"]))
            self.C[-1].due = 1

    def de(self):
        e, pe, m = self.e, self.pe, self.m
        e(f"s_cmp_ge_u32 s{sLOC}, 28")
        e("s_cbranch_scc1 L_idle")
        started = sum(1 for p in range(4) if self.atok.get(p))
        self.bfirst = True
        for p in range(OPT["bpre"], 18):
            self.B.extend(self.b_dma(p))
        for p in range(OPT["bpre"] - 6, 16):
            self.D.extend(self.b_read(p))
        self.publish(sF3P, self.tO, 2)

        def mm(p, n):
            if p < 14:
                ks, qd = (n & 1, n >> 1) if p == 13 else (n >> 2, n & 3)
                B, A = 16 * p + 8 * ks + 4 * (qd & 1), self.ar(p, 2 * ks + (qd >> 1))
            else:
                fr, t = (n >> 1, n & 1) if p in (14, 16) else (n & 3, 1 - (n >> 2))
                qd = 2 * ((p - 14) >> 1) + t
                B, A = (16 * (14 + 2 * (p & 1)) + 8 * fr + 4 * t) % 256, self.ar(p, fr)
            acc = v(vAB + 16 * qd, 16)
            e(f"{MFMA} {acc}, {a_(B,4)}, {A}, {0 if p == 0 and n < 4 else acc}")

        def scale(qd):
            for k in range(16):
                pe(f"v_mul_f32 v{vAB+16*qd+k}, v{vG+(qd>>1)}, v{vAB+16*qd+k}")

        def put(rb, i):
            h, k = (1, 3, 2)[i >> 1], i & 1
            e(f"ds_write_b128 v24, {v(vAB+32*rb+16*(h&1)+8*(h>>1)+4*k,4)} offset:{rb*(RING-RED)+h*2048+k*1024}")

        def get(rb):
            R, S = 208, vAB + 32 * rb
            for h in range(1, 4):
                for k in range(2):
                    pe(f"ds_read_b128 {v(R+8*h+4*k,4)}, v{24+h} offset:{rb*(RING-RED)+k*1024}")
            for h in range(1, 4):
                if rb:
                    for k in range(4):
                        pe(f"v_pk_add_f32 {v(S+2*k,2)}, {v(S+2*k,2)}, {v(R+8*h+2*k,2)}")
                else:
                    for k in range(8):
                        pe(f"v_add_f32 v{S+k}, v{S+k}, v{R+8*h+k}")
            for k in range(4):
                pe(f"v_cvt_pk_bf16_f32 v{32+4*rb+k}, v{S+2*k}, v{S+2*k+1}")
            if rb:
                pe(f"s_add_u32 s{sOUT}, s{sOUT}, {32*896}")
            for d in range(2):
                pe(f"v_permlane32_swap_b32 v{32+4*rb+d}, v{32+4*rb+2+d}")
            pe(f"buffer_store_dwordx4 {v(32+4*rb,4)}, v28, {s(S_OUT,4)}, s{sOUT} offen")

        for p in range(18):
            if p < 6 or p >= 9:
                self.stamp(group=5)
            self.force(self.C if p < 14 else self.B, self.alast[p])
            for pb in ([p] if p < 14 else [14 + 2 * (p & 1), 15 + 2 * (p & 1)]):
                self.force_read(pb)
            self.await_(self.atok[p][:2])
            if p in (1, 2):
                self.D.extend(self.b_read(15 + p))
            if p == 3:
                for qd in range(4):
                    acc = v(vAB + 16 * qd, 16)
                    e(f"{MFMA} {acc}, {v(vBI+4*(qd&1),4)}, {v(vBI+8,4)}, {acc}")
                    self.side()
            if p == OPT["poll3"]:
                e(f"s_add_u32 s{sF2O}, s{sF2O}, {F3-F2}")
                self.poll_item(vF23A, f"s{sF2O}")
            if p == 11:
                pe(f"v_add_u32 v24, s{sRING}, v{vLIN}")
                for h in range(1, 4):
                    pe(f"s_xor_b32 s{sT0}, s{sW}, {h}")
                    pe(f"s_mul_i32 s{sT0}, s{sT0}, 12288")
                    pe(f"s_add_u32 s{sT0}, s{sT0}, {RED+2048*h}")
                    pe(f"v_add_u32 v{24+h}, s{sT0}, v{vLIN}")
                pe(f"v_and_b32 v28, 31, v{vL}")
                pe(f"v_mul_u32_u24 v28, 896, v28")
                pe(f"v_lshrrev_b32 v29, 5, v{vL}")
                pe(f"v_lshl_add_u32 v28, v29, 4, v28")
                for rb in range(2):
                    pe(f"v_sub_f32 v{vG+rb}, 1.0, v{vG+rb}")
            if p == 14:
                self.drain()
            if p == 16:
                self.drain()
            for n in range(8):
                mm(p, n)
                if p == 13 and n in (3, 5):
                    scale((n - 3) >> 1)
                if p == 14 and n == 0:
                    scale(2)
                    scale(3)
                if p in (15, 17) and n >= 6:
                    put(p >> 4, n - 6)
                elif p == 16 and n < 4:
                    put(0, n + 2)
                if p == 16 and n == 5:
                    e("s_waitcnt lgkmcnt(0)")
                    e("s_barrier")
                    get(0)
                self.gap(32 if p == 13 else 8 if p == 16 and n < 7 else 24)
            if p + OPT["depth"] < 14:
                self.a_load(p + OPT["depth"])
            if p == OPT["chk3"]:
                self.poll_check(vF23A, f"s{sF2O}")
                keep, self.C = self.C, deque()
                for q in range(14, 18):
                    self.a_load(q)
                self.B.extend(self.C)
                self.C = keep
        self.stamp("pair 17 done")
        assert not self.q
        for i in range(2, 6):
            put(1, i)
        e("s_waitcnt lgkmcnt(0)")
        e("s_barrier")
        get(1)
        self.drain()
        self.stamp("end")
        self.write_stamps()
        e("s_endpgm")
        self.a.label("L_idle")
        self.a.vm, self.a.lg = [], []
        n = 0
        todo = range(started, 14 - OPT["pa0"]) if OPT["ipf"] else []
        for q in todo:
            e(f"s_add_u32 s{sAOFF}, s{sAOFF}, 2048")
            for k in range(4):
                self.a._push(Ins(f"buffer_load_dwordx4 {v(64+4*k,4)}, v{(vLIN, vA1H)[k & 1]}, {s(S_WS,4)}, s{sAOFF} offen offset:{1024*(k>>1)} sc1"))
                n += 1
            if n == 8:
                e(f"s_waitcnt vmcnt({n})")
                e(self.pub_text(sF3P))
        if n < 8:
            e(f"s_waitcnt vmcnt({n})")
            e(self.pub_text(sF3P))
        if OPT["ipf"]:
            e(f"s_add_u32 s{sF2O}, s{sF2O}, {F3-F2}")
            e(f"buffer_load_dword {v(vPOLL)}, {v(vF23A)}, {s(S_WS,4)}, s{sF2O} offen sc1")
            self.poll_check(vF23A, f"s{sF2O}")
            for q in range(4):
                for k in range(4):
                    self.a._push(Ins(f"buffer_load_dwordx4 {v(64+4*k,4)}, v{vLIN}, {s(S_WS,4)}, s{sAEND} offen offset:{1024*k} sc1"))
                if q < 3:
                    e(f"s_add_u32 s{sAEND}, s{sAEND}, {(4096, 32768-4096, 4096)[q]}")
        e("s_cmp_lg_u32 s2, 248")
        e("s_cbranch_scc1 L_end")
        e(f"s_cmp_lg_u32 s{sW}, 0")
        e("s_cbranch_scc1 L_end")
        e(f"v_lshlrev_b32 v24, 7, v{vL}")
        e(f"s_mov_b32 s{sSPIN}, 0")
        self.a.label("L_ep")
        for k in range(16):
            e(f"s_mov_b32 s{sT0}, {F1+8192*k}")
            e(f"buffer_load_dword v{40+k}, v24, {s(S_WS,4)}, s{sT0} offen sc1")
        e(f"s_add_u32 s{sSPIN}, s{sSPIN}, 1")
        e("s_waitcnt vmcnt(0)")
        for k in range(16):
            e(f"v_xor_b32 v{40+k}, v{vT}, v{40+k}")
        for k in range(1, 16):
            e(f"v_or_b32 v40, v40, v{40+k}")
        e(f"v_cmp_ne_u32 vcc, 0, v40")
        e(f"s_cmp_gt_u32 s{sSPIN}, 0x8000")
        e("s_cbranch_scc1 L_epd")
        e("s_cbranch_vccnz L_ep")
        self.a.label("L_epd")
        e(f"s_mov_b32 s{sT0}, {E_OFF}")
        e(self.pub_text(sT0))

    def write_stamps(self):
        e = self.e
        if OPT["probe"]:
            e(f"s_sub_u32 s{sT0}, s{sP0+1}, s{sP0}")
            e(f"s_lshl_b32 s{sT0}, s{sT0}, 2")
            e(f"s_add_u32 s{sT0}, s{sT0}, 72000")
            self.a.label("L_probe")
            e(f"s_memtime {s(sM3,2)}")
            e("s_waitcnt lgkmcnt(0)")
            e(f"s_sub_u32 s{sT1}, s{sM3}, s{sP0}")
            e(f"s_cmp_lt_u32 s{sT1}, s{sT0}")
            e("s_cbranch_scc1 L_probe")
        if not OPT["stamps"]:
            return
        e(f"s_lshl_b32 s{sT0}, s2, 2")
        e(f"s_add_u32 s{sT0}, s{sT0}, s{sW}")
        e(f"s_lshl_b32 s{sT1}, s{sT0}, 7")
        e(f"s_add_u32 s{sT1}, s{sT1}, {ST_BASE}")
        e(f"s_mov_b32 s{sT2}, {self.nst}")
        e(f"v_lshlrev_b32 v40, 2, v{vL}")
        e(f"v_writelane_b32 v{vST}, s{sT2}, 31")
        e(f"v_writelane_b32 v{vST}, s{sP0}, 30")
        e("s_memrealtime s[88:89]")
        e("s_waitcnt lgkmcnt(0)")
        e(f"v_writelane_b32 v{vST}, s88, 28")
        e(f"v_cmp_gt_u32 vcc, 32, v{vL}")
        e(f"v_mov_b32 v41, {OOB}")
        e(f"v_cndmask_b32 v40, v41, v40, vcc")
        e(f"buffer_store_dword v{vST}, v40, {s(S_WS,4)}, s{sT1} offen")

    def build(self):
        self.prologue()
        self.phase1()
        self.attention()
        self.de()
        self.a.label("L_end")
        self.e("s_endpgm")
        if OPT["strip"]:
            keep, pro = [], True
            for i in self.a.ins:
                if i.kind == "barrier":
                    pro = False
                drop = i.kind in ("mfma", "trans", "dsread", "dswrite") or (
                    not pro and i.kind == "valu" and any(r[0] == "v" and r != "vcc" and int(r[1:]) >= 30 for r in i.w) and "v40" not in i.w and "v41" not in i.w)
                if OPT["strip"] == 2 and i.kind == "vstore" and "x4" in i.mn:
                    i = Ins(i.text.replace("offen", "offen").replace(f"v{vLIN},", f"v{vL0},").replace("v24,", f"v{vL0},").replace("v25,", f"v{vL0},").replace("v26,", f"v{vL0},").replace("v27,", f"v{vL0},"))
                if not drop:
                    keep.append(i)
            self.a.ins = keep
        self.a.finalize()
        body = self.a.text() + "\n" + "\n".join(t if t.endswith(":") else "    " + t for t in self.tail) + "\nL_code_end:\n    s_endpgm\n"
        head = f"""; Fused gated mix: sliding-window attention branch + GELU FFN branch, one persistent launch.
; @launch grid=(256,1,1) block=(256,1,1) lds={LDS_SIZE}
.amdgcn_target "amdgcn-amd-amdhsa--gfx950"
.text
.globl {NAME}_kernel
.p2align 8
.type {NAME}_kernel,@function
{NAME}_kernel:
"""
        foot = f""".section .rodata,"a"
.p2align 6
.amdhsa_kernel {NAME}_kernel
  .amdhsa_next_free_vgpr 512
  .amdhsa_next_free_sgpr 102
  .amdhsa_accum_offset 256
  .amdhsa_group_segment_fixed_size 0
  .amdhsa_kernarg_size 96
  .amdhsa_user_sgpr_count 2
  .amdhsa_user_sgpr_kernarg_segment_ptr 1
  .amdhsa_system_sgpr_workgroup_id_x 1
  .amdhsa_float_denorm_mode_32 3
.end_amdhsa_kernel
"""
        return head + body + foot


if __name__ == "__main__":
    g = Gen()
    txt = g.build()
    out = sys.argv[1] if len(sys.argv) > 1 else f"cdna_kernels/{NAME}.s"
    open(out, "w").write(txt)
    kinds = {}
    for i in g.a.ins:
        kinds[i.kind] = kinds.get(i.kind, 0) + 1
    print(out, g.a.stats, kinds)
    if OPT["log"]:
        print("\n".join(g.a.log))
        print("model stalls", g.a.stall, "pipe busy", g.a.busy)
```
